```python
import torch

def _softmax(x, axis=-1):
    return torch.softmax(x, dim=axis)
def _gelu(x):
    return torch.nn.functional.gelu(x, approximate="tanh")
def _silu(x):
    return torch.nn.functional.silu(x)
def _sigmoid(x):
    return torch.sigmoid(x)
def _layernorm(x, axis=-1, eps=1e-5):
    m = x.mean(dim=axis, keepdim=True)
    v = x.var(dim=axis, keepdim=True, unbiased=False)
    return (x - m) / torch.sqrt(v + eps)
def _scatter_add(tgt, idx, src, axis=0):
    return tgt.clone().index_add_(axis, idx, src)
def _segment_sum(src, seg, n):
    out = torch.zeros((n,) + src.shape[1:], dtype=src.dtype)
    return out.index_add_(0, seg, src)
def _pad(x, pw):
    flat = tuple(v for pair in reversed(pw) for v in pair)
    return torch.nn.functional.pad(x, flat)

kernel_name = 'concat_heads__mha_block_cached__compressed_kv_cla__decode'

def setup_inputs():

    _w = (lambda a: (lambda t: t.to(torch.bfloat16) if t.is_floating_point() else t)(torch.as_tensor(a)))
    def _A_setup():
        B, Sq, D = 4, 1, 576
        H, Sk, Dh = 32, 4096, 128
        return {
            "x": _w((lambda *s: torch.randn(*s, dtype=torch.bfloat16) * 1.6)(B, Sq, D)),
            "k_cache": _w((lambda *s: torch.randn(*s, dtype=torch.bfloat16) * 1.6)(B, H, Sk, Dh)),
            "v_cache": _w((lambda *s: torch.randn(*s, dtype=torch.bfloat16) * 0.05)(B, H, Sk, Dh)),
            "wq": _w((lambda *s: torch.randn(*s, dtype=torch.bfloat16) * 1.6)(D, H * Dh) * (D ** -0.5)),
            "wo": _w((lambda *s: torch.randn(*s, dtype=torch.bfloat16) * 0.05)(H * Dh, D) * ((H * Dh) ** -0.5)),
        }
    _A_in = _A_setup()

    def _B_setup():
        B, H, Sq, Sk, D, M = 4, 32, 1, 4096, 128, 576
        Dc = 4 * D
        return {
            "x": _w((lambda *s: torch.randn(*s, dtype=torch.bfloat16) * 3.2)(B, Sq, M)),
            "c_kv": _w((lambda *s: torch.randn(*s, dtype=torch.bfloat16) * 0.1)(B, Sk, Dc)),
            "w_q": _w((lambda *s: torch.randn(*s, dtype=torch.bfloat16) * 6.4)(M, H, D) * (M ** -0.5)),
            "w_uk": _w((lambda *s: torch.randn(*s, dtype=torch.bfloat16) * 6.4)(Dc, H, D) * (Dc ** -0.5)),
            "w_uv": _w((lambda *s: torch.randn(*s, dtype=torch.bfloat16) * 0.1)(Dc, H, D) * (Dc ** -0.5)),
            "w_o": _w((lambda *s: torch.randn(*s, dtype=torch.bfloat16) * 0.1)(H, D, M) * ((H * D) ** -0.5)),
        }
    _B_in = _B_setup()

    return {
        "A_x": _A_in["x"],
        "A_k_cache": _A_in["k_cache"],
        "A_v_cache": _A_in["v_cache"],
        "A_wq": _A_in["wq"],
        "A_wo": _A_in["wo"],
        "B_x": _B_in["x"],
        "B_c_kv": _B_in["c_kv"],
        "B_w_q": _B_in["w_q"],
        "B_w_uk": _B_in["w_uk"],
        "B_w_uv": _B_in["w_uv"],
        "B_w_o": _B_in["w_o"],
    }

def reference(A_x, A_k_cache, A_v_cache, A_wq, A_wo, B_x, B_c_kv, B_w_q, B_w_uk, B_w_uv, B_w_o):
    def _A_ref(x, k_cache, v_cache, wq, wo):
        B, Sq, D = x.shape
        H, Dh = 32, 128
        q = (lambda x, *d: x.permute(*d))((x @ wq).reshape(B, Sq, H, Dh), 0, 2, 1, 3)
        scores = torch.einsum("bhqd,bhkd->bhqk", q, k_cache) * (Dh ** -0.5)
        p = _softmax(scores, axis=-1)
        o = torch.einsum("bhqk,bhkd->bhqd", p, v_cache)
        return (lambda x, *d: x.permute(*d))(o, 0, 2, 1, 3).reshape(B, Sq, H * Dh) @ wo

    def _B_ref(x, c_kv, w_q, w_uk, w_uv, w_o):
        B, Sq, M = x.shape[0], x.shape[1], x.shape[2]
        Sk = c_kv.shape[1]
        H, D = w_q.shape[1], w_q.shape[2]
        q = torch.einsum("bqm,mhd->bhqd", x, w_q)
        k = torch.einsum("bkc,chd->bhkd", c_kv, w_uk)
        v = torch.einsum("bkc,chd->bhkd", c_kv, w_uv)
        scores = torch.einsum("bhqd,bhkd->bhqk", q, k) * (D ** -0.5)
        off = Sk - Sq
        qi = torch.arange(Sq)[:, None]
        kj = torch.arange(Sk)[None, :]
        cmask = kj <= (qi + off)
        scores = torch.where(cmask[None, None], scores, -1e9)
        p = _softmax(scores, axis=-1)
        ctx = torch.einsum("bhqk,bhkd->bhqd", p, v)
        return torch.einsum("bhqd,hdm->bqm", ctx, w_o)

    a = _A_ref(A_x, A_k_cache, A_v_cache, A_wq, A_wo)
    b = _B_ref(B_x, B_c_kv, B_w_q, B_w_uk, B_w_uv, B_w_o)
    return torch.concatenate([a, b], axis=-1)
```

```python
import re

REG_RE = re.compile(r'\b([vas])(\d+)\b|\b([vas])\[(\d+):(\d+)\]|\b(vcc|exec|m0|scc)\b')

def regs_of(tok):
    out = set()
    for m in REG_RE.finditer(tok):
        if m.group(1):
            out.add((m.group(1), int(m.group(2))))
        elif m.group(3):
            for i in range(int(m.group(4)), int(m.group(5)) + 1):
                out.add((m.group(3), i))
        else:
            out.add((m.group(6), 0))
    return out

TRANS = ('v_exp_f32', 'v_log_f32', 'v_rcp_f32', 'v_rsq_f32', 'v_sqrt_f32', 'v_sin_f32', 'v_cos_f32')

class Ins:
    def __init__(self, text):
        self.text = text
        t = text.split(';')[0].strip()
        self.label = t.endswith(':')
        self.directive = t.startswith('.') and not self.label
        self.op = t.split()[0] if t else ''
        rest = t[len(self.op):].strip()
        ops = [o.strip() for o in rest.split(',')] if rest else []
        self.ops = ops
        op = self.op
        self.valu = op.startswith('v_') and not op.startswith('v_mfma')
        self.mfma = op.startswith('v_mfma')
        self.vmem = op.startswith('buffer_') or op.startswith('global_')
        self.ds = op.startswith('ds_')
        self.salu = op.startswith('s_')
        self.dpp = '_dpp' in op or 'row_' in rest or 'quad_perm' in rest
        self.trans = any(op.startswith(x) for x in TRANS)
        self.dot = op.startswith('v_dot')
        self.perml = op.startswith('v_permlane')
        self.rdlane = op.startswith('v_readlane') or op.startswith('v_readfirstlane')
        self.w = set(); self.r = set()
        self.srcA = self.srcB = self.srcC = set()
        opregs = [regs_of(o.split(' ')[0] if i == len(ops) - 1 and not self.vmem else o) for i, o in enumerate(ops)]
        if self.label or self.directive or not t:
            return
        if self.mfma:
            self.w = opregs[0]; self.srcA = opregs[1]; self.srcB = opregs[2]; self.srcC = opregs[3]
            self.r = self.srcA | self.srcB | self.srcC
            self.passes = 8 if '32x32' in op else 4
        elif self.vmem:
            lds = rest.endswith(' lds') or ' lds ' in rest
            if 'store' in op or ('atomic' in op and 'sc0' not in rest) or lds:
                for x in opregs: self.r |= x
                if lds: self.r.add(('m0', 0))
                self.ldsdma = lds
                self.wide_store = 'store' in op and ('x4' in op or 'x3' in op)
                self.sdata = opregs[0] if 'store' in op else set()
            else:
                self.w = opregs[0]
                for x in opregs[1:]: self.r |= x
                if 'atomic' in op: self.r |= opregs[0]
        elif self.ds:
            if 'write' in op or op.startswith('ds_add') :
                for x in opregs: self.r |= x
            else:
                self.w = opregs[0]
                for x in opregs[1:]: self.r |= x
        elif self.valu:
            if self.perml:
                self.w = opregs[0] | opregs[1]; self.r = set(self.w)
            else:
                self.w = opregs[0]
                for x in opregs[1:]: self.r |= x
                if op.startswith('v_fmac') or op.startswith('v_dot2c'):
                    self.r |= opregs[0]
                if op.startswith('v_cndmask') and len(ops) == 3: self.r.add(('vcc', 0))
        elif self.salu:
            if op.startswith('s_cmp') or op.startswith('s_cbranch') or op in ('s_waitcnt', 's_barrier', 's_nop', 's_sleep', 's_branch', 's_endpgm', 's_setprio'):
                for x in opregs: self.r |= x
            else:
                if opregs: self.w = opregs[0]
                for x in opregs[1:]: self.r |= x
    def states(self):
        if self.label or self.directive or not self.op: return 0
        if self.op == 's_nop': return int(self.ops[0], 0) + 1
        return 1

def need(p, c):
    n = 0
    vw = {x for x in p.w if x[0] in 'va'}
    sw = {x for x in p.w if x[0] in ('s', 'vcc', 'exec')}
    if p.valu:
        if vw & c.r:
            if c.valu and c.dpp: n = max(n, 2)
            if c.mfma: n = max(n, 2)
            if c.perml: n = max(n, 2)
            if c.rdlane: n = max(n, 1)
            if p.trans and c.valu and not c.trans: n = max(n, 1)
            if p.trans and c.mfma: n = max(n, 2)
        if p.dot and (vw & (c.r | c.w)):
            same = c.op == p.op
            accum_only = same and (vw & c.w) and not (vw & (regs_of(c.ops[1]) | regs_of(c.ops[2].split(' ')[0])))
            if not accum_only: n = max(n, 3)
        if sw & c.r:
            if c.valu: n = max(n, 4 if c.rdlane else 2)
            if c.vmem: n = max(n, 5)
            if c.mfma: n = max(n, 4)
        if ('exec', 0) in p.w:
            if c.dpp: n = max(n, 5)
            if c.mfma or c.perml or c.rdlane: n = max(n, 4)
    if p.mfma:
        P = p.passes
        if c.mfma:
            if p.w & (c.srcA | c.srcB): n = max(n, P + 4)
            if p.w & c.srcC:
                if not (c.srcC == p.w and c.passes == P): n = max(n, P + 2)
            elif p.w & c.w:
                n = max(n, P + 2)
        elif (c.valu or c.vmem or c.ds) and (p.w & (c.r | c.w)):
            n = max(n, P + 4)
        if c.valu and (p.srcC & c.w): n = max(n, P - 1)
    if p.salu and ('m0', 0) in p.w and c.vmem and ('m0', 0) in c.r: n = max(n, 1)
    if p.vmem and getattr(p, 'wide_store', False) and (p.sdata & c.w): n = max(n, 2)
    return n

class Asm:
    def __init__(self):
        self.lines = []
    def __call__(self, text):
        for t in text.split('\n'):
            t = t.strip()
            if t: self.lines.append(t)
    def finish(self):
        out = []; hist = []
        for t in self.lines:
            c = Ins(t)
            if c.op and not (c.label or c.directive):
                dist = 0; req = 0
                for p in reversed(hist):
                    k = need(p, c) - dist
                    if k > req: req = k
                    dist += p.states()
                    if dist > 24: break
                while req > 0:
                    k = min(req, 16)
                    nop = Ins(f's_nop {k-1}')
                    out.append(nop.text); hist.append(nop); req -= k
            out.append(t); hist.append(c)
            if c.op in ('s_branch', 's_endpgm'): hist = []
        return '\n'.join(out) + '\n'

class VM:
    def __init__(self, a):
        self.a = a; self.q = []
    def issue(self, text, tag=None):
        self.a(text); self.q.append(tag)
    def after(self, tag):
        idx = max(i for i, t in enumerate(self.q) if t == tag)
        return len(self.q) - 1 - idx
    def wait(self, tag):
        n = self.after(tag)
        assert n <= 63, n
        self.a(f's_waitcnt vmcnt({n})')
    def reset(self):
        self.q = []
```

```python
import sys, math, struct
from asmlib import Asm, VM
NAME = 'concat_heads__mha_block_cached__compressed_kv_cla__decode'

class Cfg:
    stamps = False
    NS = 6
    wq_flags = 'nt'
    wo_flags = 'nt'
    b_flags = 'nt'
    dma_t0 = 6
    sig_left = 3
    interleave = 6
    wq_per = 3
    spin_max = 400000
cfg = Cfg()

QABS = 0x000000; PSTAT = 0x040000; AST = 0x050000; PART = 0x100000; YA = 0x400000; YB = 0x500000
WS_USED = 0x600000
STAMP = 0x10000000
C1, C2, C3, C4 = 0, 64, 128, 192
OOB = 0x7ff00000
LDS_TOTAL = 163840
SCALE = (128 ** -0.5) * math.log2(math.e)
def f2u(x): return struct.unpack('<I', struct.pack('<f', x))[0]

P_AX, P_K, P_V, P_WQ, P_WO, P_BX, P_CKV, P_BWQ, P_WUK, P_WUV, P_BWO, P_OUT, P_DBG, P_WS = 16, 18, 20, 22, 24, 26, 28, 30, 32, 34, 36, 38, 40, 42
S_X, S_W, S_K, S_V, S_WO, S_WS, S_DBG, S_OUT, S_U = 44, 48, 52, 56, 60, 64, 68, 72, 76
sW, sH, sR = 3, 4, 5
def srd(n): return f's[{n}:{n+3}]'
def vr(n, k=1): return f'v{n}' if k == 1 else f'v[{n}:{n+k-1}]'
def ar(n, k=1): return f'a{n}' if k == 1 else f'a[{n}:{n+k-1}]'

class VAlloc:
    def __init__(self, start=1): self.n = start
    def __call__(self, k=1, align=1):
        align = max(align, 2 if k > 1 else 1)
        self.n = (self.n + align - 1) // align * align
        r = self.n; self.n += k
        assert self.n <= 256, 'out of vgprs'
        return r

a = Asm()
nstamp = [0]
def stamp(k):
    if cfg.stamps:
        a(f's_memrealtime s[100:101]'); a('s_waitcnt lgkmcnt(0)'); a(f's_mov_b32 s{84+k}, s100')
def stamp_flush(vt):
    if cfg.stamps:
        a(f's_lshl_b32 s6, s2, 2'); a(f's_add_u32 s6, s6, s{sW}'); a('s_lshl_b32 s6, s6, 6'); a(f's_add_u32 s6, s6, {STAMP}')
        a(f's_mov_b32 s{S_WS+2}, 0x20000000')
        a(f'v_mov_b32 {vr(vt+1)}, 0')
        a('s_mov_b64 exec, 1')
        for k in range(16):
            a(f'v_mov_b32 {vr(vt)}, s{84+k}')
            a(f'buffer_store_dword {vr(vt)}, {vr(vt+1)}, {srd(S_WS)}, s6 offen offset:{4*k}')
            a('s_nop 1')
        a('s_mov_b64 exec, -1')

def mk_srd(d, p, off, size):
    if off is None:
        a(f's_mov_b32 s{d}, s{p}'); a(f's_mov_b32 s{d+1}, s{p+1}')
    else:
        a(f's_add_u32 s{d}, s{p}, {off}'); a(f's_addc_u32 s{d+1}, s{p+1}, 0')
    a(f's_mov_b32 s{d+2}, {size}'); a(f's_mov_b32 s{d+3}, 0x20000')

uid = [0]
def lab(p):
    uid[0] += 1
    return f'L_{p}_{uid[0]}'

def poll(coff, target, vt):
    L, D = lab('poll'), lab('polld')
    a(f's_cmp_lg_u32 s{sW}, 0'); a(f's_cbranch_scc1 {D}')
    a(f's_mov_b32 s7, {cfg.spin_max}')
    a(f'{L}:')
    a(f'buffer_load_dword {vr(vt)}, off, {srd(S_DBG)}, 0 offset:{coff} sc1')
    a('s_waitcnt vmcnt(0)')
    a(f'v_readfirstlane_b32 s6, {vr(vt)}')
    a(f's_cmp_ge_u32 s6, {target}'); a(f's_cbranch_scc1 {D}')
    a('s_sleep 8')
    a('s_sub_u32 s7, s7, 1'); a('s_cmp_lg_u32 s7, 0'); a(f's_cbranch_scc1 {L}')
    a(f'{D}:')
    a('s_barrier')

def signal(coff, vt):
    D = lab('sig')
    a('s_waitcnt vmcnt(0) lgkmcnt(0)'); a('s_barrier')
    a(f's_cmp_lg_u32 s{sW}, 0'); a(f's_cbranch_scc1 {D}')
    a(f'v_mov_b32 {vr(vt)}, 1'); a('s_mov_b64 exec, 1')
    a(f'buffer_atomic_add {vr(vt)}, off, {srd(S_DBG)}, 0 offset:{coff}')
    a('s_mov_b64 exec, -1')
    a(f'{D}:')

def allred_rows(x, t, op):
    for sw in ('v_permlane16_swap_b32', 'v_permlane32_swap_b32'):
        a(f'v_mov_b32 {vr(t)}, {vr(x)}')
        a(f'{sw} {vr(x)}, {vr(t)}')
        a(f'{op} {vr(x)}, {vr(x)}, {vr(t)}')

DPPF = 'row_mask:0xf bank_mask:0xf'
def reduce4(T, X, S):
    a(f'v_add_f32_dpp {vr(X)}, {vr(T)}, {vr(T)} row_ror:8 row_mask:0xf bank_mask:0x3')
    a(f'v_add_f32_dpp {vr(X+1)}, {vr(T+1)}, {vr(T+1)} row_ror:8 row_mask:0xf bank_mask:0x3')
    a(f'v_add_f32_dpp {vr(X)}, {vr(T+2)}, {vr(T+2)} row_ror:8 row_mask:0xf bank_mask:0xc')
    a(f'v_add_f32_dpp {vr(X+1)}, {vr(T+3)}, {vr(T+3)} row_ror:8 row_mask:0xf bank_mask:0xc')
    a(f'v_add_f32_dpp {vr(S)}, {vr(X)}, {vr(X)} row_half_mirror row_mask:0xf bank_mask:0x5')
    a(f'v_add_f32_dpp {vr(S)}, {vr(X+1)}, {vr(X+1)} row_half_mirror row_mask:0xf bank_mask:0xa')
    a(f'v_add_f32_dpp {vr(S)}, {vr(S)}, {vr(S)} quad_perm:[1,0,3,2] {DPPF}')
    a(f'v_add_f32_dpp {vr(S)}, {vr(S)}, {vr(S)} quad_perm:[2,3,0,1] {DPPF}')

def mk_masks(vLane, MASK, SEL, t0, t1):
    a(f'v_and_b32 {vr(t0)}, 1, {vr(vLane)}'); a(f'v_lshlrev_b32 {vr(t0)}, 4, {vr(t0)}')
    a(f'v_mov_b32 {vr(t1)}, 0xffff'); a(f'v_lshlrev_b32 {vr(t0)}, {vr(t0)}, {vr(t1)}')
    a(f'v_bfe_u32 {vr(t1)}, {vr(vLane)}, 1, 2')
    for r in range(4):
        a(f'v_cmp_eq_u32 vcc, {r}, {vr(t1)}')
        a(f'v_cndmask_b32 {vr(MASK+r)}, 0, {vr(t0)}, vcc')
    a(f'v_mov_b32 {vr(t0)}, 0x0c0c0c0c')
    a('s_mov_b32 s6, 0x01000100'); a('s_mov_b32 s7, 0x03020302')
    for par in range(2):
        for r in range(4):
            a(f'v_bfi_b32 {vr(SEL+4*par+r)}, {vr(MASK+r)}, s{6+par}, {vr(t0)}')

AW = 96

def x_loads(vm, X, vXoff, extra):
    for k in range(4):
        vm.issue(f'buffer_load_dwordx4 {vr(X+4*k,4)}, {vr(vXoff)}, {srd(S_X)}, 0 offen offset:{extra+16*k}', 'x')
    vm.issue(f'buffer_load_dwordx2 {vr(X+16,2)}, {vr(vXoff)}, {srd(S_X)}, 0 offen offset:{extra+64}', 'x')

def wunit_load(vm, jj, vWoff, flags):
    a(f's_mov_b32 s6, {jj*8192}')
    vm.issue(f'buffer_load_dwordx4 {ar(AW+4*jj,4)}, {vr(vWoff)}, {srd(S_W)}, s6 offen {flags}', ('w', jj))

def wunit_mfma(jj, Xs, ACCs, SEL, PA):
    for s, (X, ACC) in enumerate(zip(Xs, ACCs)):
        P = PA + 4 * ((jj * len(Xs) + s) & 3)
        for r in range(4):
            a(f'v_perm_b32 {vr(P+r)}, {vr(X+jj//2)}, {vr(X+jj//2)}, {vr(SEL+4*(jj&1)+r)}')
        c = '0' if jj == 0 else vr(ACC, 4)
        a(f'v_mfma_f32_16x16x32_bf16 {vr(ACC,4)}, {vr(P,4)}, {ar(AW+4*jj,4)}, {c}')

def wo_frag_reads(nks, vT, base=0):
    for t in range(9):
        for ks in range(nks):
            for sec in range(2):
                reg = vT + (1 if t == 8 else 0) + (2 if ks >= 2 else 0)
                off = (32 * (ks & 1) + 4 * sec) * 1152 + (0 if t == 8 else 128 * (t >> 2) + 8 * (t & 3))
                a(f'ds_read_b64_tr_b16 {ar(AW+4*(t*nks+ks)+2*sec,2)}, {vr(reg)} offset:{off}')

def mk_wo_tr_addr(vLane, vT, t0, t1, two):
    a(f'v_lshrrev_b32 {vr(t0)}, 4, {vr(vLane)}'); a(f'v_lshlrev_b32 {vr(t0)}, 3, {vr(t0)}')
    a(f'v_bfe_u32 {vr(t1)}, {vr(vLane)}, 2, 2'); a(f'v_add_u32 {vr(t0)}, {vr(t0)}, {vr(t1)}')
    a(f'v_mul_u32_u24 {vr(t0)}, 1152, {vr(t0)}')
    a(f's_mul_i32 s6, s{sW}, 288'); a(f'v_add_u32 {vr(t0)}, s6, {vr(t0)}')
    a(f'v_and_b32 {vr(t1)}, 3, {vr(vLane)}')
    a(f'v_lshl_add_u32 {vr(vT)}, {vr(t1)}, 5, {vr(t0)}')
    a(f'v_lshl_add_u32 {vr(vT+1)}, {vr(t1)}, 3, {vr(t0)}'); a(f'v_add_u32 {vr(vT+1)}, 256, {vr(vT+1)}')
    if two:
        a(f'v_add_u32 {vr(vT+2)}, 73728, {vr(vT)}'); a(f'v_add_u32 {vr(vT+3)}, 73728, {vr(vT+1)}')

def gen_A():
    NS = cfg.NS
    V = VAlloc(1)
    vLane = V(); vL16 = V(); vWoff = V(); vXoff = V(); t0 = V(); t1 = V(); vC = V()
    MASK = V(4); SEL = V(8); X = V(18); PA = V(16, 4); ACC = V(4, 4); Q = V(4)
    T = V(4); XX = V(2); S = V(); M = V(); M2 = V(); mO = V(); mN = V(); AL = V(); Lr = V(); PP = V()
    vT = V(4); vY = V(); vY8 = V(); vSt = V(); BI = V(4); vOw = V(); vOr = V()
    KR = V(16 * NS, 4)
    D = V(36, 4)
    QRED, OT, STT = 147456, 147456 + 4096, 147456 + 4096 + 1024
    sJJ, sPair, sB, sRank, sOff, sStep, sCnt, sD, sDn, sTrip, sSig, sBsel = 8, 9, 10, 11, 12, 13, 14, 15, 80, 81, 82, 83
    a('A_role:')
    a(f's_sub_u32 s{sJJ}, s{sR}, 2')
    a(f's_cmp_ge_u32 s{sJJ}, 3'); a(f's_cselect_b32 s{sPair}, 1, 0'); a(f's_cselect_b32 s6, 3, 0')
    a(f's_sub_u32 s{sJJ}, s{sJJ}, s6')
    a(f's_lshl_b32 s{sRank}, s{sJJ}, 2'); a(f's_add_u32 s{sRank}, s{sRank}, s{sW}')
    a(f's_cmp_ge_u32 s{sRank}, 6'); a(f's_cselect_b32 s{sBsel}, 1, 0'); a(f's_cselect_b32 s6, 6, 0')
    a(f's_sub_u32 s{sRank}, s{sRank}, s6')
    a(f's_lshl_b32 s{sB}, s{sPair}, 1'); a(f's_add_u32 s{sB}, s{sB}, s{sBsel}')
    a(f'v_and_b32 {vr(vLane)}, 63, v0'); a(f'v_lshlrev_b32 {vr(vL16)}, 4, {vr(vLane)}')
    if cfg.interleave == 6:
        a(f's_lshl_b32 s{sOff}, s{sRank}, 12'); a(f's_mov_b32 s{sStep}, {6*4096}')
        a(f's_cmp_lt_u32 s{sRank}, 4'); a(f's_cselect_b32 s{sCnt}, 43, 42')
        lim = '0x100000'
    else:
        a(f's_cmp_eq_u32 s{sJJ}, 1'); a(f's_cselect_b32 s{sStep}, {2*4096}, {4*4096}')
        a(f's_cselect_b32 s6, 1, 3'); a(f's_and_b32 s6, s6, s{sW}')
        a(f's_cmp_eq_u32 s{sJJ}, 1'); a('s_cselect_b32 s7, 1, 3')
        a(f's_cmp_lt_u32 s6, s7'); a(f's_cselect_b32 s{sCnt}, 43, 42')
        a(f's_sub_u32 s7, s{sJJ}, s{sBsel}')
        a(f's_cmp_eq_u32 s{sBsel}, 0'); a(f's_cselect_b32 s{sOff}, 171, 85')
        a(f's_cselect_b32 s{sD}, 171, 85')
        a(f's_cmp_eq_u32 s7, 0'); a(f's_cselect_b32 s{sOff}, 0, s{sOff}'); a(f's_cselect_b32 s{sD}, s{sD}, 256')
        a(f's_add_u32 s{sOff}, s{sOff}, s6'); a(f's_lshl_b32 s{sOff}, s{sOff}, 12'); a(f's_lshl_b32 s{sD}, s{sD}, 12')
        lim = f's{sD}'
    a(f's_lshl_b32 s6, s{sB}, 5'); a(f's_add_u32 s6, s6, s{sH}'); a('s_lshl_b32 s6, s6, 20')
    a('s_waitcnt lgkmcnt(0)')
    mk_srd(S_K, P_K, 's6', lim); mk_srd(S_V, P_V, 's6', lim)
    a(f's_mul_i32 s6, s{sPair}, 2304'); a(f's_mul_i32 s7, s{sW}, 288'); a('s_add_u32 s6, s6, s7')
    a(f's_sub_u32 s7, 4608, s6')
    mk_srd(S_X, P_AX, 's6', 's7')
    a(f's_mul_i32 s6, s{sW}, {144*8192}'); a(f's_lshl_b32 s7, s{sH}, 8'); a('s_add_u32 s6, s6, s7')
    a(f's_sub_u32 s7, {576*8192}, s6')
    mk_srd(S_W, P_WQ, 's6', 's7')
    a(f'v_lshrrev_b32 {vr(t0)}, 4, {vr(vLane)}'); a(f'v_and_b32 {vr(t1)}, 15, {vr(vLane)}')
    a(f'v_mul_u32_u24 {vr(vWoff)}, {36*8192}, {vr(t0)}'); a(f'v_lshl_add_u32 {vr(vWoff)}, {vr(t1)}, 4, {vr(vWoff)}')
    a(f'v_mul_u32_u24 {vr(vXoff)}, 72, {vr(t0)}'); a(f'v_lshrrev_b32 {vr(t1)}, 3, {vr(t1)}')
    a(f'v_mul_u32_u24 {vr(t1)}, 1152, {vr(t1)}'); a(f'v_add_u32 {vr(vXoff)}, {vr(vXoff)}, {vr(t1)}')
    vm = VM(a)
    x_loads(vm, X, vXoff, 0)
    stream = []
    for s in range(NS):
        for u in range(4): stream.append(('k', s, u))
        for u in range(4): stream.append(('v', s, u))
    order = []; wi = 0; si = 0
    while wi < 36 or si < len(stream):
        for _ in range(cfg.wq_per):
            if wi < 36: order.append(('w', wi)); wi += 1
        for _ in range(4):
            if si < len(stream): order.append(stream[si]); si += 1
    def issue(o):
        if o[0] == 'w': wunit_load(vm, o[1], vWoff, cfg.wq_flags)
        else:
            _, s, u = o
            if o[0] == 'k':
                vm.issue(f'buffer_load_dwordx4 {vr(KR+16*s+4*u,4)}, {vr(vL16)}, {srd(S_K)}, s{sOff} offen offset:{1024*u} nt', o)
            else:
                vm.issue(f'buffer_load_dwordx4 {ar(16*s+4*u,4)}, {vr(vL16)}, {srd(S_V)}, s{sOff} offen offset:{1024*u} nt', o)
                if u == 3: a(f's_add_u32 s{sOff}, s{sOff}, s{sStep}')
    pos = 0
    FIRST = 50
    while pos < min(FIRST, len(order)):
        issue(order[pos]); pos += 1
    stamp(1)
    mk_srd(S_WS, P_WS, None, WS_USED); mk_srd(S_DBG, P_DBG, None, 256)
    a(f's_mul_i32 s6, s{sH}, 147456'); mk_srd(S_WO, P_WO, 's6', 147456)
    mk_masks(vLane, MASK, SEL, t0, t1)
    a(f'v_mov_b32 {vr(vC)}, {f2u(SCALE):#x}')
    a(f'v_mov_b32 {vr(mO)}, 0xff800000'); a(f'v_mov_b32 {vr(Lr)}, 0')
    mk_wo_tr_addr(vLane, vT, t0, t1, True)
    a(f'v_bfe_u32 {vr(t0)}, {vr(vLane)}, 4, 1')
    a(f's_lshl_b32 s6, s{sPair}, 7'); a(f's_lshl_b32 s7, s{sH}, 1'); a('s_add_u32 s6, s6, s7'); a(f's_add_u32 s6, s6, s{sJJ}')
    a(f'v_mul_u32_u24 {vr(t1)}, 63, {vr(t0)}'); a(f'v_add_u32 {vr(t1)}, s6, {vr(t1)}')
    a(f'v_lshlrev_b32 {vr(vSt)}, 3, {vr(t1)}'); a(f'v_add_u32 {vr(vSt)}, {AST}, {vr(vSt)}')
    a(f'v_mul_u32_u24 {vr(vY)}, 2304, {vr(t1)}'); a(f'v_add_u32 {vr(vY)}, {YA}, {vr(vY)}')
    a(f'v_sub_u32 {vr(t1)}, s{sJJ}, {vr(t0)}')
    a(f'v_cmp_lt_u32 vcc, 1, {vr(t1)}')
    a(f'v_mov_b32 {vr(t1)}, {OOB}')
    a(f'v_cndmask_b32 {vr(vY)}, {vr(vY)}, {vr(t1)}, vcc'); a(f'v_cndmask_b32 {vr(vSt)}, {vr(vSt)}, {vr(t1)}, vcc')
    Lc = lab('noclr')
    a(f's_cmp_lg_u32 s{sW}, 0'); a(f's_cbranch_scc1 {Lc}')
    for r in range(4): a(f'v_mov_b32 {vr(D+r)}, -1')
    a(f'v_and_b32 {vr(M)}, 15, {vr(vLane)}'); a(f'v_lshrrev_b32 {vr(M2)}, 5, {vr(vLane)}')
    a(f'v_lshl_add_u32 {vr(M)}, {vr(M2)}, 4, {vr(M)}'); a(f'v_lshl_add_u32 {vr(M)}, {vr(M)}, 4, {vr(vY)}')
    for k in range(4):
        a(f'buffer_store_dwordx4 {vr(D,4)}, {vr(M)}, {srd(S_WS)}, 0 offen offset:{512*k} sc1')
    a('s_mov_b64 exec, 0xffffffff')
    a(f'buffer_store_dwordx4 {vr(D,4)}, {vr(M)}, {srd(S_WS)}, 0 offen offset:2048 sc1')
    a('s_mov_b64 exec, 0x10001')
    a(f'buffer_store_dwordx2 {vr(D,2)}, {vr(vSt)}, {srd(S_WS)}, 0 offen sc1')
    a('s_mov_b64 exec, -1')
    a(f'{Lc}:')
    a(f's_mul_i32 s6, s{sW}, 576')
    a(f'v_add_u32 {vr(vY)}, s6, {vr(vY)}')
    a(f'v_and_b32 {vr(M)}, 3, {vr(vLane)}'); a(f'v_bfe_u32 {vr(M2)}, {vr(vLane)}, 2, 2')
    a(f'v_lshl_add_u32 {vr(M)}, {vr(M)}, 2, {vr(M2)}'); a(f'v_lshl_add_u32 {vr(vY8)}, {vr(M)}, 2, {vr(vY)}')
    a(f'v_and_b32 {vr(M)}, 15, {vr(vLane)}'); a(f'v_lshrrev_b32 {vr(M2)}, 5, {vr(vLane)}')
    a(f'v_lshl_add_u32 {vr(M)}, {vr(M2)}, 4, {vr(M)}'); a(f'v_lshl_add_u32 {vr(vY)}, {vr(M)}, 4, {vr(vY)}')
    a(f'v_mov_b32 {vr(t1)}, 0xff800000')
    for r in range(4):
        a(f's_lshl_b32 s6, s{sJJ}, 2'); a(f's_add_u32 s6, s6, {r}'); a('s_cmp_ge_u32 s6, 6'); a('s_cselect_b32 s6, 1, 0')
        a(f'v_cmp_eq_u32 vcc, s6, {vr(t0)}')
        a(f'v_cndmask_b32 {vr(BI+r)}, {vr(t1)}, 0, vcc')
    a(f'v_and_b32 {vr(M)}, 15, {vr(vLane)}'); a(f'v_lshlrev_b32 {vr(M)}, 4, {vr(M)}')
    a(f'v_lshl_add_u32 {vr(vOw)}, {vr(t0)}, 3, {vr(M)}')
    a(f's_lshl_b32 s6, s{sW}, 8'); a(f's_add_u32 s6, s6, {OT}'); a(f'v_add_u32 {vr(vOw)}, s6, {vr(vOw)}')
    a(f'v_and_b32 {vr(M)}, 3, {vr(vLane)}'); a(f'v_lshlrev_b32 {vr(M)}, 8, {vr(M)}')
    a(f'v_lshrrev_b32 {vr(M2)}, 4, {vr(vLane)}'); a(f'v_lshl_add_u32 {vr(vOr)}, {vr(M2)}, 4, {vr(M)}')
    a(f'v_add_u32 {vr(vOr)}, {OT}, {vr(vOr)}')
    a(f's_mul_i32 s{sD}, s{sW}, 36864')
    a(f's_mov_b32 s{sDn}, 0'); a(f's_mov_b32 s{sTrip}, 0')
    a(f's_cmp_eq_u32 s{sW}, 0'); a(f's_cselect_b32 s{sSig}, {cfg.sig_left}, -1')
    for jj in range(36):
        while ('w', jj) not in vm.q:
            issue(order[pos]); pos += 1
        vm.wait(('w', jj))
        wunit_mfma(jj, [X], [ACC], SEL, PA)
        while pos < len(order) and vm.after(('w', jj)) < 55:
            issue(order[pos]); pos += 1
    assert pos == len(order)
    a(f'v_and_b32 {vr(M)}, 15, {vr(vLane)}'); a(f'v_lshlrev_b32 {vr(M)}, 5, {vr(M)}')
    a(f'v_lshl_add_u32 {vr(M2)}, {vr(t0)}, 4, {vr(M)}')
    a(f'v_lshrrev_b32 {vr(t1)}, 5, {vr(vLane)}'); a(f'v_lshl_add_u32 {vr(M2)}, {vr(t1)}, 9, {vr(M2)}')
    a(f's_lshl_b32 s6, s{sW}, 10'); a(f's_add_u32 s6, s6, {QRED}'); a(f'v_add_u32 {vr(M2)}, s6, {vr(M2)}')
    a(f'ds_write_b128 {vr(M2)}, {vr(ACC,4)}')
    a(f's_lshl_b32 s6, s{sBsel}, 9'); a(f's_add_u32 s6, s6, {QRED}'); a(f'v_add_u32 {vr(M)}, s6, {vr(M)}')
    a('s_waitcnt lgkmcnt(0)'); a('s_barrier')
    for w in range(4):
        a(f'ds_read_b128 {vr(D+8*w,4)}, {vr(M)} offset:{1024*w}')
        a(f'ds_read_b128 {vr(D+8*w+4,4)}, {vr(M)} offset:{1024*w+16}')
    for r in range(4): a(f'v_mov_b32 {vr(ACC+r)}, 0')
    a('s_waitcnt lgkmcnt(0)')
    for e in range(8):
        a(f'v_add_f32 {vr(D+e)}, {vr(D+e)}, {vr(D+8+e)}'); a(f'v_add_f32 {vr(D+16+e)}, {vr(D+16+e)}, {vr(D+24+e)}')
    for e in range(8): a(f'v_add_f32 {vr(D+e)}, {vr(D+e)}, {vr(D+16+e)}')
    for k in range(4): a(f'v_cvt_pk_bf16_f32 {vr(Q+k)}, {vr(D+2*k)}, {vr(D+2*k+1)}')
    stamp(2)
    NW = 8 * NS - 4
    a('A_loop:')
    a(f's_cmp_eq_u32 s{sTrip}, {36//NS}'); a('s_cbranch_scc1 A_wo_event')
    a('A_loop_in:')
    a(f's_add_u32 s{sTrip}, s{sTrip}, 1')
    for s in range(NS):
        K = KR + 16 * s
        a(f's_waitcnt vmcnt({NW})')
        for k in range(4):
            for u in range(4):
                c = '0' if k == 0 else vr(T + u)
                a(f'v_dot2_f32_bf16 {vr(T+u)}, {vr(K+4*u+k)}, {vr(Q+k)}, {c}')
        for u in range(4):
            a(f'buffer_load_dwordx4 {vr(K+4*u,4)}, {vr(vL16)}, {srd(S_K)}, s{sOff} offen offset:{1024*u} nt')
        reduce4(T, XX, S)
        a(f'v_mul_f32 {vr(S)}, {vr(S)}, {vr(vC)}')
        a(f'v_max_f32_dpp {vr(M)}, {vr(S)}, {vr(S)} row_ror:4 {DPPF}')
        a(f'v_max_f32_dpp {vr(M)}, {vr(M)}, {vr(M)} row_ror:8 {DPPF}')
        a(f'v_mov_b32 {vr(M2)}, {vr(M)}'); a(f'v_permlane16_swap_b32 {vr(M)}, {vr(M2)}'); a(f'v_max_f32 {vr(M)}, {vr(M)}, {vr(M2)}')
        a(f'v_mov_b32 {vr(M2)}, {vr(M)}'); a(f'v_permlane32_swap_b32 {vr(M)}, {vr(M2)}')
        a(f'v_max3_f32 {vr(mN)}, {vr(M)}, {vr(M2)}, {vr(mO)}')
        a(f'v_sub_f32 {vr(S)}, {vr(S)}, {vr(mN)}'); a(f'v_sub_f32 {vr(AL)}, {vr(mO)}, {vr(mN)}')
        a(f'v_exp_f32 {vr(S)}, {vr(S)}'); a(f'v_exp_f32 {vr(AL)}, {vr(AL)}')
        a(f'v_mov_b32 {vr(mO)}, {vr(mN)}')
        a(f'v_cvt_pk_bf16_f32 {vr(PP)}, {vr(S)}, {vr(S)}')
        a(f'v_fma_f32 {vr(Lr)}, {vr(Lr)}, {vr(AL)}, {vr(S)}')
        for r in range(4): a(f'v_mul_f32 {vr(ACC+r)}, {vr(ACC+r)}, {vr(AL)}')
        for u in range(4):
            for r in range(4):
                a(f'v_and_b32_dpp {vr(PA+4*u+r)}, {vr(PP)}, {vr(MASK+r)} row_newbcast:{4*u} {DPPF}')
        a(f's_waitcnt vmcnt({NW})')
        for u in range(4):
            a(f'v_mfma_f32_16x16x32_bf16 {vr(ACC,4)}, {vr(PA+4*u,4)}, {ar(16*s+4*u,4)}, {vr(ACC,4)}')
        a(f's_sub_u32 s{sCnt}, s{sCnt}, 1'); a(f's_cmp_eq_u32 s{sCnt}, 0'); a('s_cbranch_scc1 A_tail')
        for u in range(4):
            a(f'buffer_load_dwordx4 {ar(16*s+4*u,4)}, {vr(vL16)}, {srd(S_V)}, s{sOff} offen offset:{1024*u} nt')
        a(f's_add_u32 s{sOff}, s{sOff}, s{sStep}')
        Ls = lab('nodma')
        a(f's_add_u32 s{sDn}, s{sDn}, 1'); a(f's_sub_u32 s6, s{sDn}, {cfg.dma_t0+1}'); a('s_cmp_ge_u32 s6, 18'); a(f's_cbranch_scc1 {Ls}')
        a(f's_mov_b32 m0, s{sD}')
        a(f'buffer_load_dwordx4 {vr(vL16)}, {srd(S_WO)}, s{sD} offen {cfg.wo_flags} lds')
        a(f'buffer_load_dwordx4 {vr(vL16)}, {srd(S_WO)}, s{sD} offen offset:1024 {cfg.wo_flags} lds')
        a(f's_add_u32 s{sD}, s{sD}, 2048')
        a(f'{Ls}:')
        if s >= NS - 4:
            Ls = lab('nosig')
            a(f's_cmp_lg_u32 s{sCnt}, s{sSig}'); a(f's_cbranch_scc1 {Ls}')
            a(f'v_mov_b32 {vr(t0)}, 1'); a('s_mov_b64 exec, 1')
            a(f'buffer_atomic_add {vr(t0)}, off, {srd(S_DBG)}, 0 offset:{C4}')
            a('s_mov_b64 exec, -1')
            a(f'{Ls}:')
    a('s_branch A_loop')
    a('A_wo_event:')
    a('s_barrier')
    wo_frag_reads(4, vT)
    a('s_branch A_loop_in')
    a('A_tail:')
    stamp(3)
    a(f'v_add_f32_dpp {vr(M)}, {vr(Lr)}, {vr(Lr)} row_ror:4 {DPPF}')
    a(f'v_add_f32_dpp {vr(M)}, {vr(M)}, {vr(M)} row_ror:8 {DPPF}')
    allred_rows(M, M2, 'v_add_f32')
    a(f'v_mov_b32 {vr(XX)}, {vr(mO)}'); a(f'v_mov_b32 {vr(XX+1)}, {vr(M)}')
    a(f'v_cvt_pk_bf16_f32 {vr(T)}, {vr(ACC)}, {vr(ACC+1)}'); a(f'v_cvt_pk_bf16_f32 {vr(T+1)}, {vr(ACC+2)}, {vr(ACC+3)}')
    a(f's_lshl_b32 s6, s{sW}, 3'); a(f's_add_u32 s6, s6, {STT}'); a(f'v_mov_b32 {vr(t0)}, s6')
    a(f'ds_write_b64 {vr(vOw)}, {vr(T,2)}')
    a(f'ds_write_b64 {vr(t0)}, {vr(XX,2)}')
    a(f'v_mov_b32 {vr(t0)}, {STT}')
    a('s_waitcnt lgkmcnt(0)'); a('s_barrier')
    for ks in range(4): a(f'ds_read_b128 {vr(PA+4*ks,4)}, {vr(vOr)} offset:{64*ks}')
    ST = X
    a(f'ds_read_b128 {vr(ST,4)}, {vr(t0)}'); a(f'ds_read_b128 {vr(ST+4,4)}, {vr(t0)} offset:16')
    a('s_waitcnt lgkmcnt(2)')
    def tile(t):
        for ks in range(4):
            c = '0' if ks == 0 else vr(D + 4 * t, 4)
            a(f'v_mfma_f32_16x16x32_bf16 {vr(D+4*t,4)}, {vr(PA+4*ks,4)}, {ar(AW+4*(t*4+ks),4)}, {c}')
    tile(0)
    a('s_waitcnt lgkmcnt(0)')
    F = T; G = SEL
    for r in range(4): a(f'v_add_f32 {vr(F+r)}, {vr(ST+2*r)}, {vr(BI+r)}')
    tile(1)
    a(f'v_max_f32 {vr(XX)}, {vr(F)}, {vr(F+1)}'); a(f'v_max3_f32 {vr(XX)}, {vr(XX)}, {vr(F+2)}, {vr(F+3)}')
    for r in range(4): a(f'v_sub_f32 {vr(F+r)}, {vr(F+r)}, {vr(XX)}')
    tile(2)
    for r in range(4): a(f'v_exp_f32 {vr(F+r)}, {vr(F+r)}')
    tile(3)
    a(f'v_cmp_gt_u32 vcc, 32, {vr(vLane)}')
    a(f'v_mul_f32 {vr(XX+1)}, {vr(F)}, {vr(ST+1)}')
    for r in range(1, 4): a(f'v_fma_f32 {vr(XX+1)}, {vr(F+r)}, {vr(ST+2*r+1)}, {vr(XX+1)}')
    for r in range(4):
        a(f'v_cndmask_b32 {vr(G+r)}, 0, {vr(F+r)}, vcc')
    tile(4)
    for r in range(4):
        a(f'v_cndmask_b32 {vr(G+4+r)}, {vr(F+r)}, 0, vcc')
    a(f'v_min_u32 {vr(XX)}, -2, {vr(XX)}'); a(f'v_min_u32 {vr(XX+1)}, -2, {vr(XX+1)}')
    O = ST + 8
    def comb(j, t, first):
        g = G + (4 if t >= 4 else 0)
        for r in range(4):
            if first and r == 0: a(f'v_mul_f32 {vr(O+j)}, {vr(g)}, {vr(D+4*t)}')
            else: a(f'v_fma_f32 {vr(O+j)}, {vr(g+r)}, {vr(D+4*t+r)}, {vr(O+j)}')
    tile(5); comb(0, 0, True); comb(1, 1, True)
    tile(6); comb(2, 2, True); comb(3, 3, True)
    tile(7); comb(0, 4, False); comb(1, 5, False)
    tile(8); comb(2, 6, False)
    Ls = lab('nost')
    a(f's_cmp_lg_u32 s{sW}, 0'); a(f's_cbranch_scc1 {Ls}')
    a('s_mov_b64 exec, 0x10001')
    a(f'buffer_store_dwordx2 {vr(XX,2)}, {vr(vSt)}, {srd(S_WS)}, 0 offen sc1')
    a('s_mov_b64 exec, -1')
    a(f'{Ls}:')
    a('s_nop 3')
    comb(3, 7, False)
    for j in range(4): a(f'v_min_u32 {vr(O+j)}, -2, {vr(O+j)}')
    a(f'buffer_store_dwordx4 {vr(O,4)}, {vr(vY)}, {srd(S_WS)}, 0 offen sc1')
    a(f'v_mul_f32 {vr(O+4)}, {vr(F)}, {vr(D+32)}')
    for r in range(1, 4): a(f'v_fma_f32 {vr(O+4)}, {vr(F+r)}, {vr(D+32+r)}, {vr(O+4)}')
    a(f'v_min_u32 {vr(O+4)}, -2, {vr(O+4)}')
    a('s_mov_b64 exec, 0xffffffff')
    a(f'buffer_store_dword {vr(O+4)}, {vr(vY8)}, {srd(S_WS)}, 0 offen offset:512 sc1')
    a('s_mov_b64 exec, -1')
    stamp(4)
    stamp_flush(M)
    a('s_endpgm')

def gen_B():
    V = VAlloc(1)
    vLane = V(); vL16 = V(); vWoff = V(); vXoff = V(); t0 = V(); t1 = V(); t2 = V(); vI = V(); vG = V()
    base = V.n
    sHalf, sBeta, sB2, sCh, sM0, sSo = 8, 9, 10, 11, 12, 13
    CROW = 1088; CB = 64 * CROW
    PB = 2 * CB; MX = PB + 4096; LS = MX + 512; QRED = LS + 512
    assert QRED + 8192 <= LDS_TOTAL
    fl = cfg.b_flags
    a('B_role:')
    a(f's_mov_b32 s{sHalf}, s{sR}')
    a(f's_lshl_b32 s{sBeta}, s{sH}, 1'); a(f's_add_u32 s{sBeta}, s{sBeta}, s{sHalf}')
    a(f's_lshr_b32 s{sB2}, s{sBeta}, 4'); a(f's_and_b32 s{sCh}, s{sBeta}, 15')
    a(f'v_and_b32 {vr(vLane)}, 63, v0'); a(f'v_lshlrev_b32 {vr(vL16)}, 4, {vr(vLane)}')
    a(f'v_lshrrev_b32 {vr(vG)}, 4, {vr(vLane)}'); a(f'v_and_b32 {vr(vI)}, 15, {vr(vLane)}')
    a('s_waitcnt lgkmcnt(0)')
    a(f's_mul_i32 s6, s{sW}, 288'); a('s_sub_u32 s7, 4608, s6'); mk_srd(S_X, P_BX, 's6', 's7')
    a(f's_mul_i32 s6, s{sW}, {144*8192}'); a(f's_lshl_b32 s7, s{sH}, 8'); a('s_add_u32 s6, s6, s7')
    a(f's_sub_u32 s7, {576*8192}, s6'); mk_srd(S_W, P_BWQ, 's6', 's7')
    a(f's_lshl_b32 s6, s{sHalf}, 2'); a(f's_add_u32 s6, s6, s{sW}'); a('s_lshl_b32 s6, s6, 19')
    a(f's_lshl_b32 s7, s{sH}, 8'); a('s_add_u32 s6, s6, s7'); a(f's_sub_u32 s7, {512*8192}, s6')
    mk_srd(S_U, P_WUK, 's6', 's7')
    a(f's_lshl_b32 s6, s{sBeta}, 18'); mk_srd(S_K, P_CKV, 's6', 0x40000)
    MASK = V(4); SEL = V(8); X0 = V(18); X1 = V(18); PA = V(16, 4); AC0 = V(4, 4); AC1 = V(4, 4)
    UK = V(64, 4); QB = V(16); T = V(4); XX = V(2); U = V(16, 4); D = V(32, 4); vUoff = V()
    a(f'v_mul_u32_u24 {vr(vWoff)}, {36*8192}, {vr(vG)}'); a(f'v_lshl_add_u32 {vr(vWoff)}, {vr(vI)}, 4, {vr(vWoff)}')
    a(f'v_mul_u32_u24 {vr(vXoff)}, 72, {vr(vG)}'); a(f'v_lshrrev_b32 {vr(t1)}, 3, {vr(vI)}')
    a(f'v_mul_u32_u24 {vr(t1)}, 1152, {vr(t1)}'); a(f'v_add_u32 {vr(vXoff)}, {vr(vXoff)}, {vr(t1)}')
    a(f'v_lshlrev_b32 {vr(vUoff)}, 17, {vr(vG)}'); a(f'v_lshl_add_u32 {vr(vUoff)}, {vr(vI)}, 4, {vr(vUoff)}')
    vm = VM(a)
    x_loads(vm, X0, vXoff, 0); x_loads(vm, X1, vXoff, 2304)
    for jj in range(36): wunit_load(vm, jj, vWoff, cfg.wq_flags)
    for u in range(16):
        a(f's_mov_b32 s6, {u*8192}')
        vm.issue(f'buffer_load_dwordx4 {vr(UK+4*u,4)}, {vr(vUoff)}, {srd(S_U)}, s6 offen {fl}', ('u', u))
    mk_srd(S_WS, P_WS, None, WS_USED); mk_srd(S_DBG, P_DBG, None, 256); mk_srd(S_OUT, P_OUT, None, 9216)
    mk_masks(vLane, MASK, SEL, t0, t1)
    def c_dma(vm, rho, k):
        a(f's_add_u32 m0, s{sM0}, {(rho&1)*CB + k*CROW}')
        a(f's_add_u32 s6, s{sSo}, {(64*rho + k)*1024}')
        vm.issue(f'buffer_load_dwordx4 {vr(vL16)}, {srd(S_K)}, s6 offen {fl} lds', ('c', rho))
    a(f's_mul_i32 s{sM0}, s{sW}, {16*CROW}'); a(f's_lshl_b32 s{sSo}, s{sW}, 14')
    dma = [(rho, k) for rho in range(2) for k in range(16)]
    for jj in range(36):
        vm.wait(('w', jj))
        wunit_mfma(jj, [X0, X1], [AC0, AC1], SEL, PA)
        if dma: c_dma(vm, *dma.pop(0))
    assert not dma
    a(f'v_lshlrev_b32 {vr(t0)}, 5, {vr(vI)}')
    a(f'v_and_b32 {vr(t1)}, 1, {vr(vG)}'); a(f'v_lshl_add_u32 {vr(t1)}, {vr(t1)}, 4, {vr(t0)}')
    a(f'v_lshrrev_b32 {vr(t2)}, 5, {vr(vLane)}'); a(f'v_lshl_add_u32 {vr(t1)}, {vr(t2)}, 9, {vr(t1)}')
    a(f's_lshl_b32 s6, s{sW}, 11'); a(f's_add_u32 s6, s6, {QRED}'); a(f'v_add_u32 {vr(t1)}, s6, {vr(t1)}')
    a(f'ds_write_b128 {vr(t1)}, {vr(AC0,4)}'); a(f'ds_write_b128 {vr(t1)}, {vr(AC1,4)} offset:1024')
    a(f'v_add_u32 {vr(t0)}, {QRED}, {vr(t0)}')
    a('s_waitcnt lgkmcnt(0)'); a('s_barrier')
    for b in range(4):
        for w in range(4):
            a(f'ds_read_b128 {vr(D+8*w,4)}, {vr(t0)} offset:{2048*w+512*b}')
            a(f'ds_read_b128 {vr(D+8*w+4,4)}, {vr(t0)} offset:{2048*w+512*b+16}')
        a('s_waitcnt lgkmcnt(0)')
        for e in range(8):
            a(f'v_add_f32 {vr(D+e)}, {vr(D+e)}, {vr(D+8+e)}'); a(f'v_add_f32 {vr(D+16+e)}, {vr(D+16+e)}, {vr(D+24+e)}')
        for e in range(8): a(f'v_add_f32 {vr(D+e)}, {vr(D+e)}, {vr(D+16+e)}')
        for k in range(4): a(f'v_cvt_pk_bf16_f32 {vr(QB+4*b+k)}, {vr(D+2*k)}, {vr(D+2*k+1)}')
    vm.wait(('u', 15))
    for u in range(16):
        for k in range(4):
            for b in range(4):
                c = '0' if k == 0 else vr(T + b)
                a(f'v_dot2_f32_bf16 {vr(T+b)}, {vr(UK+4*u+k)}, {vr(QB+4*b+k)}, {c}')
        reduce4(T, XX, U + u)
    for k in range(8): a(f'v_cvt_pk_bf16_f32 {vr(D+k)}, {vr(U+2*k)}, {vr(U+2*k+1)}')
    a(f'v_bfe_u32 {vr(t0)}, {vr(vLane)}, 2, 2'); a(f'v_lshlrev_b32 {vr(t0)}, 15, {vr(t0)}')
    a(f'v_lshl_add_u32 {vr(t0)}, {vr(vG)}, 5, {vr(t0)}')
    a(f's_lshl_b32 s6, s{sH}, 10'); a(f's_lshl_b32 s7, s{sHalf}, 9'); a('s_add_u32 s6, s6, s7')
    a(f's_lshl_b32 s7, s{sW}, 7'); a('s_add_u32 s6, s6, s7'); a(f's_add_u32 s6, s6, {QABS}')
    a('s_mov_b32 exec_lo, 0x11111111'); a('s_mov_b32 exec_hi, 0x11111111')
    a(f'buffer_store_dwordx4 {vr(D,4)}, {vr(t0)}, {srd(S_WS)}, s6 offen sc1')
    a(f'buffer_store_dwordx4 {vr(D+4,4)}, {vr(t0)}, {srd(S_WS)}, s6 offen offset:16 sc1')
    a('s_mov_b64 exec, -1')
    stamp(1)
    signal(C1, t0)
    stamp(2)
    V = VAlloc(base)
    ACC = V(64, 4); S = V(8, 4); CF = V(64, 4); PF = V(16, 4); MXR = V(12, 4)
    mQ = V(2); mP = V(); lQ = V(2); aQ = V(2); aP = V(); vC = V(); PK = V(4, 2); Mx = V(2); tt = V()
    vA = V(2); vTr = V(2); vMw = V(); vMr = V(); vMp = V(); vPw = V(); vPr = V(); vQ = V()
    a(f's_lshl_b32 s6, s{sW}, 4'); a(f'v_add_u32 {vr(t0)}, s6, {vr(vI)}'); a(f'v_mul_u32_u24 {vr(t0)}, {CROW}, {vr(t0)}')
    a(f'v_lshl_add_u32 {vr(vA)}, {vr(vG)}, 4, {vr(t0)}'); a(f'v_add_u32 {vr(vA+1)}, {CB}, {vr(vA)}')
    a(f'v_lshrrev_b32 {vr(t0)}, 5, {vr(vLane)}'); a(f'v_lshlrev_b32 {vr(t0)}, 3, {vr(t0)}')
    a(f'v_bfe_u32 {vr(t1)}, {vr(vLane)}, 2, 2'); a(f'v_add_u32 {vr(t0)}, {vr(t0)}, {vr(t1)}'); a(f'v_mul_u32_u24 {vr(t0)}, {CROW}, {vr(t0)}')
    a(f'v_and_b32 {vr(t1)}, 1, {vr(vG)}'); a(f'v_lshl_add_u32 {vr(t0)}, {vr(t1)}, 5, {vr(t0)}')
    a(f'v_and_b32 {vr(t1)}, 3, {vr(vLane)}'); a(f'v_lshl_add_u32 {vr(t0)}, {vr(t1)}, 3, {vr(t0)}')
    a(f's_lshl_b32 s6, s{sW}, 8'); a(f'v_add_u32 {vr(vTr)}, s6, {vr(t0)}'); a(f'v_add_u32 {vr(vTr+1)}, {CB}, {vr(vTr)}')
    a(f'v_lshlrev_b32 {vr(vMr)}, 4, {vr(vI)}'); a(f'v_add_u32 {vr(vMr)}, {MX}, {vr(vMr)}')
    a(f's_lshl_b32 s6, s{sW}, 2'); a(f'v_add_u32 {vr(vMw)}, s6, {vr(vMr)}')
    a(f'v_and_b32 {vr(t0)}, 31, {vr(vLane)}'); a(f'v_lshlrev_b32 {vr(vMp)}, 4, {vr(t0)}'); a(f'v_add_u32 {vr(vMp)}, {MX}, {vr(vMp)}')
    a(f'v_lshlrev_b32 {vr(vPr)}, 5, {vr(t0)}'); a(f'v_lshrrev_b32 {vr(t1)}, 5, {vr(vLane)}')
    a(f'v_lshl_add_u32 {vr(vPr)}, {vr(t1)}, 4, {vr(vPr)}'); a(f'v_add_u32 {vr(vPr)}, {PB}, {vr(vPr)}')
    a(f'v_lshlrev_b32 {vr(vPw)}, 5, {vr(vI)}'); a(f'v_lshl_add_u32 {vr(vPw)}, {vr(vG)}, 3, {vr(vPw)}')
    a(f's_lshl_b32 s6, s{sW}, 10'); a(f's_add_u32 s6, s6, {PB}'); a(f'v_add_u32 {vr(vPw)}, s6, {vr(vPw)}')
    a(f'v_lshlrev_b32 {vr(vQ)}, 10, {vr(vI)}'); a(f'v_lshl_add_u32 {vr(vQ)}, {vr(vG)}, 4, {vr(vQ)}')
    a(f'v_mov_b32 {vr(vC)}, {f2u(SCALE):#x}')
    for r in (mQ, mQ + 1, mP): a(f'v_mov_b32 {vr(r)}, 0xff800000')
    a(f'v_mov_b32 {vr(lQ)}, 0'); a(f'v_mov_b32 {vr(lQ+1)}, 0')
    poll(C1, 64, t0)
    stamp(3)
    vm = VM(a)
    for nt in range(2):
        a(f's_lshl_b32 s6, s{sB2}, 15'); a(f's_add_u32 s6, s6, {QABS + nt*16384}')
        for ks in range(16):
            vm.issue(f'buffer_load_dwordx4 {ar(64*nt+4*ks,4)}, {vr(vQ)}, {srd(S_WS)}, s6 offen offset:{64*ks} sc1', 'q')
    for rho in range(4):
        par = rho & 1
        if rho == 0: vm.wait('q')
        elif rho >= 2: vm.wait(('c', rho))
        for ks in range(16):
            a(f'ds_read_b128 {vr(CF+4*ks,4)}, {vr(vA+par)} offset:{64*ks}')
        for ks in range(16):
            a(f's_waitcnt lgkmcnt({15-ks})')
            for nt in range(2):
                c = '0' if ks == 0 else vr(S + 4 * nt, 4)
                a(f'v_mfma_f32_16x16x32_bf16 {vr(S+4*nt,4)}, {vr(CF+4*ks,4)}, {ar(64*nt+4*ks,4)}, {c}')
        for nt in range(2):
            a(f'v_max_f32 {vr(Mx+nt)}, {vr(S+4*nt)}, {vr(S+4*nt+1)}')
            a(f'v_max3_f32 {vr(Mx+nt)}, {vr(Mx+nt)}, {vr(S+4*nt+2)}, {vr(S+4*nt+3)}')
            allred_rows(Mx + nt, tt, 'v_max_f32')
            a(f'ds_write_b32 {vr(vMw)}, {vr(Mx+nt)} offset:{256*nt}')
        a('s_waitcnt lgkmcnt(0)'); a('s_barrier')
        a(f'ds_read_b128 {vr(MXR,4)}, {vr(vMr)}'); a(f'ds_read_b128 {vr(MXR+4,4)}, {vr(vMr)} offset:256'); a(f'ds_read_b128 {vr(MXR+8,4)}, {vr(vMp)}')
        if 1 <= rho <= 2:
            for k in range(16): c_dma(vm, rho + 1, k)
        a('s_waitcnt lgkmcnt(0)')
        for i, (m, al) in enumerate(((mQ, aQ), (mQ + 1, aQ + 1), (mP, aP))):
            R = MXR + 4 * i
            a(f'v_max_f32 {vr(R)}, {vr(R)}, {vr(R+1)}'); a(f'v_max3_f32 {vr(R)}, {vr(R)}, {vr(R+2)}, {vr(R+3)}')
            a(f'v_mul_f32 {vr(R)}, {vr(R)}, {vr(vC)}'); a(f'v_max_f32 {vr(R)}, {vr(R)}, {vr(m)}')
            a(f'v_sub_f32 {vr(al)}, {vr(m)}, {vr(R)}'); a(f'v_exp_f32 {vr(al)}, {vr(al)}'); a(f'v_mov_b32 {vr(m)}, {vr(R)}')
        for nt in range(2):
            for r in range(4):
                a(f'v_fma_f32 {vr(S+4*nt+r)}, {vr(S+4*nt+r)}, {vr(vC)}, -{vr(mQ+nt)}')
            for r in range(4): a(f'v_exp_f32 {vr(S+4*nt+r)}, {vr(S+4*nt+r)}')
            a(f'v_mul_f32 {vr(lQ+nt)}, {vr(lQ+nt)}, {vr(aQ+nt)}')
            a(f'v_cvt_pk_bf16_f32 {vr(PK+2*nt)}, {vr(S+4*nt)}, {vr(S+4*nt+1)}'); a(f'v_cvt_pk_bf16_f32 {vr(PK+2*nt+1)}, {vr(S+4*nt+2)}, {vr(S+4*nt+3)}')
            a(f'ds_write_b64 {vr(vPw)}, {vr(PK+2*nt,2)} offset:{512*nt}')
            for r in range(4): a(f'v_add_f32 {vr(lQ+nt)}, {vr(lQ+nt)}, {vr(S+4*nt+r)}')
        if rho > 0:
            for r in range(64): a(f'v_mul_f32 {vr(ACC+r)}, {vr(ACC+r)}, {vr(aP)}')
        a('s_waitcnt lgkmcnt(0)'); a('s_barrier')
        for ks in range(4): a(f'ds_read_b128 {vr(PF+4*ks,4)}, {vr(vPr)} offset:{1024*ks}')
        for ks in range(4):
            for ct in range(4):
                for sec in range(2):
                    a(f'ds_read_b64_tr_b16 {vr(CF+16*ks+4*ct+2*sec,2)}, {vr(vTr+par)} offset:{(16*ks+4*sec)*CROW + 64*ct}')
        for ks in range(4):
            a(f's_waitcnt lgkmcnt({min(15, 8*(3-ks))})')
            for ct in range(4):
                c = '0' if (rho == 0 and ks == 0) else vr(ACC + 16 * ct, 16)
                a(f'v_mfma_f32_32x32x16_bf16 {vr(ACC+16*ct,16)}, {vr(CF+16*ks+4*ct,4)}, {vr(PF+4*ks,4)}, {c}')
    stamp(4)
    for nt in range(2):
        allred_rows(lQ + nt, tt, 'v_add_f32')
        a(f'ds_write_b32 {vr(vMw)}, {vr(lQ+nt)} offset:{512+256*nt}')
    TROW = 1040
    a(f'v_and_b32 {vr(t0)}, 31, {vr(vLane)}'); a(f'v_mul_u32_u24 {vr(t0)}, {TROW}, {vr(t0)}')
    a(f'v_lshrrev_b32 {vr(t1)}, 5, {vr(vLane)}'); a(f'v_lshl_add_u32 {vr(t0)}, {vr(t1)}, 3, {vr(t0)}')
    a(f's_lshl_b32 s6, s{sW}, 8'); a(f'v_add_u32 {vr(t0)}, s6, {vr(t0)}')
    for ct in range(4):
        for rq in range(4):
            R = ACC + 16 * ct + 4 * rq; P = CF + 2 * (4 * ct + rq)
            a(f'v_cvt_pk_bf16_f32 {vr(P)}, {vr(R)}, {vr(R+1)}'); a(f'v_cvt_pk_bf16_f32 {vr(P+1)}, {vr(R+2)}, {vr(R+3)}')
            a(f'ds_write_b64 {vr(t0)}, {vr(P,2)} offset:{64*ct+16*rq}')
    a('s_waitcnt lgkmcnt(0)'); a('s_barrier')
    a(f's_mul_i32 s6, s{sW}, {8*TROW}'); a(f'v_add_u32 {vr(t0)}, s6, {vr(vL16)}')
    for k in range(8): a(f'ds_read_b128 {vr(CF+32+4*k,4)}, {vr(t0)} offset:{k*TROW}')
    a(f'ds_read_b128 {vr(MXR,4)}, {vr(vMp)} offset:512')
    a(f's_lshl_b32 s7, s{sW}, 19'); a(f's_lshl_b32 s6, s{sBeta}, 10'); a('s_add_u32 s7, s7, s6'); a(f's_add_u32 s7, s7, {PART}')
    for k in range(8):
        a(f's_waitcnt lgkmcnt({8-k})')
        a(f's_add_u32 s6, s7, {k*65536}')
        a(f'buffer_store_dwordx4 {vr(CF+32+4*k,4)}, {vr(vL16)}, {srd(S_WS)}, s6 offen sc1')
    a('s_waitcnt lgkmcnt(0)')
    a(f'v_add_f32 {vr(MXR)}, {vr(MXR)}, {vr(MXR+1)}'); a(f'v_add_f32 {vr(MXR+2)}, {vr(MXR+2)}, {vr(MXR+3)}')
    a(f'v_add_f32 {vr(PK+1)}, {vr(MXR)}, {vr(MXR+2)}'); a(f'v_mov_b32 {vr(PK)}, {vr(mP)}')
    a(f'v_lshlrev_b32 {vr(t0)}, 9, {vr(vLane)}')
    a(f's_lshl_b32 s6, s{sBeta}, 3'); a(f's_add_u32 s6, s6, {PSTAT}')
    Ls = lab('nops')
    a(f's_cmp_lg_u32 s{sW}, 0'); a(f's_cbranch_scc1 {Ls}')
    a('s_mov_b64 exec, 0xffffffff')
    a(f'buffer_store_dwordx2 {vr(PK,2)}, {vr(t0)}, {srd(S_WS)}, s6 offen sc1')
    a('s_mov_b64 exec, -1')
    a(f'{Ls}:')
    signal(C2, t0)
    stamp(5)
    V = VAlloc(base)
    UB = 73728; OT = UB + 65536; RED = OT + 2048
    AF = V(64, 4); BF = V(32, 4); D = V(36, 4); F = V(4); ST = V(2); Mx = V(); Lx = V(); vU = V(2); vR = V(4); vT = V(4); PA = V(8, 4); O = V(12, 4)
    a(f's_mul_i32 s6, s{sBeta}, 73728'); mk_srd(S_WO, P_BWO, 's6', 73728)
    a(f's_lshl_b32 s6, s{sBeta}, 7'); a(f's_sub_u32 s7, {512*8192}, s6'); mk_srd(S_U, P_WUV, 's6', 's7')
    a(f'v_lshrrev_b32 {vr(t0)}, 3, {vr(vLane)}'); a(f'v_and_b32 {vr(t1)}, 7, {vr(vLane)}')
    a(f'v_and_b32 {vr(t2)}, 2, {vr(t0)}'); a(f'v_xor_b32 {vr(t1)}, {vr(t1)}, {vr(t2)}')
    a(f'v_lshlrev_b32 {vr(t0)}, 13, {vr(t0)}')
    a(f'v_lshl_add_u32 {vr(vU)}, {vr(t1)}, 4, {vr(t0)}')
    a(f'v_xor_b32 {vr(t1)}, 4, {vr(t1)}'); a(f'v_lshl_add_u32 {vr(vU+1)}, {vr(t1)}, 4, {vr(t0)}')
    a(f's_lshl_b32 s{sM0}, s{sW}, 14'); a(f's_lshl_b32 s{sSo}, s{sW}, 20')
    for k in range(16):
        a(f's_add_u32 m0, s{sM0}, {UB + k*1024}'); a(f's_add_u32 s6, s{sSo}, {k*65536}')
        a(f'buffer_load_dwordx4 {vr(vU+(k&1))}, {srd(S_U)}, s6 offen {fl} lds')
    a(f's_mul_i32 s{sM0}, s{sW}, 18432')
    for k in range(18):
        a(f's_add_u32 s6, s{sM0}, {k*1024}'); a('s_mov_b32 m0, s6')
        a(f'buffer_load_dwordx4 {vr(vL16)}, {srd(S_WO)}, s6 offen {fl} lds')
    mk_wo_tr_addr(vLane, vT, t0, t1, False)
    a(f'v_bfe_u32 {vr(t0)}, {vr(vLane)}, 2, 2'); a(f'v_lshl_add_u32 {vr(t0)}, {vr(vG)}, 3, {vr(t0)}'); a(f'v_lshlrev_b32 {vr(t0)}, 7, {vr(t0)}')
    a(f'v_and_b32 {vr(t1)}, 3, {vr(vLane)}'); a(f'v_lshl_add_u32 {vr(t0)}, {vr(t1)}, 3, {vr(t0)}'); a(f'v_add_u32 {vr(t0)}, {UB}, {vr(t0)}')
    a(f'v_bfe_u32 {vr(t1)}, {vr(vLane)}, 3, 2')
    for t in range(4):
        a(f'v_xor_b32 {vr(t2)}, {t}, {vr(t1)}'); a(f'v_lshl_add_u32 {vr(vR+t)}, {vr(t2)}, 5, {vr(t0)}')
    a('s_waitcnt vmcnt(0)')
    poll(C2, 64, t0)
    stamp(6)
    a(f'v_lshlrev_b32 {vr(t0)}, 10, {vr(vI)}'); a(f'v_lshl_add_u32 {vr(t0)}, {vr(vG)}, 4, {vr(t0)}')
    a(f'v_lshlrev_b32 {vr(t1)}, 3, {vr(vI)}')
    a(f's_lshl_b32 s6, s{sH}, 9'); a(f's_lshl_b32 s7, s{sW}, 7'); a('s_add_u32 s6, s6, s7'); a(f's_add_u32 s6, s6, {PSTAT}')
    vm = VM(a)
    vm.issue(f'buffer_load_dwordx2 {vr(ST,2)}, {vr(t1)}, {srd(S_WS)}, s6 offen sc1', 'st')
    a(f's_lshl_b32 s6, s{sH}, 16'); a(f's_lshl_b32 s7, s{sW}, 14'); a('s_add_u32 s6, s6, s7'); a(f's_add_u32 s6, s6, {PART}')
    for ks in range(16):
        vm.issue(f'buffer_load_dwordx4 {vr(AF+4*ks,4)}, {vr(t0)}, {srd(S_WS)}, s6 offen offset:{64*ks} sc1', ('a', ks))
    wo_frag_reads(2, vT)
    vm.wait('st')
    a(f'v_mov_b32 {vr(Mx)}, {vr(ST)}')
    for sh in (8, 4, 2, 1): a(f'v_max_f32_dpp {vr(Mx)}, {vr(Mx)}, {vr(Mx)} row_ror:{sh} {DPPF}')
    a(f'v_sub_f32 {vr(ST)}, {vr(ST)}, {vr(Mx)}'); a(f'v_exp_f32 {vr(ST)}, {vr(ST)}')
    a(f'v_mul_f32 {vr(Lx)}, {vr(ST)}, {vr(ST+1)}')
    for sh in (8, 4, 2, 1): a(f'v_add_f32_dpp {vr(Lx)}, {vr(Lx)}, {vr(Lx)} row_ror:{sh} {DPPF}')
    a(f'v_rcp_f32 {vr(Lx)}, {vr(Lx)}'); a(f'v_mul_f32 {vr(ST)}, {vr(ST)}, {vr(Lx)}')
    for r in range(4):
        for q in range(4):
            a(f'v_mov_b32_dpp {vr(F+r)}, {vr(ST)} row_newbcast:{4*q+r} row_mask:{1<<q:#x} bank_mask:0xf')
    a('s_waitcnt lgkmcnt(0)')
    def u_reads(ks):
        for t in range(4):
            for sec in range(2):
                a(f'ds_read_b64_tr_b16 {vr(BF+16*(ks&1)+4*t+2*sec,2)}, {vr(vR+t)} offset:{(32*ks+4*sec)*128}')
    u_reads(0)
    for ks in range(16):
        if ks + 1 < 16: u_reads(ks + 1)
        vm.wait(('a', ks))
        a(f's_waitcnt lgkmcnt({8 if ks + 1 < 16 else 0})')
        for t in range(4):
            c = '0' if ks == 0 else vr(D + 4 * t, 4)
            a(f'v_mfma_f32_16x16x32_bf16 {vr(D+4*t,4)}, {vr(AF+4*ks,4)}, {vr(BF+16*(ks&1)+4*t,4)}, {c}')
    a(f'v_lshlrev_b32 {vr(t0)}, 7, {vr(vG)}'); a(f'v_lshl_add_u32 {vr(t0)}, {vr(vI)}, 1, {vr(t0)}')
    a(f's_lshl_b32 s6, s{sW}, 9'); a(f's_add_u32 s6, s6, {OT}'); a(f'v_add_u32 {vr(t0)}, s6, {vr(t0)}')
    for t in range(4):
        a(f'v_mul_f32 {vr(O+t)}, {vr(F)}, {vr(D+4*t)}')
        for r in range(1, 4): a(f'v_fma_f32 {vr(O+t)}, {vr(F+r)}, {vr(D+4*t+r)}, {vr(O+t)}')
        a(f'v_cvt_pk_bf16_f32 {vr(O+t)}, {vr(O+t)}, {vr(O+t)}')
        a(f'ds_write_b16 {vr(t0)}, {vr(O+t)} offset:{32*t}')
    a(f'v_lshlrev_b32 {vr(t1)}, 7, {vr(vI)}'); a(f'v_lshl_add_u32 {vr(t1)}, {vr(vG)}, 4, {vr(t1)}'); a(f'v_add_u32 {vr(t1)}, {OT}, {vr(t1)}')
    a('s_waitcnt lgkmcnt(0)'); a('s_barrier')
    for ks in range(2): a(f'ds_read_b128 {vr(PA+4*ks,4)}, {vr(t1)} offset:{64*ks}')
    a(f'v_mul_u32_u24 {vr(t0)}, {64*2304}, {vr(vG)}')
    a(f'v_and_b32 {vr(t1)}, 3, {vr(vLane)}'); a(f'v_bfe_u32 {vr(t2)}, {vr(vLane)}, 2, 2')
    a(f'v_lshl_add_u32 {vr(t1)}, {vr(t1)}, 2, {vr(t2)}'); a(f'v_lshl_add_u32 {vr(t1)}, {vr(t1)}, 2, {vr(t0)}')
    a(f'v_lshl_add_u32 {vr(t0)}, {vr(vI)}, 4, {vr(t0)}')
    a(f's_mul_i32 s6, s{sBeta}, 2304'); a(f's_mul_i32 s7, s{sW}, 576'); a('s_add_u32 s6, s6, s7'); a(f's_add_u32 s6, s6, {YB}')
    a('s_waitcnt lgkmcnt(0)')
    for t in range(9):
        for ks in range(2):
            c = '0' if ks == 0 else vr(D + 4 * t, 4)
            a(f'v_mfma_f32_16x16x32_bf16 {vr(D+4*t,4)}, {vr(PA+4*ks,4)}, {ar(AW+4*(t*2+ks),4)}, {c}')
    for t in range(9):
        a(f'v_add_f32 {vr(D+4*t)}, {vr(D+4*t)}, {vr(D+4*t+1)}'); a(f'v_add_f32 {vr(D+4*t+2)}, {vr(D+4*t+2)}, {vr(D+4*t+3)}')
        a(f'v_add_f32 {vr(O+t)}, {vr(D+4*t)}, {vr(D+4*t+2)}')
    a(f'buffer_store_dwordx4 {vr(O,4)}, {vr(t0)}, {srd(S_WS)}, s6 offen sc1')
    a(f'buffer_store_dwordx4 {vr(O+4,4)}, {vr(t0)}, {srd(S_WS)}, s6 offen offset:256 sc1')
    a(f'buffer_store_dword {vr(O+8)}, {vr(t1)}, {srd(S_WS)}, s6 offen offset:512 sc1')
    signal(C3, t0)
    stamp(7)
    V = VAlloc(base)
    Y = V(16, 4); SX = V(16, 4); vYo = V(); vSo = V(); vRw = V(); vRr = V(); vOo = V(); R = V(16); E = V(4)
    sTau, sTb, sSg, sY, sDone = 14, 15, 80, 81, 82
    a(f'v_mul_u32_u24 {vr(vYo)}, 2304, {vr(vG)}'); a(f'v_lshl_add_u32 {vr(vYo)}, {vr(vI)}, 4, {vr(vYo)}')
    a(f'v_lshrrev_b32 {vr(vSo)}, 5, {vr(vLane)}'); a(f'v_lshlrev_b32 {vr(vSo)}, 4, {vr(vSo)}')
    a(f's_lshl_b32 s6, s{sW}, 10'); a(f's_add_u32 s6, s6, {RED}'); a(f'v_add_u32 {vr(vRw)}, s6, {vr(vL16)}')
    a(f'v_lshlrev_b32 {vr(vRr)}, 2, {vr(vLane)}'); a(f'v_add_u32 {vr(vRr)}, {RED}, {vr(vRr)}')
    a(f'v_and_b32 {vr(t1)}, 3, {vr(vLane)}'); a(f'v_bfe_u32 {vr(t2)}, {vr(vLane)}, 2, 2')
    a(f'v_lshl_add_u32 {vr(t1)}, {vr(t1)}, 2, {vr(t2)}'); a(f'v_lshl_add_u32 {vr(t1)}, {vr(vG)}, 4, {vr(t1)}')
    a(f'v_lshlrev_b32 {vr(vOo)}, 1, {vr(t1)}')
    def task_decode(ybase):
        a(f's_mul_i32 s{sTb}, s{sTau}, 57'); a(f's_lshr_b32 s{sTb}, s{sTb}, 9')
        a(f's_mul_i32 s6, s{sTb}, 9'); a(f's_sub_u32 s{sSg}, s{sTau}, s6')
        a(f's_lshl_b32 s6, s{sTb}, 2'); a(f's_add_u32 s6, s6, s{sW}'); a(f's_mul_i32 s{sY}, s6, {16*2304}')
        a(f's_lshl_b32 s6, s{sSg}, 8'); a(f's_add_u32 s{sY}, s{sY}, s6'); a(f's_add_u32 s{sY}, s{sY}, {ybase}')
    def finish(colbase):
        for e in range(4):
            a(f'v_add_f32 {vr(Y+e)}, {vr(Y+e)}, {vr(Y+4+e)}'); a(f'v_add_f32 {vr(Y+8+e)}, {vr(Y+8+e)}, {vr(Y+12+e)}')
        for e in range(4): a(f'v_add_f32 {vr(Y+e)}, {vr(Y+e)}, {vr(Y+8+e)}')
        a(f'ds_write_b128 {vr(vRw)}, {vr(Y,4)}')
        a('s_waitcnt lgkmcnt(0)'); a('s_barrier')
        Ls = lab('fin')
        a(f's_cmp_lg_u32 s{sW}, 0'); a(f's_cbranch_scc1 {Ls}')
        for k in range(8): a(f'ds_read2st64_b32 {vr(R+2*k,2)}, {vr(vRr)} offset0:{2*k} offset1:{2*k+1}')
        a(f's_mul_i32 s6, s{sTb}, 2304'); a(f's_lshl_b32 s7, s{sSg}, 7'); a('s_add_u32 s6, s6, s7')
        a('s_waitcnt lgkmcnt(0)')
        for st in (8, 4, 2, 1):
            for k in range(st): a(f'v_add_f32 {vr(R+k)}, {vr(R+k)}, {vr(R+k+st)}')
        a(f'v_cvt_pk_bf16_f32 {vr(R)}, {vr(R)}, {vr(R)}')
        a(f'buffer_store_short {vr(R)}, {vr(vOo)}, {srd(S_OUT)}, s6 offen offset:{colbase*2}')
        a(f'{Ls}:')
    a(f's_cmp_lt_u32 s{sBeta}, 28'); a('s_cbranch_scc1 R_taskA')
    a(f's_sub_u32 s{sTau}, s{sBeta}, 28'); task_decode(YB)
    poll(C3, 64, t0)
    for t in range(4):
        a(f's_add_u32 s6, s{sY}, {t*4*2304}')
        a(f'buffer_load_dwordx4 {vr(Y+4*t,4)}, {vr(vYo)}, {srd(S_WS)}, s6 offen sc1')
    a('s_waitcnt vmcnt(0)')
    finish(576)
    stamp(8)
    a(f's_cmp_ge_u32 s{sBeta}, 36'); a('s_cbranch_scc1 B_end')
    a('R_taskA:')
    a(f's_mov_b32 s{sTau}, s{sBeta}'); task_decode(YA)
    a(f's_lshl_b32 s6, s{sTb}, 2'); a(f's_add_u32 s6, s6, s{sW}'); a(f's_lshl_b32 s83, s6, 7'); a(f's_add_u32 s83, s83, {AST}')
    a(f'v_and_b32 {vr(t2)}, 1, {vr(vG)}')
    poll(C4, 192, t0)
    stamp(9)
    a(f's_mov_b32 s{sDone}, 0'); a(f's_mov_b32 s7, {cfg.spin_max}')
    a('R_pass:')
    for t in range(4):
        Ls = lab('ld')
        a(f's_bitcmp1_b32 s{sDone}, {t}'); a(f's_cbranch_scc1 {Ls}')
        a(f's_add_u32 s6, s{sY}, {t*4*2304}')
        a(f'buffer_load_dwordx4 {vr(Y+4*t,4)}, {vr(vYo)}, {srd(S_WS)}, s6 offen sc1')
        a(f'buffer_load_dwordx4 {vr(SX+4*t,4)}, {vr(vSo)}, {srd(S_WS)}, s83 offen offset:{32*t} sc1')
        a(f'{Ls}:')
    a('s_waitcnt vmcnt(0)')
    for t in range(4):
        Ls = lab('ck')
        y = Y + 4 * t; s = SX + 4 * t
        a(f's_bitcmp1_b32 s{sDone}, {t}'); a(f's_cbranch_scc1 {Ls}')
        a(f'v_max3_u32 {vr(E)}, {vr(y)}, {vr(y+1)}, {vr(y+2)}'); a(f'v_max3_u32 {vr(E+1)}, {vr(s)}, {vr(s+1)}, {vr(s+2)}')
        a(f'v_max3_u32 {vr(E)}, {vr(E)}, {vr(y+3)}, {vr(s+3)}'); a(f'v_max_u32 {vr(E)}, {vr(E)}, {vr(E+1)}')
        a(f'v_cmp_eq_u32 vcc, -1, {vr(E)}')
        a(f's_cbranch_vccnz {Ls}')
        a(f's_bitset1_b32 s{sDone}, {t}')
        a(f'v_max_f32 {vr(E)}, {vr(s)}, {vr(s+2)}')
        a(f'v_sub_f32 {vr(s)}, {vr(s)}, {vr(E)}'); a(f'v_sub_f32 {vr(s+2)}, {vr(s+2)}, {vr(E)}')
        a(f'v_exp_f32 {vr(s)}, {vr(s)}'); a(f'v_exp_f32 {vr(s+2)}, {vr(s+2)}')
        a(f'v_cmp_eq_u32 vcc, 1, {vr(t2)}')
        a(f'v_mul_f32 {vr(E)}, {vr(s)}, {vr(s+1)}'); a(f'v_fma_f32 {vr(E)}, {vr(s+2)}, {vr(s+3)}, {vr(E)}')
        a(f'v_rcp_f32 {vr(E)}, {vr(E)}')
        a(f'v_cndmask_b32 {vr(s)}, {vr(s)}, {vr(s+2)}, vcc')
        a(f'v_mul_f32 {vr(E)}, {vr(E)}, {vr(s)}')
        for e in range(4): a(f'v_mul_f32 {vr(y+e)}, {vr(y+e)}, {vr(E)}')
        a(f'{Ls}:')
    a(f's_cmp_eq_u32 s{sDone}, 15'); a('s_cbranch_scc1 R_done')
    a('s_sub_u32 s7, s7, 1'); a('s_cmp_lg_u32 s7, 0'); a('s_cbranch_scc1 R_pass')
    a('R_done:')
    stamp(10)
    finish(0)
    stamp(11)
    a('B_end:')
    stamp_flush(t0)
    a('s_endpgm')

def gen():
    hdr = open('/code/' + NAME + '.s.ref').read().split('; Override')[0]
    a(f'{NAME}_kernel:')
    a('s_cmp_ge_u32 s2, 256'); a('s_cbranch_scc1 L_exit')
    a('s_load_dwordx16 s[16:31], s[0:1], 0'); a('s_load_dwordx8 s[32:39], s[0:1], 64'); a('s_load_dwordx4 s[40:43], s[0:1], 96')
    a('v_lshrrev_b32 v1, 6, v0'); a(f'v_readfirstlane_b32 s{sW}, v1')
    a('s_and_b32 s6, s2, 7'); a('s_bfe_u32 s7, s2, 0x20003'); a(f's_lshl_b32 s{sH}, s6, 2'); a(f's_add_u32 s{sH}, s{sH}, s7')
    a(f's_lshr_b32 s{sR}, s2, 5')
    if cfg.stamps:
        a('s_waitcnt lgkmcnt(0)')
        for k in range(16): a(f's_mov_b32 s{84+k}, 0')
        stamp(0)
    a(f's_cmp_lt_u32 s{sR}, 2'); a('s_cbranch_scc1 B_role')
    gen_A()
    a('L_exit:'); a('s_endpgm')
    gen_B()
    body = a.finish()
    out = hdr + f'; @launch grid=(256,1,1) block=(256,1,1) lds={LDS_TOTAL}\n'
    out += '; generated by gen/gen.py (hand-written generator)\n'
    out += f'.amdgcn_target "amdgcn-amd-amdhsa--gfx950"\n.text\n.globl {NAME}_kernel\n.p2align 8\n.type {NAME}_kernel,@function\n'
    out += body
    out += f'''.section .rodata,"a"
.p2align 6
.amdhsa_kernel {NAME}_kernel
  .amdhsa_next_free_vgpr 512
  .amdhsa_next_free_sgpr 102
  .amdhsa_accum_offset 256
  .amdhsa_group_segment_fixed_size 0
  .amdhsa_kernarg_size 112
  .amdhsa_user_sgpr_count 2
  .amdhsa_user_sgpr_kernarg_segment_ptr 1
  .amdhsa_system_sgpr_workgroup_id_x 1
.end_amdhsa_kernel
'''
    return out

if __name__ == '__main__':
    outp = sys.argv[1]
    for kv in sys.argv[2:]:
        k, v = kv.split('=', 1)
        cur = getattr(cfg, k)
        setattr(cfg, k, (v == '1') if isinstance(cur, bool) else type(cur)(v))
    open(outp, 'w').write(gen())
```

```python
import re

REG_RE = re.compile(r'\b([vas])(\d+)\b|\b([vas])\[(\d+):(\d+)\]|\b(vcc|exec|m0|scc)\b')

def regs_of(tok):
    out = set()
    for m in REG_RE.finditer(tok):
        if m.group(1):
            out.add((m.group(1), int(m.group(2))))
        elif m.group(3):
            for i in range(int(m.group(4)), int(m.group(5)) + 1):
                out.add((m.group(3), i))
        else:
            out.add((m.group(6), 0))
    return out

TRANS = ('v_exp_f32', 'v_log_f32', 'v_rcp_f32', 'v_rsq_f32', 'v_sqrt_f32', 'v_sin_f32', 'v_cos_f32')

class Ins:
    def __init__(self, text):
        self.text = text
        t = text.split(';')[0].strip()
        self.label = t.endswith(':')
        self.directive = t.startswith('.') and not self.label
        self.op = t.split()[0] if t else ''
        rest = t[len(self.op):].strip()
        ops = [o.strip() for o in rest.split(',')] if rest else []
        self.ops = ops
        op = self.op
        self.valu = op.startswith('v_') and not op.startswith(('v_mfma', 'v_smfmac'))
        self.mfma = op.startswith(('v_mfma', 'v_smfmac'))
        self.vmem = op.startswith('buffer_') or op.startswith('global_')
        self.ds = op.startswith('ds_')
        self.salu = op.startswith('s_')
        self.dpp = '_dpp' in op or 'row_' in rest or 'quad_perm' in rest
        self.trans = any(op.startswith(x) for x in TRANS)
        self.dot = op.startswith('v_dot')
        self.perml = op.startswith('v_permlane')
        self.rdlane = op.startswith('v_readlane') or op.startswith('v_readfirstlane')
        self.w = set(); self.r = set()
        self.srcA = self.srcB = self.srcC = set()
        opregs = [regs_of(o.split(' ')[0] if i == len(ops) - 1 and not self.vmem else o) for i, o in enumerate(ops)]
        if self.label or self.directive or not t:
            return
        if self.mfma:
            self.w = opregs[0]; self.srcA = opregs[1]; self.srcB = opregs[2]; self.srcC = opregs[3]
            if op.startswith('v_smfmac'): self.srcA = self.srcA | self.srcC; self.srcC = self.w
            self.r = self.srcA | self.srcB | self.srcC
            self.passes = 8 if '32x32' in op else 4
        elif self.vmem:
            lds = rest.endswith(' lds') or ' lds ' in rest
            if 'store' in op or ('atomic' in op and 'sc0' not in rest) or lds:
                for x in opregs: self.r |= x
                if lds: self.r.add(('m0', 0))
                self.ldsdma = lds
                self.wide_store = 'store' in op and ('x4' in op or 'x3' in op)
                self.sdata = opregs[0] if 'store' in op else set()
            else:
                self.w = opregs[0]
                for x in opregs[1:]: self.r |= x
                if 'atomic' in op: self.r |= opregs[0]
        elif self.ds:
            if 'write' in op or op.startswith('ds_add') :
                for x in opregs: self.r |= x
            else:
                self.w = opregs[0]
                for x in opregs[1:]: self.r |= x
        elif self.valu:
            if self.perml:
                self.w = opregs[0] | opregs[1]; self.r = set(self.w)
            else:
                self.w = opregs[0]
                for x in opregs[1:]: self.r |= x
                if op.startswith('v_fmac') or op.startswith('v_dot2c'):
                    self.r |= opregs[0]
                if op.startswith('v_cndmask') and len(ops) == 3: self.r.add(('vcc', 0))
        elif self.salu:
            if op.startswith('s_cmp') or op.startswith('s_cbranch') or op in ('s_waitcnt', 's_barrier', 's_nop', 's_sleep', 's_branch', 's_endpgm', 's_setprio'):
                for x in opregs: self.r |= x
            else:
                if opregs: self.w = opregs[0]
                for x in opregs[1:]: self.r |= x
    def states(self):
        if self.label or self.directive or not self.op: return 0
        if self.op == 's_nop': return int(self.ops[0], 0) + 1
        return 1

def need(p, c):
    n = 0
    vw = {x for x in p.w if x[0] in 'va'}
    sw = {x for x in p.w if x[0] in ('s', 'vcc', 'exec')}
    if p.valu:
        if vw & c.r:
            if c.valu and c.dpp: n = max(n, 2)
            if c.mfma: n = max(n, 2)
            if c.perml: n = max(n, 2)
            if c.rdlane: n = max(n, 1)
            if p.trans and c.valu and not c.trans: n = max(n, 1)
            if p.trans and c.mfma: n = max(n, 2)
        if p.dot and (vw & (c.r | c.w)):
            same = c.op == p.op
            accum_only = same and (vw & c.w) and not (vw & (regs_of(c.ops[1]) | regs_of(c.ops[2].split(' ')[0])))
            if not accum_only: n = max(n, 3)
        if sw & c.r:
            if c.valu: n = max(n, 4 if c.rdlane else 2)
            if c.vmem: n = max(n, 5)
            if c.mfma: n = max(n, 4)
        if ('exec', 0) in p.w:
            if c.dpp: n = max(n, 5)
            if c.mfma or c.perml or c.rdlane: n = max(n, 4)
    if p.mfma:
        P = p.passes
        if c.mfma:
            if p.w & (c.srcA | c.srcB): n = max(n, P + 4)
            if p.w & c.srcC:
                if not (c.srcC == p.w and c.passes == P): n = max(n, P + 2)
            elif p.w & c.w:
                n = max(n, P + 2)
        elif (c.valu or c.vmem or c.ds) and (p.w & (c.r | c.w)):
            n = max(n, P + 4)
        if c.valu and (p.srcC & c.w): n = max(n, P - 1)
    if p.salu and ('m0', 0) in p.w and c.vmem and ('m0', 0) in c.r: n = max(n, 1)
    if p.vmem and getattr(p, 'wide_store', False) and (p.sdata & c.w): n = max(n, 2)
    return n

class Asm:
    def __init__(self):
        self.lines = []
    def __call__(self, text):
        for t in text.split('\n'):
            t = t.strip()
            if t: self.lines.append(t)
    def finish(self):
        out = []; hist = []
        for t in self.lines:
            c = Ins(t)
            if c.op and not (c.label or c.directive):
                dist = 0; req = 0
                for p in reversed(hist):
                    k = need(p, c) - dist
                    if k > req: req = k
                    dist += p.states()
                    if dist > 24: break
                while req > 0:
                    k = min(req, 16)
                    nop = Ins(f's_nop {k-1}')
                    out.append(nop.text); hist.append(nop); req -= k
            out.append(t); hist.append(c)
            if c.op in ('s_branch', 's_endpgm'): hist = []
        return '\n'.join(out) + '\n'

class VM:
    def __init__(self, a, limit=63):
        self.a = a; self.q = []; self.done = 0; self.limit = limit
    def issue(self, text, tag=None):
        if len(self.q) - self.done >= self.limit:
            self.a(f's_waitcnt vmcnt({self.limit-1})'); self.done = len(self.q) - (self.limit - 1)
        self.a(text); self.q.append(tag)
    def after(self, tag):
        idx = max(i for i, t in enumerate(self.q) if t == tag)
        return len(self.q) - 1 - idx
    def wait(self, tag):
        n = self.after(tag)
        if len(self.q) - n <= self.done: return
        assert n <= 63, n
        self.a(f's_waitcnt vmcnt({n})'); self.done = len(self.q) - n
    def reset(self):
        self.q = []; self.done = 0
```

```python
import sys, math, struct
from asmlib import Asm, VM
NAME = 'concat_heads__mha_block_cached__compressed_kv_cla__decode'

class Cfg:
    stamps = False
    R = 8
    wq_flags = 'nt'
    wo_flags = 'nt'
    b_flags = 'nt'
    dma_t0 = 0
    dma_per = 2
    ev_trip = 20
    hmap = 0
    rsleep = 4
    wq_per = 3
    spin_max = 400000
    noB = False
    bskip = 0
    askip = 0
    bstop = 0
    psleep = 16
    nodma = False
    kv_flags = 'nt'
cfg = Cfg()

QABS = 0x000000; PSTAT = 0x040000; AST = 0x050000; PART = 0x100000; YA = 0x400000; YB = 0x500000
WS_USED = 0x600000
STAMP = 0x10000000
C0, FB = 0, 128
OOB = 0x7ff00000
LDS_TOTAL = 163840
SCALE = (128 ** -0.5) * math.log2(math.e)
def f2u(x): return struct.unpack('<I', struct.pack('<f', x))[0]

P_AX, P_K, P_V, P_WQ, P_WO, P_BX, P_CKV, P_BWQ, P_WUK, P_WUV, P_BWO, P_OUT, P_DBG, P_WS = 16, 18, 20, 22, 24, 26, 28, 30, 32, 34, 36, 38, 40, 42
S_X, S_W, S_K, S_V, S_WO, S_WS, S_DBG, S_OUT, S_U = 44, 48, 52, 56, 60, 64, 68, 72, 76
sW, sH, sR = 3, 4, 5
def srd(n): return f's[{n}:{n+3}]'
def vr(n, k=1): return f'v{n}' if k == 1 else f'v[{n}:{n+k-1}]'
def ar(n, k=1): return f'a{n}' if k == 1 else f'a[{n}:{n+k-1}]'

class VAlloc:
    def __init__(self, start=1): self.n = start
    def __call__(self, k=1, align=1):
        align = max(align, 2 if k > 1 else 1)
        self.n = (self.n + align - 1) // align * align
        r = self.n; self.n += k
        assert self.n <= 256, 'out of vgprs'
        return r

a = Asm()
nstamp = [0]
def stamp(k):
    if cfg.stamps:
        a(f's_memrealtime s[100:101]'); a('s_waitcnt lgkmcnt(0)'); a(f's_mov_b32 s{84+k}, s100')
def stamp_flush(vt):
    if cfg.stamps:
        a(f's_lshl_b32 s6, s2, 2'); a(f's_add_u32 s6, s6, s{sW}'); a('s_lshl_b32 s6, s6, 6'); a(f's_add_u32 s6, s6, {STAMP}')
        a(f's_mov_b32 s{S_WS+2}, 0x20000000')
        a(f'v_mov_b32 {vr(vt+1)}, 0')
        a('s_mov_b64 exec, 1')
        for k in range(16):
            a(f'v_mov_b32 {vr(vt)}, s{84+k}')
            a(f'buffer_store_dword {vr(vt)}, {vr(vt+1)}, {srd(S_WS)}, s6 offen offset:{4*k}')
            a('s_nop 1')
        a('s_mov_b64 exec, -1')

def mk_srd(d, p, off, size):
    if off is None:
        a(f's_mov_b32 s{d}, s{p}'); a(f's_mov_b32 s{d+1}, s{p+1}')
    else:
        a(f's_add_u32 s{d}, s{p}, {off}'); a(f's_addc_u32 s{d+1}, s{p+1}, 0')
    a(f's_mov_b32 s{d+2}, {size}'); a(f's_mov_b32 s{d+3}, 0x20000')

uid = [0]
def lab(p):
    uid[0] += 1
    return f'L_{p}_{uid[0]}'

def poll(coff, target, vt):
    L, D = lab('poll'), lab('polld')
    a(f's_cmp_lg_u32 s{sW}, 0'); a(f's_cbranch_scc1 {D}')
    a(f's_mov_b32 s7, {cfg.spin_max}')
    a(f'{L}:')
    a(f'buffer_load_dword {vr(vt)}, off, {srd(S_DBG)}, 0 offset:{coff} sc1')
    a('s_waitcnt vmcnt(0)')
    a(f'v_readfirstlane_b32 s6, {vr(vt)}')
    a(f's_cmp_ge_u32 s6, {target}'); a(f's_cbranch_scc1 {D}')
    a(f's_sleep {cfg.psleep}')
    a('s_sub_u32 s7, s7, 1'); a('s_cmp_lg_u32 s7, 0'); a(f's_cbranch_scc1 {L}')
    a(f'{D}:')
    a('s_barrier')

def ensure(coff, target, vt):
    L, D = lab('ens'), lab('ensd')
    a(f's_mov_b32 s7, {cfg.spin_max}')
    a(f'{L}:')
    a(f'v_readfirstlane_b32 s6, {vr(vt)}')
    a(f's_cmp_ge_u32 s6, {target}'); a(f's_cbranch_scc1 {D}')
    a(f's_sleep {cfg.psleep}')
    a(f'buffer_load_dword {vr(vt)}, off, {srd(S_DBG)}, 0 offset:{coff} sc1')
    a('s_waitcnt vmcnt(0)')
    a('s_sub_u32 s7, s7, 1'); a('s_cmp_lg_u32 s7, 0'); a(f's_cbranch_scc1 {L}')
    a(f'{D}:')

def umax_tree(dst, regs):
    regs = list(regs)
    a(f'v_max3_u32 {vr(dst)}, {vr(regs[0])}, {vr(regs[1])}, {vr(regs[2])}'); regs = regs[3:]
    while len(regs) >= 2:
        a(f'v_max3_u32 {vr(dst)}, {vr(dst)}, {vr(regs[0])}, {vr(regs[1])}'); regs = regs[2:]
    if regs: a(f'v_max_u32 {vr(dst)}, {vr(dst)}, {vr(regs[0])}')

def signal(coff, vt):
    D = lab('sig')
    a('s_waitcnt vmcnt(0) lgkmcnt(0)'); a('s_barrier')
    a(f's_cmp_lg_u32 s{sW}, 0'); a(f's_cbranch_scc1 {D}')
    a(f'v_mov_b32 {vr(vt)}, 1'); a('s_mov_b64 exec, 1')
    a(f'buffer_atomic_add {vr(vt)}, off, {srd(S_DBG)}, 0 offset:{coff}')
    a('s_mov_b64 exec, -1')
    a(f'{D}:')

def allred_rows(x, t, op):
    for sw in ('v_permlane16_swap_b32', 'v_permlane32_swap_b32'):
        a(f'v_mov_b32 {vr(t)}, {vr(x)}')
        a(f'{sw} {vr(x)}, {vr(t)}')
        a(f'{op} {vr(x)}, {vr(x)}, {vr(t)}')

DPPF = 'row_mask:0xf bank_mask:0xf'
def reduce4(T, X, S):
    a(f'v_add_f32_dpp {vr(X)}, {vr(T)}, {vr(T)} row_ror:8 row_mask:0xf bank_mask:0x3')
    a(f'v_add_f32_dpp {vr(X+1)}, {vr(T+1)}, {vr(T+1)} row_ror:8 row_mask:0xf bank_mask:0x3')
    a(f'v_add_f32_dpp {vr(X)}, {vr(T+2)}, {vr(T+2)} row_ror:8 row_mask:0xf bank_mask:0xc')
    a(f'v_add_f32_dpp {vr(X+1)}, {vr(T+3)}, {vr(T+3)} row_ror:8 row_mask:0xf bank_mask:0xc')
    a(f'v_add_f32_dpp {vr(S)}, {vr(X)}, {vr(X)} row_half_mirror row_mask:0xf bank_mask:0x5')
    a(f'v_add_f32_dpp {vr(S)}, {vr(X+1)}, {vr(X+1)} row_half_mirror row_mask:0xf bank_mask:0xa')
    a(f'v_add_f32_dpp {vr(S)}, {vr(S)}, {vr(S)} quad_perm:[1,0,3,2] {DPPF}')
    a(f'v_add_f32_dpp {vr(S)}, {vr(S)}, {vr(S)} quad_perm:[2,3,0,1] {DPPF}')

def mk_masks(vLane, MASK, SEL, t0, t1):
    a(f'v_and_b32 {vr(t0)}, 1, {vr(vLane)}'); a(f'v_lshlrev_b32 {vr(t0)}, 4, {vr(t0)}')
    a(f'v_mov_b32 {vr(t1)}, 0xffff'); a(f'v_lshlrev_b32 {vr(t0)}, {vr(t0)}, {vr(t1)}')
    a(f'v_bfe_u32 {vr(t1)}, {vr(vLane)}, 1, 2')
    for r in range(4):
        a(f'v_cmp_eq_u32 vcc, {r}, {vr(t1)}')
        a(f'v_cndmask_b32 {vr(MASK+r)}, 0, {vr(t0)}, vcc')
    a(f'v_mov_b32 {vr(t0)}, 0x0c0c0c0c')
    a('s_mov_b32 s6, 0x01000100'); a('s_mov_b32 s7, 0x03020302')
    for par in range(2):
        for r in range(4):
            a(f'v_bfi_b32 {vr(SEL+4*par+r)}, {vr(MASK+r)}, s{6+par}, {vr(t0)}')

AW = 96

def x_loads(vm, X, vXoff, extra):
    for k in range(4):
        vm.issue(f'buffer_load_dwordx4 {vr(X+4*k,4)}, {vr(vXoff)}, {srd(S_X)}, 0 offen offset:{extra+16*k}', 'x')
    vm.issue(f'buffer_load_dwordx2 {vr(X+16,2)}, {vr(vXoff)}, {srd(S_X)}, 0 offen offset:{extra+64}', 'x')

def wunit_load(vm, jj, vWoff, flags):
    a(f's_mov_b32 s6, {jj*8192}')
    vm.issue(f'buffer_load_dwordx4 {ar(AW+4*jj,4)}, {vr(vWoff)}, {srd(S_W)}, s6 offen {flags}', ('w', jj))

def wunit_mfma(jj, Xs, ACCs, SEL, PA):
    for s, (X, ACC) in enumerate(zip(Xs, ACCs)):
        P = PA + 4 * ((jj * len(Xs) + s) & 3)
        for r in range(4):
            a(f'v_perm_b32 {vr(P+r)}, {vr(X+jj//2)}, {vr(X+jj//2)}, {vr(SEL+4*(jj&1)+r)}')
        c = '0' if jj == 0 else vr(ACC, 4)
        a(f'v_mfma_f32_16x16x32_bf16 {vr(ACC,4)}, {vr(P,4)}, {ar(AW+4*jj,4)}, {c}')

def wo_frag_reads(nks, vT, base=0):
    for t in range(9):
        for ks in range(nks):
            for sec in range(2):
                reg = vT + (1 if t == 8 else 0) + (2 if ks >= 2 else 0)
                off = (32 * (ks & 1) + 4 * sec) * 1152 + (0 if t == 8 else 128 * (t >> 2) + 8 * (t & 3))
                a(f'ds_read_b64_tr_b16 {ar(AW+4*(t*nks+ks)+2*sec,2)}, {vr(reg)} offset:{off}')

def mk_wo_tr_addr(vLane, vT, t0, t1, two):
    a(f'v_lshrrev_b32 {vr(t0)}, 4, {vr(vLane)}'); a(f'v_lshlrev_b32 {vr(t0)}, 3, {vr(t0)}')
    a(f'v_bfe_u32 {vr(t1)}, {vr(vLane)}, 2, 2'); a(f'v_add_u32 {vr(t0)}, {vr(t0)}, {vr(t1)}')
    a(f'v_mul_u32_u24 {vr(t0)}, 1152, {vr(t0)}')
    a(f's_mul_i32 s6, s{sW}, 288'); a(f'v_add_u32 {vr(t0)}, s6, {vr(t0)}')
    a(f'v_and_b32 {vr(t1)}, 3, {vr(vLane)}')
    a(f'v_lshl_add_u32 {vr(vT)}, {vr(t1)}, 5, {vr(t0)}')
    a(f'v_lshl_add_u32 {vr(vT+1)}, {vr(t1)}, 3, {vr(t0)}'); a(f'v_add_u32 {vr(vT+1)}, 256, {vr(vT+1)}')
    if two:
        a(f'v_add_u32 {vr(vT+2)}, 73728, {vr(vT)}'); a(f'v_add_u32 {vr(vT+3)}, 73728, {vr(vT+1)}')

def gen_A():
    R = cfg.R; NT = 11; RT = R // 4
    assert R % 4 == 0
    V = VAlloc(1)
    vLane = V(); vL16 = V(); vWoff = V(); vXoff = V(); t0 = V(); t1 = V(); vC = V()
    MASK = V(4); SEL = V(8); ACC = V(4, 4); Q = V(4); T = V(4); XX = V(2); S = V(); M = V(); M2 = V(); fN = V()
    X = V(20, 4); PA = V(16, 4); D = X
    P = V(NT); vT = V(4); vY = V(); vY8 = V(); vOw = V(); vOr = V(); vC0 = V(); G = V(8); F = V(4); O = V(6, 2)
    KR = V(16 * R, 4)
    QRED = 147456; OT = QRED + 4096
    sJJ, sPair, sB, sRank, sOff, sReal, sBeg, sD, sDn, sTrip, sSt, sBsel = 8, 9, 10, 11, 12, 13, 14, 15, 80, 81, 82, 83
    sMk = 72
    STEP = 6 * 4096
    a('A_role:')
    a(f's_sub_u32 s{sJJ}, s{sR}, 2')
    a(f's_cmp_ge_u32 s{sJJ}, 3'); a(f's_cselect_b32 s{sPair}, 1, 0'); a(f's_cselect_b32 s6, 3, 0')
    a(f's_sub_u32 s{sJJ}, s{sJJ}, s6')
    a(f's_lshl_b32 s{sRank}, s{sJJ}, 2'); a(f's_add_u32 s{sRank}, s{sRank}, s{sW}')
    a(f's_cmp_ge_u32 s{sRank}, 6'); a(f's_cselect_b32 s{sBsel}, 1, 0'); a(f's_cselect_b32 s6, -1, 1')
    a(f's_add_u32 s{sRank}, s{sRank}, s6')
    a(f's_cmp_ge_u32 s{sRank}, 6'); a(f's_cselect_b32 s6, 6, 0'); a(f's_sub_u32 s{sRank}, s{sRank}, s6')
    a(f's_lshl_b32 s{sB}, s{sPair}, 1'); a(f's_add_u32 s{sB}, s{sB}, s{sBsel}')
    a(f'v_and_b32 {vr(vLane)}, 63, v0'); a(f'v_lshlrev_b32 {vr(vL16)}, 4, {vr(vLane)}')
    a(f's_sub_u32 s{sBeg}, s{sRank}, 8'); a(f's_lshl_b32 s{sBeg}, s{sBeg}, 12'); a(f's_mov_b32 s{sReal}, s{sBeg}')
    def adv():
        a(f's_add_u32 s{sReal}, s{sReal}, {STEP}'); a(f's_min_u32 s{sOff}, s{sReal}, {OOB}')
    adv()
    a(f's_lshl_b32 s{sSt}, s{sB}, 5'); a(f's_add_u32 s{sSt}, s{sSt}, s{sH}')
    a(f's_lshl_b32 s6, s{sSt}, 20')
    a('s_waitcnt lgkmcnt(0)')
    mk_srd(S_K, P_K, 's6', 0x100000); mk_srd(S_V, P_V, 's6', 0x100000)
    a(f's_mul_i32 s6, s{sPair}, 2304'); a(f's_mul_i32 s7, s{sW}, 288'); a('s_add_u32 s6, s6, s7')
    a(f's_sub_u32 s7, 4608, s6')
    mk_srd(S_X, P_AX, 's6', 's7')
    a(f's_mul_i32 s6, s{sW}, {144*8192}'); a(f's_lshl_b32 s7, s{sH}, 8'); a('s_add_u32 s6, s6, s7')
    a(f's_sub_u32 s7, {576*8192}, s6')
    mk_srd(S_W, P_WQ, 's6', 's7')
    if cfg.askip & 1: a(f's_mov_b32 s{S_W+2}, 0')
    a(f'v_lshrrev_b32 {vr(t0)}, 4, {vr(vLane)}'); a(f'v_and_b32 {vr(t1)}, 15, {vr(vLane)}')
    a(f'v_mul_u32_u24 {vr(vWoff)}, {36*8192}, {vr(t0)}'); a(f'v_lshl_add_u32 {vr(vWoff)}, {vr(t1)}, 4, {vr(vWoff)}')
    a(f'v_mul_u32_u24 {vr(vXoff)}, 72, {vr(t0)}'); a(f'v_lshrrev_b32 {vr(t1)}, 3, {vr(t1)}')
    a(f'v_mul_u32_u24 {vr(t1)}, 1152, {vr(t1)}'); a(f'v_add_u32 {vr(vXoff)}, {vr(vXoff)}, {vr(t1)}')
    vm = VM(a)
    x_loads(vm, X, vXoff, 0)
    def ring_ld(s, u):
        return f'buffer_load_dwordx4 {vr(KR+16*s+4*u,4)}, {vr(vL16)}, {srd(S_K)}, s{sOff} offen offset:{1024*u} {cfg.kv_flags}'
    stream = [('k', s, u) for s in range(1, R) for u in range(4)]
    order = []; wi = 0; si = 0
    while wi < 36 or si < len(stream):
        for _ in range(cfg.wq_per):
            if wi < 36: order.append(('w', wi)); wi += 1
        for _ in range(4):
            if si < len(stream): order.append(stream[si]); si += 1
    def issue(o):
        if o[0] == 'w': wunit_load(vm, o[1], vWoff, cfg.wq_flags)
        else:
            vm.issue(ring_ld(o[1], o[2]), o)
            if o[2] == 3: adv()
    pos = 0
    while pos < min(56, len(order)):
        issue(order[pos]); pos += 1
    stamp(1)
    mk_srd(S_WS, P_WS, None, WS_USED); mk_srd(S_DBG, P_DBG, None, 256)
    a(f's_mul_i32 s6, s{sH}, 147456'); mk_srd(S_WO, P_WO, 's6', 147456)
    mk_masks(vLane, MASK, SEL, t0, t1)
    a(f'v_mov_b32 {vr(vC)}, {f2u(SCALE):#x}')
    a(f'v_mov_b32 {vr(P+NT-1)}, 0xff800000')
    mk_wo_tr_addr(vLane, vT, t0, t1, True)
    a(f's_lshl_b32 s{sSt}, s{sSt}, 6'); a(f's_add_u32 s{sSt}, s{sSt}, {AST}')
    a(f's_mov_b64 s[{sMk}:{sMk+1}], 0')
    a(f's_cmp_ge_u32 s{sRank}, 2'); a(f's_cselect_b32 s{sMk+2}, 0x22222222, 0'); a(f's_mov_b32 s{sMk+3}, s{sMk+2}')
    for j in (2, 3):
        a(f's_mov_b32 s{sMk+2*j}, {0x11111111 << j:#x}'); a(f's_mov_b32 s{sMk+2*j+1}, s{sMk+2*j}')
    a(f'v_bfe_u32 {vr(t0)}, {vr(vLane)}, 4, 1')
    a(f's_lshl_b32 s6, s{sPair}, 7'); a(f's_lshl_b32 s7, s{sH}, 1'); a('s_add_u32 s6, s6, s7'); a(f's_add_u32 s6, s6, s{sJJ}')
    a(f'v_mul_u32_u24 {vr(t1)}, 63, {vr(t0)}'); a(f'v_add_u32 {vr(t1)}, s6, {vr(t1)}')
    a(f'v_mul_u32_u24 {vr(vY)}, 2304, {vr(t1)}'); a(f'v_add_u32 {vr(vY)}, {YA}, {vr(vY)}')
    a(f'v_sub_u32 {vr(t1)}, s{sJJ}, {vr(t0)}')
    a(f'v_cmp_lt_u32 vcc, 1, {vr(t1)}')
    a(f'v_mov_b32 {vr(t1)}, {OOB}')
    a(f'v_cndmask_b32 {vr(vY)}, {vr(vY)}, {vr(t1)}, vcc')
    a(f's_mul_i32 s6, s{sW}, 576')
    a(f'v_add_u32 {vr(vY)}, s6, {vr(vY)}')
    a(f'v_and_b32 {vr(M)}, 3, {vr(vLane)}'); a(f'v_bfe_u32 {vr(M2)}, {vr(vLane)}, 2, 2')
    a(f'v_lshl_add_u32 {vr(M)}, {vr(M)}, 2, {vr(M2)}'); a(f'v_lshl_add_u32 {vr(vY8)}, {vr(M)}, 2, {vr(vY)}')
    a(f'v_and_b32 {vr(M)}, 15, {vr(vLane)}'); a(f'v_lshrrev_b32 {vr(M2)}, 5, {vr(vLane)}')
    a(f'v_lshl_add_u32 {vr(M)}, {vr(M2)}, 4, {vr(M)}'); a(f'v_lshl_add_u32 {vr(vY)}, {vr(M)}, 4, {vr(vY)}')
    for r in range(4):
        a(f's_lshl_b32 s6, s{sJJ}, 2'); a(f's_add_u32 s6, s6, {r}'); a('s_cmp_ge_u32 s6, 6'); a('s_cselect_b32 s6, 1, 0')
        a(f'v_cmp_eq_u32 vcc, s6, {vr(t0)}')
        a(f'v_cndmask_b32 {vr(F+r)}, 0, 1.0, vcc')
    a(f'v_cmp_gt_u32 vcc, 32, {vr(vLane)}')
    for r in range(4):
        a(f'v_cndmask_b32 {vr(G+r)}, 0, {vr(F+r)}, vcc'); a(f'v_cndmask_b32 {vr(G+4+r)}, {vr(F+r)}, 0, vcc')
    a(f'v_and_b32 {vr(M)}, 15, {vr(vLane)}'); a(f'v_lshlrev_b32 {vr(M)}, 4, {vr(M)}')
    a(f'v_lshl_add_u32 {vr(vOw)}, {vr(t0)}, 3, {vr(M)}')
    a(f's_lshl_b32 s6, s{sW}, 8'); a(f's_add_u32 s6, s6, {OT}'); a(f'v_add_u32 {vr(vOw)}, s6, {vr(vOw)}')
    a(f'v_and_b32 {vr(M)}, 3, {vr(vLane)}'); a(f'v_lshlrev_b32 {vr(M)}, 8, {vr(M)}')
    a(f'v_lshrrev_b32 {vr(M2)}, 4, {vr(vLane)}'); a(f'v_lshl_add_u32 {vr(vOr)}, {vr(M2)}, 4, {vr(M)}')
    a(f'v_add_u32 {vr(vOr)}, {OT}, {vr(vOr)}')
    a(f's_mul_i32 s{sD}, s{sW}, 36864')
    a(f's_mov_b32 s{sDn}, {(-cfg.dma_t0) & 0xffffffff:#x}'); a(f's_mov_b32 s{sTrip}, 0')
    a(f'v_and_b32 {vr(M)}, 15, {vr(vLane)}'); a(f'v_lshlrev_b32 {vr(M)}, 5, {vr(M)}')
    a(f'v_lshl_add_u32 {vr(M2)}, {vr(t0)}, 4, {vr(M)}')
    a(f'v_lshrrev_b32 {vr(t1)}, 5, {vr(vLane)}'); a(f'v_lshl_add_u32 {vr(M2)}, {vr(t1)}, 9, {vr(M2)}')
    a(f's_lshl_b32 s6, s{sW}, 10'); a(f's_add_u32 s6, s6, {QRED}'); a(f'v_add_u32 {vr(M2)}, s6, {vr(M2)}')
    a(f's_lshl_b32 s6, s{sBsel}, 9'); a(f's_add_u32 s6, s6, {QRED}'); a(f'v_add_u32 {vr(M)}, s6, {vr(M)}')
    for jj in range(36):
        while ('w', jj) not in vm.q:
            issue(order[pos]); pos += 1
        vm.wait(('w', jj))
        wunit_mfma(jj, [X], [ACC], SEL, PA)
        while pos < len(order) and vm.after(('w', jj)) < 60:
            issue(order[pos]); pos += 1
    assert pos == len(order)
    a(f'ds_write_b128 {vr(M2)}, {vr(ACC,4)}')
    a('s_waitcnt lgkmcnt(0)'); a('s_barrier')
    for w in range(4):
        a(f'ds_read_b128 {vr(D+8*w,4)}, {vr(M)} offset:{1024*w}')
        a(f'ds_read_b128 {vr(D+8*w+4,4)}, {vr(M)} offset:{1024*w+16}')
    for r in range(4): a(f'v_mov_b32 {vr(ACC+r)}, 0')
    a('s_waitcnt lgkmcnt(0)')
    for e in range(8):
        a(f'v_add_f32 {vr(D+e)}, {vr(D+e)}, {vr(D+8+e)}'); a(f'v_add_f32 {vr(D+16+e)}, {vr(D+16+e)}, {vr(D+24+e)}')
    for e in range(8): a(f'v_add_f32 {vr(D+e)}, {vr(D+e)}, {vr(D+16+e)}')
    for k in range(4): a(f'v_cvt_pk_bf16_f32 {vr(Q+k)}, {vr(D+2*k)}, {vr(D+2*k+1)}')
    stamp(2)
    NW = 4 * R - 4
    def dma(s):
        if (s % 4) not in {1: (0,), 2: (0, 2), 3: (0, 1, 2), 4: (0, 1, 2, 3)}[cfg.dma_per]: return
        Ls = lab('nodma')
        a(f's_cmp_ge_u32 s{sDn}, {0 if cfg.nodma else 36}'); a(f's_cbranch_scc1 {Ls}')
        a(f's_mov_b32 m0, s{sD}')
        a(f'buffer_load_dwordx4 {vr(vL16)}, {srd(S_WO)}, s{sD} offen {cfg.wo_flags} lds')
        a(f's_add_u32 s{sD}, s{sD}, 1024')
        a(f'{Ls}:')
        a(f's_add_u32 s{sDn}, s{sDn}, 1')
    def shiftP():
        for k in range(NT - 1): a(f'v_mov_b32 {vr(P+k)}, {vr(P+k+1)}')
    dma_end = -(-(cfg.dma_t0 + 36) // cfg.dma_per)
    ev1 = cfg.ev_trip
    assert dma_end + RT <= ev1 and NT <= ev1 <= 2 * NT - 1, (dma_end, ev1)
    a('K_loop:')
    for s in range(R):
        K = KR + 16 * s; j = s % 4
        if j == 0:
            if (NT - RT) % RT == s // 4:
                a(f's_cmp_eq_u32 s{sTrip}, {NT-RT}')
                a(f's_cselect_b32 s{S_K}, s{S_V}, s{S_K}'); a(f's_cselect_b32 s{S_K+1}, s{S_V+1}, s{S_K+1}')
                a(f's_cselect_b32 s{sReal}, s{sBeg}, s{sReal}'); a(f's_min_u32 s{sOff}, s{sReal}, {OOB}')
            if (NT - RT - 1) % RT == s // 4:
                Ls = lab('c0')
                a(f's_cmp_lg_u32 s{sTrip}, {NT-RT-1}'); a(f's_cbranch_scc1 {Ls}')
                a(f'buffer_load_dword {vr(vC0)}, off, {srd(S_DBG)}, 0 offset:{C0} sc1')
                a(f'{Ls}:')
        a(f's_waitcnt vmcnt({NW})')
        for k in range(4):
            for u in range(4):
                c = '0' if k == 0 else vr(T + u)
                a(f'v_dot2_f32_bf16 {vr(T+u)}, {vr(K+4*u+k)}, {vr(Q+k)}, {c}')
        for u in range(4): a(ring_ld(s, u))
        adv(); dma(s)
        reduce4(T, XX, S)
        a(f'v_cndmask_b32 {vr(P+NT-1)}, {vr(P+NT-1)}, {vr(S)}, s[{sMk+2*j}:{sMk+2*j+1}]')
        if j == 3:
            a(f's_add_u32 s{sTrip}, s{sTrip}, 1')
            if (NT - 1) % RT == s // 4:
                a(f's_cmp_eq_u32 s{sTrip}, {NT}'); a('s_cbranch_scc1 A_mid')
            shiftP()
            if s == 3:
                a(f's_lshr_b64 s[{sMk}:{sMk+1}], s[{sMk+4}:{sMk+5}], 2'); a(f's_lshr_b64 s[{sMk+2}:{sMk+3}], s[{sMk+4}:{sMk+5}], 1')
    a('s_branch K_loop')
    a('A_mid:')
    stamp(5)
    a(f'v_max3_f32 {vr(M)}, {vr(P)}, {vr(P+1)}, {vr(P+2)}')
    for k in range(3, NT, 2): a(f'v_max3_f32 {vr(M)}, {vr(M)}, {vr(P+k)}, {vr(P+k+1)}')
    for sh in (8, 4, 2, 1): a(f'v_max_f32_dpp {vr(M)}, {vr(M)}, {vr(M)} row_ror:{sh} {DPPF}')
    allred_rows(M, M2, 'v_max_f32')
    a(f'v_mul_f32 {vr(XX)}, {vr(M)}, {vr(vC)}')
    for k in range(NT): a(f'v_fma_f32 {vr(P+k)}, {vr(P+k)}, {vr(vC)}, -{vr(XX)}')
    for k in range(NT): a(f'v_exp_f32 {vr(P+k)}, {vr(P+k)}')
    a(f'v_add_f32 {vr(M)}, {vr(P)}, {vr(P+1)}')
    for k in range(2, NT): a(f'v_add_f32 {vr(M)}, {vr(M)}, {vr(P+k)}')
    for k in range(NT): a(f'v_cvt_pk_bf16_f32 {vr(P+k)}, {vr(P+k)}, {vr(P+k)}')
    for sh in (8, 4, 2, 1): a(f'v_add_f32_dpp {vr(M)}, {vr(M)}, {vr(M)} row_ror:{sh} {DPPF}')
    allred_rows(M, M2, 'v_add_f32')
    a(f'v_min_u32 {vr(XX)}, -2, {vr(XX)}'); a(f'v_min_u32 {vr(XX+1)}, -2, {vr(M)}')
    if not cfg.noB: ensure(C0, 64, vC0)
    a(f's_lshl_b32 s6, s{sRank}, 3'); a(f's_add_u32 s6, s6, s{sSt}')
    a('s_mov_b64 exec, 1')
    a(f'buffer_store_dwordx2 {vr(XX,2)}, off, {srd(S_WS)}, s6 sc1')
    a('s_mov_b64 exec, -1')
    ent = (4 * NT) % R
    if ent: a('s_branch V_entry')
    ST = X
    def st_loads():
        for k in range(3): a(f'buffer_load_dwordx4 {vr(ST+4*k,4)}, off, {srd(S_WS)}, s{sSt} offset:{16*k} sc1')
    a('V_loop:')
    for s in range(R):
        K = KR + 16 * s; j = s % 4
        if s == ent: a('V_entry:')
        if j == 0:
            if ev1 % RT == s // 4:
                a(f's_cmp_eq_u32 s{sTrip}, {ev1}'); a('s_cbranch_scc1 A_ev1'); a('A_ev1_ret:')
            if (2 * NT - 1) % RT == s // 4:
                Ls = lab('nost')
                a(f's_cmp_lg_u32 s{sTrip}, {2*NT-1-RT}'); a(f's_cbranch_scc1 {Ls}')
                st_loads()
                a(f'{Ls}:')
                a(f's_cmp_eq_u32 s{sTrip}, {2*NT-1}'); a('s_cbranch_scc1 A_ev2'); a('A_ev2_ret:')
            a('s_nop 1')
        for u in range(4):
            for r in range(4):
                a(f'v_and_b32_dpp {vr(PA+4*u+r)}, {vr(P)}, {vr(MASK+r)} row_newbcast:{4*u+j} {DPPF}')
        a(f's_waitcnt vmcnt({NW})')
        for u in range(4):
            a(f'v_mfma_f32_16x16x32_bf16 {vr(ACC,4)}, {vr(PA+4*u,4)}, {vr(K+4*u,4)}, {vr(ACC,4)}')
        if j == 3:
            a(f's_add_u32 s{sTrip}, s{sTrip}, 1')
            if (2 * NT - 1) % RT == s // 4:
                a(f's_cmp_eq_u32 s{sTrip}, {2*NT}'); a('s_cbranch_scc1 A_tail')
        for u in range(4): a(ring_ld(s, u))
        adv(); dma(s)
        if j == 3: shiftP()
    a('s_branch V_loop')
    a('A_ev1:')
    a('s_barrier')
    wo_frag_reads(4, vT)
    a('s_branch A_ev1_ret')
    a('A_ev2:')
    a(f's_mov_b32 s7, {cfg.spin_max}')
    a('A_ev2_chk:')
    umax_tree(M, range(ST, ST + 12))
    a(f'v_cmp_eq_u32 vcc, -1, {vr(M)}')
    a('s_cbranch_vccz A_ev2_ok')
    st_loads()
    a('s_waitcnt vmcnt(0)')
    a('s_sub_u32 s7, s7, 1'); a('s_cmp_lg_u32 s7, 0'); a('s_cbranch_scc1 A_ev2_chk')
    a('A_ev2_ok:')
    a(f'v_max3_f32 {vr(M)}, {vr(ST)}, {vr(ST+2)}, {vr(ST+4)}'); a(f'v_max3_f32 {vr(M2)}, {vr(ST+6)}, {vr(ST+8)}, {vr(ST+10)}')
    a(f'v_max_f32 {vr(M)}, {vr(M)}, {vr(M2)}')
    for k in range(6): a(f'v_sub_f32 {vr(ST+2*k)}, {vr(ST+2*k)}, {vr(M)}')
    a(f'v_sub_f32 {vr(fN)}, {vr(XX)}, {vr(M)}')
    for k in range(6): a(f'v_exp_f32 {vr(ST+2*k)}, {vr(ST+2*k)}')
    a(f'v_exp_f32 {vr(fN)}, {vr(fN)}')
    a(f'v_mul_f32 {vr(M)}, {vr(ST)}, {vr(ST+1)}')
    for k in range(1, 6): a(f'v_fma_f32 {vr(M)}, {vr(ST+2*k)}, {vr(ST+2*k+1)}, {vr(M)}')
    a(f'v_rcp_f32 {vr(M)}, {vr(M)}')
    a(f'v_mul_f32 {vr(fN)}, {vr(fN)}, {vr(M)}')
    a('s_branch A_ev2_ret')
    a('A_tail:')
    stamp(3)
    a('s_nop 4')
    for r in range(4): a(f'v_mul_f32 {vr(ACC+r)}, {vr(ACC+r)}, {vr(fN)}')
    a(f'v_cvt_pk_bf16_f32 {vr(T)}, {vr(ACC)}, {vr(ACC+1)}'); a(f'v_cvt_pk_bf16_f32 {vr(T+1)}, {vr(ACC+2)}, {vr(ACC+3)}')
    a(f'ds_write_b64 {vr(vOw)}, {vr(T,2)}')
    a('s_waitcnt lgkmcnt(0)'); a('s_barrier')
    for ks in range(4): a(f'ds_read_b128 {ar(4*ks,4)}, {vr(vOr)} offset:{64*ks}')
    a('s_waitcnt lgkmcnt(0)')
    def tile(t):
        for ks in range(4):
            c = '0' if ks == 0 else vr(D + 4 * t, 4)
            a(f'v_mfma_f32_16x16x32_bf16 {vr(D+4*t,4)}, {ar(4*ks,4)}, {ar(AW+4*(t*4+ks),4)}, {c}')
    def comb(j, t, first):
        g = G + (4 if t >= 4 else 0)
        for r in range(4):
            if first and r == 0: a(f'v_mul_f32 {vr(O+j)}, {vr(g)}, {vr(D+4*t)}')
            else: a(f'v_fma_f32 {vr(O+j)}, {vr(g+r)}, {vr(D+4*t+r)}, {vr(O+j)}')
    tile(8); tile(0); tile(1)
    a(f'v_mul_f32 {vr(O+4)}, {vr(F)}, {vr(D+32)}')
    for r in range(1, 4): a(f'v_fma_f32 {vr(O+4)}, {vr(F+r)}, {vr(D+32+r)}, {vr(O+4)}')
    tile(2)
    a(f'v_min_u32 {vr(O+4)}, -2, {vr(O+4)}')
    a('s_mov_b64 exec, 0xffffffff')
    a(f'buffer_store_dword {vr(O+4)}, {vr(vY8)}, {srd(S_WS)}, 0 offen offset:512 sc1')
    a('s_mov_b64 exec, -1')
    comb(0, 0, True)
    tile(3); comb(1, 1, True)
    tile(4); comb(2, 2, True)
    tile(5); comb(3, 3, True)
    tile(6); comb(0, 4, False)
    tile(7); comb(1, 5, False); comb(2, 6, False)
    for j in range(3): a(f'v_min_u32 {vr(O+j)}, -2, {vr(O+j)}')
    comb(3, 7, False)
    a(f'v_min_u32 {vr(O+3)}, -2, {vr(O+3)}')
    a(f'buffer_store_dwordx4 {vr(O,4)}, {vr(vY)}, {srd(S_WS)}, 0 offen sc1')
    stamp(4)
    stamp_flush(M)
    a('s_endpgm')

def gen_B():
    V = VAlloc(1)
    vLane = V(); vL16 = V(); vWoff = V(); vXoff = V(); t0 = V(); t1 = V(); t2 = V(); vI = V(); vG = V(); vL16x = V(); vC0 = V()
    base = V.n
    sHalf, sBeta, sB2, sCh, sM0, sSo = 8, 9, 10, 11, 12, 13
    CROW = 1088; CB = 64 * CROW
    QROW = 1056; SQ = 2 * CB; QRED = SQ
    PB = SQ + 16 * QROW; MX = PB + 4096; LS = MX + 512
    assert LS + 512 <= LDS_TOTAL
    fl = cfg.b_flags
    a('B_role:')
    if cfg.noB: a('s_endpgm')
    a(f's_mov_b32 s{sHalf}, s{sR}')
    a(f's_lshl_b32 s{sBeta}, s{sH}, 1'); a(f's_add_u32 s{sBeta}, s{sBeta}, s{sHalf}')
    a(f's_lshr_b32 s{sB2}, s{sBeta}, 4'); a(f's_and_b32 s{sCh}, s{sBeta}, 15')
    a(f'v_and_b32 {vr(vLane)}, 63, v0'); a(f'v_lshlrev_b32 {vr(vL16)}, 4, {vr(vLane)}')
    a(f'v_lshrrev_b32 {vr(vG)}, 4, {vr(vLane)}'); a(f'v_and_b32 {vr(vI)}, 15, {vr(vLane)}')
    a('s_waitcnt lgkmcnt(0)')
    a(f's_mul_i32 s6, s{sW}, 288'); a('s_sub_u32 s7, 4608, s6'); mk_srd(S_X, P_BX, 's6', 's7')
    a(f's_mul_i32 s6, s{sW}, {144*8192}'); a(f's_lshl_b32 s7, s{sH}, 8'); a('s_add_u32 s6, s6, s7')
    a(f's_sub_u32 s7, {576*8192}, s6'); mk_srd(S_W, P_BWQ, 's6', 's7')
    a(f's_lshl_b32 s6, s{sHalf}, 2'); a(f's_add_u32 s6, s6, s{sW}'); a('s_lshl_b32 s6, s6, 19')
    a(f's_lshl_b32 s7, s{sH}, 8'); a('s_add_u32 s6, s6, s7'); a(f's_sub_u32 s7, {512*8192}, s6')
    mk_srd(S_U, P_WUK, 's6', 's7')
    a(f's_lshl_b32 s6, s{sBeta}, 18'); mk_srd(S_K, P_CKV, 's6', 0x40000)
    for bit, R in ((1, S_W), (2, S_U), (4, S_K)):
        if cfg.bskip & bit: a(f's_mov_b32 s{R+2}, 0')
    MASK = V(4); SEL = V(8); X0 = V(18); X1 = V(18); PA = V(16, 4); AC0 = V(4, 4); AC1 = V(4, 4)
    UK = V(64, 4); QB = V(16); T = V(4); XX = V(2); U = V(16, 4); D = V(32, 4); vUoff = V()
    a(f'v_mul_u32_u24 {vr(vWoff)}, {36*8192}, {vr(vG)}'); a(f'v_lshl_add_u32 {vr(vWoff)}, {vr(vI)}, 4, {vr(vWoff)}')
    a(f'v_mul_u32_u24 {vr(vXoff)}, 72, {vr(vG)}'); a(f'v_lshrrev_b32 {vr(t1)}, 3, {vr(vI)}')
    a(f'v_mul_u32_u24 {vr(t1)}, 1152, {vr(t1)}'); a(f'v_add_u32 {vr(vXoff)}, {vr(vXoff)}, {vr(t1)}')
    a(f'v_lshlrev_b32 {vr(vUoff)}, 17, {vr(vG)}'); a(f'v_lshl_add_u32 {vr(vUoff)}, {vr(vI)}, 4, {vr(vUoff)}')
    a(f'v_xor_b32 {vr(vL16x)}, 32, {vr(vL16)}')
    mk_srd(S_WS, P_WS, None, WS_USED)
    vm = VM(a, 49)
    x_loads(vm, X0, vXoff, 0); x_loads(vm, X1, vXoff, 2304)
    Lc = lab('noclr')
    a(f's_cmp_lg_u32 s{sW}, 0'); a(f's_cbranch_scc1 {Lc}')
    for r in range(4): a(f'v_mov_b32 {vr(D+r)}, -1')
    a(f'v_lshrrev_b32 {vr(t0)}, 5, {vr(vLane)}'); a(f'v_lshlrev_b32 {vr(t0)}, 15, {vr(t0)}')
    a(f'v_and_b32 {vr(t1)}, 31, {vr(vLane)}'); a(f'v_lshl_add_u32 {vr(t0)}, {vr(t1)}, 4, {vr(t0)}')
    a(f'v_lshlrev_b32 {vr(t1)}, 9, {vr(t1)}')
    a(f's_lshl_b32 s6, s{sBeta}, 9'); a(f's_add_u32 s7, s6, {QABS + 65536}'); a(f's_add_u32 s6, s6, {QABS}')
    a(f'buffer_store_dwordx4 {vr(D,4)}, {vr(t0)}, {srd(S_WS)}, s6 offen sc1')
    a(f'buffer_store_dwordx4 {vr(D,4)}, {vr(t0)}, {srd(S_WS)}, s7 offen sc1')
    a(f's_lshl_b32 s6, s{sBeta}, 3'); a(f's_add_u32 s6, s6, {PSTAT}')
    a('s_mov_b64 exec, 0xffffffff')
    a(f'buffer_store_dwordx2 {vr(D,2)}, {vr(t1)}, {srd(S_WS)}, s6 offen sc1')
    a(f's_lshl_b32 s6, s{sBeta}, 7'); a(f's_add_u32 s6, s6, {AST}')
    a('s_mov_b64 exec, 0xff')
    a(f'buffer_store_dwordx4 {vr(D,4)}, {vr(vL16)}, {srd(S_WS)}, s6 offen sc1')
    a('s_mov_b64 exec, -1')
    a(f's_mul_i32 s6, s{sBeta}, 9216'); a(f's_add_u32 s6, s6, {YA}')
    for k in range(9):
        if k in (4, 8): a('s_add_u32 s6, s6, 4096')
        a(f'buffer_store_dwordx4 {vr(D,4)}, {vr(vL16)}, {srd(S_WS)}, s6 offen offset:{1024*(k&3)} sc1')
    a(f'{Lc}:')
    for jj in range(36): wunit_load(vm, jj, vWoff, cfg.wq_flags)
    def uk_load(u):
        a(f's_mov_b32 s6, {u*8192}')
        vm.issue(f'buffer_load_dwordx4 {vr(UK+4*u,4)}, {vr(vUoff)}, {srd(S_U)}, s6 offen {fl}', ('u', u))
    for u in range(3): uk_load(u)
    mk_srd(S_DBG, P_DBG, None, 256); mk_srd(S_OUT, P_OUT, None, 9216)
    mk_masks(vLane, MASK, SEL, t0, t1)
    def c_dma(rho, k):
        a(f's_add_u32 m0, s{sM0}, {(rho&1)*CB + k*CROW}')
        a(f's_add_u32 s6, s{sSo}, {(64*rho + k)*1024}')
        vm.issue(f'buffer_load_dwordx4 {vr(vL16x if k >= 8 else vL16)}, {srd(S_K)}, s6 offen {fl} lds', ('c', rho))
    def c_reg(rho, k):
        a(f's_add_u32 s6, s{sSo}, {(64*rho + k)*1024}')
        vm.issue(f'buffer_load_dwordx4 {ar(64*rho+4*k,4)}, {vr(vL16x if k >= 8 else vL16)}, {srd(S_K)}, s6 offen {fl}', ('c', rho))
    a(f's_mul_i32 s{sM0}, s{sW}, {16*CROW}'); a(f's_lshl_b32 s{sSo}, s{sW}, 14')
    dma = [(rho, k) for rho in range(2) for k in range(16)]
    for jj in range(36):
        vm.wait(('w', jj))
        if jj == 0:
            Ls = lab('sig0')
            a(f's_cmp_lg_u32 s{sW}, 0'); a(f's_cbranch_scc1 {Ls}')
            a(f'v_mov_b32 {vr(t2)}, 1'); a('s_mov_b64 exec, 1')
            a(f'buffer_atomic_add {vr(t2)}, off, {srd(S_DBG)}, 0 offset:{C0}')
            a('s_mov_b64 exec, -1')
            a(f'{Ls}:')
            vm.limit = 61
            for u in range(3, 16): uk_load(u)
        wunit_mfma(jj, [X0, X1], [AC0, AC1], SEL, PA)
        if jj == 28: vm.issue(f'buffer_load_dword {vr(vC0)}, off, {srd(S_DBG)}, 0 offset:{C0} sc1', 'c0')
        if dma: c_dma(*dma.pop(0))
    assert not dma
    a(f'v_lshlrev_b32 {vr(t0)}, 5, {vr(vI)}')
    a(f'v_and_b32 {vr(t1)}, 1, {vr(vG)}'); a(f'v_lshl_add_u32 {vr(t1)}, {vr(t1)}, 4, {vr(t0)}')
    a(f'v_lshrrev_b32 {vr(t2)}, 5, {vr(vLane)}'); a(f'v_lshl_add_u32 {vr(t1)}, {vr(t2)}, 9, {vr(t1)}')
    a(f's_lshl_b32 s6, s{sW}, 11'); a(f's_add_u32 s6, s6, {QRED}'); a(f'v_add_u32 {vr(t1)}, s6, {vr(t1)}')
    a(f'ds_write_b128 {vr(t1)}, {vr(AC0,4)}'); a(f'ds_write_b128 {vr(t1)}, {vr(AC1,4)} offset:1024')
    a(f'v_add_u32 {vr(t0)}, {QRED}, {vr(t0)}')
    a('s_waitcnt lgkmcnt(0)'); a('s_barrier')
    for b in range(4):
        for w in range(4):
            a(f'ds_read_b128 {vr(D+8*w,4)}, {vr(t0)} offset:{2048*w+512*b}')
            a(f'ds_read_b128 {vr(D+8*w+4,4)}, {vr(t0)} offset:{2048*w+512*b+16}')
        a('s_waitcnt lgkmcnt(0)')
        for e in range(8):
            a(f'v_add_f32 {vr(D+e)}, {vr(D+e)}, {vr(D+8+e)}'); a(f'v_add_f32 {vr(D+16+e)}, {vr(D+16+e)}, {vr(D+24+e)}')
        for e in range(8): a(f'v_add_f32 {vr(D+e)}, {vr(D+e)}, {vr(D+16+e)}')
        for k in range(4): a(f'v_cvt_pk_bf16_f32 {vr(QB+4*b+k)}, {vr(D+2*k)}, {vr(D+2*k+1)}')
    vm.wait(('u', 15))
    for u in range(16):
        for k in range(4):
            for b in range(4):
                c = '0' if k == 0 else vr(T + b)
                a(f'v_dot2_f32_bf16 {vr(T+b)}, {vr(UK+4*u+k)}, {vr(QB+4*b+k)}, {c}')
        reduce4(T, XX, U + u)
    for k in range(8): a(f'v_cvt_pk_bf16_f32 {vr(D+k)}, {vr(U+2*k)}, {vr(U+2*k+1)}')
    for k in range(8): a(f'v_min_u32 {vr(D+k)}, -2, {vr(D+k)}')
    a(f'v_bfe_u32 {vr(t0)}, {vr(vLane)}, 2, 2'); a(f'v_lshlrev_b32 {vr(t0)}, 15, {vr(t0)}')
    a(f'v_lshl_add_u32 {vr(t0)}, {vr(vG)}, 5, {vr(t0)}')
    a(f's_lshl_b32 s6, s{sH}, 10'); a(f's_lshl_b32 s7, s{sHalf}, 9'); a('s_add_u32 s6, s6, s7')
    a(f's_lshl_b32 s7, s{sW}, 7'); a('s_add_u32 s6, s6, s7'); a(f's_add_u32 s6, s6, {QABS}')
    a('s_mov_b32 exec_lo, 0x11111111'); a('s_mov_b32 exec_hi, 0x11111111')
    vm.issue(f'buffer_store_dwordx4 {vr(D,4)}, {vr(t0)}, {srd(S_WS)}, s6 offen sc1')
    vm.issue(f'buffer_store_dwordx4 {vr(D+4,4)}, {vr(t0)}, {srd(S_WS)}, s6 offen offset:16 sc1')
    a('s_mov_b64 exec, -1')
    stamp(1)
    vm.wait('c0')
    ensure(C0, 64, vC0)
    stamp(2)
    if cfg.bstop == 1: a('s_branch B_end')
    V = VAlloc(base)
    ACC = V(64, 4); S = V(8, 4); CF = V(64, 4); PF = V(16, 4); MXR = V(12, 4)
    mQ = V(2); mP = V(); lQ = V(2); aQ = V(2); aP = V(); vC = V(); PK = V(4, 2); Mx = V(2); tt = V()
    vA = V(2); vTr = V(2); vMw = V(); vMr = V(); vMp = V(); vPw = V(); vPr = V(); vQ = V(); vQw = V(); vCw = V(2)
    sQ = 14
    a(f's_lshl_b32 s{sQ}, s{sB2}, 15'); a(f's_lshl_b32 s6, s{sW}, 12'); a(f's_add_u32 s{sQ}, s{sQ}, s6'); a(f's_add_u32 s{sQ}, s{sQ}, {QABS}')
    a(f's_add_u32 s{sQ+1}, s{sQ}, 16384')
    def q_loads(iss):
        for nt in range(2):
            for k in range(4):
                iss(f'buffer_load_dwordx4 {vr(CF+16*nt+4*k,4)}, {vr(vL16)}, {srd(S_WS)}, s{sQ+nt} offen offset:{1024*k} sc1')
    a('s_nop 1')
    q_loads(lambda t: vm.issue(t, 'q'))
    for rho in (2, 3):
        for k in range(16): c_reg(rho, k)
    a(f's_lshl_b32 s6, s{sW}, 4'); a(f'v_add_u32 {vr(t0)}, s6, {vr(vI)}'); a(f'v_mul_u32_u24 {vr(t0)}, {CROW}, {vr(t0)}')
    a(f'v_lshrrev_b32 {vr(t1)}, 3, {vr(vI)}'); a(f'v_lshlrev_b32 {vr(t1)}, 1, {vr(t1)}'); a(f'v_xor_b32 {vr(t1)}, {vr(t1)}, {vr(vG)}')
    a(f'v_lshl_add_u32 {vr(vA)}, {vr(t1)}, 4, {vr(t0)}'); a(f'v_add_u32 {vr(vA+1)}, {CB}, {vr(vA)}')
    a(f'v_lshrrev_b32 {vr(t0)}, 5, {vr(vLane)}'); a(f'v_lshlrev_b32 {vr(t0)}, 3, {vr(t0)}')
    a(f'v_bfe_u32 {vr(t1)}, {vr(vLane)}, 2, 2'); a(f'v_add_u32 {vr(t0)}, {vr(t0)}, {vr(t1)}'); a(f'v_mul_u32_u24 {vr(t0)}, {CROW}, {vr(t0)}')
    a(f'v_lshrrev_b32 {vr(t1)}, 1, {vr(vG)}'); a(f'v_xor_b32 {vr(t1)}, {vr(t1)}, {vr(vG)}')
    a(f'v_and_b32 {vr(t1)}, 1, {vr(t1)}'); a(f'v_lshl_add_u32 {vr(t0)}, {vr(t1)}, 5, {vr(t0)}')
    a(f'v_and_b32 {vr(t1)}, 3, {vr(vLane)}'); a(f'v_lshl_add_u32 {vr(t0)}, {vr(t1)}, 3, {vr(t0)}')
    a(f's_lshl_b32 s6, s{sW}, 8'); a(f'v_add_u32 {vr(vTr)}, s6, {vr(t0)}'); a(f'v_add_u32 {vr(vTr+1)}, {CB}, {vr(vTr)}')
    a(f'v_lshlrev_b32 {vr(vMr)}, 4, {vr(vI)}'); a(f'v_add_u32 {vr(vMr)}, {MX}, {vr(vMr)}')
    a(f's_lshl_b32 s6, s{sW}, 2'); a(f'v_add_u32 {vr(vMw)}, s6, {vr(vMr)}')
    a(f'v_and_b32 {vr(t0)}, 31, {vr(vLane)}'); a(f'v_lshlrev_b32 {vr(vMp)}, 4, {vr(t0)}'); a(f'v_add_u32 {vr(vMp)}, {MX}, {vr(vMp)}')
    a(f'v_lshlrev_b32 {vr(vPr)}, 5, {vr(t0)}'); a(f'v_lshrrev_b32 {vr(t1)}, 5, {vr(vLane)}')
    a(f'v_lshl_add_u32 {vr(vPr)}, {vr(t1)}, 4, {vr(vPr)}'); a(f'v_add_u32 {vr(vPr)}, {PB}, {vr(vPr)}')
    a(f'v_lshlrev_b32 {vr(vPw)}, 5, {vr(vI)}'); a(f'v_lshl_add_u32 {vr(vPw)}, {vr(vG)}, 3, {vr(vPw)}')
    a(f's_lshl_b32 s6, s{sW}, 10'); a(f's_add_u32 s6, s6, {PB}'); a(f'v_add_u32 {vr(vPw)}, s6, {vr(vPw)}')
    a(f'v_mul_u32_u24 {vr(vQ)}, {QROW}, {vr(vI)}'); a(f'v_lshl_add_u32 {vr(vQ)}, {vr(vG)}, 4, {vr(vQ)}'); a(f'v_add_u32 {vr(vQ)}, {SQ}, {vr(vQ)}')
    a(f's_mul_i32 s6, s{sW}, {4*QROW}'); a(f's_add_u32 s6, s6, {SQ}'); a(f'v_add_u32 {vr(vQw)}, s6, {vr(vL16)}')
    a(f'v_add_u32 {vr(vCw)}, s{sM0}, {vr(vL16)}'); a(f'v_add_u32 {vr(vCw+1)}, {CB}, {vr(vCw)}')
    a(f'v_mov_b32 {vr(vC)}, {f2u(SCALE):#x}')
    for r in (mQ, mQ + 1, mP): a(f'v_mov_b32 {vr(r)}, 0xff800000')
    a(f'v_mov_b32 {vr(lQ)}, 0'); a(f'v_mov_b32 {vr(lQ+1)}, 0')
    vm.wait('q')
    a(f's_mov_b32 s7, {cfg.spin_max}')
    a('Q_chk:')
    umax_tree(tt, range(CF, CF + 32))
    a(f'v_cmp_eq_u32 vcc, -1, {vr(tt)}')
    a('s_cbranch_vccz Q_ok')
    a(f's_sleep {cfg.psleep}')
    q_loads(a)
    a('s_waitcnt vmcnt(0)')
    a('s_sub_u32 s7, s7, 1'); a('s_cmp_lg_u32 s7, 0'); a('s_cbranch_scc1 Q_chk')
    a('Q_ok:')
    stamp(3)
    for nt in range(2):
        a('s_barrier')
        for k in range(4): a(f'ds_write_b128 {vr(vQw)}, {vr(CF+16*nt+4*k,4)} offset:{QROW*k}')
        a('s_waitcnt lgkmcnt(0)'); a('s_barrier')
        for ks in range(16): a(f'ds_read_b128 {ar(64*nt+4*ks,4)}, {vr(vQ)} offset:{64*ks}')
        a('s_waitcnt lgkmcnt(0)')
    for rho in range(4):
        par = rho & 1
        for ks in range(16):
            a(f'ds_read_b128 {vr(CF+4*ks,4)}, {vr(vA+par)} offset:{64*ks}')
        for ks in range(16):
            a(f's_waitcnt lgkmcnt({15-ks})')
            for nt in range(2):
                c = '0' if ks == 0 else vr(S + 4 * nt, 4)
                a(f'v_mfma_f32_16x16x32_bf16 {vr(S+4*nt,4)}, {vr(CF+4*ks,4)}, {ar(64*nt+4*ks,4)}, {c}')
        for nt in range(2):
            a(f'v_max_f32 {vr(Mx+nt)}, {vr(S+4*nt)}, {vr(S+4*nt+1)}')
            a(f'v_max3_f32 {vr(Mx+nt)}, {vr(Mx+nt)}, {vr(S+4*nt+2)}, {vr(S+4*nt+3)}')
            allred_rows(Mx + nt, tt, 'v_max_f32')
            a(f'ds_write_b32 {vr(vMw)}, {vr(Mx+nt)} offset:{256*nt}')
        a('s_waitcnt lgkmcnt(0)'); a('s_barrier')
        a(f'ds_read_b128 {vr(MXR,4)}, {vr(vMr)}'); a(f'ds_read_b128 {vr(MXR+4,4)}, {vr(vMr)} offset:256'); a(f'ds_read_b128 {vr(MXR+8,4)}, {vr(vMp)}')
        if 1 <= rho <= 2:
            vm.wait(('c', rho + 1))
            for k in range(16): a(f'ds_write_b128 {vr(vCw+1-par)}, {ar(64*(rho+1)+4*k,4)} offset:{k*CROW}')
            a('s_waitcnt lgkmcnt(15)')
        else:
            a('s_waitcnt lgkmcnt(0)')
        for i, (m, al) in enumerate(((mQ, aQ), (mQ + 1, aQ + 1), (mP, aP))):
            R = MXR + 4 * i
            a(f'v_max_f32 {vr(R)}, {vr(R)}, {vr(R+1)}'); a(f'v_max3_f32 {vr(R)}, {vr(R)}, {vr(R+2)}, {vr(R+3)}')
            a(f'v_mul_f32 {vr(R)}, {vr(R)}, {vr(vC)}'); a(f'v_max_f32 {vr(R)}, {vr(R)}, {vr(m)}')
            a(f'v_sub_f32 {vr(al)}, {vr(m)}, {vr(R)}'); a(f'v_exp_f32 {vr(al)}, {vr(al)}'); a(f'v_mov_b32 {vr(m)}, {vr(R)}')
        for nt in range(2):
            for r in range(4):
                a(f'v_fma_f32 {vr(S+4*nt+r)}, {vr(S+4*nt+r)}, {vr(vC)}, -{vr(mQ+nt)}')
            for r in range(4): a(f'v_exp_f32 {vr(S+4*nt+r)}, {vr(S+4*nt+r)}')
            a(f'v_mul_f32 {vr(lQ+nt)}, {vr(lQ+nt)}, {vr(aQ+nt)}')
            a(f'v_cvt_pk_bf16_f32 {vr(PK+2*nt)}, {vr(S+4*nt)}, {vr(S+4*nt+1)}'); a(f'v_cvt_pk_bf16_f32 {vr(PK+2*nt+1)}, {vr(S+4*nt+2)}, {vr(S+4*nt+3)}')
            a(f'ds_write_b64 {vr(vPw)}, {vr(PK+2*nt,2)} offset:{512*nt}')
            for r in range(4): a(f'v_add_f32 {vr(lQ+nt)}, {vr(lQ+nt)}, {vr(S+4*nt+r)}')
        if rho > 0:
            for r in range(64): a(f'v_mul_f32 {vr(ACC+r)}, {vr(ACC+r)}, {vr(aP)}')
        a('s_waitcnt lgkmcnt(0)'); a('s_barrier')
        for ks in range(4): a(f'ds_read_b128 {vr(PF+4*ks,4)}, {vr(vPr)} offset:{1024*ks}')
        for ks in range(4):
            for ct in range(4):
                for sec in range(2):
                    a(f'ds_read_b64_tr_b16 {vr(CF+16*ks+4*ct+2*sec,2)}, {vr(vTr+par)} offset:{(16*ks+4*sec)*CROW + 64*ct}')
        for ks in range(4):
            a(f's_waitcnt lgkmcnt({min(15, 8*(3-ks))})')
            for ct in range(4):
                c = '0' if (rho == 0 and ks == 0) else vr(ACC + 16 * ct, 16)
                a(f'v_mfma_f32_32x32x16_bf16 {vr(ACC+16*ct,16)}, {vr(CF+16*ks+4*ct,4)}, {vr(PF+4*ks,4)}, {c}')
    stamp(4)
    for nt in range(2):
        allred_rows(lQ + nt, tt, 'v_add_f32')
        a(f'ds_write_b32 {vr(vMw)}, {vr(lQ+nt)} offset:{512+256*nt}')
    TROW = 1040
    a(f'v_and_b32 {vr(t0)}, 31, {vr(vLane)}'); a(f'v_mul_u32_u24 {vr(t0)}, {TROW}, {vr(t0)}')
    a(f'v_lshrrev_b32 {vr(t1)}, 5, {vr(vLane)}'); a(f'v_lshl_add_u32 {vr(t0)}, {vr(t1)}, 3, {vr(t0)}')
    a(f's_lshl_b32 s6, s{sW}, 8'); a(f'v_add_u32 {vr(t0)}, s6, {vr(t0)}')
    for ct in range(4):
        for rq in range(4):
            R = ACC + 16 * ct + 4 * rq; P = CF + 2 * (4 * ct + rq)
            a(f'v_cvt_pk_bf16_f32 {vr(P)}, {vr(R)}, {vr(R+1)}'); a(f'v_cvt_pk_bf16_f32 {vr(P+1)}, {vr(R+2)}, {vr(R+3)}')
            a(f'ds_write_b64 {vr(t0)}, {vr(P,2)} offset:{64*ct+16*rq}')
    a('s_waitcnt lgkmcnt(0)'); a('s_barrier')
    a(f's_mul_i32 s6, s{sW}, {8*TROW}'); a(f'v_add_u32 {vr(t0)}, s6, {vr(vL16)}')
    for k in range(8): a(f'ds_read_b128 {vr(CF+32+4*k,4)}, {vr(t0)} offset:{k*TROW}')
    a(f'ds_read_b128 {vr(MXR,4)}, {vr(vMp)} offset:512')
    a(f's_lshl_b32 s7, s{sW}, 19'); a(f's_lshl_b32 s6, s{sBeta}, 10'); a('s_add_u32 s7, s7, s6'); a(f's_add_u32 s7, s7, {PART if not cfg.bskip & 16 else OOB}')
    for k in range(8):
        a(f's_waitcnt lgkmcnt({8-k})')
        a(f's_add_u32 s6, s7, {k*65536}')
        a(f'buffer_store_dwordx4 {vr(CF+32+4*k,4)}, {vr(vL16)}, {srd(S_WS)}, s6 offen sc1')
    a('s_waitcnt lgkmcnt(0)')
    a(f'v_add_f32 {vr(MXR)}, {vr(MXR)}, {vr(MXR+1)}'); a(f'v_add_f32 {vr(MXR+2)}, {vr(MXR+2)}, {vr(MXR+3)}')
    a(f'v_add_f32 {vr(PK+1)}, {vr(MXR)}, {vr(MXR+2)}'); a(f'v_mov_b32 {vr(PK)}, {vr(mP)}')
    a(f'v_lshlrev_b32 {vr(t0)}, 9, {vr(vLane)}')
    a(f's_lshl_b32 s6, s{sBeta}, 3'); a(f's_add_u32 s6, s6, {PSTAT}')
    a(f'v_min_u32 {vr(PK)}, -2, {vr(PK)}'); a(f'v_min_u32 {vr(PK+1)}, -2, {vr(PK+1)}')
    a('s_waitcnt vmcnt(0)'); a('s_barrier')
    Ls = lab('nops')
    a(f's_cmp_lg_u32 s{sW}, 0'); a(f's_cbranch_scc1 {Ls}')
    a('s_mov_b64 exec, 0xffffffff')
    a(f'buffer_store_dwordx2 {vr(PK,2)}, {vr(t0)}, {srd(S_WS)}, s6 offen sc1')
    a('s_mov_b64 exec, -1')
    a(f'{Ls}:')
    stamp(5)
    if cfg.bstop == 2: a('s_branch B_end')
    V = VAlloc(base)
    UB = 73728; OT = UB + 65536; RED = OT + 2048
    AF = V(64, 4); BF = V(32, 4); D = V(36, 4); F = V(4); ST = V(2); Mx = V(); Lx = V(); vU = V(2); vR = V(4); vT = V(4); PA = V(8, 4); O = V(12, 4)
    a(f's_mul_i32 s6, s{sBeta}, 73728'); mk_srd(S_WO, P_BWO, 's6', 73728)
    a(f's_lshl_b32 s6, s{sBeta}, 7'); a(f's_sub_u32 s7, {512*8192}, s6'); mk_srd(S_U, P_WUV, 's6', 's7')
    a(f'v_lshrrev_b32 {vr(t0)}, 3, {vr(vLane)}'); a(f'v_and_b32 {vr(t1)}, 7, {vr(vLane)}')
    a(f'v_and_b32 {vr(t2)}, 2, {vr(t0)}'); a(f'v_xor_b32 {vr(t1)}, {vr(t1)}, {vr(t2)}')
    a(f'v_lshlrev_b32 {vr(t0)}, 13, {vr(t0)}')
    a(f'v_lshl_add_u32 {vr(vU)}, {vr(t1)}, 4, {vr(t0)}')
    a(f'v_xor_b32 {vr(t1)}, 4, {vr(t1)}'); a(f'v_lshl_add_u32 {vr(vU+1)}, {vr(t1)}, 4, {vr(t0)}')
    a(f's_lshl_b32 s{sM0}, s{sW}, 14'); a(f's_lshl_b32 s{sSo}, s{sW}, 20')
    for k in range(16):
        a(f's_add_u32 m0, s{sM0}, {UB + k*1024}'); a(f's_add_u32 s6, s{sSo}, {k*65536}')
        a(f'buffer_load_dwordx4 {vr(vU+(k&1))}, {srd(S_U)}, s6 offen {fl} lds')
    a(f's_mul_i32 s{sM0}, s{sW}, 18432')
    for k in range(18):
        a(f's_add_u32 s6, s{sM0}, {k*1024}'); a('s_mov_b32 m0, s6')
        a(f'buffer_load_dwordx4 {vr(vL16)}, {srd(S_WO)}, s6 offen {fl} lds')
    mk_wo_tr_addr(vLane, vT, t0, t1, False)
    a(f'v_bfe_u32 {vr(t0)}, {vr(vLane)}, 2, 2'); a(f'v_lshl_add_u32 {vr(t0)}, {vr(vG)}, 3, {vr(t0)}'); a(f'v_lshlrev_b32 {vr(t0)}, 7, {vr(t0)}')
    a(f'v_and_b32 {vr(t1)}, 3, {vr(vLane)}'); a(f'v_lshl_add_u32 {vr(t0)}, {vr(t1)}, 3, {vr(t0)}'); a(f'v_add_u32 {vr(t0)}, {UB}, {vr(t0)}')
    a(f'v_bfe_u32 {vr(t1)}, {vr(vLane)}, 3, 2')
    for t in range(4):
        a(f'v_xor_b32 {vr(t2)}, {t}, {vr(t1)}'); a(f'v_lshl_add_u32 {vr(vR+t)}, {vr(t2)}, 5, {vr(t0)}')
    a(f'v_lshlrev_b32 {vr(t0)}, 10, {vr(vI)}'); a(f'v_lshl_add_u32 {vr(t0)}, {vr(vG)}, 4, {vr(t0)}')
    a(f'v_lshlrev_b32 {vr(t1)}, 3, {vr(vI)}')
    a(f's_lshl_b32 s6, s{sH}, 9'); a(f's_lshl_b32 s7, s{sW}, 7'); a('s_add_u32 s6, s6, s7'); a(f's_add_u32 s6, s6, {PSTAT}')
    a(f's_mov_b32 s7, {cfg.spin_max}')
    a('P_poll:')
    a(f'buffer_load_dwordx2 {vr(ST,2)}, {vr(t1)}, {srd(S_WS)}, s6 offen sc1')
    a('s_waitcnt vmcnt(0)')
    a(f'v_max_u32 {vr(Mx)}, {vr(ST)}, {vr(ST+1)}'); a(f'v_cmp_eq_u32 vcc, -1, {vr(Mx)}')
    a('s_cbranch_vccz P_ok')
    a(f's_sleep {cfg.psleep}')
    a('s_sub_u32 s7, s7, 1'); a('s_cmp_lg_u32 s7, 0'); a('s_cbranch_scc1 P_poll')
    a('P_ok:')
    stamp(6)
    vm = VM(a)
    a(f's_lshl_b32 s6, s{sH}, 16'); a(f's_lshl_b32 s7, s{sW}, 14'); a('s_add_u32 s6, s6, s7'); a(f's_add_u32 s6, s6, {PART}')
    for ks in range(16):
        vm.issue(f'buffer_load_dwordx4 {vr(AF+4*ks,4)}, {vr(t0)}, {srd(S_WS)}, s6 offen offset:{64*ks} sc1', ('a', ks))
    a('s_barrier')
    wo_frag_reads(2, vT)
    a(f'v_mov_b32 {vr(Mx)}, {vr(ST)}')
    for sh in (8, 4, 2, 1): a(f'v_max_f32_dpp {vr(Mx)}, {vr(Mx)}, {vr(Mx)} row_ror:{sh} {DPPF}')
    a(f'v_sub_f32 {vr(ST)}, {vr(ST)}, {vr(Mx)}'); a(f'v_exp_f32 {vr(ST)}, {vr(ST)}')
    a(f'v_mul_f32 {vr(Lx)}, {vr(ST)}, {vr(ST+1)}')
    for sh in (8, 4, 2, 1): a(f'v_add_f32_dpp {vr(Lx)}, {vr(Lx)}, {vr(Lx)} row_ror:{sh} {DPPF}')
    a(f'v_rcp_f32 {vr(Lx)}, {vr(Lx)}'); a(f'v_mul_f32 {vr(ST)}, {vr(ST)}, {vr(Lx)}')
    for r in range(4):
        for q in range(4):
            a(f'v_mov_b32_dpp {vr(F+r)}, {vr(ST)} row_newbcast:{4*q+r} row_mask:{1<<q:#x} bank_mask:0xf')
    a('s_waitcnt lgkmcnt(0)')
    def u_reads(ks):
        for t in range(4):
            for sec in range(2):
                a(f'ds_read_b64_tr_b16 {vr(BF+16*(ks&1)+4*t+2*sec,2)}, {vr(vR+t)} offset:{(32*ks+4*sec)*128}')
    u_reads(0)
    for ks in range(16):
        if ks + 1 < 16: u_reads(ks + 1)
        vm.wait(('a', ks))
        a(f's_waitcnt lgkmcnt({8 if ks + 1 < 16 else 0})')
        for t in range(4):
            c = '0' if ks == 0 else vr(D + 4 * t, 4)
            a(f'v_mfma_f32_16x16x32_bf16 {vr(D+4*t,4)}, {vr(AF+4*ks,4)}, {vr(BF+16*(ks&1)+4*t,4)}, {c}')
    a(f'v_lshlrev_b32 {vr(t0)}, 7, {vr(vG)}'); a(f'v_lshl_add_u32 {vr(t0)}, {vr(vI)}, 1, {vr(t0)}')
    a(f's_lshl_b32 s6, s{sW}, 9'); a(f's_add_u32 s6, s6, {OT}'); a(f'v_add_u32 {vr(t0)}, s6, {vr(t0)}')
    for t in range(4):
        a(f'v_mul_f32 {vr(O+t)}, {vr(F)}, {vr(D+4*t)}')
        for r in range(1, 4): a(f'v_fma_f32 {vr(O+t)}, {vr(F+r)}, {vr(D+4*t+r)}, {vr(O+t)}')
        a(f'v_cvt_pk_bf16_f32 {vr(O+t)}, {vr(O+t)}, {vr(O+t)}')
        a(f'ds_write_b16 {vr(t0)}, {vr(O+t)} offset:{32*t}')
    a(f'v_lshlrev_b32 {vr(t1)}, 7, {vr(vI)}'); a(f'v_lshl_add_u32 {vr(t1)}, {vr(vG)}, 4, {vr(t1)}'); a(f'v_add_u32 {vr(t1)}, {OT}, {vr(t1)}')
    a('s_waitcnt lgkmcnt(0)'); a('s_barrier')
    for ks in range(2): a(f'ds_read_b128 {vr(PA+4*ks,4)}, {vr(t1)} offset:{64*ks}')
    a(f'v_mul_u32_u24 {vr(t0)}, {64*2304}, {vr(vG)}')
    a(f'v_and_b32 {vr(t1)}, 3, {vr(vLane)}'); a(f'v_bfe_u32 {vr(t2)}, {vr(vLane)}, 2, 2')
    a(f'v_lshl_add_u32 {vr(t1)}, {vr(t1)}, 2, {vr(t2)}'); a(f'v_lshl_add_u32 {vr(t1)}, {vr(t1)}, 2, {vr(t0)}')
    a(f'v_lshl_add_u32 {vr(t0)}, {vr(vI)}, 4, {vr(t0)}')
    a(f's_mul_i32 s6, s{sBeta}, 2304'); a(f's_mul_i32 s7, s{sW}, 576'); a('s_add_u32 s6, s6, s7'); a(f's_add_u32 s6, s6, {YB}')
    a('s_waitcnt lgkmcnt(0)')
    for t in range(9):
        for ks in range(2):
            c = '0' if ks == 0 else vr(D + 4 * t, 4)
            a(f'v_mfma_f32_16x16x32_bf16 {vr(D+4*t,4)}, {vr(PA+4*ks,4)}, {ar(AW+4*(t*2+ks),4)}, {c}')
    for t in range(9):
        a(f'v_add_f32 {vr(D+4*t)}, {vr(D+4*t)}, {vr(D+4*t+1)}'); a(f'v_add_f32 {vr(D+4*t+2)}, {vr(D+4*t+2)}, {vr(D+4*t+3)}')
        a(f'v_add_f32 {vr(O+t)}, {vr(D+4*t)}, {vr(D+4*t+2)}')
    a(f'buffer_store_dwordx4 {vr(O,4)}, {vr(t0)}, {srd(S_WS)}, s6 offen sc1')
    a(f'buffer_store_dwordx4 {vr(O+4,4)}, {vr(t0)}, {srd(S_WS)}, s6 offen offset:256 sc1')
    a(f'buffer_store_dword {vr(O+8)}, {vr(t1)}, {srd(S_WS)}, s6 offen offset:512 sc1')
    a('s_waitcnt vmcnt(0)'); a('s_barrier')
    Ls = lab('nofb')
    a(f's_cmp_lg_u32 s{sW}, 0'); a(f's_cbranch_scc1 {Ls}')
    a(f'v_mov_b32 {vr(t0)}, 1'); a('s_mov_b64 exec, 1')
    a(f'buffer_store_byte {vr(t0)}, off, {srd(S_DBG)}, s{sBeta} offset:{FB} sc1')
    a('s_mov_b64 exec, -1')
    a(f'{Ls}:')
    stamp(7)
    if cfg.bstop == 3: a('s_branch B_end')
    V = VAlloc(base)
    Y = V(16, 4); SX = V(16, 4); vYo = V(); vSo = V(); vRw = V(); vRr = V(); vOo = V(); R = V(16); E = V(4)
    sTau, sTb, sSg, sY, sDone = 14, 15, 80, 81, 82
    a(f'v_mul_u32_u24 {vr(vYo)}, 2304, {vr(vG)}'); a(f'v_lshl_add_u32 {vr(vYo)}, {vr(vI)}, 4, {vr(vYo)}')
    a(f's_lshl_b32 s6, s{sW}, 10'); a(f's_add_u32 s6, s6, {RED}'); a(f'v_add_u32 {vr(vRw)}, s6, {vr(vL16)}')
    a(f'v_lshlrev_b32 {vr(vRr)}, 2, {vr(vLane)}'); a(f'v_add_u32 {vr(vRr)}, {RED}, {vr(vRr)}')
    a(f'v_and_b32 {vr(t1)}, 3, {vr(vLane)}'); a(f'v_bfe_u32 {vr(t2)}, {vr(vLane)}, 2, 2')
    a(f'v_lshl_add_u32 {vr(t1)}, {vr(t1)}, 2, {vr(t2)}'); a(f'v_lshl_add_u32 {vr(t1)}, {vr(vG)}, 4, {vr(t1)}')
    a(f'v_lshlrev_b32 {vr(vOo)}, 1, {vr(t1)}')
    def task_decode(ybase):
        a(f's_mul_i32 s{sTb}, s{sTau}, 57'); a(f's_lshr_b32 s{sTb}, s{sTb}, 9')
        a(f's_mul_i32 s6, s{sTb}, 9'); a(f's_sub_u32 s{sSg}, s{sTau}, s6')
        a(f's_lshl_b32 s6, s{sTb}, 2'); a(f's_add_u32 s6, s6, s{sW}'); a(f's_mul_i32 s{sY}, s6, {16*2304}')
        a(f's_lshl_b32 s6, s{sSg}, 8'); a(f's_add_u32 s{sY}, s{sY}, s6'); a(f's_add_u32 s{sY}, s{sY}, {ybase}')
    def finish(colbase):
        for e in range(4):
            a(f'v_add_f32 {vr(Y+e)}, {vr(Y+e)}, {vr(Y+4+e)}'); a(f'v_add_f32 {vr(Y+8+e)}, {vr(Y+8+e)}, {vr(Y+12+e)}')
        for e in range(4): a(f'v_add_f32 {vr(Y+e)}, {vr(Y+e)}, {vr(Y+8+e)}')
        a(f'ds_write_b128 {vr(vRw)}, {vr(Y,4)}')
        a('s_waitcnt lgkmcnt(0)'); a('s_barrier')
        Ls = lab('fin')
        a(f's_cmp_lg_u32 s{sW}, 0'); a(f's_cbranch_scc1 {Ls}')
        for k in range(8): a(f'ds_read2st64_b32 {vr(R+2*k,2)}, {vr(vRr)} offset0:{2*k} offset1:{2*k+1}')
        a(f's_mul_i32 s6, s{sTb}, 2304'); a(f's_lshl_b32 s7, s{sSg}, 7'); a('s_add_u32 s6, s6, s7')
        a('s_waitcnt lgkmcnt(0)')
        for st in (8, 4, 2, 1):
            for k in range(st): a(f'v_add_f32 {vr(R+k)}, {vr(R+k)}, {vr(R+k+st)}')
        a(f'v_cvt_pk_bf16_f32 {vr(R)}, {vr(R)}, {vr(R)}')
        a(f'buffer_store_short {vr(R)}, {vr(vOo)}, {srd(S_OUT)}, s6 offen offset:{colbase*2}')
        a(f'{Ls}:')
    a(f's_cmp_lt_u32 s{sBeta}, 28'); a('s_cbranch_scc1 R_taskA')
    a(f's_sub_u32 s{sTau}, s{sBeta}, 28'); task_decode(YB)
    a(f's_mov_b32 s7, {cfg.spin_max}'); a(f's_lshl_b32 s83, s{sW}, 4')
    a('F_poll:')
    a(f'buffer_load_dwordx4 {vr(SX,4)}, off, {srd(S_DBG)}, s83 offset:{FB} sc1')
    a('s_waitcnt vmcnt(0)')
    a(f'v_and_b32 {vr(SX)}, {vr(SX)}, {vr(SX+1)}'); a(f'v_and_b32 {vr(SX+2)}, {vr(SX+2)}, {vr(SX+3)}'); a(f'v_and_b32 {vr(SX)}, {vr(SX)}, {vr(SX+2)}')
    a(f'v_readfirstlane_b32 s6, {vr(SX)}')
    a('s_cmp_eq_u32 s6, 0x01010101'); a('s_cbranch_scc1 F_ok')
    a(f's_sleep {cfg.psleep}')
    a('s_sub_u32 s7, s7, 1'); a('s_cmp_lg_u32 s7, 0'); a('s_cbranch_scc1 F_poll')
    a('F_ok:')
    for t in range(4):
        a(f's_add_u32 s6, s{sY}, {t*4*2304}')
        a(f'buffer_load_dwordx4 {vr(Y+4*t,4)}, {vr(vYo)}, {srd(S_WS)}, s6 offen sc1')
    a('s_waitcnt vmcnt(0)')
    finish(576)
    stamp(8)
    a(f's_cmp_ge_u32 s{sBeta}, 36'); a('s_cbranch_scc1 B_end')
    a('R_taskA:')
    a(f's_mov_b32 s{sTau}, s{sBeta}'); task_decode(YA)
    a('s_barrier')
    stamp(9)
    a(f's_mov_b32 s{sDone}, 0'); a(f's_mov_b32 s7, {cfg.spin_max}')
    a('R_pass:')
    for t in range(4):
        Ls = lab('ld')
        a(f's_bitcmp1_b32 s{sDone}, {t}'); a(f's_cbranch_scc1 {Ls}')
        a(f's_add_u32 s6, s{sY}, {t*4*2304}')
        a(f'buffer_load_dwordx4 {vr(Y+4*t,4)}, {vr(vYo)}, {srd(S_WS)}, s6 offen sc1')
        a(f'{Ls}:')
    a('s_waitcnt vmcnt(0)')
    for t in range(4):
        y = Y + 4 * t
        a(f'v_max3_u32 {vr(E+t)}, {vr(y)}, {vr(y+1)}, {vr(y+2)}'); a(f'v_max_u32 {vr(E+t)}, {vr(E+t)}, {vr(y+3)}')
    for t in range(4):
        a(f'v_cmp_eq_u32 vcc, -1, {vr(E+t)}')
        a('s_cmp_eq_u64 vcc, 0'); a(f's_cselect_b32 s6, {1<<t}, 0'); a(f's_or_b32 s{sDone}, s{sDone}, s6')
    a(f's_cmp_eq_u32 s{sDone}, 15'); a('s_cbranch_scc1 R_done')
    if cfg.rsleep: a(f's_sleep {cfg.rsleep}')
    a('s_sub_u32 s7, s7, 1'); a('s_cmp_lg_u32 s7, 0'); a('s_cbranch_scc1 R_pass')
    a('R_done:')
    stamp(10)
    finish(0)
    stamp(11)
    a('B_end:')
    stamp_flush(t0)
    a('s_endpgm')

def gen():
    hdr = open('/code/' + NAME + '.s.ref').read().split('; Override')[0]
    a(f'{NAME}_kernel:')
    a('s_cmp_ge_u32 s2, 256'); a('s_cbranch_scc1 L_exit')
    a('s_load_dwordx16 s[16:31], s[0:1], 0'); a('s_load_dwordx8 s[32:39], s[0:1], 64'); a('s_load_dwordx4 s[40:43], s[0:1], 96')
    a('v_lshrrev_b32 v1, 6, v0'); a(f'v_readfirstlane_b32 s{sW}, v1')
    if cfg.hmap == 0:
        a('s_and_b32 s6, s2, 7'); a('s_bfe_u32 s7, s2, 0x20003'); a(f's_lshl_b32 s{sH}, s6, 2'); a(f's_add_u32 s{sH}, s{sH}, s7')
    else:
        a(f's_and_b32 s{sH}, s2, 31')
    a(f's_lshr_b32 s{sR}, s2, 5')
    if cfg.stamps:
        a('s_waitcnt lgkmcnt(0)')
        for k in range(16): a(f's_mov_b32 s{84+k}, 0')
        stamp(0)
    a(f's_cmp_lt_u32 s{sR}, 2'); a('s_cbranch_scc1 B_role')
    gen_A()
    a('L_exit:'); a('s_endpgm')
    gen_B()
    body = a.finish()
    out = hdr + f'; @launch grid=(256,1,1) block=(256,1,1) lds={LDS_TOTAL}\n'
    out += '; generated by gen/gen.py (hand-written generator)\n'
    out += f'.amdgcn_target "amdgcn-amd-amdhsa--gfx950"\n.text\n.globl {NAME}_kernel\n.p2align 8\n.type {NAME}_kernel,@function\n'
    out += body
    out += f'''.section .rodata,"a"
.p2align 6
.amdhsa_kernel {NAME}_kernel
  .amdhsa_next_free_vgpr 512
  .amdhsa_next_free_sgpr 102
  .amdhsa_accum_offset 256
  .amdhsa_group_segment_fixed_size 0
  .amdhsa_kernarg_size 112
  .amdhsa_user_sgpr_count 2
  .amdhsa_user_sgpr_kernarg_segment_ptr 1
  .amdhsa_system_sgpr_workgroup_id_x 1
.end_amdhsa_kernel
'''
    return out

if __name__ == '__main__':
    outp = sys.argv[1]
    for kv in sys.argv[2:]:
        k, v = kv.split('=', 1)
        cur = getattr(cfg, k)
        setattr(cfg, k, (v == '1') if isinstance(cur, bool) else type(cur)(v))
    open(outp, 'w').write(gen())
```

```python
import sys, math, struct
from asmlib import Asm, VM
NAME = 'concat_heads__mha_block_cached__compressed_kv_cla__decode'

class Cfg:
    stamps = False
    R = 8
    wq_flags = 'nt'
    wo_flags = 'nt'
    b_flags = 'nt'
    dma_t0 = 0
    dma_per = 2
    ev_trip = 20
    hmap = 0
    diag = ''
    rsleep = 4
    wq_per = 3
    spin_max = 400000
    noB = False
    bskip = 0
    askip = 0
    bstop = 0
    psleep = 16
    nodma = False
    kv_flags = 'nt'
cfg = Cfg()

QABS = 0x000000; PSTAT = 0x040000; AST = 0x050000; PART = 0x100000; YA = 0x400000; YB = 0x500000
WS_USED = 0x600000
STAMP = 0x10000000
C0, FB = 0, 128
OOB = 0x7ff00000
LDS_TOTAL = 163840
SCALE = (128 ** -0.5) * math.log2(math.e)
def f2u(x): return struct.unpack('<I', struct.pack('<f', x))[0]

P_AX, P_K, P_V, P_WQ, P_WO, P_BX, P_CKV, P_BWQ, P_WUK, P_WUV, P_BWO, P_OUT, P_DBG, P_WS = 16, 18, 20, 22, 24, 26, 28, 30, 32, 34, 36, 38, 40, 42
S_X, S_W, S_K, S_V, S_WO, S_WS, S_DBG, S_OUT, S_U = 44, 48, 52, 56, 60, 64, 68, 72, 76
sW, sH, sR = 3, 4, 5
def srd(n): return f's[{n}:{n+3}]'
def vr(n, k=1): return f'v{n}' if k == 1 else f'v[{n}:{n+k-1}]'
def ar(n, k=1): return f'a{n}' if k == 1 else f'a[{n}:{n+k-1}]'

class VAlloc:
    def __init__(self, start=1): self.n = start
    def __call__(self, k=1, align=1):
        align = max(align, 2 if k > 1 else 1)
        self.n = (self.n + align - 1) // align * align
        r = self.n; self.n += k
        assert self.n <= 256, 'out of vgprs'
        return r

a = Asm()
nstamp = [0]
def stamp(k):
    if cfg.stamps:
        a(f's_memrealtime s[100:101]'); a('s_waitcnt lgkmcnt(0)'); a(f's_mov_b32 s{84+k}, s100')
def stamp_flush(vt, role=''):
    if cfg.diag:
        k = int(cfg.diag[1:]) if cfg.diag[0] == role else 0
        L = lab('diag')
        a(f's_cmp_eq_u32 s{84+k}, 0'); a(f's_cselect_b32 s6, s84, s{84+k}'); a('s_add_u32 s6, s6, 10000')
        a(f'{L}:'); a('s_sleep 4'); a('s_memrealtime s[100:101]'); a('s_waitcnt lgkmcnt(0)')
        a('s_sub_u32 s7, s100, s6'); a('s_cmp_lt_i32 s7, 0'); a(f's_cbranch_scc1 {L}')
        return
    if cfg.stamps:
        a(f's_lshl_b32 s6, s2, 2'); a(f's_add_u32 s6, s6, s{sW}'); a('s_lshl_b32 s6, s6, 6'); a(f's_add_u32 s6, s6, {STAMP}')
        a(f's_mov_b32 s{S_WS+2}, 0x20000000')
        a(f'v_mov_b32 {vr(vt+1)}, 0')
        a('s_mov_b64 exec, 1')
        for k in range(16):
            a(f'v_mov_b32 {vr(vt)}, s{84+k}')
            a(f'buffer_store_dword {vr(vt)}, {vr(vt+1)}, {srd(S_WS)}, s6 offen offset:{4*k}')
            a('s_nop 1')
        a('s_mov_b64 exec, -1')

def mk_srd(d, p, off, size):
    if off is None:
        a(f's_mov_b32 s{d}, s{p}'); a(f's_mov_b32 s{d+1}, s{p+1}')
    else:
        a(f's_add_u32 s{d}, s{p}, {off}'); a(f's_addc_u32 s{d+1}, s{p+1}, 0')
    a(f's_mov_b32 s{d+2}, {size}'); a(f's_mov_b32 s{d+3}, 0x20000')

uid = [0]
def lab(p):
    uid[0] += 1
    return f'L_{p}_{uid[0]}'

def poll(coff, target, vt):
    L, D = lab('poll'), lab('polld')
    a(f's_cmp_lg_u32 s{sW}, 0'); a(f's_cbranch_scc1 {D}')
    a(f's_mov_b32 s7, {cfg.spin_max}')
    a(f'{L}:')
    a(f'buffer_load_dword {vr(vt)}, off, {srd(S_DBG)}, 0 offset:{coff} sc1')
    a('s_waitcnt vmcnt(0)')
    a(f'v_readfirstlane_b32 s6, {vr(vt)}')
    a(f's_cmp_ge_u32 s6, {target}'); a(f's_cbranch_scc1 {D}')
    a(f's_sleep {cfg.psleep}')
    a('s_sub_u32 s7, s7, 1'); a('s_cmp_lg_u32 s7, 0'); a(f's_cbranch_scc1 {L}')
    a(f'{D}:')
    a('s_barrier')

def ensure(coff, target, vt):
    L, D = lab('ens'), lab('ensd')
    a(f's_mov_b32 s7, {cfg.spin_max}')
    a(f'{L}:')
    a(f'v_readfirstlane_b32 s6, {vr(vt)}')
    a(f's_cmp_ge_u32 s6, {target}'); a(f's_cbranch_scc1 {D}')
    a(f's_sleep {cfg.psleep}')
    a(f'buffer_load_dword {vr(vt)}, off, {srd(S_DBG)}, 0 offset:{coff} sc1')
    a('s_waitcnt vmcnt(0)')
    a('s_sub_u32 s7, s7, 1'); a('s_cmp_lg_u32 s7, 0'); a(f's_cbranch_scc1 {L}')
    a(f'{D}:')

def umax_tree(dst, regs):
    regs = list(regs)
    a(f'v_max3_u32 {vr(dst)}, {vr(regs[0])}, {vr(regs[1])}, {vr(regs[2])}'); regs = regs[3:]
    while len(regs) >= 2:
        a(f'v_max3_u32 {vr(dst)}, {vr(dst)}, {vr(regs[0])}, {vr(regs[1])}'); regs = regs[2:]
    if regs: a(f'v_max_u32 {vr(dst)}, {vr(dst)}, {vr(regs[0])}')

def signal(coff, vt):
    D = lab('sig')
    a('s_waitcnt vmcnt(0) lgkmcnt(0)'); a('s_barrier')
    a(f's_cmp_lg_u32 s{sW}, 0'); a(f's_cbranch_scc1 {D}')
    a(f'v_mov_b32 {vr(vt)}, 1'); a('s_mov_b64 exec, 1')
    a(f'buffer_atomic_add {vr(vt)}, off, {srd(S_DBG)}, 0 offset:{coff}')
    a('s_mov_b64 exec, -1')
    a(f'{D}:')

def allred_rows(x, t, op):
    for sw in ('v_permlane16_swap_b32', 'v_permlane32_swap_b32'):
        a(f'v_mov_b32 {vr(t)}, {vr(x)}')
        a(f'{sw} {vr(x)}, {vr(t)}')
        a(f'{op} {vr(x)}, {vr(x)}, {vr(t)}')

DPPF = 'row_mask:0xf bank_mask:0xf'
def reduce4(T, X, S):
    a(f'v_add_f32_dpp {vr(X)}, {vr(T)}, {vr(T)} row_ror:8 row_mask:0xf bank_mask:0x3')
    a(f'v_add_f32_dpp {vr(X+1)}, {vr(T+1)}, {vr(T+1)} row_ror:8 row_mask:0xf bank_mask:0x3')
    a(f'v_add_f32_dpp {vr(X)}, {vr(T+2)}, {vr(T+2)} row_ror:8 row_mask:0xf bank_mask:0xc')
    a(f'v_add_f32_dpp {vr(X+1)}, {vr(T+3)}, {vr(T+3)} row_ror:8 row_mask:0xf bank_mask:0xc')
    a(f'v_add_f32_dpp {vr(S)}, {vr(X)}, {vr(X)} row_half_mirror row_mask:0xf bank_mask:0x5')
    a(f'v_add_f32_dpp {vr(S)}, {vr(X+1)}, {vr(X+1)} row_half_mirror row_mask:0xf bank_mask:0xa')
    a(f'v_add_f32_dpp {vr(S)}, {vr(S)}, {vr(S)} quad_perm:[1,0,3,2] {DPPF}')
    a(f'v_add_f32_dpp {vr(S)}, {vr(S)}, {vr(S)} quad_perm:[2,3,0,1] {DPPF}')

def mk_masks(vLane, MASK, SEL, t0, t1):
    a(f'v_and_b32 {vr(t0)}, 1, {vr(vLane)}'); a(f'v_lshlrev_b32 {vr(t0)}, 4, {vr(t0)}')
    a(f'v_mov_b32 {vr(t1)}, 0xffff'); a(f'v_lshlrev_b32 {vr(t0)}, {vr(t0)}, {vr(t1)}')
    a(f'v_bfe_u32 {vr(t1)}, {vr(vLane)}, 1, 2')
    for r in range(4):
        a(f'v_cmp_eq_u32 vcc, {r}, {vr(t1)}')
        a(f'v_cndmask_b32 {vr(MASK+r)}, 0, {vr(t0)}, vcc')
    a(f'v_mov_b32 {vr(t0)}, 0x0c0c0c0c')
    a('s_mov_b32 s6, 0x01000100'); a('s_mov_b32 s7, 0x03020302')
    for par in range(2):
        for r in range(4):
            a(f'v_bfi_b32 {vr(SEL+4*par+r)}, {vr(MASK+r)}, s{6+par}, {vr(t0)}')

AW = 96

def x_loads(vm, X, vXoff, extra):
    for k in range(4):
        vm.issue(f'buffer_load_dwordx4 {vr(X+4*k,4)}, {vr(vXoff)}, {srd(S_X)}, 0 offen offset:{extra+16*k}', 'x')
    vm.issue(f'buffer_load_dwordx2 {vr(X+16,2)}, {vr(vXoff)}, {srd(S_X)}, 0 offen offset:{extra+64}', 'x')

def wunit_load(vm, jj, vWoff, flags):
    a(f's_mov_b32 s6, {jj*8192}')
    vm.issue(f'buffer_load_dwordx4 {ar(AW+4*jj,4)}, {vr(vWoff)}, {srd(S_W)}, s6 offen {flags}', ('w', jj))

def wunit_mfma(jj, Xs, ACCs, SEL, PA):
    for s, (X, ACC) in enumerate(zip(Xs, ACCs)):
        P = PA + 4 * ((jj * len(Xs) + s) & 3)
        for r in range(4):
            a(f'v_perm_b32 {vr(P+r)}, {vr(X+jj//2)}, {vr(X+jj//2)}, {vr(SEL+4*(jj&1)+r)}')
        c = '0' if jj == 0 else vr(ACC, 4)
        a(f'v_mfma_f32_16x16x32_bf16 {vr(ACC,4)}, {vr(P,4)}, {ar(AW+4*jj,4)}, {c}')

def wo_frag_reads(nks, vT, base=0):
    for t in range(9):
        for ks in range(nks):
            for sec in range(2):
                reg = vT + (1 if t == 8 else 0) + (2 if ks >= 2 else 0)
                off = (32 * (ks & 1) + 4 * sec) * 1152 + (0 if t == 8 else 128 * (t >> 2) + 8 * (t & 3))
                a(f'ds_read_b64_tr_b16 {ar(AW+4*(t*nks+ks)+2*sec,2)}, {vr(reg)} offset:{off}')

def mk_wo_tr_addr(vLane, vT, t0, t1, two):
    a(f'v_lshrrev_b32 {vr(t0)}, 4, {vr(vLane)}'); a(f'v_lshlrev_b32 {vr(t0)}, 3, {vr(t0)}')
    a(f'v_bfe_u32 {vr(t1)}, {vr(vLane)}, 2, 2'); a(f'v_add_u32 {vr(t0)}, {vr(t0)}, {vr(t1)}')
    a(f'v_mul_u32_u24 {vr(t0)}, 1152, {vr(t0)}')
    a(f's_mul_i32 s6, s{sW}, 288'); a(f'v_add_u32 {vr(t0)}, s6, {vr(t0)}')
    a(f'v_and_b32 {vr(t1)}, 3, {vr(vLane)}')
    a(f'v_lshl_add_u32 {vr(vT)}, {vr(t1)}, 5, {vr(t0)}')
    a(f'v_lshl_add_u32 {vr(vT+1)}, {vr(t1)}, 3, {vr(t0)}'); a(f'v_add_u32 {vr(vT+1)}, 256, {vr(vT+1)}')
    if two:
        a(f'v_add_u32 {vr(vT+2)}, 73728, {vr(vT)}'); a(f'v_add_u32 {vr(vT+3)}, 73728, {vr(vT+1)}')

def gen_A():
    R = cfg.R; NT = 11; RT = R // 4
    assert R % 4 == 0
    V = VAlloc(1)
    vLane = V(); vL16 = V(); vWoff = V(); vXoff = V(); t0 = V(); t1 = V(); vC = V()
    MASK = V(4); SEL = V(8); ACC = V(4, 4); Q = V(4); T = V(4); XX = V(2); S = V(); M = V(); M2 = V(); fN = V()
    X = V(20, 4); PA = V(16, 4); D = X
    P = V(NT); vT = V(4); vY = V(); vY8 = V(); vOw = V(); vOr = V(); vC0 = V(); G = V(8); F = V(4); O = V(6, 2)
    KR = V(16 * R, 4)
    QRED = 147456; OT = QRED + 4096
    sJJ, sPair, sB, sRank, sOff, sReal, sBeg, sD, sDn, sTrip, sSt, sBsel = 8, 9, 10, 11, 12, 13, 14, 15, 80, 81, 82, 83
    sMk = 72
    STEP = 6 * 4096
    a('A_role:')
    a(f's_sub_u32 s{sJJ}, s{sR}, 2')
    a(f's_cmp_ge_u32 s{sJJ}, 3'); a(f's_cselect_b32 s{sPair}, 1, 0'); a(f's_cselect_b32 s6, 3, 0')
    a(f's_sub_u32 s{sJJ}, s{sJJ}, s6')
    a(f's_lshl_b32 s{sRank}, s{sJJ}, 2'); a(f's_add_u32 s{sRank}, s{sRank}, s{sW}')
    a(f's_cmp_ge_u32 s{sRank}, 6'); a(f's_cselect_b32 s{sBsel}, 1, 0'); a(f's_cselect_b32 s6, -1, 1')
    a(f's_add_u32 s{sRank}, s{sRank}, s6')
    a(f's_cmp_ge_u32 s{sRank}, 6'); a(f's_cselect_b32 s6, 6, 0'); a(f's_sub_u32 s{sRank}, s{sRank}, s6')
    a(f's_lshl_b32 s{sB}, s{sPair}, 1'); a(f's_add_u32 s{sB}, s{sB}, s{sBsel}')
    a(f'v_and_b32 {vr(vLane)}, 63, v0'); a(f'v_lshlrev_b32 {vr(vL16)}, 4, {vr(vLane)}')
    a(f's_sub_u32 s{sBeg}, s{sRank}, 8'); a(f's_lshl_b32 s{sBeg}, s{sBeg}, 12'); a(f's_mov_b32 s{sReal}, s{sBeg}')
    def adv():
        a(f's_add_u32 s{sReal}, s{sReal}, {STEP}'); a(f's_min_u32 s{sOff}, s{sReal}, {OOB}')
    adv()
    a(f's_lshl_b32 s{sSt}, s{sB}, 5'); a(f's_add_u32 s{sSt}, s{sSt}, s{sH}')
    a(f's_lshl_b32 s6, s{sSt}, 20')
    a('s_waitcnt lgkmcnt(0)')
    mk_srd(S_K, P_K, 's6', 0x100000); mk_srd(S_V, P_V, 's6', 0x100000)
    a(f's_mul_i32 s6, s{sPair}, 2304'); a(f's_mul_i32 s7, s{sW}, 288'); a('s_add_u32 s6, s6, s7')
    a(f's_sub_u32 s7, 4608, s6')
    mk_srd(S_X, P_AX, 's6', 's7')
    a(f's_mul_i32 s6, s{sW}, {144*8192}'); a(f's_lshl_b32 s7, s{sH}, 8'); a('s_add_u32 s6, s6, s7')
    a(f's_sub_u32 s7, {576*8192}, s6')
    mk_srd(S_W, P_WQ, 's6', 's7')
    if cfg.askip & 1: a(f's_mov_b32 s{S_W+2}, 0')
    a(f'v_lshrrev_b32 {vr(t0)}, 4, {vr(vLane)}'); a(f'v_and_b32 {vr(t1)}, 15, {vr(vLane)}')
    a(f'v_mul_u32_u24 {vr(vWoff)}, {36*8192}, {vr(t0)}'); a(f'v_lshl_add_u32 {vr(vWoff)}, {vr(t1)}, 4, {vr(vWoff)}')
    a(f'v_mul_u32_u24 {vr(vXoff)}, 72, {vr(t0)}'); a(f'v_lshrrev_b32 {vr(t1)}, 3, {vr(t1)}')
    a(f'v_mul_u32_u24 {vr(t1)}, 1152, {vr(t1)}'); a(f'v_add_u32 {vr(vXoff)}, {vr(vXoff)}, {vr(t1)}')
    vm = VM(a)
    x_loads(vm, X, vXoff, 0)
    def ring_ld(s, u):
        return f'buffer_load_dwordx4 {vr(KR+16*s+4*u,4)}, {vr(vL16)}, {srd(S_K)}, s{sOff} offen offset:{1024*u} {cfg.kv_flags}'
    stream = [('k', s, u) for s in range(1, R) for u in range(4)]
    order = []; wi = 0; si = 0
    while wi < 36 or si < len(stream):
        for _ in range(cfg.wq_per):
            if wi < 36: order.append(('w', wi)); wi += 1
        for _ in range(4):
            if si < len(stream): order.append(stream[si]); si += 1
    def issue(o):
        if o[0] == 'w': wunit_load(vm, o[1], vWoff, cfg.wq_flags)
        else:
            vm.issue(ring_ld(o[1], o[2]), o)
            if o[2] == 3: adv()
    pos = 0
    while pos < min(56, len(order)):
        issue(order[pos]); pos += 1
    stamp(1)
    mk_srd(S_WS, P_WS, None, WS_USED); mk_srd(S_DBG, P_DBG, None, 256)
    a(f's_mul_i32 s6, s{sH}, 147456'); mk_srd(S_WO, P_WO, 's6', 147456)
    mk_masks(vLane, MASK, SEL, t0, t1)
    a(f'v_mov_b32 {vr(vC)}, {f2u(SCALE):#x}')
    a(f'v_mov_b32 {vr(P+NT-1)}, 0xff800000')
    mk_wo_tr_addr(vLane, vT, t0, t1, True)
    a(f's_lshl_b32 s{sSt}, s{sSt}, 6'); a(f's_add_u32 s{sSt}, s{sSt}, {AST}')
    a(f's_mov_b64 s[{sMk}:{sMk+1}], 0')
    a(f's_cmp_ge_u32 s{sRank}, 2'); a(f's_cselect_b32 s{sMk+2}, 0x22222222, 0'); a(f's_mov_b32 s{sMk+3}, s{sMk+2}')
    for j in (2, 3):
        a(f's_mov_b32 s{sMk+2*j}, {0x11111111 << j:#x}'); a(f's_mov_b32 s{sMk+2*j+1}, s{sMk+2*j}')
    a(f'v_bfe_u32 {vr(t0)}, {vr(vLane)}, 4, 1')
    a(f's_lshl_b32 s6, s{sPair}, 7'); a(f's_lshl_b32 s7, s{sH}, 1'); a('s_add_u32 s6, s6, s7'); a(f's_add_u32 s6, s6, s{sJJ}')
    a(f'v_mul_u32_u24 {vr(t1)}, 63, {vr(t0)}'); a(f'v_add_u32 {vr(t1)}, s6, {vr(t1)}')
    a(f'v_mul_u32_u24 {vr(vY)}, 2304, {vr(t1)}'); a(f'v_add_u32 {vr(vY)}, {YA}, {vr(vY)}')
    a(f'v_sub_u32 {vr(t1)}, s{sJJ}, {vr(t0)}')
    a(f'v_cmp_lt_u32 vcc, 1, {vr(t1)}')
    a(f'v_mov_b32 {vr(t1)}, {OOB}')
    a(f'v_cndmask_b32 {vr(vY)}, {vr(vY)}, {vr(t1)}, vcc')
    a(f's_mul_i32 s6, s{sW}, 576')
    a(f'v_add_u32 {vr(vY)}, s6, {vr(vY)}')
    a(f'v_and_b32 {vr(M)}, 3, {vr(vLane)}'); a(f'v_bfe_u32 {vr(M2)}, {vr(vLane)}, 2, 2')
    a(f'v_lshl_add_u32 {vr(M)}, {vr(M)}, 2, {vr(M2)}'); a(f'v_lshl_add_u32 {vr(vY8)}, {vr(M)}, 2, {vr(vY)}')
    a(f'v_and_b32 {vr(M)}, 15, {vr(vLane)}'); a(f'v_lshrrev_b32 {vr(M2)}, 5, {vr(vLane)}')
    a(f'v_lshl_add_u32 {vr(M)}, {vr(M2)}, 4, {vr(M)}'); a(f'v_lshl_add_u32 {vr(vY)}, {vr(M)}, 4, {vr(vY)}')
    for r in range(4):
        a(f's_lshl_b32 s6, s{sJJ}, 2'); a(f's_add_u32 s6, s6, {r}'); a('s_cmp_ge_u32 s6, 6'); a('s_cselect_b32 s6, 1, 0')
        a(f'v_cmp_eq_u32 vcc, s6, {vr(t0)}')
        a(f'v_cndmask_b32 {vr(F+r)}, 0, 1.0, vcc')
    a(f'v_cmp_gt_u32 vcc, 32, {vr(vLane)}')
    for r in range(4):
        a(f'v_cndmask_b32 {vr(G+r)}, 0, {vr(F+r)}, vcc'); a(f'v_cndmask_b32 {vr(G+4+r)}, {vr(F+r)}, 0, vcc')
    a(f'v_and_b32 {vr(M)}, 15, {vr(vLane)}'); a(f'v_lshlrev_b32 {vr(M)}, 4, {vr(M)}')
    a(f'v_lshl_add_u32 {vr(vOw)}, {vr(t0)}, 3, {vr(M)}')
    a(f's_lshl_b32 s6, s{sW}, 8'); a(f's_add_u32 s6, s6, {OT}'); a(f'v_add_u32 {vr(vOw)}, s6, {vr(vOw)}')
    a(f'v_and_b32 {vr(M)}, 3, {vr(vLane)}'); a(f'v_lshlrev_b32 {vr(M)}, 8, {vr(M)}')
    a(f'v_lshrrev_b32 {vr(M2)}, 4, {vr(vLane)}'); a(f'v_lshl_add_u32 {vr(vOr)}, {vr(M2)}, 4, {vr(M)}')
    a(f'v_add_u32 {vr(vOr)}, {OT}, {vr(vOr)}')
    a(f's_mul_i32 s{sD}, s{sW}, 36864')
    a(f's_mov_b32 s{sDn}, {(-cfg.dma_t0) & 0xffffffff:#x}'); a(f's_mov_b32 s{sTrip}, 0')
    a(f'v_and_b32 {vr(M)}, 15, {vr(vLane)}'); a(f'v_lshlrev_b32 {vr(M)}, 5, {vr(M)}')
    a(f'v_lshl_add_u32 {vr(M2)}, {vr(t0)}, 4, {vr(M)}')
    a(f'v_lshrrev_b32 {vr(t1)}, 5, {vr(vLane)}'); a(f'v_lshl_add_u32 {vr(M2)}, {vr(t1)}, 9, {vr(M2)}')
    a(f's_lshl_b32 s6, s{sW}, 10'); a(f's_add_u32 s6, s6, {QRED}'); a(f'v_add_u32 {vr(M2)}, s6, {vr(M2)}')
    a(f's_lshl_b32 s6, s{sBsel}, 9'); a(f's_add_u32 s6, s6, {QRED}'); a(f'v_add_u32 {vr(M)}, s6, {vr(M)}')
    for jj in range(36):
        while ('w', jj) not in vm.q:
            issue(order[pos]); pos += 1
        vm.wait(('w', jj))
        wunit_mfma(jj, [X], [ACC], SEL, PA)
        while pos < len(order) and vm.after(('w', jj)) < 60:
            issue(order[pos]); pos += 1
    assert pos == len(order)
    a(f'ds_write_b128 {vr(M2)}, {vr(ACC,4)}')
    a('s_waitcnt lgkmcnt(0)'); a('s_barrier')
    for w in range(4):
        a(f'ds_read_b128 {vr(D+8*w,4)}, {vr(M)} offset:{1024*w}')
        a(f'ds_read_b128 {vr(D+8*w+4,4)}, {vr(M)} offset:{1024*w+16}')
    for r in range(4): a(f'v_mov_b32 {vr(ACC+r)}, 0')
    a('s_waitcnt lgkmcnt(0)')
    for e in range(8):
        a(f'v_add_f32 {vr(D+e)}, {vr(D+e)}, {vr(D+8+e)}'); a(f'v_add_f32 {vr(D+16+e)}, {vr(D+16+e)}, {vr(D+24+e)}')
    for e in range(8): a(f'v_add_f32 {vr(D+e)}, {vr(D+e)}, {vr(D+16+e)}')
    for k in range(4): a(f'v_cvt_pk_bf16_f32 {vr(Q+k)}, {vr(D+2*k)}, {vr(D+2*k+1)}')
    stamp(2)
    NW = 4 * R - 4
    def dma(s):
        if (s % 4) not in {1: (0,), 2: (0, 2), 3: (0, 1, 2), 4: (0, 1, 2, 3)}[cfg.dma_per]: return
        Ls = lab('nodma')
        a(f's_cmp_ge_u32 s{sDn}, {0 if cfg.nodma else 36}'); a(f's_cbranch_scc1 {Ls}')
        a(f's_mov_b32 m0, s{sD}')
        a(f'buffer_load_dwordx4 {vr(vL16)}, {srd(S_WO)}, s{sD} offen {cfg.wo_flags} lds')
        a(f's_add_u32 s{sD}, s{sD}, 1024')
        a(f'{Ls}:')
        a(f's_add_u32 s{sDn}, s{sDn}, 1')
    def shiftP():
        for k in range(NT - 1): a(f'v_mov_b32 {vr(P+k)}, {vr(P+k+1)}')
    dma_end = -(-(cfg.dma_t0 + 36) // cfg.dma_per)
    ev1 = cfg.ev_trip
    assert dma_end + RT <= ev1 and NT <= ev1 <= 2 * NT - 1, (dma_end, ev1)
    a('K_loop:')
    for s in range(R):
        K = KR + 16 * s; j = s % 4
        if j == 0:
            if (NT - RT) % RT == s // 4:
                a(f's_cmp_eq_u32 s{sTrip}, {NT-RT}')
                a(f's_cselect_b32 s{S_K}, s{S_V}, s{S_K}'); a(f's_cselect_b32 s{S_K+1}, s{S_V+1}, s{S_K+1}')
                a(f's_cselect_b32 s{sReal}, s{sBeg}, s{sReal}'); a(f's_min_u32 s{sOff}, s{sReal}, {OOB}')
            if (NT - RT - 1) % RT == s // 4:
                Ls = lab('c0')
                a(f's_cmp_lg_u32 s{sTrip}, {NT-RT-1}'); a(f's_cbranch_scc1 {Ls}')
                a(f'buffer_load_dword {vr(vC0)}, off, {srd(S_DBG)}, 0 offset:{C0} sc1')
                a(f'{Ls}:')
        a(f's_waitcnt vmcnt({NW})')
        for k in range(4):
            for u in range(4):
                c = '0' if k == 0 else vr(T + u)
                a(f'v_dot2_f32_bf16 {vr(T+u)}, {vr(K+4*u+k)}, {vr(Q+k)}, {c}')
        for u in range(4): a(ring_ld(s, u))
        adv(); dma(s)
        reduce4(T, XX, S)
        a(f'v_cndmask_b32 {vr(P+NT-1)}, {vr(P+NT-1)}, {vr(S)}, s[{sMk+2*j}:{sMk+2*j+1}]')
        if j == 3:
            a(f's_add_u32 s{sTrip}, s{sTrip}, 1')
            if (NT - 1) % RT == s // 4:
                a(f's_cmp_eq_u32 s{sTrip}, {NT}'); a('s_cbranch_scc1 A_mid')
            shiftP()
            if s == 3:
                a(f's_lshr_b64 s[{sMk}:{sMk+1}], s[{sMk+4}:{sMk+5}], 2'); a(f's_lshr_b64 s[{sMk+2}:{sMk+3}], s[{sMk+4}:{sMk+5}], 1')
    a('s_branch K_loop')
    a('A_mid:')
    stamp(5)
    a(f'v_max3_f32 {vr(M)}, {vr(P)}, {vr(P+1)}, {vr(P+2)}')
    for k in range(3, NT, 2): a(f'v_max3_f32 {vr(M)}, {vr(M)}, {vr(P+k)}, {vr(P+k+1)}')
    for sh in (8, 4, 2, 1): a(f'v_max_f32_dpp {vr(M)}, {vr(M)}, {vr(M)} row_ror:{sh} {DPPF}')
    allred_rows(M, M2, 'v_max_f32')
    a(f'v_mul_f32 {vr(XX)}, {vr(M)}, {vr(vC)}')
    for k in range(NT): a(f'v_fma_f32 {vr(P+k)}, {vr(P+k)}, {vr(vC)}, -{vr(XX)}')
    for k in range(NT): a(f'v_exp_f32 {vr(P+k)}, {vr(P+k)}')
    a(f'v_add_f32 {vr(M)}, {vr(P)}, {vr(P+1)}')
    for k in range(2, NT): a(f'v_add_f32 {vr(M)}, {vr(M)}, {vr(P+k)}')
    for k in range(NT): a(f'v_cvt_pk_bf16_f32 {vr(P+k)}, {vr(P+k)}, {vr(P+k)}')
    for sh in (8, 4, 2, 1): a(f'v_add_f32_dpp {vr(M)}, {vr(M)}, {vr(M)} row_ror:{sh} {DPPF}')
    allred_rows(M, M2, 'v_add_f32')
    a(f'v_min_u32 {vr(XX)}, -2, {vr(XX)}'); a(f'v_min_u32 {vr(XX+1)}, -2, {vr(M)}')
    if not cfg.noB: ensure(C0, 64, vC0)
    a(f's_lshl_b32 s6, s{sRank}, 3'); a(f's_add_u32 s6, s6, s{sSt}')
    a('s_mov_b64 exec, 1')
    a(f'buffer_store_dwordx2 {vr(XX,2)}, off, {srd(S_WS)}, s6 sc1')
    a('s_mov_b64 exec, -1')
    ent = (4 * NT) % R
    if ent: a('s_branch V_entry')
    ST = X
    def st_loads():
        for k in range(3): a(f'buffer_load_dwordx4 {vr(ST+4*k,4)}, off, {srd(S_WS)}, s{sSt} offset:{16*k} sc1')
    a('V_loop:')
    for s in range(R):
        K = KR + 16 * s; j = s % 4
        if s == ent: a('V_entry:')
        if j == 0:
            if ev1 % RT == s // 4:
                a(f's_cmp_eq_u32 s{sTrip}, {ev1}'); a('s_cbranch_scc1 A_ev1'); a('A_ev1_ret:')
            if (2 * NT - 1) % RT == s // 4:
                Ls = lab('nost')
                a(f's_cmp_lg_u32 s{sTrip}, {2*NT-1-RT}'); a(f's_cbranch_scc1 {Ls}')
                st_loads()
                a(f'{Ls}:')
                a(f's_cmp_eq_u32 s{sTrip}, {2*NT-1}'); a('s_cbranch_scc1 A_ev2'); a('A_ev2_ret:')
            a('s_nop 1')
        for u in range(4):
            for r in range(4):
                a(f'v_and_b32_dpp {vr(PA+4*u+r)}, {vr(P)}, {vr(MASK+r)} row_newbcast:{4*u+j} {DPPF}')
        a(f's_waitcnt vmcnt({NW})')
        for u in range(4):
            a(f'v_mfma_f32_16x16x32_bf16 {vr(ACC,4)}, {vr(PA+4*u,4)}, {vr(K+4*u,4)}, {vr(ACC,4)}')
        if j == 3:
            a(f's_add_u32 s{sTrip}, s{sTrip}, 1')
            if (2 * NT - 1) % RT == s // 4:
                a(f's_cmp_eq_u32 s{sTrip}, {2*NT}'); a('s_cbranch_scc1 A_tail')
        for u in range(4): a(ring_ld(s, u))
        adv(); dma(s)
        if j == 3: shiftP()
    a('s_branch V_loop')
    a('A_ev1:')
    a('s_barrier')
    wo_frag_reads(4, vT)
    a('s_branch A_ev1_ret')
    a('A_ev2:')
    a(f's_mov_b32 s7, {cfg.spin_max}')
    a('A_ev2_chk:')
    umax_tree(M, range(ST, ST + 12))
    a(f'v_cmp_eq_u32 vcc, -1, {vr(M)}')
    a('s_cbranch_vccz A_ev2_ok')
    st_loads()
    a('s_waitcnt vmcnt(0)')
    a('s_sub_u32 s7, s7, 1'); a('s_cmp_lg_u32 s7, 0'); a('s_cbranch_scc1 A_ev2_chk')
    a('A_ev2_ok:')
    a(f'v_max3_f32 {vr(M)}, {vr(ST)}, {vr(ST+2)}, {vr(ST+4)}'); a(f'v_max3_f32 {vr(M2)}, {vr(ST+6)}, {vr(ST+8)}, {vr(ST+10)}')
    a(f'v_max_f32 {vr(M)}, {vr(M)}, {vr(M2)}')
    for k in range(6): a(f'v_sub_f32 {vr(ST+2*k)}, {vr(ST+2*k)}, {vr(M)}')
    a(f'v_sub_f32 {vr(fN)}, {vr(XX)}, {vr(M)}')
    for k in range(6): a(f'v_exp_f32 {vr(ST+2*k)}, {vr(ST+2*k)}')
    a(f'v_exp_f32 {vr(fN)}, {vr(fN)}')
    a(f'v_mul_f32 {vr(M)}, {vr(ST)}, {vr(ST+1)}')
    for k in range(1, 6): a(f'v_fma_f32 {vr(M)}, {vr(ST+2*k)}, {vr(ST+2*k+1)}, {vr(M)}')
    a(f'v_rcp_f32 {vr(M)}, {vr(M)}')
    a(f'v_mul_f32 {vr(fN)}, {vr(fN)}, {vr(M)}')
    a('s_branch A_ev2_ret')
    a('A_tail:')
    stamp(3)
    a('s_nop 4')
    for r in range(4): a(f'v_mul_f32 {vr(ACC+r)}, {vr(ACC+r)}, {vr(fN)}')
    a(f'v_cvt_pk_bf16_f32 {vr(T)}, {vr(ACC)}, {vr(ACC+1)}'); a(f'v_cvt_pk_bf16_f32 {vr(T+1)}, {vr(ACC+2)}, {vr(ACC+3)}')
    a(f'ds_write_b64 {vr(vOw)}, {vr(T,2)}')
    a('s_waitcnt lgkmcnt(0)'); a('s_barrier')
    for ks in range(4): a(f'ds_read_b128 {ar(4*ks,4)}, {vr(vOr)} offset:{64*ks}')
    a('s_waitcnt lgkmcnt(0)')
    def tile(t):
        for ks in range(4):
            c = '0' if ks == 0 else vr(D + 4 * t, 4)
            a(f'v_mfma_f32_16x16x32_bf16 {vr(D+4*t,4)}, {ar(4*ks,4)}, {ar(AW+4*(t*4+ks),4)}, {c}')
    def comb(j, t, first):
        g = G + (4 if t >= 4 else 0)
        for r in range(4):
            if first and r == 0: a(f'v_mul_f32 {vr(O+j)}, {vr(g)}, {vr(D+4*t)}')
            else: a(f'v_fma_f32 {vr(O+j)}, {vr(g+r)}, {vr(D+4*t+r)}, {vr(O+j)}')
    tile(8); tile(0); tile(1)
    a(f'v_mul_f32 {vr(O+4)}, {vr(F)}, {vr(D+32)}')
    for r in range(1, 4): a(f'v_fma_f32 {vr(O+4)}, {vr(F+r)}, {vr(D+32+r)}, {vr(O+4)}')
    tile(2)
    a(f'v_min_u32 {vr(O+4)}, -2, {vr(O+4)}')
    a('s_mov_b64 exec, 0xffffffff')
    a(f'buffer_store_dword {vr(O+4)}, {vr(vY8)}, {srd(S_WS)}, 0 offen offset:512 sc1')
    a('s_mov_b64 exec, -1')
    comb(0, 0, True)
    tile(3); comb(1, 1, True)
    tile(4); comb(2, 2, True)
    tile(5); comb(3, 3, True)
    tile(6); comb(0, 4, False)
    tile(7); comb(1, 5, False); comb(2, 6, False)
    for j in range(3): a(f'v_min_u32 {vr(O+j)}, -2, {vr(O+j)}')
    comb(3, 7, False)
    a(f'v_min_u32 {vr(O+3)}, -2, {vr(O+3)}')
    a(f'buffer_store_dwordx4 {vr(O,4)}, {vr(vY)}, {srd(S_WS)}, 0 offen sc1')
    stamp(4)
    stamp_flush(M, 'A')
    a('s_endpgm')

def gen_B():
    V = VAlloc(1)
    vLane = V(); vL16 = V(); vWoff = V(); vXoff = V(); t0 = V(); t1 = V(); t2 = V(); vI = V(); vG = V(); vL16x = V(); vC0 = V()
    base = V.n
    sHalf, sBeta, sB2, sCh, sM0, sSo = 8, 9, 10, 11, 12, 13
    CROW = 1088; CB = 64 * CROW
    QROW = 1056; SQ = 2 * CB; QRED = SQ
    PB = SQ + 16 * QROW; MX = PB + 4096; LS = MX + 512
    assert LS + 512 <= LDS_TOTAL
    fl = cfg.b_flags
    a('B_role:')
    if cfg.noB: a('s_endpgm')
    a(f's_mov_b32 s{sHalf}, s{sR}')
    a(f's_lshl_b32 s{sBeta}, s{sH}, 1'); a(f's_add_u32 s{sBeta}, s{sBeta}, s{sHalf}')
    a(f's_lshr_b32 s{sB2}, s{sBeta}, 4'); a(f's_and_b32 s{sCh}, s{sBeta}, 15')
    a(f'v_and_b32 {vr(vLane)}, 63, v0'); a(f'v_lshlrev_b32 {vr(vL16)}, 4, {vr(vLane)}')
    a(f'v_lshrrev_b32 {vr(vG)}, 4, {vr(vLane)}'); a(f'v_and_b32 {vr(vI)}, 15, {vr(vLane)}')
    a('s_waitcnt lgkmcnt(0)')
    a(f's_mul_i32 s6, s{sW}, 288'); a('s_sub_u32 s7, 4608, s6'); mk_srd(S_X, P_BX, 's6', 's7')
    a(f's_mul_i32 s6, s{sW}, {144*8192}'); a(f's_lshl_b32 s7, s{sH}, 8'); a('s_add_u32 s6, s6, s7')
    a(f's_sub_u32 s7, {576*8192}, s6'); mk_srd(S_W, P_BWQ, 's6', 's7')
    a(f's_lshl_b32 s6, s{sHalf}, 2'); a(f's_add_u32 s6, s6, s{sW}'); a('s_lshl_b32 s6, s6, 19')
    a(f's_lshl_b32 s7, s{sH}, 8'); a('s_add_u32 s6, s6, s7'); a(f's_sub_u32 s7, {512*8192}, s6')
    mk_srd(S_U, P_WUK, 's6', 's7')
    a(f's_lshl_b32 s6, s{sBeta}, 18'); mk_srd(S_K, P_CKV, 's6', 0x40000)
    for bit, R in ((1, S_W), (2, S_U), (4, S_K)):
        if cfg.bskip & bit: a(f's_mov_b32 s{R+2}, 0')
    MASK = V(4); SEL = V(8); X0 = V(18); X1 = V(18); PA = V(16, 4); AC0 = V(4, 4); AC1 = V(4, 4)
    UK = V(64, 4); QB = V(16); T = V(4); XX = V(2); U = V(16, 4); D = V(32, 4); vUoff = V()
    a(f'v_mul_u32_u24 {vr(vWoff)}, {36*8192}, {vr(vG)}'); a(f'v_lshl_add_u32 {vr(vWoff)}, {vr(vI)}, 4, {vr(vWoff)}')
    a(f'v_mul_u32_u24 {vr(vXoff)}, 72, {vr(vG)}'); a(f'v_lshrrev_b32 {vr(t1)}, 3, {vr(vI)}')
    a(f'v_mul_u32_u24 {vr(t1)}, 1152, {vr(t1)}'); a(f'v_add_u32 {vr(vXoff)}, {vr(vXoff)}, {vr(t1)}')
    a(f'v_lshlrev_b32 {vr(vUoff)}, 17, {vr(vG)}'); a(f'v_lshl_add_u32 {vr(vUoff)}, {vr(vI)}, 4, {vr(vUoff)}')
    a(f'v_xor_b32 {vr(vL16x)}, 32, {vr(vL16)}')
    mk_srd(S_WS, P_WS, None, WS_USED)
    vm = VM(a, 49)
    x_loads(vm, X0, vXoff, 0); x_loads(vm, X1, vXoff, 2304)
    Lc = lab('noclr')
    a(f's_cmp_lg_u32 s{sW}, 0'); a(f's_cbranch_scc1 {Lc}')
    for r in range(4): a(f'v_mov_b32 {vr(D+r)}, -1')
    a(f'v_lshrrev_b32 {vr(t0)}, 5, {vr(vLane)}'); a(f'v_lshlrev_b32 {vr(t0)}, 15, {vr(t0)}')
    a(f'v_and_b32 {vr(t1)}, 31, {vr(vLane)}'); a(f'v_lshl_add_u32 {vr(t0)}, {vr(t1)}, 4, {vr(t0)}')
    a(f'v_lshlrev_b32 {vr(t1)}, 9, {vr(t1)}')
    a(f's_lshl_b32 s6, s{sBeta}, 9'); a(f's_add_u32 s7, s6, {QABS + 65536}'); a(f's_add_u32 s6, s6, {QABS}')
    a(f'buffer_store_dwordx4 {vr(D,4)}, {vr(t0)}, {srd(S_WS)}, s6 offen sc1')
    a(f'buffer_store_dwordx4 {vr(D,4)}, {vr(t0)}, {srd(S_WS)}, s7 offen sc1')
    a(f's_lshl_b32 s6, s{sBeta}, 3'); a(f's_add_u32 s6, s6, {PSTAT}')
    a('s_mov_b64 exec, 0xffffffff')
    a(f'buffer_store_dwordx2 {vr(D,2)}, {vr(t1)}, {srd(S_WS)}, s6 offen sc1')
    a(f's_lshl_b32 s6, s{sBeta}, 7'); a(f's_add_u32 s6, s6, {AST}')
    a('s_mov_b64 exec, 0xff')
    a(f'buffer_store_dwordx4 {vr(D,4)}, {vr(vL16)}, {srd(S_WS)}, s6 offen sc1')
    a('s_mov_b64 exec, -1')
    a(f's_mul_i32 s6, s{sBeta}, 9216'); a(f's_add_u32 s6, s6, {YA}')
    for k in range(9):
        if k in (4, 8): a('s_add_u32 s6, s6, 4096')
        a(f'buffer_store_dwordx4 {vr(D,4)}, {vr(vL16)}, {srd(S_WS)}, s6 offen offset:{1024*(k&3)} sc1')
    a(f'{Lc}:')
    for jj in range(36): wunit_load(vm, jj, vWoff, cfg.wq_flags)
    def uk_load(u):
        a(f's_mov_b32 s6, {u*8192}')
        vm.issue(f'buffer_load_dwordx4 {vr(UK+4*u,4)}, {vr(vUoff)}, {srd(S_U)}, s6 offen {fl}', ('u', u))
    for u in range(3): uk_load(u)
    mk_srd(S_DBG, P_DBG, None, 256); mk_srd(S_OUT, P_OUT, None, 9216)
    mk_masks(vLane, MASK, SEL, t0, t1)
    def c_dma(rho, k):
        a(f's_add_u32 m0, s{sM0}, {(rho&1)*CB + k*CROW}')
        a(f's_add_u32 s6, s{sSo}, {(64*rho + k)*1024}')
        vm.issue(f'buffer_load_dwordx4 {vr(vL16x if k >= 8 else vL16)}, {srd(S_K)}, s6 offen {fl} lds', ('c', rho))
    def c_reg(rho, k):
        a(f's_add_u32 s6, s{sSo}, {(64*rho + k)*1024}')
        vm.issue(f'buffer_load_dwordx4 {ar(64*rho+4*k,4)}, {vr(vL16x if k >= 8 else vL16)}, {srd(S_K)}, s6 offen {fl}', ('c', rho))
    a(f's_mul_i32 s{sM0}, s{sW}, {16*CROW}'); a(f's_lshl_b32 s{sSo}, s{sW}, 14')
    dma = [(rho, k) for rho in range(2) for k in range(16)]
    for jj in range(36):
        vm.wait(('w', jj))
        if jj == 0:
            Ls = lab('sig0')
            a(f's_cmp_lg_u32 s{sW}, 0'); a(f's_cbranch_scc1 {Ls}')
            a(f'v_mov_b32 {vr(t2)}, 1'); a('s_mov_b64 exec, 1')
            a(f'buffer_atomic_add {vr(t2)}, off, {srd(S_DBG)}, 0 offset:{C0}')
            a('s_mov_b64 exec, -1')
            a(f'{Ls}:')
            vm.limit = 61
            for u in range(3, 16): uk_load(u)
        wunit_mfma(jj, [X0, X1], [AC0, AC1], SEL, PA)
        if jj == 28: vm.issue(f'buffer_load_dword {vr(vC0)}, off, {srd(S_DBG)}, 0 offset:{C0} sc1', 'c0')
        if dma: c_dma(*dma.pop(0))
    assert not dma
    a(f'v_lshlrev_b32 {vr(t0)}, 5, {vr(vI)}')
    a(f'v_and_b32 {vr(t1)}, 1, {vr(vG)}'); a(f'v_lshl_add_u32 {vr(t1)}, {vr(t1)}, 4, {vr(t0)}')
    a(f'v_lshrrev_b32 {vr(t2)}, 5, {vr(vLane)}'); a(f'v_lshl_add_u32 {vr(t1)}, {vr(t2)}, 9, {vr(t1)}')
    a(f's_lshl_b32 s6, s{sW}, 11'); a(f's_add_u32 s6, s6, {QRED}'); a(f'v_add_u32 {vr(t1)}, s6, {vr(t1)}')
    a(f'ds_write_b128 {vr(t1)}, {vr(AC0,4)}'); a(f'ds_write_b128 {vr(t1)}, {vr(AC1,4)} offset:1024')
    a(f'v_add_u32 {vr(t0)}, {QRED}, {vr(t0)}')
    a('s_waitcnt lgkmcnt(0)'); a('s_barrier')
    for b in range(4):
        for w in range(4):
            a(f'ds_read_b128 {vr(D+8*w,4)}, {vr(t0)} offset:{2048*w+512*b}')
            a(f'ds_read_b128 {vr(D+8*w+4,4)}, {vr(t0)} offset:{2048*w+512*b+16}')
        a('s_waitcnt lgkmcnt(0)')
        for e in range(8):
            a(f'v_add_f32 {vr(D+e)}, {vr(D+e)}, {vr(D+8+e)}'); a(f'v_add_f32 {vr(D+16+e)}, {vr(D+16+e)}, {vr(D+24+e)}')
        for e in range(8): a(f'v_add_f32 {vr(D+e)}, {vr(D+e)}, {vr(D+16+e)}')
        for k in range(4): a(f'v_cvt_pk_bf16_f32 {vr(QB+4*b+k)}, {vr(D+2*k)}, {vr(D+2*k+1)}')
    vm.wait(('u', 15))
    for u in range(16):
        for k in range(4):
            for b in range(4):
                c = '0' if k == 0 else vr(T + b)
                a(f'v_dot2_f32_bf16 {vr(T+b)}, {vr(UK+4*u+k)}, {vr(QB+4*b+k)}, {c}')
        reduce4(T, XX, U + u)
    for k in range(8): a(f'v_cvt_pk_bf16_f32 {vr(D+k)}, {vr(U+2*k)}, {vr(U+2*k+1)}')
    for k in range(8): a(f'v_min_u32 {vr(D+k)}, -2, {vr(D+k)}')
    a(f'v_bfe_u32 {vr(t0)}, {vr(vLane)}, 2, 2'); a(f'v_lshlrev_b32 {vr(t0)}, 15, {vr(t0)}')
    a(f'v_lshl_add_u32 {vr(t0)}, {vr(vG)}, 5, {vr(t0)}')
    a(f's_lshl_b32 s6, s{sH}, 10'); a(f's_lshl_b32 s7, s{sHalf}, 9'); a('s_add_u32 s6, s6, s7')
    a(f's_lshl_b32 s7, s{sW}, 7'); a('s_add_u32 s6, s6, s7'); a(f's_add_u32 s6, s6, {QABS}')
    a('s_mov_b32 exec_lo, 0x11111111'); a('s_mov_b32 exec_hi, 0x11111111')
    vm.issue(f'buffer_store_dwordx4 {vr(D,4)}, {vr(t0)}, {srd(S_WS)}, s6 offen sc1')
    vm.issue(f'buffer_store_dwordx4 {vr(D+4,4)}, {vr(t0)}, {srd(S_WS)}, s6 offen offset:16 sc1')
    a('s_mov_b64 exec, -1')
    stamp(1)
    vm.wait('c0')
    ensure(C0, 64, vC0)
    stamp(2)
    if cfg.bstop == 1: a('s_branch B_end')
    V = VAlloc(base)
    ACC = V(64, 4); S = V(8, 4); CF = V(64, 4); PF = V(16, 4); MXR = V(12, 4)
    mQ = V(2); mP = V(); lQ = V(2); aQ = V(2); aP = V(); vC = V(); PK = V(4, 2); Mx = V(2); tt = V()
    vA = V(2); vTr = V(2); vMw = V(); vMr = V(); vMp = V(); vPw = V(); vPr = V(); vQ = V(); vQw = V(); vCw = V(2)
    sQ = 14
    a(f's_lshl_b32 s{sQ}, s{sB2}, 15'); a(f's_lshl_b32 s6, s{sW}, 12'); a(f's_add_u32 s{sQ}, s{sQ}, s6'); a(f's_add_u32 s{sQ}, s{sQ}, {QABS}')
    a(f's_add_u32 s{sQ+1}, s{sQ}, 16384')
    def q_loads(iss):
        for nt in range(2):
            for k in range(4):
                iss(f'buffer_load_dwordx4 {vr(CF+16*nt+4*k,4)}, {vr(vL16)}, {srd(S_WS)}, s{sQ+nt} offen offset:{1024*k} sc1')
    a('s_nop 1')
    q_loads(lambda t: vm.issue(t, 'q'))
    for rho in (2, 3):
        for k in range(16): c_reg(rho, k)
    a(f's_lshl_b32 s6, s{sW}, 4'); a(f'v_add_u32 {vr(t0)}, s6, {vr(vI)}'); a(f'v_mul_u32_u24 {vr(t0)}, {CROW}, {vr(t0)}')
    a(f'v_lshrrev_b32 {vr(t1)}, 3, {vr(vI)}'); a(f'v_lshlrev_b32 {vr(t1)}, 1, {vr(t1)}'); a(f'v_xor_b32 {vr(t1)}, {vr(t1)}, {vr(vG)}')
    a(f'v_lshl_add_u32 {vr(vA)}, {vr(t1)}, 4, {vr(t0)}'); a(f'v_add_u32 {vr(vA+1)}, {CB}, {vr(vA)}')
    a(f'v_lshrrev_b32 {vr(t0)}, 5, {vr(vLane)}'); a(f'v_lshlrev_b32 {vr(t0)}, 3, {vr(t0)}')
    a(f'v_bfe_u32 {vr(t1)}, {vr(vLane)}, 2, 2'); a(f'v_add_u32 {vr(t0)}, {vr(t0)}, {vr(t1)}'); a(f'v_mul_u32_u24 {vr(t0)}, {CROW}, {vr(t0)}')
    a(f'v_lshrrev_b32 {vr(t1)}, 1, {vr(vG)}'); a(f'v_xor_b32 {vr(t1)}, {vr(t1)}, {vr(vG)}')
    a(f'v_and_b32 {vr(t1)}, 1, {vr(t1)}'); a(f'v_lshl_add_u32 {vr(t0)}, {vr(t1)}, 5, {vr(t0)}')
    a(f'v_and_b32 {vr(t1)}, 3, {vr(vLane)}'); a(f'v_lshl_add_u32 {vr(t0)}, {vr(t1)}, 3, {vr(t0)}')
    a(f's_lshl_b32 s6, s{sW}, 8'); a(f'v_add_u32 {vr(vTr)}, s6, {vr(t0)}'); a(f'v_add_u32 {vr(vTr+1)}, {CB}, {vr(vTr)}')
    a(f'v_lshlrev_b32 {vr(vMr)}, 4, {vr(vI)}'); a(f'v_add_u32 {vr(vMr)}, {MX}, {vr(vMr)}')
    a(f's_lshl_b32 s6, s{sW}, 2'); a(f'v_add_u32 {vr(vMw)}, s6, {vr(vMr)}')
    a(f'v_and_b32 {vr(t0)}, 31, {vr(vLane)}'); a(f'v_lshlrev_b32 {vr(vMp)}, 4, {vr(t0)}'); a(f'v_add_u32 {vr(vMp)}, {MX}, {vr(vMp)}')
    a(f'v_lshlrev_b32 {vr(vPr)}, 5, {vr(t0)}'); a(f'v_lshrrev_b32 {vr(t1)}, 5, {vr(vLane)}')
    a(f'v_lshl_add_u32 {vr(vPr)}, {vr(t1)}, 4, {vr(vPr)}'); a(f'v_add_u32 {vr(vPr)}, {PB}, {vr(vPr)}')
    a(f'v_lshlrev_b32 {vr(vPw)}, 5, {vr(vI)}'); a(f'v_lshl_add_u32 {vr(vPw)}, {vr(vG)}, 3, {vr(vPw)}')
    a(f's_lshl_b32 s6, s{sW}, 10'); a(f's_add_u32 s6, s6, {PB}'); a(f'v_add_u32 {vr(vPw)}, s6, {vr(vPw)}')
    a(f'v_mul_u32_u24 {vr(vQ)}, {QROW}, {vr(vI)}'); a(f'v_lshl_add_u32 {vr(vQ)}, {vr(vG)}, 4, {vr(vQ)}'); a(f'v_add_u32 {vr(vQ)}, {SQ}, {vr(vQ)}')
    a(f's_mul_i32 s6, s{sW}, {4*QROW}'); a(f's_add_u32 s6, s6, {SQ}'); a(f'v_add_u32 {vr(vQw)}, s6, {vr(vL16)}')
    a(f'v_add_u32 {vr(vCw)}, s{sM0}, {vr(vL16)}'); a(f'v_add_u32 {vr(vCw+1)}, {CB}, {vr(vCw)}')
    a(f'v_mov_b32 {vr(vC)}, {f2u(SCALE):#x}')
    for r in (mQ, mQ + 1, mP): a(f'v_mov_b32 {vr(r)}, 0xff800000')
    a(f'v_mov_b32 {vr(lQ)}, 0'); a(f'v_mov_b32 {vr(lQ+1)}, 0')
    vm.wait('q')
    a(f's_mov_b32 s7, {cfg.spin_max}')
    a('Q_chk:')
    umax_tree(tt, range(CF, CF + 32))
    a(f'v_cmp_eq_u32 vcc, -1, {vr(tt)}')
    a('s_cbranch_vccz Q_ok')
    a(f's_sleep {cfg.psleep}')
    q_loads(a)
    a('s_waitcnt vmcnt(0)')
    a('s_sub_u32 s7, s7, 1'); a('s_cmp_lg_u32 s7, 0'); a('s_cbranch_scc1 Q_chk')
    a('Q_ok:')
    stamp(3)
    for nt in range(2):
        a('s_barrier')
        for k in range(4): a(f'ds_write_b128 {vr(vQw)}, {vr(CF+16*nt+4*k,4)} offset:{QROW*k}')
        a('s_waitcnt lgkmcnt(0)'); a('s_barrier')
        for ks in range(16): a(f'ds_read_b128 {ar(64*nt+4*ks,4)}, {vr(vQ)} offset:{64*ks}')
        a('s_waitcnt lgkmcnt(0)')
    for rho in range(4):
        par = rho & 1
        for ks in range(16):
            a(f'ds_read_b128 {vr(CF+4*ks,4)}, {vr(vA+par)} offset:{64*ks}')
        for ks in range(16):
            a(f's_waitcnt lgkmcnt({15-ks})')
            for nt in range(2):
                c = '0' if ks == 0 else vr(S + 4 * nt, 4)
                a(f'v_mfma_f32_16x16x32_bf16 {vr(S+4*nt,4)}, {vr(CF+4*ks,4)}, {ar(64*nt+4*ks,4)}, {c}')
        for nt in range(2):
            a(f'v_max_f32 {vr(Mx+nt)}, {vr(S+4*nt)}, {vr(S+4*nt+1)}')
            a(f'v_max3_f32 {vr(Mx+nt)}, {vr(Mx+nt)}, {vr(S+4*nt+2)}, {vr(S+4*nt+3)}')
            allred_rows(Mx + nt, tt, 'v_max_f32')
            a(f'ds_write_b32 {vr(vMw)}, {vr(Mx+nt)} offset:{256*nt}')
        a('s_waitcnt lgkmcnt(0)'); a('s_barrier')
        a(f'ds_read_b128 {vr(MXR,4)}, {vr(vMr)}'); a(f'ds_read_b128 {vr(MXR+4,4)}, {vr(vMr)} offset:256'); a(f'ds_read_b128 {vr(MXR+8,4)}, {vr(vMp)}')
        if 1 <= rho <= 2:
            vm.wait(('c', rho + 1))
            for k in range(16): a(f'ds_write_b128 {vr(vCw+1-par)}, {ar(64*(rho+1)+4*k,4)} offset:{k*CROW}')
            a('s_waitcnt lgkmcnt(15)')
        else:
            a('s_waitcnt lgkmcnt(0)')
        for i, (m, al) in enumerate(((mQ, aQ), (mQ + 1, aQ + 1), (mP, aP))):
            R = MXR + 4 * i
            a(f'v_max_f32 {vr(R)}, {vr(R)}, {vr(R+1)}'); a(f'v_max3_f32 {vr(R)}, {vr(R)}, {vr(R+2)}, {vr(R+3)}')
            a(f'v_mul_f32 {vr(R)}, {vr(R)}, {vr(vC)}'); a(f'v_max_f32 {vr(R)}, {vr(R)}, {vr(m)}')
            a(f'v_sub_f32 {vr(al)}, {vr(m)}, {vr(R)}'); a(f'v_exp_f32 {vr(al)}, {vr(al)}'); a(f'v_mov_b32 {vr(m)}, {vr(R)}')
        for nt in range(2):
            for r in range(4):
                a(f'v_fma_f32 {vr(S+4*nt+r)}, {vr(S+4*nt+r)}, {vr(vC)}, -{vr(mQ+nt)}')
            for r in range(4): a(f'v_exp_f32 {vr(S+4*nt+r)}, {vr(S+4*nt+r)}')
            a(f'v_mul_f32 {vr(lQ+nt)}, {vr(lQ+nt)}, {vr(aQ+nt)}')
            a(f'v_cvt_pk_bf16_f32 {vr(PK+2*nt)}, {vr(S+4*nt)}, {vr(S+4*nt+1)}'); a(f'v_cvt_pk_bf16_f32 {vr(PK+2*nt+1)}, {vr(S+4*nt+2)}, {vr(S+4*nt+3)}')
            a(f'ds_write_b64 {vr(vPw)}, {vr(PK+2*nt,2)} offset:{512*nt}')
            for r in range(4): a(f'v_add_f32 {vr(lQ+nt)}, {vr(lQ+nt)}, {vr(S+4*nt+r)}')
        if rho > 0:
            for r in range(64): a(f'v_mul_f32 {vr(ACC+r)}, {vr(ACC+r)}, {vr(aP)}')
        a('s_waitcnt lgkmcnt(0)'); a('s_barrier')
        for ks in range(4): a(f'ds_read_b128 {vr(PF+4*ks,4)}, {vr(vPr)} offset:{1024*ks}')
        for ks in range(4):
            for ct in range(4):
                for sec in range(2):
                    a(f'ds_read_b64_tr_b16 {vr(CF+16*ks+4*ct+2*sec,2)}, {vr(vTr+par)} offset:{(16*ks+4*sec)*CROW + 64*ct}')
        for ks in range(4):
            a(f's_waitcnt lgkmcnt({min(15, 8*(3-ks))})')
            for ct in range(4):
                c = '0' if (rho == 0 and ks == 0) else vr(ACC + 16 * ct, 16)
                a(f'v_mfma_f32_32x32x16_bf16 {vr(ACC+16*ct,16)}, {vr(CF+16*ks+4*ct,4)}, {vr(PF+4*ks,4)}, {c}')
    stamp(4)
    for nt in range(2):
        allred_rows(lQ + nt, tt, 'v_add_f32')
        a(f'ds_write_b32 {vr(vMw)}, {vr(lQ+nt)} offset:{512+256*nt}')
    TROW = 1040
    a(f'v_and_b32 {vr(t0)}, 31, {vr(vLane)}'); a(f'v_mul_u32_u24 {vr(t0)}, {TROW}, {vr(t0)}')
    a(f'v_lshrrev_b32 {vr(t1)}, 5, {vr(vLane)}'); a(f'v_lshl_add_u32 {vr(t0)}, {vr(t1)}, 3, {vr(t0)}')
    a(f's_lshl_b32 s6, s{sW}, 8'); a(f'v_add_u32 {vr(t0)}, s6, {vr(t0)}')
    for ct in range(4):
        for rq in range(4):
            R = ACC + 16 * ct + 4 * rq; P = CF + 2 * (4 * ct + rq)
            a(f'v_cvt_pk_bf16_f32 {vr(P)}, {vr(R)}, {vr(R+1)}'); a(f'v_cvt_pk_bf16_f32 {vr(P+1)}, {vr(R+2)}, {vr(R+3)}')
            a(f'ds_write_b64 {vr(t0)}, {vr(P,2)} offset:{64*ct+16*rq}')
    a('s_waitcnt lgkmcnt(0)'); a('s_barrier')
    a(f's_mul_i32 s6, s{sW}, {8*TROW}'); a(f'v_add_u32 {vr(t0)}, s6, {vr(vL16)}')
    for k in range(8): a(f'ds_read_b128 {vr(CF+32+4*k,4)}, {vr(t0)} offset:{k*TROW}')
    a(f'ds_read_b128 {vr(MXR,4)}, {vr(vMp)} offset:512')
    a(f's_lshl_b32 s7, s{sW}, 19'); a(f's_lshl_b32 s6, s{sBeta}, 10'); a('s_add_u32 s7, s7, s6'); a(f's_add_u32 s7, s7, {PART if not cfg.bskip & 16 else OOB}')
    for k in range(8):
        a(f's_waitcnt lgkmcnt({8-k})')
        a(f's_add_u32 s6, s7, {k*65536}')
        a(f'buffer_store_dwordx4 {vr(CF+32+4*k,4)}, {vr(vL16)}, {srd(S_WS)}, s6 offen sc1')
    a('s_waitcnt lgkmcnt(0)')
    a(f'v_add_f32 {vr(MXR)}, {vr(MXR)}, {vr(MXR+1)}'); a(f'v_add_f32 {vr(MXR+2)}, {vr(MXR+2)}, {vr(MXR+3)}')
    a(f'v_add_f32 {vr(PK+1)}, {vr(MXR)}, {vr(MXR+2)}'); a(f'v_mov_b32 {vr(PK)}, {vr(mP)}')
    a(f'v_lshlrev_b32 {vr(t0)}, 9, {vr(vLane)}')
    a(f's_lshl_b32 s6, s{sBeta}, 3'); a(f's_add_u32 s6, s6, {PSTAT}')
    a(f'v_min_u32 {vr(PK)}, -2, {vr(PK)}'); a(f'v_min_u32 {vr(PK+1)}, -2, {vr(PK+1)}')
    a('s_waitcnt vmcnt(0)'); a('s_barrier')
    Ls = lab('nops')
    a(f's_cmp_lg_u32 s{sW}, 0'); a(f's_cbranch_scc1 {Ls}')
    a('s_mov_b64 exec, 0xffffffff')
    a(f'buffer_store_dwordx2 {vr(PK,2)}, {vr(t0)}, {srd(S_WS)}, s6 offen sc1')
    a('s_mov_b64 exec, -1')
    a(f'{Ls}:')
    stamp(5)
    if cfg.bstop == 2: a('s_branch B_end')
    V = VAlloc(base)
    UB = 73728; OT = UB + 65536; RED = OT + 2048
    AF = V(64, 4); BF = V(32, 4); D = V(36, 4); F = V(4); ST = V(2); Mx = V(); Lx = V(); vU = V(2); vR = V(4); vT = V(4); PA = V(8, 4); O = V(12, 4)
    a(f's_mul_i32 s6, s{sBeta}, 73728'); mk_srd(S_WO, P_BWO, 's6', 73728)
    a(f's_lshl_b32 s6, s{sBeta}, 7'); a(f's_sub_u32 s7, {512*8192}, s6'); mk_srd(S_U, P_WUV, 's6', 's7')
    a(f'v_lshrrev_b32 {vr(t0)}, 3, {vr(vLane)}'); a(f'v_and_b32 {vr(t1)}, 7, {vr(vLane)}')
    a(f'v_and_b32 {vr(t2)}, 2, {vr(t0)}'); a(f'v_xor_b32 {vr(t1)}, {vr(t1)}, {vr(t2)}')
    a(f'v_lshlrev_b32 {vr(t0)}, 13, {vr(t0)}')
    a(f'v_lshl_add_u32 {vr(vU)}, {vr(t1)}, 4, {vr(t0)}')
    a(f'v_xor_b32 {vr(t1)}, 4, {vr(t1)}'); a(f'v_lshl_add_u32 {vr(vU+1)}, {vr(t1)}, 4, {vr(t0)}')
    a(f's_lshl_b32 s{sM0}, s{sW}, 14'); a(f's_lshl_b32 s{sSo}, s{sW}, 20')
    for k in range(16):
        a(f's_add_u32 m0, s{sM0}, {UB + k*1024}'); a(f's_add_u32 s6, s{sSo}, {k*65536}')
        a(f'buffer_load_dwordx4 {vr(vU+(k&1))}, {srd(S_U)}, s6 offen {fl} lds')
    a(f's_mul_i32 s{sM0}, s{sW}, 18432')
    for k in range(18):
        a(f's_add_u32 s6, s{sM0}, {k*1024}'); a('s_mov_b32 m0, s6')
        a(f'buffer_load_dwordx4 {vr(vL16)}, {srd(S_WO)}, s6 offen {fl} lds')
    mk_wo_tr_addr(vLane, vT, t0, t1, False)
    a(f'v_bfe_u32 {vr(t0)}, {vr(vLane)}, 2, 2'); a(f'v_lshl_add_u32 {vr(t0)}, {vr(vG)}, 3, {vr(t0)}'); a(f'v_lshlrev_b32 {vr(t0)}, 7, {vr(t0)}')
    a(f'v_and_b32 {vr(t1)}, 3, {vr(vLane)}'); a(f'v_lshl_add_u32 {vr(t0)}, {vr(t1)}, 3, {vr(t0)}'); a(f'v_add_u32 {vr(t0)}, {UB}, {vr(t0)}')
    a(f'v_bfe_u32 {vr(t1)}, {vr(vLane)}, 3, 2')
    for t in range(4):
        a(f'v_xor_b32 {vr(t2)}, {t}, {vr(t1)}'); a(f'v_lshl_add_u32 {vr(vR+t)}, {vr(t2)}, 5, {vr(t0)}')
    a(f'v_lshlrev_b32 {vr(t0)}, 10, {vr(vI)}'); a(f'v_lshl_add_u32 {vr(t0)}, {vr(vG)}, 4, {vr(t0)}')
    a(f'v_lshlrev_b32 {vr(t1)}, 3, {vr(vI)}')
    a(f's_lshl_b32 s6, s{sH}, 9'); a(f's_lshl_b32 s7, s{sW}, 7'); a('s_add_u32 s6, s6, s7'); a(f's_add_u32 s6, s6, {PSTAT}')
    a(f's_mov_b32 s7, {cfg.spin_max}')
    a('P_poll:')
    a(f'buffer_load_dwordx2 {vr(ST,2)}, {vr(t1)}, {srd(S_WS)}, s6 offen sc1')
    a('s_waitcnt vmcnt(0)')
    a(f'v_max_u32 {vr(Mx)}, {vr(ST)}, {vr(ST+1)}'); a(f'v_cmp_eq_u32 vcc, -1, {vr(Mx)}')
    a('s_cbranch_vccz P_ok')
    a(f's_sleep {cfg.psleep}')
    a('s_sub_u32 s7, s7, 1'); a('s_cmp_lg_u32 s7, 0'); a('s_cbranch_scc1 P_poll')
    a('P_ok:')
    stamp(6)
    vm = VM(a)
    a(f's_lshl_b32 s6, s{sH}, 16'); a(f's_lshl_b32 s7, s{sW}, 14'); a('s_add_u32 s6, s6, s7'); a(f's_add_u32 s6, s6, {PART}')
    for ks in range(16):
        vm.issue(f'buffer_load_dwordx4 {vr(AF+4*ks,4)}, {vr(t0)}, {srd(S_WS)}, s6 offen offset:{64*ks} sc1', ('a', ks))
    a('s_barrier')
    wo_frag_reads(2, vT)
    a(f'v_mov_b32 {vr(Mx)}, {vr(ST)}')
    for sh in (8, 4, 2, 1): a(f'v_max_f32_dpp {vr(Mx)}, {vr(Mx)}, {vr(Mx)} row_ror:{sh} {DPPF}')
    a(f'v_sub_f32 {vr(ST)}, {vr(ST)}, {vr(Mx)}'); a(f'v_exp_f32 {vr(ST)}, {vr(ST)}')
    a(f'v_mul_f32 {vr(Lx)}, {vr(ST)}, {vr(ST+1)}')
    for sh in (8, 4, 2, 1): a(f'v_add_f32_dpp {vr(Lx)}, {vr(Lx)}, {vr(Lx)} row_ror:{sh} {DPPF}')
    a(f'v_rcp_f32 {vr(Lx)}, {vr(Lx)}'); a(f'v_mul_f32 {vr(ST)}, {vr(ST)}, {vr(Lx)}')
    for r in range(4):
        for q in range(4):
            a(f'v_mov_b32_dpp {vr(F+r)}, {vr(ST)} row_newbcast:{4*q+r} row_mask:{1<<q:#x} bank_mask:0xf')
    a('s_waitcnt lgkmcnt(0)')
    def u_reads(ks):
        for t in range(4):
            for sec in range(2):
                a(f'ds_read_b64_tr_b16 {vr(BF+16*(ks&1)+4*t+2*sec,2)}, {vr(vR+t)} offset:{(32*ks+4*sec)*128}')
    u_reads(0)
    for ks in range(16):
        if ks + 1 < 16: u_reads(ks + 1)
        vm.wait(('a', ks))
        a(f's_waitcnt lgkmcnt({8 if ks + 1 < 16 else 0})')
        for t in range(4):
            c = '0' if ks == 0 else vr(D + 4 * t, 4)
            a(f'v_mfma_f32_16x16x32_bf16 {vr(D+4*t,4)}, {vr(AF+4*ks,4)}, {vr(BF+16*(ks&1)+4*t,4)}, {c}')
    a(f'v_lshlrev_b32 {vr(t0)}, 7, {vr(vG)}'); a(f'v_lshl_add_u32 {vr(t0)}, {vr(vI)}, 1, {vr(t0)}')
    a(f's_lshl_b32 s6, s{sW}, 9'); a(f's_add_u32 s6, s6, {OT}'); a(f'v_add_u32 {vr(t0)}, s6, {vr(t0)}')
    for t in range(4):
        a(f'v_mul_f32 {vr(O+t)}, {vr(F)}, {vr(D+4*t)}')
        for r in range(1, 4): a(f'v_fma_f32 {vr(O+t)}, {vr(F+r)}, {vr(D+4*t+r)}, {vr(O+t)}')
        a(f'v_cvt_pk_bf16_f32 {vr(O+t)}, {vr(O+t)}, {vr(O+t)}')
        a(f'ds_write_b16 {vr(t0)}, {vr(O+t)} offset:{32*t}')
    a(f'v_lshlrev_b32 {vr(t1)}, 7, {vr(vI)}'); a(f'v_lshl_add_u32 {vr(t1)}, {vr(vG)}, 4, {vr(t1)}'); a(f'v_add_u32 {vr(t1)}, {OT}, {vr(t1)}')
    a('s_waitcnt lgkmcnt(0)'); a('s_barrier')
    for ks in range(2): a(f'ds_read_b128 {vr(PA+4*ks,4)}, {vr(t1)} offset:{64*ks}')
    a(f'v_mul_u32_u24 {vr(t0)}, {64*2304}, {vr(vG)}')
    a(f'v_and_b32 {vr(t1)}, 3, {vr(vLane)}'); a(f'v_bfe_u32 {vr(t2)}, {vr(vLane)}, 2, 2')
    a(f'v_lshl_add_u32 {vr(t1)}, {vr(t1)}, 2, {vr(t2)}'); a(f'v_lshl_add_u32 {vr(t1)}, {vr(t1)}, 2, {vr(t0)}')
    a(f'v_lshl_add_u32 {vr(t0)}, {vr(vI)}, 4, {vr(t0)}')
    a(f's_mul_i32 s6, s{sBeta}, 2304'); a(f's_mul_i32 s7, s{sW}, 576'); a('s_add_u32 s6, s6, s7'); a(f's_add_u32 s6, s6, {YB}')
    a('s_waitcnt lgkmcnt(0)')
    for t in range(9):
        for ks in range(2):
            c = '0' if ks == 0 else vr(D + 4 * t, 4)
            a(f'v_mfma_f32_16x16x32_bf16 {vr(D+4*t,4)}, {vr(PA+4*ks,4)}, {ar(AW+4*(t*2+ks),4)}, {c}')
    for t in range(9):
        a(f'v_add_f32 {vr(D+4*t)}, {vr(D+4*t)}, {vr(D+4*t+1)}'); a(f'v_add_f32 {vr(D+4*t+2)}, {vr(D+4*t+2)}, {vr(D+4*t+3)}')
        a(f'v_add_f32 {vr(O+t)}, {vr(D+4*t)}, {vr(D+4*t+2)}')
    a(f'buffer_store_dwordx4 {vr(O,4)}, {vr(t0)}, {srd(S_WS)}, s6 offen sc1')
    a(f'buffer_store_dwordx4 {vr(O+4,4)}, {vr(t0)}, {srd(S_WS)}, s6 offen offset:256 sc1')
    a(f'buffer_store_dword {vr(O+8)}, {vr(t1)}, {srd(S_WS)}, s6 offen offset:512 sc1')
    a('s_waitcnt vmcnt(0)'); a('s_barrier')
    Ls = lab('nofb')
    a(f's_cmp_lg_u32 s{sW}, 0'); a(f's_cbranch_scc1 {Ls}')
    a(f'v_mov_b32 {vr(t0)}, 1'); a('s_mov_b64 exec, 1')
    a(f'buffer_store_byte {vr(t0)}, off, {srd(S_DBG)}, s{sBeta} offset:{FB} sc1')
    a('s_mov_b64 exec, -1')
    a(f'{Ls}:')
    stamp(7)
    if cfg.bstop == 3: a('s_branch B_end')
    V = VAlloc(base)
    Y = V(16, 4); SX = V(16, 4); vYo = V(); vSo = V(); vRw = V(); vRr = V(); vOo = V(); R = V(16); E = V(4)
    sTau, sTb, sSg, sY, sDone = 14, 15, 80, 81, 82
    a(f'v_mul_u32_u24 {vr(vYo)}, 2304, {vr(vG)}'); a(f'v_lshl_add_u32 {vr(vYo)}, {vr(vI)}, 4, {vr(vYo)}')
    a(f's_lshl_b32 s6, s{sW}, 10'); a(f's_add_u32 s6, s6, {RED}'); a(f'v_add_u32 {vr(vRw)}, s6, {vr(vL16)}')
    a(f'v_lshlrev_b32 {vr(vRr)}, 2, {vr(vLane)}'); a(f'v_add_u32 {vr(vRr)}, {RED}, {vr(vRr)}')
    a(f'v_and_b32 {vr(t1)}, 3, {vr(vLane)}'); a(f'v_bfe_u32 {vr(t2)}, {vr(vLane)}, 2, 2')
    a(f'v_lshl_add_u32 {vr(t1)}, {vr(t1)}, 2, {vr(t2)}'); a(f'v_lshl_add_u32 {vr(t1)}, {vr(vG)}, 4, {vr(t1)}')
    a(f'v_lshlrev_b32 {vr(vOo)}, 1, {vr(t1)}')
    def task_decode(ybase):
        a(f's_mul_i32 s{sTb}, s{sTau}, 57'); a(f's_lshr_b32 s{sTb}, s{sTb}, 9')
        a(f's_mul_i32 s6, s{sTb}, 9'); a(f's_sub_u32 s{sSg}, s{sTau}, s6')
        a(f's_lshl_b32 s6, s{sTb}, 2'); a(f's_add_u32 s6, s6, s{sW}'); a(f's_mul_i32 s{sY}, s6, {16*2304}')
        a(f's_lshl_b32 s6, s{sSg}, 8'); a(f's_add_u32 s{sY}, s{sY}, s6'); a(f's_add_u32 s{sY}, s{sY}, {ybase}')
    def finish(colbase):
        for e in range(4):
            a(f'v_add_f32 {vr(Y+e)}, {vr(Y+e)}, {vr(Y+4+e)}'); a(f'v_add_f32 {vr(Y+8+e)}, {vr(Y+8+e)}, {vr(Y+12+e)}')
        for e in range(4): a(f'v_add_f32 {vr(Y+e)}, {vr(Y+e)}, {vr(Y+8+e)}')
        a(f'ds_write_b128 {vr(vRw)}, {vr(Y,4)}')
        a('s_waitcnt lgkmcnt(0)'); a('s_barrier')
        Ls = lab('fin')
        a(f's_cmp_lg_u32 s{sW}, 0'); a(f's_cbranch_scc1 {Ls}')
        for k in range(8): a(f'ds_read2st64_b32 {vr(R+2*k,2)}, {vr(vRr)} offset0:{2*k} offset1:{2*k+1}')
        a(f's_mul_i32 s6, s{sTb}, 2304'); a(f's_lshl_b32 s7, s{sSg}, 7'); a('s_add_u32 s6, s6, s7')
        a('s_waitcnt lgkmcnt(0)')
        for st in (8, 4, 2, 1):
            for k in range(st): a(f'v_add_f32 {vr(R+k)}, {vr(R+k)}, {vr(R+k+st)}')
        a(f'v_cvt_pk_bf16_f32 {vr(R)}, {vr(R)}, {vr(R)}')
        a(f'buffer_store_short {vr(R)}, {vr(vOo)}, {srd(S_OUT)}, s6 offen offset:{colbase*2}')
        a(f'{Ls}:')
    a(f's_cmp_lt_u32 s{sBeta}, 28'); a('s_cbranch_scc1 R_taskA')
    a(f's_sub_u32 s{sTau}, s{sBeta}, 28'); task_decode(YB)
    a(f's_mov_b32 s7, {cfg.spin_max}'); a(f's_lshl_b32 s83, s{sW}, 4')
    a('F_poll:')
    a(f'buffer_load_dwordx4 {vr(SX,4)}, off, {srd(S_DBG)}, s83 offset:{FB} sc1')
    a('s_waitcnt vmcnt(0)')
    a(f'v_and_b32 {vr(SX)}, {vr(SX)}, {vr(SX+1)}'); a(f'v_and_b32 {vr(SX+2)}, {vr(SX+2)}, {vr(SX+3)}'); a(f'v_and_b32 {vr(SX)}, {vr(SX)}, {vr(SX+2)}')
    a(f'v_readfirstlane_b32 s6, {vr(SX)}')
    a('s_cmp_eq_u32 s6, 0x01010101'); a('s_cbranch_scc1 F_ok')
    a(f's_sleep {cfg.psleep}')
    a('s_sub_u32 s7, s7, 1'); a('s_cmp_lg_u32 s7, 0'); a('s_cbranch_scc1 F_poll')
    a('F_ok:')
    for t in range(4):
        a(f's_add_u32 s6, s{sY}, {t*4*2304}')
        a(f'buffer_load_dwordx4 {vr(Y+4*t,4)}, {vr(vYo)}, {srd(S_WS)}, s6 offen sc1')
    a('s_waitcnt vmcnt(0)')
    finish(576)
    stamp(8)
    a(f's_cmp_ge_u32 s{sBeta}, 36'); a('s_cbranch_scc1 B_end')
    a('R_taskA:')
    a(f's_mov_b32 s{sTau}, s{sBeta}'); task_decode(YA)
    a('s_barrier')
    stamp(9)
    a(f's_mov_b32 s{sDone}, 0'); a(f's_mov_b32 s7, {cfg.spin_max}')
    a('R_pass:')
    for t in range(4):
        Ls = lab('ld')
        a(f's_bitcmp1_b32 s{sDone}, {t}'); a(f's_cbranch_scc1 {Ls}')
        a(f's_add_u32 s6, s{sY}, {t*4*2304}')
        a(f'buffer_load_dwordx4 {vr(Y+4*t,4)}, {vr(vYo)}, {srd(S_WS)}, s6 offen sc1')
        a(f'{Ls}:')
    a('s_waitcnt vmcnt(0)')
    for t in range(4):
        y = Y + 4 * t
        a(f'v_max3_u32 {vr(E+t)}, {vr(y)}, {vr(y+1)}, {vr(y+2)}'); a(f'v_max_u32 {vr(E+t)}, {vr(E+t)}, {vr(y+3)}')
    for t in range(4):
        a(f'v_cmp_eq_u32 vcc, -1, {vr(E+t)}')
        a('s_cmp_eq_u64 vcc, 0'); a(f's_cselect_b32 s6, {1<<t}, 0'); a(f's_or_b32 s{sDone}, s{sDone}, s6')
    a(f's_cmp_eq_u32 s{sDone}, 15'); a('s_cbranch_scc1 R_done')
    if cfg.rsleep: a(f's_sleep {cfg.rsleep}')
    a('s_sub_u32 s7, s7, 1'); a('s_cmp_lg_u32 s7, 0'); a('s_cbranch_scc1 R_pass')
    a('R_done:')
    stamp(10)
    finish(0)
    stamp(11)
    a('B_end:')
    stamp_flush(t0, 'B')
    a('s_endpgm')

def gen():
    hdr = open('/code/' + NAME + '.s.ref').read().split('; Override')[0]
    a(f'{NAME}_kernel:')
    a('s_cmp_ge_u32 s2, 256'); a('s_cbranch_scc1 L_exit')
    a('s_load_dwordx16 s[16:31], s[0:1], 0'); a('s_load_dwordx8 s[32:39], s[0:1], 64'); a('s_load_dwordx4 s[40:43], s[0:1], 96')
    a('v_lshrrev_b32 v1, 6, v0'); a(f'v_readfirstlane_b32 s{sW}, v1')
    if cfg.hmap == 0:
        a('s_and_b32 s6, s2, 7'); a('s_bfe_u32 s7, s2, 0x20003'); a(f's_lshl_b32 s{sH}, s6, 2'); a(f's_add_u32 s{sH}, s{sH}, s7')
    else:
        a(f's_and_b32 s{sH}, s2, 31')
    a(f's_lshr_b32 s{sR}, s2, 5')
    if cfg.stamps:
        a('s_waitcnt lgkmcnt(0)')
        for k in range(16): a(f's_mov_b32 s{84+k}, 0')
        stamp(0)
    a(f's_cmp_lt_u32 s{sR}, 2'); a('s_cbranch_scc1 B_role')
    gen_A()
    a('L_exit:'); a('s_endpgm')
    gen_B()
    body = a.finish()
    out = hdr + f'; @launch grid=(256,1,1) block=(256,1,1) lds={LDS_TOTAL}\n'
    out += '; generated by gen/gen.py (hand-written generator)\n'
    out += f'.amdgcn_target "amdgcn-amd-amdhsa--gfx950"\n.text\n.globl {NAME}_kernel\n.p2align 8\n.type {NAME}_kernel,@function\n'
    out += body
    out += f'''.section .rodata,"a"
.p2align 6
.amdhsa_kernel {NAME}_kernel
  .amdhsa_next_free_vgpr 512
  .amdhsa_next_free_sgpr 102
  .amdhsa_accum_offset 256
  .amdhsa_group_segment_fixed_size 0
  .amdhsa_kernarg_size 112
  .amdhsa_user_sgpr_count 2
  .amdhsa_user_sgpr_kernarg_segment_ptr 1
  .amdhsa_system_sgpr_workgroup_id_x 1
.end_amdhsa_kernel
'''
    return out

if __name__ == '__main__':
    outp = sys.argv[1]
    for kv in sys.argv[2:]:
        k, v = kv.split('=', 1)
        cur = getattr(cfg, k)
        setattr(cfg, k, (v == '1') if isinstance(cur, bool) else type(cur)(v))
    open(outp, 'w').write(gen())
```

```python
import sys, math, struct
from asmlib import Asm, VM
NAME = 'concat_heads__mha_block_cached__compressed_kv_cla__decode'

class Cfg:
    stamps = False
    R = 8
    wq_flags = 'nt'
    wo_flags = 'nt'
    b_flags = 'nt'
    dma_t0 = 0
    dma_per = 2
    ev_trip = 20
    hmap = 0
    trips = False
    diag = ''
    rsleep = 4
    wq_per = 3
    spin_max = 400000
    noB = False
    bskip = 0
    askip = 0
    bstop = 0
    psleep = 16
    qsleep = 16
    nodma = False
    kv_flags = 'nt'
cfg = Cfg()

QABS = 0x000000; PSTAT = 0x040000; AST = 0x050000; PART = 0x100000; YA = 0x400000; YB = 0x500000
WS_USED = 0x600000
STAMP = 0x10000000
C0 = 0; C0N = 128
OOB = 0x7ff00000
LDS_TOTAL = 163840
SCALE = (128 ** -0.5) * math.log2(math.e)
def f2u(x): return struct.unpack('<I', struct.pack('<f', x))[0]

P_AX, P_K, P_V, P_WQ, P_WO, P_BX, P_CKV, P_BWQ, P_WUK, P_WUV, P_BWO, P_OUT, P_DBG, P_WS = 16, 18, 20, 22, 24, 26, 28, 30, 32, 34, 36, 38, 40, 42
S_X, S_W, S_K, S_V, S_WO, S_WS, S_DBG, S_OUT, S_U = 44, 48, 52, 56, 60, 64, 68, 72, 76
sW, sH, sR = 3, 4, 5
def srd(n): return f's[{n}:{n+3}]'
def vr(n, k=1): return f'v{n}' if k == 1 else f'v[{n}:{n+k-1}]'
def ar(n, k=1): return f'a{n}' if k == 1 else f'a[{n}:{n+k-1}]'

class VAlloc:
    def __init__(self, start=1): self.n = start
    def __call__(self, k=1, align=1):
        align = max(align, 2 if k > 1 else 1)
        self.n = (self.n + align - 1) // align * align
        r = self.n; self.n += k
        assert self.n <= 256, 'out of vgprs'
        return r

a = Asm()
nstamp = [0]
def stamp(k):
    if cfg.stamps:
        a(f's_memrealtime s[100:101]'); a('s_waitcnt lgkmcnt(0)'); a(f's_mov_b32 s{84+k}, s100')
def stamp_flush(vt, role=''):
    if cfg.diag:
        k = int(cfg.diag[1:]) if cfg.diag[0] == role else 0
        L = lab('diag')
        a(f's_cmp_eq_u32 s{84+k}, 0'); a(f's_cselect_b32 s6, s84, s{84+k}'); a('s_add_u32 s6, s6, 10000')
        a(f'{L}:'); a('s_sleep 4'); a('s_memrealtime s[100:101]'); a('s_waitcnt lgkmcnt(0)')
        a('s_sub_u32 s7, s100, s6'); a('s_cmp_lt_i32 s7, 0'); a(f's_cbranch_scc1 {L}')
        return
    if cfg.stamps:
        a(f's_lshl_b32 s6, s2, 2'); a(f's_add_u32 s6, s6, s{sW}'); a('s_lshl_b32 s6, s6, 6'); a(f's_add_u32 s6, s6, {STAMP}')
        a(f's_mov_b32 s{S_WS+2}, 0x20000000')
        a(f'v_mov_b32 {vr(vt+1)}, 0')
        a('s_mov_b64 exec, 1')
        for k in range(16):
            a(f'v_mov_b32 {vr(vt)}, s{84+k}')
            a(f'buffer_store_dword {vr(vt)}, {vr(vt+1)}, {srd(S_WS)}, s6 offen offset:{4*k}')
            a('s_nop 1')
        a('s_mov_b64 exec, -1')

def mk_srd(d, p, off, size):
    if off is None:
        a(f's_mov_b32 s{d}, s{p}'); a(f's_mov_b32 s{d+1}, s{p+1}')
    else:
        a(f's_add_u32 s{d}, s{p}, {off}'); a(f's_addc_u32 s{d+1}, s{p+1}, 0')
    a(f's_mov_b32 s{d+2}, {size}'); a(f's_mov_b32 s{d+3}, 0x20000')

uid = [0]
def lab(p):
    uid[0] += 1
    return f'L_{p}_{uid[0]}'

def poll(coff, target, vt):
    L, D = lab('poll'), lab('polld')
    a(f's_cmp_lg_u32 s{sW}, 0'); a(f's_cbranch_scc1 {D}')
    a(f's_mov_b32 s7, {cfg.spin_max}')
    a(f'{L}:')
    a(f'buffer_load_dword {vr(vt)}, off, {srd(S_DBG)}, 0 offset:{coff} sc1')
    a('s_waitcnt vmcnt(0)')
    a(f'v_readfirstlane_b32 s6, {vr(vt)}')
    a(f's_cmp_ge_u32 s6, {target}'); a(f's_cbranch_scc1 {D}')
    a(f's_sleep {cfg.psleep}')
    a('s_sub_u32 s7, s7, 1'); a('s_cmp_lg_u32 s7, 0'); a(f's_cbranch_scc1 {L}')
    a(f'{D}:')
    a('s_barrier')

def ensure(coff, target, vt):
    L, D = lab('ens'), lab('ensd')
    a(f's_mov_b32 s7, {cfg.spin_max}')
    a(f'{L}:')
    a(f'v_readfirstlane_b32 s6, {vr(vt)}')
    a(f's_cmp_ge_u32 s6, {target}'); a(f's_cbranch_scc1 {D}')
    a(f's_sleep {cfg.psleep}')
    a(f'buffer_load_dword {vr(vt)}, off, {srd(S_DBG)}, 0 offset:{coff} sc1')
    a('s_waitcnt vmcnt(0)')
    a('s_sub_u32 s7, s7, 1'); a('s_cmp_lg_u32 s7, 0'); a(f's_cbranch_scc1 {L}')
    a(f'{D}:')

def umax_tree(dst, regs):
    regs = list(regs)
    a(f'v_max3_u32 {vr(dst)}, {vr(regs[0])}, {vr(regs[1])}, {vr(regs[2])}'); regs = regs[3:]
    while len(regs) >= 2:
        a(f'v_max3_u32 {vr(dst)}, {vr(dst)}, {vr(regs[0])}, {vr(regs[1])}'); regs = regs[2:]
    if regs: a(f'v_max_u32 {vr(dst)}, {vr(dst)}, {vr(regs[0])}')

def signal(coff, vt):
    D = lab('sig')
    a('s_waitcnt vmcnt(0) lgkmcnt(0)'); a('s_barrier')
    a(f's_cmp_lg_u32 s{sW}, 0'); a(f's_cbranch_scc1 {D}')
    a(f'v_mov_b32 {vr(vt)}, 1'); a('s_mov_b64 exec, 1')
    a(f'buffer_atomic_add {vr(vt)}, off, {srd(S_DBG)}, 0 offset:{coff}')
    a('s_mov_b64 exec, -1')
    a(f'{D}:')

def allred_rows(x, t, op):
    for sw in ('v_permlane16_swap_b32', 'v_permlane32_swap_b32'):
        a(f'v_mov_b32 {vr(t)}, {vr(x)}')
        a(f'{sw} {vr(x)}, {vr(t)}')
        a(f'{op} {vr(x)}, {vr(x)}, {vr(t)}')

DPPF = 'row_mask:0xf bank_mask:0xf'
def reduce4(T, X, S):
    a(f'v_add_f32_dpp {vr(X)}, {vr(T)}, {vr(T)} row_ror:8 row_mask:0xf bank_mask:0x3')
    a(f'v_add_f32_dpp {vr(X+1)}, {vr(T+1)}, {vr(T+1)} row_ror:8 row_mask:0xf bank_mask:0x3')
    a(f'v_add_f32_dpp {vr(X)}, {vr(T+2)}, {vr(T+2)} row_ror:8 row_mask:0xf bank_mask:0xc')
    a(f'v_add_f32_dpp {vr(X+1)}, {vr(T+3)}, {vr(T+3)} row_ror:8 row_mask:0xf bank_mask:0xc')
    a(f'v_add_f32_dpp {vr(S)}, {vr(X)}, {vr(X)} row_half_mirror row_mask:0xf bank_mask:0x5')
    a(f'v_add_f32_dpp {vr(S)}, {vr(X+1)}, {vr(X+1)} row_half_mirror row_mask:0xf bank_mask:0xa')
    a(f'v_add_f32_dpp {vr(S)}, {vr(S)}, {vr(S)} quad_perm:[1,0,3,2] {DPPF}')
    a(f'v_add_f32_dpp {vr(S)}, {vr(S)}, {vr(S)} quad_perm:[2,3,0,1] {DPPF}')

def mk_masks(vLane, MASK, SEL, t0, t1):
    a(f'v_and_b32 {vr(t0)}, 1, {vr(vLane)}'); a(f'v_lshlrev_b32 {vr(t0)}, 4, {vr(t0)}')
    a(f'v_mov_b32 {vr(t1)}, 0xffff'); a(f'v_lshlrev_b32 {vr(t0)}, {vr(t0)}, {vr(t1)}')
    a(f'v_bfe_u32 {vr(t1)}, {vr(vLane)}, 1, 2')
    for r in range(4):
        a(f'v_cmp_eq_u32 vcc, {r}, {vr(t1)}')
        a(f'v_cndmask_b32 {vr(MASK+r)}, 0, {vr(t0)}, vcc')
    a(f'v_mov_b32 {vr(t0)}, 0x0c0c0c0c')
    a('s_mov_b32 s6, 0x01000100'); a('s_mov_b32 s7, 0x03020302')
    for par in range(2):
        for r in range(4):
            a(f'v_bfi_b32 {vr(SEL+4*par+r)}, {vr(MASK+r)}, s{6+par}, {vr(t0)}')

AW = 96

def x_loads(vm, X, vXoff, extra):
    for k in range(4):
        vm.issue(f'buffer_load_dwordx4 {vr(X+4*k,4)}, {vr(vXoff)}, {srd(S_X)}, 0 offen offset:{extra+16*k}', 'x')
    vm.issue(f'buffer_load_dwordx2 {vr(X+16,2)}, {vr(vXoff)}, {srd(S_X)}, 0 offen offset:{extra+64}', 'x')

def wunit_load(vm, jj, vWoff, flags):
    a(f's_mov_b32 s6, {jj*8192}')
    vm.issue(f'buffer_load_dwordx4 {ar(AW+4*jj,4)}, {vr(vWoff)}, {srd(S_W)}, s6 offen {flags}', ('w', jj))

def wunit_mfma(jj, Xs, ACCs, SEL, PA):
    for s, (X, ACC) in enumerate(zip(Xs, ACCs)):
        P = PA + 4 * ((jj * len(Xs) + s) & 3)
        for r in range(4):
            a(f'v_perm_b32 {vr(P+r)}, {vr(X+jj//2)}, {vr(X+jj//2)}, {vr(SEL+4*(jj&1)+r)}')
        c = '0' if jj == 0 else vr(ACC, 4)
        a(f'v_mfma_f32_16x16x32_bf16 {vr(ACC,4)}, {vr(P,4)}, {ar(AW+4*jj,4)}, {c}')

def wo_frag_reads(nks, vT, base=0):
    for t in range(9):
        for ks in range(nks):
            for sec in range(2):
                reg = vT + (1 if t == 8 else 0) + (2 if ks >= 2 else 0)
                off = (32 * (ks & 1) + 4 * sec) * 1152 + (0 if t == 8 else 128 * (t >> 2) + 8 * (t & 3))
                a(f'ds_read_b64_tr_b16 {ar(AW+4*(t*nks+ks)+2*sec,2)}, {vr(reg)} offset:{off}')

def mk_wo_tr_addr(vLane, vT, t0, t1, two):
    a(f'v_lshrrev_b32 {vr(t0)}, 4, {vr(vLane)}'); a(f'v_lshlrev_b32 {vr(t0)}, 3, {vr(t0)}')
    a(f'v_bfe_u32 {vr(t1)}, {vr(vLane)}, 2, 2'); a(f'v_add_u32 {vr(t0)}, {vr(t0)}, {vr(t1)}')
    a(f'v_mul_u32_u24 {vr(t0)}, 1152, {vr(t0)}')
    a(f's_mul_i32 s6, s{sW}, 288'); a(f'v_add_u32 {vr(t0)}, s6, {vr(t0)}')
    a(f'v_and_b32 {vr(t1)}, 3, {vr(vLane)}')
    a(f'v_lshl_add_u32 {vr(vT)}, {vr(t1)}, 5, {vr(t0)}')
    a(f'v_lshl_add_u32 {vr(vT+1)}, {vr(t1)}, 3, {vr(t0)}'); a(f'v_add_u32 {vr(vT+1)}, 256, {vr(vT+1)}')
    if two:
        a(f'v_add_u32 {vr(vT+2)}, 73728, {vr(vT)}'); a(f'v_add_u32 {vr(vT+3)}, 73728, {vr(vT+1)}')

def gen_A():
    R = cfg.R; NT = 11; RT = R // 4
    assert R % 4 == 0
    V = VAlloc(1)
    vLane = V(); vL16 = V(); vWoff = V(); vXoff = V(); t0 = V(); t1 = V(); vC = V()
    MASK = V(4); SEL = V(8); ACC = V(4, 4); Q = V(4); T = V(4); XX = V(2); S = V(); M = V(); M2 = V(); fN = V()
    X = V(20, 4); PA = V(16, 4); D = X
    P = V(NT); vT = V(4); vY = V(); vY8 = V(); vOw = V(); vOr = V(); vC0 = V(); G = V(8); F = V(4); O = V(6, 2); vTS = V()
    KR = V(16 * R, 4)
    QRED = 147456; OT = QRED + 4096
    sJJ, sPair, sB, sRank, sOff, sReal, sBeg, sD, sDn, sTrip, sSt, sBsel = 8, 9, 10, 11, 12, 13, 14, 15, 80, 81, 82, 83
    sMk = 72
    STEP = 6 * 4096
    a('A_role:')
    a(f's_sub_u32 s{sJJ}, s{sR}, 2')
    a(f's_cmp_ge_u32 s{sJJ}, 3'); a(f's_cselect_b32 s{sPair}, 1, 0'); a(f's_cselect_b32 s6, 3, 0')
    a(f's_sub_u32 s{sJJ}, s{sJJ}, s6')
    a(f's_lshl_b32 s{sRank}, s{sJJ}, 2'); a(f's_add_u32 s{sRank}, s{sRank}, s{sW}')
    a(f's_cmp_ge_u32 s{sRank}, 6'); a(f's_cselect_b32 s{sBsel}, 1, 0'); a(f's_cselect_b32 s6, -1, 1')
    a(f's_add_u32 s{sRank}, s{sRank}, s6')
    a(f's_cmp_ge_u32 s{sRank}, 6'); a(f's_cselect_b32 s6, 6, 0'); a(f's_sub_u32 s{sRank}, s{sRank}, s6')
    a(f's_lshl_b32 s{sB}, s{sPair}, 1'); a(f's_add_u32 s{sB}, s{sB}, s{sBsel}')
    a(f'v_and_b32 {vr(vLane)}, 63, v0'); a(f'v_lshlrev_b32 {vr(vL16)}, 4, {vr(vLane)}')
    a(f's_sub_u32 s{sBeg}, s{sRank}, 8'); a(f's_lshl_b32 s{sBeg}, s{sBeg}, 12'); a(f's_mov_b32 s{sReal}, s{sBeg}')
    def adv():
        a(f's_add_u32 s{sReal}, s{sReal}, {STEP}'); a(f's_min_u32 s{sOff}, s{sReal}, {OOB}')
    adv()
    a(f's_lshl_b32 s{sSt}, s{sB}, 5'); a(f's_add_u32 s{sSt}, s{sSt}, s{sH}')
    a(f's_lshl_b32 s6, s{sSt}, 20')
    a('s_waitcnt lgkmcnt(0)')
    mk_srd(S_K, P_K, 's6', 0x100000); mk_srd(S_V, P_V, 's6', 0x100000)
    a(f's_mul_i32 s6, s{sPair}, 2304'); a(f's_mul_i32 s7, s{sW}, 288'); a('s_add_u32 s6, s6, s7')
    a(f's_sub_u32 s7, 4608, s6')
    mk_srd(S_X, P_AX, 's6', 's7')
    a(f's_mul_i32 s6, s{sW}, {144*8192}'); a(f's_lshl_b32 s7, s{sH}, 8'); a('s_add_u32 s6, s6, s7')
    a(f's_sub_u32 s7, {576*8192}, s6')
    mk_srd(S_W, P_WQ, 's6', 's7')
    if cfg.askip & 1: a(f's_mov_b32 s{S_W+2}, 0')
    a(f'v_lshrrev_b32 {vr(t0)}, 4, {vr(vLane)}'); a(f'v_and_b32 {vr(t1)}, 15, {vr(vLane)}')
    a(f'v_mul_u32_u24 {vr(vWoff)}, {36*8192}, {vr(t0)}'); a(f'v_lshl_add_u32 {vr(vWoff)}, {vr(t1)}, 4, {vr(vWoff)}')
    a(f'v_mul_u32_u24 {vr(vXoff)}, 72, {vr(t0)}'); a(f'v_lshrrev_b32 {vr(t1)}, 3, {vr(t1)}')
    a(f'v_mul_u32_u24 {vr(t1)}, 1152, {vr(t1)}'); a(f'v_add_u32 {vr(vXoff)}, {vr(vXoff)}, {vr(t1)}')
    vm = VM(a)
    x_loads(vm, X, vXoff, 0)
    def ring_ld(s, u):
        return f'buffer_load_dwordx4 {vr(KR+16*s+4*u,4)}, {vr(vL16)}, {srd(S_K)}, s{sOff} offen offset:{1024*u} {cfg.kv_flags}'
    stream = [('k', s, u) for s in range(1, R) for u in range(4)]
    order = []; wi = 0; si = 0
    while wi < 36 or si < len(stream):
        for _ in range(cfg.wq_per):
            if wi < 36: order.append(('w', wi)); wi += 1
        for _ in range(4):
            if si < len(stream): order.append(stream[si]); si += 1
    def issue(o):
        if o[0] == 'w': wunit_load(vm, o[1], vWoff, cfg.wq_flags)
        else:
            vm.issue(ring_ld(o[1], o[2]), o)
            if o[2] == 3: adv()
    pos = 0
    while pos < min(56, len(order)):
        issue(order[pos]); pos += 1
    stamp(1)
    mk_srd(S_WS, P_WS, None, WS_USED); mk_srd(S_DBG, P_DBG, None, 256)
    a(f's_mul_i32 s6, s{sH}, 147456'); mk_srd(S_WO, P_WO, 's6', 147456)
    mk_masks(vLane, MASK, SEL, t0, t1)
    a(f'v_mov_b32 {vr(vC)}, {f2u(SCALE):#x}')
    a(f'v_mov_b32 {vr(P+NT-1)}, 0xff800000')
    mk_wo_tr_addr(vLane, vT, t0, t1, True)
    a(f's_lshl_b32 s{sSt}, s{sSt}, 6'); a(f's_add_u32 s{sSt}, s{sSt}, {AST}')
    a(f's_mov_b64 s[{sMk}:{sMk+1}], 0')
    a(f's_cmp_ge_u32 s{sRank}, 2'); a(f's_cselect_b32 s{sMk+2}, 0x22222222, 0'); a(f's_mov_b32 s{sMk+3}, s{sMk+2}')
    for j in (2, 3):
        a(f's_mov_b32 s{sMk+2*j}, {0x11111111 << j:#x}'); a(f's_mov_b32 s{sMk+2*j+1}, s{sMk+2*j}')
    a(f'v_bfe_u32 {vr(t0)}, {vr(vLane)}, 4, 1')
    a(f's_lshl_b32 s6, s{sPair}, 7'); a(f's_lshl_b32 s7, s{sH}, 1'); a('s_add_u32 s6, s6, s7'); a(f's_add_u32 s6, s6, s{sJJ}')
    a(f'v_mul_u32_u24 {vr(t1)}, 63, {vr(t0)}'); a(f'v_add_u32 {vr(t1)}, s6, {vr(t1)}')
    a(f'v_mul_u32_u24 {vr(vY)}, 2304, {vr(t1)}'); a(f'v_add_u32 {vr(vY)}, {YA}, {vr(vY)}')
    a(f'v_sub_u32 {vr(t1)}, s{sJJ}, {vr(t0)}')
    a(f'v_cmp_lt_u32 vcc, 1, {vr(t1)}')
    a(f'v_mov_b32 {vr(t1)}, {OOB}')
    a(f'v_cndmask_b32 {vr(vY)}, {vr(vY)}, {vr(t1)}, vcc')
    a(f's_mul_i32 s6, s{sW}, 576')
    a(f'v_add_u32 {vr(vY)}, s6, {vr(vY)}')
    a(f'v_and_b32 {vr(M)}, 3, {vr(vLane)}'); a(f'v_bfe_u32 {vr(M2)}, {vr(vLane)}, 2, 2')
    a(f'v_lshl_add_u32 {vr(M)}, {vr(M)}, 2, {vr(M2)}'); a(f'v_lshl_add_u32 {vr(vY8)}, {vr(M)}, 2, {vr(vY)}')
    a(f'v_and_b32 {vr(M)}, 15, {vr(vLane)}'); a(f'v_lshrrev_b32 {vr(M2)}, 5, {vr(vLane)}')
    a(f'v_lshl_add_u32 {vr(M)}, {vr(M2)}, 4, {vr(M)}'); a(f'v_lshl_add_u32 {vr(vY)}, {vr(M)}, 4, {vr(vY)}')
    for r in range(4):
        a(f's_lshl_b32 s6, s{sJJ}, 2'); a(f's_add_u32 s6, s6, {r}'); a('s_cmp_ge_u32 s6, 6'); a('s_cselect_b32 s6, 1, 0')
        a(f'v_cmp_eq_u32 vcc, s6, {vr(t0)}')
        a(f'v_cndmask_b32 {vr(F+r)}, 0, 1.0, vcc')
    a(f'v_cmp_gt_u32 vcc, 32, {vr(vLane)}')
    for r in range(4):
        a(f'v_cndmask_b32 {vr(G+r)}, 0, {vr(F+r)}, vcc'); a(f'v_cndmask_b32 {vr(G+4+r)}, {vr(F+r)}, 0, vcc')
    a(f'v_and_b32 {vr(M)}, 15, {vr(vLane)}'); a(f'v_lshlrev_b32 {vr(M)}, 4, {vr(M)}')
    a(f'v_lshl_add_u32 {vr(vOw)}, {vr(t0)}, 3, {vr(M)}')
    a(f's_lshl_b32 s6, s{sW}, 8'); a(f's_add_u32 s6, s6, {OT}'); a(f'v_add_u32 {vr(vOw)}, s6, {vr(vOw)}')
    a(f'v_and_b32 {vr(M)}, 3, {vr(vLane)}'); a(f'v_lshlrev_b32 {vr(M)}, 8, {vr(M)}')
    a(f'v_lshrrev_b32 {vr(M2)}, 4, {vr(vLane)}'); a(f'v_lshl_add_u32 {vr(vOr)}, {vr(M2)}, 4, {vr(M)}')
    a(f'v_add_u32 {vr(vOr)}, {OT}, {vr(vOr)}')
    a(f's_mul_i32 s{sD}, s{sW}, 36864')
    a(f's_mov_b32 s{sDn}, {(-cfg.dma_t0) & 0xffffffff:#x}'); a(f's_mov_b32 s{sTrip}, 0')
    a(f'v_and_b32 {vr(M)}, 15, {vr(vLane)}'); a(f'v_lshlrev_b32 {vr(M)}, 5, {vr(M)}')
    a(f'v_lshl_add_u32 {vr(M2)}, {vr(t0)}, 4, {vr(M)}')
    a(f'v_lshrrev_b32 {vr(t1)}, 5, {vr(vLane)}'); a(f'v_lshl_add_u32 {vr(M2)}, {vr(t1)}, 9, {vr(M2)}')
    a(f's_lshl_b32 s6, s{sW}, 10'); a(f's_add_u32 s6, s6, {QRED}'); a(f'v_add_u32 {vr(M2)}, s6, {vr(M2)}')
    a(f's_lshl_b32 s6, s{sBsel}, 9'); a(f's_add_u32 s6, s6, {QRED}'); a(f'v_add_u32 {vr(M)}, s6, {vr(M)}')
    for jj in range(36):
        while ('w', jj) not in vm.q:
            issue(order[pos]); pos += 1
        vm.wait(('w', jj))
        wunit_mfma(jj, [X], [ACC], SEL, PA)
        while pos < len(order) and vm.after(('w', jj)) < 60:
            issue(order[pos]); pos += 1
    assert pos == len(order)
    a(f'ds_write_b128 {vr(M2)}, {vr(ACC,4)}')
    a('s_waitcnt lgkmcnt(0)'); a('s_barrier')
    for w in range(4):
        a(f'ds_read_b128 {vr(D+8*w,4)}, {vr(M)} offset:{1024*w}')
        a(f'ds_read_b128 {vr(D+8*w+4,4)}, {vr(M)} offset:{1024*w+16}')
    for r in range(4): a(f'v_mov_b32 {vr(ACC+r)}, 0')
    a('s_waitcnt lgkmcnt(0)')
    for e in range(8):
        a(f'v_add_f32 {vr(D+e)}, {vr(D+e)}, {vr(D+8+e)}'); a(f'v_add_f32 {vr(D+16+e)}, {vr(D+16+e)}, {vr(D+24+e)}')
    for e in range(8): a(f'v_add_f32 {vr(D+e)}, {vr(D+e)}, {vr(D+16+e)}')
    for k in range(4): a(f'v_cvt_pk_bf16_f32 {vr(Q+k)}, {vr(D+2*k)}, {vr(D+2*k+1)}')
    stamp(2)
    NW = 4 * R - 4
    def dma(s):
        if (s % 4) not in {1: (0,), 2: (0, 2), 3: (0, 1, 2), 4: (0, 1, 2, 3)}[cfg.dma_per]: return
        Ls = lab('nodma')
        a(f's_cmp_ge_u32 s{sDn}, {0 if cfg.nodma else 36}'); a(f's_cbranch_scc1 {Ls}')
        a(f's_mov_b32 m0, s{sD}')
        a(f'buffer_load_dwordx4 {vr(vL16)}, {srd(S_WO)}, s{sD} offen {cfg.wo_flags} lds')
        a(f's_add_u32 s{sD}, s{sD}, 1024')
        a(f'{Ls}:')
        a(f's_add_u32 s{sDn}, s{sDn}, 1')
    def shiftP():
        for k in range(NT - 1): a(f'v_mov_b32 {vr(P+k)}, {vr(P+k+1)}')
    dma_end = -(-(cfg.dma_t0 + 36) // cfg.dma_per)
    ev1 = cfg.ev_trip
    assert dma_end + RT <= ev1 and NT <= ev1 <= 2 * NT - 1, (dma_end, ev1)
    a('K_loop:')
    for s in range(R):
        K = KR + 16 * s; j = s % 4
        if j == 0:
            if (NT - RT) % RT == s // 4:
                a(f's_cmp_eq_u32 s{sTrip}, {NT-RT}')
                a(f's_cselect_b32 s{S_K}, s{S_V}, s{S_K}'); a(f's_cselect_b32 s{S_K+1}, s{S_V+1}, s{S_K+1}')
                a(f's_cselect_b32 s{sReal}, s{sBeg}, s{sReal}'); a(f's_min_u32 s{sOff}, s{sReal}, {OOB}')
            if (NT - RT - 1) % RT == s // 4:
                Ls = lab('c0')
                a(f's_cmp_lg_u32 s{sTrip}, {NT-RT-1}'); a(f's_cbranch_scc1 {Ls}')
                a(f'buffer_load_dword {vr(vC0)}, off, {srd(S_DBG)}, 0 offset:{C0} sc1')
                a(f'{Ls}:')
        a(f's_waitcnt vmcnt({NW})')
        for k in range(4):
            for u in range(4):
                c = '0' if k == 0 else vr(T + u)
                a(f'v_dot2_f32_bf16 {vr(T+u)}, {vr(K+4*u+k)}, {vr(Q+k)}, {c}')
        for u in range(4): a(ring_ld(s, u))
        adv(); dma(s)
        reduce4(T, XX, S)
        a(f'v_cndmask_b32 {vr(P+NT-1)}, {vr(P+NT-1)}, {vr(S)}, s[{sMk+2*j}:{sMk+2*j+1}]')
        if j == 3:
            if cfg.trips:
                a('s_memrealtime s[100:101]'); a('s_waitcnt lgkmcnt(0)'); a(f's_mov_b32 m0, s{sTrip}'); a(f'v_writelane_b32 {vr(vTS)}, s100, m0')
            a(f's_add_u32 s{sTrip}, s{sTrip}, 1')
            if (NT - 1) % RT == s // 4:
                a(f's_cmp_eq_u32 s{sTrip}, {NT}'); a('s_cbranch_scc1 A_mid')
            shiftP()
            if s == 3:
                a(f's_lshr_b64 s[{sMk}:{sMk+1}], s[{sMk+4}:{sMk+5}], 2'); a(f's_lshr_b64 s[{sMk+2}:{sMk+3}], s[{sMk+4}:{sMk+5}], 1')
    a('s_branch K_loop')
    a('A_mid:')
    stamp(5)
    a(f'v_max3_f32 {vr(M)}, {vr(P)}, {vr(P+1)}, {vr(P+2)}')
    for k in range(3, NT, 2): a(f'v_max3_f32 {vr(M)}, {vr(M)}, {vr(P+k)}, {vr(P+k+1)}')
    for sh in (8, 4, 2, 1): a(f'v_max_f32_dpp {vr(M)}, {vr(M)}, {vr(M)} row_ror:{sh} {DPPF}')
    allred_rows(M, M2, 'v_max_f32')
    a(f'v_mul_f32 {vr(XX)}, {vr(M)}, {vr(vC)}')
    for k in range(NT): a(f'v_fma_f32 {vr(P+k)}, {vr(P+k)}, {vr(vC)}, -{vr(XX)}')
    for k in range(NT): a(f'v_exp_f32 {vr(P+k)}, {vr(P+k)}')
    a(f'v_add_f32 {vr(M)}, {vr(P)}, {vr(P+1)}')
    for k in range(2, NT): a(f'v_add_f32 {vr(M)}, {vr(M)}, {vr(P+k)}')
    for k in range(NT): a(f'v_cvt_pk_bf16_f32 {vr(P+k)}, {vr(P+k)}, {vr(P+k)}')
    for sh in (8, 4, 2, 1): a(f'v_add_f32_dpp {vr(M)}, {vr(M)}, {vr(M)} row_ror:{sh} {DPPF}')
    allred_rows(M, M2, 'v_add_f32')
    a(f'v_min_u32 {vr(XX)}, -2, {vr(XX)}'); a(f'v_min_u32 {vr(XX+1)}, -2, {vr(M)}')
    if not cfg.noB: ensure(C0, C0N, vC0)
    a(f's_lshl_b32 s6, s{sRank}, 3'); a(f's_add_u32 s6, s6, s{sSt}')
    a('s_mov_b64 exec, 1')
    a(f'buffer_store_dwordx2 {vr(XX,2)}, off, {srd(S_WS)}, s6 sc1')
    a('s_mov_b64 exec, -1')
    ent = (4 * NT) % R
    if ent: a('s_branch V_entry')
    ST = X
    def st_loads():
        for k in range(3): a(f'buffer_load_dwordx4 {vr(ST+4*k,4)}, off, {srd(S_WS)}, s{sSt} offset:{16*k} sc1')
    a('V_loop:')
    for s in range(R):
        K = KR + 16 * s; j = s % 4
        if s == ent: a('V_entry:')
        if j == 0:
            if ev1 % RT == s // 4:
                a(f's_cmp_eq_u32 s{sTrip}, {ev1}'); a('s_cbranch_scc1 A_ev1'); a('A_ev1_ret:')
            if (2 * NT - 1) % RT == s // 4:
                Ls = lab('nost')
                a(f's_cmp_lg_u32 s{sTrip}, {2*NT-1-RT}'); a(f's_cbranch_scc1 {Ls}')
                st_loads()
                a(f'{Ls}:')
                a(f's_cmp_eq_u32 s{sTrip}, {2*NT-1}'); a('s_cbranch_scc1 A_ev2'); a('A_ev2_ret:')
            a('s_nop 1')
        for u in range(4):
            for r in range(4):
                a(f'v_and_b32_dpp {vr(PA+4*u+r)}, {vr(P)}, {vr(MASK+r)} row_newbcast:{4*u+j} {DPPF}')
        a(f's_waitcnt vmcnt({NW})')
        for u in range(4):
            a(f'v_mfma_f32_16x16x32_bf16 {vr(ACC,4)}, {vr(PA+4*u,4)}, {vr(K+4*u,4)}, {vr(ACC,4)}')
        if j == 3:
            if cfg.trips:
                a('s_memrealtime s[100:101]'); a('s_waitcnt lgkmcnt(0)'); a(f's_mov_b32 m0, s{sTrip}'); a(f'v_writelane_b32 {vr(vTS)}, s100, m0')
            a(f's_add_u32 s{sTrip}, s{sTrip}, 1')
            if (2 * NT - 1) % RT == s // 4:
                a(f's_cmp_eq_u32 s{sTrip}, {2*NT}'); a('s_cbranch_scc1 A_tail')
        for u in range(4): a(ring_ld(s, u))
        adv(); dma(s)
        if j == 3: shiftP()
    a('s_branch V_loop')
    a('A_ev1:')
    a('s_barrier')
    wo_frag_reads(4, vT)
    a('s_branch A_ev1_ret')
    a('A_ev2:')
    a(f's_mov_b32 s7, {cfg.spin_max}')
    a('A_ev2_chk:')
    umax_tree(M, range(ST, ST + 12))
    a(f'v_cmp_eq_u32 vcc, -1, {vr(M)}')
    a('s_cbranch_vccz A_ev2_ok')
    st_loads()
    a('s_waitcnt vmcnt(0)')
    a('s_sub_u32 s7, s7, 1'); a('s_cmp_lg_u32 s7, 0'); a('s_cbranch_scc1 A_ev2_chk')
    a('A_ev2_ok:')
    a(f'v_max3_f32 {vr(M)}, {vr(ST)}, {vr(ST+2)}, {vr(ST+4)}'); a(f'v_max3_f32 {vr(M2)}, {vr(ST+6)}, {vr(ST+8)}, {vr(ST+10)}')
    a(f'v_max_f32 {vr(M)}, {vr(M)}, {vr(M2)}')
    for k in range(6): a(f'v_sub_f32 {vr(ST+2*k)}, {vr(ST+2*k)}, {vr(M)}')
    a(f'v_sub_f32 {vr(fN)}, {vr(XX)}, {vr(M)}')
    for k in range(6): a(f'v_exp_f32 {vr(ST+2*k)}, {vr(ST+2*k)}')
    a(f'v_exp_f32 {vr(fN)}, {vr(fN)}')
    a(f'v_mul_f32 {vr(M)}, {vr(ST)}, {vr(ST+1)}')
    for k in range(1, 6): a(f'v_fma_f32 {vr(M)}, {vr(ST+2*k)}, {vr(ST+2*k+1)}, {vr(M)}')
    a(f'v_rcp_f32 {vr(M)}, {vr(M)}')
    a(f'v_mul_f32 {vr(fN)}, {vr(fN)}, {vr(M)}')
    a('s_branch A_ev2_ret')
    a('A_tail:')
    stamp(3)
    a('s_nop 4')
    for r in range(4): a(f'v_mul_f32 {vr(ACC+r)}, {vr(ACC+r)}, {vr(fN)}')
    a(f'v_cvt_pk_bf16_f32 {vr(T)}, {vr(ACC)}, {vr(ACC+1)}'); a(f'v_cvt_pk_bf16_f32 {vr(T+1)}, {vr(ACC+2)}, {vr(ACC+3)}')
    a(f'ds_write_b64 {vr(vOw)}, {vr(T,2)}')
    a('s_waitcnt lgkmcnt(0)'); a('s_barrier')
    for ks in range(4): a(f'ds_read_b128 {ar(4*ks,4)}, {vr(vOr)} offset:{64*ks}')
    a('s_waitcnt lgkmcnt(0)')
    def tile(t):
        for ks in range(4):
            c = '0' if ks == 0 else vr(D + 4 * t, 4)
            a(f'v_mfma_f32_16x16x32_bf16 {vr(D+4*t,4)}, {ar(4*ks,4)}, {ar(AW+4*(t*4+ks),4)}, {c}')
    def comb(j, t, first):
        g = G + (4 if t >= 4 else 0)
        for r in range(4):
            if first and r == 0: a(f'v_mul_f32 {vr(O+j)}, {vr(g)}, {vr(D+4*t)}')
            else: a(f'v_fma_f32 {vr(O+j)}, {vr(g+r)}, {vr(D+4*t+r)}, {vr(O+j)}')
    tile(8); tile(0); tile(1)
    a(f'v_mul_f32 {vr(O+4)}, {vr(F)}, {vr(D+32)}')
    for r in range(1, 4): a(f'v_fma_f32 {vr(O+4)}, {vr(F+r)}, {vr(D+32+r)}, {vr(O+4)}')
    tile(2)
    a(f'v_min_u32 {vr(O+4)}, -2, {vr(O+4)}')
    a('s_mov_b64 exec, 0xffffffff')
    a(f'buffer_store_dword {vr(O+4)}, {vr(vY8)}, {srd(S_WS)}, 0 offen offset:512 sc1')
    a('s_mov_b64 exec, -1')
    comb(0, 0, True)
    tile(3); comb(1, 1, True)
    tile(4); comb(2, 2, True)
    tile(5); comb(3, 3, True)
    tile(6); comb(0, 4, False)
    tile(7); comb(1, 5, False); comb(2, 6, False)
    for j in range(3): a(f'v_min_u32 {vr(O+j)}, -2, {vr(O+j)}')
    comb(3, 7, False)
    a(f'v_min_u32 {vr(O+3)}, -2, {vr(O+3)}')
    a(f'buffer_store_dwordx4 {vr(O,4)}, {vr(vY)}, {srd(S_WS)}, 0 offen sc1')
    stamp(4)
    stamp_flush(M, 'A')
    if cfg.trips:
        a(f's_lshl_b32 s6, s2, 2'); a(f's_add_u32 s6, s6, s{sW}'); a('s_lshl_b32 s6, s6, 8'); a(f's_add_u32 s6, s6, {STAMP + 0x100000}')
        a(f'v_lshlrev_b32 {vr(M)}, 2, {vr(vLane)}')
        a(f'buffer_store_dword {vr(vTS)}, {vr(M)}, {srd(S_WS)}, s6 offen')
    a('s_endpgm')

def gen_B():
    V = VAlloc(1)
    vLane = V(); vL16 = V(); vWoff = V(); vXoff = V(); t0 = V(); t1 = V(); t2 = V(); vI = V(); vG = V(); vL16x = V(); vC0 = V()
    base = V.n
    sHalf, sBeta, sB2, sCh, sM0, sSo = 8, 9, 10, 11, 12, 13
    CROW = 1088; CB = 64 * CROW
    QROW = 1056; SQ = 2 * CB; QRED = SQ
    PB = SQ + 16 * QROW; MX = PB + 4096; LS = MX + 512
    assert LS + 512 <= LDS_TOTAL
    fl = cfg.b_flags
    a('B_role:')
    if cfg.noB: a('s_endpgm')
    a(f's_mov_b32 s{sHalf}, s{sR}')
    a(f's_lshl_b32 s{sBeta}, s{sH}, 1'); a(f's_add_u32 s{sBeta}, s{sBeta}, s{sHalf}')
    a(f's_lshr_b32 s{sB2}, s{sBeta}, 4'); a(f's_and_b32 s{sCh}, s{sBeta}, 15')
    a(f'v_and_b32 {vr(vLane)}, 63, v0'); a(f'v_lshlrev_b32 {vr(vL16)}, 4, {vr(vLane)}')
    a(f'v_lshrrev_b32 {vr(vG)}, 4, {vr(vLane)}'); a(f'v_and_b32 {vr(vI)}, 15, {vr(vLane)}')
    a('s_waitcnt lgkmcnt(0)')
    a(f's_mul_i32 s6, s{sW}, 288'); a('s_sub_u32 s7, 4608, s6'); mk_srd(S_X, P_BX, 's6', 's7')
    a(f's_mul_i32 s6, s{sW}, {144*8192}'); a(f's_lshl_b32 s7, s{sH}, 8'); a('s_add_u32 s6, s6, s7')
    a(f's_sub_u32 s7, {576*8192}, s6'); mk_srd(S_W, P_BWQ, 's6', 's7')
    a(f's_lshl_b32 s6, s{sHalf}, 2'); a(f's_add_u32 s6, s6, s{sW}'); a('s_lshl_b32 s6, s6, 19')
    a(f's_lshl_b32 s7, s{sH}, 8'); a('s_add_u32 s6, s6, s7'); a(f's_sub_u32 s7, {512*8192}, s6')
    mk_srd(S_U, P_WUK, 's6', 's7')
    a(f's_lshl_b32 s6, s{sBeta}, 18'); mk_srd(S_K, P_CKV, 's6', 0x40000)
    for bit, R in ((1, S_W), (2, S_U), (4, S_K)):
        if cfg.bskip & bit: a(f's_mov_b32 s{R+2}, 0')
    MASK = V(4); SEL = V(8); X0 = V(18); X1 = V(18); PA = V(16, 4); AC0 = V(4, 4); AC1 = V(4, 4)
    UK = V(64, 4); QB = V(16); T = V(4); XX = V(2); U = V(16, 4); D = V(32, 4); vUoff = V()
    a(f'v_mul_u32_u24 {vr(vWoff)}, {36*8192}, {vr(vG)}'); a(f'v_lshl_add_u32 {vr(vWoff)}, {vr(vI)}, 4, {vr(vWoff)}')
    a(f'v_mul_u32_u24 {vr(vXoff)}, 72, {vr(vG)}'); a(f'v_lshrrev_b32 {vr(t1)}, 3, {vr(vI)}')
    a(f'v_mul_u32_u24 {vr(t1)}, 1152, {vr(t1)}'); a(f'v_add_u32 {vr(vXoff)}, {vr(vXoff)}, {vr(t1)}')
    a(f'v_lshlrev_b32 {vr(vUoff)}, 17, {vr(vG)}'); a(f'v_lshl_add_u32 {vr(vUoff)}, {vr(vI)}, 4, {vr(vUoff)}')
    a(f'v_xor_b32 {vr(vL16x)}, 32, {vr(vL16)}')
    mk_srd(S_WS, P_WS, None, WS_USED)
    vm = VM(a, 49)
    x_loads(vm, X0, vXoff, 0); x_loads(vm, X1, vXoff, 2304)
    Lc, Lc1 = lab('noclr'), lab('clr1')
    a(f's_cmp_ge_u32 s{sW}, 2'); a(f's_cbranch_scc1 {Lc}')
    for r in range(4): a(f'v_mov_b32 {vr(D+r)}, -1')
    a(f's_cmp_eq_u32 s{sW}, 1'); a(f's_cbranch_scc1 {Lc1}')
    a(f'v_lshrrev_b32 {vr(t0)}, 5, {vr(vLane)}'); a(f'v_lshlrev_b32 {vr(t0)}, 15, {vr(t0)}')
    a(f'v_and_b32 {vr(t1)}, 31, {vr(vLane)}'); a(f'v_lshl_add_u32 {vr(t0)}, {vr(t1)}, 4, {vr(t0)}')
    a(f's_lshl_b32 s6, s{sBeta}, 9'); a(f's_add_u32 s7, s6, {QABS + 65536}'); a(f's_add_u32 s6, s6, {QABS}')
    a(f'buffer_store_dwordx4 {vr(D,4)}, {vr(t0)}, {srd(S_WS)}, s6 offen sc1')
    a(f'buffer_store_dwordx4 {vr(D,4)}, {vr(t0)}, {srd(S_WS)}, s7 offen sc1')
    a(f's_add_u32 s6, s6, {PSTAT - QABS}')
    a('s_mov_b64 exec, 0xffffffff')
    a(f'buffer_store_dwordx4 {vr(D,4)}, {vr(vL16)}, {srd(S_WS)}, s6 offen sc1')
    a(f's_lshl_b32 s6, s{sBeta}, 7'); a(f's_add_u32 s6, s6, {AST}')
    a('s_mov_b64 exec, 0xff')
    a(f'buffer_store_dwordx4 {vr(D,4)}, {vr(vL16)}, {srd(S_WS)}, s6 offen sc1')
    a('s_mov_b64 exec, -1')
    a(f'{Lc1}:')
    a(f's_mul_i32 s6, s{sBeta}, 9216'); a(f's_mul_i32 s7, s{sW}, {YB - YA}'); a('s_add_u32 s6, s6, s7'); a(f's_add_u32 s6, s6, {YA}')
    for k in range(9):
        if k in (4, 8): a('s_add_u32 s6, s6, 4096')
        a(f'buffer_store_dwordx4 {vr(D,4)}, {vr(vL16)}, {srd(S_WS)}, s6 offen offset:{1024*(k&3)} sc1')
    a(f'{Lc}:')
    for jj in range(36): wunit_load(vm, jj, vWoff, cfg.wq_flags)
    def uk_load(u):
        a(f's_mov_b32 s6, {u*8192}')
        vm.issue(f'buffer_load_dwordx4 {vr(UK+4*u,4)}, {vr(vUoff)}, {srd(S_U)}, s6 offen {fl}', ('u', u))
    for u in range(3): uk_load(u)
    mk_srd(S_DBG, P_DBG, None, 256); mk_srd(S_OUT, P_OUT, None, 9216)
    mk_masks(vLane, MASK, SEL, t0, t1)
    def c_dma(rho, k):
        a(f's_add_u32 m0, s{sM0}, {(rho&1)*CB + k*CROW}')
        a(f's_add_u32 s6, s{sSo}, {(64*rho + k)*1024}')
        vm.issue(f'buffer_load_dwordx4 {vr(vL16x if k >= 8 else vL16)}, {srd(S_K)}, s6 offen {fl} lds', ('c', rho))
    def c_reg(rho, k):
        a(f's_add_u32 s6, s{sSo}, {(64*rho + k)*1024}')
        vm.issue(f'buffer_load_dwordx4 {ar(64*rho+4*k,4)}, {vr(vL16x if k >= 8 else vL16)}, {srd(S_K)}, s6 offen {fl}', ('c', rho))
    a(f's_mul_i32 s{sM0}, s{sW}, {16*CROW}'); a(f's_lshl_b32 s{sSo}, s{sW}, 14')
    dma = [(rho, k) for rho in range(2) for k in range(16)]
    for jj in range(36):
        vm.wait(('w', jj))
        if jj == 0:
            Ls = lab('sig0')
            a(f's_cmp_ge_u32 s{sW}, 2'); a(f's_cbranch_scc1 {Ls}')
            a(f'v_mov_b32 {vr(t2)}, 1'); a('s_mov_b64 exec, 1')
            a(f'buffer_atomic_add {vr(t2)}, off, {srd(S_DBG)}, 0 offset:{C0}')
            a('s_mov_b64 exec, -1')
            a(f'{Ls}:')
            vm.limit = 61
            for u in range(3, 16): uk_load(u)
        wunit_mfma(jj, [X0, X1], [AC0, AC1], SEL, PA)
        if jj == 28: vm.issue(f'buffer_load_dword {vr(vC0)}, off, {srd(S_DBG)}, 0 offset:{C0} sc1', 'c0')
        if dma: c_dma(*dma.pop(0))
    assert not dma
    a(f'v_lshlrev_b32 {vr(t0)}, 5, {vr(vI)}')
    a(f'v_and_b32 {vr(t1)}, 1, {vr(vG)}'); a(f'v_lshl_add_u32 {vr(t1)}, {vr(t1)}, 4, {vr(t0)}')
    a(f'v_lshrrev_b32 {vr(t2)}, 5, {vr(vLane)}'); a(f'v_lshl_add_u32 {vr(t1)}, {vr(t2)}, 9, {vr(t1)}')
    a(f's_lshl_b32 s6, s{sW}, 11'); a(f's_add_u32 s6, s6, {QRED}'); a(f'v_add_u32 {vr(t1)}, s6, {vr(t1)}')
    a(f'ds_write_b128 {vr(t1)}, {vr(AC0,4)}'); a(f'ds_write_b128 {vr(t1)}, {vr(AC1,4)} offset:1024')
    a(f'v_add_u32 {vr(t0)}, {QRED}, {vr(t0)}')
    a('s_waitcnt lgkmcnt(0)'); a('s_barrier')
    for b in range(4):
        for w in range(4):
            a(f'ds_read_b128 {vr(D+8*w,4)}, {vr(t0)} offset:{2048*w+512*b}')
            a(f'ds_read_b128 {vr(D+8*w+4,4)}, {vr(t0)} offset:{2048*w+512*b+16}')
        a('s_waitcnt lgkmcnt(0)')
        for e in range(8):
            a(f'v_add_f32 {vr(D+e)}, {vr(D+e)}, {vr(D+8+e)}'); a(f'v_add_f32 {vr(D+16+e)}, {vr(D+16+e)}, {vr(D+24+e)}')
        for e in range(8): a(f'v_add_f32 {vr(D+e)}, {vr(D+e)}, {vr(D+16+e)}')
        for k in range(4): a(f'v_cvt_pk_bf16_f32 {vr(QB+4*b+k)}, {vr(D+2*k)}, {vr(D+2*k+1)}')
    vm.wait(('u', 15))
    for u in range(16):
        for k in range(4):
            for b in range(4):
                c = '0' if k == 0 else vr(T + b)
                a(f'v_dot2_f32_bf16 {vr(T+b)}, {vr(UK+4*u+k)}, {vr(QB+4*b+k)}, {c}')
        reduce4(T, XX, U + u)
    for k in range(8): a(f'v_cvt_pk_bf16_f32 {vr(D+k)}, {vr(U+2*k)}, {vr(U+2*k+1)}')
    for k in range(8): a(f'v_min_u32 {vr(D+k)}, -2, {vr(D+k)}')
    a(f'v_bfe_u32 {vr(t0)}, {vr(vLane)}, 2, 2'); a(f'v_lshlrev_b32 {vr(t0)}, 15, {vr(t0)}')
    a(f'v_lshl_add_u32 {vr(t0)}, {vr(vG)}, 5, {vr(t0)}')
    a(f's_lshl_b32 s6, s{sH}, 10'); a(f's_lshl_b32 s7, s{sHalf}, 9'); a('s_add_u32 s6, s6, s7')
    a(f's_lshl_b32 s7, s{sW}, 7'); a('s_add_u32 s6, s6, s7'); a(f's_add_u32 s6, s6, {QABS}')
    a('s_mov_b32 exec_lo, 0x11111111'); a('s_mov_b32 exec_hi, 0x11111111')
    vm.issue(f'buffer_store_dwordx4 {vr(D,4)}, {vr(t0)}, {srd(S_WS)}, s6 offen sc1')
    vm.issue(f'buffer_store_dwordx4 {vr(D+4,4)}, {vr(t0)}, {srd(S_WS)}, s6 offen offset:16 sc1')
    a('s_mov_b64 exec, -1')
    stamp(1)
    vm.wait('c0')
    ensure(C0, C0N, vC0)
    stamp(2)
    if cfg.bstop == 1: a('s_branch B_end')
    V = VAlloc(base)
    ACC = V(64, 4); S = V(8, 4); CF = V(64, 4); PF = V(16, 4); MXR = V(12, 4)
    mQ = V(2); mP = V(); lQ = V(2); aQ = V(2); aP = V(); vC = V(); PK = V(4, 2); Mx = V(2); tt = V()
    vA = V(2); vTr = V(2); vMw = V(); vMr = V(); vMp = V(); vPw = V(); vPr = V(); vQ = V(); vQw = V(); vCw = V(2)
    sQ = 14
    a(f's_lshl_b32 s{sQ}, s{sB2}, 15'); a(f's_lshl_b32 s6, s{sW}, 12'); a(f's_add_u32 s{sQ}, s{sQ}, s6'); a(f's_add_u32 s{sQ}, s{sQ}, {QABS}')
    a(f's_add_u32 s{sQ+1}, s{sQ}, 16384')
    def q_loads(iss):
        for nt in range(2):
            for k in range(4):
                iss(f'buffer_load_dwordx4 {vr(CF+16*nt+4*k,4)}, {vr(vL16)}, {srd(S_WS)}, s{sQ+nt} offen offset:{1024*k} sc1')
    a('s_nop 1')
    q_loads(lambda t: vm.issue(t, 'q'))
    for rho in (2, 3):
        for k in range(16): c_reg(rho, k)
    a(f's_lshl_b32 s6, s{sW}, 4'); a(f'v_add_u32 {vr(t0)}, s6, {vr(vI)}'); a(f'v_mul_u32_u24 {vr(t0)}, {CROW}, {vr(t0)}')
    a(f'v_lshrrev_b32 {vr(t1)}, 3, {vr(vI)}'); a(f'v_lshlrev_b32 {vr(t1)}, 1, {vr(t1)}'); a(f'v_xor_b32 {vr(t1)}, {vr(t1)}, {vr(vG)}')
    a(f'v_lshl_add_u32 {vr(vA)}, {vr(t1)}, 4, {vr(t0)}'); a(f'v_add_u32 {vr(vA+1)}, {CB}, {vr(vA)}')
    a(f'v_lshrrev_b32 {vr(t0)}, 5, {vr(vLane)}'); a(f'v_lshlrev_b32 {vr(t0)}, 3, {vr(t0)}')
    a(f'v_bfe_u32 {vr(t1)}, {vr(vLane)}, 2, 2'); a(f'v_add_u32 {vr(t0)}, {vr(t0)}, {vr(t1)}'); a(f'v_mul_u32_u24 {vr(t0)}, {CROW}, {vr(t0)}')
    a(f'v_lshrrev_b32 {vr(t1)}, 1, {vr(vG)}'); a(f'v_xor_b32 {vr(t1)}, {vr(t1)}, {vr(vG)}')
    a(f'v_and_b32 {vr(t1)}, 1, {vr(t1)}'); a(f'v_lshl_add_u32 {vr(t0)}, {vr(t1)}, 5, {vr(t0)}')
    a(f'v_and_b32 {vr(t1)}, 3, {vr(vLane)}'); a(f'v_lshl_add_u32 {vr(t0)}, {vr(t1)}, 3, {vr(t0)}')
    a(f's_lshl_b32 s6, s{sW}, 8'); a(f'v_add_u32 {vr(vTr)}, s6, {vr(t0)}'); a(f'v_add_u32 {vr(vTr+1)}, {CB}, {vr(vTr)}')
    a(f'v_lshlrev_b32 {vr(vMr)}, 4, {vr(vI)}'); a(f'v_add_u32 {vr(vMr)}, {MX}, {vr(vMr)}')
    a(f's_lshl_b32 s6, s{sW}, 2'); a(f'v_add_u32 {vr(vMw)}, s6, {vr(vMr)}')
    a(f'v_and_b32 {vr(t0)}, 31, {vr(vLane)}'); a(f'v_lshlrev_b32 {vr(vMp)}, 4, {vr(t0)}'); a(f'v_add_u32 {vr(vMp)}, {MX}, {vr(vMp)}')
    a(f'v_lshlrev_b32 {vr(vPr)}, 5, {vr(t0)}'); a(f'v_lshrrev_b32 {vr(t1)}, 5, {vr(vLane)}')
    a(f'v_lshl_add_u32 {vr(vPr)}, {vr(t1)}, 4, {vr(vPr)}'); a(f'v_add_u32 {vr(vPr)}, {PB}, {vr(vPr)}')
    a(f'v_lshlrev_b32 {vr(vPw)}, 5, {vr(vI)}'); a(f'v_lshl_add_u32 {vr(vPw)}, {vr(vG)}, 3, {vr(vPw)}')
    a(f's_lshl_b32 s6, s{sW}, 10'); a(f's_add_u32 s6, s6, {PB}'); a(f'v_add_u32 {vr(vPw)}, s6, {vr(vPw)}')
    a(f'v_mul_u32_u24 {vr(vQ)}, {QROW}, {vr(vI)}'); a(f'v_lshl_add_u32 {vr(vQ)}, {vr(vG)}, 4, {vr(vQ)}'); a(f'v_add_u32 {vr(vQ)}, {SQ}, {vr(vQ)}')
    a(f's_mul_i32 s6, s{sW}, {4*QROW}'); a(f's_add_u32 s6, s6, {SQ}'); a(f'v_add_u32 {vr(vQw)}, s6, {vr(vL16)}')
    a(f'v_add_u32 {vr(vCw)}, s{sM0}, {vr(vL16)}'); a(f'v_add_u32 {vr(vCw+1)}, {CB}, {vr(vCw)}')
    a(f'v_mov_b32 {vr(vC)}, {f2u(SCALE):#x}')
    for r in (mQ, mQ + 1, mP): a(f'v_mov_b32 {vr(r)}, 0xff800000')
    a(f'v_mov_b32 {vr(lQ)}, 0'); a(f'v_mov_b32 {vr(lQ+1)}, 0')
    vm.wait('q')
    a(f's_mov_b32 s7, {cfg.spin_max}')
    a('Q_chk:')
    umax_tree(tt, range(CF, CF + 32))
    a(f'v_cmp_eq_u32 vcc, -1, {vr(tt)}')
    a('s_cbranch_vccz Q_ok')
    a(f's_sleep {cfg.qsleep}')
    q_loads(a)
    a('s_waitcnt vmcnt(0)')
    a('s_sub_u32 s7, s7, 1'); a('s_cmp_lg_u32 s7, 0'); a('s_cbranch_scc1 Q_chk')
    a('Q_ok:')
    stamp(3)
    for nt in range(2):
        a('s_barrier')
        for k in range(4): a(f'ds_write_b128 {vr(vQw)}, {vr(CF+16*nt+4*k,4)} offset:{QROW*k}')
        a('s_waitcnt lgkmcnt(0)'); a('s_barrier')
        for ks in range(16): a(f'ds_read_b128 {ar(64*nt+4*ks,4)}, {vr(vQ)} offset:{64*ks}')
        a('s_waitcnt lgkmcnt(0)')
    for rho in range(4):
        par = rho & 1
        for ks in range(16):
            a(f'ds_read_b128 {vr(CF+4*ks,4)}, {vr(vA+par)} offset:{64*ks}')
        for ks in range(16):
            a(f's_waitcnt lgkmcnt({15-ks})')
            for nt in range(2):
                c = '0' if ks == 0 else vr(S + 4 * nt, 4)
                a(f'v_mfma_f32_16x16x32_bf16 {vr(S+4*nt,4)}, {vr(CF+4*ks,4)}, {ar(64*nt+4*ks,4)}, {c}')
        for nt in range(2):
            a(f'v_max_f32 {vr(Mx+nt)}, {vr(S+4*nt)}, {vr(S+4*nt+1)}')
            a(f'v_max3_f32 {vr(Mx+nt)}, {vr(Mx+nt)}, {vr(S+4*nt+2)}, {vr(S+4*nt+3)}')
            allred_rows(Mx + nt, tt, 'v_max_f32')
            a(f'ds_write_b32 {vr(vMw)}, {vr(Mx+nt)} offset:{256*nt}')
        a('s_waitcnt lgkmcnt(0)'); a('s_barrier')
        a(f'ds_read_b128 {vr(MXR,4)}, {vr(vMr)}'); a(f'ds_read_b128 {vr(MXR+4,4)}, {vr(vMr)} offset:256'); a(f'ds_read_b128 {vr(MXR+8,4)}, {vr(vMp)}')
        if 1 <= rho <= 2:
            vm.wait(('c', rho + 1))
            for k in range(16): a(f'ds_write_b128 {vr(vCw+1-par)}, {ar(64*(rho+1)+4*k,4)} offset:{k*CROW}')
            a('s_waitcnt lgkmcnt(15)')
        else:
            a('s_waitcnt lgkmcnt(0)')
        for i, (m, al) in enumerate(((mQ, aQ), (mQ + 1, aQ + 1), (mP, aP))):
            R = MXR + 4 * i
            a(f'v_max_f32 {vr(R)}, {vr(R)}, {vr(R+1)}'); a(f'v_max3_f32 {vr(R)}, {vr(R)}, {vr(R+2)}, {vr(R+3)}')
            a(f'v_mul_f32 {vr(R)}, {vr(R)}, {vr(vC)}'); a(f'v_max_f32 {vr(R)}, {vr(R)}, {vr(m)}')
            a(f'v_sub_f32 {vr(al)}, {vr(m)}, {vr(R)}'); a(f'v_exp_f32 {vr(al)}, {vr(al)}'); a(f'v_mov_b32 {vr(m)}, {vr(R)}')
        for nt in range(2):
            for r in range(4):
                a(f'v_fma_f32 {vr(S+4*nt+r)}, {vr(S+4*nt+r)}, {vr(vC)}, -{vr(mQ+nt)}')
            for r in range(4): a(f'v_exp_f32 {vr(S+4*nt+r)}, {vr(S+4*nt+r)}')
            a(f'v_mul_f32 {vr(lQ+nt)}, {vr(lQ+nt)}, {vr(aQ+nt)}')
            a(f'v_cvt_pk_bf16_f32 {vr(PK+2*nt)}, {vr(S+4*nt)}, {vr(S+4*nt+1)}'); a(f'v_cvt_pk_bf16_f32 {vr(PK+2*nt+1)}, {vr(S+4*nt+2)}, {vr(S+4*nt+3)}')
            a(f'ds_write_b64 {vr(vPw)}, {vr(PK+2*nt,2)} offset:{512*nt}')
            for r in range(4): a(f'v_add_f32 {vr(lQ+nt)}, {vr(lQ+nt)}, {vr(S+4*nt+r)}')
        if rho > 0:
            for r in range(64): a(f'v_mul_f32 {vr(ACC+r)}, {vr(ACC+r)}, {vr(aP)}')
        a('s_waitcnt lgkmcnt(0)'); a('s_barrier')
        for ks in range(4): a(f'ds_read_b128 {vr(PF+4*ks,4)}, {vr(vPr)} offset:{1024*ks}')
        for ks in range(4):
            for ct in range(4):
                for sec in range(2):
                    a(f'ds_read_b64_tr_b16 {vr(CF+16*ks+4*ct+2*sec,2)}, {vr(vTr+par)} offset:{(16*ks+4*sec)*CROW + 64*ct}')
        for ks in range(4):
            a(f's_waitcnt lgkmcnt({min(15, 8*(3-ks))})')
            for ct in range(4):
                c = '0' if (rho == 0 and ks == 0) else vr(ACC + 16 * ct, 16)
                a(f'v_mfma_f32_32x32x16_bf16 {vr(ACC+16*ct,16)}, {vr(CF+16*ks+4*ct,4)}, {vr(PF+4*ks,4)}, {c}')
    stamp(4)
    for nt in range(2):
        allred_rows(lQ + nt, tt, 'v_add_f32')
        a(f'ds_write_b32 {vr(vMw)}, {vr(lQ+nt)} offset:{512+256*nt}')
    TROW = 1040
    a(f'v_and_b32 {vr(t0)}, 31, {vr(vLane)}'); a(f'v_mul_u32_u24 {vr(t0)}, {TROW}, {vr(t0)}')
    a(f'v_lshrrev_b32 {vr(t1)}, 5, {vr(vLane)}'); a(f'v_lshl_add_u32 {vr(t0)}, {vr(t1)}, 3, {vr(t0)}')
    a(f's_lshl_b32 s6, s{sW}, 8'); a(f'v_add_u32 {vr(t0)}, s6, {vr(t0)}')
    for ct in range(4):
        for rq in range(4):
            R = ACC + 16 * ct + 4 * rq; P = CF + 2 * (4 * ct + rq)
            a(f'v_cvt_pk_bf16_f32 {vr(P)}, {vr(R)}, {vr(R+1)}'); a(f'v_cvt_pk_bf16_f32 {vr(P+1)}, {vr(R+2)}, {vr(R+3)}')
            a(f'ds_write_b64 {vr(t0)}, {vr(P,2)} offset:{64*ct+16*rq}')
    a('s_waitcnt lgkmcnt(0)'); a('s_barrier')
    a(f's_mul_i32 s6, s{sW}, {8*TROW}'); a(f'v_add_u32 {vr(t0)}, s6, {vr(vL16)}')
    for k in range(8): a(f'ds_read_b128 {vr(CF+32+4*k,4)}, {vr(t0)} offset:{k*TROW}')
    a(f'ds_read_b128 {vr(MXR,4)}, {vr(vMp)} offset:512')
    a(f's_lshl_b32 s7, s{sW}, 19'); a(f's_lshl_b32 s6, s{sBeta}, 10'); a('s_add_u32 s7, s7, s6'); a(f's_add_u32 s7, s7, {PART if not cfg.bskip & 16 else OOB}')
    for k in range(8):
        a(f's_waitcnt lgkmcnt({8-k})')
        a(f's_add_u32 s6, s7, {k*65536}')
        a(f'buffer_store_dwordx4 {vr(CF+32+4*k,4)}, {vr(vL16)}, {srd(S_WS)}, s6 offen sc1')
    a('s_waitcnt lgkmcnt(0)')
    a(f'v_add_f32 {vr(MXR)}, {vr(MXR)}, {vr(MXR+1)}'); a(f'v_add_f32 {vr(MXR+2)}, {vr(MXR+2)}, {vr(MXR+3)}')
    a(f'v_add_f32 {vr(PK+1)}, {vr(MXR)}, {vr(MXR+2)}'); a(f'v_mov_b32 {vr(PK)}, {vr(mP)}')
    a(f'v_and_b32 {vr(t0)}, 31, {vr(vLane)}'); a(f'v_lshrrev_b32 {vr(t1)}, 5, {vr(vLane)}')
    a(f'v_lshl_add_u32 {vr(t0)}, {vr(t0)}, 1, {vr(t1)}'); a(f'v_lshlrev_b32 {vr(t0)}, 9, {vr(t0)}')
    a(f's_lshl_b32 s6, s{sBeta}, 3'); a(f's_add_u32 s6, s6, {PSTAT}')
    a(f'v_min_u32 {vr(PK)}, -2, {vr(PK)}'); a(f'v_min_u32 {vr(PK+1)}, -2, {vr(PK+1)}')
    a('s_waitcnt vmcnt(0)'); a('s_barrier')
    Ls = lab('nops')
    a(f's_cmp_lg_u32 s{sW}, 0'); a(f's_cbranch_scc1 {Ls}')
    a(f'buffer_store_dwordx2 {vr(PK,2)}, {vr(t0)}, {srd(S_WS)}, s6 offen sc1')
    a(f'{Ls}:')
    stamp(5)
    if cfg.bstop == 2: a('s_branch B_end')
    V = VAlloc(base)
    UB = 73728; OT = UB + 65536; RED = OT + 2048
    AF = V(64, 4); BF = V(32, 4); D = V(36, 4); F = V(4); ST = V(2); Mx = V(); Lx = V(); vU = V(2); vR = V(4); vT = V(4); PA = V(8, 4); O = V(12, 4)
    a(f's_mul_i32 s6, s{sBeta}, 73728'); mk_srd(S_WO, P_BWO, 's6', 73728)
    a(f's_lshl_b32 s6, s{sBeta}, 7'); a(f's_sub_u32 s7, {512*8192}, s6'); mk_srd(S_U, P_WUV, 's6', 's7')
    for bit, Rr in ((64, S_U), (128, S_WO)):
        if cfg.bskip & bit: a(f's_mov_b32 s{Rr+2}, 0')
    a(f'v_lshrrev_b32 {vr(t0)}, 3, {vr(vLane)}'); a(f'v_and_b32 {vr(t1)}, 7, {vr(vLane)}')
    a(f'v_and_b32 {vr(t2)}, 2, {vr(t0)}'); a(f'v_xor_b32 {vr(t1)}, {vr(t1)}, {vr(t2)}')
    a(f'v_lshlrev_b32 {vr(t0)}, 13, {vr(t0)}')
    a(f'v_lshl_add_u32 {vr(vU)}, {vr(t1)}, 4, {vr(t0)}')
    a(f'v_xor_b32 {vr(t1)}, 4, {vr(t1)}'); a(f'v_lshl_add_u32 {vr(vU+1)}, {vr(t1)}, 4, {vr(t0)}')
    a(f's_lshl_b32 s{sM0}, s{sW}, 14'); a(f's_lshl_b32 s{sSo}, s{sW}, 20')
    for k in range(16):
        a(f's_add_u32 m0, s{sM0}, {UB + k*1024}'); a(f's_add_u32 s6, s{sSo}, {k*65536}')
        a(f'buffer_load_dwordx4 {vr(vU+(k&1))}, {srd(S_U)}, s6 offen {fl} lds')
    a(f's_mul_i32 s{sM0}, s{sW}, 18432')
    for k in range(18):
        a(f's_add_u32 s6, s{sM0}, {k*1024}'); a('s_mov_b32 m0, s6')
        a(f'buffer_load_dwordx4 {vr(vL16)}, {srd(S_WO)}, s6 offen {fl} lds')
    mk_wo_tr_addr(vLane, vT, t0, t1, False)
    a(f'v_bfe_u32 {vr(t0)}, {vr(vLane)}, 2, 2'); a(f'v_lshl_add_u32 {vr(t0)}, {vr(vG)}, 3, {vr(t0)}'); a(f'v_lshlrev_b32 {vr(t0)}, 7, {vr(t0)}')
    a(f'v_and_b32 {vr(t1)}, 3, {vr(vLane)}'); a(f'v_lshl_add_u32 {vr(t0)}, {vr(t1)}, 3, {vr(t0)}'); a(f'v_add_u32 {vr(t0)}, {UB}, {vr(t0)}')
    a(f'v_bfe_u32 {vr(t1)}, {vr(vLane)}, 3, 2')
    for t in range(4):
        a(f'v_xor_b32 {vr(t2)}, {t}, {vr(t1)}'); a(f'v_lshl_add_u32 {vr(vR+t)}, {vr(t2)}, 5, {vr(t0)}')
    a(f'v_lshlrev_b32 {vr(t0)}, 10, {vr(vI)}'); a(f'v_lshl_add_u32 {vr(t0)}, {vr(vG)}, 4, {vr(t0)}')
    a(f'v_lshlrev_b32 {vr(t1)}, 3, {vr(vI)}')
    a(f's_lshl_b32 s6, s{sBeta}, 9'); a(f's_lshl_b32 s7, s{sW}, 7'); a('s_add_u32 s6, s6, s7'); a(f's_add_u32 s6, s6, {PSTAT}')
    a(f's_mov_b32 s7, {cfg.spin_max}')
    a('P_poll:')
    a(f'buffer_load_dwordx2 {vr(ST,2)}, {vr(t1)}, {srd(S_WS)}, s6 offen sc1')
    a('s_waitcnt vmcnt(0)')
    a(f'v_max_u32 {vr(Mx)}, {vr(ST)}, {vr(ST+1)}'); a(f'v_cmp_eq_u32 vcc, -1, {vr(Mx)}')
    a('s_cbranch_vccz P_ok')
    a(f's_sleep {cfg.psleep}')
    a('s_sub_u32 s7, s7, 1'); a('s_cmp_lg_u32 s7, 0'); a('s_cbranch_scc1 P_poll')
    a('P_ok:')
    stamp(6)
    vm = VM(a)
    a(f's_lshl_b32 s6, s{sH}, 16'); a(f's_lshl_b32 s7, s{sW}, 14'); a('s_add_u32 s6, s6, s7'); a(f's_add_u32 s6, s6, {PART if not cfg.bskip & 256 else OOB}')
    for ks in range(16):
        vm.issue(f'buffer_load_dwordx4 {vr(AF+4*ks,4)}, {vr(t0)}, {srd(S_WS)}, s6 offen offset:{64*ks} sc1', ('a', ks))
    a('s_barrier')
    wo_frag_reads(2, vT)
    a(f'v_mov_b32 {vr(Mx)}, {vr(ST)}')
    for sh in (8, 4, 2, 1): a(f'v_max_f32_dpp {vr(Mx)}, {vr(Mx)}, {vr(Mx)} row_ror:{sh} {DPPF}')
    a(f'v_sub_f32 {vr(ST)}, {vr(ST)}, {vr(Mx)}'); a(f'v_exp_f32 {vr(ST)}, {vr(ST)}')
    a(f'v_mul_f32 {vr(Lx)}, {vr(ST)}, {vr(ST+1)}')
    for sh in (8, 4, 2, 1): a(f'v_add_f32_dpp {vr(Lx)}, {vr(Lx)}, {vr(Lx)} row_ror:{sh} {DPPF}')
    a(f'v_rcp_f32 {vr(Lx)}, {vr(Lx)}'); a(f'v_mul_f32 {vr(ST)}, {vr(ST)}, {vr(Lx)}')
    for r in range(4):
        for q in range(4):
            a(f'v_mov_b32_dpp {vr(F+r)}, {vr(ST)} row_newbcast:{4*q+r} row_mask:{1<<q:#x} bank_mask:0xf')
    a('s_waitcnt lgkmcnt(0)')
    def u_reads(ks):
        for t in range(4):
            for sec in range(2):
                a(f'ds_read_b64_tr_b16 {vr(BF+16*(ks&1)+4*t+2*sec,2)}, {vr(vR+t)} offset:{(32*ks+4*sec)*128}')
    u_reads(0)
    for ks in range(16):
        if ks + 1 < 16: u_reads(ks + 1)
        vm.wait(('a', ks))
        a(f's_waitcnt lgkmcnt({8 if ks + 1 < 16 else 0})')
        for t in range(4):
            c = '0' if ks == 0 else vr(D + 4 * t, 4)
            a(f'v_mfma_f32_16x16x32_bf16 {vr(D+4*t,4)}, {vr(AF+4*ks,4)}, {vr(BF+16*(ks&1)+4*t,4)}, {c}')
    a(f'v_lshlrev_b32 {vr(t0)}, 7, {vr(vG)}'); a(f'v_lshl_add_u32 {vr(t0)}, {vr(vI)}, 1, {vr(t0)}')
    a(f's_lshl_b32 s6, s{sW}, 9'); a(f's_add_u32 s6, s6, {OT}'); a(f'v_add_u32 {vr(t0)}, s6, {vr(t0)}')
    for t in range(4):
        a(f'v_mul_f32 {vr(O+t)}, {vr(F)}, {vr(D+4*t)}')
        for r in range(1, 4): a(f'v_fma_f32 {vr(O+t)}, {vr(F+r)}, {vr(D+4*t+r)}, {vr(O+t)}')
        a(f'v_cvt_pk_bf16_f32 {vr(O+t)}, {vr(O+t)}, {vr(O+t)}')
        a(f'ds_write_b16 {vr(t0)}, {vr(O+t)} offset:{32*t}')
    a(f'v_lshlrev_b32 {vr(t1)}, 7, {vr(vI)}'); a(f'v_lshl_add_u32 {vr(t1)}, {vr(vG)}, 4, {vr(t1)}'); a(f'v_add_u32 {vr(t1)}, {OT}, {vr(t1)}')
    a('s_waitcnt lgkmcnt(0)'); a('s_barrier')
    for ks in range(2): a(f'ds_read_b128 {vr(PA+4*ks,4)}, {vr(t1)} offset:{64*ks}')
    a(f'v_mul_u32_u24 {vr(t0)}, {64*2304}, {vr(vG)}')
    a(f'v_and_b32 {vr(t1)}, 3, {vr(vLane)}'); a(f'v_bfe_u32 {vr(t2)}, {vr(vLane)}, 2, 2')
    a(f'v_lshl_add_u32 {vr(t1)}, {vr(t1)}, 2, {vr(t2)}'); a(f'v_lshl_add_u32 {vr(t1)}, {vr(t1)}, 2, {vr(t0)}')
    a(f'v_lshl_add_u32 {vr(t0)}, {vr(vI)}, 4, {vr(t0)}')
    a(f's_mul_i32 s6, s{sBeta}, 2304'); a(f's_mul_i32 s7, s{sW}, 576'); a('s_add_u32 s6, s6, s7'); a(f's_add_u32 s6, s6, {YB}')
    a('s_waitcnt lgkmcnt(0)')
    for t in range(9):
        for ks in range(2):
            c = '0' if ks == 0 else vr(D + 4 * t, 4)
            a(f'v_mfma_f32_16x16x32_bf16 {vr(D+4*t,4)}, {vr(PA+4*ks,4)}, {ar(AW+4*(t*2+ks),4)}, {c}')
    for t in range(9):
        a(f'v_add_f32 {vr(D+4*t)}, {vr(D+4*t)}, {vr(D+4*t+1)}'); a(f'v_add_f32 {vr(D+4*t+2)}, {vr(D+4*t+2)}, {vr(D+4*t+3)}')
        a(f'v_add_f32 {vr(O+t)}, {vr(D+4*t)}, {vr(D+4*t+2)}'); a(f'v_min_u32 {vr(O+t)}, -2, {vr(O+t)}')
    a(f'buffer_store_dwordx4 {vr(O,4)}, {vr(t0)}, {srd(S_WS)}, s6 offen sc1')
    a(f'buffer_store_dwordx4 {vr(O+4,4)}, {vr(t0)}, {srd(S_WS)}, s6 offen offset:256 sc1')
    a(f'buffer_store_dword {vr(O+8)}, {vr(t1)}, {srd(S_WS)}, s6 offen offset:512 sc1')
    stamp(7)
    if cfg.bstop == 3: a('s_branch B_end')
    V = VAlloc(base)
    Y = V(32, 4); AS = Y; vYo = V(); vOo = V(); E = V()
    sTau, sTb, sSg, sY, sDone, sO = 14, 15, 80, 81, 82, 83
    a(f's_and_b32 s6, s{sW}, 1'); a('s_lshl_b32 s6, s6, 6'); a(f's_add_u32 s{sTau}, s{sBeta}, s6')
    a(f's_cmp_ge_u32 s{sTau}, 72'); a('s_cbranch_scc1 B_end')
    a(f's_mul_i32 s{sTb}, s{sTau}, 57'); a(f's_lshr_b32 s{sTb}, s{sTb}, 10')
    a(f's_mul_i32 s6, s{sTb}, 18'); a(f's_sub_u32 s{sSg}, s{sTau}, s6')
    a(f's_lshr_b32 s7, s{sW}, 1')
    a(f's_mul_i32 s{sY}, s{sTb}, {64*2304}'); a(f's_lshl_b32 s6, s{sSg}, 7'); a(f's_add_u32 s{sY}, s{sY}, s6')
    a(f's_mul_i32 s6, s7, {YB - YA}'); a(f's_add_u32 s{sY}, s{sY}, s6'); a(f's_add_u32 s{sY}, s{sY}, {YA}')
    a(f's_mul_i32 s{sO}, s{sTb}, 2304'); a(f's_lshl_b32 s6, s{sSg}, 6'); a(f's_add_u32 s{sO}, s{sO}, s6')
    a('s_mul_i32 s6, s7, 1152'); a(f's_add_u32 s{sO}, s{sO}, s6')
    a(f'v_lshrrev_b32 {vr(t0)}, 3, {vr(vLane)}'); a(f'v_and_b32 {vr(t1)}, 7, {vr(vLane)}')
    a(f'v_mul_u32_u24 {vr(vYo)}, 2304, {vr(t0)}'); a(f'v_lshl_add_u32 {vr(vYo)}, {vr(t1)}, 4, {vr(vYo)}')
    a(f'v_bfe_u32 {vr(t0)}, {vr(vLane)}, 2, 1'); a(f'v_lshl_add_u32 {vr(t0)}, {vr(t0)}, 2, {vr(vG)}')
    a(f'v_and_b32 {vr(t1)}, 3, {vr(vLane)}'); a(f'v_lshl_add_u32 {vr(t0)}, {vr(t0)}, 2, {vr(t1)}'); a(f'v_lshlrev_b32 {vr(vOo)}, 1, {vr(t0)}')
    stamp(9)
    a(f's_mov_b32 s{sDone}, 0'); a(f's_mov_b32 s7, {cfg.spin_max}')
    a('R_pass:')
    for t in range(8):
        Ls = lab('ld')
        a(f's_bitcmp1_b32 s{sDone}, {t}'); a(f's_cbranch_scc1 {Ls}')
        a(f's_add_u32 s6, s{sY}, {t*8*2304}')
        a(f'buffer_load_dwordx4 {vr(Y+4*t,4)}, {vr(vYo)}, {srd(S_WS)}, s6 offen sc1')
        a(f'{Ls}:')
    a('s_waitcnt vmcnt(0)')
    for t in range(8):
        Ls = lab('ck'); y = Y + 4 * t
        a(f's_bitcmp1_b32 s{sDone}, {t}'); a(f's_cbranch_scc1 {Ls}')
        a(f'v_max3_u32 {vr(E)}, {vr(y)}, {vr(y+1)}, {vr(y+2)}'); a(f'v_max_u32 {vr(E)}, {vr(E)}, {vr(y+3)}')
        a(f'v_cmp_eq_u32 vcc, -1, {vr(E)}')
        a(f's_cbranch_vccnz {Ls}')
        a(f's_bitset1_b32 s{sDone}, {t}')
        a(f'{Ls}:')
    a(f's_cmp_eq_u32 s{sDone}, 255'); a('s_cbranch_scc1 R_done')
    if cfg.rsleep: a(f's_sleep {cfg.rsleep}')
    a('s_sub_u32 s7, s7, 1'); a('s_cmp_lg_u32 s7, 0'); a('s_cbranch_scc1 R_pass')
    a('R_done:')
    stamp(10)
    for st in (16, 8, 4):
        for k in range(0, st, 2): a(f'v_pk_add_f32 {vr(Y+k,2)}, {vr(Y+k,2)}, {vr(Y+k+st,2)}')
    a(f'v_permlane32_swap_b32 {vr(AS)}, {vr(AS+2)}'); a(f'v_permlane32_swap_b32 {vr(AS+1)}, {vr(AS+3)}')
    a(f'v_add_f32 {vr(AS)}, {vr(AS)}, {vr(AS+2)}'); a(f'v_add_f32 {vr(AS+1)}, {vr(AS+1)}, {vr(AS+3)}')
    a(f'v_permlane16_swap_b32 {vr(AS)}, {vr(AS+1)}')
    a(f'v_add_f32 {vr(AS)}, {vr(AS)}, {vr(AS+1)}')
    a(f'v_add_f32_dpp {vr(AS)}, {vr(AS)}, {vr(AS)} row_ror:8 {DPPF}')
    a(f'v_cvt_pk_bf16_f32 {vr(AS)}, {vr(AS)}, {vr(AS)}')
    a('s_mov_b32 exec_lo, 0x00ff00ff'); a('s_mov_b32 exec_hi, 0x00ff00ff')
    a(f'buffer_store_short {vr(AS)}, {vr(vOo)}, {srd(S_OUT)}, s{sO} offen')
    a('s_mov_b64 exec, -1')
    stamp(11)
    a('B_end:')
    stamp_flush(t0, 'B')
    a('s_endpgm')

def gen():
    hdr = open('/code/' + NAME + '.s.ref').read().split('; Override')[0]
    a(f'{NAME}_kernel:')
    a('s_cmp_ge_u32 s2, 256'); a('s_cbranch_scc1 L_exit')
    a('s_load_dwordx16 s[16:31], s[0:1], 0'); a('s_load_dwordx8 s[32:39], s[0:1], 64'); a('s_load_dwordx4 s[40:43], s[0:1], 96')
    a('v_lshrrev_b32 v1, 6, v0'); a(f'v_readfirstlane_b32 s{sW}, v1')
    if cfg.hmap == 0:
        a('s_and_b32 s6, s2, 7'); a('s_bfe_u32 s7, s2, 0x20003'); a(f's_lshl_b32 s{sH}, s6, 2'); a(f's_add_u32 s{sH}, s{sH}, s7')
    else:
        a(f's_and_b32 s{sH}, s2, 31')
    a(f's_lshr_b32 s{sR}, s2, 5')
    if cfg.stamps:
        a('s_waitcnt lgkmcnt(0)')
        for k in range(16): a(f's_mov_b32 s{84+k}, 0')
        stamp(0)
    a(f's_cmp_lt_u32 s{sR}, 2'); a('s_cbranch_scc1 B_role')
    gen_A()
    a('L_exit:'); a('s_endpgm')
    gen_B()
    body = a.finish()
    out = hdr + f'; @launch grid=(256,1,1) block=(256,1,1) lds={LDS_TOTAL}\n'
    out += '; generated by gen/gen.py (hand-written generator)\n'
    out += f'.amdgcn_target "amdgcn-amd-amdhsa--gfx950"\n.text\n.globl {NAME}_kernel\n.p2align 8\n.type {NAME}_kernel,@function\n'
    out += body
    out += f'''.section .rodata,"a"
.p2align 6
.amdhsa_kernel {NAME}_kernel
  .amdhsa_next_free_vgpr 512
  .amdhsa_next_free_sgpr 102
  .amdhsa_accum_offset 256
  .amdhsa_group_segment_fixed_size 0
  .amdhsa_kernarg_size 112
  .amdhsa_user_sgpr_count 2
  .amdhsa_user_sgpr_kernarg_segment_ptr 1
  .amdhsa_system_sgpr_workgroup_id_x 1
.end_amdhsa_kernel
'''
    return out

if __name__ == '__main__':
    outp = sys.argv[1]
    for kv in sys.argv[2:]:
        k, v = kv.split('=', 1)
        cur = getattr(cfg, k)
        setattr(cfg, k, (v == '1') if isinstance(cur, bool) else type(cur)(v))
    open(outp, 'w').write(gen())
```

```python
import sys, math, struct
from asmlib import Asm, VM
NAME = 'concat_heads__mha_block_cached__compressed_kv_cla__decode'

class Cfg:
    stamps = False
    R = 8
    wq_flags = ''
    wo_flags = ''
    b_flags = 'nt'
    dma_t0 = 0
    dma_per = 4
    ev_trip = 16
    hmap = 0
    trips = False
    diag = ''
    rsleep = 4
    wq_per = 3
    spin_max = 400000
    noB = False
    bskip = 0
    askip = 0
    bstop = 0
    psleep = 16
    qsleep = 16
    nodma = False
    kv_flags = 'nt'
    warm = 0
    wqpf = 2
    stag = '8,20,32'
    wopf_at = 4
    dgrp = 3
    dstep = 1
    vck = 0
    vcv = 0
    vsw = 16
    vcp = 63
    cwin = 2
    help = 0
    hsh = 4
    ev_per = 4
    wmix = 0
    st_per = 4
    kfirst = 0
    dma_mode = 0
    npv = 7
    st_slot = 28
    ev_slot = 12
    vhold = 0
cfg = Cfg()

QABS = 0x000000; PSTAT = 0x040000; AST = 0x050000; PART = 0x100000; YA = 0x400000; YB = 0x500000
WS_USED = 0x600000
STAMP = 0x10000000
C0 = 0; C0N = 128
OOB = 0x7ff00000
LDS_TOTAL = 163840
SCALE = (128 ** -0.5) * math.log2(math.e)
def f2u(x): return struct.unpack('<I', struct.pack('<f', x))[0]

P_AX, P_K, P_V, P_WQ, P_WO, P_BX, P_CKV, P_BWQ, P_WUK, P_WUV, P_BWO, P_OUT, P_DBG, P_WS = 16, 18, 20, 22, 24, 26, 28, 30, 32, 34, 36, 38, 40, 42
S_X, S_W, S_K, S_V, S_WO, S_WS, S_DBG, S_OUT, S_U = 44, 48, 52, 56, 60, 64, 68, 72, 76
sW, sH, sR = 3, 4, 5
def srd(n): return f's[{n}:{n+3}]'
def vr(n, k=1): return f'v{n}' if k == 1 else f'v[{n}:{n+k-1}]'
def ar(n, k=1): return f'a{n}' if k == 1 else f'a[{n}:{n+k-1}]'

class VAlloc:
    def __init__(self, start=1): self.n = start
    def __call__(self, k=1, align=1):
        align = max(align, 2 if k > 1 else 1)
        self.n = (self.n + align - 1) // align * align
        r = self.n; self.n += k
        assert self.n <= 256, 'out of vgprs'
        return r

a = Asm()
nstamp = [0]
def stamp(k):
    if cfg.stamps:
        a(f's_memrealtime s[100:101]'); a('s_waitcnt lgkmcnt(0)'); a(f's_mov_b32 s{84+k}, s100')
def stamp_flush(vt, role=''):
    if cfg.diag:
        k = int(cfg.diag[1:]) if cfg.diag[0] == role else 0
        L = lab('diag')
        a(f's_cmp_eq_u32 s{84+k}, 0'); a(f's_cselect_b32 s6, s84, s{84+k}'); a('s_add_u32 s6, s6, 10000')
        a(f'{L}:'); a('s_sleep 4'); a('s_memrealtime s[100:101]'); a('s_waitcnt lgkmcnt(0)')
        a('s_sub_u32 s7, s100, s6'); a('s_cmp_lt_i32 s7, 0'); a(f's_cbranch_scc1 {L}')
        return
    if cfg.stamps:
        a(f's_lshl_b32 s6, s2, 2'); a(f's_add_u32 s6, s6, s{sW}'); a('s_lshl_b32 s6, s6, 6'); a(f's_add_u32 s6, s6, {STAMP}')
        a(f's_mov_b32 s{S_WS+2}, 0x20000000')
        a(f'v_mov_b32 {vr(vt+1)}, 0')
        a('s_mov_b64 exec, 1')
        for k in range(16):
            a(f'v_mov_b32 {vr(vt)}, s{84+k}')
            a(f'buffer_store_dword {vr(vt)}, {vr(vt+1)}, {srd(S_WS)}, s6 offen offset:{4*k}')
            a('s_nop 1')
        a('s_mov_b64 exec, -1')

def mk_srd(d, p, off, size):
    if off is None:
        a(f's_mov_b32 s{d}, s{p}'); a(f's_mov_b32 s{d+1}, s{p+1}')
    else:
        a(f's_add_u32 s{d}, s{p}, {off}'); a(f's_addc_u32 s{d+1}, s{p+1}, 0')
    a(f's_mov_b32 s{d+2}, {size}'); a(f's_mov_b32 s{d+3}, 0x20000')

uid = [0]
def lab(p):
    uid[0] += 1
    return f'L_{p}_{uid[0]}'

def poll(coff, target, vt):
    L, D = lab('poll'), lab('polld')
    a(f's_cmp_lg_u32 s{sW}, 0'); a(f's_cbranch_scc1 {D}')
    a(f's_mov_b32 s7, {cfg.spin_max}')
    a(f'{L}:')
    a(f'buffer_load_dword {vr(vt)}, off, {srd(S_DBG)}, 0 offset:{coff} sc1')
    a('s_waitcnt vmcnt(0)')
    a(f'v_readfirstlane_b32 s6, {vr(vt)}')
    a(f's_cmp_ge_u32 s6, {target}'); a(f's_cbranch_scc1 {D}')
    a(f's_sleep {cfg.psleep}')
    a('s_sub_u32 s7, s7, 1'); a('s_cmp_lg_u32 s7, 0'); a(f's_cbranch_scc1 {L}')
    a(f'{D}:')
    a('s_barrier')

def ensure(coff, target, vt):
    L, D = lab('ens'), lab('ensd')
    a(f's_mov_b32 s7, {cfg.spin_max}')
    a(f'{L}:')
    a(f'v_readfirstlane_b32 s6, {vr(vt)}')
    a(f's_cmp_ge_u32 s6, {target}'); a(f's_cbranch_scc1 {D}')
    a(f's_sleep {cfg.psleep}')
    a(f'buffer_load_dword {vr(vt)}, off, {srd(S_DBG)}, 0 offset:{coff} sc1')
    a('s_waitcnt vmcnt(0)')
    a('s_sub_u32 s7, s7, 1'); a('s_cmp_lg_u32 s7, 0'); a(f's_cbranch_scc1 {L}')
    a(f'{D}:')

def umax_tree(dst, regs):
    regs = list(regs)
    a(f'v_max3_u32 {vr(dst)}, {vr(regs[0])}, {vr(regs[1])}, {vr(regs[2])}'); regs = regs[3:]
    while len(regs) >= 2:
        a(f'v_max3_u32 {vr(dst)}, {vr(dst)}, {vr(regs[0])}, {vr(regs[1])}'); regs = regs[2:]
    if regs: a(f'v_max_u32 {vr(dst)}, {vr(dst)}, {vr(regs[0])}')

def signal(coff, vt):
    D = lab('sig')
    a('s_waitcnt vmcnt(0) lgkmcnt(0)'); a('s_barrier')
    a(f's_cmp_lg_u32 s{sW}, 0'); a(f's_cbranch_scc1 {D}')
    a(f'v_mov_b32 {vr(vt)}, 1'); a('s_mov_b64 exec, 1')
    a(f'buffer_atomic_add {vr(vt)}, off, {srd(S_DBG)}, 0 offset:{coff}')
    a('s_mov_b64 exec, -1')
    a(f'{D}:')

def allred_rows(x, t, op):
    for sw in ('v_permlane16_swap_b32', 'v_permlane32_swap_b32'):
        a(f'v_mov_b32 {vr(t)}, {vr(x)}')
        a(f'{sw} {vr(x)}, {vr(t)}')
        a(f'{op} {vr(x)}, {vr(x)}, {vr(t)}')

DPPF = 'row_mask:0xf bank_mask:0xf'
def reduce4(T, X, S):
    a(f'v_add_f32_dpp {vr(X)}, {vr(T)}, {vr(T)} row_ror:8 row_mask:0xf bank_mask:0x3')
    a(f'v_add_f32_dpp {vr(X+1)}, {vr(T+1)}, {vr(T+1)} row_ror:8 row_mask:0xf bank_mask:0x3')
    a(f'v_add_f32_dpp {vr(X)}, {vr(T+2)}, {vr(T+2)} row_ror:8 row_mask:0xf bank_mask:0xc')
    a(f'v_add_f32_dpp {vr(X+1)}, {vr(T+3)}, {vr(T+3)} row_ror:8 row_mask:0xf bank_mask:0xc')
    a(f'v_add_f32_dpp {vr(S)}, {vr(X)}, {vr(X)} row_half_mirror row_mask:0xf bank_mask:0x5')
    a(f'v_add_f32_dpp {vr(S)}, {vr(X+1)}, {vr(X+1)} row_half_mirror row_mask:0xf bank_mask:0xa')
    a(f'v_add_f32_dpp {vr(S)}, {vr(S)}, {vr(S)} quad_perm:[1,0,3,2] {DPPF}')
    a(f'v_add_f32_dpp {vr(S)}, {vr(S)}, {vr(S)} quad_perm:[2,3,0,1] {DPPF}')

def mk_masks(vLane, MASK, SEL, t0, t1):
    a(f'v_and_b32 {vr(t0)}, 1, {vr(vLane)}'); a(f'v_lshlrev_b32 {vr(t0)}, 4, {vr(t0)}')
    a(f'v_mov_b32 {vr(t1)}, 0xffff'); a(f'v_lshlrev_b32 {vr(t0)}, {vr(t0)}, {vr(t1)}')
    a(f'v_bfe_u32 {vr(t1)}, {vr(vLane)}, 1, 2')
    for r in range(4):
        a(f'v_cmp_eq_u32 vcc, {r}, {vr(t1)}')
        a(f'v_cndmask_b32 {vr(MASK+r)}, 0, {vr(t0)}, vcc')
    a(f'v_mov_b32 {vr(t0)}, 0x0c0c0c0c')
    a('s_mov_b32 s6, 0x01000100'); a('s_mov_b32 s7, 0x03020302')
    for par in range(2):
        for r in range(4):
            a(f'v_bfi_b32 {vr(SEL+4*par+r)}, {vr(MASK+r)}, s{6+par}, {vr(t0)}')

def warm_code(l0, l1, vLane, t0, t1, n=2):
    L = lab('pc')
    a('s_getpc_b64 s[98:99]'); a(f'{L}:')
    n = 1 if l0 == 'A_role' else 3
    for k in range(n):
        a(f'v_lshlrev_b32 {vr(t0)}, 6, v0')
        if k: a(f'v_add_u32 {vr(t0)}, {16384*k}, {vr(t0)}')
        a(f'v_min_u32 {vr(t0)}, {l1}-{L}, {vr(t0)}')
        a(f'global_load_dword {ar(255-k)}, {vr(t0)}, s[98:99]')

AW = 96

def x_loads(vm, X, vXoff, extra):
    for k in range(4):
        vm.issue(f'buffer_load_dwordx4 {vr(X+4*k,4)}, {vr(vXoff)}, {srd(S_X)}, 0 offen offset:{extra+16*k}', 'x')
    vm.issue(f'buffer_load_dwordx2 {vr(X+16,2)}, {vr(vXoff)}, {srd(S_X)}, 0 offen offset:{extra+64}', 'x')

def wunit_load(vm, jj, vWoff, flags):
    a(f's_mov_b32 s6, {jj*8192}')
    vm.issue(f'buffer_load_dwordx4 {ar(AW+4*jj,4)}, {vr(vWoff)}, {srd(S_W)}, s6 offen {flags}', ('w', jj))

def wunit_mfma(jj, Xs, ACCs, SEL, PA):
    for s, (X, ACC) in enumerate(zip(Xs, ACCs)):
        P = PA + 4 * ((jj * len(Xs) + s) & 3)
        for r in range(4):
            a(f'v_perm_b32 {vr(P+r)}, {vr(X+jj//2)}, {vr(X+jj//2)}, {vr(SEL+4*(jj&1)+r)}')
        c = '0' if jj == 0 else vr(ACC, 4)
        a(f'v_mfma_f32_16x16x32_bf16 {vr(ACC,4)}, {vr(P,4)}, {ar(AW+4*jj,4)}, {c}')

def wo_frag_list(nks, vT):
    out = []
    for t in range(9):
        for ks in range(nks):
            for sec in range(2):
                reg = vT + (1 if t == 8 else 0) + (2 if ks >= 2 else 0)
                off = (32 * (ks & 1) + 4 * sec) * 1152 + (0 if t == 8 else 128 * (t >> 2) + 8 * (t & 3))
                out.append(f'ds_read_b64_tr_b16 {ar(AW+4*(t*nks+ks)+2*sec,2)}, {vr(reg)} offset:{off}')
    return out
def wo_frag_reads(nks, vT):
    for t in wo_frag_list(nks, vT): a(t)

def mk_wo_tr_addr(vLane, vT, t0, t1, two):
    a(f'v_lshrrev_b32 {vr(t0)}, 4, {vr(vLane)}'); a(f'v_lshlrev_b32 {vr(t0)}, 3, {vr(t0)}')
    a(f'v_bfe_u32 {vr(t1)}, {vr(vLane)}, 2, 2'); a(f'v_add_u32 {vr(t0)}, {vr(t0)}, {vr(t1)}')
    a(f'v_mul_u32_u24 {vr(t0)}, 1152, {vr(t0)}')
    a(f's_mul_i32 s6, s{sW}, 288'); a(f'v_add_u32 {vr(t0)}, s6, {vr(t0)}')
    a(f'v_and_b32 {vr(t1)}, 3, {vr(vLane)}')
    a(f'v_lshl_add_u32 {vr(vT)}, {vr(t1)}, 5, {vr(t0)}')
    a(f'v_lshl_add_u32 {vr(vT+1)}, {vr(t1)}, 3, {vr(t0)}'); a(f'v_add_u32 {vr(vT+1)}, 256, {vr(vT+1)}')
    if two:
        a(f'v_add_u32 {vr(vT+2)}, 73728, {vr(vT)}'); a(f'v_add_u32 {vr(vT+3)}, 73728, {vr(vT+1)}')

def gen_A():
    R = cfg.R; NT = 11; RT = R // 4
    assert R % 4 == 0
    V = VAlloc(1)
    vLane = V(); vL16 = V(); vWoff = V(); vXoff = V(); t0 = V(); t1 = V(); vC = V()
    MASK = V(4); SEL = V(8); ACC = V(4, 4); Q = V(4); T = V(4); XX = V(2); S = V(); M = V(); M2 = V(); fN = V()
    X = V(20, 4); PA = V(16, 4); D = X
    P = V(NT); vT = V(4); vY = V(); vY8 = V(); vOw = V(); vOr = V(); vC0 = V(); G = V(8); F = V(4); O = V(6, 2); vTS = V()
    KR = V(16 * R, 4)
    QRED = 147456; OT = QRED + 4096
    sJJ, sPair, sB, sRank, sOff, sReal, sBeg, sD, sDn, sTrip, sSt, sBsel = 8, 9, 10, 11, 12, 13, 14, 15, 80, 81, 82, 83
    sMk = 72
    sVo = 34
    STEP = 6 * 4096
    a('A_role:')
    a(f's_sub_u32 s{sJJ}, s{sR}, 2')
    a(f's_cmp_ge_u32 s{sJJ}, 3'); a(f's_cselect_b32 s{sPair}, 1, 0'); a(f's_cselect_b32 s6, 3, 0')
    a(f's_sub_u32 s{sJJ}, s{sJJ}, s6')
    a(f's_lshl_b32 s{sRank}, s{sJJ}, 2'); a(f's_add_u32 s{sRank}, s{sRank}, s{sW}')
    a(f's_cmp_ge_u32 s{sRank}, 6'); a(f's_cselect_b32 s{sBsel}, 1, 0'); a(f's_cselect_b32 s6, -1, 1')
    a(f's_add_u32 s{sRank}, s{sRank}, s6')
    a(f's_cmp_ge_u32 s{sRank}, 6'); a(f's_cselect_b32 s6, 6, 0'); a(f's_sub_u32 s{sRank}, s{sRank}, s6')
    a(f's_lshl_b32 s{sB}, s{sPair}, 1'); a(f's_add_u32 s{sB}, s{sB}, s{sBsel}')
    a(f'v_and_b32 {vr(vLane)}, 63, v0'); a(f'v_lshlrev_b32 {vr(vL16)}, 4, {vr(vLane)}')
    if cfg.warm & 1: warm_code('A_role', 'L_exit', vLane, t0, t1)
    a(f's_sub_u32 s{sBeg}, s{sRank}, 8'); a(f's_lshl_b32 s{sBeg}, s{sBeg}, 12'); a(f's_mov_b32 s{sReal}, s{sBeg}')
    def adv():
        a(f's_add_u32 s{sReal}, s{sReal}, {STEP}'); a(f's_min_u32 s{sOff}, s{sReal}, {OOB}')
    adv()
    a(f's_lshl_b32 s{sSt}, s{sB}, 5'); a(f's_add_u32 s{sSt}, s{sSt}, s{sH}')
    a(f's_lshl_b32 s6, s{sSt}, 20')
    a('s_waitcnt lgkmcnt(0)')
    mk_srd(S_K, P_K, 's6', 0x100000); mk_srd(S_V, P_V, 's6', 0x100000)
    a(f's_mul_i32 s6, s{sPair}, 2304'); a(f's_mul_i32 s7, s{sW}, 288'); a('s_add_u32 s6, s6, s7')
    a(f's_sub_u32 s7, 4608, s6')
    mk_srd(S_X, P_AX, 's6', 's7')
    a(f's_mul_i32 s6, s{sW}, {144*8192}'); a(f's_lshl_b32 s7, s{sH}, 8'); a('s_add_u32 s6, s6, s7')
    a(f's_sub_u32 s7, {576*8192}, s6')
    mk_srd(S_W, P_WQ, 's6', 's7')
    if cfg.askip & 1: a(f's_mov_b32 s{S_W+2}, 0')
    a(f'v_lshrrev_b32 {vr(t0)}, 4, {vr(vLane)}'); a(f'v_and_b32 {vr(t1)}, 15, {vr(vLane)}')
    a(f'v_mul_u32_u24 {vr(vWoff)}, {36*8192}, {vr(t0)}'); a(f'v_lshl_add_u32 {vr(vWoff)}, {vr(t1)}, 4, {vr(vWoff)}')
    a(f'v_mul_u32_u24 {vr(vXoff)}, 72, {vr(t0)}'); a(f'v_lshrrev_b32 {vr(t1)}, 3, {vr(t1)}')
    a(f'v_mul_u32_u24 {vr(t1)}, 1152, {vr(t1)}'); a(f'v_add_u32 {vr(vXoff)}, {vr(vXoff)}, {vr(t1)}')
    vm = VM(a, cfg.vcp)
    a(f'v_mov_b32 {vr(vC)}, {8192-1024}')
    if cfg.wqpf:
        a('s_lshr_b32 s6, s2, 3'); a('s_sub_u32 s6, s6, 8'); a('s_lshl_b32 s6, s6, 2'); a(f's_add_u32 s6, s6, s{sW}')
        a(f's_mul_i32 s6, s6, {6*8192}'); a('s_and_b32 s7, s2, 7'); a('s_lshl_b32 s7, s7, 10'); a('s_add_u32 s6, s6, s7')
        mk_srd(S_WO, P_WQ, None, 576 * 8192)
        if cfg.wqpf == 1:
            for k in range(6):
                vm.issue(f'buffer_load_dwordx4 {vr(KR+4*(k&3),4)}, {vr(vL16)}, {srd(S_WO)}, s6 offen')
                if k < 5: a('s_add_u32 s6, s6, 8192')
        else:
            a(f'v_min_u32 {vr(M)}, 47, {vr(vLane)}'); a(f'v_lshrrev_b32 {vr(M2)}, 3, {vr(M)}'); a(f'v_lshlrev_b32 {vr(M)}, 7, {vr(M)}')
            a(f'v_mad_u32_u24 {vr(M2)}, {vr(M2)}, {vr(vC)}, {vr(M)}')
            vm.issue(f'buffer_load_dword {vr(KR)}, {vr(M2)}, {srd(S_WO)}, s6 offen')
    x_loads(vm, X, vXoff, 0)
    def ring_ld(s, u):
        return f'buffer_load_dwordx4 {vr(KR+16*s+4*u,4)}, {vr(vL16)}, {srd(S_K)}, s{sOff} offen offset:{1024*u} {cfg.kv_flags}'
    stream = [('k', s, u) for s in range(1, R) for u in range(4)]
    if cfg.wmix: stream += [('v', s, u) for s in range(1, cfg.npv + 1) for u in range(4)]
    order = stream[:cfg.kfirst]; wi = 0; si = cfg.kfirst
    while wi < 36 or si < len(stream):
        for _ in range(cfg.wq_per):
            if wi < 36: order.append(('w', wi)); wi += 1
        for _ in range(cfg.st_per):
            if si < len(stream): order.append(stream[si]); si += 1
    NPV = cfg.npv; V0 = NPV + 1 if NPV else 0
    def avs(s): return 16 * (s - 1) if s < 7 else 240
    if not cfg.wmix: order += [('v', s, u) for s in range(1, NPV + 1) for u in range(4)]
    def issue(o):
        if o[0] == 'w': wunit_load(vm, o[1], vWoff, cfg.wq_flags)
        elif o[0] == 'v':
            if o[2] == 0: a(f's_add_u32 s{sVo}, s{sBeg}, {o[1]*STEP}'); a(f's_min_u32 s{sVo}, s{sVo}, {OOB}')
            vm.issue(f'buffer_load_dwordx4 {ar(avs(o[1])+4*o[2],4)}, {vr(vL16)}, {srd(S_V)}, s{sVo} offen offset:{1024*o[2]} {cfg.kv_flags}', o)
        else:
            vm.issue(ring_ld(o[1], o[2]), o)
            if o[2] == 3: adv()
    pos = 0
    def wo_pf():
        a(f's_mul_i32 s6, s{sH}, 147456'); mk_srd(S_WO, P_WO, 's6', 147456)
        a(f's_sub_u32 s6, s{sR}, 2'); a('s_lshl_b32 s6, s6, 2'); a(f's_add_u32 s6, s6, s{sW}'); a('s_mul_i32 s6, s6, 6144')
        vm.issue(f'buffer_load_dword {vr(KR+1)}, {vr(M)}, {srd(S_WO)}, s6 offen')
    if cfg.stag:
        sp = [int(x) for x in cfg.stag.split(',')]
        stream = [('k', s, u) for s in range(1, R) for u in range(4)] + [('v', s, u) for s in range(1, NPV + 1) for u in range(4)]
        order = stream[:sp[-1]] + [('w', j) for j in range(36)] + stream[sp[-1]:]
        vm.limit = 1000
        for idx in range(sp[-1] + 1):
            if idx in sp:
                Ls = lab('nowq')
                a(f's_cmp_lg_u32 s{sJJ}, {sp.index(idx)}'); a(f's_cbranch_scc1 {Ls}')
                a('s_waitcnt vmcnt(20)')
                n0 = len(vm.q)
                for j in range(36): wunit_load(vm, j, vWoff, cfg.wq_flags)
                if idx != sp[-1]: del vm.q[n0:]
                a(f'{Ls}:')
            if idx == sp[-1]: break
            if idx % 4 == 0: a('s_waitcnt vmcnt(54)')
            if idx == cfg.wopf_at and cfg.dma_mode == 3: wo_pf()
            issue(stream[idx])
        pos = sp[-1] + 36
        vm.limit = 63; vm.done = max(0, len(vm.q) - 60)
    while pos < min(56 - 6 * cfg.wqpf, len(order)):
        issue(order[pos]); pos += 1
    if cfg.dma_mode == 3 and not cfg.stag: wo_pf()
    stamp(1)
    mk_srd(S_WS, P_WS, None, WS_USED); mk_srd(S_DBG, P_DBG, None, 256)
    a(f's_mul_i32 s6, s{sH}, 147456'); mk_srd(S_WO, P_WO, 's6', 147456)
    mk_masks(vLane, MASK, SEL, t0, t1)
    a(f'v_mov_b32 {vr(vC)}, {f2u(SCALE):#x}')
    a(f'v_mov_b32 {vr(P+NT-1)}, 0xff800000')
    mk_wo_tr_addr(vLane, vT, t0, t1, True)
    a(f's_lshl_b32 s{sSt}, s{sSt}, 6'); a(f's_add_u32 s{sSt}, s{sSt}, {AST}')
    a(f's_mov_b64 s[{sMk}:{sMk+1}], 0')
    a(f's_cmp_ge_u32 s{sRank}, 2'); a(f's_cselect_b32 s{sMk+2}, 0x22222222, 0'); a(f's_mov_b32 s{sMk+3}, s{sMk+2}')
    for j in (2, 3):
        a(f's_mov_b32 s{sMk+2*j}, {0x11111111 << j:#x}'); a(f's_mov_b32 s{sMk+2*j+1}, s{sMk+2*j}')
    a(f'v_bfe_u32 {vr(t0)}, {vr(vLane)}, 4, 1')
    a(f's_lshl_b32 s6, s{sPair}, 7'); a(f's_lshl_b32 s7, s{sH}, 1'); a('s_add_u32 s6, s6, s7'); a(f's_add_u32 s6, s6, s{sJJ}')
    a(f'v_mul_u32_u24 {vr(t1)}, 63, {vr(t0)}'); a(f'v_add_u32 {vr(t1)}, s6, {vr(t1)}')
    a(f'v_mul_u32_u24 {vr(vY)}, 2304, {vr(t1)}'); a(f'v_add_u32 {vr(vY)}, {YA}, {vr(vY)}')
    a(f'v_sub_u32 {vr(t1)}, s{sJJ}, {vr(t0)}')
    a(f'v_cmp_lt_u32 vcc, 1, {vr(t1)}')
    a(f'v_mov_b32 {vr(t1)}, {OOB}')
    a(f'v_cndmask_b32 {vr(vY)}, {vr(vY)}, {vr(t1)}, vcc')
    a(f's_mul_i32 s6, s{sW}, 576')
    a(f'v_add_u32 {vr(vY)}, s6, {vr(vY)}')
    a(f'v_and_b32 {vr(M)}, 3, {vr(vLane)}'); a(f'v_bfe_u32 {vr(M2)}, {vr(vLane)}, 2, 2')
    a(f'v_lshl_add_u32 {vr(M)}, {vr(M)}, 2, {vr(M2)}'); a(f'v_lshl_add_u32 {vr(vY8)}, {vr(M)}, 2, {vr(vY)}')
    a(f'v_and_b32 {vr(M)}, 15, {vr(vLane)}'); a(f'v_lshrrev_b32 {vr(M2)}, 5, {vr(vLane)}')
    a(f'v_lshl_add_u32 {vr(M)}, {vr(M2)}, 4, {vr(M)}'); a(f'v_lshl_add_u32 {vr(vY)}, {vr(M)}, 4, {vr(vY)}')
    for r in range(4):
        a(f's_lshl_b32 s6, s{sJJ}, 2'); a(f's_add_u32 s6, s6, {r}'); a('s_cmp_ge_u32 s6, 6'); a('s_cselect_b32 s6, 1, 0')
        a(f'v_cmp_eq_u32 vcc, s6, {vr(t0)}')
        a(f'v_cndmask_b32 {vr(F+r)}, 0, 1.0, vcc')
    a(f'v_cmp_gt_u32 vcc, 32, {vr(vLane)}')
    for r in range(4):
        a(f'v_cndmask_b32 {vr(G+r)}, 0, {vr(F+r)}, vcc'); a(f'v_cndmask_b32 {vr(G+4+r)}, {vr(F+r)}, 0, vcc')
    a(f'v_and_b32 {vr(M)}, 15, {vr(vLane)}'); a(f'v_lshlrev_b32 {vr(M)}, 4, {vr(M)}')
    a(f'v_lshl_add_u32 {vr(vOw)}, {vr(t0)}, 3, {vr(M)}')
    a(f's_lshl_b32 s6, s{sW}, 8'); a(f's_add_u32 s6, s6, {OT}'); a(f'v_add_u32 {vr(vOw)}, s6, {vr(vOw)}')
    a(f'v_and_b32 {vr(M)}, 3, {vr(vLane)}'); a(f'v_lshlrev_b32 {vr(M)}, 8, {vr(M)}')
    a(f'v_lshrrev_b32 {vr(M2)}, 4, {vr(vLane)}'); a(f'v_lshl_add_u32 {vr(vOr)}, {vr(M2)}, 4, {vr(M)}')
    a(f'v_add_u32 {vr(vOr)}, {OT}, {vr(vOr)}')
    a(f's_mul_i32 s{sD}, s{sW}, {4096 if cfg.dma_mode == 1 else 36864}')
    a(f's_mov_b32 s{sDn}, {(-cfg.dma_t0) & 0xffffffff:#x}'); a(f's_mov_b32 s{sTrip}, 0')
    if cfg.dma_mode == 3: a(f's_mul_i32 s{sDn}, s{sJJ if cfg.dgrp == 3 else sR}, {cfg.dstep}'); a(f's_add_u32 s{sDn}, s{sDn}, {cfg.dma_t0 - (0 if cfg.dgrp == 3 else 2 * cfg.dstep)}')
    a(f'v_and_b32 {vr(M)}, 15, {vr(vLane)}'); a(f'v_lshlrev_b32 {vr(M)}, 5, {vr(M)}')
    a(f'v_lshl_add_u32 {vr(M2)}, {vr(t0)}, 4, {vr(M)}')
    a(f'v_lshrrev_b32 {vr(t1)}, 5, {vr(vLane)}'); a(f'v_lshl_add_u32 {vr(M2)}, {vr(t1)}, 9, {vr(M2)}')
    a(f's_lshl_b32 s6, s{sW}, 10'); a(f's_add_u32 s6, s6, {QRED}'); a(f'v_add_u32 {vr(M2)}, s6, {vr(M2)}')
    a(f's_lshl_b32 s6, s{sBsel}, 9'); a(f's_add_u32 s6, s6, {QRED}'); a(f'v_add_u32 {vr(M)}, s6, {vr(M)}')
    for jj in range(36):
        while ('w', jj) not in vm.q:
            issue(order[pos]); pos += 1
        vm.wait(('w', jj))
        wunit_mfma(jj, [X], [ACC], SEL, PA)
        k = 0
        while pos < len(order) - cfg.vhold and vm.after(('w', jj)) < 60 and (k < 1 or order[pos][0] != 'v' or jj == 35 or cfg.wmix):
            issue(order[pos]); pos += 1; k += 1
    a(f'ds_write_b128 {vr(M2)}, {vr(ACC,4)}')
    while pos < len(order):
        issue(order[pos]); pos += 1
    a('s_waitcnt lgkmcnt(0)'); a('s_barrier')
    for w in range(4):
        a(f'ds_read_b128 {vr(D+8*w,4)}, {vr(M)} offset:{1024*w}')
        a(f'ds_read_b128 {vr(D+8*w+4,4)}, {vr(M)} offset:{1024*w+16}')
    for r in range(4): a(f'v_mov_b32 {vr(ACC+r)}, 0')
    a('s_waitcnt lgkmcnt(0)')
    for e in range(8):
        a(f'v_add_f32 {vr(D+e)}, {vr(D+e)}, {vr(D+8+e)}'); a(f'v_add_f32 {vr(D+16+e)}, {vr(D+16+e)}, {vr(D+24+e)}')
    for e in range(8): a(f'v_add_f32 {vr(D+e)}, {vr(D+e)}, {vr(D+16+e)}')
    for k in range(4): a(f'v_cvt_pk_bf16_f32 {vr(Q+k)}, {vr(D+2*k)}, {vr(D+2*k+1)}')
    stamp(2)
    NW = 4 * R - 4
    def dma(s):
        if (s % 4) not in {1: (0,), 2: (0, 2), 3: (0, 1, 2), 4: (0, 1, 2, 3)}[cfg.dma_per]: return
        Ls = lab('nodma')
        if cfg.dma_mode == 3:
            if s % 4: return
            a(f's_cmp_lg_u32 s{sDn}, s{sTrip}'); a(f's_cbranch_scc1 {Ls}')
            a('s_waitcnt vmcnt(24)')
            for k in range(9):
                a(f's_mov_b32 m0, s{sD}')
                for u in range(4):
                    a(f'buffer_load_dwordx4 {vr(vL16)}, {srd(S_WO)}, s{sD} offen offset:{1024*u} {cfg.wo_flags} lds')
                a(f's_add_u32 s{sD}, s{sD}, 4096')
            a(f'{Ls}:')
            return
        if cfg.dma_mode:
            if s % 4: return
            a(f's_cmp_ge_u32 s{sDn}, {0 if cfg.nodma else 36}'); a(f's_cbranch_scc1 {Ls}')
            for u in range(4):
                a(f's_add_u32 m0, s{sD}, {1024*u}') if cfg.dma_mode == 9 else None
                if u == 0: a(f's_mov_b32 m0, s{sD}')
                a(f'buffer_load_dwordx4 {vr(vL16)}, {srd(S_WO)}, s{sD} offen offset:{1024*u} {cfg.wo_flags} lds')
            a(f's_add_u32 s{sD}, s{sD}, {16384 if cfg.dma_mode == 1 else 4096}')
            a(f'{Ls}:')
            a(f's_add_u32 s{sDn}, s{sDn}, 4')
            return
        a(f's_cmp_ge_u32 s{sDn}, {0 if cfg.nodma else 36}'); a(f's_cbranch_scc1 {Ls}')
        a(f's_mov_b32 m0, s{sD}')
        a(f'buffer_load_dwordx4 {vr(vL16)}, {srd(S_WO)}, s{sD} offen {cfg.wo_flags} lds')
        a(f's_add_u32 s{sD}, s{sD}, 1024')
        a(f'{Ls}:')
        a(f's_add_u32 s{sDn}, s{sDn}, 1')
    def shiftP():
        for k in range(NT - 1): a(f'v_mov_b32 {vr(P+k)}, {vr(P+k+1)}')
    dma_end = -(-(cfg.dma_t0 + 36) // cfg.dma_per) * 4
    if cfg.dma_mode == 3:
        dma_end = 4 * (cfg.dma_t0 + (cfg.dgrp - 1) * cfg.dstep) + 1
        assert dma_end <= 4 * NT
    assert dma_end + R <= 4 * NT + cfg.ev_slot - V0
    a(f's_add_u32 s{sBeg}, s{sBeg}, {V0*STEP}')
    a('K_loop:')
    for s in range(R):
        K = KR + 16 * s; j = s % 4
        if j == 0:
            if (NT - RT) % RT == s // 4:
                a(f's_cmp_eq_u32 s{sTrip}, {NT-RT}')
                a(f's_cselect_b32 s{S_K}, s{S_V}, s{S_K}'); a(f's_cselect_b32 s{S_K+1}, s{S_V+1}, s{S_K+1}')
                a(f's_cselect_b32 s{sReal}, s{sBeg}, s{sReal}'); a(f's_min_u32 s{sOff}, s{sReal}, {OOB}')
            if (NT - RT - 1) % RT == s // 4:
                Ls = lab('c0')
                a(f's_cmp_lg_u32 s{sTrip}, {NT-RT-1}'); a(f's_cbranch_scc1 {Ls}')
                a(f'buffer_load_dword {vr(vC0)}, off, {srd(S_DBG)}, 0 offset:{C0} sc1')
                a(f'{Ls}:')
        a(f's_waitcnt vmcnt({NW})')
        for k in range(4):
            for u in range(4):
                c = '0' if k == 0 else vr(T + u)
                a(f'v_dot2_f32_bf16 {vr(T+u)}, {vr(K+4*u+k)}, {vr(Q+k)}, {c}')
        for u in range(4):
            if cfg.vck: a(f's_waitcnt vmcnt({cfg.vck-1})')
            a(ring_ld(s, u))
        adv(); dma(s)
        reduce4(T, XX, S)
        a(f'v_cndmask_b32 {vr(P+NT-1)}, {vr(P+NT-1)}, {vr(S)}, s[{sMk+2*j}:{sMk+2*j+1}]')
        if j == 3:
            if cfg.trips:
                a('s_memrealtime s[100:101]'); a('s_waitcnt lgkmcnt(0)'); a(f's_mov_b32 m0, s{sTrip}'); a(f'v_writelane_b32 {vr(vTS)}, s100, m0')
            a(f's_add_u32 s{sTrip}, s{sTrip}, 1')
            if (NT - 1) % RT == s // 4:
                a(f's_cmp_eq_u32 s{sTrip}, {NT}'); a('s_cbranch_scc1 A_mid')
            shiftP()
            if s == 3:
                a(f's_lshr_b64 s[{sMk}:{sMk+1}], s[{sMk+4}:{sMk+5}], 2'); a(f's_lshr_b64 s[{sMk+2}:{sMk+3}], s[{sMk+4}:{sMk+5}], 1')
    a('s_branch K_loop')
    a('A_mid:')
    stamp(5)
    a(f'v_max3_f32 {vr(M)}, {vr(P)}, {vr(P+1)}, {vr(P+2)}')
    for k in range(3, NT, 2): a(f'v_max3_f32 {vr(M)}, {vr(M)}, {vr(P+k)}, {vr(P+k+1)}')
    for sh in (8, 4, 2, 1): a(f'v_max_f32_dpp {vr(M)}, {vr(M)}, {vr(M)} row_ror:{sh} {DPPF}')
    allred_rows(M, M2, 'v_max_f32')
    a(f'v_mul_f32 {vr(XX)}, {vr(M)}, {vr(vC)}')
    for k in range(NT): a(f'v_fma_f32 {vr(P+k)}, {vr(P+k)}, {vr(vC)}, -{vr(XX)}')
    for k in range(NT): a(f'v_exp_f32 {vr(P+k)}, {vr(P+k)}')
    a(f'v_add_f32 {vr(M)}, {vr(P)}, {vr(P+1)}')
    for k in range(2, NT): a(f'v_add_f32 {vr(M)}, {vr(M)}, {vr(P+k)}')
    for k in range(NT): a(f'v_cvt_pk_bf16_f32 {vr(P+k)}, {vr(P+k)}, {vr(P+k)}')
    for sh in (8, 4, 2, 1): a(f'v_add_f32_dpp {vr(M)}, {vr(M)}, {vr(M)} row_ror:{sh} {DPPF}')
    allred_rows(M, M2, 'v_add_f32')
    a(f'v_min_u32 {vr(XX)}, -2, {vr(XX)}'); a(f'v_min_u32 {vr(XX+1)}, -2, {vr(M)}')
    if not cfg.noB: ensure(C0, C0N, vC0)
    a(f's_lshl_b32 s6, s{sRank}, 3'); a(f's_add_u32 s6, s6, s{sSt}')
    a('s_mov_b64 exec, 1')
    a(f'buffer_store_dwordx2 {vr(XX,2)}, off, {srd(S_WS)}, s6 sc1')
    a('s_mov_b64 exec, -1')
    ST = X
    def st_loads():
        for k in range(3): a(f'buffer_load_dwordx4 {vr(ST+4*k,4)}, off, {srd(S_WS)}, s{sSt} offset:{16*k} sc1')
    def pa(i):
        for u in range(4):
            for r in range(4):
                a(f'v_and_b32_dpp {vr(PA+4*u+r)}, {vr(P+i//4)}, {vr(MASK+r)} row_newbcast:{4*u+i%4} {DPPF}')
    extra = list(range(1, NPV + 1)); frags = wo_frag_list(4, vT)
    assert cfg.st_slot + R < 4 * NT
    for i in range(V0, 4 * NT):
        n = i - V0; s = (4 * NT + n) % R; K = KR + 16 * s
        if i == cfg.st_slot: st_loads()
        if i == cfg.st_slot + R: a('s_branch A_ev2'); a('A_ev2_ret:'); a('s_nop 1')
        pa(i)
        a(f's_waitcnt vmcnt({min(NW, 4*(4*NT-1-i))})')
        for u in range(4):
            a(f'v_mfma_f32_16x16x32_bf16 {vr(ACC,4)}, {vr(PA+4*u,4)}, {vr(K+4*u,4)}, {vr(ACC,4)}')
        if i % 4 == 3 and cfg.trips:
            a('s_memrealtime s[100:101]'); a('s_waitcnt lgkmcnt(0)'); a(f'v_writelane_b32 {vr(vTS)}, s100, {NT + n//4}')
        if i + R < 4 * NT:
            for u in range(4):
                vc = cfg.vck if i < cfg.vsw else cfg.vcv
                if vc: a(f's_waitcnt vmcnt({vc-1})')
                a(ring_ld(s, u))
            adv()
        else: a('s_nop 3')
        if 4 * NT + n < dma_end: dma(n)
        if i == cfg.ev_slot - 1: a('s_barrier')
        if i >= cfg.ev_slot - 1:
            for t in frags[:cfg.ev_per]: a(t)
            del frags[:cfg.ev_per]
        if extra and n % 4 == 1:
            e = extra.pop(0)
            pa(e)
            for u in range(4):
                a(f'v_mfma_f32_16x16x32_bf16 {vr(ACC,4)}, {vr(PA+4*u,4)}, {ar(avs(e)+4*u,4)}, {vr(ACC,4)}')
            a('s_nop 3')
    assert not extra and not frags
    a('s_branch A_tail')
    a('A_ev2:')
    a(f's_mov_b32 s7, {cfg.spin_max}')
    a('A_ev2_chk:')
    umax_tree(M, range(ST, ST + 12))
    a(f'v_cmp_eq_u32 vcc, -1, {vr(M)}')
    a('s_cbranch_vccz A_ev2_ok')
    st_loads()
    a('s_waitcnt vmcnt(0)')
    a('s_sub_u32 s7, s7, 1'); a('s_cmp_lg_u32 s7, 0'); a('s_cbranch_scc1 A_ev2_chk')
    a('A_ev2_ok:')
    a(f'v_max3_f32 {vr(M)}, {vr(ST)}, {vr(ST+2)}, {vr(ST+4)}'); a(f'v_max3_f32 {vr(M2)}, {vr(ST+6)}, {vr(ST+8)}, {vr(ST+10)}')
    a(f'v_max_f32 {vr(M)}, {vr(M)}, {vr(M2)}')
    for k in range(6): a(f'v_sub_f32 {vr(ST+2*k)}, {vr(ST+2*k)}, {vr(M)}')
    a(f'v_sub_f32 {vr(fN)}, {vr(XX)}, {vr(M)}')
    for k in range(6): a(f'v_exp_f32 {vr(ST+2*k)}, {vr(ST+2*k)}')
    a(f'v_exp_f32 {vr(fN)}, {vr(fN)}')
    a(f'v_mul_f32 {vr(M)}, {vr(ST)}, {vr(ST+1)}')
    for k in range(1, 6): a(f'v_fma_f32 {vr(M)}, {vr(ST+2*k)}, {vr(ST+2*k+1)}, {vr(M)}')
    a(f'v_rcp_f32 {vr(M)}, {vr(M)}')
    a(f'v_mul_f32 {vr(fN)}, {vr(fN)}, {vr(M)}')
    a('s_branch A_ev2_ret')
    a('A_tail:')
    stamp(3)
    a('s_nop 4')
    for r in range(4): a(f'v_mul_f32 {vr(ACC+r)}, {vr(ACC+r)}, {vr(fN)}')
    a(f'v_cvt_pk_bf16_f32 {vr(T)}, {vr(ACC)}, {vr(ACC+1)}'); a(f'v_cvt_pk_bf16_f32 {vr(T+1)}, {vr(ACC+2)}, {vr(ACC+3)}')
    a(f'ds_write_b64 {vr(vOw)}, {vr(T,2)}')
    a('s_waitcnt lgkmcnt(0)'); a('s_barrier')
    for ks in range(4): a(f'ds_read_b128 {ar(4*ks,4)}, {vr(vOr)} offset:{64*ks}')
    a('s_waitcnt lgkmcnt(0)')
    def tile(t):
        for ks in range(4):
            c = '0' if ks == 0 else vr(D + 4 * t, 4)
            a(f'v_mfma_f32_16x16x32_bf16 {vr(D+4*t,4)}, {ar(4*ks,4)}, {ar(AW+4*(t*4+ks),4)}, {c}')
    def comb(j, t, first):
        g = G + (4 if t >= 4 else 0)
        for r in range(4):
            if first and r == 0: a(f'v_mul_f32 {vr(O+j)}, {vr(g)}, {vr(D+4*t)}')
            else: a(f'v_fma_f32 {vr(O+j)}, {vr(g+r)}, {vr(D+4*t+r)}, {vr(O+j)}')
    tile(8); tile(0); tile(1)
    a(f'v_mul_f32 {vr(O+4)}, {vr(F)}, {vr(D+32)}')
    for r in range(1, 4): a(f'v_fma_f32 {vr(O+4)}, {vr(F+r)}, {vr(D+32+r)}, {vr(O+4)}')
    tile(2)
    a(f'v_min_u32 {vr(O+4)}, -2, {vr(O+4)}')
    a('s_mov_b64 exec, 0xffffffff')
    a(f'buffer_store_dword {vr(O+4)}, {vr(vY8)}, {srd(S_WS)}, 0 offen offset:512 sc1')
    a('s_mov_b64 exec, -1')
    comb(0, 0, True)
    tile(3); comb(1, 1, True)
    tile(4); comb(2, 2, True)
    tile(5); comb(3, 3, True)
    tile(6); comb(0, 4, False)
    tile(7); comb(1, 5, False); comb(2, 6, False)
    for j in range(3): a(f'v_min_u32 {vr(O+j)}, -2, {vr(O+j)}')
    comb(3, 7, False)
    a(f'v_min_u32 {vr(O+3)}, -2, {vr(O+3)}')
    a(f'buffer_store_dwordx4 {vr(O,4)}, {vr(vY)}, {srd(S_WS)}, 0 offen sc1')
    stamp(4)
    stamp_flush(M, 'A')
    if cfg.trips:
        a(f's_lshl_b32 s6, s2, 2'); a(f's_add_u32 s6, s6, s{sW}'); a('s_lshl_b32 s6, s6, 8'); a(f's_add_u32 s6, s6, {STAMP + 0x100000}')
        a(f'v_lshlrev_b32 {vr(M)}, 2, {vr(vLane)}')
        a(f'buffer_store_dword {vr(vTS)}, {vr(M)}, {srd(S_WS)}, s6 offen')
    a('s_endpgm')

def gen_B():
    V = VAlloc(1)
    vLane = V(); vL16 = V(); vWoff = V(); vXoff = V(); t0 = V(); t1 = V(); t2 = V(); vI = V(); vG = V(); vL16x = V(); vC0 = V()
    base = V.n
    sHalf, sBeta, sB2, sCh, sM0, sSo = 8, 9, 10, 11, 12, 13
    CROW = 1088; CB = 64 * CROW
    QROW = 1056; SQ = 2 * CB; QRED = SQ
    PB = SQ + 16 * QROW; MX = PB + 4096; LS = MX + 512
    assert LS + 512 <= LDS_TOTAL
    fl = cfg.b_flags
    a('B_role:')
    if cfg.noB: a('s_endpgm')
    a(f's_mov_b32 s{sHalf}, s{sR}')
    a(f's_lshl_b32 s{sBeta}, s{sH}, 1'); a(f's_add_u32 s{sBeta}, s{sBeta}, s{sHalf}')
    a(f's_lshr_b32 s{sB2}, s{sBeta}, 4'); a(f's_and_b32 s{sCh}, s{sBeta}, 15')
    a(f'v_and_b32 {vr(vLane)}, 63, v0'); a(f'v_lshlrev_b32 {vr(vL16)}, 4, {vr(vLane)}')
    a(f'v_lshrrev_b32 {vr(vG)}, 4, {vr(vLane)}'); a(f'v_and_b32 {vr(vI)}, 15, {vr(vLane)}')
    if cfg.warm & 2: warm_code('B_role', 'B_end', vLane, t0, t1)
    a('s_waitcnt lgkmcnt(0)')
    a(f's_mul_i32 s6, s{sW}, 288'); a('s_sub_u32 s7, 4608, s6'); mk_srd(S_X, P_BX, 's6', 's7')
    a(f's_mul_i32 s6, s{sW}, {144*8192}'); a(f's_lshl_b32 s7, s{sH}, 8'); a('s_add_u32 s6, s6, s7')
    a(f's_sub_u32 s7, {576*8192}, s6'); mk_srd(S_W, P_BWQ, 's6', 's7')
    a(f's_lshl_b32 s6, s{sHalf}, 2'); a(f's_add_u32 s6, s6, s{sW}'); a('s_lshl_b32 s6, s6, 19')
    a(f's_lshl_b32 s7, s{sH}, 8'); a('s_add_u32 s6, s6, s7'); a(f's_sub_u32 s7, {512*8192}, s6')
    mk_srd(S_U, P_WUK, 's6', 's7')
    if cfg.cwin == 0:
        a(f's_lshl_b32 s6, s{sBeta}, 18'); mk_srd(S_K, P_CKV, 's6', 0x40000)
    else:
        a(f's_lshl_b32 s6, s{sB2}, 22'); mk_srd(S_K, P_CKV, 's6', 0x400000)
    for bit, R in ((1, S_W), (2, S_U), (4, S_K)):
        if cfg.bskip & bit: a(f's_mov_b32 s{R+2}, 0')
    MASK = V(4); SEL = V(8); X0 = V(18); X1 = V(18); PA = V(16, 4); AC0 = V(4, 4); AC1 = V(4, 4)
    UK = V(64, 4); QB = V(16); T = V(4); XX = V(2); U = V(16, 4); D = V(32, 4); vUoff = V()
    a(f'v_mul_u32_u24 {vr(vWoff)}, {36*8192}, {vr(vG)}'); a(f'v_lshl_add_u32 {vr(vWoff)}, {vr(vI)}, 4, {vr(vWoff)}')
    a(f'v_mul_u32_u24 {vr(vXoff)}, 72, {vr(vG)}'); a(f'v_lshrrev_b32 {vr(t1)}, 3, {vr(vI)}')
    a(f'v_mul_u32_u24 {vr(t1)}, 1152, {vr(t1)}'); a(f'v_add_u32 {vr(vXoff)}, {vr(vXoff)}, {vr(t1)}')
    a(f'v_lshlrev_b32 {vr(vUoff)}, 17, {vr(vG)}'); a(f'v_lshl_add_u32 {vr(vUoff)}, {vr(vI)}, 4, {vr(vUoff)}')
    a(f'v_xor_b32 {vr(vL16x)}, 32, {vr(vL16)}')
    mk_srd(S_WS, P_WS, None, WS_USED)
    vm = VM(a, 49)
    x_loads(vm, X0, vXoff, 0); x_loads(vm, X1, vXoff, 2304)
    Lc, Lc1 = lab('noclr'), lab('clr1')
    a(f's_cmp_ge_u32 s{sW}, 2'); a(f's_cbranch_scc1 {Lc}')
    for r in range(4): a(f'v_mov_b32 {vr(D+r)}, -1')
    a(f's_cmp_eq_u32 s{sW}, 1'); a(f's_cbranch_scc1 {Lc1}')
    a(f'v_lshrrev_b32 {vr(t0)}, 5, {vr(vLane)}'); a(f'v_lshlrev_b32 {vr(t0)}, 15, {vr(t0)}')
    a(f'v_and_b32 {vr(t1)}, 31, {vr(vLane)}'); a(f'v_lshl_add_u32 {vr(t0)}, {vr(t1)}, 4, {vr(t0)}')
    a(f's_lshl_b32 s6, s{sBeta}, 9'); a(f's_add_u32 s7, s6, {QABS + 65536}'); a(f's_add_u32 s6, s6, {QABS}')
    a(f'buffer_store_dwordx4 {vr(D,4)}, {vr(t0)}, {srd(S_WS)}, s6 offen sc1')
    a(f'buffer_store_dwordx4 {vr(D,4)}, {vr(t0)}, {srd(S_WS)}, s7 offen sc1')
    a(f's_add_u32 s6, s6, {PSTAT - QABS}')
    a('s_mov_b64 exec, 0xffffffff')
    a(f'buffer_store_dwordx4 {vr(D,4)}, {vr(vL16)}, {srd(S_WS)}, s6 offen sc1')
    a(f's_lshl_b32 s6, s{sBeta}, 7'); a(f's_add_u32 s6, s6, {AST}')
    a('s_mov_b64 exec, 0xff')
    a(f'buffer_store_dwordx4 {vr(D,4)}, {vr(vL16)}, {srd(S_WS)}, s6 offen sc1')
    a('s_mov_b64 exec, -1')
    a(f'{Lc1}:')
    a(f's_mul_i32 s6, s{sBeta}, 9216'); a(f's_mul_i32 s7, s{sW}, {YB - YA}'); a('s_add_u32 s6, s6, s7'); a(f's_add_u32 s6, s6, {YA}')
    for k in range(9):
        if k in (4, 8): a('s_add_u32 s6, s6, 4096')
        a(f'buffer_store_dwordx4 {vr(D,4)}, {vr(vL16)}, {srd(S_WS)}, s6 offen offset:{1024*(k&3)} sc1')
    a(f'{Lc}:')
    for jj in range(36): wunit_load(vm, jj, vWoff, cfg.wq_flags)
    def uk_load(u):
        a(f's_mov_b32 s6, {u*8192}')
        vm.issue(f'buffer_load_dwordx4 {vr(UK+4*u,4)}, {vr(vUoff)}, {srd(S_U)}, s6 offen {fl}', ('u', u))
    for u in range(3): uk_load(u)
    mk_srd(S_DBG, P_DBG, None, 256); mk_srd(S_OUT, P_OUT, None, 9216)
    mk_masks(vLane, MASK, SEL, t0, t1)
    def coff(rho, k):
        if cfg.cwin == 0: return (64 * rho + k) * 1024
        if cfg.cwin == 1: return (1024 * rho + k) * 1024
        return (1024 * rho + 256 * (k >> 2) + (k & 3)) * 1024
    def c_dma(rho, k):
        a(f's_add_u32 m0, s{sM0}, {(rho&1)*CB + k*CROW}')
        a(f's_add_u32 s6, s{sSo}, {coff(rho, k)}')
        vm.issue(f'buffer_load_dwordx4 {vr(vL16x if k >= 8 else vL16)}, {srd(S_K)}, s6 offen {fl} lds', ('c', rho))
    def c_reg(rho, k):
        a(f's_add_u32 s6, s{sSo}, {coff(rho, k)}')
        vm.issue(f'buffer_load_dwordx4 {ar(64*rho+4*k,4)}, {vr(vL16x if k >= 8 else vL16)}, {srd(S_K)}, s6 offen {fl}', ('c', rho))
    a(f's_mul_i32 s{sM0}, s{sW}, {16*CROW}'); a(f's_lshl_b32 s{sSo}, s{sW}, 14')
    if cfg.cwin:
        a(f's_lshl_b32 s6, s{sCh}, 16'); a(f's_add_u32 s{sSo}, s{sSo}, s6')
        if cfg.cwin == 2: a(f's_lshr_b32 s{sSo}, s{sSo}, 2')
    dma = [(rho, k) for rho in range(2) for k in range(16)]
    for jj in range(36):
        vm.wait(('w', jj))
        if jj == 0:
            Ls = lab('sig0')
            a(f's_cmp_ge_u32 s{sW}, 2'); a(f's_cbranch_scc1 {Ls}')
            a(f'v_mov_b32 {vr(t2)}, 1'); a('s_mov_b64 exec, 1')
            a(f'buffer_atomic_add {vr(t2)}, off, {srd(S_DBG)}, 0 offset:{C0}')
            a('s_mov_b64 exec, -1')
            a(f'{Ls}:')
            vm.limit = 61
            for u in range(3, 16): uk_load(u)
        wunit_mfma(jj, [X0, X1], [AC0, AC1], SEL, PA)
        if jj == 28: vm.issue(f'buffer_load_dword {vr(vC0)}, off, {srd(S_DBG)}, 0 offset:{C0} sc1', 'c0')
        if dma: c_dma(*dma.pop(0))
    assert not dma
    a(f'v_lshlrev_b32 {vr(t0)}, 5, {vr(vI)}')
    a(f'v_and_b32 {vr(t1)}, 1, {vr(vG)}'); a(f'v_lshl_add_u32 {vr(t1)}, {vr(t1)}, 4, {vr(t0)}')
    a(f'v_lshrrev_b32 {vr(t2)}, 5, {vr(vLane)}'); a(f'v_lshl_add_u32 {vr(t1)}, {vr(t2)}, 9, {vr(t1)}')
    a(f's_lshl_b32 s6, s{sW}, 11'); a(f's_add_u32 s6, s6, {QRED}'); a(f'v_add_u32 {vr(t1)}, s6, {vr(t1)}')
    a(f'ds_write_b128 {vr(t1)}, {vr(AC0,4)}'); a(f'ds_write_b128 {vr(t1)}, {vr(AC1,4)} offset:1024')
    a(f'v_add_u32 {vr(t0)}, {QRED}, {vr(t0)}')
    a('s_waitcnt lgkmcnt(0)'); a('s_barrier')
    for b in range(4):
        for w in range(4):
            a(f'ds_read_b128 {vr(D+8*w,4)}, {vr(t0)} offset:{2048*w+512*b}')
            a(f'ds_read_b128 {vr(D+8*w+4,4)}, {vr(t0)} offset:{2048*w+512*b+16}')
        a('s_waitcnt lgkmcnt(0)')
        for e in range(8):
            a(f'v_add_f32 {vr(D+e)}, {vr(D+e)}, {vr(D+8+e)}'); a(f'v_add_f32 {vr(D+16+e)}, {vr(D+16+e)}, {vr(D+24+e)}')
        for e in range(8): a(f'v_add_f32 {vr(D+e)}, {vr(D+e)}, {vr(D+16+e)}')
        for k in range(4): a(f'v_cvt_pk_bf16_f32 {vr(QB+4*b+k)}, {vr(D+2*k)}, {vr(D+2*k+1)}')
    vm.wait(('u', 15))
    for u in range(16):
        for k in range(4):
            for b in range(4):
                c = '0' if k == 0 else vr(T + b)
                a(f'v_dot2_f32_bf16 {vr(T+b)}, {vr(UK+4*u+k)}, {vr(QB+4*b+k)}, {c}')
        reduce4(T, XX, U + u)
    for k in range(8): a(f'v_cvt_pk_bf16_f32 {vr(D+k)}, {vr(U+2*k)}, {vr(U+2*k+1)}')
    for k in range(8): a(f'v_min_u32 {vr(D+k)}, -2, {vr(D+k)}')
    a(f'v_bfe_u32 {vr(t0)}, {vr(vLane)}, 2, 2'); a(f'v_lshlrev_b32 {vr(t0)}, 15, {vr(t0)}')
    a(f'v_lshl_add_u32 {vr(t0)}, {vr(vG)}, 5, {vr(t0)}')
    a(f's_lshl_b32 s6, s{sH}, 10'); a(f's_lshl_b32 s7, s{sHalf}, 9'); a('s_add_u32 s6, s6, s7')
    a(f's_lshl_b32 s7, s{sW}, 7'); a('s_add_u32 s6, s6, s7'); a(f's_add_u32 s6, s6, {QABS}')
    a('s_mov_b32 exec_lo, 0x11111111'); a('s_mov_b32 exec_hi, 0x11111111')
    vm.issue(f'buffer_store_dwordx4 {vr(D,4)}, {vr(t0)}, {srd(S_WS)}, s6 offen sc1')
    vm.issue(f'buffer_store_dwordx4 {vr(D+4,4)}, {vr(t0)}, {srd(S_WS)}, s6 offen offset:16 sc1')
    a('s_mov_b64 exec, -1')
    stamp(1)
    vm.wait('c0')
    ensure(C0, C0N, vC0)
    stamp(2)
    if cfg.bstop == 1: a('s_branch B_end')
    V = VAlloc(base)
    ACC = V(64, 4); S = V(8, 4); CF = V(64, 4); PF = V(16, 4); MXR = V(12, 4)
    mQ = V(2); mP = V(); lQ = V(2); aQ = V(2); aP = V(); vC = V(); PK = V(4, 2); Mx = V(2); tt = V()
    vA = V(2); vTr = V(2); vMw = V(); vMr = V(); vMp = V(); vPw = V(); vPr = V(); vQ = V(); vQw = V(); vCw = V(2)
    sQ = 14
    a(f's_lshl_b32 s{sQ}, s{sB2}, 15'); a(f's_lshl_b32 s6, s{sW}, 12'); a(f's_add_u32 s{sQ}, s{sQ}, s6'); a(f's_add_u32 s{sQ}, s{sQ}, {QABS}')
    a(f's_add_u32 s{sQ+1}, s{sQ}, 16384')
    def q_loads(iss):
        for nt in range(2):
            for k in range(4):
                iss(f'buffer_load_dwordx4 {vr(CF+16*nt+4*k,4)}, {vr(vL16)}, {srd(S_WS)}, s{sQ+nt} offen offset:{1024*k} sc1')
    a('s_nop 1')
    q_loads(lambda t: vm.issue(t, 'q'))
    for rho in (2, 3):
        for k in range(16): c_reg(rho, k)
    a(f's_lshl_b32 s6, s{sW}, 4'); a(f'v_add_u32 {vr(t0)}, s6, {vr(vI)}'); a(f'v_mul_u32_u24 {vr(t0)}, {CROW}, {vr(t0)}')
    a(f'v_lshrrev_b32 {vr(t1)}, 3, {vr(vI)}'); a(f'v_lshlrev_b32 {vr(t1)}, 1, {vr(t1)}'); a(f'v_xor_b32 {vr(t1)}, {vr(t1)}, {vr(vG)}')
    a(f'v_lshl_add_u32 {vr(vA)}, {vr(t1)}, 4, {vr(t0)}'); a(f'v_add_u32 {vr(vA+1)}, {CB}, {vr(vA)}')
    a(f'v_lshrrev_b32 {vr(t0)}, 5, {vr(vLane)}'); a(f'v_lshlrev_b32 {vr(t0)}, 3, {vr(t0)}')
    a(f'v_bfe_u32 {vr(t1)}, {vr(vLane)}, 2, 2'); a(f'v_add_u32 {vr(t0)}, {vr(t0)}, {vr(t1)}'); a(f'v_mul_u32_u24 {vr(t0)}, {CROW}, {vr(t0)}')
    a(f'v_lshrrev_b32 {vr(t1)}, 1, {vr(vG)}'); a(f'v_xor_b32 {vr(t1)}, {vr(t1)}, {vr(vG)}')
    a(f'v_and_b32 {vr(t1)}, 1, {vr(t1)}'); a(f'v_lshl_add_u32 {vr(t0)}, {vr(t1)}, 5, {vr(t0)}')
    a(f'v_and_b32 {vr(t1)}, 3, {vr(vLane)}'); a(f'v_lshl_add_u32 {vr(t0)}, {vr(t1)}, 3, {vr(t0)}')
    a(f's_lshl_b32 s6, s{sW}, 8'); a(f'v_add_u32 {vr(vTr)}, s6, {vr(t0)}'); a(f'v_add_u32 {vr(vTr+1)}, {CB}, {vr(vTr)}')
    a(f'v_lshlrev_b32 {vr(vMr)}, 4, {vr(vI)}'); a(f'v_add_u32 {vr(vMr)}, {MX}, {vr(vMr)}')
    a(f's_lshl_b32 s6, s{sW}, 2'); a(f'v_add_u32 {vr(vMw)}, s6, {vr(vMr)}')
    a(f'v_and_b32 {vr(t0)}, 31, {vr(vLane)}'); a(f'v_lshlrev_b32 {vr(vMp)}, 4, {vr(t0)}'); a(f'v_add_u32 {vr(vMp)}, {MX}, {vr(vMp)}')
    a(f'v_lshlrev_b32 {vr(vPr)}, 5, {vr(t0)}'); a(f'v_lshrrev_b32 {vr(t1)}, 5, {vr(vLane)}')
    a(f'v_lshl_add_u32 {vr(vPr)}, {vr(t1)}, 4, {vr(vPr)}'); a(f'v_add_u32 {vr(vPr)}, {PB}, {vr(vPr)}')
    a(f'v_lshlrev_b32 {vr(vPw)}, 5, {vr(vI)}'); a(f'v_lshl_add_u32 {vr(vPw)}, {vr(vG)}, 3, {vr(vPw)}')
    a(f's_lshl_b32 s6, s{sW}, 10'); a(f's_add_u32 s6, s6, {PB}'); a(f'v_add_u32 {vr(vPw)}, s6, {vr(vPw)}')
    a(f'v_mul_u32_u24 {vr(vQ)}, {QROW}, {vr(vI)}'); a(f'v_lshl_add_u32 {vr(vQ)}, {vr(vG)}, 4, {vr(vQ)}'); a(f'v_add_u32 {vr(vQ)}, {SQ}, {vr(vQ)}')
    a(f's_mul_i32 s6, s{sW}, {4*QROW}'); a(f's_add_u32 s6, s6, {SQ}'); a(f'v_add_u32 {vr(vQw)}, s6, {vr(vL16)}')
    a(f'v_add_u32 {vr(vCw)}, s{sM0}, {vr(vL16)}'); a(f'v_add_u32 {vr(vCw+1)}, {CB}, {vr(vCw)}')
    a(f'v_mov_b32 {vr(vC)}, {f2u(SCALE):#x}')
    for r in (mQ, mQ + 1, mP): a(f'v_mov_b32 {vr(r)}, 0xff800000')
    a(f'v_mov_b32 {vr(lQ)}, 0'); a(f'v_mov_b32 {vr(lQ+1)}, 0')
    vm.wait('q')
    a(f's_mov_b32 s7, {cfg.spin_max}')
    a('Q_chk:')
    umax_tree(tt, range(CF, CF + 32))
    a(f'v_cmp_eq_u32 vcc, -1, {vr(tt)}')
    a('s_cbranch_vccz Q_ok')
    a(f's_sleep {cfg.qsleep}')
    q_loads(a)
    a('s_waitcnt vmcnt(0)')
    a('s_sub_u32 s7, s7, 1'); a('s_cmp_lg_u32 s7, 0'); a('s_cbranch_scc1 Q_chk')
    a('Q_ok:')
    stamp(3)
    for nt in range(2):
        a('s_barrier')
        for k in range(4): a(f'ds_write_b128 {vr(vQw)}, {vr(CF+16*nt+4*k,4)} offset:{QROW*k}')
        a('s_waitcnt lgkmcnt(0)'); a('s_barrier')
        for ks in range(16): a(f'ds_read_b128 {ar(64*nt+4*ks,4)}, {vr(vQ)} offset:{64*ks}')
        a('s_waitcnt lgkmcnt(0)')
    for rho in range(4):
        par = rho & 1
        for ks in range(16):
            a(f'ds_read_b128 {vr(CF+4*ks,4)}, {vr(vA+par)} offset:{64*ks}')
        for ks in range(16):
            a(f's_waitcnt lgkmcnt({15-ks})')
            for nt in range(2):
                c = '0' if ks == 0 else vr(S + 4 * nt, 4)
                a(f'v_mfma_f32_16x16x32_bf16 {vr(S+4*nt,4)}, {vr(CF+4*ks,4)}, {ar(64*nt+4*ks,4)}, {c}')
        for nt in range(2):
            a(f'v_max_f32 {vr(Mx+nt)}, {vr(S+4*nt)}, {vr(S+4*nt+1)}')
            a(f'v_max3_f32 {vr(Mx+nt)}, {vr(Mx+nt)}, {vr(S+4*nt+2)}, {vr(S+4*nt+3)}')
            allred_rows(Mx + nt, tt, 'v_max_f32')
            a(f'ds_write_b32 {vr(vMw)}, {vr(Mx+nt)} offset:{256*nt}')
        a('s_waitcnt lgkmcnt(0)'); a('s_barrier')
        a(f'ds_read_b128 {vr(MXR,4)}, {vr(vMr)}'); a(f'ds_read_b128 {vr(MXR+4,4)}, {vr(vMr)} offset:256'); a(f'ds_read_b128 {vr(MXR+8,4)}, {vr(vMp)}')
        if 1 <= rho <= 2:
            vm.wait(('c', rho + 1))
            for k in range(16): a(f'ds_write_b128 {vr(vCw+1-par)}, {ar(64*(rho+1)+4*k,4)} offset:{k*CROW}')
            a('s_waitcnt lgkmcnt(15)')
        else:
            a('s_waitcnt lgkmcnt(0)')
        for i, (m, al) in enumerate(((mQ, aQ), (mQ + 1, aQ + 1), (mP, aP))):
            R = MXR + 4 * i
            a(f'v_max_f32 {vr(R)}, {vr(R)}, {vr(R+1)}'); a(f'v_max3_f32 {vr(R)}, {vr(R)}, {vr(R+2)}, {vr(R+3)}')
            a(f'v_mul_f32 {vr(R)}, {vr(R)}, {vr(vC)}'); a(f'v_max_f32 {vr(R)}, {vr(R)}, {vr(m)}')
            a(f'v_sub_f32 {vr(al)}, {vr(m)}, {vr(R)}'); a(f'v_exp_f32 {vr(al)}, {vr(al)}'); a(f'v_mov_b32 {vr(m)}, {vr(R)}')
        for nt in range(2):
            for r in range(4):
                a(f'v_fma_f32 {vr(S+4*nt+r)}, {vr(S+4*nt+r)}, {vr(vC)}, -{vr(mQ+nt)}')
            for r in range(4): a(f'v_exp_f32 {vr(S+4*nt+r)}, {vr(S+4*nt+r)}')
            a(f'v_mul_f32 {vr(lQ+nt)}, {vr(lQ+nt)}, {vr(aQ+nt)}')
            a(f'v_cvt_pk_bf16_f32 {vr(PK+2*nt)}, {vr(S+4*nt)}, {vr(S+4*nt+1)}'); a(f'v_cvt_pk_bf16_f32 {vr(PK+2*nt+1)}, {vr(S+4*nt+2)}, {vr(S+4*nt+3)}')
            a(f'ds_write_b64 {vr(vPw)}, {vr(PK+2*nt,2)} offset:{512*nt}')
            for r in range(4): a(f'v_add_f32 {vr(lQ+nt)}, {vr(lQ+nt)}, {vr(S+4*nt+r)}')
        if rho > 0:
            for r in range(64): a(f'v_mul_f32 {vr(ACC+r)}, {vr(ACC+r)}, {vr(aP)}')
        a('s_waitcnt lgkmcnt(0)'); a('s_barrier')
        for ks in range(4): a(f'ds_read_b128 {vr(PF+4*ks,4)}, {vr(vPr)} offset:{1024*ks}')
        for ks in range(4):
            for ct in range(4):
                for sec in range(2):
                    a(f'ds_read_b64_tr_b16 {vr(CF+16*ks+4*ct+2*sec,2)}, {vr(vTr+par)} offset:{(16*ks+4*sec)*CROW + 64*ct}')
        for ks in range(4):
            a(f's_waitcnt lgkmcnt({min(15, 8*(3-ks))})')
            for ct in range(4):
                c = '0' if (rho == 0 and ks == 0) else vr(ACC + 16 * ct, 16)
                a(f'v_mfma_f32_32x32x16_bf16 {vr(ACC+16*ct,16)}, {vr(CF+16*ks+4*ct,4)}, {vr(PF+4*ks,4)}, {c}')
    stamp(4)
    for nt in range(2):
        allred_rows(lQ + nt, tt, 'v_add_f32')
        a(f'ds_write_b32 {vr(vMw)}, {vr(lQ+nt)} offset:{512+256*nt}')
    TROW = 1040
    a(f'v_and_b32 {vr(t0)}, 31, {vr(vLane)}'); a(f'v_mul_u32_u24 {vr(t0)}, {TROW}, {vr(t0)}')
    a(f'v_lshrrev_b32 {vr(t1)}, 5, {vr(vLane)}'); a(f'v_lshl_add_u32 {vr(t0)}, {vr(t1)}, 3, {vr(t0)}')
    a(f's_lshl_b32 s6, s{sW}, 8'); a(f'v_add_u32 {vr(t0)}, s6, {vr(t0)}')
    for ct in range(4):
        for rq in range(4):
            R = ACC + 16 * ct + 4 * rq; P = CF + 2 * (4 * ct + rq)
            a(f'v_cvt_pk_bf16_f32 {vr(P)}, {vr(R)}, {vr(R+1)}'); a(f'v_cvt_pk_bf16_f32 {vr(P+1)}, {vr(R+2)}, {vr(R+3)}')
            a(f'ds_write_b64 {vr(t0)}, {vr(P,2)} offset:{64*ct+16*rq}')
    a('s_waitcnt lgkmcnt(0)'); a('s_barrier')
    a(f's_mul_i32 s6, s{sW}, {8*TROW}'); a(f'v_add_u32 {vr(t0)}, s6, {vr(vL16)}')
    for k in range(8): a(f'ds_read_b128 {vr(CF+32+4*k,4)}, {vr(t0)} offset:{k*TROW}')
    a(f'ds_read_b128 {vr(MXR,4)}, {vr(vMp)} offset:512')
    a(f's_lshl_b32 s7, s{sW}, 19'); a(f's_lshl_b32 s6, s{sBeta}, 10'); a('s_add_u32 s7, s7, s6'); a(f's_add_u32 s7, s7, {PART if not cfg.bskip & 16 else OOB}')
    for k in range(8):
        a(f's_waitcnt lgkmcnt({8-k})')
        a(f's_add_u32 s6, s7, {k*65536}')
        a(f'buffer_store_dwordx4 {vr(CF+32+4*k,4)}, {vr(vL16)}, {srd(S_WS)}, s6 offen sc1')
    a('s_waitcnt lgkmcnt(0)')
    a(f'v_add_f32 {vr(MXR)}, {vr(MXR)}, {vr(MXR+1)}'); a(f'v_add_f32 {vr(MXR+2)}, {vr(MXR+2)}, {vr(MXR+3)}')
    a(f'v_add_f32 {vr(PK+1)}, {vr(MXR)}, {vr(MXR+2)}'); a(f'v_mov_b32 {vr(PK)}, {vr(mP)}')
    a(f'v_and_b32 {vr(t0)}, 31, {vr(vLane)}'); a(f'v_lshrrev_b32 {vr(t1)}, 5, {vr(vLane)}')
    a(f'v_lshl_add_u32 {vr(t0)}, {vr(t0)}, 1, {vr(t1)}'); a(f'v_lshlrev_b32 {vr(t0)}, 9, {vr(t0)}')
    a(f's_lshl_b32 s6, s{sBeta}, 3'); a(f's_add_u32 s6, s6, {PSTAT}')
    a(f'v_min_u32 {vr(PK)}, -2, {vr(PK)}'); a(f'v_min_u32 {vr(PK+1)}, -2, {vr(PK+1)}')
    a('s_waitcnt vmcnt(0)'); a('s_barrier')
    Ls = lab('nops')
    a(f's_cmp_lg_u32 s{sW}, 0'); a(f's_cbranch_scc1 {Ls}')
    a(f'buffer_store_dwordx2 {vr(PK,2)}, {vr(t0)}, {srd(S_WS)}, s6 offen sc1')
    a(f'{Ls}:')
    stamp(5)
    if cfg.bstop == 2: a('s_branch B_end')
    V = VAlloc(base)
    UB = 73728; OT = UB + 65536; RED = OT + 2048
    AF = V(64, 4); BF = V(32, 4); D = V(36, 4); F = V(4); ST = V(2); Mx = V(); Lx = V(); vU = V(2); vR = V(4); vT = V(4); PA = V(8, 4); O = V(12, 4)
    a(f's_mul_i32 s6, s{sBeta}, 73728'); mk_srd(S_WO, P_BWO, 's6', 73728)
    a(f's_lshl_b32 s6, s{sBeta}, 7'); a(f's_sub_u32 s7, {512*8192}, s6'); mk_srd(S_U, P_WUV, 's6', 's7')
    for bit, Rr in ((64, S_U), (128, S_WO)):
        if cfg.bskip & bit: a(f's_mov_b32 s{Rr+2}, 0')
    a(f'v_lshrrev_b32 {vr(t0)}, 3, {vr(vLane)}'); a(f'v_and_b32 {vr(t1)}, 7, {vr(vLane)}')
    a(f'v_and_b32 {vr(t2)}, 2, {vr(t0)}'); a(f'v_xor_b32 {vr(t1)}, {vr(t1)}, {vr(t2)}')
    a(f'v_lshlrev_b32 {vr(t0)}, 13, {vr(t0)}')
    a(f'v_lshl_add_u32 {vr(vU)}, {vr(t1)}, 4, {vr(t0)}')
    a(f'v_xor_b32 {vr(t1)}, 4, {vr(t1)}'); a(f'v_lshl_add_u32 {vr(vU+1)}, {vr(t1)}, 4, {vr(t0)}')
    a(f's_lshl_b32 s{sM0}, s{sW}, 14'); a(f's_lshl_b32 s{sSo}, s{sW}, 20')
    for k in range(16):
        a(f's_add_u32 m0, s{sM0}, {UB + k*1024}'); a(f's_add_u32 s6, s{sSo}, {k*65536}')
        a(f'buffer_load_dwordx4 {vr(vU+(k&1))}, {srd(S_U)}, s6 offen {fl} lds')
    a(f's_mul_i32 s{sM0}, s{sW}, 18432')
    for k in range(18):
        a(f's_add_u32 s6, s{sM0}, {k*1024}'); a('s_mov_b32 m0, s6')
        a(f'buffer_load_dwordx4 {vr(vL16)}, {srd(S_WO)}, s6 offen {fl} lds')
    mk_wo_tr_addr(vLane, vT, t0, t1, False)
    a(f'v_bfe_u32 {vr(t0)}, {vr(vLane)}, 2, 2'); a(f'v_lshl_add_u32 {vr(t0)}, {vr(vG)}, 3, {vr(t0)}'); a(f'v_lshlrev_b32 {vr(t0)}, 7, {vr(t0)}')
    a(f'v_and_b32 {vr(t1)}, 3, {vr(vLane)}'); a(f'v_lshl_add_u32 {vr(t0)}, {vr(t1)}, 3, {vr(t0)}'); a(f'v_add_u32 {vr(t0)}, {UB}, {vr(t0)}')
    a(f'v_bfe_u32 {vr(t1)}, {vr(vLane)}, 3, 2')
    for t in range(4):
        a(f'v_xor_b32 {vr(t2)}, {t}, {vr(t1)}'); a(f'v_lshl_add_u32 {vr(vR+t)}, {vr(t2)}, 5, {vr(t0)}')
    a(f'v_lshlrev_b32 {vr(t0)}, 10, {vr(vI)}'); a(f'v_lshl_add_u32 {vr(t0)}, {vr(vG)}, 4, {vr(t0)}')
    a(f'v_lshlrev_b32 {vr(t1)}, 3, {vr(vI)}')
    a(f's_lshl_b32 s6, s{sBeta}, 9'); a(f's_lshl_b32 s7, s{sW}, 7'); a('s_add_u32 s6, s6, s7'); a(f's_add_u32 s6, s6, {PSTAT}')
    a(f's_mov_b32 s7, {cfg.spin_max}')
    a('P_poll:')
    a(f'buffer_load_dwordx2 {vr(ST,2)}, {vr(t1)}, {srd(S_WS)}, s6 offen sc1')
    a('s_waitcnt vmcnt(0)')
    a(f'v_max_u32 {vr(Mx)}, {vr(ST)}, {vr(ST+1)}'); a(f'v_cmp_eq_u32 vcc, -1, {vr(Mx)}')
    a('s_cbranch_vccz P_ok')
    a(f's_sleep {cfg.psleep}')
    a('s_sub_u32 s7, s7, 1'); a('s_cmp_lg_u32 s7, 0'); a('s_cbranch_scc1 P_poll')
    a('P_ok:')
    stamp(6)
    vm = VM(a)
    a(f's_lshl_b32 s6, s{sH}, 16'); a(f's_lshl_b32 s7, s{sW}, 14'); a('s_add_u32 s6, s6, s7'); a(f's_add_u32 s6, s6, {PART if not cfg.bskip & 256 else OOB}')
    for ks in range(16):
        if cfg.bskip & 512:
            vm.issue(f'buffer_load_dwordx4 {vr(AF+4*ks,4)}, {vr(vL16)}, {srd(S_WS)}, s6 offen offset:{1024*(ks&3)} sc1', ('a', ks))
            if ks & 3 == 3: a('s_add_u32 s6, s6, 4096')
            continue
        vm.issue(f'buffer_load_dwordx4 {vr(AF+4*ks,4)}, {vr(t0)}, {srd(S_WS)}, s6 offen offset:{64*ks} sc1', ('a', ks))
    a('s_barrier')
    wo_frag_reads(2, vT)
    a(f'v_mov_b32 {vr(Mx)}, {vr(ST)}')
    for sh in (8, 4, 2, 1): a(f'v_max_f32_dpp {vr(Mx)}, {vr(Mx)}, {vr(Mx)} row_ror:{sh} {DPPF}')
    a(f'v_sub_f32 {vr(ST)}, {vr(ST)}, {vr(Mx)}'); a(f'v_exp_f32 {vr(ST)}, {vr(ST)}')
    a(f'v_mul_f32 {vr(Lx)}, {vr(ST)}, {vr(ST+1)}')
    for sh in (8, 4, 2, 1): a(f'v_add_f32_dpp {vr(Lx)}, {vr(Lx)}, {vr(Lx)} row_ror:{sh} {DPPF}')
    a(f'v_rcp_f32 {vr(Lx)}, {vr(Lx)}'); a(f'v_mul_f32 {vr(ST)}, {vr(ST)}, {vr(Lx)}')
    for r in range(4):
        for q in range(4):
            a(f'v_mov_b32_dpp {vr(F+r)}, {vr(ST)} row_newbcast:{4*q+r} row_mask:{1<<q:#x} bank_mask:0xf')
    a('s_waitcnt lgkmcnt(0)')
    def u_reads(ks):
        for t in range(4):
            for sec in range(2):
                a(f'ds_read_b64_tr_b16 {vr(BF+16*(ks&1)+4*t+2*sec,2)}, {vr(vR+t)} offset:{(32*ks+4*sec)*128}')
    u_reads(0)
    for ks in range(16):
        if ks + 1 < 16: u_reads(ks + 1)
        vm.wait(('a', ks))
        a(f's_waitcnt lgkmcnt({8 if ks + 1 < 16 else 0})')
        for t in range(4):
            c = '0' if ks == 0 else vr(D + 4 * t, 4)
            a(f'v_mfma_f32_16x16x32_bf16 {vr(D+4*t,4)}, {vr(AF+4*ks,4)}, {vr(BF+16*(ks&1)+4*t,4)}, {c}')
    a(f'v_lshlrev_b32 {vr(t0)}, 7, {vr(vG)}'); a(f'v_lshl_add_u32 {vr(t0)}, {vr(vI)}, 1, {vr(t0)}')
    a(f's_lshl_b32 s6, s{sW}, 9'); a(f's_add_u32 s6, s6, {OT}'); a(f'v_add_u32 {vr(t0)}, s6, {vr(t0)}')
    for t in range(4):
        a(f'v_mul_f32 {vr(O+t)}, {vr(F)}, {vr(D+4*t)}')
        for r in range(1, 4): a(f'v_fma_f32 {vr(O+t)}, {vr(F+r)}, {vr(D+4*t+r)}, {vr(O+t)}')
        a(f'v_cvt_pk_bf16_f32 {vr(O+t)}, {vr(O+t)}, {vr(O+t)}')
        a(f'ds_write_b16 {vr(t0)}, {vr(O+t)} offset:{32*t}')
    a(f'v_lshlrev_b32 {vr(t1)}, 7, {vr(vI)}'); a(f'v_lshl_add_u32 {vr(t1)}, {vr(vG)}, 4, {vr(t1)}'); a(f'v_add_u32 {vr(t1)}, {OT}, {vr(t1)}')
    a('s_waitcnt lgkmcnt(0)'); a('s_barrier')
    for ks in range(2): a(f'ds_read_b128 {vr(PA+4*ks,4)}, {vr(t1)} offset:{64*ks}')
    a(f'v_mul_u32_u24 {vr(t0)}, {64*2304}, {vr(vG)}')
    a(f'v_and_b32 {vr(t1)}, 3, {vr(vLane)}'); a(f'v_bfe_u32 {vr(t2)}, {vr(vLane)}, 2, 2')
    a(f'v_lshl_add_u32 {vr(t1)}, {vr(t1)}, 2, {vr(t2)}'); a(f'v_lshl_add_u32 {vr(t1)}, {vr(t1)}, 2, {vr(t0)}')
    a(f'v_lshl_add_u32 {vr(t0)}, {vr(vI)}, 4, {vr(t0)}')
    a(f's_mul_i32 s6, s{sBeta}, 2304'); a(f's_mul_i32 s7, s{sW}, 576'); a('s_add_u32 s6, s6, s7'); a(f's_add_u32 s6, s6, {YB}')
    a('s_waitcnt lgkmcnt(0)')
    for t in range(9):
        for ks in range(2):
            c = '0' if ks == 0 else vr(D + 4 * t, 4)
            a(f'v_mfma_f32_16x16x32_bf16 {vr(D+4*t,4)}, {vr(PA+4*ks,4)}, {ar(AW+4*(t*2+ks),4)}, {c}')
    for t in range(9):
        a(f'v_add_f32 {vr(D+4*t)}, {vr(D+4*t)}, {vr(D+4*t+1)}'); a(f'v_add_f32 {vr(D+4*t+2)}, {vr(D+4*t+2)}, {vr(D+4*t+3)}')
        a(f'v_add_f32 {vr(O+t)}, {vr(D+4*t)}, {vr(D+4*t+2)}'); a(f'v_min_u32 {vr(O+t)}, -2, {vr(O+t)}')
    a(f'buffer_store_dwordx4 {vr(O,4)}, {vr(t0)}, {srd(S_WS)}, s6 offen sc1')
    a(f'buffer_store_dwordx4 {vr(O+4,4)}, {vr(t0)}, {srd(S_WS)}, s6 offen offset:256 sc1')
    a(f'buffer_store_dword {vr(O+8)}, {vr(t1)}, {srd(S_WS)}, s6 offen offset:512 sc1')
    stamp(7)
    if cfg.bstop == 3: a('s_branch B_end')
    V = VAlloc(base)
    Y = V(32, 4); AS = Y; vYo = V(); vOo = V(); E = V()
    sTau, sTb, sSg, sY, sDone, sO = 14, 15, 80, 81, 82, 83
    if cfg.help:
        Ls = lab('nohelp')
        a(f's_cmp_lg_u32 s{sW}, 3'); a(f's_cbranch_scc1 {Ls}')
        a(f's_and_b32 s6, s{sH}, 3'); a(f's_cmp_lg_u32 s6, 1'); a(f's_cbranch_scc1 {Ls}')
        a(f's_lshl_b32 s6, s{sHalf}, 6'); a(f's_add_u32 s6, s6, s{sH}'); a('s_lshl_b32 s6, s6, 20')
        mk_srd(S_V, P_V, 's6', 0x2100000)
        sh = cfg.hsh
        a(f'v_lshlrev_b32 {vr(t0)}, {sh}, {vr(vLane)}')
        k = 0
        for n in range(cfg.help):
            for bs in range(2):
                for o in range(0, 24576, 64 << sh):
                    a(f's_mov_b32 s6, {bs*0x2000000 + 0x100000 - 24576*(n+1) + o}')
                    if sh == 4: a(f'buffer_load_dwordx4 {vr(64+4*(k&15),4)}, {vr(t0)}, {srd(S_V)}, s6 offen')
                    else: a(f'buffer_load_dword {vr(64+(k&15))}, {vr(t0)}, {srd(S_V)}, s6 offen')
                    k += 1
                    if k % 32 == 0: a('s_waitcnt vmcnt(24)')
        a('s_waitcnt vmcnt(0)')
        stamp(8)
        a(f'{Ls}:')
    a(f's_and_b32 s6, s{sW}, 1'); a('s_lshl_b32 s6, s6, 6'); a(f's_add_u32 s{sTau}, s{sBeta}, s6')
    a(f's_cmp_ge_u32 s{sTau}, 72'); a('s_cbranch_scc1 B_end')
    a(f's_mul_i32 s{sTb}, s{sTau}, 57'); a(f's_lshr_b32 s{sTb}, s{sTb}, 10')
    a(f's_mul_i32 s6, s{sTb}, 18'); a(f's_sub_u32 s{sSg}, s{sTau}, s6')
    a(f's_lshr_b32 s7, s{sW}, 1')
    a(f's_mul_i32 s{sY}, s{sTb}, {64*2304}'); a(f's_lshl_b32 s6, s{sSg}, 7'); a(f's_add_u32 s{sY}, s{sY}, s6')
    a(f's_mul_i32 s6, s7, {YB - YA}'); a(f's_add_u32 s{sY}, s{sY}, s6'); a(f's_add_u32 s{sY}, s{sY}, {YA}')
    a(f's_mul_i32 s{sO}, s{sTb}, 2304'); a(f's_lshl_b32 s6, s{sSg}, 6'); a(f's_add_u32 s{sO}, s{sO}, s6')
    a('s_mul_i32 s6, s7, 1152'); a(f's_add_u32 s{sO}, s{sO}, s6')
    a(f'v_lshrrev_b32 {vr(t0)}, 3, {vr(vLane)}'); a(f'v_and_b32 {vr(t1)}, 7, {vr(vLane)}')
    a(f'v_mul_u32_u24 {vr(vYo)}, 2304, {vr(t0)}'); a(f'v_lshl_add_u32 {vr(vYo)}, {vr(t1)}, 4, {vr(vYo)}')
    a(f'v_bfe_u32 {vr(t0)}, {vr(vLane)}, 2, 1'); a(f'v_lshl_add_u32 {vr(t0)}, {vr(t0)}, 2, {vr(vG)}')
    a(f'v_and_b32 {vr(t1)}, 3, {vr(vLane)}'); a(f'v_lshl_add_u32 {vr(t0)}, {vr(t0)}, 2, {vr(t1)}'); a(f'v_lshlrev_b32 {vr(vOo)}, 1, {vr(t0)}')
    stamp(9)
    a(f's_mov_b32 s{sDone}, 0'); a(f's_mov_b32 s7, {cfg.spin_max}')
    a('R_pass:')
    for t in range(8):
        Ls = lab('ld')
        a(f's_bitcmp1_b32 s{sDone}, {t}'); a(f's_cbranch_scc1 {Ls}')
        a(f's_add_u32 s6, s{sY}, {t*8*2304}')
        a(f'buffer_load_dwordx4 {vr(Y+4*t,4)}, {vr(vYo)}, {srd(S_WS)}, s6 offen sc1')
        a(f'{Ls}:')
    a('s_waitcnt vmcnt(0)')
    for t in range(8):
        Ls = lab('ck'); y = Y + 4 * t
        a(f's_bitcmp1_b32 s{sDone}, {t}'); a(f's_cbranch_scc1 {Ls}')
        a(f'v_max3_u32 {vr(E)}, {vr(y)}, {vr(y+1)}, {vr(y+2)}'); a(f'v_max_u32 {vr(E)}, {vr(E)}, {vr(y+3)}')
        a(f'v_cmp_eq_u32 vcc, -1, {vr(E)}')
        a(f's_cbranch_vccnz {Ls}')
        a(f's_bitset1_b32 s{sDone}, {t}')
        a(f'{Ls}:')
    a(f's_cmp_eq_u32 s{sDone}, 255'); a('s_cbranch_scc1 R_done')
    if cfg.rsleep: a(f's_sleep {cfg.rsleep}')
    a('s_sub_u32 s7, s7, 1'); a('s_cmp_lg_u32 s7, 0'); a('s_cbranch_scc1 R_pass')
    a('R_done:')
    stamp(10)
    for st in (16, 8, 4):
        for k in range(0, st, 2): a(f'v_pk_add_f32 {vr(Y+k,2)}, {vr(Y+k,2)}, {vr(Y+k+st,2)}')
    a(f'v_permlane32_swap_b32 {vr(AS)}, {vr(AS+2)}'); a(f'v_permlane32_swap_b32 {vr(AS+1)}, {vr(AS+3)}')
    a(f'v_add_f32 {vr(AS)}, {vr(AS)}, {vr(AS+2)}'); a(f'v_add_f32 {vr(AS+1)}, {vr(AS+1)}, {vr(AS+3)}')
    a(f'v_permlane16_swap_b32 {vr(AS)}, {vr(AS+1)}')
    a(f'v_add_f32 {vr(AS)}, {vr(AS)}, {vr(AS+1)}')
    a(f'v_add_f32_dpp {vr(AS)}, {vr(AS)}, {vr(AS)} row_ror:8 {DPPF}')
    a(f'v_cvt_pk_bf16_f32 {vr(AS)}, {vr(AS)}, {vr(AS)}')
    a('s_mov_b32 exec_lo, 0x00ff00ff'); a('s_mov_b32 exec_hi, 0x00ff00ff')
    a(f'buffer_store_short {vr(AS)}, {vr(vOo)}, {srd(S_OUT)}, s{sO} offen')
    a('s_mov_b64 exec, -1')
    stamp(11)
    a('B_end:')
    stamp_flush(t0, 'B')
    a('s_endpgm')

def gen():
    hdr = open('/code/' + NAME + '.s.ref').read().split('; Override')[0]
    a(f'{NAME}_kernel:')
    a('s_cmp_ge_u32 s2, 256'); a('s_cbranch_scc1 L_exit')
    a('s_load_dwordx16 s[16:31], s[0:1], 0'); a('s_load_dwordx8 s[32:39], s[0:1], 64'); a('s_load_dwordx4 s[40:43], s[0:1], 96')
    a('v_lshrrev_b32 v1, 6, v0'); a(f'v_readfirstlane_b32 s{sW}, v1')
    if cfg.hmap == 0:
        a('s_and_b32 s6, s2, 7'); a('s_bfe_u32 s7, s2, 0x20003'); a(f's_lshl_b32 s{sH}, s6, 2'); a(f's_add_u32 s{sH}, s{sH}, s7')
    else:
        a(f's_and_b32 s{sH}, s2, 31')
    a(f's_lshr_b32 s{sR}, s2, 5')
    if cfg.stamps:
        a('s_waitcnt lgkmcnt(0)')
        for k in range(16): a(f's_mov_b32 s{84+k}, 0')
        stamp(0)
        a('s_getreg_b32 s96, hwreg(HW_REG_HW_ID)'); a('s_getreg_b32 s97, hwreg(HW_REG_XCC_ID)')
    a(f's_cmp_lt_u32 s{sR}, 2'); a('s_cbranch_scc1 B_role')
    gen_A()
    a('L_exit:'); a('s_endpgm')
    gen_B()
    body = a.finish()
    out = hdr + f'; @launch grid=(256,1,1) block=(256,1,1) lds={LDS_TOTAL}\n'
    out += '; generated by gen/gen.py (hand-written generator)\n'
    out += f'.amdgcn_target "amdgcn-amd-amdhsa--gfx950"\n.text\n.globl {NAME}_kernel\n.p2align 8\n.type {NAME}_kernel,@function\n'
    out += body
    out += f'''.section .rodata,"a"
.p2align 6
.amdhsa_kernel {NAME}_kernel
  .amdhsa_next_free_vgpr 512
  .amdhsa_next_free_sgpr 102
  .amdhsa_accum_offset 256
  .amdhsa_group_segment_fixed_size 0
  .amdhsa_kernarg_size 112
  .amdhsa_user_sgpr_count 2
  .amdhsa_user_sgpr_kernarg_segment_ptr 1
  .amdhsa_system_sgpr_workgroup_id_x 1
.end_amdhsa_kernel
'''
    return out

if __name__ == '__main__':
    outp = sys.argv[1]
    for kv in sys.argv[2:]:
        k, v = kv.split('=', 1)
        cur = getattr(cfg, k)
        setattr(cfg, k, (v == '1') if isinstance(cur, bool) else type(cur)(v))
    open(outp, 'w').write(gen())
```

```python
import sys, math, struct
from asmlib import Asm, VM
NAME = 'concat_heads__mha_block_cached__compressed_kv_cla__decode'

class Cfg:
    stamps = False
    R = 8
    wq_flags = ''
    wo_flags = ''
    b_flags = 'nt'
    dma_t0 = 0
    dma_per = 3
    ev_trip = 16
    hmap = 0
    trips = False
    diag = ''
    rsleep = 0
    wq_per = 3
    spin_max = 400000
    noB = False
    bskip = 0
    askip = 0
    bstop = 0
    psleep = 16
    qsleep = 16
    nodma = False
    kv_flags = 'nt'
    warm = 0
    wqpf = 2
    dyn = 1
    hloc = 1
    dup = 0
    pl_flags = 'sc1'
    ps_flags = ''
    r_flags = 'sc1'
    psp = 16
    pper = 1
    hK = 24
    hth = 384
    hmar = 2
    hsleep = 4
    hoff = 3
    pf_flags = ''
    qfull = 1
    pshare = 1
    c0_trip = 8
    ytouch = 0
    xh = 0
    xd = 4
    h_flags = ''
    mon = 0
    mf = 1
    mg = 4
    msleep = 0
    emu = 0
    bwq_flags = ''
    pst_flags = 'sc1'
    pld_flags = 'sc1'
    clr_flags = 'sc1'
    yb_flags = 'sc1'
    dmask = 783
    dmul = 2
    out_flags = ''
    stag = '8,20,32'
    wopf_at = 4
    dgrp = 3
    dstep = 1
    vck = 0
    vcv = 0
    vsw = 16
    vcp = 63
    cwin = 2
    help = 0
    hsh = 4
    ev_per = 4
    wmix = 0
    st_per = 4
    kfirst = 0
    dma_mode = 0
    npv = 7
    st_m = 36
    ev2_m = 41
    dend = 4
    dm0 = 36
    dsl = 1
    xper = 4
    ev_slot = 12
    vhold = 0
cfg = Cfg()

QABS = 0x000000; PSTAT = 0x040000; AST = 0x050000; PROG = 0x060000; PART = 0x100000; YA = 0x400000; YB = 0x500000
WS_USED = 0x600000
STAMP = 0x10000000
C0 = 0; C0N = 128
OOB = 0x7ff00000
LDS_TOTAL = 163840
SCALE = (128 ** -0.5) * math.log2(math.e)
def f2u(x): return struct.unpack('<I', struct.pack('<f', x))[0]

P_AX, P_K, P_V, P_WQ, P_WO, P_BX, P_CKV, P_BWQ, P_WUK, P_WUV, P_BWO, P_OUT, P_DBG, P_WS = 16, 18, 20, 22, 24, 26, 28, 30, 32, 34, 36, 38, 40, 42
S_X, S_W, S_K, S_V, S_WO, S_WS, S_DBG, S_OUT, S_U = 44, 48, 52, 56, 60, 64, 68, 72, 76
sW, sH, sR = 3, 4, 5
def srd(n): return f's[{n}:{n+3}]'
def vr(n, k=1): return f'v{n}' if k == 1 else f'v[{n}:{n+k-1}]'
def ar(n, k=1): return f'a{n}' if k == 1 else f'a[{n}:{n+k-1}]'

class VAlloc:
    def __init__(self, start=1): self.n = start
    def __call__(self, k=1, align=1):
        align = max(align, 2 if k > 1 else 1)
        self.n = (self.n + align - 1) // align * align
        r = self.n; self.n += k
        assert self.n <= 256, 'out of vgprs'
        return r

a = Asm()
nstamp = [0]
def stamp(k):
    if cfg.stamps:
        a(f's_memrealtime s[100:101]'); a('s_waitcnt lgkmcnt(0)'); a(f's_mov_b32 s{84+k}, s100')
def stamp_flush(vt, role=''):
    if cfg.diag:
        k = int(cfg.diag[1:]) if cfg.diag[0] == role else 0
        L = lab('diag')
        a(f's_cmp_eq_u32 s{84+k}, 0'); a(f's_cselect_b32 s6, s84, s{84+k}'); a('s_add_u32 s6, s6, 10000')
        a(f'{L}:'); a('s_sleep 4'); a('s_memrealtime s[100:101]'); a('s_waitcnt lgkmcnt(0)')
        a('s_sub_u32 s7, s100, s6'); a('s_cmp_lt_i32 s7, 0'); a(f's_cbranch_scc1 {L}')
        return
    if cfg.stamps:
        a(f's_lshl_b32 s6, s2, 2'); a(f's_add_u32 s6, s6, s{sW}'); a('s_lshl_b32 s6, s6, 6'); a(f's_add_u32 s6, s6, {STAMP}')
        a(f's_mov_b32 s{S_WS+2}, 0x20000000')
        a(f'v_mov_b32 {vr(vt+1)}, 0')
        a('s_mov_b64 exec, 1')
        for k in range(16):
            a(f'v_mov_b32 {vr(vt)}, s{84+k}')
            a(f'buffer_store_dword {vr(vt)}, {vr(vt+1)}, {srd(S_WS)}, s6 offen offset:{4*k}')
            a('s_nop 1')
        a('s_mov_b64 exec, -1')

def mk_srd(d, p, off, size):
    if off is None:
        a(f's_mov_b32 s{d}, s{p}'); a(f's_mov_b32 s{d+1}, s{p+1}')
    else:
        a(f's_add_u32 s{d}, s{p}, {off}'); a(f's_addc_u32 s{d+1}, s{p+1}, 0')
    a(f's_mov_b32 s{d+2}, {size}'); a(f's_mov_b32 s{d+3}, 0x20000')

uid = [0]
def lab(p):
    uid[0] += 1
    return f'L_{p}_{uid[0]}'

def poll(coff, target, vt):
    L, D = lab('poll'), lab('polld')
    a(f's_cmp_lg_u32 s{sW}, 0'); a(f's_cbranch_scc1 {D}')
    a(f's_mov_b32 s7, {cfg.spin_max}')
    a(f'{L}:')
    a(f'buffer_load_dword {vr(vt)}, off, {srd(S_DBG)}, 0 offset:{coff} sc1')
    a('s_waitcnt vmcnt(0)')
    a(f'v_readfirstlane_b32 s6, {vr(vt)}')
    a(f's_cmp_ge_u32 s6, {target}'); a(f's_cbranch_scc1 {D}')
    a(f's_sleep {cfg.psleep}')
    a('s_sub_u32 s7, s7, 1'); a('s_cmp_lg_u32 s7, 0'); a(f's_cbranch_scc1 {L}')
    a(f'{D}:')
    a('s_barrier')

def ensure(coff, target, vt):
    L, D = lab('ens'), lab('ensd')
    a(f's_mov_b32 s7, {cfg.spin_max}')
    a(f'{L}:')
    a(f'v_readfirstlane_b32 s6, {vr(vt)}')
    a(f's_cmp_ge_u32 s6, {target}'); a(f's_cbranch_scc1 {D}')
    a(f's_sleep {cfg.psleep}')
    a(f'buffer_load_dword {vr(vt)}, off, {srd(S_DBG)}, 0 offset:{coff} sc1')
    a('s_waitcnt vmcnt(0)')
    a('s_sub_u32 s7, s7, 1'); a('s_cmp_lg_u32 s7, 0'); a(f's_cbranch_scc1 {L}')
    a(f'{D}:')

def umax_tree(dst, regs):
    regs = list(regs)
    a(f'v_max3_u32 {vr(dst)}, {vr(regs[0])}, {vr(regs[1])}, {vr(regs[2])}'); regs = regs[3:]
    while len(regs) >= 2:
        a(f'v_max3_u32 {vr(dst)}, {vr(dst)}, {vr(regs[0])}, {vr(regs[1])}'); regs = regs[2:]
    if regs: a(f'v_max_u32 {vr(dst)}, {vr(dst)}, {vr(regs[0])}')

def signal(coff, vt):
    D = lab('sig')
    a('s_waitcnt vmcnt(0) lgkmcnt(0)'); a('s_barrier')
    a(f's_cmp_lg_u32 s{sW}, 0'); a(f's_cbranch_scc1 {D}')
    a(f'v_mov_b32 {vr(vt)}, 1'); a('s_mov_b64 exec, 1')
    a(f'buffer_atomic_add {vr(vt)}, off, {srd(S_DBG)}, 0 offset:{coff}')
    a('s_mov_b64 exec, -1')
    a(f'{D}:')

def allred_rows(x, t, op):
    for sw in ('v_permlane16_swap_b32', 'v_permlane32_swap_b32'):
        a(f'v_mov_b32 {vr(t)}, {vr(x)}')
        a(f'{sw} {vr(x)}, {vr(t)}')
        a(f'{op} {vr(x)}, {vr(x)}, {vr(t)}')

DPPF = 'row_mask:0xf bank_mask:0xf'
def reduce4(T, X, S):
    a(f'v_add_f32_dpp {vr(X)}, {vr(T)}, {vr(T)} row_ror:8 row_mask:0xf bank_mask:0x3')
    a(f'v_add_f32_dpp {vr(X+1)}, {vr(T+1)}, {vr(T+1)} row_ror:8 row_mask:0xf bank_mask:0x3')
    a(f'v_add_f32_dpp {vr(X)}, {vr(T+2)}, {vr(T+2)} row_ror:8 row_mask:0xf bank_mask:0xc')
    a(f'v_add_f32_dpp {vr(X+1)}, {vr(T+3)}, {vr(T+3)} row_ror:8 row_mask:0xf bank_mask:0xc')
    a(f'v_add_f32_dpp {vr(S)}, {vr(X)}, {vr(X)} row_half_mirror row_mask:0xf bank_mask:0x5')
    a(f'v_add_f32_dpp {vr(S)}, {vr(X+1)}, {vr(X+1)} row_half_mirror row_mask:0xf bank_mask:0xa')
    a(f'v_add_f32_dpp {vr(S)}, {vr(S)}, {vr(S)} quad_perm:[1,0,3,2] {DPPF}')
    a(f'v_add_f32_dpp {vr(S)}, {vr(S)}, {vr(S)} quad_perm:[2,3,0,1] {DPPF}')

def mk_masks(vLane, MASK, SEL, t0, t1):
    a(f'v_and_b32 {vr(t0)}, 1, {vr(vLane)}'); a(f'v_lshlrev_b32 {vr(t0)}, 4, {vr(t0)}')
    a(f'v_mov_b32 {vr(t1)}, 0xffff'); a(f'v_lshlrev_b32 {vr(t0)}, {vr(t0)}, {vr(t1)}')
    a(f'v_bfe_u32 {vr(t1)}, {vr(vLane)}, 1, 2')
    for r in range(4):
        a(f'v_cmp_eq_u32 vcc, {r}, {vr(t1)}')
        a(f'v_cndmask_b32 {vr(MASK+r)}, 0, {vr(t0)}, vcc')
    a(f'v_mov_b32 {vr(t0)}, 0x0c0c0c0c')
    a('s_mov_b32 s6, 0x01000100'); a('s_mov_b32 s7, 0x03020302')
    for par in range(2):
        for r in range(4):
            a(f'v_bfi_b32 {vr(SEL+4*par+r)}, {vr(MASK+r)}, s{6+par}, {vr(t0)}')

def warm_code(l0, l1, vLane, t0, t1, n=2):
    L = lab('pc')
    a('s_getpc_b64 s[98:99]'); a(f'{L}:')
    n = 1 if l0 == 'A_role' else 3
    for k in range(n):
        a(f'v_lshlrev_b32 {vr(t0)}, 6, v0')
        if k: a(f'v_add_u32 {vr(t0)}, {16384*k}, {vr(t0)}')
        a(f'v_min_u32 {vr(t0)}, {l1}-{L}, {vr(t0)}')
        a(f'global_load_dword {ar(255-k)}, {vr(t0)}, s[98:99]')

AW = 96

def x_loads(vm, X, vXoff, extra):
    for k in range(4):
        vm.issue(f'buffer_load_dwordx4 {vr(X+4*k,4)}, {vr(vXoff)}, {srd(S_X)}, 0 offen offset:{extra+16*k}', 'x')
    vm.issue(f'buffer_load_dwordx2 {vr(X+16,2)}, {vr(vXoff)}, {srd(S_X)}, 0 offen offset:{extra+64}', 'x')

def wunit_load(vm, jj, vWoff, flags):
    a(f's_mov_b32 s6, {jj*8192}')
    vm.issue(f'buffer_load_dwordx4 {ar(AW+4*jj,4)}, {vr(vWoff)}, {srd(S_W)}, s6 offen {flags}', ('w', jj))

def wunit_mfma(jj, Xs, ACCs, SEL, PA):
    for s, (X, ACC) in enumerate(zip(Xs, ACCs)):
        P = PA + 4 * ((jj * len(Xs) + s) & 3)
        for r in range(4):
            a(f'v_perm_b32 {vr(P+r)}, {vr(X+jj//2)}, {vr(X+jj//2)}, {vr(SEL+4*(jj&1)+r)}')
        c = '0' if jj == 0 else vr(ACC, 4)
        a(f'v_mfma_f32_16x16x32_bf16 {vr(ACC,4)}, {vr(P,4)}, {ar(AW+4*jj,4)}, {c}')

def wo_frag_list(nks, vT):
    out = []
    for t in range(9):
        for ks in range(nks):
            for sec in range(2):
                reg = vT + (1 if t == 8 else 0) + (2 if ks >= 2 else 0)
                off = (32 * (ks & 1) + 4 * sec) * 1152 + (0 if t == 8 else 128 * (t >> 2) + 8 * (t & 3))
                out.append(f'ds_read_b64_tr_b16 {ar(AW+4*(t*nks+ks)+2*sec,2)}, {vr(reg)} offset:{off}')
    return out
def wo_frag_reads(nks, vT):
    for t in wo_frag_list(nks, vT): a(t)

def mk_wo_tr_addr(vLane, vT, t0, t1, two):
    a(f'v_lshrrev_b32 {vr(t0)}, 4, {vr(vLane)}'); a(f'v_lshlrev_b32 {vr(t0)}, 3, {vr(t0)}')
    a(f'v_bfe_u32 {vr(t1)}, {vr(vLane)}, 2, 2'); a(f'v_add_u32 {vr(t0)}, {vr(t0)}, {vr(t1)}')
    a(f'v_mul_u32_u24 {vr(t0)}, 1152, {vr(t0)}')
    a(f's_mul_i32 s6, s{sW}, 288'); a(f'v_add_u32 {vr(t0)}, s6, {vr(t0)}')
    a(f'v_and_b32 {vr(t1)}, 3, {vr(vLane)}')
    a(f'v_lshl_add_u32 {vr(vT)}, {vr(t1)}, 5, {vr(t0)}')
    a(f'v_lshl_add_u32 {vr(vT+1)}, {vr(t1)}, 3, {vr(t0)}'); a(f'v_add_u32 {vr(vT+1)}, 256, {vr(vT+1)}')
    if two:
        a(f'v_add_u32 {vr(vT+2)}, 73728, {vr(vT)}'); a(f'v_add_u32 {vr(vT+3)}, 73728, {vr(vT+1)}')

def gen_A():
    R = cfg.R; NT = 11; RT = R // 4
    assert R % 4 == 0
    V = VAlloc(1)
    vLane = V(); vL16 = V(); vWoff = V(); vXoff = V(); t0 = V(); t1 = V(); vC = V()
    MASK = V(4); SEL = V(8); ACC = V(4, 4); Q = V(4); T = V(4); XX = V(2); S = V(); M = V(); M2 = V(); fN = V()
    X = V(20, 4); PA = V(16, 4); D = X
    P = V(NT); vT = V(4); vY = V(); vY8 = V(); vOw = V(); vOr = V(); vC0 = V(); G = V(8); F = V(4); O = V(6, 2); vTS = V(); vPg = V(); vPo = V()
    KR = V(16 * R, 4)
    QRED = 147456; OT = QRED + 4096
    sJJ, sPair, sB, sRank, sOff, sReal, sBeg, sD, sDn, sTrip, sSt, sBsel = 8, 9, 10, 11, 12, 13, 14, 15, 80, 81, 82, 83
    sMk = 72
    sVo = 34
    STEP = 6 * 4096
    a('A_role:')
    a(f's_sub_u32 s{sJJ}, s{sR}, 2')
    a(f's_cmp_ge_u32 s{sJJ}, 3'); a(f's_cselect_b32 s{sPair}, 1, 0'); a(f's_cselect_b32 s6, 3, 0')
    a(f's_sub_u32 s{sJJ}, s{sJJ}, s6')
    a(f's_lshl_b32 s{sRank}, s{sJJ}, 2'); a(f's_add_u32 s{sRank}, s{sRank}, s{sW}')
    a(f's_cmp_ge_u32 s{sRank}, 6'); a(f's_cselect_b32 s{sBsel}, 1, 0'); a(f's_cselect_b32 s6, -1, 1')
    a(f's_add_u32 s{sRank}, s{sRank}, s6')
    a(f's_cmp_ge_u32 s{sRank}, 6'); a(f's_cselect_b32 s6, 6, 0'); a(f's_sub_u32 s{sRank}, s{sRank}, s6')
    a(f's_lshl_b32 s{sB}, s{sPair}, 1'); a(f's_add_u32 s{sB}, s{sB}, s{sBsel}')
    a(f'v_and_b32 {vr(vLane)}, 63, v0'); a(f'v_lshlrev_b32 {vr(vL16)}, 4, {vr(vLane)}')
    if cfg.warm & 1: warm_code('A_role', 'L_exit', vLane, t0, t1)
    a(f's_sub_u32 s{sBeg}, s{sRank}, 8'); a(f's_lshl_b32 s{sBeg}, s{sBeg}, 12'); a(f's_mov_b32 s{sReal}, s{sBeg}')
    def adv():
        a(f's_add_u32 s{sReal}, s{sReal}, {STEP}'); a(f's_min_u32 s{sOff}, s{sReal}, {OOB}')
    adv()
    a(f's_lshl_b32 s{sSt}, s{sB}, 5'); a(f's_add_u32 s{sSt}, s{sSt}, s{sH}')
    a(f's_lshl_b32 s6, s{sSt}, 20')
    a('s_waitcnt lgkmcnt(0)')
    mk_srd(S_K, P_K, 's6', 0x100000); mk_srd(S_V, P_V, 's6', 0x100000)
    a(f's_mul_i32 s6, s{sPair}, 2304'); a(f's_mul_i32 s7, s{sW}, 288'); a('s_add_u32 s6, s6, s7')
    a(f's_sub_u32 s7, 4608, s6')
    mk_srd(S_X, P_AX, 's6', 's7')
    a(f's_mul_i32 s6, s{sW}, {144*8192}'); a(f's_lshl_b32 s7, s{sH}, 8'); a('s_add_u32 s6, s6, s7')
    a(f's_sub_u32 s7, {576*8192}, s6')
    mk_srd(S_W, P_WQ, 's6', 's7')
    if cfg.askip & 1: a(f's_mov_b32 s{S_W+2}, 0')
    a(f'v_lshrrev_b32 {vr(t0)}, 4, {vr(vLane)}'); a(f'v_and_b32 {vr(t1)}, 15, {vr(vLane)}')
    a(f'v_mul_u32_u24 {vr(vWoff)}, {36*8192}, {vr(t0)}'); a(f'v_lshl_add_u32 {vr(vWoff)}, {vr(t1)}, 4, {vr(vWoff)}')
    a(f'v_mul_u32_u24 {vr(vXoff)}, 72, {vr(t0)}'); a(f'v_lshrrev_b32 {vr(t1)}, 3, {vr(t1)}')
    a(f'v_mul_u32_u24 {vr(t1)}, 1152, {vr(t1)}'); a(f'v_add_u32 {vr(vXoff)}, {vr(vXoff)}, {vr(t1)}')
    vm = VM(a, cfg.vcp)
    a(f'v_mov_b32 {vr(vC)}, {8192-1024}')
    if cfg.wqpf:
        a('s_lshr_b32 s6, s2, 3'); a('s_sub_u32 s6, s6, 8'); a('s_lshl_b32 s6, s6, 2'); a(f's_add_u32 s6, s6, s{sW}')
        a(f's_mul_i32 s6, s6, {6*8192}'); a('s_and_b32 s7, s2, 7'); a('s_lshl_b32 s7, s7, 10'); a('s_add_u32 s6, s6, s7')
        mk_srd(S_WO, P_WQ, None, 576 * 8192)
        if cfg.wqpf == 1:
            for k in range(6):
                vm.issue(f'buffer_load_dwordx4 {vr(KR+4*(k&3),4)}, {vr(vL16)}, {srd(S_WO)}, s6 offen')
                if k < 5: a('s_add_u32 s6, s6, 8192')
        else:
            a(f'v_min_u32 {vr(M)}, 47, {vr(vLane)}'); a(f'v_lshrrev_b32 {vr(M2)}, 3, {vr(M)}'); a(f'v_lshlrev_b32 {vr(M)}, 7, {vr(M)}')
            a(f'v_mad_u32_u24 {vr(M2)}, {vr(M2)}, {vr(vC)}, {vr(M)}')
            vm.issue(f'buffer_load_dword {vr(KR)}, {vr(M2)}, {srd(S_WO)}, s6 offen {cfg.pf_flags}')
    x_loads(vm, X, vXoff, 0)
    def ring_ld(s, u):
        return f'buffer_load_dwordx4 {vr(KR+16*s+4*u,4)}, {vr(vL16)}, {srd(S_K)}, s{sOff} offen offset:{1024*u} {cfg.kv_flags}'
    stream = [('k', s, u) for s in range(1, R) for u in range(4)]
    if cfg.wmix: stream += [('v', s, u) for s in range(1, cfg.npv + 1) for u in range(4)]
    order = stream[:cfg.kfirst]; wi = 0; si = cfg.kfirst
    while wi < 36 or si < len(stream):
        for _ in range(cfg.wq_per):
            if wi < 36: order.append(('w', wi)); wi += 1
        for _ in range(cfg.st_per):
            if si < len(stream): order.append(stream[si]); si += 1
    NPV = cfg.npv; V0 = NPV + 1 if NPV else 0
    def avs(s): return 16 * (s - 1) if s < 7 else 240
    if not cfg.wmix: order += [('v', s, u) for s in range(1, NPV + 1) for u in range(4)]
    def issue(o):
        if o[0] == 'w': wunit_load(vm, o[1], vWoff, cfg.wq_flags)
        elif o[0] == 'v':
            if o[2] == 0: a(f's_add_u32 s{sVo}, s{sBeg}, {o[1]*STEP}'); a(f's_min_u32 s{sVo}, s{sVo}, {OOB}')
            vm.issue(f'buffer_load_dwordx4 {ar(avs(o[1])+4*o[2],4)}, {vr(vL16)}, {srd(S_V)}, s{sVo} offen offset:{1024*o[2]} {cfg.kv_flags}', o)
        else:
            vm.issue(ring_ld(o[1], o[2]), o)
            if o[2] == 3: adv()
    pos = 0
    def wo_pf():
        a(f's_mul_i32 s6, s{sH}, 147456'); mk_srd(S_WO, P_WO, 's6', 147456)
        a(f's_sub_u32 s6, s{sR}, 2'); a('s_lshl_b32 s6, s6, 2'); a(f's_add_u32 s6, s6, s{sW}'); a('s_mul_i32 s6, s6, 6144')
        vm.issue(f'buffer_load_dword {vr(KR+1)}, {vr(M)}, {srd(S_WO)}, s6 offen')
    if cfg.stag:
        sp = [int(x) for x in cfg.stag.split(',')]
        stream = [('k', s, u) for s in range(1, R) for u in range(4)] + [('v', s, u) for s in range(1, NPV + 1) for u in range(4)]
        order = stream[:sp[-1]] + [('w', j) for j in range(36)] + stream[sp[-1]:]
        vm.limit = 1000
        for idx in range(sp[-1] + 1):
            if idx in sp:
                Ls = lab('nowq')
                a(f's_cmp_lg_u32 s{sJJ}, {sp.index(idx)}'); a(f's_cbranch_scc1 {Ls}')
                a('s_waitcnt vmcnt(20)')
                n0 = len(vm.q)
                for j in range(36): wunit_load(vm, j, vWoff, cfg.wq_flags)
                if idx != sp[-1]: del vm.q[n0:]
                a(f'{Ls}:')
            if idx == sp[-1]: break
            if idx % 4 == 0: a('s_waitcnt vmcnt(54)')
            if idx == cfg.wopf_at and cfg.dma_mode == 3: wo_pf()
            issue(stream[idx])
        pos = sp[-1] + 36
        vm.limit = 63; vm.done = max(0, len(vm.q) - 60)
    while pos < min(56 - 6 * cfg.wqpf, len(order)):
        issue(order[pos]); pos += 1
    if cfg.dma_mode == 3 and not cfg.stag: wo_pf()
    stamp(1)
    mk_srd(S_WS, P_WS, None, WS_USED); mk_srd(S_DBG, P_DBG, None, 256)
    a(f's_mul_i32 s6, s{sH}, 147456'); mk_srd(S_WO, P_WO, 's6', 147456)
    mk_masks(vLane, MASK, SEL, t0, t1)
    a(f'v_mov_b32 {vr(vC)}, {f2u(SCALE):#x}')
    a(f'v_mov_b32 {vr(P+NT-1)}, 0xff800000')
    mk_wo_tr_addr(vLane, vT, t0, t1, True)
    a(f's_lshl_b32 s{sSt}, s{sSt}, 6'); a(f's_add_u32 s{sSt}, s{sSt}, {AST}')
    a(f's_mov_b64 s[{sMk}:{sMk+1}], 0')
    a(f's_cmp_ge_u32 s{sRank}, 2'); a(f's_cselect_b32 s{sMk+2}, 0x22222222, 0'); a(f's_mov_b32 s{sMk+3}, s{sMk+2}')
    for j in (2, 3):
        a(f's_mov_b32 s{sMk+2*j}, {0x11111111 << j:#x}'); a(f's_mov_b32 s{sMk+2*j+1}, s{sMk+2*j}')
    a(f'v_bfe_u32 {vr(t0)}, {vr(vLane)}, 4, 1')
    a(f's_lshl_b32 s6, s{sPair}, 7'); a(f's_lshl_b32 s7, s{sH}, 1'); a('s_add_u32 s6, s6, s7'); a(f's_add_u32 s6, s6, s{sJJ}')
    a(f'v_mul_u32_u24 {vr(t1)}, 63, {vr(t0)}'); a(f'v_add_u32 {vr(t1)}, s6, {vr(t1)}')
    a(f'v_mul_u32_u24 {vr(vY)}, 2304, {vr(t1)}'); a(f'v_add_u32 {vr(vY)}, {YA}, {vr(vY)}')
    a(f'v_sub_u32 {vr(t1)}, s{sJJ}, {vr(t0)}')
    a(f'v_cmp_lt_u32 vcc, 1, {vr(t1)}')
    a(f'v_mov_b32 {vr(t1)}, {OOB}')
    a(f'v_cndmask_b32 {vr(vY)}, {vr(vY)}, {vr(t1)}, vcc')
    a(f's_mul_i32 s6, s{sW}, 576')
    a(f'v_add_u32 {vr(vY)}, s6, {vr(vY)}')
    a(f'v_and_b32 {vr(M)}, 3, {vr(vLane)}'); a(f'v_bfe_u32 {vr(M2)}, {vr(vLane)}, 2, 2')
    a(f'v_lshl_add_u32 {vr(M)}, {vr(M)}, 2, {vr(M2)}'); a(f'v_lshl_add_u32 {vr(vY8)}, {vr(M)}, 2, {vr(vY)}')
    a(f'v_and_b32 {vr(M)}, 15, {vr(vLane)}'); a(f'v_lshrrev_b32 {vr(M2)}, 5, {vr(vLane)}')
    a(f'v_lshl_add_u32 {vr(M)}, {vr(M2)}, 4, {vr(M)}'); a(f'v_lshl_add_u32 {vr(vY)}, {vr(M)}, 4, {vr(vY)}')
    for r in range(4):
        a(f's_lshl_b32 s6, s{sJJ}, 2'); a(f's_add_u32 s6, s6, {r}'); a('s_cmp_ge_u32 s6, 6'); a('s_cselect_b32 s6, 1, 0')
        a(f'v_cmp_eq_u32 vcc, s6, {vr(t0)}')
        a(f'v_cndmask_b32 {vr(F+r)}, 0, 1.0, vcc')
    a(f'v_cmp_gt_u32 vcc, 32, {vr(vLane)}')
    for r in range(4):
        a(f'v_cndmask_b32 {vr(G+r)}, 0, {vr(F+r)}, vcc'); a(f'v_cndmask_b32 {vr(G+4+r)}, {vr(F+r)}, 0, vcc')
    a(f'v_and_b32 {vr(M)}, 15, {vr(vLane)}'); a(f'v_lshlrev_b32 {vr(M)}, 4, {vr(M)}')
    a(f'v_lshl_add_u32 {vr(vOw)}, {vr(t0)}, 3, {vr(M)}')
    a(f's_lshl_b32 s6, s{sW}, 8'); a(f's_add_u32 s6, s6, {OT}'); a(f'v_add_u32 {vr(vOw)}, s6, {vr(vOw)}')
    a(f'v_and_b32 {vr(M)}, 3, {vr(vLane)}'); a(f'v_lshlrev_b32 {vr(M)}, 8, {vr(M)}')
    a(f'v_lshrrev_b32 {vr(M2)}, 4, {vr(vLane)}'); a(f'v_lshl_add_u32 {vr(vOr)}, {vr(M2)}, 4, {vr(M)}')
    a(f'v_add_u32 {vr(vOr)}, {OT}, {vr(vOr)}')
    a(f's_mul_i32 s{sD}, s{sW}, {4096 if cfg.dma_mode == 1 else 36864}')
    a(f's_mov_b32 s{sDn}, {(-cfg.dma_t0) & 0xffffffff:#x}'); a(f's_mov_b32 s{sTrip}, 0')
    if cfg.dma_mode == 3: a(f's_mul_i32 s{sDn}, s{sJJ if cfg.dgrp == 3 else sR}, {cfg.dstep}'); a(f's_add_u32 s{sDn}, s{sDn}, {cfg.dma_t0 - (0 if cfg.dgrp == 3 else 2 * cfg.dstep)}')
    if cfg.dyn:
        a(f's_lshl_b32 s6, s{sH}, 1'); a(f's_add_u32 s6, s6, s{sPair}'); a(f's_mul_i32 s6, s6, {cfg.psp//4}'); a(f's_add_u32 s6, s6, s{sJJ}')
        a('s_lshl_b32 s6, s6, 2'); a(f's_add_u32 s6, s6, {PROG}')
        a(f'v_mov_b32 {vr(vPo)}, {OOB}'); a(f'v_mov_b32 {vr(vPg)}, s6'); a('v_cmp_eq_u32 vcc, 0, v0')
        a(f'v_cndmask_b32 {vr(vPo)}, {vr(vPo)}, {vr(vPg)}, vcc'); a(f'v_mov_b32 {vr(vPg)}, {cfg.hoff}')
    def prog(g, per):
        if cfg.dyn and g % per == per - 1:
            a(f'v_add_u32 {vr(vPg)}, {per}, {vr(vPg)}')
            a(f'buffer_store_dword {vr(vPg)}, {vr(vPo)}, {srd(S_WS)}, 0 offen {cfg.ps_flags}')
            return True
    a(f'v_and_b32 {vr(M)}, 15, {vr(vLane)}'); a(f'v_lshlrev_b32 {vr(M)}, 5, {vr(M)}')
    a(f'v_lshl_add_u32 {vr(M2)}, {vr(t0)}, 4, {vr(M)}')
    a(f'v_lshrrev_b32 {vr(t1)}, 5, {vr(vLane)}'); a(f'v_lshl_add_u32 {vr(M2)}, {vr(t1)}, 9, {vr(M2)}')
    a(f's_lshl_b32 s6, s{sW}, 10'); a(f's_add_u32 s6, s6, {QRED}'); a(f'v_add_u32 {vr(M2)}, s6, {vr(M2)}')
    a(f's_lshl_b32 s6, s{sBsel}, 9'); a(f's_add_u32 s6, s6, {QRED}'); a(f'v_add_u32 {vr(M)}, s6, {vr(M)}')
    for jj in range(36):
        while ('w', jj) not in vm.q:
            issue(order[pos]); pos += 1
        vm.wait(('w', jj))
        wunit_mfma(jj, [X], [ACC], SEL, PA)
        k = 0
        while pos < len(order) - cfg.vhold and vm.after(('w', jj)) < 60 and (k < 1 or order[pos][0] != 'v' or jj == 35 or cfg.wmix):
            issue(order[pos]); pos += 1; k += 1
    a(f'ds_write_b128 {vr(M2)}, {vr(ACC,4)}')
    while pos < len(order):
        issue(order[pos]); pos += 1
    a('s_waitcnt lgkmcnt(0)'); a('s_barrier')
    for w in range(4):
        a(f'ds_read_b128 {vr(D+8*w,4)}, {vr(M)} offset:{1024*w}')
        a(f'ds_read_b128 {vr(D+8*w+4,4)}, {vr(M)} offset:{1024*w+16}')
    for r in range(4): a(f'v_mov_b32 {vr(ACC+r)}, 0')
    a('s_waitcnt lgkmcnt(0)')
    for e in range(8):
        a(f'v_add_f32 {vr(D+e)}, {vr(D+e)}, {vr(D+8+e)}'); a(f'v_add_f32 {vr(D+16+e)}, {vr(D+16+e)}, {vr(D+24+e)}')
    for e in range(8): a(f'v_add_f32 {vr(D+e)}, {vr(D+e)}, {vr(D+16+e)}')
    for k in range(4): a(f'v_cvt_pk_bf16_f32 {vr(Q+k)}, {vr(D+2*k)}, {vr(D+2*k+1)}')
    stamp(2)
    NW = 4 * R - 4
    def dma(s, vtrip=None):
        if (s % 4) not in {1: (0,), 2: (0, 2), 3: (0, 1, 2), 4: (0, 1, 2, 3)}[cfg.dma_per]: return
        Ls = lab('nodma')
        if cfg.dma_mode == 3:
            if s % 4: return
            a(f's_cmp_lg_u32 s{sDn}, s{sTrip}'); a(f's_cbranch_scc1 {Ls}')
            a('s_waitcnt vmcnt(24)')
            for k in range(9):
                a(f's_mov_b32 m0, s{sD}')
                for u in range(4):
                    a(f'buffer_load_dwordx4 {vr(vL16)}, {srd(S_WO)}, s{sD} offen offset:{1024*u} {cfg.wo_flags} lds')
                a(f's_add_u32 s{sD}, s{sD}, 4096')
            a(f'{Ls}:')
            return
        if cfg.dma_mode:
            if s % 4: return
            a(f's_cmp_ge_u32 s{sDn}, {0 if cfg.nodma else 36}'); a(f's_cbranch_scc1 {Ls}')
            for u in range(4):
                a(f's_add_u32 m0, s{sD}, {1024*u}') if cfg.dma_mode == 9 else None
                if u == 0: a(f's_mov_b32 m0, s{sD}')
                a(f'buffer_load_dwordx4 {vr(vL16)}, {srd(S_WO)}, s{sD} offen offset:{1024*u} {cfg.wo_flags} lds')
            a(f's_add_u32 s{sD}, s{sD}, {16384 if cfg.dma_mode == 1 else 4096}')
            a(f'{Ls}:')
            a(f's_add_u32 s{sDn}, s{sDn}, 4')
            return
        if cfg.dmask:
            if vtrip is not None:
                if not (cfg.dmask >> vtrip) & 1: return
            else: a(f's_bitcmp0_b32 s{sDn}, s{sTrip}'); a(f's_cbranch_scc1 {Ls}')
            a(f's_mov_b32 m0, s{sD}')
            for u in range(cfg.dmul):
                a(f'buffer_load_dwordx4 {vr(vL16)}, {srd(S_WO)}, s{sD} offen offset:{1024*u} {cfg.wo_flags} lds')
            a(f's_add_u32 s{sD}, s{sD}, {1024*cfg.dmul}')
            a(f'{Ls}:')
            return
        a(f's_cmp_ge_u32 s{sDn}, {0 if cfg.nodma else 36}'); a(f's_cbranch_scc1 {Ls}')
        a(f's_mov_b32 m0, s{sD}')
        a(f'buffer_load_dwordx4 {vr(vL16)}, {srd(S_WO)}, s{sD} offen {cfg.wo_flags} lds')
        a(f's_add_u32 s{sD}, s{sD}, 1024')
        a(f'{Ls}:')
        a(f's_add_u32 s{sDn}, s{sDn}, 1')
    def shiftP():
        for k in range(NT - 1): a(f'v_mov_b32 {vr(P+k)}, {vr(P+k+1)}')
    dma_end = -(-(cfg.dma_t0 + 36) // cfg.dma_per) * 4
    if cfg.dmask:
        assert bin(cfg.dmask).count('1') * cfg.dma_per * cfg.dmul == 36
        dma_end = 4 * cfg.dmask.bit_length()
        a(f's_mov_b32 s{sDn}, {cfg.dmask}')
    if cfg.dma_mode == 3:
        dma_end = 4 * (cfg.dma_t0 + (cfg.dgrp - 1) * cfg.dstep) + 1
        assert dma_end <= 4 * NT
    assert dma_end + R <= 4 * NT + cfg.ev_slot - V0
    a(f's_add_u32 s{sBeg}, s{sBeg}, {V0*STEP}')
    a('K_loop:')
    for s in range(R):
        K = KR + 16 * s; j = s % 4
        if j == 0:
            if (NT - RT) % RT == s // 4:
                a(f's_cmp_eq_u32 s{sTrip}, {NT-RT}')
                a(f's_cselect_b32 s{S_K}, s{S_V}, s{S_K}'); a(f's_cselect_b32 s{S_K+1}, s{S_V+1}, s{S_K+1}')
                a(f's_cselect_b32 s{sReal}, s{sBeg}, s{sReal}'); a(f's_min_u32 s{sOff}, s{sReal}, {OOB}')
            if cfg.c0_trip % RT == s // 4:
                Ls = lab('c0')
                a(f's_cmp_lg_u32 s{sTrip}, {cfg.c0_trip}'); a(f's_cbranch_scc1 {Ls}')
                a(f'buffer_load_dword {vr(vC0)}, off, {srd(S_DBG)}, 0 offset:{C0} sc1')
                a(f'{Ls}:')
        a(f's_waitcnt vmcnt({NW})')
        for k in range(4):
            for u in range(4):
                c = '0' if k == 0 else vr(T + u)
                a(f'v_dot2_f32_bf16 {vr(T+u)}, {vr(K+4*u+k)}, {vr(Q+k)}, {c}')
        for u in range(4):
            if cfg.vck: a(f's_waitcnt vmcnt({cfg.vck-1})')
            a(ring_ld(s, u))
        adv(); dma(s)
        reduce4(T, XX, S)
        a(f'v_cndmask_b32 {vr(P+NT-1)}, {vr(P+NT-1)}, {vr(S)}, s[{sMk+2*j}:{sMk+2*j+1}]')
        if j == 3:
            if cfg.trips:
                a('s_memrealtime s[100:101]'); a('s_waitcnt lgkmcnt(0)'); a(f's_mov_b32 m0, s{sTrip}'); a(f'v_writelane_b32 {vr(vTS)}, s100, m0')
            a(f's_add_u32 s{sTrip}, s{sTrip}, 1')
            if (NT - 1) % RT == s // 4:
                a(f's_cmp_eq_u32 s{sTrip}, {NT}'); a('s_cbranch_scc1 A_mid')
            shiftP()
            if s == 3:
                a(f's_lshr_b64 s[{sMk}:{sMk+1}], s[{sMk+4}:{sMk+5}], 2'); a(f's_lshr_b64 s[{sMk+2}:{sMk+3}], s[{sMk+4}:{sMk+5}], 1')
    a('s_branch K_loop')
    a('A_mid:')
    stamp(5)
    a(f'v_max3_f32 {vr(M)}, {vr(P)}, {vr(P+1)}, {vr(P+2)}')
    for k in range(3, NT, 2): a(f'v_max3_f32 {vr(M)}, {vr(M)}, {vr(P+k)}, {vr(P+k+1)}')
    for sh in (8, 4, 2, 1): a(f'v_max_f32_dpp {vr(M)}, {vr(M)}, {vr(M)} row_ror:{sh} {DPPF}')
    allred_rows(M, M2, 'v_max_f32')
    a(f'v_mul_f32 {vr(XX)}, {vr(M)}, {vr(vC)}')
    for k in range(NT): a(f'v_fma_f32 {vr(P+k)}, {vr(P+k)}, {vr(vC)}, -{vr(XX)}')
    for k in range(NT): a(f'v_exp_f32 {vr(P+k)}, {vr(P+k)}')
    a(f'v_add_f32 {vr(M)}, {vr(P)}, {vr(P+1)}')
    for k in range(2, NT): a(f'v_add_f32 {vr(M)}, {vr(M)}, {vr(P+k)}')
    for k in range(NT): a(f'v_cvt_pk_bf16_f32 {vr(P+k)}, {vr(P+k)}, {vr(P+k)}')
    for sh in (8, 4, 2, 1): a(f'v_add_f32_dpp {vr(M)}, {vr(M)}, {vr(M)} row_ror:{sh} {DPPF}')
    allred_rows(M, M2, 'v_add_f32')
    a(f'v_min_u32 {vr(XX)}, -2, {vr(XX)}'); a(f'v_min_u32 {vr(XX+1)}, -2, {vr(M)}')
    if not cfg.noB: ensure(C0, C0N, vC0)
    a(f's_lshl_b32 s6, s{sRank}, 3'); a(f's_add_u32 s6, s6, s{sSt}')
    a('s_mov_b64 exec, 1')
    for _ in range(4 if cfg.dup & 4 else 1): a(f'buffer_store_dwordx2 {vr(XX,2)}, off, {srd(S_WS)}, s6 sc1')
    a('s_mov_b64 exec, -1')
    ST = X
    def st_loads(iss):
        for k in range(3): iss(f'buffer_load_dwordx4 {vr(ST+4*k,4)}, off, {srd(S_WS)}, s{sSt} offset:{16*k} sc1')
    def pa(i, dst=PA):
        for u in range(4):
            for r in range(4):
                a(f'v_and_b32_dpp {vr(dst+4*u+r)}, {vr(P+i//4)}, {vr(MASK+r)} row_newbcast:{4*u+i%4} {DPPF}')
    def ev2():
        vm.wait('st')
        a(f's_mov_b32 s7, {cfg.spin_max}')
        a('A_ev2_chk:')
        umax_tree(M, range(ST, ST + 12))
        a(f'v_cmp_eq_u32 vcc, -1, {vr(M)}')
        a('s_cbranch_vccz A_ev2_ok')
        st_loads(a)
        a('s_waitcnt vmcnt(0)')
        a('s_sub_u32 s7, s7, 1'); a('s_cmp_lg_u32 s7, 0'); a('s_cbranch_scc1 A_ev2_chk')
        a('A_ev2_ok:')
        a(f'v_max3_f32 {vr(M)}, {vr(ST)}, {vr(ST+2)}, {vr(ST+4)}'); a(f'v_max3_f32 {vr(M2)}, {vr(ST+6)}, {vr(ST+8)}, {vr(ST+10)}')
        a(f'v_max_f32 {vr(M)}, {vr(M)}, {vr(M2)}')
        for k in range(6): a(f'v_sub_f32 {vr(ST+2*k)}, {vr(ST+2*k)}, {vr(M)}')
        a(f'v_sub_f32 {vr(fN)}, {vr(XX)}, {vr(M)}')
        for k in range(6): a(f'v_exp_f32 {vr(ST+2*k)}, {vr(ST+2*k)}')
        a(f'v_exp_f32 {vr(fN)}, {vr(fN)}')
        a(f'v_mul_f32 {vr(M)}, {vr(ST)}, {vr(ST+1)}')
        for k in range(1, 6): a(f'v_fma_f32 {vr(M)}, {vr(ST+2*k)}, {vr(ST+2*k+1)}, {vr(M)}')
        a(f'v_rcp_f32 {vr(M)}, {vr(M)}')
        a(f'v_mul_f32 {vr(fN)}, {vr(fN)}, {vr(M)}')
    extra = list(range(1, NPV + 1)); frags = wo_frag_list(4, vT)
    NS = 4 * NT
    vm = VM(a)
    vm.q = [(j, u) for j in range(V0, V0 + R) for u in range(4)] + [None]
    def stage(j): return (NS + j - V0) % R
    def comp(i, pre=None):
        K = KR + 16 * stage(i)
        if pre is None: pa(i); pre = PA
        if i < NS - 1: vm.wait((i, 3))
        for u in range(4):
            vm.wait((i, u))
            a(f'v_mfma_f32_16x16x32_bf16 {vr(ACC,4)}, {vr(pre+4*u,4)}, {vr(K+4*u,4)}, {vr(ACC,4)}')
        if i % 4 == 3 and cfg.trips:
            a('s_memrealtime s[100:101]'); a('s_waitcnt lgkmcnt(0)'); a(f'v_writelane_b32 {vr(vTS)}, s100, {NT + (i-V0)//4}')
    c = V0
    for m in range(V0 + R, NS):
        n = m - R - V0; i = m - R
        if m == cfg.st_m: st_loads(lambda t: vm.issue(t, 'st'))
        if m == cfg.ev2_m: ev2()
        if m == cfg.ytouch: vm.issue(f'buffer_load_dword {vr(vC0)}, {vr(vY8)}, {srd(S_WS)}, 0 offen offset:512 sc1')
        dist = max(cfg.dend, min(R, R - (m - cfg.dm0 + cfg.dsl - 1) // cfg.dsl))
        first = True
        while c <= m - dist:
            if not first: a('s_nop 3')
            comp(c); c += 1; first = False
        if prog(n, cfg.pper): vm.q.append(None)
        for u in range(4): vm.issue(ring_ld(stage(m), u), (m, u))
        adv()
        if NS + n < dma_end: dma(n, NT + n // 4)
        if i == cfg.ev_slot - 1: a('s_barrier')
        if i >= cfg.ev_slot - 1:
            for t in frags[:cfg.ev_per]: a(t)
            del frags[:cfg.ev_per]
        if extra and n % cfg.xper == 1:
            e = extra.pop(0)
            pa(e)
            for u in range(4):
                a(f'v_mfma_f32_16x16x32_bf16 {vr(ACC,4)}, {vr(PA+4*u,4)}, {ar(avs(e)+4*u,4)}, {vr(ACC,4)}')
            a('s_nop 3')
    assert not extra and not frags
    if cfg.ev2_m >= NS: ev2()
    while c < NS - 2:
        comp(c); c += 1; a('s_nop 3')
    P2 = KR + 16 * stage(NS - 4)
    pa(NS - 2); pa(NS - 1, P2)
    comp(NS - 2, PA); comp(NS - 1, P2)
    a('A_tail:')
    stamp(3)
    for r in range(4): a(f'v_mul_f32 {vr(ACC+r)}, {vr(ACC+r)}, {vr(fN)}')
    a(f'v_cvt_pk_bf16_f32 {vr(T)}, {vr(ACC)}, {vr(ACC+1)}'); a(f'v_cvt_pk_bf16_f32 {vr(T+1)}, {vr(ACC+2)}, {vr(ACC+3)}')
    a(f'ds_write_b64 {vr(vOw)}, {vr(T,2)}')
    a('s_waitcnt lgkmcnt(0)'); a('s_barrier')
    for ks in range(4): a(f'ds_read_b128 {ar(4*ks,4)}, {vr(vOr)} offset:{64*ks}')
    a('s_waitcnt lgkmcnt(0)')
    def tile(t):
        for ks in range(4):
            c = '0' if ks == 0 else vr(D + 4 * t, 4)
            a(f'v_mfma_f32_16x16x32_bf16 {vr(D+4*t,4)}, {ar(4*ks,4)}, {ar(AW+4*(t*4+ks),4)}, {c}')
    def comb(j, t, first):
        g = G + (4 if t >= 4 else 0)
        for r in range(4):
            if first and r == 0: a(f'v_mul_f32 {vr(O+j)}, {vr(g)}, {vr(D+4*t)}')
            else: a(f'v_fma_f32 {vr(O+j)}, {vr(g+r)}, {vr(D+4*t+r)}, {vr(O+j)}')
    tile(8); tile(0); tile(1)
    a(f'v_mul_f32 {vr(O+4)}, {vr(F)}, {vr(D+32)}')
    for r in range(1, 4): a(f'v_fma_f32 {vr(O+4)}, {vr(F+r)}, {vr(D+32+r)}, {vr(O+4)}')
    tile(2)
    a(f'v_min_u32 {vr(O+4)}, -2, {vr(O+4)}')
    a('s_mov_b64 exec, 0xffffffff')
    a(f'buffer_store_dword {vr(O+4)}, {vr(vY8)}, {srd(S_WS)}, 0 offen offset:512 sc1')
    a('s_mov_b64 exec, -1')
    comb(0, 0, True)
    tile(3); comb(1, 1, True)
    tile(4); comb(2, 2, True)
    tile(5); comb(3, 3, True)
    tile(6); comb(0, 4, False)
    tile(7); comb(1, 5, False); comb(2, 6, False)
    for j in range(3): a(f'v_min_u32 {vr(O+j)}, -2, {vr(O+j)}')
    comb(3, 7, False)
    a(f'v_min_u32 {vr(O+3)}, -2, {vr(O+3)}')
    a(f'buffer_store_dwordx4 {vr(O,4)}, {vr(vY)}, {srd(S_WS)}, 0 offen sc1')
    stamp(4)
    stamp_flush(M, 'A')
    if cfg.trips:
        a(f's_lshl_b32 s6, s2, 2'); a(f's_add_u32 s6, s6, s{sW}'); a('s_lshl_b32 s6, s6, 8'); a(f's_add_u32 s6, s6, {STAMP + 0x100000}')
        a(f'v_lshlrev_b32 {vr(M)}, 2, {vr(vLane)}')
        a(f'buffer_store_dword {vr(vTS)}, {vr(M)}, {srd(S_WS)}, s6 offen')
    a('s_endpgm')

def gen_B():
    V = VAlloc(1)
    vLane = V(); vL16 = V(); vWoff = V(); vXoff = V(); t0 = V(); t1 = V(); t2 = V(); vI = V(); vG = V(); vL16x = V(); vC0 = V()
    base = V.n
    sHalf, sBeta, sB2, sCh, sM0, sSo = 8, 9, 10, 11, 12, 13
    CROW = 1088; CB = 64 * CROW
    QROW = 1056; SQ = 2 * CB; QRED = SQ
    PB = SQ + 16 * QROW; MX = PB + 4096; LS = MX + 512
    assert LS + 512 <= LDS_TOTAL
    fl = cfg.b_flags
    a('B_role:')
    if cfg.noB: a('s_endpgm')
    a(f's_mov_b32 s{sHalf}, s{sR}')
    a(f's_lshl_b32 s{sBeta}, s{sH}, 1'); a(f's_add_u32 s{sBeta}, s{sBeta}, s{sHalf}')
    a(f's_lshr_b32 s{sB2}, s{sBeta}, 4'); a(f's_and_b32 s{sCh}, s{sBeta}, 15')
    a(f'v_and_b32 {vr(vLane)}, 63, v0'); a(f'v_lshlrev_b32 {vr(vL16)}, 4, {vr(vLane)}')
    a(f'v_lshrrev_b32 {vr(vG)}, 4, {vr(vLane)}'); a(f'v_and_b32 {vr(vI)}, 15, {vr(vLane)}')
    if cfg.warm & 2: warm_code('B_role', 'B_end', vLane, t0, t1)
    a('s_waitcnt lgkmcnt(0)')
    a(f's_mul_i32 s6, s{sW}, 288'); a('s_sub_u32 s7, 4608, s6'); mk_srd(S_X, P_BX, 's6', 's7')
    a(f's_mul_i32 s6, s{sW}, {144*8192}'); a(f's_lshl_b32 s7, s{sH}, 8'); a('s_add_u32 s6, s6, s7')
    a(f's_sub_u32 s7, {576*8192}, s6'); mk_srd(S_W, P_BWQ, 's6', 's7')
    a(f's_lshl_b32 s6, s{sHalf}, 2'); a(f's_add_u32 s6, s6, s{sW}'); a('s_lshl_b32 s6, s6, 19')
    a(f's_lshl_b32 s7, s{sH}, 8'); a('s_add_u32 s6, s6, s7'); a(f's_sub_u32 s7, {512*8192}, s6')
    mk_srd(S_U, P_WUK, 's6', 's7')
    if cfg.cwin == 0:
        a(f's_lshl_b32 s6, s{sBeta}, 18'); mk_srd(S_K, P_CKV, 's6', 0x40000)
    else:
        a(f's_lshl_b32 s6, s{sB2}, 22'); mk_srd(S_K, P_CKV, 's6', 0x400000)
    for bit, R in ((1, S_W), (2, S_U), (4, S_K)):
        if cfg.bskip & bit: a(f's_mov_b32 s{R+2}, 0')
    if cfg.emu & 1:
        a(f's_cmp_eq_u32 s{sHalf}, 1'); a(f's_cselect_b32 s{S_W+2}, 0, s{S_W+2}')
    MASK = V(4); SEL = V(8); X0 = V(18); X1 = V(18); PA = V(16, 4); AC0 = V(4, 4); AC1 = V(4, 4)
    UK = V(64, 4); QB = V(16); T = V(4); XX = V(2); U = V(16, 4); D = V(32, 4); vUoff = V()
    a(f'v_mul_u32_u24 {vr(vWoff)}, {36*8192}, {vr(vG)}'); a(f'v_lshl_add_u32 {vr(vWoff)}, {vr(vI)}, 4, {vr(vWoff)}')
    a(f'v_mul_u32_u24 {vr(vXoff)}, 72, {vr(vG)}'); a(f'v_lshrrev_b32 {vr(t1)}, 3, {vr(vI)}')
    a(f'v_mul_u32_u24 {vr(t1)}, 1152, {vr(t1)}'); a(f'v_add_u32 {vr(vXoff)}, {vr(vXoff)}, {vr(t1)}')
    a(f'v_lshlrev_b32 {vr(vUoff)}, 17, {vr(vG)}'); a(f'v_lshl_add_u32 {vr(vUoff)}, {vr(vI)}, 4, {vr(vUoff)}')
    a(f'v_xor_b32 {vr(vL16x)}, 32, {vr(vL16)}')
    mk_srd(S_WS, P_WS, None, WS_USED)
    vm = VM(a, 49)
    x_loads(vm, X0, vXoff, 0); x_loads(vm, X1, vXoff, 2304)
    Lc, Lc1 = lab('noclr'), lab('clr1')
    a(f's_cmp_ge_u32 s{sW}, 2'); a(f's_cbranch_scc1 {Lc}')
    for r in range(4): a(f'v_mov_b32 {vr(D+r)}, -1')
    a(f's_cmp_eq_u32 s{sW}, 1'); a(f's_cbranch_scc1 {Lc1}')
    a(f'v_lshrrev_b32 {vr(t0)}, 5, {vr(vLane)}'); a(f'v_lshlrev_b32 {vr(t0)}, 15, {vr(t0)}')
    a(f'v_and_b32 {vr(t1)}, 31, {vr(vLane)}'); a(f'v_lshl_add_u32 {vr(t0)}, {vr(t1)}, 4, {vr(t0)}')
    a(f's_lshl_b32 s6, s{sBeta}, 9'); a(f's_add_u32 s7, s6, {QABS + 65536}'); a(f's_add_u32 s6, s6, {QABS}')
    a(f'buffer_store_dwordx4 {vr(D,4)}, {vr(t0)}, {srd(S_WS)}, s6 offen sc1')
    a(f'buffer_store_dwordx4 {vr(D,4)}, {vr(t0)}, {srd(S_WS)}, s7 offen sc1')
    a(f's_add_u32 s6, s6, {PSTAT - QABS}')
    a('s_mov_b64 exec, 0xffffffff')
    a(f'buffer_store_dwordx4 {vr(D,4)}, {vr(vL16)}, {srd(S_WS)}, s6 offen sc1')
    a(f's_lshl_b32 s6, s{sBeta}, 7'); a(f's_add_u32 s6, s6, {AST}')
    a('s_mov_b64 exec, 0xff')
    a(f'buffer_store_dwordx4 {vr(D,4)}, {vr(vL16)}, {srd(S_WS)}, s6 offen sc1')
    if cfg.dyn:
        a(f's_mul_i32 s6, s{sBeta}, {cfg.psp}'); a(f's_add_u32 s6, s6, {PROG}')
        a('s_mov_b32 exec_lo, 1'); a(f's_mov_b32 exec_hi, {1 if cfg.mon else 0}')
        a(f'buffer_store_dwordx4 {vr(D,4)}, {vr(t0)}, {srd(S_WS)}, s6 offen sc1')
    a('s_mov_b64 exec, -1')
    a(f'{Lc1}:')
    a(f's_mul_i32 s6, s{sBeta}, 9216'); a(f's_mul_i32 s7, s{sW}, {YB - YA}'); a('s_add_u32 s6, s6, s7'); a(f's_add_u32 s6, s6, {YA if not cfg.bskip & 1024 else OOB}')
    for k in range(9):
        if k in (4, 8): a('s_add_u32 s6, s6, 4096')
        a(f'buffer_store_dwordx4 {vr(D,4)}, {vr(vL16)}, {srd(S_WS)}, s6 offen offset:{1024*(k&3)} {cfg.clr_flags}')
    a(f'{Lc}:')
    for jj in range(36): wunit_load(vm, jj, vWoff, cfg.bwq_flags)
    def uk_load(u):
        a(f's_mov_b32 s6, {u*8192}')
        vm.issue(f'buffer_load_dwordx4 {vr(UK+4*u,4)}, {vr(vUoff)}, {srd(S_U)}, s6 offen {fl}', ('u', u))
    for u in range(3): uk_load(u)
    mk_srd(S_DBG, P_DBG, None, 256); mk_srd(S_OUT, P_OUT, None, 9216)
    mk_masks(vLane, MASK, SEL, t0, t1)
    def coff(rho, k):
        if cfg.cwin == 0: return (64 * rho + k) * 1024
        if cfg.cwin == 1: return (1024 * rho + k) * 1024
        return (1024 * rho + 256 * (k >> 2) + (k & 3)) * 1024
    def c_dma(rho, k):
        a(f's_add_u32 m0, s{sM0}, {(rho&1)*CB + k*CROW}')
        a(f's_add_u32 s6, s{sSo}, {coff(rho, k)}')
        vm.issue(f'buffer_load_dwordx4 {vr(vL16x if k >= 8 else vL16)}, {srd(S_K)}, s6 offen {fl} lds', ('c', rho))
    def c_reg(rho, k):
        a(f's_add_u32 s6, s{sSo}, {coff(rho, k)}')
        vm.issue(f'buffer_load_dwordx4 {ar(64*rho+4*k,4)}, {vr(vL16x if k >= 8 else vL16)}, {srd(S_K)}, s6 offen {fl}', ('c', rho))
    a(f's_mul_i32 s{sM0}, s{sW}, {16*CROW}'); a(f's_lshl_b32 s{sSo}, s{sW}, 14')
    if cfg.cwin:
        a(f's_lshl_b32 s6, s{sCh}, 16'); a(f's_add_u32 s{sSo}, s{sSo}, s6')
        if cfg.cwin == 2: a(f's_lshr_b32 s{sSo}, s{sSo}, 2')
    dma = [(rho, k) for rho in range(2) for k in range(16)]
    for jj in range(36):
        vm.wait(('w', jj))
        if jj == 0:
            Ls = lab('sig0')
            a(f's_cmp_ge_u32 s{sW}, 2'); a(f's_cbranch_scc1 {Ls}')
            a(f'v_mov_b32 {vr(t2)}, 1'); a('s_mov_b64 exec, 1')
            a(f'buffer_atomic_add {vr(t2)}, off, {srd(S_DBG)}, 0 offset:{C0}')
            a('s_mov_b64 exec, -1')
            a(f'{Ls}:')
            vm.limit = 61
            for u in range(3, 16): uk_load(u)
        wunit_mfma(jj, [X0, X1], [AC0, AC1], SEL, PA)
        if jj == 28: vm.issue(f'buffer_load_dword {vr(vC0)}, off, {srd(S_DBG)}, 0 offset:{C0} sc1', 'c0')
        if dma: c_dma(*dma.pop(0))
    assert not dma
    a(f'v_lshlrev_b32 {vr(t0)}, 5, {vr(vI)}')
    a(f'v_and_b32 {vr(t1)}, 1, {vr(vG)}'); a(f'v_lshl_add_u32 {vr(t1)}, {vr(t1)}, 4, {vr(t0)}')
    a(f'v_lshrrev_b32 {vr(t2)}, 5, {vr(vLane)}'); a(f'v_lshl_add_u32 {vr(t1)}, {vr(t2)}, 9, {vr(t1)}')
    a(f's_lshl_b32 s6, s{sW}, 11'); a(f's_add_u32 s6, s6, {QRED}'); a(f'v_add_u32 {vr(t1)}, s6, {vr(t1)}')
    a(f'ds_write_b128 {vr(t1)}, {vr(AC0,4)}'); a(f'ds_write_b128 {vr(t1)}, {vr(AC1,4)} offset:1024')
    a(f'v_add_u32 {vr(t0)}, {QRED}, {vr(t0)}')
    a('s_waitcnt lgkmcnt(0)'); a('s_barrier')
    for b in range(4):
        for w in range(4):
            a(f'ds_read_b128 {vr(D+8*w,4)}, {vr(t0)} offset:{2048*w+512*b}')
            a(f'ds_read_b128 {vr(D+8*w+4,4)}, {vr(t0)} offset:{2048*w+512*b+16}')
        a('s_waitcnt lgkmcnt(0)')
        for e in range(8):
            a(f'v_add_f32 {vr(D+e)}, {vr(D+e)}, {vr(D+8+e)}'); a(f'v_add_f32 {vr(D+16+e)}, {vr(D+16+e)}, {vr(D+24+e)}')
        for e in range(8): a(f'v_add_f32 {vr(D+e)}, {vr(D+e)}, {vr(D+16+e)}')
        for k in range(4): a(f'v_cvt_pk_bf16_f32 {vr(QB+4*b+k)}, {vr(D+2*k)}, {vr(D+2*k+1)}')
    vm.wait(('u', 15))
    for u in range(16):
        for k in range(4):
            for b in range(4):
                c = '0' if k == 0 else vr(T + b)
                a(f'v_dot2_f32_bf16 {vr(T+b)}, {vr(UK+4*u+k)}, {vr(QB+4*b+k)}, {c}')
        reduce4(T, XX, U + u)
    for k in range(8): a(f'v_cvt_pk_bf16_f32 {vr(D+k)}, {vr(U+2*k)}, {vr(U+2*k+1)}')
    for k in range(8): a(f'v_min_u32 {vr(D+k)}, -2, {vr(D+k)}')
    a(f'v_bfe_u32 {vr(t0)}, {vr(vLane)}, 2, 2'); a(f'v_lshlrev_b32 {vr(t0)}, 15, {vr(t0)}')
    a(f'v_lshl_add_u32 {vr(t0)}, {vr(vG)}, 5, {vr(t0)}')
    a(f's_lshl_b32 s6, s{sH}, 10'); a(f's_lshl_b32 s7, s{sHalf}, 9'); a('s_add_u32 s6, s6, s7')
    a(f's_lshl_b32 s7, s{sW}, 7'); a('s_add_u32 s6, s6, s7'); a(f's_add_u32 s6, s6, {QABS}')
    if cfg.qfull:
        a(f'v_and_b32 {vr(t1)}, 1, {vr(vLane)}'); a(f'v_lshl_add_u32 {vr(t0)}, {vr(t1)}, 4, {vr(t0)}')
        a(f'v_cmp_eq_u32 vcc, 1, {vr(t1)}')
        for k in range(4): a(f'v_cndmask_b32 {vr(D+k)}, {vr(D+k)}, {vr(D+4+k)}, vcc')
        a('s_mov_b32 exec_lo, 0x33333333'); a('s_mov_b32 exec_hi, 0x33333333')
        vm.issue(f'buffer_store_dwordx4 {vr(D,4)}, {vr(t0)}, {srd(S_WS)}, s6 offen sc1')
    else:
        a('s_mov_b32 exec_lo, 0x11111111'); a('s_mov_b32 exec_hi, 0x11111111')
        vm.issue(f'buffer_store_dwordx4 {vr(D,4)}, {vr(t0)}, {srd(S_WS)}, s6 offen sc1')
        vm.issue(f'buffer_store_dwordx4 {vr(D+4,4)}, {vr(t0)}, {srd(S_WS)}, s6 offen offset:16 sc1')
    a('s_mov_b64 exec, -1')
    stamp(1)
    vm.wait('c0')
    ensure(C0, C0N, vC0)
    stamp(2)
    if cfg.bstop == 1: a('s_branch B_end')
    V = VAlloc(base)
    ACC = V(64, 4); S = V(8, 4); CF = V(64, 4); PF = V(16, 4); MXR = V(12, 4)
    mQ = V(2); mP = V(); lQ = V(2); aQ = V(2); aP = V(); vC = V(); PK = V(4, 2); Mx = V(2); tt = V()
    vA = V(2); vTr = V(2); vMw = V(); vMr = V(); vMp = V(); vPw = V(); vPr = V(); vQ = V(); vQw = V(); vCw = V(2)
    sQ = 14
    a(f's_lshl_b32 s{sQ}, s{sB2}, 15'); a(f's_lshl_b32 s6, s{sW}, 12'); a(f's_add_u32 s{sQ}, s{sQ}, s6'); a(f's_add_u32 s{sQ}, s{sQ}, {QABS}')
    a(f's_add_u32 s{sQ+1}, s{sQ}, 16384')
    def q_loads(iss):
        for nt in range(2):
            for k in range(4):
                iss(f'buffer_load_dwordx4 {vr(CF+16*nt+4*k,4)}, {vr(vL16)}, {srd(S_WS)}, s{sQ+nt} offen offset:{1024*k} sc1')
    a('s_nop 1')
    q_loads(lambda t: vm.issue(t, 'q'))
    for rho in (2, 3):
        for k in range(16): c_reg(rho, k)
    a(f's_lshl_b32 s6, s{sW}, 4'); a(f'v_add_u32 {vr(t0)}, s6, {vr(vI)}'); a(f'v_mul_u32_u24 {vr(t0)}, {CROW}, {vr(t0)}')
    a(f'v_lshrrev_b32 {vr(t1)}, 3, {vr(vI)}'); a(f'v_lshlrev_b32 {vr(t1)}, 1, {vr(t1)}'); a(f'v_xor_b32 {vr(t1)}, {vr(t1)}, {vr(vG)}')
    a(f'v_lshl_add_u32 {vr(vA)}, {vr(t1)}, 4, {vr(t0)}'); a(f'v_add_u32 {vr(vA+1)}, {CB}, {vr(vA)}')
    a(f'v_lshrrev_b32 {vr(t0)}, 5, {vr(vLane)}'); a(f'v_lshlrev_b32 {vr(t0)}, 3, {vr(t0)}')
    a(f'v_bfe_u32 {vr(t1)}, {vr(vLane)}, 2, 2'); a(f'v_add_u32 {vr(t0)}, {vr(t0)}, {vr(t1)}'); a(f'v_mul_u32_u24 {vr(t0)}, {CROW}, {vr(t0)}')
    a(f'v_lshrrev_b32 {vr(t1)}, 1, {vr(vG)}'); a(f'v_xor_b32 {vr(t1)}, {vr(t1)}, {vr(vG)}')
    a(f'v_and_b32 {vr(t1)}, 1, {vr(t1)}'); a(f'v_lshl_add_u32 {vr(t0)}, {vr(t1)}, 5, {vr(t0)}')
    a(f'v_and_b32 {vr(t1)}, 3, {vr(vLane)}'); a(f'v_lshl_add_u32 {vr(t0)}, {vr(t1)}, 3, {vr(t0)}')
    a(f's_lshl_b32 s6, s{sW}, 8'); a(f'v_add_u32 {vr(vTr)}, s6, {vr(t0)}'); a(f'v_add_u32 {vr(vTr+1)}, {CB}, {vr(vTr)}')
    a(f'v_lshlrev_b32 {vr(vMr)}, 4, {vr(vI)}'); a(f'v_add_u32 {vr(vMr)}, {MX}, {vr(vMr)}')
    a(f's_lshl_b32 s6, s{sW}, 2'); a(f'v_add_u32 {vr(vMw)}, s6, {vr(vMr)}')
    a(f'v_and_b32 {vr(t0)}, 31, {vr(vLane)}'); a(f'v_lshlrev_b32 {vr(vMp)}, 4, {vr(t0)}'); a(f'v_add_u32 {vr(vMp)}, {MX}, {vr(vMp)}')
    a(f'v_lshlrev_b32 {vr(vPr)}, 5, {vr(t0)}'); a(f'v_lshrrev_b32 {vr(t1)}, 5, {vr(vLane)}')
    a(f'v_lshl_add_u32 {vr(vPr)}, {vr(t1)}, 4, {vr(vPr)}'); a(f'v_add_u32 {vr(vPr)}, {PB}, {vr(vPr)}')
    a(f'v_lshlrev_b32 {vr(vPw)}, 5, {vr(vI)}'); a(f'v_lshl_add_u32 {vr(vPw)}, {vr(vG)}, 3, {vr(vPw)}')
    a(f's_lshl_b32 s6, s{sW}, 10'); a(f's_add_u32 s6, s6, {PB}'); a(f'v_add_u32 {vr(vPw)}, s6, {vr(vPw)}')
    a(f'v_mul_u32_u24 {vr(vQ)}, {QROW}, {vr(vI)}'); a(f'v_lshl_add_u32 {vr(vQ)}, {vr(vG)}, 4, {vr(vQ)}'); a(f'v_add_u32 {vr(vQ)}, {SQ}, {vr(vQ)}')
    a(f's_mul_i32 s6, s{sW}, {4*QROW}'); a(f's_add_u32 s6, s6, {SQ}'); a(f'v_add_u32 {vr(vQw)}, s6, {vr(vL16)}')
    a(f'v_add_u32 {vr(vCw)}, s{sM0}, {vr(vL16)}'); a(f'v_add_u32 {vr(vCw+1)}, {CB}, {vr(vCw)}')
    a(f'v_mov_b32 {vr(vC)}, {f2u(SCALE):#x}')
    for r in (mQ, mQ + 1, mP): a(f'v_mov_b32 {vr(r)}, 0xff800000')
    a(f'v_mov_b32 {vr(lQ)}, 0'); a(f'v_mov_b32 {vr(lQ+1)}, 0')
    vm.wait('q')
    a(f's_mov_b32 s7, {cfg.spin_max}')
    a('Q_chk:')
    umax_tree(tt, range(CF, CF + 32))
    a(f'v_cmp_eq_u32 vcc, -1, {vr(tt)}')
    a('s_cbranch_vccz Q_ok')
    a(f's_sleep {cfg.qsleep}')
    q_loads(a)
    a('s_waitcnt vmcnt(0)')
    a('s_sub_u32 s7, s7, 1'); a('s_cmp_lg_u32 s7, 0'); a('s_cbranch_scc1 Q_chk')
    a('Q_ok:')
    stamp(3)
    for nt in range(2):
        a('s_barrier')
        for k in range(4): a(f'ds_write_b128 {vr(vQw)}, {vr(CF+16*nt+4*k,4)} offset:{QROW*k}')
        a('s_waitcnt lgkmcnt(0)'); a('s_barrier')
        for ks in range(16): a(f'ds_read_b128 {ar(64*nt+4*ks,4)}, {vr(vQ)} offset:{64*ks}')
        a('s_waitcnt lgkmcnt(0)')
    for rho in range(4):
        par = rho & 1
        for ks in range(16):
            a(f'ds_read_b128 {vr(CF+4*ks,4)}, {vr(vA+par)} offset:{64*ks}')
        for ks in range(16):
            a(f's_waitcnt lgkmcnt({15-ks})')
            for nt in range(2):
                c = '0' if ks == 0 else vr(S + 4 * nt, 4)
                a(f'v_mfma_f32_16x16x32_bf16 {vr(S+4*nt,4)}, {vr(CF+4*ks,4)}, {ar(64*nt+4*ks,4)}, {c}')
        for nt in range(2):
            a(f'v_max_f32 {vr(Mx+nt)}, {vr(S+4*nt)}, {vr(S+4*nt+1)}')
            a(f'v_max3_f32 {vr(Mx+nt)}, {vr(Mx+nt)}, {vr(S+4*nt+2)}, {vr(S+4*nt+3)}')
            allred_rows(Mx + nt, tt, 'v_max_f32')
            a(f'ds_write_b32 {vr(vMw)}, {vr(Mx+nt)} offset:{256*nt}')
        a('s_waitcnt lgkmcnt(0)'); a('s_barrier')
        a(f'ds_read_b128 {vr(MXR,4)}, {vr(vMr)}'); a(f'ds_read_b128 {vr(MXR+4,4)}, {vr(vMr)} offset:256'); a(f'ds_read_b128 {vr(MXR+8,4)}, {vr(vMp)}')
        if 1 <= rho <= 2:
            vm.wait(('c', rho + 1))
            for k in range(16): a(f'ds_write_b128 {vr(vCw+1-par)}, {ar(64*(rho+1)+4*k,4)} offset:{k*CROW}')
            a('s_waitcnt lgkmcnt(15)')
        else:
            a('s_waitcnt lgkmcnt(0)')
        for i, (m, al) in enumerate(((mQ, aQ), (mQ + 1, aQ + 1), (mP, aP))):
            R = MXR + 4 * i
            a(f'v_max_f32 {vr(R)}, {vr(R)}, {vr(R+1)}'); a(f'v_max3_f32 {vr(R)}, {vr(R)}, {vr(R+2)}, {vr(R+3)}')
            a(f'v_mul_f32 {vr(R)}, {vr(R)}, {vr(vC)}'); a(f'v_max_f32 {vr(R)}, {vr(R)}, {vr(m)}')
            a(f'v_sub_f32 {vr(al)}, {vr(m)}, {vr(R)}'); a(f'v_exp_f32 {vr(al)}, {vr(al)}'); a(f'v_mov_b32 {vr(m)}, {vr(R)}')
        for nt in range(2):
            for r in range(4):
                a(f'v_fma_f32 {vr(S+4*nt+r)}, {vr(S+4*nt+r)}, {vr(vC)}, -{vr(mQ+nt)}')
            for r in range(4): a(f'v_exp_f32 {vr(S+4*nt+r)}, {vr(S+4*nt+r)}')
            a(f'v_mul_f32 {vr(lQ+nt)}, {vr(lQ+nt)}, {vr(aQ+nt)}')
            a(f'v_cvt_pk_bf16_f32 {vr(PK+2*nt)}, {vr(S+4*nt)}, {vr(S+4*nt+1)}'); a(f'v_cvt_pk_bf16_f32 {vr(PK+2*nt+1)}, {vr(S+4*nt+2)}, {vr(S+4*nt+3)}')
            a(f'ds_write_b64 {vr(vPw)}, {vr(PK+2*nt,2)} offset:{512*nt}')
            for r in range(4): a(f'v_add_f32 {vr(lQ+nt)}, {vr(lQ+nt)}, {vr(S+4*nt+r)}')
        if rho > 0:
            for r in range(64): a(f'v_mul_f32 {vr(ACC+r)}, {vr(ACC+r)}, {vr(aP)}')
        a('s_waitcnt lgkmcnt(0)'); a('s_barrier')
        for ks in range(4): a(f'ds_read_b128 {vr(PF+4*ks,4)}, {vr(vPr)} offset:{1024*ks}')
        for ks in range(4):
            for ct in range(4):
                for sec in range(2):
                    a(f'ds_read_b64_tr_b16 {vr(CF+16*ks+4*ct+2*sec,2)}, {vr(vTr+par)} offset:{(16*ks+4*sec)*CROW + 64*ct}')
        for ks in range(4):
            a(f's_waitcnt lgkmcnt({min(15, 8*(3-ks))})')
            for ct in range(4):
                c = '0' if (rho == 0 and ks == 0) else vr(ACC + 16 * ct, 16)
                a(f'v_mfma_f32_32x32x16_bf16 {vr(ACC+16*ct,16)}, {vr(CF+16*ks+4*ct,4)}, {vr(PF+4*ks,4)}, {c}')
    stamp(4)
    for nt in range(2):
        allred_rows(lQ + nt, tt, 'v_add_f32')
        a(f'ds_write_b32 {vr(vMw)}, {vr(lQ+nt)} offset:{512+256*nt}')
    TROW = 1040
    a(f'v_and_b32 {vr(t0)}, 31, {vr(vLane)}'); a(f'v_mul_u32_u24 {vr(t0)}, {TROW}, {vr(t0)}')
    a(f'v_lshrrev_b32 {vr(t1)}, 5, {vr(vLane)}'); a(f'v_lshl_add_u32 {vr(t0)}, {vr(t1)}, 3, {vr(t0)}')
    a(f's_lshl_b32 s6, s{sW}, 8'); a(f'v_add_u32 {vr(t0)}, s6, {vr(t0)}')
    for ct in range(4):
        for rq in range(4):
            R = ACC + 16 * ct + 4 * rq; P = CF + 2 * (4 * ct + rq)
            a(f'v_cvt_pk_bf16_f32 {vr(P)}, {vr(R)}, {vr(R+1)}'); a(f'v_cvt_pk_bf16_f32 {vr(P+1)}, {vr(R+2)}, {vr(R+3)}')
            a(f'ds_write_b64 {vr(t0)}, {vr(P,2)} offset:{64*ct+16*rq}')
    a('s_waitcnt lgkmcnt(0)'); a('s_barrier')
    a(f's_mul_i32 s6, s{sW}, {8*TROW}'); a(f'v_add_u32 {vr(t0)}, s6, {vr(vL16)}')
    for k in range(8): a(f'ds_read_b128 {vr(CF+32+4*k,4)}, {vr(t0)} offset:{k*TROW}')
    a(f'ds_read_b128 {vr(MXR,4)}, {vr(vMp)} offset:512')
    a(f's_lshl_b32 s7, s{sW}, 19'); a(f's_lshl_b32 s6, s{sBeta}, 10'); a('s_add_u32 s7, s7, s6'); a(f's_add_u32 s7, s7, {PART if not cfg.bskip & 16 else OOB}')
    if cfg.emu & 4:
        a(f's_cmp_eq_u32 s{sHalf}, 1'); a(f's_cselect_b32 s7, {OOB}, s7')
    for k in range(8):
        a(f's_waitcnt lgkmcnt({8-k})')
        a(f's_add_u32 s6, s7, {k*65536}')
        a(f'buffer_store_dwordx4 {vr(CF+32+4*k,4)}, {vr(vL16)}, {srd(S_WS)}, s6 offen {cfg.pst_flags}')
    a('s_waitcnt lgkmcnt(0)')
    a(f'v_add_f32 {vr(MXR)}, {vr(MXR)}, {vr(MXR+1)}'); a(f'v_add_f32 {vr(MXR+2)}, {vr(MXR+2)}, {vr(MXR+3)}')
    a(f'v_add_f32 {vr(PK+1)}, {vr(MXR)}, {vr(MXR+2)}'); a(f'v_mov_b32 {vr(PK)}, {vr(mP)}')
    a(f'v_and_b32 {vr(t0)}, 31, {vr(vLane)}'); a(f'v_lshrrev_b32 {vr(t1)}, 5, {vr(vLane)}')
    a(f'v_lshl_add_u32 {vr(t0)}, {vr(t0)}, 1, {vr(t1)}'); a(f'v_lshlrev_b32 {vr(t0)}, 9, {vr(t0)}')
    a(f's_lshl_b32 s6, s{sBeta}, 3'); a(f's_add_u32 s6, s6, {PSTAT}')
    a(f'v_min_u32 {vr(PK)}, -2, {vr(PK)}'); a(f'v_min_u32 {vr(PK+1)}, -2, {vr(PK+1)}')
    a('s_waitcnt vmcnt(0)'); a('s_barrier')
    Ls = lab('nops')
    a(f's_cmp_lg_u32 s{sW}, 0'); a(f's_cbranch_scc1 {Ls}')
    if cfg.pshare: a('s_mov_b64 exec, 0xffffffff')
    a(f'buffer_store_dwordx2 {vr(PK,2)}, {vr(t0)}, {srd(S_WS)}, s6 offen sc1')
    if cfg.pshare: a('s_mov_b64 exec, -1')
    a(f'{Ls}:')
    stamp(5)
    if cfg.bstop == 2: a('s_branch B_end')
    V = VAlloc(base)
    UB = 73728; OT = UB + 65536; RED = OT + 2048
    AF = V(64, 4); BF = V(32, 4); D = V(36, 4); F = V(4); ST = V(2); Mx = V(); Lx = V(); vU = V(2); vR = V(4); vT = V(4); PA = V(8, 4); O = V(12, 4)
    a(f's_mul_i32 s6, s{sBeta}, 73728'); mk_srd(S_WO, P_BWO, 's6', 73728)
    a(f's_lshl_b32 s6, s{sBeta}, 7'); a(f's_sub_u32 s7, {512*8192}, s6'); mk_srd(S_U, P_WUV, 's6', 's7')
    for bit, Rr in ((64, S_U), (128, S_WO)):
        if cfg.bskip & bit: a(f's_mov_b32 s{Rr+2}, 0')
    a(f'v_lshrrev_b32 {vr(t0)}, 3, {vr(vLane)}'); a(f'v_and_b32 {vr(t1)}, 7, {vr(vLane)}')
    a(f'v_and_b32 {vr(t2)}, 2, {vr(t0)}'); a(f'v_xor_b32 {vr(t1)}, {vr(t1)}, {vr(t2)}')
    a(f'v_lshlrev_b32 {vr(t0)}, 13, {vr(t0)}')
    a(f'v_lshl_add_u32 {vr(vU)}, {vr(t1)}, 4, {vr(t0)}')
    a(f'v_xor_b32 {vr(t1)}, 4, {vr(t1)}'); a(f'v_lshl_add_u32 {vr(vU+1)}, {vr(t1)}, 4, {vr(t0)}')
    a(f's_lshl_b32 s{sM0}, s{sW}, 14'); a(f's_lshl_b32 s{sSo}, s{sW}, 20')
    if cfg.emu & 2:
        a(f's_lshl_b32 s6, s{sH}, 8'); a(f's_lshl_b32 s7, s{sHalf}, 21'); a('s_add_u32 s6, s6, s7'); a(f's_sub_u32 s7, {512*8192}, s6'); mk_srd(S_U, P_WUV, 's6', 's7')
        a(f'v_lshlrev_b32 {vr(vU)}, 13, {vr(vG)}'); a(f'v_lshl_add_u32 {vr(vU)}, {vr(vI)}, 4, {vr(vU)}'); a(f'v_mov_b32 {vr(vU+1)}, {vr(vU)}')
        a(f's_lshl_b32 s{sSo}, s{sW}, 19')
    for k in range(16):
        a(f's_add_u32 m0, s{sM0}, {UB + k*1024}'); a(f's_add_u32 s6, s{sSo}, {k*(32768 if cfg.emu & 2 else 65536)}')
        a(f'buffer_load_dwordx4 {vr(vU+(k&1))}, {srd(S_U)}, s6 offen {fl} lds')
    a(f's_mul_i32 s{sM0}, s{sW}, 18432')
    for k in range(18):
        a(f's_add_u32 s6, s{sM0}, {k*1024}'); a('s_mov_b32 m0, s6')
        a(f'buffer_load_dwordx4 {vr(vL16)}, {srd(S_WO)}, s6 offen {fl} lds')
    mk_wo_tr_addr(vLane, vT, t0, t1, False)
    a(f'v_bfe_u32 {vr(t0)}, {vr(vLane)}, 2, 2'); a(f'v_lshl_add_u32 {vr(t0)}, {vr(vG)}, 3, {vr(t0)}'); a(f'v_lshlrev_b32 {vr(t0)}, 7, {vr(t0)}')
    a(f'v_and_b32 {vr(t1)}, 3, {vr(vLane)}'); a(f'v_lshl_add_u32 {vr(t0)}, {vr(t1)}, 3, {vr(t0)}'); a(f'v_add_u32 {vr(t0)}, {UB}, {vr(t0)}')
    a(f'v_bfe_u32 {vr(t1)}, {vr(vLane)}, 3, 2')
    for t in range(4):
        a(f'v_xor_b32 {vr(t2)}, {t}, {vr(t1)}'); a(f'v_lshl_add_u32 {vr(vR+t)}, {vr(t2)}, 5, {vr(t0)}')
    a(f'v_lshlrev_b32 {vr(t0)}, 10, {vr(vI)}'); a(f'v_lshl_add_u32 {vr(t0)}, {vr(vG)}, 4, {vr(t0)}')
    a(f'v_lshlrev_b32 {vr(t1)}, 3, {vr(vI)}')
    a(f's_lshl_b32 s6, s{sH}, 10' if cfg.pshare else f's_lshl_b32 s6, s{sBeta}, 9'); a(f's_lshl_b32 s7, s{sW}, 7'); a('s_add_u32 s6, s6, s7'); a(f's_add_u32 s6, s6, {PSTAT}')
    a(f's_mov_b32 s7, {cfg.spin_max}')
    a('P_poll:')
    a(f'buffer_load_dwordx2 {vr(ST,2)}, {vr(t1)}, {srd(S_WS)}, s6 offen sc1')
    a('s_waitcnt vmcnt(0)')
    a(f'v_max_u32 {vr(Mx)}, {vr(ST)}, {vr(ST+1)}'); a(f'v_cmp_eq_u32 vcc, -1, {vr(Mx)}')
    a('s_cbranch_vccz P_ok')
    a(f's_sleep {cfg.psleep}')
    a('s_sub_u32 s7, s7, 1'); a('s_cmp_lg_u32 s7, 0'); a('s_cbranch_scc1 P_poll')
    a('P_ok:')
    stamp(6)
    vm = VM(a)
    a(f's_lshl_b32 s6, s{sH}, 16'); a(f's_lshl_b32 s7, s{sW}, 14'); a('s_add_u32 s6, s6, s7'); a(f's_add_u32 s6, s6, {PART if not cfg.bskip & 256 else OOB}')
    if cfg.emu & 4:
        a(f's_cmp_eq_u32 s{sHalf}, 1'); a(f's_cselect_b32 s6, {OOB}, s6')
    for ks in range(16):
        if cfg.emu & 4:
            vm.issue(f'buffer_load_dwordx4 {vr(AF+4*ks,4)}, {vr(vL16)}, {srd(S_WS)}, s6 offen offset:{2048*(ks&1)} sc1', ('a', ks))
            if ks & 1: a(f's_add_u32 s6, s6, {4096 if ks != 7 else OOB}')
            continue
        if cfg.bskip & 512:
            vm.issue(f'buffer_load_dwordx4 {vr(AF+4*ks,4)}, {vr(vL16)}, {srd(S_WS)}, s6 offen offset:{1024*(ks&3)} sc1', ('a', ks))
            if ks & 3 == 3: a('s_add_u32 s6, s6, 4096')
            continue
        vm.issue(f'buffer_load_dwordx4 {vr(AF+4*ks,4)}, {vr(t0)}, {srd(S_WS)}, s6 offen offset:{64*ks} {cfg.pld_flags}', ('a', ks))
    a('s_barrier')
    wo_frag_reads(2, vT)
    a(f'v_mov_b32 {vr(Mx)}, {vr(ST)}')
    for sh in (8, 4, 2, 1): a(f'v_max_f32_dpp {vr(Mx)}, {vr(Mx)}, {vr(Mx)} row_ror:{sh} {DPPF}')
    a(f'v_sub_f32 {vr(ST)}, {vr(ST)}, {vr(Mx)}'); a(f'v_exp_f32 {vr(ST)}, {vr(ST)}')
    a(f'v_mul_f32 {vr(Lx)}, {vr(ST)}, {vr(ST+1)}')
    for sh in (8, 4, 2, 1): a(f'v_add_f32_dpp {vr(Lx)}, {vr(Lx)}, {vr(Lx)} row_ror:{sh} {DPPF}')
    a(f'v_rcp_f32 {vr(Lx)}, {vr(Lx)}'); a(f'v_mul_f32 {vr(ST)}, {vr(ST)}, {vr(Lx)}')
    for r in range(4):
        for q in range(4):
            a(f'v_mov_b32_dpp {vr(F+r)}, {vr(ST)} row_newbcast:{4*q+r} row_mask:{1<<q:#x} bank_mask:0xf')
    a('s_waitcnt lgkmcnt(0)')
    def u_reads(ks):
        for t in range(4):
            for sec in range(2):
                a(f'ds_read_b64_tr_b16 {vr(BF+16*(ks&1)+4*t+2*sec,2)}, {vr(vR+t)} offset:{(32*ks+4*sec)*128}')
    u_reads(0)
    for ks in range(16):
        if ks + 1 < 16: u_reads(ks + 1)
        vm.wait(('a', ks))
        a(f's_waitcnt lgkmcnt({8 if ks + 1 < 16 else 0})')
        for t in range(4):
            c = '0' if ks == 0 else vr(D + 4 * t, 4)
            a(f'v_mfma_f32_16x16x32_bf16 {vr(D+4*t,4)}, {vr(AF+4*ks,4)}, {vr(BF+16*(ks&1)+4*t,4)}, {c}')
    a(f'v_lshlrev_b32 {vr(t0)}, 7, {vr(vG)}'); a(f'v_lshl_add_u32 {vr(t0)}, {vr(vI)}, 1, {vr(t0)}')
    a(f's_lshl_b32 s6, s{sW}, 9'); a(f's_add_u32 s6, s6, {OT}'); a(f'v_add_u32 {vr(t0)}, s6, {vr(t0)}')
    for t in range(4):
        a(f'v_mul_f32 {vr(O+t)}, {vr(F)}, {vr(D+4*t)}')
        for r in range(1, 4): a(f'v_fma_f32 {vr(O+t)}, {vr(F+r)}, {vr(D+4*t+r)}, {vr(O+t)}')
        a(f'v_cvt_pk_bf16_f32 {vr(O+t)}, {vr(O+t)}, {vr(O+t)}')
        a(f'ds_write_b16 {vr(t0)}, {vr(O+t)} offset:{32*t}')
    a(f'v_lshlrev_b32 {vr(t1)}, 7, {vr(vI)}'); a(f'v_lshl_add_u32 {vr(t1)}, {vr(vG)}, 4, {vr(t1)}'); a(f'v_add_u32 {vr(t1)}, {OT}, {vr(t1)}')
    if cfg.dyn:
        a(f'v_mov_b32 {vr(vC0)}, {RED}'); a(f'v_mov_b32 {vr(t2)}, 0'); a(f'ds_write_b32 {vr(vC0)}, {vr(t2)}')
    a('s_waitcnt lgkmcnt(0)'); a('s_barrier')
    for ks in range(2): a(f'ds_read_b128 {vr(PA+4*ks,4)}, {vr(t1)} offset:{64*ks}')
    a(f'v_mul_u32_u24 {vr(t0)}, {64*2304}, {vr(vG)}')
    a(f'v_and_b32 {vr(t1)}, 3, {vr(vLane)}'); a(f'v_bfe_u32 {vr(t2)}, {vr(vLane)}, 2, 2')
    a(f'v_lshl_add_u32 {vr(t1)}, {vr(t1)}, 2, {vr(t2)}'); a(f'v_lshl_add_u32 {vr(t1)}, {vr(t1)}, 2, {vr(t0)}')
    a(f'v_lshl_add_u32 {vr(t0)}, {vr(vI)}, 4, {vr(t0)}')
    a(f's_mul_i32 s6, s{sBeta}, 2304'); a(f's_mul_i32 s7, s{sW}, 576'); a('s_add_u32 s6, s6, s7'); a(f's_add_u32 s6, s6, {YB}')
    a('s_waitcnt lgkmcnt(0)')
    for t in range(9):
        for ks in range(2):
            c = '0' if ks == 0 else vr(D + 4 * t, 4)
            a(f'v_mfma_f32_16x16x32_bf16 {vr(D+4*t,4)}, {vr(PA+4*ks,4)}, {ar(AW+4*(t*2+ks),4)}, {c}')
    for t in range(9):
        a(f'v_add_f32 {vr(D+4*t)}, {vr(D+4*t)}, {vr(D+4*t+1)}'); a(f'v_add_f32 {vr(D+4*t+2)}, {vr(D+4*t+2)}, {vr(D+4*t+3)}')
        a(f'v_add_f32 {vr(O+t)}, {vr(D+4*t)}, {vr(D+4*t+2)}'); a(f'v_min_u32 {vr(O+t)}, -2, {vr(O+t)}')
    a(f'buffer_store_dwordx4 {vr(O,4)}, {vr(t0)}, {srd(S_WS)}, s6 offen sc1')
    a(f'buffer_store_dwordx4 {vr(O+4,4)}, {vr(t0)}, {srd(S_WS)}, s6 offen offset:256 sc1')
    a(f'buffer_store_dword {vr(O+8)}, {vr(t1)}, {srd(S_WS)}, s6 offen offset:512 sc1')
    stamp(7)
    if cfg.bstop == 3: a('s_branch B_end')
    V = VAlloc(base)
    Y = V(32, 4); AS = Y; vYo = V(); vOo = V(); E = V()
    sTau, sTb, sSg, sY, sDone, sO = 14, 15, 80, 81, 82, 83
    if cfg.dyn:
        a(f's_cmp_eq_u32 s{sW}, 3'); a('s_cbranch_scc1 H_start')
        a(f's_mov_b32 s{sTau}, s{sBeta}'); a(f's_lshr_b32 s7, s{sW}, 1')
        Ls = lab('w1')
        a(f's_cmp_lg_u32 s{sW}, 1'); a(f's_cbranch_scc1 {Ls}')
        a(f's_and_b32 s7, s{sBeta}, 7')
        if cfg.mon: a('s_cmp_eq_u32 s7, 7'); a('s_cbranch_scc1 H_start')
        a('s_cmp_ge_u32 s7, 2'); a('s_cbranch_scc1 B_end')
        a(f's_lshr_b32 s{sTau}, s{sBeta}, 3'); a(f's_add_u32 s{sTau}, s{sTau}, 64')
        a(f'{Ls}:')
    else:
        a(f's_and_b32 s6, s{sW}, 1'); a('s_lshl_b32 s6, s6, 6'); a(f's_add_u32 s{sTau}, s{sBeta}, s6')
        a(f's_cmp_ge_u32 s{sTau}, 72'); a('s_cbranch_scc1 B_end')
        a(f's_lshr_b32 s7, s{sW}, 1')
    a(f's_mul_i32 s{sTb}, s{sTau}, 57'); a(f's_lshr_b32 s{sTb}, s{sTb}, 10')
    a(f's_mul_i32 s6, s{sTb}, 18'); a(f's_sub_u32 s{sSg}, s{sTau}, s6')
    a(f's_mul_i32 s{sY}, s{sTb}, {64*2304}'); a(f's_lshl_b32 s6, s{sSg}, 7'); a(f's_add_u32 s{sY}, s{sY}, s6')
    a(f's_mul_i32 s6, s7, {YB - YA}'); a(f's_add_u32 s{sY}, s{sY}, s6'); a(f's_add_u32 s{sY}, s{sY}, {YA}')
    a(f's_mul_i32 s{sO}, s{sTb}, 2304'); a(f's_lshl_b32 s6, s{sSg}, 6'); a(f's_add_u32 s{sO}, s{sO}, s6')
    a('s_mul_i32 s6, s7, 1152'); a(f's_add_u32 s{sO}, s{sO}, s6')
    a(f'v_lshrrev_b32 {vr(t0)}, 3, {vr(vLane)}'); a(f'v_and_b32 {vr(t1)}, 7, {vr(vLane)}')
    a(f'v_mul_u32_u24 {vr(vYo)}, 2304, {vr(t0)}'); a(f'v_lshl_add_u32 {vr(vYo)}, {vr(t1)}, 4, {vr(vYo)}')
    a(f'v_bfe_u32 {vr(t0)}, {vr(vLane)}, 2, 1'); a(f'v_lshl_add_u32 {vr(t0)}, {vr(t0)}, 2, {vr(vG)}')
    a(f'v_and_b32 {vr(t1)}, 3, {vr(vLane)}'); a(f'v_lshl_add_u32 {vr(t0)}, {vr(t0)}, 2, {vr(t1)}'); a(f'v_lshlrev_b32 {vr(vOo)}, 1, {vr(t0)}')
    stamp(9)
    a(f's_mov_b32 s{sDone}, 0'); a(f's_mov_b32 s7, {cfg.spin_max}')
    a('R_pass:')
    for t in range(8):
        Ls = lab('ld')
        a(f's_bitcmp1_b32 s{sDone}, {t}'); a(f's_cbranch_scc1 {Ls}')
        a(f's_add_u32 s6, s{sY}, {t*8*2304}')
        a(f'buffer_load_dwordx4 {vr(Y+4*t,4)}, {vr(vYo)}, {srd(S_WS)}, s6 offen {cfg.r_flags}')
        a(f'{Ls}:')
    a('s_waitcnt vmcnt(0)')
    for t in range(8):
        Ls = lab('ck'); y = Y + 4 * t
        a(f's_bitcmp1_b32 s{sDone}, {t}'); a(f's_cbranch_scc1 {Ls}')
        a(f'v_max3_u32 {vr(E)}, {vr(y)}, {vr(y+1)}, {vr(y+2)}'); a(f'v_max_u32 {vr(E)}, {vr(E)}, {vr(y+3)}')
        a(f'v_cmp_eq_u32 vcc, -1, {vr(E)}')
        a(f's_cbranch_vccnz {Ls}')
        a(f's_bitset1_b32 s{sDone}, {t}')
        a(f'{Ls}:')
    a(f's_cmp_eq_u32 s{sDone}, 255'); a('s_cbranch_scc1 R_done')
    if cfg.rsleep: a(f's_sleep {cfg.rsleep}')
    a('s_sub_u32 s7, s7, 1'); a('s_cmp_lg_u32 s7, 0'); a('s_cbranch_scc1 R_pass')
    a('R_done:')
    stamp(10)
    for st in (16, 8, 4):
        for k in range(0, st, 2): a(f'v_pk_add_f32 {vr(Y+k,2)}, {vr(Y+k,2)}, {vr(Y+k+st,2)}')
    a(f'v_permlane32_swap_b32 {vr(AS)}, {vr(AS+2)}'); a(f'v_permlane32_swap_b32 {vr(AS+1)}, {vr(AS+3)}')
    a(f'v_add_f32 {vr(AS)}, {vr(AS)}, {vr(AS+2)}'); a(f'v_add_f32 {vr(AS+1)}, {vr(AS+1)}, {vr(AS+3)}')
    a(f'v_permlane16_swap_b32 {vr(AS)}, {vr(AS+1)}')
    a(f'v_add_f32 {vr(AS)}, {vr(AS)}, {vr(AS+1)}')
    a(f'v_add_f32_dpp {vr(AS)}, {vr(AS)}, {vr(AS)} row_ror:8 {DPPF}')
    a(f'v_cvt_pk_bf16_f32 {vr(AS)}, {vr(AS)}, {vr(AS)}')
    a('s_mov_b32 exec_lo, 0x00ff00ff'); a('s_mov_b32 exec_hi, 0x00ff00ff')
    a(f'buffer_store_short {vr(AS)}, {vr(vOo)}, {srd(S_OUT)}, s{sO} offen {cfg.out_flags}')
    a('s_mov_b64 exec, -1')
    if cfg.dyn:
        a(f's_cmp_lg_u32 s{sW}, 0'); a('s_cbranch_scc1 B_fin')
        a(f'ds_write_b32 {vr(vC0)}, {vr(vC0)}'); a('s_waitcnt lgkmcnt(0)')
        a('B_fin:')
    stamp(11)
    a('B_end:')
    stamp_flush(t0, 'B')
    a('s_endpgm')
    if cfg.dyn: gen_helper(vLane, sHalf, sBeta, base, vC0)

def gen_helper(vLane, sHalf, sBeta, base, vFl):
    V = VAlloc(base)
    PG = V(4, 4); vA = V(); vB = V(); vO = V(); vP = V(); S = V(); t = V(); dm = V(2)
    pf, p, d, sS, sJ, sD, sN = 16, 20, 24, 28, 29, 30, 31
    BIG = 0x2000000
    a('H_start:')
    if cfg.xh:
        a(f's_bitcmp1_b32 s{sH}, 2'); a('s_cbranch_scc1 B_end')
        a(f's_add_u32 s{sH}, s{sH}, {cfg.xd}'); a(f's_and_b32 s{sH}, s{sH}, 31')
    a(f's_lshl_b32 s6, s{sHalf}, 6'); a(f's_add_u32 s6, s6, s{sH}'); a('s_lshl_b32 s6, s6, 20')
    mk_srd(S_V, P_V, 's6', BIG + 0x100000)
    a(f'v_lshlrev_b32 {vr(vA)}, 7, {vr(vLane)}'); a(f'v_and_b32 {vr(vB)}, 4095, {vr(vA)}'); a(f'v_add_u32 {vr(vA)}, 4096, {vr(vA)}')
    a(f'v_lshrrev_b32 {vr(t)}, 5, {vr(vLane)}'); a(f'v_mul_u32_u24 {vr(t)}, 20480, {vr(t)}'); a(f'v_add_u32 {vr(vB)}, {vr(vB)}, {vr(t)}')
    if cfg.hloc:
        a(f's_and_b32 s6, s{sBeta}, 56'); a(f'v_and_b32 {vr(vP)}, 7, {vr(vLane)}'); a(f'v_add_u32 {vr(vP)}, s6, {vr(vP)}')
        a(f'v_mul_u32_u24 {vr(vP)}, {cfg.psp}, {vr(vP)}')
    else: a(f'v_mul_u32_u24 {vr(vP)}, {cfg.psp}, {vr(vLane)}')
    a(f'v_add_u32 {vr(vP)}, {PROG}, {vr(vP)}')
    for j in range(3): a(f's_mov_b32 s{pf+j}, 43')
    a(f's_mov_b32 s{sN}, {cfg.spin_max}')
    if cfg.dyn == 2: a('s_branch H_end')
    if cfg.mon: a(f's_cmp_eq_u32 s{sW}, 1'); a('s_cbranch_scc1 M_start')
    NP = 4 if cfg.mon else 3
    def psum():
        for j in range(3): a(f'v_med3_i32 {vr(PG+j)}, {vr(PG+j)}, -1, {28 + cfg.hoff}')
        a(f'v_add3_u32 {vr(S)}, {vr(PG)}, {vr(PG+1)}, {vr(PG+2)}')
        for sh in (4, 2, 1): a(f'v_add_u32_dpp {vr(S)}, {vr(S)}, {vr(S)} row_ror:{sh} {DPPF}')
        a(f'v_lshlrev_b32 {vr(S)}, 3, {vr(S)}')
        a(f'v_readfirstlane_b32 s{sS}, {vr(S)}')
    a(f'buffer_load_dwordx{NP} {vr(PG,NP)}, {vr(vP)}, {srd(S_WS)}, 0 offen {cfg.pl_flags}')
    a('s_waitcnt vmcnt(0)')
    a('H_loop:')
    psum()
    for j in range(3): a(f'v_readlane_b32 s{p+j}, {vr(PG+j)}, s{sBeta}')
    if cfg.mon: a(f'v_readlane_b32 s6, {vr(PG+3)}, 7'); a(f's_add_i32 s{sS}, s{sS}, s6')
    a(f'buffer_load_dwordx{NP} {vr(PG,NP)}, {vr(vP)}, {srd(S_WS)}, 0 offen {cfg.pl_flags}')
    NEG = -(1 << 20)
    for j in range(3):
        a(f's_mul_i32 s6, s{p+j}, 192'); a(f's_sub_i32 s{d+j}, s{sS}, s6')
        a(f's_mul_i32 s6, s{pf+j}, {cfg.hK}'); a(f's_add_i32 s{d+j}, s{d+j}, s6')
        a(f's_add_i32 s6, s{pf+j}, {cfg.hoff - 16 - cfg.hmar}'); a(f's_cmp_ge_i32 s6, s{p+j}')
        a(f's_cselect_b32 s{d+j}, s{d+j}, {NEG}')
    if cfg.xh:
        for j in range(3):
            a(f's_lshl_b32 s{d+j}, s{pf+j}, 12'); a(f's_cmp_gt_i32 s{pf+j}, {43 - cfg.xh}'); a(f's_cselect_b32 s{d+j}, s{d+j}, {NEG}')
    a(f's_cmp_ge_i32 s{d}, s{d+1}'); a(f's_cselect_b32 s{sJ}, 0, 1'); a(f's_max_i32 s{sD}, s{d}, s{d+1}')
    a(f's_cmp_ge_i32 s{sD}, s{d+2}'); a(f's_cselect_b32 s{sJ}, s{sJ}, 2'); a(f's_max_i32 s{sD}, s{sD}, s{d+2}')
    a(f's_cmp_eq_i32 s{sD}, {NEG}'); a('s_cbranch_scc1 H_end')
    a(f's_sub_u32 s{sN}, s{sN}, 1'); a(f's_cmp_eq_u32 s{sN}, 0'); a('s_cbranch_scc1 H_end')
    a(f's_cmp_lt_i32 s{sD}, {43 * cfg.hK + cfg.hth}'); a('s_cbranch_scc1 H_idle')
    for j in range(3):
        a(f's_cmp_eq_u32 s{sJ}, {j}'); a(f's_cselect_b32 s6, s{pf+j}, s6'); a(f's_subb_u32 s{pf+j}, s{pf+j}, 0')
    a('s_mul_i32 s6, s6, 24576'); a('s_sub_u32 s6, s6, 32768')
    a(f's_cmp_eq_u32 s{sJ}, 2'); a(f's_cselect_b32 s7, {BIG}, 0'); a('s_add_u32 s6, s6, s7')
    a(f's_cmp_eq_u32 s{sJ}, 1'); a('s_cselect_b64 vcc, -1, 0'); a('s_cselect_b32 s7, 25, 13'); a('s_lshl_b32 s7, 1, s7'); a('s_add_u32 s7, s7, s6')
    a(f'v_cndmask_b32 {vr(vO)}, {vr(vA)}, {vr(vB)}, vcc')
    a(f'buffer_load_dword {vr(dm)}, {vr(vO)}, {srd(S_V)}, s6 offen {cfg.h_flags}')
    a(f'buffer_load_dword {vr(dm+1)}, {vr(vO)}, {srd(S_V)}, s7 offen {cfg.h_flags}')
    a('s_waitcnt vmcnt(2)')
    a('s_branch H_loop')
    a('H_idle:')
    a(f'ds_read_b32 {vr(t)}, {vr(vFl)}')
    a('s_waitcnt vmcnt(0) lgkmcnt(0)'); a(f's_sleep {cfg.hsleep}')
    a(f'v_cmp_eq_u32 vcc, 0, {vr(t)}')
    a('s_cbranch_vccnz H_loop')
    a('H_end:')
    if cfg.stamps:
        a(f's_add_u32 s98, s{pf}, s{pf+1}'); a(f's_add_u32 s98, s98, s{pf+2}'); a('s_sub_u32 s98, 129, s98')
    stamp(8)
    a('s_branch B_end')
    if cfg.mon:
        GL = PROG + 0x8000; sX, sG, sDl, sO, sL = 16, 17, 18, 19, 20
        a('M_start:')
        a(f'v_and_b32 {vr(vA)}, 7, {vr(vLane)}'); a(f'v_lshlrev_b32 {vr(vA)}, 7, {vr(vA)}'); a(f'v_add_u32 {vr(vA)}, {GL}, {vr(vA)}')
        a(f's_lshr_b32 s{sX}, s{sBeta}, 3'); a(f's_lshl_b32 s{sG}, s{sX}, 7'); a(f's_add_u32 s{sG}, s{sG}, {GL}')
        a(f's_mul_i32 s{sL}, s{sBeta}, {cfg.psp}'); a(f's_add_u32 s{sL}, s{sL}, {PROG + 12}')
        a(f's_mov_b32 s{sDl}, 0')
        a('M_loop:')
        a(f'buffer_load_dwordx3 {vr(PG,3)}, {vr(vP)}, {srd(S_WS)}, 0 offen {cfg.pl_flags}')
        a(f'buffer_load_dword {vr(vB)}, {vr(vA)}, {srd(S_WS)}, 0 offen sc1')
        a(f'ds_read_b32 {vr(t)}, {vr(vFl)}')
        a('s_waitcnt vmcnt(1)')
        psum()
        a('s_mov_b64 exec, 1')
        a(f'buffer_store_dword {vr(S)}, off, {srd(S_WS)}, s{sG} sc1')
        a('s_mov_b64 exec, -1')
        a('s_waitcnt vmcnt(1) lgkmcnt(0)')
        a(f'v_readlane_b32 s{sO}, {vr(vB)}, s{sX}')
        a(f'v_cmp_eq_u32 vcc, -1, {vr(vB)}')
        a(f's_cmp_eq_u32 s{sO}, -1'); a('s_cbranch_scc1 M_next')
        a(f'v_subrev_u32 {vr(vB)}, s{sO}, {vr(vB)}')
        a(f'v_cndmask_b32 {vr(vB)}, {vr(vB)}, 0, vcc')
        for sh in (4, 2, 1): a(f'v_add_u32_dpp {vr(vB)}, {vr(vB)}, {vr(vB)} row_ror:{sh} {DPPF}')
        a(f'v_readfirstlane_b32 s6, {vr(vB)}')
        a(f's_mul_i32 s6, s6, {cfg.mg}'); a('s_ashr_i32 s6, s6, 5')
        a(f's_sub_i32 s6, s6, s{sDl}'); a(f's_ashr_i32 s6, s6, {cfg.mf}'); a(f's_add_i32 s{sDl}, s{sDl}, s6')
        a(f'v_mov_b32 {vr(vO)}, s{sDl}')
        a('s_mov_b64 exec, 1')
        a(f'buffer_store_dword {vr(vO)}, off, {srd(S_WS)}, s{sL}')
        a('s_mov_b64 exec, -1')
        a('M_next:')
        if cfg.msleep: a(f's_sleep {cfg.msleep}')
        a(f's_cmp_ge_i32 s{sS}, {192 * (28 + cfg.hoff)}'); a('s_cbranch_scc1 M_end')
        a(f's_sub_u32 s{sN}, s{sN}, 1'); a(f's_cmp_eq_u32 s{sN}, 0'); a('s_cbranch_scc1 M_end')
        a(f'v_cmp_eq_u32 vcc, 0, {vr(t)}')
        a('s_cbranch_vccnz M_loop')
        a('M_end:')
        if cfg.stamps: a(f's_sub_u32 s98, {cfg.spin_max}, s{sN}')
        a('s_branch B_end')

def gen():
    hdr = open('/code/' + NAME + '.s.ref').read().split('; Override')[0]
    a(f'{NAME}_kernel:')
    a('s_cmp_ge_u32 s2, 256'); a('s_cbranch_scc1 L_exit')
    a('s_load_dwordx16 s[16:31], s[0:1], 0'); a('s_load_dwordx8 s[32:39], s[0:1], 64'); a('s_load_dwordx4 s[40:43], s[0:1], 96')
    a('v_lshrrev_b32 v1, 6, v0'); a(f'v_readfirstlane_b32 s{sW}, v1')
    if cfg.hmap == 0:
        a('s_and_b32 s6, s2, 7'); a('s_bfe_u32 s7, s2, 0x20003'); a(f's_lshl_b32 s{sH}, s6, 2'); a(f's_add_u32 s{sH}, s{sH}, s7')
    else:
        a(f's_and_b32 s{sH}, s2, 31')
    a(f's_lshr_b32 s{sR}, s2, 5')
    if cfg.stamps:
        a('s_waitcnt lgkmcnt(0)')
        for k in range(16): a(f's_mov_b32 s{84+k}, 0')
        stamp(0)
        a('s_getreg_b32 s96, hwreg(HW_REG_HW_ID)'); a('s_getreg_b32 s97, hwreg(HW_REG_XCC_ID)')
    a(f's_cmp_lt_u32 s{sR}, 2'); a('s_cbranch_scc1 B_role')
    gen_A()
    a('L_exit:'); a('s_endpgm')
    gen_B()
    body = a.finish()
    out = hdr + f'; @launch grid=(256,1,1) block=(256,1,1) lds={LDS_TOTAL}\n'
    out += '; generated by gen/gen.py (hand-written generator)\n'
    out += f'.amdgcn_target "amdgcn-amd-amdhsa--gfx950"\n.text\n.globl {NAME}_kernel\n.p2align 8\n.type {NAME}_kernel,@function\n'
    out += body
    out += f'''.section .rodata,"a"
.p2align 6
.amdhsa_kernel {NAME}_kernel
  .amdhsa_next_free_vgpr 512
  .amdhsa_next_free_sgpr 102
  .amdhsa_accum_offset 256
  .amdhsa_group_segment_fixed_size 0
  .amdhsa_kernarg_size 112
  .amdhsa_user_sgpr_count 2
  .amdhsa_user_sgpr_kernarg_segment_ptr 1
  .amdhsa_system_sgpr_workgroup_id_x 1
.end_amdhsa_kernel
'''
    return out

if __name__ == '__main__':
    outp = sys.argv[1]
    for kv in sys.argv[2:]:
        k, v = kv.split('=', 1); v = v.replace('+', ' ')
        cur = getattr(cfg, k)
        setattr(cfg, k, (v == '1') if isinstance(cur, bool) else type(cur)(v))
    open(outp, 'w').write(gen())
```

```python
import sys, math, struct
from asmlib import Asm, VM
NAME = 'concat_heads__mha_block_cached__compressed_kv_cla__decode'

class Cfg:
    stamps = False
    R = 8
    wq_flags = ''
    wo_flags = ''
    b_flags = 'nt'
    dma_t0 = 0
    dma_per = 4
    ev_trip = 16
    hmap = 0
    trips = False
    diag = ''
    rsleep = 0
    wq_per = 3
    spin_max = 400000
    noB = False
    bskip = 0
    askip = 0
    bstop = 0
    psleep = 16
    qsleep = 16
    nodma = False
    kv_flags = 'nt'
    warm = 0
    wqpf = 2
    dyn = 1
    hloc = 1
    dup = 0
    pl_flags = 'sc1'
    ps_flags = ''
    r_flags = 'sc1'
    psp = 16
    pper = 1
    hK = 24
    hth = 384
    hmar = 2
    hsleep = 4
    hoff = 3
    qslow = 8
    dpf = 0
    cd = 1
    slow = 8
    cw2 = 2
    cpre = 0
    dhold = 0
    pf_flags = ''
    qfull = 1
    pshare = 1
    c0_trip = 8
    ytouch = 0
    xh = 0
    xd = 4
    h_flags = ''
    mon = 0
    mf = 1
    mg = 4
    msleep = 0
    emu = 0
    bwq_flags = 'nt'
    pst_flags = 'sc1'
    pld_flags = 'sc1'
    clr_flags = 'sc1'
    yb_flags = 'sc1'
    dmask = 0
    dmul = 1
    out_flags = ''
    stag = '8,20,32'
    wopf_at = 4
    dgrp = 3
    dstep = 1
    vck = 0
    vcv = 0
    vsw = 16
    vcp = 63
    cwin = 2
    help = 0
    hsh = 4
    ev_per = 4
    wmix = 0
    st_per = 4
    kfirst = 0
    dma_mode = 0
    npv = 7
    st_m = 36
    ev2_m = 41
    dend = 4
    dm0 = 36
    dsl = 1
    xper = 4
    ev_slot = 12
    vhold = 0
cfg = Cfg()

QABS = 0x000000; PSTAT = 0x040000; AST = 0x050000; PROG = 0x060000; PART = 0x100000; YA = 0x400000; YB = 0x500000
WS_USED = 0x600000
STAMP = 0x10000000
C0 = 0; C0N = 128
OOB = 0x7ff00000
LDS_TOTAL = 163840
SCALE = (128 ** -0.5) * math.log2(math.e)
def f2u(x): return struct.unpack('<I', struct.pack('<f', x))[0]

P_AX, P_K, P_V, P_WQ, P_WO, P_BX, P_CKV, P_BWQ, P_WUK, P_WUV, P_BWO, P_OUT, P_DBG, P_WS = 16, 18, 20, 22, 24, 26, 28, 30, 32, 34, 36, 38, 40, 42
S_X, S_W, S_K, S_V, S_WO, S_WS, S_DBG, S_OUT, S_U = 44, 48, 52, 56, 60, 64, 68, 72, 76
sW, sH, sR = 3, 4, 5
def srd(n): return f's[{n}:{n+3}]'
def vr(n, k=1): return f'v{n}' if k == 1 else f'v[{n}:{n+k-1}]'
def ar(n, k=1): return f'a{n}' if k == 1 else f'a[{n}:{n+k-1}]'

class VAlloc:
    def __init__(self, start=1): self.n = start
    def __call__(self, k=1, align=1):
        align = max(align, 2 if k > 1 else 1)
        self.n = (self.n + align - 1) // align * align
        r = self.n; self.n += k
        assert self.n <= 256, 'out of vgprs'
        return r

a = Asm()
nstamp = [0]
def stamp(k):
    if cfg.stamps:
        a(f's_memrealtime s[100:101]'); a('s_waitcnt lgkmcnt(0)'); a(f's_mov_b32 s{84+k}, s100')
def stamp_flush(vt, role=''):
    if cfg.diag:
        k = int(cfg.diag[1:]) if cfg.diag[0] == role else 0
        L = lab('diag')
        a(f's_cmp_eq_u32 s{84+k}, 0'); a(f's_cselect_b32 s6, s84, s{84+k}'); a('s_add_u32 s6, s6, 10000')
        a(f'{L}:'); a('s_sleep 4'); a('s_memrealtime s[100:101]'); a('s_waitcnt lgkmcnt(0)')
        a('s_sub_u32 s7, s100, s6'); a('s_cmp_lt_i32 s7, 0'); a(f's_cbranch_scc1 {L}')
        return
    if cfg.stamps:
        a(f's_lshl_b32 s6, s2, 2'); a(f's_add_u32 s6, s6, s{sW}'); a('s_lshl_b32 s6, s6, 6'); a(f's_add_u32 s6, s6, {STAMP}')
        a(f's_mov_b32 s{S_WS+2}, 0x20000000')
        a(f'v_mov_b32 {vr(vt+1)}, 0')
        a('s_mov_b64 exec, 1')
        for k in range(16):
            a(f'v_mov_b32 {vr(vt)}, s{84+k}')
            a(f'buffer_store_dword {vr(vt)}, {vr(vt+1)}, {srd(S_WS)}, s6 offen offset:{4*k}')
            a('s_nop 1')
        a('s_mov_b64 exec, -1')

def mk_srd(d, p, off, size):
    if off is None:
        a(f's_mov_b32 s{d}, s{p}'); a(f's_mov_b32 s{d+1}, s{p+1}')
    else:
        a(f's_add_u32 s{d}, s{p}, {off}'); a(f's_addc_u32 s{d+1}, s{p+1}, 0')
    a(f's_mov_b32 s{d+2}, {size}'); a(f's_mov_b32 s{d+3}, 0x20000')

uid = [0]
def lab(p):
    uid[0] += 1
    return f'L_{p}_{uid[0]}'

def poll(coff, target, vt):
    L, D = lab('poll'), lab('polld')
    a(f's_cmp_lg_u32 s{sW}, 0'); a(f's_cbranch_scc1 {D}')
    a(f's_mov_b32 s7, {cfg.spin_max}')
    a(f'{L}:')
    a(f'buffer_load_dword {vr(vt)}, off, {srd(S_DBG)}, 0 offset:{coff} sc1')
    a('s_waitcnt vmcnt(0)')
    a(f'v_readfirstlane_b32 s6, {vr(vt)}')
    a(f's_cmp_ge_u32 s6, {target}'); a(f's_cbranch_scc1 {D}')
    a(f's_sleep {cfg.psleep}')
    a('s_sub_u32 s7, s7, 1'); a('s_cmp_lg_u32 s7, 0'); a(f's_cbranch_scc1 {L}')
    a(f'{D}:')
    a('s_barrier')

def ensure(coff, target, vt):
    L, D = lab('ens'), lab('ensd')
    a(f's_mov_b32 s7, {cfg.spin_max}')
    a(f'{L}:')
    a(f'v_readfirstlane_b32 s6, {vr(vt)}')
    a(f's_cmp_ge_u32 s6, {target}'); a(f's_cbranch_scc1 {D}')
    a(f's_sleep {cfg.psleep}')
    a(f'buffer_load_dword {vr(vt)}, off, {srd(S_DBG)}, 0 offset:{coff} sc1')
    a('s_waitcnt vmcnt(0)')
    a('s_sub_u32 s7, s7, 1'); a('s_cmp_lg_u32 s7, 0'); a(f's_cbranch_scc1 {L}')
    a(f'{D}:')

def umax_tree(dst, regs):
    regs = list(regs)
    a(f'v_max3_u32 {vr(dst)}, {vr(regs[0])}, {vr(regs[1])}, {vr(regs[2])}'); regs = regs[3:]
    while len(regs) >= 2:
        a(f'v_max3_u32 {vr(dst)}, {vr(dst)}, {vr(regs[0])}, {vr(regs[1])}'); regs = regs[2:]
    if regs: a(f'v_max_u32 {vr(dst)}, {vr(dst)}, {vr(regs[0])}')

def signal(coff, vt):
    D = lab('sig')
    a('s_waitcnt vmcnt(0) lgkmcnt(0)'); a('s_barrier')
    a(f's_cmp_lg_u32 s{sW}, 0'); a(f's_cbranch_scc1 {D}')
    a(f'v_mov_b32 {vr(vt)}, 1'); a('s_mov_b64 exec, 1')
    a(f'buffer_atomic_add {vr(vt)}, off, {srd(S_DBG)}, 0 offset:{coff}')
    a('s_mov_b64 exec, -1')
    a(f'{D}:')

def allred_rows(x, t, op):
    for sw in ('v_permlane16_swap_b32', 'v_permlane32_swap_b32'):
        a(f'v_mov_b32 {vr(t)}, {vr(x)}')
        a(f'{sw} {vr(x)}, {vr(t)}')
        a(f'{op} {vr(x)}, {vr(x)}, {vr(t)}')

DPPF = 'row_mask:0xf bank_mask:0xf'
def reduce4(T, X, S):
    a(f'v_add_f32_dpp {vr(X)}, {vr(T)}, {vr(T)} row_ror:8 row_mask:0xf bank_mask:0x3')
    a(f'v_add_f32_dpp {vr(X+1)}, {vr(T+1)}, {vr(T+1)} row_ror:8 row_mask:0xf bank_mask:0x3')
    a(f'v_add_f32_dpp {vr(X)}, {vr(T+2)}, {vr(T+2)} row_ror:8 row_mask:0xf bank_mask:0xc')
    a(f'v_add_f32_dpp {vr(X+1)}, {vr(T+3)}, {vr(T+3)} row_ror:8 row_mask:0xf bank_mask:0xc')
    a(f'v_add_f32_dpp {vr(S)}, {vr(X)}, {vr(X)} row_half_mirror row_mask:0xf bank_mask:0x5')
    a(f'v_add_f32_dpp {vr(S)}, {vr(X+1)}, {vr(X+1)} row_half_mirror row_mask:0xf bank_mask:0xa')
    a(f'v_add_f32_dpp {vr(S)}, {vr(S)}, {vr(S)} quad_perm:[1,0,3,2] {DPPF}')
    a(f'v_add_f32_dpp {vr(S)}, {vr(S)}, {vr(S)} quad_perm:[2,3,0,1] {DPPF}')

def mk_masks(vLane, MASK, SEL, t0, t1):
    a(f'v_and_b32 {vr(t0)}, 1, {vr(vLane)}'); a(f'v_lshlrev_b32 {vr(t0)}, 4, {vr(t0)}')
    a(f'v_mov_b32 {vr(t1)}, 0xffff'); a(f'v_lshlrev_b32 {vr(t0)}, {vr(t0)}, {vr(t1)}')
    a(f'v_bfe_u32 {vr(t1)}, {vr(vLane)}, 1, 2')
    for r in range(4):
        a(f'v_cmp_eq_u32 vcc, {r}, {vr(t1)}')
        a(f'v_cndmask_b32 {vr(MASK+r)}, 0, {vr(t0)}, vcc')
    a(f'v_mov_b32 {vr(t0)}, 0x0c0c0c0c')
    a('s_mov_b32 s6, 0x01000100'); a('s_mov_b32 s7, 0x03020302')
    for par in range(2):
        for r in range(4):
            a(f'v_bfi_b32 {vr(SEL+4*par+r)}, {vr(MASK+r)}, s{6+par}, {vr(t0)}')

def warm_code(l0, l1, vLane, t0, t1, n=2):
    L = lab('pc')
    a('s_getpc_b64 s[98:99]'); a(f'{L}:')
    for k in range(n):
        a(f'v_lshlrev_b32 {vr(t0)}, 7, v0')
        if k: a(f'v_add_u32 {vr(t0)}, {32768*k}, {vr(t0)}')
        a(f'v_min_u32 {vr(t0)}, {l1}-{L}, {vr(t0)}')
        a(f'global_load_dword {ar(255-k)}, {vr(t0)}, s[98:99]')

AW = 96

def x_loads(vm, X, vXoff, extra):
    for k in range(4):
        vm.issue(f'buffer_load_dwordx4 {vr(X+4*k,4)}, {vr(vXoff)}, {srd(S_X)}, 0 offen offset:{extra+16*k}', 'x')
    vm.issue(f'buffer_load_dwordx2 {vr(X+16,2)}, {vr(vXoff)}, {srd(S_X)}, 0 offen offset:{extra+64}', 'x')

def wunit_load(vm, jj, vWoff, flags):
    a(f's_mov_b32 s6, {jj*8192}')
    vm.issue(f'buffer_load_dwordx4 {ar(AW+4*jj,4)}, {vr(vWoff)}, {srd(S_W)}, s6 offen {flags}', ('w', jj))

def wunit_mfma(jj, Xs, ACCs, SEL, PA, W=None):
    for s, (X, ACC) in enumerate(zip(Xs, ACCs)):
        P = PA + 4 * ((jj * len(Xs) + s) & 3)
        for r in range(4):
            a(f'v_perm_b32 {vr(P+r)}, {vr(X+jj//2)}, {vr(X+jj//2)}, {vr(SEL+4*(jj&1)+r)}')
        c = '0' if jj == 0 else vr(ACC, 4)
        a(f'v_mfma_f32_16x16x32_bf16 {vr(ACC,4)}, {vr(P,4)}, {ar(AW+4*jj,4) if W is None else vr(W+4*jj,4)}, {c}')

def wo_frag_list(nks, vT):
    out = []
    for t in range(9):
        for ks in range(nks):
            for sec in range(2):
                reg = vT + (1 if t == 8 else 0) + (2 if ks >= 2 else 0)
                off = (32 * (ks & 1) + 4 * sec) * 1152 + (0 if t == 8 else 128 * (t >> 2) + 8 * (t & 3))
                out.append(f'ds_read_b64_tr_b16 {ar(AW+4*(t*nks+ks)+2*sec,2)}, {vr(reg)} offset:{off}')
    return out
def wo_frag_reads(nks, vT):
    for t in wo_frag_list(nks, vT): a(t)

def mk_wo_tr_addr(vLane, vT, t0, t1, two):
    a(f'v_lshrrev_b32 {vr(t0)}, 4, {vr(vLane)}'); a(f'v_lshlrev_b32 {vr(t0)}, 3, {vr(t0)}')
    a(f'v_bfe_u32 {vr(t1)}, {vr(vLane)}, 2, 2'); a(f'v_add_u32 {vr(t0)}, {vr(t0)}, {vr(t1)}')
    a(f'v_mul_u32_u24 {vr(t0)}, 1152, {vr(t0)}')
    a(f's_mul_i32 s6, s{sW}, 288'); a(f'v_add_u32 {vr(t0)}, s6, {vr(t0)}')
    a(f'v_and_b32 {vr(t1)}, 3, {vr(vLane)}')
    a(f'v_lshl_add_u32 {vr(vT)}, {vr(t1)}, 5, {vr(t0)}')
    a(f'v_lshl_add_u32 {vr(vT+1)}, {vr(t1)}, 3, {vr(t0)}'); a(f'v_add_u32 {vr(vT+1)}, 256, {vr(vT+1)}')
    if two:
        a(f'v_add_u32 {vr(vT+2)}, 73728, {vr(vT)}'); a(f'v_add_u32 {vr(vT+3)}, 73728, {vr(vT+1)}')

def gen_A():
    R = cfg.R; NT = 11; RT = R // 4
    assert R % 4 == 0
    V = VAlloc(1)
    vLane = V(); vL16 = V(); vWoff = V(); vXoff = V(); t0 = V(); t1 = V(); vC = V()
    MASK = V(4); SEL = V(8); ACC = V(4, 4); Q = V(4); T = V(4); XX = V(2); S = V(); M = V(); M2 = V(); fN = V()
    X = V(20, 4); PA = V(16, 4); D = X
    P = V(NT); vT = V(4); vY = V(); vY8 = V(); vOw = V(); vOr = V(); vC0 = V(); G = V(8); F = V(4); O = V(6, 2); vTS = V(); vPg = V(); vPo = V()
    KR = V(16 * R, 4)
    QRED = 147456; OT = QRED + 4096
    sJJ, sPair, sB, sRank, sOff, sReal, sBeg, sD, sDn, sTrip, sSt, sBsel = 8, 9, 10, 11, 12, 13, 14, 15, 80, 81, 82, 83
    sMk = 72
    sVo = 34
    STEP = 6 * 4096
    a('A_role:')
    a(f's_sub_u32 s{sJJ}, s{sR}, 2')
    a(f's_cmp_ge_u32 s{sJJ}, 3'); a(f's_cselect_b32 s{sPair}, 1, 0'); a(f's_cselect_b32 s6, 3, 0')
    a(f's_sub_u32 s{sJJ}, s{sJJ}, s6')
    a(f's_lshl_b32 s{sRank}, s{sJJ}, 2'); a(f's_add_u32 s{sRank}, s{sRank}, s{sW}')
    a(f's_cmp_ge_u32 s{sRank}, 6'); a(f's_cselect_b32 s{sBsel}, 1, 0'); a(f's_cselect_b32 s6, -1, 1')
    a(f's_add_u32 s{sRank}, s{sRank}, s6')
    a(f's_cmp_ge_u32 s{sRank}, 6'); a(f's_cselect_b32 s6, 6, 0'); a(f's_sub_u32 s{sRank}, s{sRank}, s6')
    a(f's_lshl_b32 s{sB}, s{sPair}, 1'); a(f's_add_u32 s{sB}, s{sB}, s{sBsel}')
    a(f'v_and_b32 {vr(vLane)}, 63, v0'); a(f'v_lshlrev_b32 {vr(vL16)}, 4, {vr(vLane)}')
    if cfg.warm & 1: warm_code('A_role', 'L_exit', vLane, t0, t1, 1)
    a(f's_sub_u32 s{sBeg}, s{sRank}, 8'); a(f's_lshl_b32 s{sBeg}, s{sBeg}, 12'); a(f's_mov_b32 s{sReal}, s{sBeg}')
    def adv():
        a(f's_add_u32 s{sReal}, s{sReal}, {STEP}'); a(f's_min_u32 s{sOff}, s{sReal}, {OOB}')
    adv()
    a(f's_lshl_b32 s{sSt}, s{sB}, 5'); a(f's_add_u32 s{sSt}, s{sSt}, s{sH}')
    a(f's_lshl_b32 s6, s{sSt}, 20')
    a('s_waitcnt lgkmcnt(0)')
    mk_srd(S_K, P_K, 's6', 0x100000); mk_srd(S_V, P_V, 's6', 0x100000)
    a(f's_mul_i32 s6, s{sPair}, 2304'); a(f's_mul_i32 s7, s{sW}, 288'); a('s_add_u32 s6, s6, s7')
    a(f's_sub_u32 s7, 4608, s6')
    mk_srd(S_X, P_AX, 's6', 's7')
    a(f's_mul_i32 s6, s{sW}, {144*8192}'); a(f's_lshl_b32 s7, s{sH}, 8'); a('s_add_u32 s6, s6, s7')
    a(f's_sub_u32 s7, {576*8192}, s6')
    mk_srd(S_W, P_WQ, 's6', 's7')
    if cfg.askip & 1: a(f's_mov_b32 s{S_W+2}, 0')
    a(f'v_lshrrev_b32 {vr(t0)}, 4, {vr(vLane)}'); a(f'v_and_b32 {vr(t1)}, 15, {vr(vLane)}')
    a(f'v_mul_u32_u24 {vr(vWoff)}, {36*8192}, {vr(t0)}'); a(f'v_lshl_add_u32 {vr(vWoff)}, {vr(t1)}, 4, {vr(vWoff)}')
    a(f'v_mul_u32_u24 {vr(vXoff)}, 72, {vr(t0)}'); a(f'v_lshrrev_b32 {vr(t1)}, 3, {vr(t1)}')
    a(f'v_mul_u32_u24 {vr(t1)}, 1152, {vr(t1)}'); a(f'v_add_u32 {vr(vXoff)}, {vr(vXoff)}, {vr(t1)}')
    vm = VM(a, cfg.vcp)
    a(f'v_mov_b32 {vr(vC)}, {8192-1024}')
    if cfg.wqpf:
        a('s_lshr_b32 s6, s2, 3'); a('s_sub_u32 s6, s6, 8'); a('s_lshl_b32 s6, s6, 2'); a(f's_add_u32 s6, s6, s{sW}')
        a(f's_mul_i32 s6, s6, {6*8192}'); a('s_and_b32 s7, s2, 7'); a('s_lshl_b32 s7, s7, 10'); a('s_add_u32 s6, s6, s7')
        mk_srd(S_WO, P_WQ, None, 576 * 8192)
        if cfg.wqpf == 1:
            for k in range(6):
                vm.issue(f'buffer_load_dwordx4 {vr(KR+4*(k&3),4)}, {vr(vL16)}, {srd(S_WO)}, s6 offen')
                if k < 5: a('s_add_u32 s6, s6, 8192')
        else:
            a(f'v_min_u32 {vr(M)}, 47, {vr(vLane)}'); a(f'v_lshrrev_b32 {vr(M2)}, 3, {vr(M)}'); a(f'v_lshlrev_b32 {vr(M)}, 7, {vr(M)}')
            a(f'v_mad_u32_u24 {vr(M2)}, {vr(M2)}, {vr(vC)}, {vr(M)}')
            vm.issue(f'buffer_load_dword {vr(KR)}, {vr(M2)}, {srd(S_WO)}, s6 offen {cfg.pf_flags}')
    x_loads(vm, X, vXoff, 0)
    def ring_ld(s, u):
        return f'buffer_load_dwordx4 {vr(KR+16*s+4*u,4)}, {vr(vL16)}, {srd(S_K)}, s{sOff} offen offset:{1024*u} {cfg.kv_flags}'
    stream = [('k', s, u) for s in range(1, R) for u in range(4)]
    if cfg.wmix: stream += [('v', s, u) for s in range(1, cfg.npv + 1) for u in range(4)]
    order = stream[:cfg.kfirst]; wi = 0; si = cfg.kfirst
    while wi < 36 or si < len(stream):
        for _ in range(cfg.wq_per):
            if wi < 36: order.append(('w', wi)); wi += 1
        for _ in range(cfg.st_per):
            if si < len(stream): order.append(stream[si]); si += 1
    NPV = cfg.npv; V0 = NPV + 1 if NPV else 0
    def avs(s): return 16 * (s - 1) if s < 7 else 240
    if not cfg.wmix: order += [('v', s, u) for s in range(1, NPV + 1) for u in range(4)]
    def issue(o):
        if o[0] == 'w': wunit_load(vm, o[1], vWoff, cfg.wq_flags)
        elif o[0] == 'v':
            if o[2] == 0: a(f's_add_u32 s{sVo}, s{sBeg}, {o[1]*STEP}'); a(f's_min_u32 s{sVo}, s{sVo}, {OOB}')
            vm.issue(f'buffer_load_dwordx4 {ar(avs(o[1])+4*o[2],4)}, {vr(vL16)}, {srd(S_V)}, s{sVo} offen offset:{1024*o[2]} {cfg.kv_flags}', o)
        else:
            vm.issue(ring_ld(o[1], o[2]), o)
            if o[2] == 3: adv()
    pos = 0
    def wo_pf():
        a(f's_mul_i32 s6, s{sH}, 147456'); mk_srd(S_WO, P_WO, 's6', 147456)
        a(f's_sub_u32 s6, s{sR}, 2'); a('s_lshl_b32 s6, s6, 2'); a(f's_add_u32 s6, s6, s{sW}'); a('s_mul_i32 s6, s6, 6144')
        vm.issue(f'buffer_load_dword {vr(KR+1)}, {vr(M)}, {srd(S_WO)}, s6 offen')
    if cfg.stag:
        sp = [int(x) for x in cfg.stag.split(',')]
        stream = [('k', s, u) for s in range(1, R) for u in range(4)] + [('v', s, u) for s in range(1, NPV + 1) for u in range(4)]
        order = stream[:sp[-1]] + [('w', j) for j in range(36)] + stream[sp[-1]:]
        vm.limit = 1000
        for idx in range(sp[-1] + 1):
            if idx in sp:
                Ls = lab('nowq')
                a(f's_cmp_lg_u32 s{sJJ}, {sp.index(idx)}'); a(f's_cbranch_scc1 {Ls}')
                a('s_waitcnt vmcnt(20)')
                n0 = len(vm.q)
                for j in range(36): wunit_load(vm, j, vWoff, cfg.wq_flags)
                if idx != sp[-1]: del vm.q[n0:]
                a(f'{Ls}:')
            if idx == sp[-1]: break
            if idx % 4 == 0: a('s_waitcnt vmcnt(54)')
            if idx == cfg.wopf_at and cfg.dma_mode == 3: wo_pf()
            issue(stream[idx])
        pos = sp[-1] + 36
        vm.limit = 63; vm.done = max(0, len(vm.q) - 60)
    while pos < min(56 - 6 * cfg.wqpf, len(order)):
        issue(order[pos]); pos += 1
    if cfg.dma_mode == 3 and not cfg.stag: wo_pf()
    stamp(1)
    mk_srd(S_WS, P_WS, None, WS_USED); mk_srd(S_DBG, P_DBG, None, 256)
    a(f's_mul_i32 s6, s{sH}, 147456'); mk_srd(S_WO, P_WO, 's6', 147456)
    mk_masks(vLane, MASK, SEL, t0, t1)
    a(f'v_mov_b32 {vr(vC)}, {f2u(SCALE):#x}')
    a(f'v_mov_b32 {vr(P+NT-1)}, 0xff800000')
    mk_wo_tr_addr(vLane, vT, t0, t1, True)
    a(f's_lshl_b32 s{sSt}, s{sSt}, 6'); a(f's_add_u32 s{sSt}, s{sSt}, {AST}')
    a(f's_mov_b64 s[{sMk}:{sMk+1}], 0')
    a(f's_cmp_ge_u32 s{sRank}, 2'); a(f's_cselect_b32 s{sMk+2}, 0x22222222, 0'); a(f's_mov_b32 s{sMk+3}, s{sMk+2}')
    for j in (2, 3):
        a(f's_mov_b32 s{sMk+2*j}, {0x11111111 << j:#x}'); a(f's_mov_b32 s{sMk+2*j+1}, s{sMk+2*j}')
    a(f'v_bfe_u32 {vr(t0)}, {vr(vLane)}, 4, 1')
    a(f's_lshl_b32 s6, s{sPair}, 7'); a(f's_lshl_b32 s7, s{sH}, 1'); a('s_add_u32 s6, s6, s7'); a(f's_add_u32 s6, s6, s{sJJ}')
    a(f'v_mul_u32_u24 {vr(t1)}, 63, {vr(t0)}'); a(f'v_add_u32 {vr(t1)}, s6, {vr(t1)}')
    a(f'v_mul_u32_u24 {vr(vY)}, 2304, {vr(t1)}'); a(f'v_add_u32 {vr(vY)}, {YA}, {vr(vY)}')
    a(f'v_sub_u32 {vr(t1)}, s{sJJ}, {vr(t0)}')
    a(f'v_cmp_lt_u32 vcc, 1, {vr(t1)}')
    a(f'v_mov_b32 {vr(t1)}, {OOB}')
    a(f'v_cndmask_b32 {vr(vY)}, {vr(vY)}, {vr(t1)}, vcc')
    a(f's_mul_i32 s6, s{sW}, 576')
    a(f'v_add_u32 {vr(vY)}, s6, {vr(vY)}')
    a(f'v_and_b32 {vr(M)}, 3, {vr(vLane)}'); a(f'v_bfe_u32 {vr(M2)}, {vr(vLane)}, 2, 2')
    a(f'v_lshl_add_u32 {vr(M)}, {vr(M)}, 2, {vr(M2)}'); a(f'v_lshl_add_u32 {vr(vY8)}, {vr(M)}, 2, {vr(vY)}')
    a(f'v_and_b32 {vr(M)}, 15, {vr(vLane)}'); a(f'v_lshrrev_b32 {vr(M2)}, 5, {vr(vLane)}')
    a(f'v_lshl_add_u32 {vr(M)}, {vr(M2)}, 4, {vr(M)}'); a(f'v_lshl_add_u32 {vr(vY)}, {vr(M)}, 4, {vr(vY)}')
    for r in range(4):
        a(f's_lshl_b32 s6, s{sJJ}, 2'); a(f's_add_u32 s6, s6, {r}'); a('s_cmp_ge_u32 s6, 6'); a('s_cselect_b32 s6, 1, 0')
        a(f'v_cmp_eq_u32 vcc, s6, {vr(t0)}')
        a(f'v_cndmask_b32 {vr(F+r)}, 0, 1.0, vcc')
    a(f'v_cmp_gt_u32 vcc, 32, {vr(vLane)}')
    for r in range(4):
        a(f'v_cndmask_b32 {vr(G+r)}, 0, {vr(F+r)}, vcc'); a(f'v_cndmask_b32 {vr(G+4+r)}, {vr(F+r)}, 0, vcc')
    a(f'v_and_b32 {vr(M)}, 15, {vr(vLane)}'); a(f'v_lshlrev_b32 {vr(M)}, 4, {vr(M)}')
    a(f'v_lshl_add_u32 {vr(vOw)}, {vr(t0)}, 3, {vr(M)}')
    a(f's_lshl_b32 s6, s{sW}, 8'); a(f's_add_u32 s6, s6, {OT}'); a(f'v_add_u32 {vr(vOw)}, s6, {vr(vOw)}')
    a(f'v_and_b32 {vr(M)}, 3, {vr(vLane)}'); a(f'v_lshlrev_b32 {vr(M)}, 8, {vr(M)}')
    a(f'v_lshrrev_b32 {vr(M2)}, 4, {vr(vLane)}'); a(f'v_lshl_add_u32 {vr(vOr)}, {vr(M2)}, 4, {vr(M)}')
    a(f'v_add_u32 {vr(vOr)}, {OT}, {vr(vOr)}')
    a(f's_mul_i32 s{sD}, s{sW}, {4096 if cfg.dma_mode == 1 else 36864}')
    a(f's_mov_b32 s{sDn}, {(-cfg.dma_t0) & 0xffffffff:#x}'); a(f's_mov_b32 s{sTrip}, 0')
    if cfg.dma_mode == 3: a(f's_mul_i32 s{sDn}, s{sJJ if cfg.dgrp == 3 else sR}, {cfg.dstep}'); a(f's_add_u32 s{sDn}, s{sDn}, {cfg.dma_t0 - (0 if cfg.dgrp == 3 else 2 * cfg.dstep)}')
    if cfg.dyn:
        a(f's_lshl_b32 s6, s{sH}, 1'); a(f's_add_u32 s6, s6, s{sPair}'); a(f's_mul_i32 s6, s6, {cfg.psp//4}'); a(f's_add_u32 s6, s6, s{sJJ}')
        a('s_lshl_b32 s6, s6, 2'); a(f's_add_u32 s6, s6, {PROG}')
        a(f'v_mov_b32 {vr(vPo)}, {OOB}'); a(f'v_mov_b32 {vr(vPg)}, s6'); a('v_cmp_eq_u32 vcc, 0, v0')
        a(f'v_cndmask_b32 {vr(vPo)}, {vr(vPo)}, {vr(vPg)}, vcc'); a(f'v_mov_b32 {vr(vPg)}, {cfg.hoff}')
    def prog(g, per):
        if cfg.dyn and g % per == per - 1:
            a(f'v_add_u32 {vr(vPg)}, {per}, {vr(vPg)}')
            a(f'buffer_store_dword {vr(vPg)}, {vr(vPo)}, {srd(S_WS)}, 0 offen {cfg.ps_flags}')
            return True
    a(f'v_and_b32 {vr(M)}, 15, {vr(vLane)}'); a(f'v_lshlrev_b32 {vr(M)}, 5, {vr(M)}')
    a(f'v_lshl_add_u32 {vr(M2)}, {vr(t0)}, 4, {vr(M)}')
    a(f'v_lshrrev_b32 {vr(t1)}, 5, {vr(vLane)}'); a(f'v_lshl_add_u32 {vr(M2)}, {vr(t1)}, 9, {vr(M2)}')
    a(f's_lshl_b32 s6, s{sW}, 10'); a(f's_add_u32 s6, s6, {QRED}'); a(f'v_add_u32 {vr(M2)}, s6, {vr(M2)}')
    a(f's_lshl_b32 s6, s{sBsel}, 9'); a(f's_add_u32 s6, s6, {QRED}'); a(f'v_add_u32 {vr(M)}, s6, {vr(M)}')
    for jj in range(36):
        while ('w', jj) not in vm.q:
            issue(order[pos]); pos += 1
        vm.wait(('w', jj))
        wunit_mfma(jj, [X], [ACC], SEL, PA)
        k = 0
        while pos < len(order) - cfg.vhold and vm.after(('w', jj)) < 60 and (k < 1 or order[pos][0] != 'v' or jj == 35 or cfg.wmix):
            issue(order[pos]); pos += 1; k += 1
    a(f'ds_write_b128 {vr(M2)}, {vr(ACC,4)}')
    while pos < len(order):
        issue(order[pos]); pos += 1
    a('s_waitcnt lgkmcnt(0)'); a('s_barrier')
    for w in range(4):
        a(f'ds_read_b128 {vr(D+8*w,4)}, {vr(M)} offset:{1024*w}')
        a(f'ds_read_b128 {vr(D+8*w+4,4)}, {vr(M)} offset:{1024*w+16}')
    for r in range(4): a(f'v_mov_b32 {vr(ACC+r)}, 0')
    a('s_waitcnt lgkmcnt(0)')
    for e in range(8):
        a(f'v_add_f32 {vr(D+e)}, {vr(D+e)}, {vr(D+8+e)}'); a(f'v_add_f32 {vr(D+16+e)}, {vr(D+16+e)}, {vr(D+24+e)}')
    for e in range(8): a(f'v_add_f32 {vr(D+e)}, {vr(D+e)}, {vr(D+16+e)}')
    for k in range(4): a(f'v_cvt_pk_bf16_f32 {vr(Q+k)}, {vr(D+2*k)}, {vr(D+2*k+1)}')
    stamp(2)
    NW = 4 * R - 4
    def dma(s, vtrip=None):
        if (s % 4) not in {1: (0,), 2: (0, 2), 3: (0, 1, 2), 4: (0, 1, 2, 3)}[cfg.dma_per]: return
        Ls = lab('nodma')
        if cfg.dma_mode == 3:
            if s % 4: return
            a(f's_cmp_lg_u32 s{sDn}, s{sTrip}'); a(f's_cbranch_scc1 {Ls}')
            a('s_waitcnt vmcnt(24)')
            for k in range(9):
                a(f's_mov_b32 m0, s{sD}')
                for u in range(4):
                    a(f'buffer_load_dwordx4 {vr(vL16)}, {srd(S_WO)}, s{sD} offen offset:{1024*u} {cfg.wo_flags} lds')
                a(f's_add_u32 s{sD}, s{sD}, 4096')
            a(f'{Ls}:')
            return
        if cfg.dma_mode:
            if s % 4: return
            a(f's_cmp_ge_u32 s{sDn}, {0 if cfg.nodma else 36}'); a(f's_cbranch_scc1 {Ls}')
            for u in range(4):
                a(f's_add_u32 m0, s{sD}, {1024*u}') if cfg.dma_mode == 9 else None
                if u == 0: a(f's_mov_b32 m0, s{sD}')
                a(f'buffer_load_dwordx4 {vr(vL16)}, {srd(S_WO)}, s{sD} offen offset:{1024*u} {cfg.wo_flags} lds')
            a(f's_add_u32 s{sD}, s{sD}, {16384 if cfg.dma_mode == 1 else 4096}')
            a(f'{Ls}:')
            a(f's_add_u32 s{sDn}, s{sDn}, 4')
            return
        if cfg.dmask:
            if vtrip is not None:
                if not (cfg.dmask >> vtrip) & 1: return
            else: a(f's_bitcmp0_b32 s{sDn}, s{sTrip}'); a(f's_cbranch_scc1 {Ls}')
            a(f's_mov_b32 m0, s{sD}')
            for u in range(cfg.dmul):
                a(f'buffer_load_dwordx4 {vr(vL16)}, {srd(S_WO)}, s{sD} offen offset:{1024*u} {cfg.wo_flags} lds')
            a(f's_add_u32 s{sD}, s{sD}, {1024*cfg.dmul}')
            a(f'{Ls}:')
            return
        a(f's_cmp_ge_u32 s{sDn}, {0 if cfg.nodma else 36}'); a(f's_cbranch_scc1 {Ls}')
        a(f's_mov_b32 m0, s{sD}')
        a(f'buffer_load_dwordx4 {vr(vL16)}, {srd(S_WO)}, s{sD} offen {cfg.wo_flags} lds')
        a(f's_add_u32 s{sD}, s{sD}, 1024')
        a(f'{Ls}:')
        a(f's_add_u32 s{sDn}, s{sDn}, 1')
    def shiftP():
        for k in range(NT - 1): a(f'v_mov_b32 {vr(P+k)}, {vr(P+k+1)}')
    dma_end = -(-(cfg.dma_t0 + 36) // cfg.dma_per) * 4
    if cfg.dmask:
        assert bin(cfg.dmask).count('1') * cfg.dma_per * cfg.dmul == 36
        dma_end = 4 * cfg.dmask.bit_length()
        a(f's_mov_b32 s{sDn}, {cfg.dmask}')
    if cfg.dma_mode == 3:
        dma_end = 4 * (cfg.dma_t0 + (cfg.dgrp - 1) * cfg.dstep) + 1
        assert dma_end <= 4 * NT
    assert dma_end + R <= 4 * NT + cfg.ev_slot - V0
    a(f's_add_u32 s{sBeg}, s{sBeg}, {V0*STEP}')
    a('K_loop:')
    for s in range(R):
        K = KR + 16 * s; j = s % 4
        if j == 0:
            if (NT - RT) % RT == s // 4:
                a(f's_cmp_eq_u32 s{sTrip}, {NT-RT}')
                a(f's_cselect_b32 s{S_K}, s{S_V}, s{S_K}'); a(f's_cselect_b32 s{S_K+1}, s{S_V+1}, s{S_K+1}')
                a(f's_cselect_b32 s{sReal}, s{sBeg}, s{sReal}'); a(f's_min_u32 s{sOff}, s{sReal}, {OOB}')
            if cfg.c0_trip % RT == s // 4:
                Ls = lab('c0')
                a(f's_cmp_lg_u32 s{sTrip}, {cfg.c0_trip}'); a(f's_cbranch_scc1 {Ls}')
                a(f'buffer_load_dword {vr(vC0)}, off, {srd(S_DBG)}, 0 offset:{C0} sc1')
                a(f'{Ls}:')
        a(f's_waitcnt vmcnt({NW})')
        for k in range(4):
            for u in range(4):
                c = '0' if k == 0 else vr(T + u)
                a(f'v_dot2_f32_bf16 {vr(T+u)}, {vr(K+4*u+k)}, {vr(Q+k)}, {c}')
        for u in range(4):
            if cfg.vck: a(f's_waitcnt vmcnt({cfg.vck-1})')
            a(ring_ld(s, u))
        adv(); dma(s)
        reduce4(T, XX, S)
        a(f'v_cndmask_b32 {vr(P+NT-1)}, {vr(P+NT-1)}, {vr(S)}, s[{sMk+2*j}:{sMk+2*j+1}]')
        if j == 3:
            if cfg.trips:
                a('s_memrealtime s[100:101]'); a('s_waitcnt lgkmcnt(0)'); a(f's_mov_b32 m0, s{sTrip}'); a(f'v_writelane_b32 {vr(vTS)}, s100, m0')
            a(f's_add_u32 s{sTrip}, s{sTrip}, 1')
            if (NT - 1) % RT == s // 4:
                a(f's_cmp_eq_u32 s{sTrip}, {NT}'); a('s_cbranch_scc1 A_mid')
            shiftP()
            if s == 3:
                a(f's_lshr_b64 s[{sMk}:{sMk+1}], s[{sMk+4}:{sMk+5}], 2'); a(f's_lshr_b64 s[{sMk+2}:{sMk+3}], s[{sMk+4}:{sMk+5}], 1')
    a('s_branch K_loop')
    a('A_mid:')
    stamp(5)
    a(f'v_max3_f32 {vr(M)}, {vr(P)}, {vr(P+1)}, {vr(P+2)}')
    for k in range(3, NT, 2): a(f'v_max3_f32 {vr(M)}, {vr(M)}, {vr(P+k)}, {vr(P+k+1)}')
    for sh in (8, 4, 2, 1): a(f'v_max_f32_dpp {vr(M)}, {vr(M)}, {vr(M)} row_ror:{sh} {DPPF}')
    allred_rows(M, M2, 'v_max_f32')
    a(f'v_mul_f32 {vr(XX)}, {vr(M)}, {vr(vC)}')
    for k in range(NT): a(f'v_fma_f32 {vr(P+k)}, {vr(P+k)}, {vr(vC)}, -{vr(XX)}')
    for k in range(NT): a(f'v_exp_f32 {vr(P+k)}, {vr(P+k)}')
    a(f'v_add_f32 {vr(M)}, {vr(P)}, {vr(P+1)}')
    for k in range(2, NT): a(f'v_add_f32 {vr(M)}, {vr(M)}, {vr(P+k)}')
    for k in range(NT): a(f'v_cvt_pk_bf16_f32 {vr(P+k)}, {vr(P+k)}, {vr(P+k)}')
    for sh in (8, 4, 2, 1): a(f'v_add_f32_dpp {vr(M)}, {vr(M)}, {vr(M)} row_ror:{sh} {DPPF}')
    allred_rows(M, M2, 'v_add_f32')
    a(f'v_min_u32 {vr(XX)}, -2, {vr(XX)}'); a(f'v_min_u32 {vr(XX+1)}, -2, {vr(M)}')
    if not cfg.noB: ensure(C0, C0N, vC0)
    a(f's_lshl_b32 s6, s{sRank}, 3'); a(f's_add_u32 s6, s6, s{sSt}')
    a('s_mov_b64 exec, 1')
    for _ in range(4 if cfg.dup & 4 else 1): a(f'buffer_store_dwordx2 {vr(XX,2)}, off, {srd(S_WS)}, s6 sc1')
    a('s_mov_b64 exec, -1')
    ST = X
    def st_loads(iss):
        for k in range(3): iss(f'buffer_load_dwordx4 {vr(ST+4*k,4)}, off, {srd(S_WS)}, s{sSt} offset:{16*k} sc1')
    def pa(i, dst=PA):
        for u in range(4):
            for r in range(4):
                a(f'v_and_b32_dpp {vr(dst+4*u+r)}, {vr(P+i//4)}, {vr(MASK+r)} row_newbcast:{4*u+i%4} {DPPF}')
    def ev2():
        vm.wait('st')
        a(f's_mov_b32 s7, {cfg.spin_max}')
        a('A_ev2_chk:')
        umax_tree(M, range(ST, ST + 12))
        a(f'v_cmp_eq_u32 vcc, -1, {vr(M)}')
        a('s_cbranch_vccz A_ev2_ok')
        st_loads(a)
        a('s_waitcnt vmcnt(0)')
        a('s_sub_u32 s7, s7, 1'); a('s_cmp_lg_u32 s7, 0'); a('s_cbranch_scc1 A_ev2_chk')
        a('A_ev2_ok:')
        a(f'v_max3_f32 {vr(M)}, {vr(ST)}, {vr(ST+2)}, {vr(ST+4)}'); a(f'v_max3_f32 {vr(M2)}, {vr(ST+6)}, {vr(ST+8)}, {vr(ST+10)}')
        a(f'v_max_f32 {vr(M)}, {vr(M)}, {vr(M2)}')
        for k in range(6): a(f'v_sub_f32 {vr(ST+2*k)}, {vr(ST+2*k)}, {vr(M)}')
        a(f'v_sub_f32 {vr(fN)}, {vr(XX)}, {vr(M)}')
        for k in range(6): a(f'v_exp_f32 {vr(ST+2*k)}, {vr(ST+2*k)}')
        a(f'v_exp_f32 {vr(fN)}, {vr(fN)}')
        a(f'v_mul_f32 {vr(M)}, {vr(ST)}, {vr(ST+1)}')
        for k in range(1, 6): a(f'v_fma_f32 {vr(M)}, {vr(ST+2*k)}, {vr(ST+2*k+1)}, {vr(M)}')
        a(f'v_rcp_f32 {vr(M)}, {vr(M)}')
        a(f'v_mul_f32 {vr(fN)}, {vr(fN)}, {vr(M)}')
    extra = list(range(1, NPV + 1)); frags = wo_frag_list(4, vT)
    NS = 4 * NT
    vm = VM(a)
    vm.q = [(j, u) for j in range(V0, V0 + R) for u in range(4)] + [None]
    def stage(j): return (NS + j - V0) % R
    def comp(i, pre=None):
        K = KR + 16 * stage(i)
        if pre is None: pa(i); pre = PA
        if i < NS - 1: vm.wait((i, 3))
        for u in range(4):
            vm.wait((i, u))
            a(f'v_mfma_f32_16x16x32_bf16 {vr(ACC,4)}, {vr(pre+4*u,4)}, {vr(K+4*u,4)}, {vr(ACC,4)}')
        if i % 4 == 3 and cfg.trips:
            a('s_memrealtime s[100:101]'); a('s_waitcnt lgkmcnt(0)'); a(f'v_writelane_b32 {vr(vTS)}, s100, {NT + (i-V0)//4}')
    c = V0
    for m in range(V0 + R, NS):
        n = m - R - V0; i = m - R
        if m == cfg.st_m: st_loads(lambda t: vm.issue(t, 'st'))
        if m == cfg.ev2_m: ev2()
        if m == cfg.ytouch: vm.issue(f'buffer_load_dword {vr(vC0)}, {vr(vY8)}, {srd(S_WS)}, 0 offen offset:512 sc1')
        dist = max(cfg.dend, min(R, R - (m - cfg.dm0 + cfg.dsl - 1) // cfg.dsl))
        first = True
        while c <= m - dist:
            if not first: a('s_nop 3')
            comp(c); c += 1; first = False
        if prog(n, cfg.pper): vm.q.append(None)
        for u in range(4): vm.issue(ring_ld(stage(m), u), (m, u))
        adv()
        if NS + n < dma_end: dma(n, NT + n // 4)
        if i == cfg.ev_slot - 1: a('s_barrier')
        if i >= cfg.ev_slot - 1:
            for t in frags[:cfg.ev_per]: a(t)
            del frags[:cfg.ev_per]
        if extra and n % cfg.xper == 1:
            e = extra.pop(0)
            pa(e)
            for u in range(4):
                a(f'v_mfma_f32_16x16x32_bf16 {vr(ACC,4)}, {vr(PA+4*u,4)}, {ar(avs(e)+4*u,4)}, {vr(ACC,4)}')
            a('s_nop 3')
    assert not extra and not frags
    if cfg.ev2_m >= NS: ev2()
    while c < NS - 2:
        comp(c); c += 1; a('s_nop 3')
    P2 = KR + 16 * stage(NS - 4)
    pa(NS - 2); pa(NS - 1, P2)
    comp(NS - 2, PA); comp(NS - 1, P2)
    a('A_tail:')
    stamp(3)
    for r in range(4): a(f'v_mul_f32 {vr(ACC+r)}, {vr(ACC+r)}, {vr(fN)}')
    a(f'v_cvt_pk_bf16_f32 {vr(T)}, {vr(ACC)}, {vr(ACC+1)}'); a(f'v_cvt_pk_bf16_f32 {vr(T+1)}, {vr(ACC+2)}, {vr(ACC+3)}')
    a(f'ds_write_b64 {vr(vOw)}, {vr(T,2)}')
    a('s_waitcnt lgkmcnt(0)'); a('s_barrier')
    for ks in range(4): a(f'ds_read_b128 {ar(4*ks,4)}, {vr(vOr)} offset:{64*ks}')
    a('s_waitcnt lgkmcnt(0)')
    def tile(t):
        for ks in range(4):
            c = '0' if ks == 0 else vr(D + 4 * t, 4)
            a(f'v_mfma_f32_16x16x32_bf16 {vr(D+4*t,4)}, {ar(4*ks,4)}, {ar(AW+4*(t*4+ks),4)}, {c}')
    def comb(j, t, first):
        g = G + (4 if t >= 4 else 0)
        for r in range(4):
            if first and r == 0: a(f'v_mul_f32 {vr(O+j)}, {vr(g)}, {vr(D+4*t)}')
            else: a(f'v_fma_f32 {vr(O+j)}, {vr(g+r)}, {vr(D+4*t+r)}, {vr(O+j)}')
    tile(8); tile(0); tile(1)
    a(f'v_mul_f32 {vr(O+4)}, {vr(F)}, {vr(D+32)}')
    for r in range(1, 4): a(f'v_fma_f32 {vr(O+4)}, {vr(F+r)}, {vr(D+32+r)}, {vr(O+4)}')
    tile(2)
    a(f'v_min_u32 {vr(O+4)}, -2, {vr(O+4)}')
    a('s_mov_b64 exec, 0xffffffff')
    a(f'buffer_store_dword {vr(O+4)}, {vr(vY8)}, {srd(S_WS)}, 0 offen offset:512 sc1')
    a('s_mov_b64 exec, -1')
    comb(0, 0, True)
    tile(3); comb(1, 1, True)
    tile(4); comb(2, 2, True)
    tile(5); comb(3, 3, True)
    tile(6); comb(0, 4, False)
    tile(7); comb(1, 5, False); comb(2, 6, False)
    for j in range(3): a(f'v_min_u32 {vr(O+j)}, -2, {vr(O+j)}')
    comb(3, 7, False)
    a(f'v_min_u32 {vr(O+3)}, -2, {vr(O+3)}')
    a(f'buffer_store_dwordx4 {vr(O,4)}, {vr(vY)}, {srd(S_WS)}, 0 offen sc1')
    stamp(4)
    stamp_flush(M, 'A')
    if cfg.trips:
        a(f's_lshl_b32 s6, s2, 2'); a(f's_add_u32 s6, s6, s{sW}'); a('s_lshl_b32 s6, s6, 8'); a(f's_add_u32 s6, s6, {STAMP + 0x100000}')
        a(f'v_lshlrev_b32 {vr(M)}, 2, {vr(vLane)}')
        a(f'buffer_store_dword {vr(vTS)}, {vr(M)}, {srd(S_WS)}, s6 offen')
    a('s_endpgm')

def gen_B():
    V = VAlloc(1)
    vLane = V(); vL16 = V(); vWoff = V(); vXoff = V(); t0 = V(); t1 = V(); t2 = V(); vI = V(); vG = V(); vL16x = V(); vC0 = V()
    base = V.n
    sHalf, sBeta, sB2, sCh, sM0, sSo = 8, 9, 10, 11, 12, 13
    CROW = 1088; CB = 64 * CROW
    QROW = 1056; SQ = 2 * CB; QRED = SQ
    PB = SQ + 16 * QROW; MX = PB + 4096; LS = MX + 512
    assert LS + 512 <= LDS_TOTAL
    fl = cfg.b_flags
    a('B_role:')
    if cfg.noB: a('s_endpgm')
    a(f's_mov_b32 s{sHalf}, s{sR}')
    a(f's_lshl_b32 s{sBeta}, s{sH}, 1'); a(f's_add_u32 s{sBeta}, s{sBeta}, s{sHalf}')
    a(f's_lshr_b32 s{sB2}, s{sBeta}, 4'); a(f's_and_b32 s{sCh}, s{sBeta}, 15')
    a(f'v_and_b32 {vr(vLane)}, 63, v0'); a(f'v_lshlrev_b32 {vr(vL16)}, 4, {vr(vLane)}')
    a(f'v_lshrrev_b32 {vr(vG)}, 4, {vr(vLane)}'); a(f'v_and_b32 {vr(vI)}, 15, {vr(vLane)}')
    if cfg.warm & 2: warm_code('B_role', 'B_end', vLane, t0, t1)
    a('s_waitcnt lgkmcnt(0)')
    a(f's_mul_i32 s6, s{sW}, 288'); a('s_sub_u32 s7, 4608, s6'); mk_srd(S_X, P_BX, 's6', 's7')
    a(f's_mul_i32 s6, s{sW}, {144*8192}'); a(f's_lshl_b32 s7, s{sH}, 8'); a('s_add_u32 s6, s6, s7')
    a(f's_sub_u32 s7, {576*8192}, s6'); mk_srd(S_W, P_BWQ, 's6', 's7')
    a(f's_lshl_b32 s6, s{sHalf}, 2'); a(f's_add_u32 s6, s6, s{sW}'); a('s_lshl_b32 s6, s6, 19')
    a(f's_lshl_b32 s7, s{sH}, 8'); a('s_add_u32 s6, s6, s7'); a(f's_sub_u32 s7, {512*8192}, s6')
    mk_srd(S_U, P_WUK, 's6', 's7')
    if cfg.cwin == 0:
        a(f's_lshl_b32 s6, s{sBeta}, 18'); mk_srd(S_K, P_CKV, 's6', 0x40000)
    else:
        a(f's_lshl_b32 s6, s{sB2}, 22'); mk_srd(S_K, P_CKV, 's6', 0x400000)
    for bit, R in ((1, S_W), (2, S_U), (4, S_K)):
        if cfg.bskip & bit: a(f's_mov_b32 s{R+2}, 0')
    if cfg.emu & 1:
        a(f's_cmp_eq_u32 s{sHalf}, 1'); a(f's_cselect_b32 s{S_W+2}, 0, s{S_W+2}')
    MASK = V(4); SEL = V(8); X0 = V(18); X1 = V(18); PA = V(16, 4); AC0 = V(4, 4); AC1 = V(4, 4)
    UK = V(64, 4); QB = V(16); T = V(4); XX = V(2); U = V(16, 4); D = V(32, 4); vUoff = V()
    a(f'v_mul_u32_u24 {vr(vWoff)}, {36*8192}, {vr(vG)}'); a(f'v_lshl_add_u32 {vr(vWoff)}, {vr(vI)}, 4, {vr(vWoff)}')
    a(f'v_mul_u32_u24 {vr(vXoff)}, 72, {vr(vG)}'); a(f'v_lshrrev_b32 {vr(t1)}, 3, {vr(vI)}')
    a(f'v_mul_u32_u24 {vr(t1)}, 1152, {vr(t1)}'); a(f'v_add_u32 {vr(vXoff)}, {vr(vXoff)}, {vr(t1)}')
    a(f'v_lshlrev_b32 {vr(vUoff)}, 17, {vr(vG)}'); a(f'v_lshl_add_u32 {vr(vUoff)}, {vr(vI)}, 4, {vr(vUoff)}')
    a(f'v_xor_b32 {vr(vL16x)}, 32, {vr(vL16)}')
    mk_srd(S_WS, P_WS, None, WS_USED)
    vm = VM(a, 49)
    x_loads(vm, X0, vXoff, 0); x_loads(vm, X1, vXoff, 2304)
    Lc, Lc1 = lab('noclr'), lab('clr1')
    a(f's_cmp_ge_u32 s{sW}, 2'); a(f's_cbranch_scc1 {Lc}')
    for r in range(4): a(f'v_mov_b32 {vr(D+r)}, -1')
    a(f's_cmp_eq_u32 s{sW}, 1'); a(f's_cbranch_scc1 {Lc1}')
    a(f'v_lshrrev_b32 {vr(t0)}, 5, {vr(vLane)}'); a(f'v_lshlrev_b32 {vr(t0)}, 15, {vr(t0)}')
    a(f'v_and_b32 {vr(t1)}, 31, {vr(vLane)}'); a(f'v_lshl_add_u32 {vr(t0)}, {vr(t1)}, 4, {vr(t0)}')
    a(f's_lshl_b32 s6, s{sBeta}, 9'); a(f's_add_u32 s7, s6, {QABS + 65536}'); a(f's_add_u32 s6, s6, {QABS}')
    a(f'buffer_store_dwordx4 {vr(D,4)}, {vr(t0)}, {srd(S_WS)}, s6 offen sc1')
    a(f'buffer_store_dwordx4 {vr(D,4)}, {vr(t0)}, {srd(S_WS)}, s7 offen sc1')
    a(f's_add_u32 s6, s6, {PSTAT - QABS}')
    a('s_mov_b64 exec, 0xffffffff')
    a(f'buffer_store_dwordx4 {vr(D,4)}, {vr(vL16)}, {srd(S_WS)}, s6 offen sc1')
    a(f's_lshl_b32 s6, s{sBeta}, 7'); a(f's_add_u32 s6, s6, {AST}')
    a('s_mov_b64 exec, 0xff')
    a(f'buffer_store_dwordx4 {vr(D,4)}, {vr(vL16)}, {srd(S_WS)}, s6 offen sc1')
    if cfg.dyn:
        a(f's_mul_i32 s6, s{sBeta}, {cfg.psp}'); a(f's_add_u32 s6, s6, {PROG}')
        a('s_mov_b32 exec_lo, 1'); a(f's_mov_b32 exec_hi, {1 if cfg.mon else 0}')
        a(f'buffer_store_dwordx4 {vr(D,4)}, {vr(t0)}, {srd(S_WS)}, s6 offen sc1')
    a('s_mov_b64 exec, -1')
    a(f'{Lc1}:')
    a(f's_mul_i32 s6, s{sBeta}, 9216'); a(f's_mul_i32 s7, s{sW}, {YB - YA}'); a('s_add_u32 s6, s6, s7'); a(f's_add_u32 s6, s6, {YA if not cfg.bskip & 1024 else OOB}')
    for k in range(9):
        if k in (4, 8): a('s_add_u32 s6, s6, 4096')
        a(f'buffer_store_dwordx4 {vr(D,4)}, {vr(vL16)}, {srd(S_WS)}, s6 offen offset:{1024*(k&3)} {cfg.clr_flags}')
    a(f'{Lc}:')
    for jj in range(36): wunit_load(vm, jj, vWoff, cfg.bwq_flags)
    def uk_load(u):
        a(f's_mov_b32 s6, {u*8192}')
        vm.issue(f'buffer_load_dwordx4 {vr(UK+4*u,4)}, {vr(vUoff)}, {srd(S_U)}, s6 offen {fl}', ('u', u))
    for u in range(3): uk_load(u)
    mk_srd(S_DBG, P_DBG, None, 256); mk_srd(S_OUT, P_OUT, None, 9216)
    mk_masks(vLane, MASK, SEL, t0, t1)
    def coff(rho, k):
        if cfg.cwin == 0: return (64 * rho + k) * 1024
        if cfg.cwin == 1: return (1024 * rho + k) * 1024
        return (1024 * rho + 256 * (k >> 2) + (k & 3)) * 1024
    def c_dma(rho, k):
        a(f's_add_u32 m0, s{sM0}, {(rho&1)*CB + k*CROW}')
        a(f's_add_u32 s6, s{sSo}, {coff(rho, k)}')
        vm.issue(f'buffer_load_dwordx4 {vr(vL16x if k >= 8 else vL16)}, {srd(S_K)}, s6 offen {fl} lds', ('c', rho))
    def c_reg(rho, k):
        a(f's_add_u32 s6, s{sSo}, {coff(rho, k)}')
        vm.issue(f'buffer_load_dwordx4 {ar(64*rho+4*k,4)}, {vr(vL16x if k >= 8 else vL16)}, {srd(S_K)}, s6 offen {fl}', ('c', rho))
    a(f's_mul_i32 s{sM0}, s{sW}, {16*CROW}'); a(f's_lshl_b32 s{sSo}, s{sW}, 14')
    if cfg.cwin:
        a(f's_lshl_b32 s6, s{sCh}, 16'); a(f's_add_u32 s{sSo}, s{sSo}, s6')
        if cfg.cwin == 2: a(f's_lshr_b32 s{sSo}, s{sSo}, 2')
    dma = [(rho, k) for rho in range(2) for k in range(16)]
    for jj in range(36):
        vm.wait(('w', jj))
        if jj == 0:
            Ls = lab('sig0')
            a(f's_cmp_ge_u32 s{sW}, 2'); a(f's_cbranch_scc1 {Ls}')
            a(f'v_mov_b32 {vr(t2)}, 1'); a('s_mov_b64 exec, 1')
            a(f'buffer_atomic_add {vr(t2)}, off, {srd(S_DBG)}, 0 offset:{C0}')
            a('s_mov_b64 exec, -1')
            a(f'{Ls}:')
            vm.limit = 61
            for u in range(3, 16): uk_load(u)
        wunit_mfma(jj, [X0, X1], [AC0, AC1], SEL, PA)
        if jj == 28: vm.issue(f'buffer_load_dword {vr(vC0)}, off, {srd(S_DBG)}, 0 offset:{C0} sc1', 'c0')
        if dma: c_dma(*dma.pop(0))
    assert not dma
    a(f'v_lshlrev_b32 {vr(t0)}, 5, {vr(vI)}')
    a(f'v_and_b32 {vr(t1)}, 1, {vr(vG)}'); a(f'v_lshl_add_u32 {vr(t1)}, {vr(t1)}, 4, {vr(t0)}')
    a(f'v_lshrrev_b32 {vr(t2)}, 5, {vr(vLane)}'); a(f'v_lshl_add_u32 {vr(t1)}, {vr(t2)}, 9, {vr(t1)}')
    a(f's_lshl_b32 s6, s{sW}, 11'); a(f's_add_u32 s6, s6, {QRED}'); a(f'v_add_u32 {vr(t1)}, s6, {vr(t1)}')
    a(f'ds_write_b128 {vr(t1)}, {vr(AC0,4)}'); a(f'ds_write_b128 {vr(t1)}, {vr(AC1,4)} offset:1024')
    a(f'v_add_u32 {vr(t0)}, {QRED}, {vr(t0)}')
    a('s_waitcnt lgkmcnt(0)'); a('s_barrier')
    for b in range(4):
        for w in range(4):
            a(f'ds_read_b128 {vr(D+8*w,4)}, {vr(t0)} offset:{2048*w+512*b}')
            a(f'ds_read_b128 {vr(D+8*w+4,4)}, {vr(t0)} offset:{2048*w+512*b+16}')
        a('s_waitcnt lgkmcnt(0)')
        for e in range(8):
            a(f'v_add_f32 {vr(D+e)}, {vr(D+e)}, {vr(D+8+e)}'); a(f'v_add_f32 {vr(D+16+e)}, {vr(D+16+e)}, {vr(D+24+e)}')
        for e in range(8): a(f'v_add_f32 {vr(D+e)}, {vr(D+e)}, {vr(D+16+e)}')
        for k in range(4): a(f'v_cvt_pk_bf16_f32 {vr(QB+4*b+k)}, {vr(D+2*k)}, {vr(D+2*k+1)}')
    vm.wait(('u', 15))
    for u in range(16):
        for k in range(4):
            for b in range(4):
                c = '0' if k == 0 else vr(T + b)
                a(f'v_dot2_f32_bf16 {vr(T+b)}, {vr(UK+4*u+k)}, {vr(QB+4*b+k)}, {c}')
        reduce4(T, XX, U + u)
    for k in range(8): a(f'v_cvt_pk_bf16_f32 {vr(D+k)}, {vr(U+2*k)}, {vr(U+2*k+1)}')
    for k in range(8): a(f'v_min_u32 {vr(D+k)}, -2, {vr(D+k)}')
    a(f'v_bfe_u32 {vr(t0)}, {vr(vLane)}, 2, 2'); a(f'v_lshlrev_b32 {vr(t0)}, 15, {vr(t0)}')
    a(f'v_lshl_add_u32 {vr(t0)}, {vr(vG)}, 5, {vr(t0)}')
    a(f's_lshl_b32 s6, s{sH}, 10'); a(f's_lshl_b32 s7, s{sHalf}, 9'); a('s_add_u32 s6, s6, s7')
    a(f's_lshl_b32 s7, s{sW}, 7'); a('s_add_u32 s6, s6, s7'); a(f's_add_u32 s6, s6, {QABS}')
    if cfg.qfull:
        a(f'v_and_b32 {vr(t1)}, 1, {vr(vLane)}'); a(f'v_lshl_add_u32 {vr(t0)}, {vr(t1)}, 4, {vr(t0)}')
        a(f'v_cmp_eq_u32 vcc, 1, {vr(t1)}')
        for k in range(4): a(f'v_cndmask_b32 {vr(D+k)}, {vr(D+k)}, {vr(D+4+k)}, vcc')
        a('s_mov_b32 exec_lo, 0x33333333'); a('s_mov_b32 exec_hi, 0x33333333')
        vm.issue(f'buffer_store_dwordx4 {vr(D,4)}, {vr(t0)}, {srd(S_WS)}, s6 offen sc1')
    else:
        a('s_mov_b32 exec_lo, 0x11111111'); a('s_mov_b32 exec_hi, 0x11111111')
        vm.issue(f'buffer_store_dwordx4 {vr(D,4)}, {vr(t0)}, {srd(S_WS)}, s6 offen sc1')
        vm.issue(f'buffer_store_dwordx4 {vr(D+4,4)}, {vr(t0)}, {srd(S_WS)}, s6 offen offset:16 sc1')
    a('s_mov_b64 exec, -1')
    stamp(1)
    vm.wait('c0')
    ensure(C0, C0N, vC0)
    stamp(2)
    if cfg.bstop == 1: a('s_branch B_end')
    V = VAlloc(base)
    ACC = V(64, 4); S = V(8, 4); CF = V(64, 4); PF = V(16, 4); MXR = V(12, 4)
    mQ = V(2); mP = V(); lQ = V(2); aQ = V(2); aP = V(); vC = V(); PK = V(4, 2); Mx = V(2); tt = V()
    vA = V(2); vTr = V(2); vMw = V(); vMr = V(); vMp = V(); vPw = V(); vPr = V(); vQ = V(); vQw = V(); vCw = V(2)
    sQ = 14
    a(f's_lshl_b32 s{sQ}, s{sB2}, 15'); a(f's_lshl_b32 s6, s{sW}, 12'); a(f's_add_u32 s{sQ}, s{sQ}, s6'); a(f's_add_u32 s{sQ}, s{sQ}, {QABS}')
    a(f's_add_u32 s{sQ+1}, s{sQ}, 16384')
    def q_loads(iss):
        for nt in range(2):
            for k in range(4):
                iss(f'buffer_load_dwordx4 {vr(CF+16*nt+4*k,4)}, {vr(vL16)}, {srd(S_WS)}, s{sQ+nt} offen offset:{1024*k} sc1')
    a('s_nop 1')
    q_loads(lambda t: vm.issue(t, 'q'))
    for rho in (2, 3):
        for k in range(16): c_reg(rho, k)
    a(f's_lshl_b32 s6, s{sW}, 4'); a(f'v_add_u32 {vr(t0)}, s6, {vr(vI)}'); a(f'v_mul_u32_u24 {vr(t0)}, {CROW}, {vr(t0)}')
    a(f'v_lshrrev_b32 {vr(t1)}, 3, {vr(vI)}'); a(f'v_lshlrev_b32 {vr(t1)}, 1, {vr(t1)}'); a(f'v_xor_b32 {vr(t1)}, {vr(t1)}, {vr(vG)}')
    a(f'v_lshl_add_u32 {vr(vA)}, {vr(t1)}, 4, {vr(t0)}'); a(f'v_add_u32 {vr(vA+1)}, {CB}, {vr(vA)}')
    a(f'v_lshrrev_b32 {vr(t0)}, 5, {vr(vLane)}'); a(f'v_lshlrev_b32 {vr(t0)}, 3, {vr(t0)}')
    a(f'v_bfe_u32 {vr(t1)}, {vr(vLane)}, 2, 2'); a(f'v_add_u32 {vr(t0)}, {vr(t0)}, {vr(t1)}'); a(f'v_mul_u32_u24 {vr(t0)}, {CROW}, {vr(t0)}')
    a(f'v_lshrrev_b32 {vr(t1)}, 1, {vr(vG)}'); a(f'v_xor_b32 {vr(t1)}, {vr(t1)}, {vr(vG)}')
    a(f'v_and_b32 {vr(t1)}, 1, {vr(t1)}'); a(f'v_lshl_add_u32 {vr(t0)}, {vr(t1)}, 5, {vr(t0)}')
    a(f'v_and_b32 {vr(t1)}, 3, {vr(vLane)}'); a(f'v_lshl_add_u32 {vr(t0)}, {vr(t1)}, 3, {vr(t0)}')
    a(f's_lshl_b32 s6, s{sW}, 8'); a(f'v_add_u32 {vr(vTr)}, s6, {vr(t0)}'); a(f'v_add_u32 {vr(vTr+1)}, {CB}, {vr(vTr)}')
    a(f'v_lshlrev_b32 {vr(vMr)}, 4, {vr(vI)}'); a(f'v_add_u32 {vr(vMr)}, {MX}, {vr(vMr)}')
    a(f's_lshl_b32 s6, s{sW}, 2'); a(f'v_add_u32 {vr(vMw)}, s6, {vr(vMr)}')
    a(f'v_and_b32 {vr(t0)}, 31, {vr(vLane)}'); a(f'v_lshlrev_b32 {vr(vMp)}, 4, {vr(t0)}'); a(f'v_add_u32 {vr(vMp)}, {MX}, {vr(vMp)}')
    a(f'v_lshlrev_b32 {vr(vPr)}, 5, {vr(t0)}'); a(f'v_lshrrev_b32 {vr(t1)}, 5, {vr(vLane)}')
    a(f'v_lshl_add_u32 {vr(vPr)}, {vr(t1)}, 4, {vr(vPr)}'); a(f'v_add_u32 {vr(vPr)}, {PB}, {vr(vPr)}')
    a(f'v_lshlrev_b32 {vr(vPw)}, 5, {vr(vI)}'); a(f'v_lshl_add_u32 {vr(vPw)}, {vr(vG)}, 3, {vr(vPw)}')
    a(f's_lshl_b32 s6, s{sW}, 10'); a(f's_add_u32 s6, s6, {PB}'); a(f'v_add_u32 {vr(vPw)}, s6, {vr(vPw)}')
    a(f'v_mul_u32_u24 {vr(vQ)}, {QROW}, {vr(vI)}'); a(f'v_lshl_add_u32 {vr(vQ)}, {vr(vG)}, 4, {vr(vQ)}'); a(f'v_add_u32 {vr(vQ)}, {SQ}, {vr(vQ)}')
    a(f's_mul_i32 s6, s{sW}, {4*QROW}'); a(f's_add_u32 s6, s6, {SQ}'); a(f'v_add_u32 {vr(vQw)}, s6, {vr(vL16)}')
    a(f'v_add_u32 {vr(vCw)}, s{sM0}, {vr(vL16)}'); a(f'v_add_u32 {vr(vCw+1)}, {CB}, {vr(vCw)}')
    a(f'v_mov_b32 {vr(vC)}, {f2u(SCALE):#x}')
    for r in (mQ, mQ + 1, mP): a(f'v_mov_b32 {vr(r)}, 0xff800000')
    a(f'v_mov_b32 {vr(lQ)}, 0'); a(f'v_mov_b32 {vr(lQ+1)}, 0')
    vm.wait('q')
    a(f's_mov_b32 s7, {cfg.spin_max}')
    a('Q_chk:')
    umax_tree(tt, range(CF, CF + 32))
    a(f'v_cmp_eq_u32 vcc, -1, {vr(tt)}')
    a('s_cbranch_vccz Q_ok')
    a(f's_sleep {cfg.qsleep}')
    q_loads(a)
    a('s_waitcnt vmcnt(0)')
    a('s_sub_u32 s7, s7, 1'); a('s_cmp_lg_u32 s7, 0'); a('s_cbranch_scc1 Q_chk')
    a('Q_ok:')
    stamp(3)
    for nt in range(2):
        a('s_barrier')
        for k in range(4): a(f'ds_write_b128 {vr(vQw)}, {vr(CF+16*nt+4*k,4)} offset:{QROW*k}')
        a('s_waitcnt lgkmcnt(0)'); a('s_barrier')
        for ks in range(16): a(f'ds_read_b128 {ar(64*nt+4*ks,4)}, {vr(vQ)} offset:{64*ks}')
        a('s_waitcnt lgkmcnt(0)')
    for rho in range(4):
        par = rho & 1
        for ks in range(16):
            a(f'ds_read_b128 {vr(CF+4*ks,4)}, {vr(vA+par)} offset:{64*ks}')
        for ks in range(16):
            a(f's_waitcnt lgkmcnt({15-ks})')
            for nt in range(2):
                c = '0' if ks == 0 else vr(S + 4 * nt, 4)
                a(f'v_mfma_f32_16x16x32_bf16 {vr(S+4*nt,4)}, {vr(CF+4*ks,4)}, {ar(64*nt+4*ks,4)}, {c}')
        for nt in range(2):
            a(f'v_max_f32 {vr(Mx+nt)}, {vr(S+4*nt)}, {vr(S+4*nt+1)}')
            a(f'v_max3_f32 {vr(Mx+nt)}, {vr(Mx+nt)}, {vr(S+4*nt+2)}, {vr(S+4*nt+3)}')
            allred_rows(Mx + nt, tt, 'v_max_f32')
            a(f'ds_write_b32 {vr(vMw)}, {vr(Mx+nt)} offset:{256*nt}')
        a('s_waitcnt lgkmcnt(0)'); a('s_barrier')
        a(f'ds_read_b128 {vr(MXR,4)}, {vr(vMr)}'); a(f'ds_read_b128 {vr(MXR+4,4)}, {vr(vMr)} offset:256'); a(f'ds_read_b128 {vr(MXR+8,4)}, {vr(vMp)}')
        if 1 <= rho <= 2:
            vm.wait(('c', rho + 1))
            for k in range(16): a(f'ds_write_b128 {vr(vCw+1-par)}, {ar(64*(rho+1)+4*k,4)} offset:{k*CROW}')
            a('s_waitcnt lgkmcnt(15)')
        else:
            a('s_waitcnt lgkmcnt(0)')
        for i, (m, al) in enumerate(((mQ, aQ), (mQ + 1, aQ + 1), (mP, aP))):
            R = MXR + 4 * i
            a(f'v_max_f32 {vr(R)}, {vr(R)}, {vr(R+1)}'); a(f'v_max3_f32 {vr(R)}, {vr(R)}, {vr(R+2)}, {vr(R+3)}')
            a(f'v_mul_f32 {vr(R)}, {vr(R)}, {vr(vC)}'); a(f'v_max_f32 {vr(R)}, {vr(R)}, {vr(m)}')
            a(f'v_sub_f32 {vr(al)}, {vr(m)}, {vr(R)}'); a(f'v_exp_f32 {vr(al)}, {vr(al)}'); a(f'v_mov_b32 {vr(m)}, {vr(R)}')
        for nt in range(2):
            for r in range(4):
                a(f'v_fma_f32 {vr(S+4*nt+r)}, {vr(S+4*nt+r)}, {vr(vC)}, -{vr(mQ+nt)}')
            for r in range(4): a(f'v_exp_f32 {vr(S+4*nt+r)}, {vr(S+4*nt+r)}')
            a(f'v_mul_f32 {vr(lQ+nt)}, {vr(lQ+nt)}, {vr(aQ+nt)}')
            a(f'v_cvt_pk_bf16_f32 {vr(PK+2*nt)}, {vr(S+4*nt)}, {vr(S+4*nt+1)}'); a(f'v_cvt_pk_bf16_f32 {vr(PK+2*nt+1)}, {vr(S+4*nt+2)}, {vr(S+4*nt+3)}')
            a(f'ds_write_b64 {vr(vPw)}, {vr(PK+2*nt,2)} offset:{512*nt}')
            for r in range(4): a(f'v_add_f32 {vr(lQ+nt)}, {vr(lQ+nt)}, {vr(S+4*nt+r)}')
        if rho > 0:
            for r in range(64): a(f'v_mul_f32 {vr(ACC+r)}, {vr(ACC+r)}, {vr(aP)}')
        a('s_waitcnt lgkmcnt(0)'); a('s_barrier')
        for ks in range(4): a(f'ds_read_b128 {vr(PF+4*ks,4)}, {vr(vPr)} offset:{1024*ks}')
        for ks in range(4):
            for ct in range(4):
                for sec in range(2):
                    a(f'ds_read_b64_tr_b16 {vr(CF+16*ks+4*ct+2*sec,2)}, {vr(vTr+par)} offset:{(16*ks+4*sec)*CROW + 64*ct}')
        for ks in range(4):
            a(f's_waitcnt lgkmcnt({min(15, 8*(3-ks))})')
            for ct in range(4):
                c = '0' if (rho == 0 and ks == 0) else vr(ACC + 16 * ct, 16)
                a(f'v_mfma_f32_32x32x16_bf16 {vr(ACC+16*ct,16)}, {vr(CF+16*ks+4*ct,4)}, {vr(PF+4*ks,4)}, {c}')
    stamp(4)
    for nt in range(2):
        allred_rows(lQ + nt, tt, 'v_add_f32')
        a(f'ds_write_b32 {vr(vMw)}, {vr(lQ+nt)} offset:{512+256*nt}')
    TROW = 1040
    a(f'v_and_b32 {vr(t0)}, 31, {vr(vLane)}'); a(f'v_mul_u32_u24 {vr(t0)}, {TROW}, {vr(t0)}')
    a(f'v_lshrrev_b32 {vr(t1)}, 5, {vr(vLane)}'); a(f'v_lshl_add_u32 {vr(t0)}, {vr(t1)}, 3, {vr(t0)}')
    a(f's_lshl_b32 s6, s{sW}, 8'); a(f'v_add_u32 {vr(t0)}, s6, {vr(t0)}')
    for ct in range(4):
        for rq in range(4):
            R = ACC + 16 * ct + 4 * rq; P = CF + 2 * (4 * ct + rq)
            a(f'v_cvt_pk_bf16_f32 {vr(P)}, {vr(R)}, {vr(R+1)}'); a(f'v_cvt_pk_bf16_f32 {vr(P+1)}, {vr(R+2)}, {vr(R+3)}')
            a(f'ds_write_b64 {vr(t0)}, {vr(P,2)} offset:{64*ct+16*rq}')
    a('s_waitcnt lgkmcnt(0)'); a('s_barrier')
    a(f's_mul_i32 s6, s{sW}, {8*TROW}'); a(f'v_add_u32 {vr(t0)}, s6, {vr(vL16)}')
    for k in range(8): a(f'ds_read_b128 {vr(CF+32+4*k,4)}, {vr(t0)} offset:{k*TROW}')
    a(f'ds_read_b128 {vr(MXR,4)}, {vr(vMp)} offset:512')
    a(f's_lshl_b32 s7, s{sW}, 19'); a(f's_lshl_b32 s6, s{sBeta}, 10'); a('s_add_u32 s7, s7, s6'); a(f's_add_u32 s7, s7, {PART if not cfg.bskip & 16 else OOB}')
    if cfg.emu & 4:
        a(f's_cmp_eq_u32 s{sHalf}, 1'); a(f's_cselect_b32 s7, {OOB}, s7')
    for k in range(8):
        a(f's_waitcnt lgkmcnt({8-k})')
        a(f's_add_u32 s6, s7, {k*65536}')
        a(f'buffer_store_dwordx4 {vr(CF+32+4*k,4)}, {vr(vL16)}, {srd(S_WS)}, s6 offen {cfg.pst_flags}')
    a('s_waitcnt lgkmcnt(0)')
    a(f'v_add_f32 {vr(MXR)}, {vr(MXR)}, {vr(MXR+1)}'); a(f'v_add_f32 {vr(MXR+2)}, {vr(MXR+2)}, {vr(MXR+3)}')
    a(f'v_add_f32 {vr(PK+1)}, {vr(MXR)}, {vr(MXR+2)}'); a(f'v_mov_b32 {vr(PK)}, {vr(mP)}')
    a(f'v_and_b32 {vr(t0)}, 31, {vr(vLane)}'); a(f'v_lshrrev_b32 {vr(t1)}, 5, {vr(vLane)}')
    a(f'v_lshl_add_u32 {vr(t0)}, {vr(t0)}, 1, {vr(t1)}'); a(f'v_lshlrev_b32 {vr(t0)}, 9, {vr(t0)}')
    a(f's_lshl_b32 s6, s{sBeta}, 3'); a(f's_add_u32 s6, s6, {PSTAT}')
    a(f'v_min_u32 {vr(PK)}, -2, {vr(PK)}'); a(f'v_min_u32 {vr(PK+1)}, -2, {vr(PK+1)}')
    a('s_waitcnt vmcnt(0)'); a('s_barrier')
    Ls = lab('nops')
    a(f's_cmp_lg_u32 s{sW}, 0'); a(f's_cbranch_scc1 {Ls}')
    if cfg.pshare: a('s_mov_b64 exec, 0xffffffff')
    a(f'buffer_store_dwordx2 {vr(PK,2)}, {vr(t0)}, {srd(S_WS)}, s6 offen sc1')
    if cfg.pshare: a('s_mov_b64 exec, -1')
    a(f'{Ls}:')
    stamp(5)
    if cfg.bstop == 2: a('s_branch B_end')
    V = VAlloc(base)
    UB = 73728; OT = UB + 65536; RED = OT + 2048
    AF = V(64, 4); BF = V(32, 4); D = V(36, 4); F = V(4); ST = V(2); Mx = V(); Lx = V(); vU = V(2); vR = V(4); vT = V(4); PA = V(8, 4); O = V(12, 4)
    a(f's_mul_i32 s6, s{sBeta}, 73728'); mk_srd(S_WO, P_BWO, 's6', 73728)
    a(f's_lshl_b32 s6, s{sBeta}, 7'); a(f's_sub_u32 s7, {512*8192}, s6'); mk_srd(S_U, P_WUV, 's6', 's7')
    for bit, Rr in ((64, S_U), (128, S_WO)):
        if cfg.bskip & bit: a(f's_mov_b32 s{Rr+2}, 0')
    a(f'v_lshrrev_b32 {vr(t0)}, 3, {vr(vLane)}'); a(f'v_and_b32 {vr(t1)}, 7, {vr(vLane)}')
    a(f'v_and_b32 {vr(t2)}, 2, {vr(t0)}'); a(f'v_xor_b32 {vr(t1)}, {vr(t1)}, {vr(t2)}')
    a(f'v_lshlrev_b32 {vr(t0)}, 13, {vr(t0)}')
    a(f'v_lshl_add_u32 {vr(vU)}, {vr(t1)}, 4, {vr(t0)}')
    a(f'v_xor_b32 {vr(t1)}, 4, {vr(t1)}'); a(f'v_lshl_add_u32 {vr(vU+1)}, {vr(t1)}, 4, {vr(t0)}')
    a(f's_lshl_b32 s{sM0}, s{sW}, 14'); a(f's_lshl_b32 s{sSo}, s{sW}, 20')
    if cfg.emu & 2:
        a(f's_lshl_b32 s6, s{sH}, 8'); a(f's_lshl_b32 s7, s{sHalf}, 21'); a('s_add_u32 s6, s6, s7'); a(f's_sub_u32 s7, {512*8192}, s6'); mk_srd(S_U, P_WUV, 's6', 's7')
        a(f'v_lshlrev_b32 {vr(vU)}, 13, {vr(vG)}'); a(f'v_lshl_add_u32 {vr(vU)}, {vr(vI)}, 4, {vr(vU)}'); a(f'v_mov_b32 {vr(vU+1)}, {vr(vU)}')
        a(f's_lshl_b32 s{sSo}, s{sW}, 19')
    for k in range(16):
        a(f's_add_u32 m0, s{sM0}, {UB + k*1024}'); a(f's_add_u32 s6, s{sSo}, {k*(32768 if cfg.emu & 2 else 65536)}')
        a(f'buffer_load_dwordx4 {vr(vU+(k&1))}, {srd(S_U)}, s6 offen {fl} lds')
    a(f's_mul_i32 s{sM0}, s{sW}, 18432')
    for k in range(18):
        a(f's_add_u32 s6, s{sM0}, {k*1024}'); a('s_mov_b32 m0, s6')
        a(f'buffer_load_dwordx4 {vr(vL16)}, {srd(S_WO)}, s6 offen {fl} lds')
    mk_wo_tr_addr(vLane, vT, t0, t1, False)
    a(f'v_bfe_u32 {vr(t0)}, {vr(vLane)}, 2, 2'); a(f'v_lshl_add_u32 {vr(t0)}, {vr(vG)}, 3, {vr(t0)}'); a(f'v_lshlrev_b32 {vr(t0)}, 7, {vr(t0)}')
    a(f'v_and_b32 {vr(t1)}, 3, {vr(vLane)}'); a(f'v_lshl_add_u32 {vr(t0)}, {vr(t1)}, 3, {vr(t0)}'); a(f'v_add_u32 {vr(t0)}, {UB}, {vr(t0)}')
    a(f'v_bfe_u32 {vr(t1)}, {vr(vLane)}, 3, 2')
    for t in range(4):
        a(f'v_xor_b32 {vr(t2)}, {t}, {vr(t1)}'); a(f'v_lshl_add_u32 {vr(vR+t)}, {vr(t2)}, 5, {vr(t0)}')
    a(f'v_lshlrev_b32 {vr(t0)}, 10, {vr(vI)}'); a(f'v_lshl_add_u32 {vr(t0)}, {vr(vG)}, 4, {vr(t0)}')
    a(f'v_lshlrev_b32 {vr(t1)}, 3, {vr(vI)}')
    a(f's_lshl_b32 s6, s{sH}, 10' if cfg.pshare else f's_lshl_b32 s6, s{sBeta}, 9'); a(f's_lshl_b32 s7, s{sW}, 7'); a('s_add_u32 s6, s6, s7'); a(f's_add_u32 s6, s6, {PSTAT}')
    a(f's_mov_b32 s7, {cfg.spin_max}')
    a('P_poll:')
    a(f'buffer_load_dwordx2 {vr(ST,2)}, {vr(t1)}, {srd(S_WS)}, s6 offen sc1')
    a('s_waitcnt vmcnt(0)')
    a(f'v_max_u32 {vr(Mx)}, {vr(ST)}, {vr(ST+1)}'); a(f'v_cmp_eq_u32 vcc, -1, {vr(Mx)}')
    a('s_cbranch_vccz P_ok')
    a(f's_sleep {cfg.psleep}')
    a('s_sub_u32 s7, s7, 1'); a('s_cmp_lg_u32 s7, 0'); a('s_cbranch_scc1 P_poll')
    a('P_ok:')
    stamp(6)
    vm = VM(a)
    a(f's_lshl_b32 s6, s{sH}, 16'); a(f's_lshl_b32 s7, s{sW}, 14'); a('s_add_u32 s6, s6, s7'); a(f's_add_u32 s6, s6, {PART if not cfg.bskip & 256 else OOB}')
    if cfg.emu & 4:
        a(f's_cmp_eq_u32 s{sHalf}, 1'); a(f's_cselect_b32 s6, {OOB}, s6')
    for ks in range(16):
        if cfg.emu & 4:
            vm.issue(f'buffer_load_dwordx4 {vr(AF+4*ks,4)}, {vr(vL16)}, {srd(S_WS)}, s6 offen offset:{2048*(ks&1)} sc1', ('a', ks))
            if ks & 1: a(f's_add_u32 s6, s6, {4096 if ks != 7 else OOB}')
            continue
        if cfg.bskip & 512:
            vm.issue(f'buffer_load_dwordx4 {vr(AF+4*ks,4)}, {vr(vL16)}, {srd(S_WS)}, s6 offen offset:{1024*(ks&3)} sc1', ('a', ks))
            if ks & 3 == 3: a('s_add_u32 s6, s6, 4096')
            continue
        vm.issue(f'buffer_load_dwordx4 {vr(AF+4*ks,4)}, {vr(t0)}, {srd(S_WS)}, s6 offen offset:{64*ks} {cfg.pld_flags}', ('a', ks))
    a('s_barrier')
    wo_frag_reads(2, vT)
    a(f'v_mov_b32 {vr(Mx)}, {vr(ST)}')
    for sh in (8, 4, 2, 1): a(f'v_max_f32_dpp {vr(Mx)}, {vr(Mx)}, {vr(Mx)} row_ror:{sh} {DPPF}')
    a(f'v_sub_f32 {vr(ST)}, {vr(ST)}, {vr(Mx)}'); a(f'v_exp_f32 {vr(ST)}, {vr(ST)}')
    a(f'v_mul_f32 {vr(Lx)}, {vr(ST)}, {vr(ST+1)}')
    for sh in (8, 4, 2, 1): a(f'v_add_f32_dpp {vr(Lx)}, {vr(Lx)}, {vr(Lx)} row_ror:{sh} {DPPF}')
    a(f'v_rcp_f32 {vr(Lx)}, {vr(Lx)}'); a(f'v_mul_f32 {vr(ST)}, {vr(ST)}, {vr(Lx)}')
    for r in range(4):
        for q in range(4):
            a(f'v_mov_b32_dpp {vr(F+r)}, {vr(ST)} row_newbcast:{4*q+r} row_mask:{1<<q:#x} bank_mask:0xf')
    a('s_waitcnt lgkmcnt(0)')
    def u_reads(ks):
        for t in range(4):
            for sec in range(2):
                a(f'ds_read_b64_tr_b16 {vr(BF+16*(ks&1)+4*t+2*sec,2)}, {vr(vR+t)} offset:{(32*ks+4*sec)*128}')
    u_reads(0)
    for ks in range(16):
        if ks + 1 < 16: u_reads(ks + 1)
        vm.wait(('a', ks))
        a(f's_waitcnt lgkmcnt({8 if ks + 1 < 16 else 0})')
        for t in range(4):
            c = '0' if ks == 0 else vr(D + 4 * t, 4)
            a(f'v_mfma_f32_16x16x32_bf16 {vr(D+4*t,4)}, {vr(AF+4*ks,4)}, {vr(BF+16*(ks&1)+4*t,4)}, {c}')
    a(f'v_lshlrev_b32 {vr(t0)}, 7, {vr(vG)}'); a(f'v_lshl_add_u32 {vr(t0)}, {vr(vI)}, 1, {vr(t0)}')
    a(f's_lshl_b32 s6, s{sW}, 9'); a(f's_add_u32 s6, s6, {OT}'); a(f'v_add_u32 {vr(t0)}, s6, {vr(t0)}')
    for t in range(4):
        a(f'v_mul_f32 {vr(O+t)}, {vr(F)}, {vr(D+4*t)}')
        for r in range(1, 4): a(f'v_fma_f32 {vr(O+t)}, {vr(F+r)}, {vr(D+4*t+r)}, {vr(O+t)}')
        a(f'v_cvt_pk_bf16_f32 {vr(O+t)}, {vr(O+t)}, {vr(O+t)}')
        a(f'ds_write_b16 {vr(t0)}, {vr(O+t)} offset:{32*t}')
    a(f'v_lshlrev_b32 {vr(t1)}, 7, {vr(vI)}'); a(f'v_lshl_add_u32 {vr(t1)}, {vr(vG)}, 4, {vr(t1)}'); a(f'v_add_u32 {vr(t1)}, {OT}, {vr(t1)}')
    if cfg.dyn:
        a(f'v_mov_b32 {vr(vC0)}, {RED}'); a(f'v_mov_b32 {vr(t2)}, 0'); a(f'ds_write_b32 {vr(vC0)}, {vr(t2)}')
    a('s_waitcnt lgkmcnt(0)'); a('s_barrier')
    for ks in range(2): a(f'ds_read_b128 {vr(PA+4*ks,4)}, {vr(t1)} offset:{64*ks}')
    a(f'v_mul_u32_u24 {vr(t0)}, {64*2304}, {vr(vG)}')
    a(f'v_and_b32 {vr(t1)}, 3, {vr(vLane)}'); a(f'v_bfe_u32 {vr(t2)}, {vr(vLane)}, 2, 2')
    a(f'v_lshl_add_u32 {vr(t1)}, {vr(t1)}, 2, {vr(t2)}'); a(f'v_lshl_add_u32 {vr(t1)}, {vr(t1)}, 2, {vr(t0)}')
    a(f'v_lshl_add_u32 {vr(t0)}, {vr(vI)}, 4, {vr(t0)}')
    a(f's_mul_i32 s6, s{sBeta}, 2304'); a(f's_mul_i32 s7, s{sW}, 576'); a('s_add_u32 s6, s6, s7'); a(f's_add_u32 s6, s6, {YB}')
    a('s_waitcnt lgkmcnt(0)')
    for t in range(9):
        for ks in range(2):
            c = '0' if ks == 0 else vr(D + 4 * t, 4)
            a(f'v_mfma_f32_16x16x32_bf16 {vr(D+4*t,4)}, {vr(PA+4*ks,4)}, {ar(AW+4*(t*2+ks),4)}, {c}')
    for t in range(9):
        a(f'v_add_f32 {vr(D+4*t)}, {vr(D+4*t)}, {vr(D+4*t+1)}'); a(f'v_add_f32 {vr(D+4*t+2)}, {vr(D+4*t+2)}, {vr(D+4*t+3)}')
        a(f'v_add_f32 {vr(O+t)}, {vr(D+4*t)}, {vr(D+4*t+2)}'); a(f'v_min_u32 {vr(O+t)}, -2, {vr(O+t)}')
    a(f'buffer_store_dwordx4 {vr(O,4)}, {vr(t0)}, {srd(S_WS)}, s6 offen sc1')
    a(f'buffer_store_dwordx4 {vr(O+4,4)}, {vr(t0)}, {srd(S_WS)}, s6 offen offset:256 sc1')
    a(f'buffer_store_dword {vr(O+8)}, {vr(t1)}, {srd(S_WS)}, s6 offen offset:512 sc1')
    stamp(7)
    if cfg.bstop == 3: a('s_branch B_end')
    gen_final(vLane, vG, t0, t1, vC0, sHalf, sBeta, base)


def gen_CD():
    V = VAlloc(1)
    vLane = V(); vL16 = V(); vWoff = V(); vXoff = V(); t0 = V(); t1 = V(); t2 = V(); vI = V(); vG = V(); vL16x = V(); vC0 = V()
    base = V.n
    sHalf, sBeta, sB2, sCh, sM0, sSo = 8, 9, 10, 11, 12, 13
    FLAG = LDS_TOTAL - 16
    fl = cfg.b_flags
    def flag_init():
        if cfg.dyn:
            a(f'v_mov_b32 {vr(vC0)}, {FLAG}'); a(f'v_mov_b32 {vr(t2)}, 0'); a(f'ds_write_b32 {vr(vC0)}, {vr(t2)}')
    a('B_role:')
    if cfg.noB: a('s_endpgm')
    a(f's_mov_b32 s{sHalf}, s{sR}')
    a(f's_lshl_b32 s{sBeta}, s{sH}, 1'); a(f's_add_u32 s{sBeta}, s{sBeta}, s{sHalf}')
    a(f'v_and_b32 {vr(vLane)}, 63, v0'); a(f'v_lshlrev_b32 {vr(vL16)}, 4, {vr(vLane)}')
    a(f'v_lshrrev_b32 {vr(vG)}, 4, {vr(vLane)}'); a(f'v_and_b32 {vr(vI)}, 15, {vr(vLane)}')
    a(f's_cmp_eq_u32 s{sHalf}, 1'); a('s_cbranch_scc1 D_role')
    if cfg.warm & 2: warm_code('', 'D_role', vLane, t0, t1, 1)
    QRED = 147456; XB = QRED; XS = 1040; OT = QRED + 8192; OS = 272
    assert OT + 16 * OS <= FLAG
    MASK = V(4); SEL = V(8); X0 = V(20, 4); X1 = V(20, 4); PA = V(16, 4); AC0 = V(4, 4); AC1 = V(4, 4)
    UK = V(128, 4); QB = V(16, 4); T = V(4); XX = V(2); vUoff = V(); vT = V(4); E8 = V(8, 4)
    D = X0; U = PA
    a(f'v_mul_u32_u24 {vr(vWoff)}, {36*8192}, {vr(vG)}'); a(f'v_lshl_add_u32 {vr(vWoff)}, {vr(vI)}, 4, {vr(vWoff)}')
    a(f'v_mul_u32_u24 {vr(vXoff)}, 72, {vr(vG)}'); a(f'v_lshrrev_b32 {vr(t1)}, 3, {vr(vI)}')
    a(f'v_mul_u32_u24 {vr(t1)}, 1152, {vr(t1)}'); a(f'v_add_u32 {vr(vXoff)}, {vr(vXoff)}, {vr(t1)}')
    a(f'v_lshlrev_b32 {vr(vUoff)}, 17, {vr(vG)}'); a(f'v_lshl_add_u32 {vr(vUoff)}, {vr(vI)}, 4, {vr(vUoff)}')
    a('s_waitcnt lgkmcnt(0)')
    a(f's_mul_i32 s6, s{sW}, 288'); a('s_sub_u32 s7, 4608, s6'); mk_srd(S_X, P_BX, 's6', 's7')
    a(f's_mul_i32 s6, s{sW}, {144*8192}'); a(f's_lshl_b32 s7, s{sH}, 8'); a('s_add_u32 s6, s6, s7')
    a(f's_sub_u32 s7, {576*8192}, s6'); mk_srd(S_W, P_BWQ, 's6', 's7')
    vm = VM(a, 62)
    x_loads(vm, X0, vXoff, 0); x_loads(vm, X1, vXoff, 2304)
    for jj in range(36): wunit_load(vm, jj, vWoff, cfg.bwq_flags)
    a(f's_lshl_b32 s6, s{sW}, 20'); a(f's_lshl_b32 s7, s{sH}, 8'); a('s_add_u32 s6, s6, s7'); a(f's_sub_u32 s7, {512*8192}, s6')
    mk_srd(S_U, P_WUK, 's6', 's7'); mk_srd(S_K, P_WUV, 's6', 's7')
    def uk_load(u):
        a(f's_mov_b32 s6, {(64*(u>>4) + (u&15))*8192}')
        vm.issue(f'buffer_load_dwordx4 {vr(UK+4*u,4)}, {vr(vUoff)}, {srd(S_U)}, s6 offen {fl}', ('u', u))
    for u in range(12): uk_load(u)
    mk_srd(S_WS, P_WS, None, WS_USED); mk_srd(S_DBG, P_DBG, None, 256); mk_srd(S_OUT, P_OUT, None, 9216)
    a(f's_mul_i32 s6, s{sH}, 147456'); mk_srd(S_WO, P_BWO, 's6', 147456)
    mk_masks(vLane, MASK, SEL, t0, t1)
    mk_wo_tr_addr(vLane, vT, t0, t1, True)
    a(f's_mul_i32 s{sM0}, s{sW}, 36864')
    nd = [0]
    def wo_dma():
        k = nd[0]; nd[0] += 1
        if k % 4 == 0:
            if k: a(f's_add_u32 s{sM0}, s{sM0}, 4096')
            a(f's_mov_b32 m0, s{sM0}')
        vm.issue(f'buffer_load_dwordx4 {vr(vL16)}, {srd(S_WO)}, s{sM0} offen offset:{1024*(k%4)} {fl} lds', 'wo')
    nu = 12
    for jj in range(36):
        vm.wait(('w', jj))
        wunit_mfma(jj, [X0, X1], [AC0, AC1], SEL, PA)
        if nu < 32: uk_load(nu); nu += 1
        elif nu == 32: vm.issue(f'buffer_load_dword {vr(vC0)}, off, {srd(S_DBG)}, 0 offset:{C0} sc1', 'c0'); nu += 1
        elif nd[0] < cfg.cpre: wo_dma()
    stamp(3)
    a(f'v_lshlrev_b32 {vr(t0)}, 5, {vr(vI)}')
    a(f'v_and_b32 {vr(t1)}, 1, {vr(vG)}'); a(f'v_lshl_add_u32 {vr(t1)}, {vr(t1)}, 4, {vr(t0)}')
    a(f'v_lshrrev_b32 {vr(t2)}, 5, {vr(vLane)}'); a(f'v_lshl_add_u32 {vr(t1)}, {vr(t2)}, 9, {vr(t1)}')
    a(f's_lshl_b32 s6, s{sW}, 11'); a(f's_add_u32 s6, s6, {QRED}'); a(f'v_add_u32 {vr(t1)}, s6, {vr(t1)}')
    a(f'ds_write_b128 {vr(t1)}, {vr(AC0,4)}'); a(f'ds_write_b128 {vr(t1)}, {vr(AC1,4)} offset:1024')
    a(f'v_add_u32 {vr(t0)}, {QRED}, {vr(t0)}')
    a('s_waitcnt lgkmcnt(0)'); a('s_barrier')
    for b in range(4):
        for w in range(4):
            a(f'ds_read_b128 {vr(D+8*w,4)}, {vr(t0)} offset:{2048*w+512*b}')
            a(f'ds_read_b128 {vr(D+8*w+4,4)}, {vr(t0)} offset:{2048*w+512*b+16}')
        a('s_waitcnt lgkmcnt(0)')
        for e in range(8):
            a(f'v_add_f32 {vr(D+e)}, {vr(D+e)}, {vr(D+8+e)}'); a(f'v_add_f32 {vr(D+16+e)}, {vr(D+16+e)}, {vr(D+24+e)}')
        for e in range(8): a(f'v_add_f32 {vr(D+e)}, {vr(D+e)}, {vr(D+16+e)}')
        for k in range(4): a(f'v_cvt_pk_bf16_f32 {vr(QB+4*b+k)}, {vr(D+2*k)}, {vr(D+2*k+1)}')
    a(f'v_bfe_u32 {vr(t0)}, {vr(vLane)}, 2, 2'); a(f'v_lshlrev_b32 {vr(t0)}, 15, {vr(t0)}')
    a(f'v_lshl_add_u32 {vr(t0)}, {vr(vG)}, 5, {vr(t0)}')
    a(f'v_and_b32 {vr(t1)}, 1, {vr(vLane)}'); a(f'v_lshl_add_u32 {vr(t0)}, {vr(t1)}, 4, {vr(t0)}')
    a(f'v_bfe_u32 {vr(t2)}, {vr(vLane)}, 1, 1'); a(f'v_lshl_add_u32 {vr(t0)}, {vr(t2)}, 7, {vr(t0)}')
    for hf in range(2):
        stamp(4 + hf)
        for u in range(16):
            vm.wait(('u', 16 * hf + u))
            for k in range(4):
                for b in range(4):
                    c = '0' if k == 0 else vr(T + b)
                    a(f'v_dot2_f32_bf16 {vr(T+b)}, {vr(UK+64*hf+4*u+k)}, {vr(QB+4*b+k)}, {c}')
            reduce4(T, XX, U + u)
        for k in range(8): a(f'v_cvt_pk_bf16_f32 {vr(D+k)}, {vr(U+2*k)}, {vr(U+2*k+1)}')
        a(f'v_cmp_eq_u32 vcc, 1, {vr(t1)}')
        for k in range(4): a(f'v_cndmask_b32 {vr(E8+4*hf+k)}, {vr(D+k)}, {vr(D+4+k)}, vcc')
    a(f'v_cmp_eq_u32 vcc, 1, {vr(t2)}')
    for k in range(4): a(f'v_cndmask_b32 {vr(E8+k)}, {vr(E8+k)}, {vr(E8+4+k)}, vcc')
    for k in range(4): a(f'v_min_u32 {vr(E8+k)}, -2, {vr(E8+k)}')
    vm.wait('c0')
    ensure(C0, C0N, vC0)
    a(f's_lshl_b32 s6, s{sH}, 10'); a(f's_lshl_b32 s7, s{sW}, 8'); a('s_add_u32 s6, s6, s7'); a(f's_add_u32 s6, s6, {QABS}')
    vm.issue(f'buffer_store_dwordx4 {vr(E8,4)}, {vr(t0)}, {srd(S_WS)}, s6 offen sc1')
    stamp(1)
    while nd[0] < 36: wo_dma()
    a(f'v_lshlrev_b32 {vr(vUoff)}, 18, {vr(vG)}'); a(f'v_lshl_add_u32 {vr(vUoff)}, {vr(vI)}, 4, {vr(vUoff)}')
    for j in range(32):
        a(f's_mov_b32 s6, {j*8192}')
        vm.issue(f'buffer_load_dwordx4 {vr(UK+4*j,4)}, {vr(vUoff)}, {srd(S_K)}, s6 offen {fl}', 'uv')
    vm.wait('wo')
    flag_init()
    a('s_waitcnt lgkmcnt(0)'); a('s_barrier')
    wo_frag_reads(4, vT)
    stamp(2)
    ST = T; Mx = T + 2; Lx = T + 3; AF = X0; CX = QB; sF = 26
    a(f'v_and_b32 {vr(t1)}, 7, {vr(vLane)}'); a(f'v_lshlrev_b32 {vr(t1)}, 3, {vr(t1)}')
    a(f's_lshl_b32 s6, s{sH}, 8'); a(f's_lshl_b32 s7, s{sW}, 6'); a('s_add_u32 s6, s6, s7'); a(f's_add_u32 s6, s6, {PSTAT}')
    a(f's_mov_b32 s7, {cfg.spin_max}')
    a('P_poll:')
    a(f'buffer_load_dwordx2 {vr(ST,2)}, {vr(t1)}, {srd(S_WS)}, s6 offen sc1')
    a('s_waitcnt vmcnt(0)')
    a(f'v_max_u32 {vr(Mx)}, {vr(ST)}, {vr(ST+1)}'); a(f'v_cmp_eq_u32 vcc, -1, {vr(Mx)}')
    a('s_cbranch_vccz P_ok')
    a(f's_sleep {cfg.psleep}')
    a('s_sub_u32 s7, s7, 1'); a('s_cmp_lg_u32 s7, 0'); a('s_cbranch_scc1 P_poll')
    a('P_ok:')
    stamp(6)
    vm = VM(a)
    a(f's_lshl_b32 s6, s{sH}, 15'); a(f's_lshl_b32 s7, s{sW}, 13'); a('s_add_u32 s6, s6, s7'); a(f's_add_u32 s6, s6, {PART}')
    for ch in range(8):
        if ch == 4: a('s_add_u32 s6, s6, 4096')
        vm.issue(f'buffer_load_dwordx4 {vr(AF+4*ch,4)}, {vr(vL16)}, {srd(S_WS)}, s6 offen offset:{1024*(ch&3)} sc1', ('a', ch))
    a(f'v_mov_b32 {vr(Mx)}, {vr(ST)}')
    for sh in (4, 2, 1): a(f'v_max_f32_dpp {vr(Mx)}, {vr(Mx)}, {vr(Mx)} row_ror:{sh} {DPPF}')
    a(f'v_sub_f32 {vr(ST)}, {vr(ST)}, {vr(Mx)}'); a(f'v_exp_f32 {vr(ST)}, {vr(ST)}')
    a(f'v_mul_f32 {vr(Lx)}, {vr(ST)}, {vr(ST+1)}')
    for sh in (4, 2, 1): a(f'v_add_f32_dpp {vr(Lx)}, {vr(Lx)}, {vr(Lx)} row_ror:{sh} {DPPF}')
    a(f'v_rcp_f32 {vr(Lx)}, {vr(Lx)}'); a(f'v_mul_f32 {vr(ST)}, {vr(ST)}, {vr(Lx)}')
    for ch in range(8): a(f'v_readlane_b32 s{sF+ch}, {vr(ST)}, {ch}')
    a(f's_mul_i32 s6, s{sW}, {XS}'); a(f's_add_u32 s6, s6, {XB}'); a(f'v_add_u32 {vr(t0)}, s6, {vr(vL16)}')
    a(f'v_lshrrev_b32 {vr(t1)}, 3, {vr(vI)}'); a(f'v_mul_u32_u24 {vr(t1)}, {XS}, {vr(t1)}'); a(f'v_lshl_add_u32 {vr(t1)}, {vr(vG)}, 6, {vr(t1)}')
    a(f's_lshl_b32 s6, s{sW}, 8'); a(f's_add_u32 s6, s6, {XB}'); a(f'v_add_u32 {vr(t1)}, s6, {vr(t1)}')
    for ch in range(8):
        vm.wait(('a', ch))
        for d in range(4):
            a(f'v_lshlrev_b32 {vr(E8+2*d)}, 16, {vr(AF+4*ch+d)}'); a(f'v_and_b32 {vr(E8+2*d+1)}, 0xffff0000, {vr(AF+4*ch+d)}')
        for e in range(8):
            if ch == 0: a(f'v_mul_f32 {vr(CX+e)}, s{sF}, {vr(E8+e)}')
            else: a(f'v_fma_f32 {vr(CX+e)}, {vr(E8+e)}, s{sF+ch}, {vr(CX+e)}')
    for d in range(4): a(f'v_cvt_pk_bf16_f32 {vr(CX+8+d)}, {vr(CX+2*d)}, {vr(CX+2*d+1)}')
    a(f'ds_write_b128 {vr(t0)}, {vr(CX+8,4)}')
    a('s_waitcnt lgkmcnt(0)'); a('s_barrier')
    for k in range(4):
        a(f'ds_read_b128 {vr(X0+4*k,4)}, {vr(t1)} offset:{16*k}'); a(f'ds_read_b128 {vr(X1+4*k,4)}, {vr(t1)} offset:{2*XS+16*k}')
    a(f'v_lshrrev_b32 {vr(t0)}, 5, {vr(vLane)}'); a(f'v_mul_u32_u24 {vr(t0)}, {4*OS}, {vr(t0)}'); a(f'v_lshl_add_u32 {vr(t0)}, {vr(vI)}, 4, {vr(t0)}')
    a(f'v_and_b32 {vr(t2)}, 1, {vr(vG)}'); a(f'v_lshl_add_u32 {vr(t0)}, {vr(t2)}, 3, {vr(t0)}')
    a(f's_mul_i32 s6, s{sW}, {OS}'); a(f's_add_u32 s6, s6, {OT}'); a(f'v_add_u32 {vr(t0)}, s6, {vr(t0)}')
    a(f'v_mul_u32_u24 {vr(t2)}, {OS}, {vr(vI)}'); a(f'v_lshl_add_u32 {vr(t2)}, {vr(vG)}, 4, {vr(t2)}'); a(f'v_add_u32 {vr(t2)}, {OT}, {vr(t2)}')
    a('s_waitcnt lgkmcnt(0)')
    for j in range(32): wunit_mfma(j, [X0, X1], [AC0, AC1], SEL, PA, UK)
    for s_, AC in enumerate((AC0, AC1)):
        a(f'v_cvt_pk_bf16_f32 {vr(E8+2*s_)}, {vr(AC)}, {vr(AC+1)}'); a(f'v_cvt_pk_bf16_f32 {vr(E8+2*s_+1)}, {vr(AC+2)}, {vr(AC+3)}')
        a(f'ds_write_b64 {vr(t0)}, {vr(E8+2*s_,2)} offset:{8*OS*s_}')
    a('s_waitcnt lgkmcnt(0)'); a('s_barrier')
    for ks in range(4): a(f'ds_read_b128 {vr(PA+4*ks,4)}, {vr(t2)} offset:{64*ks}')
    O = QB
    a(f'v_mul_u32_u24 {vr(t0)}, {32*2304}, {vr(vG)}')
    a(f'v_and_b32 {vr(t1)}, 3, {vr(vLane)}'); a(f'v_bfe_u32 {vr(t2)}, {vr(vLane)}, 2, 2')
    a(f'v_lshl_add_u32 {vr(t1)}, {vr(t1)}, 2, {vr(t2)}'); a(f'v_lshl_add_u32 {vr(t1)}, {vr(t1)}, 2, {vr(t0)}')
    a(f'v_lshl_add_u32 {vr(t0)}, {vr(vI)}, 4, {vr(t0)}')
    a(f's_mul_i32 s6, s{sH}, 2304'); a(f's_mul_i32 s7, s{sW}, 576'); a('s_add_u32 s6, s6, s7'); a(f's_add_u32 s6, s6, {YB}')
    a('s_waitcnt lgkmcnt(0)')
    for t in range(9):
        for ks in range(4):
            c = '0' if ks == 0 else vr(D + 4 * t, 4)
            a(f'v_mfma_f32_16x16x32_bf16 {vr(D+4*t,4)}, {vr(PA+4*ks,4)}, {ar(AW+4*(t*4+ks),4)}, {c}')
    for t in range(9):
        a(f'v_add_f32 {vr(D+4*t)}, {vr(D+4*t)}, {vr(D+4*t+1)}'); a(f'v_add_f32 {vr(D+4*t+2)}, {vr(D+4*t+2)}, {vr(D+4*t+3)}')
        a(f'v_add_f32 {vr(O+t)}, {vr(D+4*t)}, {vr(D+4*t+2)}'); a(f'v_min_u32 {vr(O+t)}, -2, {vr(O+t)}')
    a(f'buffer_store_dwordx4 {vr(O,4)}, {vr(t0)}, {srd(S_WS)}, s6 offen sc1')
    a(f'buffer_store_dwordx4 {vr(O+4,4)}, {vr(t0)}, {srd(S_WS)}, s6 offen offset:256 sc1')
    a(f'buffer_store_dword {vr(O+8)}, {vr(t1)}, {srd(S_WS)}, s6 offen offset:512 sc1')
    stamp(7)
    a('s_nop 1')
    a('s_branch B_final')
    NR = 8
    CROW = 1088; CB = 64 * CROW
    QROW = 1056; SQ = 2 * CB
    PB = SQ + 16 * QROW; MX = PB + 4096; LS = MX + 512
    assert LS + 512 <= FLAG
    V = VAlloc(base)
    ACC = V(64, 4); S = V(8, 4); CF = V(64, 4); PF = V(16, 4); MXR = V(12, 4)
    mQ = V(2); mP = V(); lQ = V(2); aQ = V(2); aP = V(); vC = V(); PK = V(4, 2); Mx = V(2); tt = V()
    vA = V(2); vTr = V(2); vMw = V(); vMr = V(); vMp = V(); vPw = V(); vPr = V(); vQ = V(); vQw = V(); vCw = V(2)
    a('D_role:')
    if cfg.warm & 4: warm_code('', 'B_end', vLane, t0, t1, 2)
    a(f's_lshr_b32 s{sB2}, s{sH}, 3'); a(f's_and_b32 s{sCh}, s{sH}, 7')
    a(f'v_xor_b32 {vr(vL16x)}, 32, {vr(vL16)}')
    for r in range(4): a(f'v_mov_b32 {vr(S+r)}, -1')
    a('s_waitcnt lgkmcnt(0)')
    mk_srd(S_WS, P_WS, None, WS_USED)
    a(f's_lshl_b32 s6, s{sB2}, 22'); mk_srd(S_K, P_CKV, 's6', 0x400000)
    if cfg.dpf:
        a(f'v_lshrrev_b32 {vr(t0)}, 3, {vr(vLane)}'); a(f'v_lshlrev_b32 {vr(t0)}, 13, {vr(t0)}')
        a(f'v_and_b32 {vr(t1)}, 7, {vr(vLane)}'); a(f'v_lshl_add_u32 {vr(t0)}, {vr(t1)}, 7, {vr(t0)}')
        a(f's_and_b32 s6, s{sH}, 3'); a('s_lshl_b32 s6, s6, 2'); a(f's_add_u32 s14, s6, s{sW}')
        a(f's_lshr_b32 s15, s{sH}, 2'); a('s_lshl_b32 s15, s15, 10')
        n = 0
        for bit, P, rows in ((2, P_BWQ, 576), (1, P_WUK, 512)):
            if not cfg.dpf & bit: continue
            mk_srd(S_U, P, None, rows * 8192)
            a(f's_mul_i32 s6, s14, {8*8192}'); a('s_add_u32 s6, s6, s15')
            for k in range(-(-rows // 128)):
                a(f'buffer_load_dword {vr(CF+n)}, {vr(t0)}, {srd(S_U)}, s6 offen'); n += 1
                a(f's_add_u32 s6, s6, {128*8192}')
    L3, Lc = lab('clr3'), lab('clrd')
    a(f's_cmp_eq_u32 s{sW}, 3'); a(f's_cbranch_scc1 {L3}')
    a(f's_add_u32 s6, s{sBeta}, s{sW}'); a('s_sub_u32 s6, s6, 1'); a(f's_cmp_eq_u32 s{sW}, 2')
    a(f's_cselect_b32 s6, s{sH}, s6'); a(f's_cselect_b32 s7, {YB}, {YA}') if False else (a(f's_cselect_b32 s7, 1, 0'), a(f's_mul_i32 s7, s7, {YB - YA}'))
    a('s_mul_i32 s6, s6, 9216'); a('s_add_u32 s6, s6, s7'); a(f's_add_u32 s6, s6, {YA}')
    for k in range(9):
        if k in (4, 8): a('s_add_u32 s6, s6, 4096')
        a(f'buffer_store_dwordx4 {vr(S,4)}, {vr(vL16)}, {srd(S_WS)}, s6 offen offset:{1024*(k&3)} sc1')
    a(f's_branch {Lc}')
    a(f'{L3}:')
    a(f's_lshl_b32 s6, s{sH}, 12'); a(f's_add_u32 s6, s6, {QABS}')
    for k in range(4): a(f'buffer_store_dwordx4 {vr(S,4)}, {vr(vL16)}, {srd(S_WS)}, s6 offen offset:{1024*k} sc1')
    a('s_mov_b64 exec, 0xffff')
    a(f's_lshl_b32 s6, s{sH}, 8'); a(f's_add_u32 s7, s6, {AST}'); a(f's_add_u32 s6, s6, {PSTAT}')
    a(f'buffer_store_dwordx4 {vr(S,4)}, {vr(vL16)}, {srd(S_WS)}, s6 offen sc1')
    a(f'buffer_store_dwordx4 {vr(S,4)}, {vr(vL16)}, {srd(S_WS)}, s7 offen sc1')
    if cfg.dyn:
        assert cfg.psp == 16 and not cfg.mon
        a('s_mov_b64 exec, 3')
        a(f's_lshl_b32 s6, s{sH}, 5'); a(f's_add_u32 s6, s6, {PROG}')
        a(f'buffer_store_dwordx4 {vr(S,4)}, {vr(vL16)}, {srd(S_WS)}, s6 offen sc1')
    a('s_mov_b64 exec, -1')
    a(f'{Lc}:')
    mk_srd(S_DBG, P_DBG, None, 256); mk_srd(S_OUT, P_OUT, None, 9216)
    cw = cfg.cw2
    def coff(rho, k): return (512 * rho + (32 << cw) * (k >> cw) + (k & ((1 << cw) - 1))) * 1024
    vm = VM(a, 61)
    def c_dma(rho, k):
        a(f's_add_u32 m0, s{sM0}, {(rho&1)*CB + k*CROW}')
        a(f's_add_u32 s6, s{sSo}, {coff(rho, k)}')
        vm.issue(f'buffer_load_dwordx4 {vr(vL16x if k >= 8 else vL16)}, {srd(S_K)}, s6 offen {fl} lds', ('c', rho))
    def stg(rho): return 128 + 64 * (rho & 1)
    def c_reg(rho, k):
        a(f's_add_u32 s6, s{sSo}, {coff(rho, k)}')
        vm.issue(f'buffer_load_dwordx4 {ar(stg(rho)+4*k,4)}, {vr(vL16x if k >= 8 else vL16)}, {srd(S_K)}, s6 offen {fl}', ('c', rho))
    a(f's_mul_i32 s{sM0}, s{sW}, {16*CROW}')
    a(f's_lshl_b32 s{sSo}, s{sCh}, 2'); a(f's_add_u32 s{sSo}, s{sSo}, s{sW}'); a(f's_lshl_b32 s{sSo}, s{sSo}, {10 + cw}')
    for k in range(8): c_dma(0, k)
    a('s_waitcnt vmcnt(8)')
    a(f'v_mov_b32 {vr(t2)}, 1'); a('s_mov_b64 exec, 1')
    a(f'buffer_atomic_add {vr(t2)}, off, {srd(S_DBG)}, 0 offset:{C0}')
    a('s_mov_b64 exec, -1')
    for k in range(8, 16): c_dma(0, k)
    for k in range(16): c_dma(1, k)
    for rho in (2, 3):
        for k in range(16): c_reg(rho, k)
    vm.issue(f'buffer_load_dword {vr(vC0)}, off, {srd(S_DBG)}, 0 offset:{C0} sc1', 'c0')
    stamp(1)
    sQ = 14
    a(f's_lshl_b32 s{sQ}, s{sB2}, 15'); a(f's_lshl_b32 s6, s{sW}, 12'); a(f's_add_u32 s{sQ}, s{sQ}, s6'); a(f's_add_u32 s{sQ}, s{sQ}, {QABS}')
    a(f's_add_u32 s{sQ+1}, s{sQ}, 16384')
    def q_loads():
        for nt in range(2):
            for k in range(4):
                a(f'buffer_load_dwordx4 {vr(CF+16*nt+4*k,4)}, {vr(vL16)}, {srd(S_WS)}, s{sQ+nt} offen offset:{1024*k} sc1')
    a(f's_lshl_b32 s6, s{sW}, 4'); a(f'v_add_u32 {vr(t0)}, s6, {vr(vI)}'); a(f'v_mul_u32_u24 {vr(t0)}, {CROW}, {vr(t0)}')
    a(f'v_lshrrev_b32 {vr(t1)}, 3, {vr(vI)}'); a(f'v_lshlrev_b32 {vr(t1)}, 1, {vr(t1)}'); a(f'v_xor_b32 {vr(t1)}, {vr(t1)}, {vr(vG)}')
    a(f'v_lshl_add_u32 {vr(vA)}, {vr(t1)}, 4, {vr(t0)}'); a(f'v_add_u32 {vr(vA+1)}, {CB}, {vr(vA)}')
    a(f'v_lshrrev_b32 {vr(t0)}, 5, {vr(vLane)}'); a(f'v_lshlrev_b32 {vr(t0)}, 3, {vr(t0)}')
    a(f'v_bfe_u32 {vr(t1)}, {vr(vLane)}, 2, 2'); a(f'v_add_u32 {vr(t0)}, {vr(t0)}, {vr(t1)}'); a(f'v_mul_u32_u24 {vr(t0)}, {CROW}, {vr(t0)}')
    a(f'v_lshrrev_b32 {vr(t1)}, 1, {vr(vG)}'); a(f'v_xor_b32 {vr(t1)}, {vr(t1)}, {vr(vG)}')
    a(f'v_and_b32 {vr(t1)}, 1, {vr(t1)}'); a(f'v_lshl_add_u32 {vr(t0)}, {vr(t1)}, 5, {vr(t0)}')
    a(f'v_and_b32 {vr(t1)}, 3, {vr(vLane)}'); a(f'v_lshl_add_u32 {vr(t0)}, {vr(t1)}, 3, {vr(t0)}')
    a(f's_lshl_b32 s6, s{sW}, 8'); a(f'v_add_u32 {vr(vTr)}, s6, {vr(t0)}'); a(f'v_add_u32 {vr(vTr+1)}, {CB}, {vr(vTr)}')
    a(f'v_lshlrev_b32 {vr(vMr)}, 4, {vr(vI)}'); a(f'v_add_u32 {vr(vMr)}, {MX}, {vr(vMr)}')
    a(f's_lshl_b32 s6, s{sW}, 2'); a(f'v_add_u32 {vr(vMw)}, s6, {vr(vMr)}')
    a(f'v_and_b32 {vr(t0)}, 31, {vr(vLane)}'); a(f'v_lshlrev_b32 {vr(vMp)}, 4, {vr(t0)}'); a(f'v_add_u32 {vr(vMp)}, {MX}, {vr(vMp)}')
    a(f'v_lshlrev_b32 {vr(vPr)}, 5, {vr(t0)}'); a(f'v_lshrrev_b32 {vr(t1)}, 5, {vr(vLane)}')
    a(f'v_lshl_add_u32 {vr(vPr)}, {vr(t1)}, 4, {vr(vPr)}'); a(f'v_add_u32 {vr(vPr)}, {PB}, {vr(vPr)}')
    a(f'v_lshlrev_b32 {vr(vPw)}, 5, {vr(vI)}'); a(f'v_lshl_add_u32 {vr(vPw)}, {vr(vG)}, 3, {vr(vPw)}')
    a(f's_lshl_b32 s6, s{sW}, 10'); a(f's_add_u32 s6, s6, {PB}'); a(f'v_add_u32 {vr(vPw)}, s6, {vr(vPw)}')
    a(f'v_mul_u32_u24 {vr(vQ)}, {QROW}, {vr(vI)}'); a(f'v_lshl_add_u32 {vr(vQ)}, {vr(vG)}, 4, {vr(vQ)}'); a(f'v_add_u32 {vr(vQ)}, {SQ}, {vr(vQ)}')
    a(f's_mul_i32 s6, s{sW}, {4*QROW}'); a(f's_add_u32 s6, s6, {SQ}'); a(f'v_add_u32 {vr(vQw)}, s6, {vr(vL16)}')
    a(f'v_add_u32 {vr(vCw)}, s{sM0}, {vr(vL16)}'); a(f'v_add_u32 {vr(vCw+1)}, {CB}, {vr(vCw)}')
    a(f'v_mov_b32 {vr(vC)}, {f2u(SCALE):#x}')
    for r in (mQ, mQ + 1, mP): a(f'v_mov_b32 {vr(r)}, 0xff800000')
    a(f'v_mov_b32 {vr(lQ)}, 0'); a(f'v_mov_b32 {vr(lQ+1)}, 0')
    vm.wait('c0')
    ensure(C0, C0N, vC0)
    stamp(2)
    a(f's_mov_b32 s7, {cfg.spin_max}')
    if cfg.qslow:
        a(f'v_and_b32 {vr(t0)}, 3, {vr(vLane)}'); a(f'v_bfe_u32 {vr(t1)}, {vr(vLane)}, 2, 1'); a(f'v_lshl_add_u32 {vr(t0)}, {vr(t1)}, 4, {vr(t0)}')
        a(f'v_lshlrev_b32 {vr(t0)}, 10, {vr(t0)}')
        a('Q_slow:')
        a(f'buffer_load_dword {vr(tt)}, {vr(t0)}, {srd(S_WS)}, s{sQ} offen offset:768 sc1')
        a('s_waitcnt vmcnt(0)')
        a(f'v_cmp_eq_u32 vcc, -1, {vr(tt)}')
        a('s_cbranch_vccz Q_chk')
        a(f's_sleep {cfg.qslow}')
        a('s_sub_u32 s7, s7, 1'); a('s_cmp_lg_u32 s7, 1'); a('s_cbranch_scc1 Q_slow')
    a('Q_chk:')
    q_loads()
    a('s_waitcnt vmcnt(0)')
    umax_tree(tt, range(CF, CF + 32))
    a(f'v_cmp_eq_u32 vcc, -1, {vr(tt)}')
    a('s_cbranch_vccz Q_ok')
    a(f's_sleep {cfg.qsleep}')
    a('s_sub_u32 s7, s7, 1'); a('s_cmp_lg_u32 s7, 0'); a('s_cbranch_scc1 Q_chk')
    a('Q_ok:')
    stamp(3)
    for nt in range(2):
        if nt: a('s_barrier')
        for k in range(4): a(f'ds_write_b128 {vr(vQw)}, {vr(CF+16*nt+4*k,4)} offset:{QROW*k}')
        a('s_waitcnt lgkmcnt(0)'); a('s_barrier')
        for ks in range(16): a(f'ds_read_b128 {ar(64*nt+4*ks,4)}, {vr(vQ)} offset:{64*ks}')
        a('s_waitcnt lgkmcnt(0)')
    pend = []
    def more(n=1):
        for _ in range(n):
            if pend: c_reg(*pend.pop(0))
    for rho in range(NR):
        par = rho & 1
        for ks in range(16):
            a(f'ds_read_b128 {vr(CF+4*ks,4)}, {vr(vA+par)} offset:{64*ks}')
        for ks in range(16):
            a(f's_waitcnt lgkmcnt({15-ks})')
            for nt in range(2):
                c = '0' if ks == 0 else vr(S + 4 * nt, 4)
                a(f'v_mfma_f32_16x16x32_bf16 {vr(S+4*nt,4)}, {vr(CF+4*ks,4)}, {ar(64*nt+4*ks,4)}, {c}')
            if ks & 1: more()
        assert not pend
        for nt in range(2):
            a(f'v_max_f32 {vr(Mx+nt)}, {vr(S+4*nt)}, {vr(S+4*nt+1)}')
            a(f'v_max3_f32 {vr(Mx+nt)}, {vr(Mx+nt)}, {vr(S+4*nt+2)}, {vr(S+4*nt+3)}')
            allred_rows(Mx + nt, tt, 'v_max_f32')
            a(f'ds_write_b32 {vr(vMw)}, {vr(Mx+nt)} offset:{256*nt}')
        a('s_waitcnt lgkmcnt(0)'); a('s_barrier')
        a(f'ds_read_b128 {vr(MXR,4)}, {vr(vMr)}'); a(f'ds_read_b128 {vr(MXR+4,4)}, {vr(vMr)} offset:256'); a(f'ds_read_b128 {vr(MXR+8,4)}, {vr(vMp)}')
        if 1 <= rho <= NR - 2:
            vm.wait(('c', rho + 1))
            for k in range(16): a(f'ds_write_b128 {vr(vCw+1-par)}, {ar(stg(rho+1)+4*k,4)} offset:{k*CROW}')
            a('s_waitcnt lgkmcnt(15)')
            if rho + 3 < NR: pend = [(rho + 3, k) for k in range(16)]
        else:
            a('s_waitcnt lgkmcnt(0)')
        for i, (m, al) in enumerate(((mQ, aQ), (mQ + 1, aQ + 1), (mP, aP))):
            R = MXR + 4 * i
            a(f'v_max_f32 {vr(R)}, {vr(R)}, {vr(R+1)}'); a(f'v_max3_f32 {vr(R)}, {vr(R)}, {vr(R+2)}, {vr(R+3)}')
            a(f'v_mul_f32 {vr(R)}, {vr(R)}, {vr(vC)}'); a(f'v_max_f32 {vr(R)}, {vr(R)}, {vr(m)}')
            a(f'v_sub_f32 {vr(al)}, {vr(m)}, {vr(R)}'); a(f'v_exp_f32 {vr(al)}, {vr(al)}'); a(f'v_mov_b32 {vr(m)}, {vr(R)}')
        for nt in range(2):
            for r in range(4):
                a(f'v_fma_f32 {vr(S+4*nt+r)}, {vr(S+4*nt+r)}, {vr(vC)}, -{vr(mQ+nt)}')
            for r in range(4): a(f'v_exp_f32 {vr(S+4*nt+r)}, {vr(S+4*nt+r)}')
            a(f'v_mul_f32 {vr(lQ+nt)}, {vr(lQ+nt)}, {vr(aQ+nt)}')
            a(f'v_cvt_pk_bf16_f32 {vr(PK+2*nt)}, {vr(S+4*nt)}, {vr(S+4*nt+1)}'); a(f'v_cvt_pk_bf16_f32 {vr(PK+2*nt+1)}, {vr(S+4*nt+2)}, {vr(S+4*nt+3)}')
            a(f'ds_write_b64 {vr(vPw)}, {vr(PK+2*nt,2)} offset:{512*nt}')
            for r in range(4): a(f'v_add_f32 {vr(lQ+nt)}, {vr(lQ+nt)}, {vr(S+4*nt+r)}')
        if rho > 0:
            for r in range(64): a(f'v_mul_f32 {vr(ACC+r)}, {vr(ACC+r)}, {vr(aP)}')
        a('s_waitcnt lgkmcnt(0)'); a('s_barrier')
        for ks in range(4): a(f'ds_read_b128 {vr(PF+4*ks,4)}, {vr(vPr)} offset:{1024*ks}')
        for ks in range(4):
            for ct in range(4):
                for sec in range(2):
                    a(f'ds_read_b64_tr_b16 {vr(CF+16*ks+4*ct+2*sec,2)}, {vr(vTr+par)} offset:{(16*ks+4*sec)*CROW + 64*ct}')
        for ks in range(4):
            a(f's_waitcnt lgkmcnt({min(15, 8*(3-ks))})')
            for ct in range(4):
                c = '0' if (rho == 0 and ks == 0) else vr(ACC + 16 * ct, 16)
                a(f'v_mfma_f32_32x32x16_bf16 {vr(ACC+16*ct,16)}, {vr(CF+16*ks+4*ct,4)}, {vr(PF+4*ks,4)}, {c}')
                if ct & 1: more()
    stamp(4)
    for nt in range(2):
        allred_rows(lQ + nt, tt, 'v_add_f32')
        a(f'ds_write_b32 {vr(vMw)}, {vr(lQ+nt)} offset:{512+256*nt}')
    TROW = 1040
    a(f'v_and_b32 {vr(t0)}, 31, {vr(vLane)}'); a(f'v_mul_u32_u24 {vr(t0)}, {TROW}, {vr(t0)}')
    a(f'v_lshrrev_b32 {vr(t1)}, 5, {vr(vLane)}'); a(f'v_lshl_add_u32 {vr(t0)}, {vr(t1)}, 3, {vr(t0)}')
    a(f's_lshl_b32 s6, s{sW}, 8'); a(f'v_add_u32 {vr(t0)}, s6, {vr(t0)}')
    for ct in range(4):
        for rq in range(4):
            R = ACC + 16 * ct + 4 * rq; P = CF + 2 * (4 * ct + rq)
            a(f'v_cvt_pk_bf16_f32 {vr(P)}, {vr(R)}, {vr(R+1)}'); a(f'v_cvt_pk_bf16_f32 {vr(P+1)}, {vr(R+2)}, {vr(R+3)}')
            a(f'ds_write_b64 {vr(t0)}, {vr(P,2)} offset:{64*ct+16*rq}')
    flag_init()
    a('s_waitcnt lgkmcnt(0)'); a('s_barrier')
    a(f's_mul_i32 s6, s{sW}, {8*TROW}'); a(f'v_add_u32 {vr(t0)}, s6, {vr(vL16)}')
    for k in range(8): a(f'ds_read_b128 {vr(CF+32+4*k,4)}, {vr(t0)} offset:{k*TROW}')
    a(f'ds_read_b128 {vr(MXR,4)}, {vr(vMp)} offset:512')
    a(f's_lshl_b32 s7, s{sW}, 18'); a(f's_lshl_b32 s6, s{sH}, 10'); a('s_add_u32 s7, s7, s6'); a(f's_add_u32 s7, s7, {PART}')
    for k in range(8):
        a(f's_waitcnt lgkmcnt({8-k})')
        a(f's_add_u32 s6, s7, {k*32768}')
        a(f'buffer_store_dwordx4 {vr(CF+32+4*k,4)}, {vr(vL16)}, {srd(S_WS)}, s6 offen {cfg.pst_flags}')
    a('s_waitcnt lgkmcnt(0)')
    a(f'v_add_f32 {vr(MXR)}, {vr(MXR)}, {vr(MXR+1)}'); a(f'v_add_f32 {vr(MXR+2)}, {vr(MXR+2)}, {vr(MXR+3)}')
    a(f'v_add_f32 {vr(PK+1)}, {vr(MXR)}, {vr(MXR+2)}'); a(f'v_mov_b32 {vr(PK)}, {vr(mP)}')
    a(f'v_lshlrev_b32 {vr(t0)}, 8, {vr(vLane)}')
    a(f's_lshl_b32 s6, s{sH}, 3'); a(f's_add_u32 s6, s6, {PSTAT}')
    a(f'v_min_u32 {vr(PK)}, -2, {vr(PK)}'); a(f'v_min_u32 {vr(PK+1)}, -2, {vr(PK+1)}')
    a('s_waitcnt vmcnt(0)'); a('s_barrier')
    Ls = lab('nops')
    a(f's_cmp_lg_u32 s{sW}, 0'); a(f's_cbranch_scc1 {Ls}')
    a('s_mov_b64 exec, 0xffffffff')
    a(f'buffer_store_dwordx2 {vr(PK,2)}, {vr(t0)}, {srd(S_WS)}, s6 offen sc1')
    a('s_mov_b64 exec, -1')
    a(f'{Ls}:')
    stamp(5)
    gen_final(vLane, vG, t0, t1, vC0, sHalf, sBeta, base)

def gen_final(vLane, vG, t0, t1, vC0, sHalf, sBeta, base):
    a('B_final:')
    V = VAlloc(base)
    Y = V(32, 4); AS = Y; vYo = V(); vOo = V(); E = V()
    sTau, sTb, sSg, sY, sDone, sO = 14, 15, 80, 81, 82, 83
    if cfg.dyn:
        a(f's_cmp_eq_u32 s{sW}, 3'); a('s_cbranch_scc1 H_start')
        a(f's_mov_b32 s{sTau}, s{sBeta}'); a(f's_lshr_b32 s7, s{sW}, 1')
        Ls = lab('w1')
        a(f's_cmp_lg_u32 s{sW}, 1'); a(f's_cbranch_scc1 {Ls}')
        a(f's_and_b32 s7, s{sBeta}, 7')
        if cfg.mon: a('s_cmp_eq_u32 s7, 7'); a('s_cbranch_scc1 H_start')
        a('s_cmp_ge_u32 s7, 2'); a('s_cbranch_scc1 B_end')
        a(f's_lshr_b32 s{sTau}, s{sBeta}, 3'); a(f's_add_u32 s{sTau}, s{sTau}, 64')
        a(f'{Ls}:')
    else:
        a(f's_and_b32 s6, s{sW}, 1'); a('s_lshl_b32 s6, s6, 6'); a(f's_add_u32 s{sTau}, s{sBeta}, s6')
        a(f's_cmp_ge_u32 s{sTau}, 72'); a('s_cbranch_scc1 B_end')
        a(f's_lshr_b32 s7, s{sW}, 1')
    a(f's_mul_i32 s{sTb}, s{sTau}, 57'); a(f's_lshr_b32 s{sTb}, s{sTb}, 10')
    a(f's_mul_i32 s6, s{sTb}, 18'); a(f's_sub_u32 s{sSg}, s{sTau}, s6')
    a(f's_mul_i32 s{sY}, s{sTb}, {64*2304}')
    if cfg.cd: a(f's_lshr_b32 s{sY}, s{sY}, s7')
    a(f's_lshl_b32 s6, s{sSg}, 7'); a(f's_add_u32 s{sY}, s{sY}, s6')
    a(f's_mul_i32 s6, s7, {YB - YA}'); a(f's_add_u32 s{sY}, s{sY}, s6'); a(f's_add_u32 s{sY}, s{sY}, {YA}')
    a(f's_mul_i32 s{sO}, s{sTb}, 2304'); a(f's_lshl_b32 s6, s{sSg}, 6'); a(f's_add_u32 s{sO}, s{sO}, s6')
    a('s_mul_i32 s6, s7, 1152'); a(f's_add_u32 s{sO}, s{sO}, s6')
    a(f'v_lshrrev_b32 {vr(t0)}, 3, {vr(vLane)}'); a(f'v_and_b32 {vr(t1)}, 7, {vr(vLane)}')
    a(f'v_mul_u32_u24 {vr(vYo)}, 2304, {vr(t0)}'); a(f'v_lshl_add_u32 {vr(vYo)}, {vr(t1)}, 4, {vr(vYo)}')
    a(f'v_bfe_u32 {vr(t0)}, {vr(vLane)}, 2, 1'); a(f'v_lshl_add_u32 {vr(t0)}, {vr(t0)}, 2, {vr(vG)}')
    a(f'v_and_b32 {vr(t1)}, 3, {vr(vLane)}'); a(f'v_lshl_add_u32 {vr(t0)}, {vr(t0)}, 2, {vr(t1)}'); a(f'v_lshlrev_b32 {vr(vOo)}, 1, {vr(t0)}')
    stamp(9)
    if cfg.cd:
        a(f's_mul_i32 s{sDone}, s7, 0xf0')
        for k in range(16, 32): a(f'v_mov_b32 {vr(Y+k)}, 0')
    else: a(f's_mov_b32 s{sDone}, 0')
    a(f's_mov_b32 s7, {cfg.spin_max}')
    if cfg.slow:
        a(f'v_lshrrev_b32 {vr(t0)}, 3, {vr(vLane)}'); a(f'v_mul_u32_u24 {vr(t0)}, 9216, {vr(t0)}')
        a('R_slow:')
        a(f'buffer_load_dword {vr(E)}, {vr(t0)}, {srd(S_WS)}, s{sY} offen {cfg.r_flags}')
        a('s_waitcnt vmcnt(0)')
        a(f'v_cmp_ne_u32 vcc, -1, {vr(E)}')
        a('s_cbranch_vccnz R_pass')
        a(f's_sleep {cfg.slow}')
        a('s_sub_u32 s7, s7, 1'); a('s_cmp_lg_u32 s7, 1'); a('s_cbranch_scc1 R_slow')
    a('R_pass:')
    for t in range(8):
        Ls = lab('ld')
        a(f's_bitcmp1_b32 s{sDone}, {t}'); a(f's_cbranch_scc1 {Ls}')
        a(f's_add_u32 s6, s{sY}, {t*8*2304}')
        a(f'buffer_load_dwordx4 {vr(Y+4*t,4)}, {vr(vYo)}, {srd(S_WS)}, s6 offen {cfg.r_flags}')
        a(f'{Ls}:')
    a('s_waitcnt vmcnt(0)')
    for t in range(8):
        Ls = lab('ck'); y = Y + 4 * t
        a(f's_bitcmp1_b32 s{sDone}, {t}'); a(f's_cbranch_scc1 {Ls}')
        a(f'v_max3_u32 {vr(E)}, {vr(y)}, {vr(y+1)}, {vr(y+2)}'); a(f'v_max_u32 {vr(E)}, {vr(E)}, {vr(y+3)}')
        a(f'v_cmp_eq_u32 vcc, -1, {vr(E)}')
        a(f's_cbranch_vccnz {Ls}')
        a(f's_bitset1_b32 s{sDone}, {t}')
        a(f'{Ls}:')
    a(f's_cmp_eq_u32 s{sDone}, 255'); a('s_cbranch_scc1 R_done')
    if cfg.rsleep: a(f's_sleep {cfg.rsleep}')
    a('s_sub_u32 s7, s7, 1'); a('s_cmp_lg_u32 s7, 0'); a('s_cbranch_scc1 R_pass')
    a('R_done:')
    stamp(10)
    for st in (16, 8, 4):
        for k in range(0, st, 2): a(f'v_pk_add_f32 {vr(Y+k,2)}, {vr(Y+k,2)}, {vr(Y+k+st,2)}')
    a(f'v_permlane32_swap_b32 {vr(AS)}, {vr(AS+2)}'); a(f'v_permlane32_swap_b32 {vr(AS+1)}, {vr(AS+3)}')
    a(f'v_add_f32 {vr(AS)}, {vr(AS)}, {vr(AS+2)}'); a(f'v_add_f32 {vr(AS+1)}, {vr(AS+1)}, {vr(AS+3)}')
    a(f'v_permlane16_swap_b32 {vr(AS)}, {vr(AS+1)}')
    a(f'v_add_f32 {vr(AS)}, {vr(AS)}, {vr(AS+1)}')
    a(f'v_add_f32_dpp {vr(AS)}, {vr(AS)}, {vr(AS)} row_ror:8 {DPPF}')
    a(f'v_cvt_pk_bf16_f32 {vr(AS)}, {vr(AS)}, {vr(AS)}')
    a('s_mov_b32 exec_lo, 0x00ff00ff'); a('s_mov_b32 exec_hi, 0x00ff00ff')
    a(f'buffer_store_short {vr(AS)}, {vr(vOo)}, {srd(S_OUT)}, s{sO} offen {cfg.out_flags}')
    a('s_mov_b64 exec, -1')
    if cfg.dyn:
        a(f's_cmp_lg_u32 s{sW}, 0'); a('s_cbranch_scc1 B_fin')
        a(f'ds_write_b32 {vr(vC0)}, {vr(vC0)}'); a('s_waitcnt lgkmcnt(0)')
        a('B_fin:')
    stamp(11)
    a('B_end:')
    stamp_flush(t0, 'B')
    a('s_endpgm')
    if cfg.dyn: gen_helper(vLane, sHalf, sBeta, base, vC0)

def gen_helper(vLane, sHalf, sBeta, base, vFl):
    V = VAlloc(base)
    PG = V(4, 4); vA = V(); vB = V(); vO = V(); vP = V(); S = V(); t = V(); dm = V(2)
    pf, p, d, sS, sJ, sD, sN = 16, 20, 24, 28, 29, 30, 31
    BIG = 0x2000000
    a('H_start:')
    if cfg.xh:
        a(f's_bitcmp1_b32 s{sH}, 2'); a('s_cbranch_scc1 B_end')
        a(f's_add_u32 s{sH}, s{sH}, {cfg.xd}'); a(f's_and_b32 s{sH}, s{sH}, 31')
    a(f's_lshl_b32 s6, s{sHalf}, 6'); a(f's_add_u32 s6, s6, s{sH}'); a('s_lshl_b32 s6, s6, 20')
    mk_srd(S_V, P_V, 's6', BIG + 0x100000)
    a(f'v_lshlrev_b32 {vr(vA)}, 7, {vr(vLane)}'); a(f'v_and_b32 {vr(vB)}, 4095, {vr(vA)}'); a(f'v_add_u32 {vr(vA)}, 4096, {vr(vA)}')
    a(f'v_lshrrev_b32 {vr(t)}, 5, {vr(vLane)}'); a(f'v_mul_u32_u24 {vr(t)}, 20480, {vr(t)}'); a(f'v_add_u32 {vr(vB)}, {vr(vB)}, {vr(t)}')
    if cfg.hloc:
        a(f's_and_b32 s6, s{sBeta}, 56'); a(f'v_and_b32 {vr(vP)}, 7, {vr(vLane)}'); a(f'v_add_u32 {vr(vP)}, s6, {vr(vP)}')
        a(f'v_mul_u32_u24 {vr(vP)}, {cfg.psp}, {vr(vP)}')
    else: a(f'v_mul_u32_u24 {vr(vP)}, {cfg.psp}, {vr(vLane)}')
    a(f'v_add_u32 {vr(vP)}, {PROG}, {vr(vP)}')
    for j in range(3): a(f's_mov_b32 s{pf+j}, 43')
    a(f's_mov_b32 s{sN}, {cfg.spin_max}')
    if cfg.dyn == 2: a('s_branch H_end')
    if cfg.mon: a(f's_cmp_eq_u32 s{sW}, 1'); a('s_cbranch_scc1 M_start')
    NP = 4 if cfg.mon else 3
    def psum():
        for j in range(3): a(f'v_med3_i32 {vr(PG+j)}, {vr(PG+j)}, -1, {28 + cfg.hoff}')
        a(f'v_add3_u32 {vr(S)}, {vr(PG)}, {vr(PG+1)}, {vr(PG+2)}')
        for sh in (4, 2, 1): a(f'v_add_u32_dpp {vr(S)}, {vr(S)}, {vr(S)} row_ror:{sh} {DPPF}')
        a(f'v_lshlrev_b32 {vr(S)}, 3, {vr(S)}')
        a(f'v_readfirstlane_b32 s{sS}, {vr(S)}')
    a(f'buffer_load_dwordx{NP} {vr(PG,NP)}, {vr(vP)}, {srd(S_WS)}, 0 offen {cfg.pl_flags}')
    a('s_waitcnt vmcnt(0)')
    a('H_loop:')
    psum()
    for j in range(3): a(f'v_readlane_b32 s{p+j}, {vr(PG+j)}, s{sBeta}')
    if cfg.mon: a(f'v_readlane_b32 s6, {vr(PG+3)}, 7'); a(f's_add_i32 s{sS}, s{sS}, s6')
    a(f'buffer_load_dwordx{NP} {vr(PG,NP)}, {vr(vP)}, {srd(S_WS)}, 0 offen {cfg.pl_flags}')
    NEG = -(1 << 20)
    for j in range(3):
        a(f's_mul_i32 s6, s{p+j}, 192'); a(f's_sub_i32 s{d+j}, s{sS}, s6')
        a(f's_mul_i32 s6, s{pf+j}, {cfg.hK}'); a(f's_add_i32 s{d+j}, s{d+j}, s6')
        a(f's_add_i32 s6, s{pf+j}, {cfg.hoff - 16 - cfg.hmar}'); a(f's_cmp_ge_i32 s6, s{p+j}')
        a(f's_cselect_b32 s{d+j}, s{d+j}, {NEG}')
    if cfg.xh:
        for j in range(3):
            a(f's_lshl_b32 s{d+j}, s{pf+j}, 12'); a(f's_cmp_gt_i32 s{pf+j}, {43 - cfg.xh}'); a(f's_cselect_b32 s{d+j}, s{d+j}, {NEG}')
    a(f's_cmp_ge_i32 s{d}, s{d+1}'); a(f's_cselect_b32 s{sJ}, 0, 1'); a(f's_max_i32 s{sD}, s{d}, s{d+1}')
    a(f's_cmp_ge_i32 s{sD}, s{d+2}'); a(f's_cselect_b32 s{sJ}, s{sJ}, 2'); a(f's_max_i32 s{sD}, s{sD}, s{d+2}')
    a(f's_cmp_eq_i32 s{sD}, {NEG}'); a('s_cbranch_scc1 H_end')
    a(f's_sub_u32 s{sN}, s{sN}, 1'); a(f's_cmp_eq_u32 s{sN}, 0'); a('s_cbranch_scc1 H_end')
    a(f's_cmp_lt_i32 s{sD}, {43 * cfg.hK + cfg.hth}'); a('s_cbranch_scc1 H_idle')
    for j in range(3):
        a(f's_cmp_eq_u32 s{sJ}, {j}'); a(f's_cselect_b32 s6, s{pf+j}, s6'); a(f's_subb_u32 s{pf+j}, s{pf+j}, 0')
    a('s_mul_i32 s6, s6, 24576'); a('s_sub_u32 s6, s6, 32768')
    a(f's_cmp_eq_u32 s{sJ}, 2'); a(f's_cselect_b32 s7, {BIG}, 0'); a('s_add_u32 s6, s6, s7')
    a(f's_cmp_eq_u32 s{sJ}, 1'); a('s_cselect_b64 vcc, -1, 0'); a('s_cselect_b32 s7, 25, 13'); a('s_lshl_b32 s7, 1, s7'); a('s_add_u32 s7, s7, s6')
    a(f'v_cndmask_b32 {vr(vO)}, {vr(vA)}, {vr(vB)}, vcc')
    a(f'buffer_load_dword {vr(dm)}, {vr(vO)}, {srd(S_V)}, s6 offen {cfg.h_flags}')
    a(f'buffer_load_dword {vr(dm+1)}, {vr(vO)}, {srd(S_V)}, s7 offen {cfg.h_flags}')
    a('s_waitcnt vmcnt(2)')
    a('s_branch H_loop')
    a('H_idle:')
    a(f'ds_read_b32 {vr(t)}, {vr(vFl)}')
    a('s_waitcnt vmcnt(0) lgkmcnt(0)'); a(f's_sleep {cfg.hsleep}')
    a(f'v_cmp_eq_u32 vcc, 0, {vr(t)}')
    a('s_cbranch_vccnz H_loop')
    a('H_end:')
    if cfg.stamps:
        a(f's_add_u32 s98, s{pf}, s{pf+1}'); a(f's_add_u32 s98, s98, s{pf+2}'); a('s_sub_u32 s98, 129, s98')
    stamp(8)
    a('s_branch B_end')
    if cfg.mon:
        GL = PROG + 0x8000; sX, sG, sDl, sO, sL = 16, 17, 18, 19, 20
        a('M_start:')
        a(f'v_and_b32 {vr(vA)}, 7, {vr(vLane)}'); a(f'v_lshlrev_b32 {vr(vA)}, 7, {vr(vA)}'); a(f'v_add_u32 {vr(vA)}, {GL}, {vr(vA)}')
        a(f's_lshr_b32 s{sX}, s{sBeta}, 3'); a(f's_lshl_b32 s{sG}, s{sX}, 7'); a(f's_add_u32 s{sG}, s{sG}, {GL}')
        a(f's_mul_i32 s{sL}, s{sBeta}, {cfg.psp}'); a(f's_add_u32 s{sL}, s{sL}, {PROG + 12}')
        a(f's_mov_b32 s{sDl}, 0')
        a('M_loop:')
        a(f'buffer_load_dwordx3 {vr(PG,3)}, {vr(vP)}, {srd(S_WS)}, 0 offen {cfg.pl_flags}')
        a(f'buffer_load_dword {vr(vB)}, {vr(vA)}, {srd(S_WS)}, 0 offen sc1')
        a(f'ds_read_b32 {vr(t)}, {vr(vFl)}')
        a('s_waitcnt vmcnt(1)')
        psum()
        a('s_mov_b64 exec, 1')
        a(f'buffer_store_dword {vr(S)}, off, {srd(S_WS)}, s{sG} sc1')
        a('s_mov_b64 exec, -1')
        a('s_waitcnt vmcnt(1) lgkmcnt(0)')
        a(f'v_readlane_b32 s{sO}, {vr(vB)}, s{sX}')
        a(f'v_cmp_eq_u32 vcc, -1, {vr(vB)}')
        a(f's_cmp_eq_u32 s{sO}, -1'); a('s_cbranch_scc1 M_next')
        a(f'v_subrev_u32 {vr(vB)}, s{sO}, {vr(vB)}')
        a(f'v_cndmask_b32 {vr(vB)}, {vr(vB)}, 0, vcc')
        for sh in (4, 2, 1): a(f'v_add_u32_dpp {vr(vB)}, {vr(vB)}, {vr(vB)} row_ror:{sh} {DPPF}')
        a(f'v_readfirstlane_b32 s6, {vr(vB)}')
        a(f's_mul_i32 s6, s6, {cfg.mg}'); a('s_ashr_i32 s6, s6, 5')
        a(f's_sub_i32 s6, s6, s{sDl}'); a(f's_ashr_i32 s6, s6, {cfg.mf}'); a(f's_add_i32 s{sDl}, s{sDl}, s6')
        a(f'v_mov_b32 {vr(vO)}, s{sDl}')
        a('s_mov_b64 exec, 1')
        a(f'buffer_store_dword {vr(vO)}, off, {srd(S_WS)}, s{sL}')
        a('s_mov_b64 exec, -1')
        a('M_next:')
        if cfg.msleep: a(f's_sleep {cfg.msleep}')
        a(f's_cmp_ge_i32 s{sS}, {192 * (28 + cfg.hoff)}'); a('s_cbranch_scc1 M_end')
        a(f's_sub_u32 s{sN}, s{sN}, 1'); a(f's_cmp_eq_u32 s{sN}, 0'); a('s_cbranch_scc1 M_end')
        a(f'v_cmp_eq_u32 vcc, 0, {vr(t)}')
        a('s_cbranch_vccnz M_loop')
        a('M_end:')
        if cfg.stamps: a(f's_sub_u32 s98, {cfg.spin_max}, s{sN}')
        a('s_branch B_end')

def gen():
    hdr = open('/code/' + NAME + '.s.ref').read().split('; Override')[0]
    a(f'{NAME}_kernel:')
    a('s_cmp_ge_u32 s2, 256'); a('s_cbranch_scc1 L_exit')
    a('s_load_dwordx16 s[16:31], s[0:1], 0'); a('s_load_dwordx8 s[32:39], s[0:1], 64'); a('s_load_dwordx4 s[40:43], s[0:1], 96')
    a('v_lshrrev_b32 v1, 6, v0'); a(f'v_readfirstlane_b32 s{sW}, v1')
    if cfg.hmap == 0:
        a('s_and_b32 s6, s2, 7'); a('s_bfe_u32 s7, s2, 0x20003'); a(f's_lshl_b32 s{sH}, s6, 2'); a(f's_add_u32 s{sH}, s{sH}, s7')
    else:
        a(f's_and_b32 s{sH}, s2, 31')
    a(f's_lshr_b32 s{sR}, s2, 5')
    if cfg.stamps:
        a('s_waitcnt lgkmcnt(0)')
        for k in range(16): a(f's_mov_b32 s{84+k}, 0')
        stamp(0)
        a('s_getreg_b32 s96, hwreg(HW_REG_HW_ID)'); a('s_getreg_b32 s97, hwreg(HW_REG_XCC_ID)')
    a(f's_cmp_lt_u32 s{sR}, 2'); a('s_cbranch_scc1 B_role')
    gen_A()
    a('L_exit:'); a('s_endpgm')
    gen_CD() if cfg.cd else gen_B()
    body = a.finish()
    out = hdr + f'; @launch grid=(256,1,1) block=(256,1,1) lds={LDS_TOTAL}\n'
    out += '; generated by gen/gen.py (hand-written generator)\n'
    out += f'.amdgcn_target "amdgcn-amd-amdhsa--gfx950"\n.text\n.globl {NAME}_kernel\n.p2align 8\n.type {NAME}_kernel,@function\n'
    out += body
    out += f'''.section .rodata,"a"
.p2align 6
.amdhsa_kernel {NAME}_kernel
  .amdhsa_next_free_vgpr 512
  .amdhsa_next_free_sgpr 102
  .amdhsa_accum_offset 256
  .amdhsa_group_segment_fixed_size 0
  .amdhsa_kernarg_size 112
  .amdhsa_user_sgpr_count 2
  .amdhsa_user_sgpr_kernarg_segment_ptr 1
  .amdhsa_system_sgpr_workgroup_id_x 1
.end_amdhsa_kernel
'''
    return out

if __name__ == '__main__':
    outp = sys.argv[1]
    for kv in sys.argv[2:]:
        k, v = kv.split('=', 1); v = v.replace('+', ' ')
        cur = getattr(cfg, k)
        setattr(cfg, k, (v == '1') if isinstance(cur, bool) else type(cur)(v))
    open(outp, 'w').write(gen())
```

```python
import sys, math, struct
from asmlib import Asm, VM
NAME = 'concat_heads__mha_block_cached__compressed_kv_cla__decode'

class Cfg:
    stamps = False
    R = 8
    wq_flags = ''
    wo_flags = ''
    b_flags = 'nt'
    dma_t0 = 0
    dma_per = 4
    ev_trip = 16
    hmap = 0
    trips = False
    diag = ''
    rsleep = 0
    wq_per = 3
    spin_max = 400000
    noB = False
    bskip = 0
    askip = 0
    bstop = 0
    psleep = 16
    qsleep = 16
    nodma = False
    kv_flags = 'nt'
    warm = 0
    wqpf = 2
    dyn = 1
    hloc = 1
    dup = 0
    pl_flags = 'sc1'
    ps_flags = ''
    r_flags = 'sc1'
    psp = 16
    pper = 1
    hK = 24
    hth = 384
    hmar = 2
    hsleep = 4
    hoff = 3
    thr = 0
    mth = 96
    tm0 = 20
    tm1 = 42
    tforce = 0
    cthr = 3
    y16 = 1
    pdel = 0
    t16 = 0
    pl2 = 'sc1'
    dsk2 = 0
    cell = 0
    mth2 = 100000
    lv2 = 2
    msh = 0
    gl_flags = 'sc1'
    gls = 1280
    astr = 64
    pstt = 0
    pth = 0
    vth = 0
    vth0 = 16
    vth1 = 99
    kper = 2
    fd = 8
    vper = 1
    pxs = 4352
    tf_flags = 'sc1'
    tfw = 0
    cdbg = 0
    mrate = 4
    ctl = 0
    thrk = 14
    toff = 1
    mal = 0
    hlo = 0
    cuv = 8
    cdn = 2
    tstat = 0
    part = 0x200
    ya = 0x400
    yb = 0x500
    qa = 0
    psx = 2
    hforce = 0
    hfa = 400
    dskip = 0
    dthr = 4
    mref = 8
    mmin = 0
    tdist = 3
    tper = 1
    nch = 8
    dloop = 0
    qslow = 8
    dpf = 0
    cd = 1
    slow = 8
    cw2 = 2
    cpre = 0
    dhold = 0
    pf_flags = ''
    qfull = 1
    pshare = 1
    c0_trip = 8
    ytouch = 0
    xh = 0
    xd = 4
    h_flags = ''
    mon = 0
    mf = 1
    mg = 4
    msleep = 0
    emu = 0
    bwq_flags = 'nt'
    pst_flags = 'sc1'
    pld_flags = 'sc1'
    clr_flags = 'sc1'
    yb_flags = 'sc1'
    dmask = 0
    dmul = 1
    out_flags = ''
    stag = '8,20,32'
    wopf_at = 4
    dgrp = 3
    dstep = 1
    vck = 0
    vcv = 0
    vsw = 16
    vcp = 63
    cwin = 2
    help = 0
    hsh = 4
    ev_per = 4
    wmix = 0
    st_per = 4
    kfirst = 0
    dma_mode = 0
    npv = 7
    st_m = 36
    ev2_m = 41
    dend = 4
    dm0 = 36
    dsl = 1
    xper = 4
    ev_slot = 12
    vhold = 0
cfg = Cfg()

QABS = 0x000000; PSTAT = 0x040000; AST = 0x050000; PROG = 0x060000; PART = 0x100000; YA = 0x400000; YB = 0x500000
WS_USED = 0x1000000
STAMP = 0x10000000
SA, SB, SQ = 18432, 9216, 4096
C0 = 0; C0N = 128; TFO = 0x10400
OOB = 0x7ff00000
LDS_TOTAL = 163840
SCALE = (128 ** -0.5) * math.log2(math.e)
def f2u(x): return struct.unpack('<I', struct.pack('<f', x))[0]

P_AX, P_K, P_V, P_WQ, P_WO, P_BX, P_CKV, P_BWQ, P_WUK, P_WUV, P_BWO, P_OUT, P_DBG, P_WS = 16, 18, 20, 22, 24, 26, 28, 30, 32, 34, 36, 38, 40, 42
S_X, S_W, S_K, S_V, S_WO, S_WS, S_DBG, S_OUT, S_U = 44, 48, 52, 56, 60, 64, 68, 72, 76
sW, sH, sR = 3, 4, 5
def srd(n): return f's[{n}:{n+3}]'
def vr(n, k=1): return f'v{n}' if k == 1 else f'v[{n}:{n+k-1}]'
def ar(n, k=1): return f'a{n}' if k == 1 else f'a[{n}:{n+k-1}]'

class VAlloc:
    def __init__(self, start=1): self.n = start
    def __call__(self, k=1, align=1):
        align = max(align, 2 if k > 1 else 1)
        self.n = (self.n + align - 1) // align * align
        r = self.n; self.n += k
        assert self.n <= 256, 'out of vgprs'
        return r

a = Asm()
nstamp = [0]
def stamp(k):
    if cfg.stamps:
        a(f's_memrealtime s[100:101]'); a('s_waitcnt lgkmcnt(0)'); a(f's_mov_b32 s{84+k}, s100')
def stamp_flush(vt, role=''):
    if cfg.diag:
        k = int(cfg.diag[1:]) if cfg.diag[0] == role else 0
        L = lab('diag')
        a(f's_cmp_eq_u32 s{84+k}, 0'); a(f's_cselect_b32 s6, s84, s{84+k}'); a('s_add_u32 s6, s6, 10000')
        a(f'{L}:'); a('s_sleep 4'); a('s_memrealtime s[100:101]'); a('s_waitcnt lgkmcnt(0)')
        a('s_sub_u32 s7, s100, s6'); a('s_cmp_lt_i32 s7, 0'); a(f's_cbranch_scc1 {L}')
        return
    if cfg.stamps:
        a(f's_lshl_b32 s6, s2, 2'); a(f's_add_u32 s6, s6, s{sW}'); a('s_lshl_b32 s6, s6, 6'); a(f's_add_u32 s6, s6, {STAMP}')
        a(f's_mov_b32 s{S_WS+2}, 0x20000000')
        a(f'v_mov_b32 {vr(vt+1)}, 0')
        a('s_mov_b64 exec, 1')
        for k in range(16):
            a(f'v_mov_b32 {vr(vt)}, s{84+k}')
            a(f'buffer_store_dword {vr(vt)}, {vr(vt+1)}, {srd(S_WS)}, s6 offen offset:{4*k}')
            a('s_nop 1')
        a('s_mov_b64 exec, -1')

def mk_srd(d, p, off, size):
    if off is None:
        a(f's_mov_b32 s{d}, s{p}'); a(f's_mov_b32 s{d+1}, s{p+1}')
    else:
        a(f's_add_u32 s{d}, s{p}, {off}'); a(f's_addc_u32 s{d+1}, s{p+1}, 0')
    a(f's_mov_b32 s{d+2}, {size}'); a(f's_mov_b32 s{d+3}, 0x20000')

uid = [0]
def lab(p):
    uid[0] += 1
    return f'L_{p}_{uid[0]}'

def poll(coff, target, vt):
    L, D = lab('poll'), lab('polld')
    a(f's_cmp_lg_u32 s{sW}, 0'); a(f's_cbranch_scc1 {D}')
    a(f's_mov_b32 s7, {cfg.spin_max}')
    a(f'{L}:')
    a(f'buffer_load_dword {vr(vt)}, off, {srd(S_DBG)}, 0 offset:{coff} sc1')
    a('s_waitcnt vmcnt(0)')
    a(f'v_readfirstlane_b32 s6, {vr(vt)}')
    a(f's_cmp_ge_u32 s6, {target}'); a(f's_cbranch_scc1 {D}')
    a(f's_sleep {cfg.psleep}')
    a('s_sub_u32 s7, s7, 1'); a('s_cmp_lg_u32 s7, 0'); a(f's_cbranch_scc1 {L}')
    a(f'{D}:')
    a('s_barrier')

def ensure(coff, target, vt):
    L, D = lab('ens'), lab('ensd')
    a(f's_mov_b32 s7, {cfg.spin_max}')
    a(f'{L}:')
    a(f'v_readfirstlane_b32 s6, {vr(vt)}')
    a(f's_cmp_ge_u32 s6, {target}'); a(f's_cbranch_scc1 {D}')
    a(f's_sleep {cfg.psleep}')
    a(f'buffer_load_dword {vr(vt)}, off, {srd(S_DBG)}, 0 offset:{coff} sc1')
    a('s_waitcnt vmcnt(0)')
    a('s_sub_u32 s7, s7, 1'); a('s_cmp_lg_u32 s7, 0'); a(f's_cbranch_scc1 {L}')
    a(f'{D}:')

def umax_tree(dst, regs):
    regs = list(regs)
    a(f'v_max3_u32 {vr(dst)}, {vr(regs[0])}, {vr(regs[1])}, {vr(regs[2])}'); regs = regs[3:]
    while len(regs) >= 2:
        a(f'v_max3_u32 {vr(dst)}, {vr(dst)}, {vr(regs[0])}, {vr(regs[1])}'); regs = regs[2:]
    if regs: a(f'v_max_u32 {vr(dst)}, {vr(dst)}, {vr(regs[0])}')

def signal(coff, vt):
    D = lab('sig')
    a('s_waitcnt vmcnt(0) lgkmcnt(0)'); a('s_barrier')
    a(f's_cmp_lg_u32 s{sW}, 0'); a(f's_cbranch_scc1 {D}')
    a(f'v_mov_b32 {vr(vt)}, 1'); a('s_mov_b64 exec, 1')
    a(f'buffer_atomic_add {vr(vt)}, off, {srd(S_DBG)}, 0 offset:{coff}')
    a('s_mov_b64 exec, -1')
    a(f'{D}:')

def allred_rows(x, t, op):
    for sw in ('v_permlane16_swap_b32', 'v_permlane32_swap_b32'):
        a(f'v_mov_b32 {vr(t)}, {vr(x)}')
        a(f'{sw} {vr(x)}, {vr(t)}')
        a(f'{op} {vr(x)}, {vr(x)}, {vr(t)}')

DPPF = 'row_mask:0xf bank_mask:0xf'
def reduce4(T, X, S):
    a(f'v_add_f32_dpp {vr(X)}, {vr(T)}, {vr(T)} row_ror:8 row_mask:0xf bank_mask:0x3')
    a(f'v_add_f32_dpp {vr(X+1)}, {vr(T+1)}, {vr(T+1)} row_ror:8 row_mask:0xf bank_mask:0x3')
    a(f'v_add_f32_dpp {vr(X)}, {vr(T+2)}, {vr(T+2)} row_ror:8 row_mask:0xf bank_mask:0xc')
    a(f'v_add_f32_dpp {vr(X+1)}, {vr(T+3)}, {vr(T+3)} row_ror:8 row_mask:0xf bank_mask:0xc')
    a(f'v_add_f32_dpp {vr(S)}, {vr(X)}, {vr(X)} row_half_mirror row_mask:0xf bank_mask:0x5')
    a(f'v_add_f32_dpp {vr(S)}, {vr(X+1)}, {vr(X+1)} row_half_mirror row_mask:0xf bank_mask:0xa')
    a(f'v_add_f32_dpp {vr(S)}, {vr(S)}, {vr(S)} quad_perm:[1,0,3,2] {DPPF}')
    a(f'v_add_f32_dpp {vr(S)}, {vr(S)}, {vr(S)} quad_perm:[2,3,0,1] {DPPF}')

def mk_masks(vLane, MASK, SEL, t0, t1):
    a(f'v_and_b32 {vr(t0)}, 1, {vr(vLane)}'); a(f'v_lshlrev_b32 {vr(t0)}, 4, {vr(t0)}')
    a(f'v_mov_b32 {vr(t1)}, 0xffff'); a(f'v_lshlrev_b32 {vr(t0)}, {vr(t0)}, {vr(t1)}')
    a(f'v_bfe_u32 {vr(t1)}, {vr(vLane)}, 1, 2')
    for r in range(4):
        a(f'v_cmp_eq_u32 vcc, {r}, {vr(t1)}')
        a(f'v_cndmask_b32 {vr(MASK+r)}, 0, {vr(t0)}, vcc')
    a(f'v_mov_b32 {vr(t0)}, 0x0c0c0c0c')
    a('s_mov_b32 s6, 0x01000100'); a('s_mov_b32 s7, 0x03020302')
    for par in range(2):
        for r in range(4):
            a(f'v_bfi_b32 {vr(SEL+4*par+r)}, {vr(MASK+r)}, s{6+par}, {vr(t0)}')

def warm_code(l0, l1, vLane, t0, t1, n=2):
    L = lab('pc')
    a('s_getpc_b64 s[98:99]'); a(f'{L}:')
    for k in range(n):
        a(f'v_lshlrev_b32 {vr(t0)}, 7, v0')
        if k: a(f'v_add_u32 {vr(t0)}, {32768*k}, {vr(t0)}')
        a(f'v_min_u32 {vr(t0)}, {l1}-{L}, {vr(t0)}')
        a(f'global_load_dword {ar(255-k)}, {vr(t0)}, s[98:99]')

AW = 96

def x_loads(vm, X, vXoff, extra):
    for k in range(4):
        vm.issue(f'buffer_load_dwordx4 {vr(X+4*k,4)}, {vr(vXoff)}, {srd(S_X)}, 0 offen offset:{extra+16*k}', 'x')
    vm.issue(f'buffer_load_dwordx2 {vr(X+16,2)}, {vr(vXoff)}, {srd(S_X)}, 0 offen offset:{extra+64}', 'x')

def wunit_load(vm, jj, vWoff, flags):
    a(f's_mov_b32 s6, {jj*8192}')
    vm.issue(f'buffer_load_dwordx4 {ar(AW+4*jj,4)}, {vr(vWoff)}, {srd(S_W)}, s6 offen {flags}', ('w', jj))

def wunit_mfma(jj, Xs, ACCs, SEL, PA, W=None):
    for s, (X, ACC) in enumerate(zip(Xs, ACCs)):
        P = PA + 4 * ((jj * len(Xs) + s) & 3)
        for r in range(4):
            a(f'v_perm_b32 {vr(P+r)}, {vr(X+jj//2)}, {vr(X+jj//2)}, {vr(SEL+4*(jj&1)+r)}')
        c = '0' if jj == 0 else vr(ACC, 4)
        a(f'v_mfma_f32_16x16x32_bf16 {vr(ACC,4)}, {vr(P,4)}, {ar(AW+4*jj,4) if W is None else vr(W+4*jj,4)}, {c}')

def wo_frag_list(nks, vT):
    out = []
    for t in range(9):
        for ks in range(nks):
            for sec in range(2):
                reg = vT + (1 if t == 8 else 0) + (2 if ks >= 2 else 0)
                off = (32 * (ks & 1) + 4 * sec) * 1152 + (0 if t == 8 else 128 * (t >> 2) + 8 * (t & 3))
                out.append(f'ds_read_b64_tr_b16 {ar(AW+4*(t*nks+ks)+2*sec,2)}, {vr(reg)} offset:{off}')
    return out
def wo_frag_reads(nks, vT):
    for t in wo_frag_list(nks, vT): a(t)

def mk_wo_tr_addr(vLane, vT, t0, t1, two):
    a(f'v_lshrrev_b32 {vr(t0)}, 4, {vr(vLane)}'); a(f'v_lshlrev_b32 {vr(t0)}, 3, {vr(t0)}')
    a(f'v_bfe_u32 {vr(t1)}, {vr(vLane)}, 2, 2'); a(f'v_add_u32 {vr(t0)}, {vr(t0)}, {vr(t1)}')
    a(f'v_mul_u32_u24 {vr(t0)}, 1152, {vr(t0)}')
    a(f's_mul_i32 s6, s{sW}, 288'); a(f'v_add_u32 {vr(t0)}, s6, {vr(t0)}')
    a(f'v_and_b32 {vr(t1)}, 3, {vr(vLane)}')
    a(f'v_lshl_add_u32 {vr(vT)}, {vr(t1)}, 5, {vr(t0)}')
    a(f'v_lshl_add_u32 {vr(vT+1)}, {vr(t1)}, 3, {vr(t0)}'); a(f'v_add_u32 {vr(vT+1)}, 256, {vr(vT+1)}')
    if two:
        a(f'v_add_u32 {vr(vT+2)}, 73728, {vr(vT)}'); a(f'v_add_u32 {vr(vT+3)}, 73728, {vr(vT+1)}')

def gen_A():
    R = cfg.R; NT = 11; RT = R // 4
    assert R % 4 == 0
    V = VAlloc(1)
    vLane = V(); vL16 = V(); vWoff = V(); vXoff = V(); t0 = V(); t1 = V(); vC = V()
    MASK = V(4); SEL = V(8); ACC = V(4, 4); Q = V(4); T = V(4); XX = V(2); S = V(); M = V(); M2 = V(); fN = V()
    X = V(20, 4); PA = V(16, 4); D = X
    P = V(NT); vT = V(4); vY = V(); vY8 = V(); vOw = V(); vOr = V(); vC0 = V(); G = V(8); F = V(4); O = V(6, 2); vTS = V(); vPg = V(); vPo = V()
    KR = V(16 * R, 4)
    QRED = 147456; OT = QRED + 4096
    sJJ, sPair, sB, sRank, sOff, sReal, sBeg, sD, sDn, sTrip, sSt, sBsel = 8, 9, 10, 11, 12, 13, 14, 15, 80, 81, 82, 83
    sMk = 72
    sVo = 34
    STEP = 6 * 4096
    a('A_role:')
    a(f's_sub_u32 s{sJJ}, s{sR}, 2')
    a(f's_cmp_ge_u32 s{sJJ}, 3'); a(f's_cselect_b32 s{sPair}, 1, 0'); a(f's_cselect_b32 s6, 3, 0')
    a(f's_sub_u32 s{sJJ}, s{sJJ}, s6')
    a(f's_lshl_b32 s{sRank}, s{sJJ}, 2'); a(f's_add_u32 s{sRank}, s{sRank}, s{sW}')
    a(f's_cmp_ge_u32 s{sRank}, 6'); a(f's_cselect_b32 s{sBsel}, 1, 0'); a(f's_cselect_b32 s6, -1, 1')
    a(f's_add_u32 s{sRank}, s{sRank}, s6')
    a(f's_cmp_ge_u32 s{sRank}, 6'); a(f's_cselect_b32 s6, 6, 0'); a(f's_sub_u32 s{sRank}, s{sRank}, s6')
    a(f's_lshl_b32 s{sB}, s{sPair}, 1'); a(f's_add_u32 s{sB}, s{sB}, s{sBsel}')
    a(f'v_and_b32 {vr(vLane)}, 63, v0'); a(f'v_lshlrev_b32 {vr(vL16)}, 4, {vr(vLane)}')
    if cfg.warm & 1: warm_code('A_role', 'L_exit', vLane, t0, t1, 1)
    a(f's_sub_u32 s{sBeg}, s{sRank}, 8'); a(f's_lshl_b32 s{sBeg}, s{sBeg}, 12'); a(f's_mov_b32 s{sReal}, s{sBeg}')
    def adv():
        a(f's_add_u32 s{sReal}, s{sReal}, {STEP}'); a(f's_min_u32 s{sOff}, s{sReal}, {OOB}')
    adv()
    a(f's_lshl_b32 s{sSt}, s{sB}, 5'); a(f's_add_u32 s{sSt}, s{sSt}, s{sH}')
    a(f's_lshl_b32 s6, s{sSt}, 20')
    a('s_waitcnt lgkmcnt(0)')
    mk_srd(S_K, P_K, 's6', 0x100000); mk_srd(S_V, P_V, 's6', 0x100000)
    a(f's_mul_i32 s6, s{sPair}, 2304'); a(f's_mul_i32 s7, s{sW}, 288'); a('s_add_u32 s6, s6, s7')
    a(f's_sub_u32 s7, 4608, s6')
    mk_srd(S_X, P_AX, 's6', 's7')
    a(f's_mul_i32 s6, s{sW}, {144*8192}'); a(f's_lshl_b32 s7, s{sH}, 8'); a('s_add_u32 s6, s6, s7')
    a(f's_sub_u32 s7, {576*8192}, s6')
    mk_srd(S_W, P_WQ, 's6', 's7')
    if cfg.askip & 1: a(f's_mov_b32 s{S_W+2}, 0')
    a(f'v_lshrrev_b32 {vr(t0)}, 4, {vr(vLane)}'); a(f'v_and_b32 {vr(t1)}, 15, {vr(vLane)}')
    a(f'v_mul_u32_u24 {vr(vWoff)}, {36*8192}, {vr(t0)}'); a(f'v_lshl_add_u32 {vr(vWoff)}, {vr(t1)}, 4, {vr(vWoff)}')
    a(f'v_mul_u32_u24 {vr(vXoff)}, 72, {vr(t0)}'); a(f'v_lshrrev_b32 {vr(t1)}, 3, {vr(t1)}')
    a(f'v_mul_u32_u24 {vr(t1)}, 1152, {vr(t1)}'); a(f'v_add_u32 {vr(vXoff)}, {vr(vXoff)}, {vr(t1)}')
    vm = VM(a, cfg.vcp)
    a(f'v_mov_b32 {vr(vC)}, {8192-1024}')
    if cfg.wqpf:
        a('s_lshr_b32 s6, s2, 3'); a('s_sub_u32 s6, s6, 8'); a('s_lshl_b32 s6, s6, 2'); a(f's_add_u32 s6, s6, s{sW}')
        a(f's_mul_i32 s6, s6, {6*8192}'); a('s_and_b32 s7, s2, 7'); a('s_lshl_b32 s7, s7, 10'); a('s_add_u32 s6, s6, s7')
        mk_srd(S_WO, P_WQ, None, 576 * 8192)
        if cfg.wqpf == 1:
            for k in range(6):
                vm.issue(f'buffer_load_dwordx4 {vr(KR+4*(k&3),4)}, {vr(vL16)}, {srd(S_WO)}, s6 offen')
                if k < 5: a('s_add_u32 s6, s6, 8192')
        else:
            a(f'v_min_u32 {vr(M)}, 47, {vr(vLane)}'); a(f'v_lshrrev_b32 {vr(M2)}, 3, {vr(M)}'); a(f'v_lshlrev_b32 {vr(M)}, 7, {vr(M)}')
            a(f'v_mad_u32_u24 {vr(M2)}, {vr(M2)}, {vr(vC)}, {vr(M)}')
            vm.issue(f'buffer_load_dword {vr(KR)}, {vr(M2)}, {srd(S_WO)}, s6 offen {cfg.pf_flags}')
    x_loads(vm, X, vXoff, 0)
    def ring_ld(s, u):
        return f'buffer_load_dwordx4 {vr(KR+16*s+4*u,4)}, {vr(vL16)}, {srd(S_K)}, s{sOff} offen offset:{1024*u} {cfg.kv_flags}'
    stream = [('k', s, u) for s in range(1, R) for u in range(4)]
    if cfg.wmix: stream += [('v', s, u) for s in range(1, cfg.npv + 1) for u in range(4)]
    order = stream[:cfg.kfirst]; wi = 0; si = cfg.kfirst
    while wi < 36 or si < len(stream):
        for _ in range(cfg.wq_per):
            if wi < 36: order.append(('w', wi)); wi += 1
        for _ in range(cfg.st_per):
            if si < len(stream): order.append(stream[si]); si += 1
    NPV = cfg.npv; V0 = NPV + 1 if NPV else 0
    def avs(s): return 16 * (s - 1) if s < 7 else 240
    if not cfg.wmix: order += [('v', s, u) for s in range(1, NPV + 1) for u in range(4)]
    def issue(o):
        if cfg.pth and o[0] != 'w': a(f's_waitcnt vmcnt({cfg.pth-1})')
        if o[0] == 'w': wunit_load(vm, o[1], vWoff, cfg.wq_flags)
        elif o[0] == 'v':
            if o[2] == 0: a(f's_add_u32 s{sVo}, s{sBeg}, {o[1]*STEP}'); a(f's_min_u32 s{sVo}, s{sVo}, {OOB}')
            vm.issue(f'buffer_load_dwordx4 {ar(avs(o[1])+4*o[2],4)}, {vr(vL16)}, {srd(S_V)}, s{sVo} offen offset:{1024*o[2]} {cfg.kv_flags}', o)
        else:
            vm.issue(ring_ld(o[1], o[2]), o)
            if o[2] == 3: adv()
    pos = 0
    def wo_pf():
        a(f's_mul_i32 s6, s{sH}, 147456'); mk_srd(S_WO, P_WO, 's6', 147456)
        a(f's_sub_u32 s6, s{sR}, 2'); a('s_lshl_b32 s6, s6, 2'); a(f's_add_u32 s6, s6, s{sW}'); a('s_mul_i32 s6, s6, 6144')
        vm.issue(f'buffer_load_dword {vr(KR+1)}, {vr(M)}, {srd(S_WO)}, s6 offen')
    if cfg.stag:
        sp = [int(x) for x in cfg.stag.split(',')]
        stream = [('k', s, u) for s in range(1, R) for u in range(4)] + [('v', s, u) for s in range(1, NPV + 1) for u in range(4)]
        order = stream[:sp[-1]] + [('w', j) for j in range(36)] + stream[sp[-1]:]
        vm.limit = 1000
        for idx in range(sp[-1] + 1):
            if idx in sp:
                Ls = lab('nowq')
                a(f's_cmp_lg_u32 s{sJJ}, {sp.index(idx)}'); a(f's_cbranch_scc1 {Ls}')
                a('s_waitcnt vmcnt(20)')
                n0 = len(vm.q)
                for j in range(36): wunit_load(vm, j, vWoff, cfg.wq_flags)
                if idx != sp[-1]: del vm.q[n0:]
                a(f'{Ls}:')
            if idx == sp[-1]: break
            if idx % 4 == 0: a('s_waitcnt vmcnt(54)')
            if idx == cfg.wopf_at and cfg.dma_mode == 3: wo_pf()
            issue(stream[idx])
        pos = sp[-1] + 36
        vm.limit = 63; vm.done = max(0, len(vm.q) - 60)
    while pos < min(56 - 6 * cfg.wqpf, len(order)):
        issue(order[pos]); pos += 1
    if cfg.dma_mode == 3 and not cfg.stag: wo_pf()
    stamp(1)
    mk_srd(S_WS, P_WS, None, WS_USED); mk_srd(S_DBG, P_DBG, None, 256)
    a(f's_mul_i32 s6, s{sH}, 147456'); mk_srd(S_WO, P_WO, 's6', 147456)
    mk_masks(vLane, MASK, SEL, t0, t1)
    a(f'v_mov_b32 {vr(vC)}, {f2u(SCALE):#x}')
    a(f'v_mov_b32 {vr(P+NT-1)}, 0xff800000')
    mk_wo_tr_addr(vLane, vT, t0, t1, True)
    a(f's_mul_i32 s{sSt}, s{sSt}, {cfg.astr}'); a(f's_add_u32 s{sSt}, s{sSt}, {AST}')
    a(f's_mov_b64 s[{sMk}:{sMk+1}], 0')
    a(f's_cmp_ge_u32 s{sRank}, 2'); a(f's_cselect_b32 s{sMk+2}, 0x22222222, 0'); a(f's_mov_b32 s{sMk+3}, s{sMk+2}')
    for j in (2, 3):
        a(f's_mov_b32 s{sMk+2*j}, {0x11111111 << j:#x}'); a(f's_mov_b32 s{sMk+2*j+1}, s{sMk+2*j}')
    a(f'v_bfe_u32 {vr(t0)}, {vr(vLane)}, 4, 1')
    a(f's_lshl_b32 s6, s{sPair}, 7'); a(f's_lshl_b32 s7, s{sH}, 1'); a('s_add_u32 s6, s6, s7'); a(f's_add_u32 s6, s6, s{sJJ}')
    a(f'v_mul_u32_u24 {vr(t1)}, 63, {vr(t0)}'); a(f'v_add_u32 {vr(t1)}, s6, {vr(t1)}')
    a(f'v_mul_u32_u24 {vr(vY)}, {1152 if cfg.y16 else 2304}, {vr(t1)}'); a(f'v_add_u32 {vr(vY)}, {YA}, {vr(vY)}')
    if cfg.cell: a(f'v_lshrrev_b32 {vr(t1)}, 3, {vr(t1)}'); a(f'v_mul_u32_u24 {vr(t1)}, {SA - 18432}, {vr(t1)}'); a(f'v_add_u32 {vr(vY)}, {vr(vY)}, {vr(t1)}')
    a(f'v_sub_u32 {vr(t1)}, s{sJJ}, {vr(t0)}')
    a(f'v_cmp_lt_u32 vcc, 1, {vr(t1)}')
    a(f'v_mov_b32 {vr(t1)}, {OOB}')
    a(f'v_cndmask_b32 {vr(vY)}, {vr(vY)}, {vr(t1)}, vcc')
    if cfg.y16:
        a(f'v_and_b32 {vr(M)}, 15, {vr(vLane)}'); a(f'v_lshl_add_u32 {vr(vY)}, {vr(M)}, 4, {vr(vY)}')
        a(f's_lshl_b32 s6, s{sW}, 5'); a(f'v_add_u32 {vr(vY8)}, s6, {vr(vY)}'); a(f's_lshl_b32 s6, s{sW}, 8'); a(f'v_add_u32 {vr(vY)}, s6, {vr(vY)}')
    else:
        a(f's_mul_i32 s6, s{sW}, 576')
        a(f'v_add_u32 {vr(vY)}, s6, {vr(vY)}')
        a(f'v_and_b32 {vr(M)}, 3, {vr(vLane)}'); a(f'v_bfe_u32 {vr(M2)}, {vr(vLane)}, 2, 2')
        a(f'v_lshl_add_u32 {vr(M)}, {vr(M)}, 2, {vr(M2)}'); a(f'v_lshl_add_u32 {vr(vY8)}, {vr(M)}, 2, {vr(vY)}')
        a(f'v_and_b32 {vr(M)}, 15, {vr(vLane)}'); a(f'v_lshrrev_b32 {vr(M2)}, 5, {vr(vLane)}')
        a(f'v_lshl_add_u32 {vr(M)}, {vr(M2)}, 4, {vr(M)}'); a(f'v_lshl_add_u32 {vr(vY)}, {vr(M)}, 4, {vr(vY)}')
    for r in range(4):
        a(f's_lshl_b32 s6, s{sJJ}, 2'); a(f's_add_u32 s6, s6, {r}'); a('s_cmp_ge_u32 s6, 6'); a('s_cselect_b32 s6, 1, 0')
        a(f'v_cmp_eq_u32 vcc, s6, {vr(t0)}')
        a(f'v_cndmask_b32 {vr(F+r)}, 0, 1.0, vcc')
    a(f'v_cmp_gt_u32 vcc, 32, {vr(vLane)}')
    for r in range(4):
        a(f'v_cndmask_b32 {vr(G+r)}, 0, {vr(F+r)}, vcc'); a(f'v_cndmask_b32 {vr(G+4+r)}, {vr(F+r)}, 0, vcc')
    a(f'v_and_b32 {vr(M)}, 15, {vr(vLane)}'); a(f'v_lshlrev_b32 {vr(M)}, 4, {vr(M)}')
    a(f'v_lshl_add_u32 {vr(vOw)}, {vr(t0)}, 3, {vr(M)}')
    a(f's_lshl_b32 s6, s{sW}, 8'); a(f's_add_u32 s6, s6, {OT}'); a(f'v_add_u32 {vr(vOw)}, s6, {vr(vOw)}')
    a(f'v_and_b32 {vr(M)}, 3, {vr(vLane)}'); a(f'v_lshlrev_b32 {vr(M)}, 8, {vr(M)}')
    a(f'v_lshrrev_b32 {vr(M2)}, 4, {vr(vLane)}'); a(f'v_lshl_add_u32 {vr(vOr)}, {vr(M2)}, 4, {vr(M)}')
    a(f'v_add_u32 {vr(vOr)}, {OT}, {vr(vOr)}')
    a(f's_mul_i32 s{sD}, s{sW}, {4096 if cfg.dma_mode == 1 else 36864}')
    a(f's_mov_b32 s{sDn}, {(-cfg.dma_t0) & 0xffffffff:#x}'); a(f's_mov_b32 s{sTrip}, 0')
    if cfg.dma_mode == 3: a(f's_mul_i32 s{sDn}, s{sJJ if cfg.dgrp == 3 else sR}, {cfg.dstep}'); a(f's_add_u32 s{sDn}, s{sDn}, {cfg.dma_t0 - (0 if cfg.dgrp == 3 else 2 * cfg.dstep)}')
    if cfg.dyn:
        a(f's_lshl_b32 s6, s{sH}, 1'); a(f's_add_u32 s6, s6, s{sPair}'); a(f's_mul_i32 s6, s6, {cfg.psp//4}'); a(f's_add_u32 s6, s6, s{sJJ}')
        a('s_lshl_b32 s6, s6, 2'); a(f's_add_u32 s6, s6, {PROG}')
        if cfg.pxs != 8 * cfg.psp: a(f's_lshr_b32 s7, s{sH}, 2'); a(f's_mul_i32 s7, s7, {cfg.pxs - 8 * cfg.psp}'); a('s_add_u32 s6, s6, s7')
        a(f'v_mov_b32 {vr(vPo)}, {OOB}'); a(f'v_mov_b32 {vr(vPg)}, s6'); a('v_cmp_eq_u32 vcc, 0, v0')
        a(f'v_cndmask_b32 {vr(vPo)}, {vr(vPo)}, {vr(vPg)}, vcc'); a(f'v_mov_b32 {vr(vPg)}, {0 if cfg.ctl else cfg.hoff}')
    vTh = V(4); cTh, cTo, cPo, cTr = 26, 27, 28, 29
    if cfg.ctl:
        a(f's_add_u32 s{cTr}, s6, {TFO}'); a(f's_mov_b32 s{cTo}, {OOB}'); a(f's_mov_b32 s{cPo}, {OOB}'); a(f's_mov_b32 s{cTh}, 0')
        for r in range(4): a(f'v_mov_b32 {vr(vTh+r)}, 0')
    def ctl(s, iss, per, rd=True, ld=True):
        if s % 2 == 0 and rd:
            a(f'v_readfirstlane_b32 s{cTh}, {vr(vTh + (s + 8 - cfg.fd) // 2 % 4)}')
            a(f's_cmp_gt_u32 s{cTh}, 2'); a(f's_cselect_b32 s{cTh}, 0, s{cTh}')
        if s % per == per - 1:
            a(f'v_add_u32 {vr(vPg)}, {per}, {vr(vPg)}')
            a(f's_cmp_lg_u32 s{cTh}, 0')
            a(f's_cselect_b32 s6, {cfg.toff}, 0'); a(f'v_add_u32 {vr(t0)}, s6, {vr(vPg)}')
            iss(f'buffer_store_dword {vr(t0)}, {vr(vPo)}, {srd(S_WS)}, s{cPo} offen', None)
        if s % 2 == 0 and ld: iss(f'buffer_load_dword {vr(vTh + s // 2 % 4)}, off, {srd(S_WS)}, s{cTo} {cfg.tf_flags}', 't')
        if cfg.stamps: a(f's_mul_i32 s6, s{cTh}, s{cTh}'); a('s_mul_i32 s6, s6, s6'); a('s_mul_i32 s6, s6, s6'); a(f's_add_u32 s98, s98, s6')
    def hold(n):
        Ls = lab('thr')
        a(f's_cmp_eq_u32 s{cTh}, 0'); a(f's_cbranch_scc1 {Ls}'); a(f's_waitcnt vmcnt({n})')
        a(f's_cmp_eq_u32 s{cTh}, 1'); a(f's_cbranch_scc1 {Ls}'); a(f's_waitcnt vmcnt({n - cfg.lv2})')
        a(f'{Ls}:')
    def prog(g, per):
        if cfg.dyn and g % per == per - 1:
            a(f'v_add_u32 {vr(vPg)}, {per}, {vr(vPg)}')
            a(f'buffer_store_dword {vr(vPg)}, {vr(vPo)}, {srd(S_WS)}, 0 offen {cfg.ps_flags}')
            return True
    a(f'v_and_b32 {vr(M)}, 15, {vr(vLane)}'); a(f'v_lshlrev_b32 {vr(M)}, 5, {vr(M)}')
    a(f'v_lshl_add_u32 {vr(M2)}, {vr(t0)}, 4, {vr(M)}')
    a(f'v_lshrrev_b32 {vr(t1)}, 5, {vr(vLane)}'); a(f'v_lshl_add_u32 {vr(M2)}, {vr(t1)}, 9, {vr(M2)}')
    a(f's_lshl_b32 s6, s{sW}, 10'); a(f's_add_u32 s6, s6, {QRED}'); a(f'v_add_u32 {vr(M2)}, s6, {vr(M2)}')
    a(f's_lshl_b32 s6, s{sBsel}, 9'); a(f's_add_u32 s6, s6, {QRED}'); a(f'v_add_u32 {vr(M)}, s6, {vr(M)}')
    for jj in range(36):
        while ('w', jj) not in vm.q:
            issue(order[pos]); pos += 1
        vm.wait(('w', jj))
        wunit_mfma(jj, [X], [ACC], SEL, PA)
        k = 0
        while pos < len(order) - cfg.vhold and vm.after(('w', jj)) < 60 and (k < 1 or order[pos][0] != 'v' or jj == 35 or cfg.wmix):
            issue(order[pos]); pos += 1; k += 1
    a(f'ds_write_b128 {vr(M2)}, {vr(ACC,4)}')
    while pos < len(order):
        issue(order[pos]); pos += 1
    a('s_waitcnt lgkmcnt(0)'); a('s_barrier')
    for w in range(4):
        a(f'ds_read_b128 {vr(D+8*w,4)}, {vr(M)} offset:{1024*w}')
        a(f'ds_read_b128 {vr(D+8*w+4,4)}, {vr(M)} offset:{1024*w+16}')
    for r in range(4): a(f'v_mov_b32 {vr(ACC+r)}, 0')
    a('s_waitcnt lgkmcnt(0)')
    for e in range(8):
        a(f'v_add_f32 {vr(D+e)}, {vr(D+e)}, {vr(D+8+e)}'); a(f'v_add_f32 {vr(D+16+e)}, {vr(D+16+e)}, {vr(D+24+e)}')
    for e in range(8): a(f'v_add_f32 {vr(D+e)}, {vr(D+e)}, {vr(D+16+e)}')
    for k in range(4): a(f'v_cvt_pk_bf16_f32 {vr(Q+k)}, {vr(D+2*k)}, {vr(D+2*k+1)}')
    stamp(2)
    NW = 4 * R - 4
    if cfg.ctl:
        ex = lambda s: (s % cfg.kper == cfg.kper - 1) + (s % 2 == 0)
        NW = min(min(28 + sum(ex(s + k) for k in range(1, 8)) for s in range(8)), min(4 * cfg.fd + sum(ex(s + k) for k in range(1, cfg.fd)) for s in range(0, 8, 2)))
    def dma(s, vtrip=None):
        if (s % 4) not in {1: (0,), 2: (0, 2), 3: (0, 1, 2), 4: (0, 1, 2, 3)}[cfg.dma_per]: return
        Ls = lab('nodma')
        if cfg.dma_mode == 3:
            if s % 4: return
            a(f's_cmp_lg_u32 s{sDn}, s{sTrip}'); a(f's_cbranch_scc1 {Ls}')
            a('s_waitcnt vmcnt(24)')
            for k in range(9):
                a(f's_mov_b32 m0, s{sD}')
                for u in range(4):
                    a(f'buffer_load_dwordx4 {vr(vL16)}, {srd(S_WO)}, s{sD} offen offset:{1024*u} {cfg.wo_flags} lds')
                a(f's_add_u32 s{sD}, s{sD}, 4096')
            a(f'{Ls}:')
            return
        if cfg.dma_mode:
            if s % 4: return
            a(f's_cmp_ge_u32 s{sDn}, {0 if cfg.nodma else 36}'); a(f's_cbranch_scc1 {Ls}')
            for u in range(4):
                a(f's_add_u32 m0, s{sD}, {1024*u}') if cfg.dma_mode == 9 else None
                if u == 0: a(f's_mov_b32 m0, s{sD}')
                a(f'buffer_load_dwordx4 {vr(vL16)}, {srd(S_WO)}, s{sD} offen offset:{1024*u} {cfg.wo_flags} lds')
            a(f's_add_u32 s{sD}, s{sD}, {16384 if cfg.dma_mode == 1 else 4096}')
            a(f'{Ls}:')
            a(f's_add_u32 s{sDn}, s{sDn}, 4')
            return
        if cfg.dmask:
            if vtrip is not None:
                if not (cfg.dmask >> vtrip) & 1: return
            else: a(f's_bitcmp0_b32 s{sDn}, s{sTrip}'); a(f's_cbranch_scc1 {Ls}')
            a(f's_mov_b32 m0, s{sD}')
            for u in range(cfg.dmul):
                a(f'buffer_load_dwordx4 {vr(vL16)}, {srd(S_WO)}, s{sD} offen offset:{1024*u} {cfg.wo_flags} lds')
            a(f's_add_u32 s{sD}, s{sD}, {1024*cfg.dmul}')
            a(f'{Ls}:')
            return
        a(f's_cmp_ge_u32 s{sDn}, {0 if cfg.nodma else 36}'); a(f's_cbranch_scc1 {Ls}')
        a(f's_mov_b32 m0, s{sD}')
        a(f'buffer_load_dwordx4 {vr(vL16)}, {srd(S_WO)}, s{sD} offen {cfg.wo_flags} lds')
        a(f's_add_u32 s{sD}, s{sD}, 1024')
        a(f'{Ls}:')
        a(f's_add_u32 s{sDn}, s{sDn}, 1')
    def shiftP():
        for k in range(NT - 1): a(f'v_mov_b32 {vr(P+k)}, {vr(P+k+1)}')
    dma_end = -(-(cfg.dma_t0 + 36) // cfg.dma_per) * 4
    if cfg.dmask:
        assert bin(cfg.dmask).count('1') * cfg.dma_per * cfg.dmul == 36
        dma_end = 4 * cfg.dmask.bit_length()
        a(f's_mov_b32 s{sDn}, {cfg.dmask}')
    if cfg.dma_mode == 3:
        dma_end = 4 * (cfg.dma_t0 + (cfg.dgrp - 1) * cfg.dstep) + 1
        assert dma_end <= 4 * NT
    assert dma_end + R <= 4 * NT + cfg.ev_slot - V0
    a(f's_add_u32 s{sBeg}, s{sBeg}, {V0*STEP}')
    a('K_loop:')
    for s in range(R):
        K = KR + 16 * s; j = s % 4
        if j == 0:
            if (NT - RT) % RT == s // 4:
                a(f's_cmp_eq_u32 s{sTrip}, {NT-RT}')
                a(f's_cselect_b32 s{S_K}, s{S_V}, s{S_K}'); a(f's_cselect_b32 s{S_K+1}, s{S_V+1}, s{S_K+1}')
                a(f's_cselect_b32 s{sReal}, s{sBeg}, s{sReal}'); a(f's_min_u32 s{sOff}, s{sReal}, {OOB}')
            if cfg.c0_trip % RT == s // 4:
                Ls = lab('c0')
                a(f's_cmp_lg_u32 s{sTrip}, {cfg.c0_trip}'); a(f's_cbranch_scc1 {Ls}')
                a(f'buffer_load_dword {vr(vC0)}, off, {srd(S_DBG)}, 0 offset:{C0} sc1')
                a(f'{Ls}:')
        a(f's_waitcnt vmcnt({NW})')
        for k in range(4):
            for u in range(4):
                c = '0' if k == 0 else vr(T + u)
                a(f'v_dot2_f32_bf16 {vr(T+u)}, {vr(K+4*u+k)}, {vr(Q+k)}, {c}')
        if cfg.ctl: ctl(s, lambda t, g: a(t), cfg.kper)
        for u in range(4):
            if cfg.vck: a(f's_waitcnt vmcnt({cfg.vck-1})')
            if cfg.ctl and u % 2 == 0: hold(cfg.thrk)
            a(ring_ld(s, u))
        adv(); dma(s)
        reduce4(T, XX, S)
        a(f'v_cndmask_b32 {vr(P+NT-1)}, {vr(P+NT-1)}, {vr(S)}, s[{sMk+2*j}:{sMk+2*j+1}]')
        if j == 3:
            if cfg.trips:
                a('s_memrealtime s[100:101]'); a('s_waitcnt lgkmcnt(0)'); a(f's_mov_b32 m0, s{sTrip}'); a(f'v_writelane_b32 {vr(vTS)}, s100, m0')
            if cfg.ctl and s == 7:
                assert cfg.c0_trip == 0
                Ls = lab('c0ok')
                a(f's_cmp_lg_u32 s{sTrip}, 1'); a(f's_cbranch_scc1 {Ls}')
                a('s_waitcnt vmcnt(36)')
                ensure(C0, C0N, vC0)
                if not cfg.cdbg & 2: a(f's_mov_b32 s{cPo}, 0')
                if not cfg.cdbg & 1: a(f's_mov_b32 s{cTo}, s{cTr}')
                if cfg.tfw: a(f's_mov_b32 s6, {TFO}'); a(f'buffer_store_dword {vr(vLane)}, {vr(vPo)}, {srd(S_WS)}, s6 offen')
                a(f'{Ls}:')
            a(f's_add_u32 s{sTrip}, s{sTrip}, 1')
            if (NT - 1) % RT == s // 4:
                a(f's_cmp_eq_u32 s{sTrip}, {NT}'); a('s_cbranch_scc1 A_mid')
            shiftP()
            if s == 3:
                a(f's_lshr_b64 s[{sMk}:{sMk+1}], s[{sMk+4}:{sMk+5}], 2'); a(f's_lshr_b64 s[{sMk+2}:{sMk+3}], s[{sMk+4}:{sMk+5}], 1')
    a('s_branch K_loop')
    a('A_mid:')
    stamp(5)
    if cfg.cdbg & 2: a(f's_mov_b32 s{cPo}, 0')
    a(f'v_max3_f32 {vr(M)}, {vr(P)}, {vr(P+1)}, {vr(P+2)}')
    for k in range(3, NT, 2): a(f'v_max3_f32 {vr(M)}, {vr(M)}, {vr(P+k)}, {vr(P+k+1)}')
    for sh in (8, 4, 2, 1): a(f'v_max_f32_dpp {vr(M)}, {vr(M)}, {vr(M)} row_ror:{sh} {DPPF}')
    allred_rows(M, M2, 'v_max_f32')
    a(f'v_mul_f32 {vr(XX)}, {vr(M)}, {vr(vC)}')
    for k in range(NT): a(f'v_fma_f32 {vr(P+k)}, {vr(P+k)}, {vr(vC)}, -{vr(XX)}')
    for k in range(NT): a(f'v_exp_f32 {vr(P+k)}, {vr(P+k)}')
    a(f'v_add_f32 {vr(M)}, {vr(P)}, {vr(P+1)}')
    for k in range(2, NT): a(f'v_add_f32 {vr(M)}, {vr(M)}, {vr(P+k)}')
    for k in range(NT): a(f'v_cvt_pk_bf16_f32 {vr(P+k)}, {vr(P+k)}, {vr(P+k)}')
    for sh in (8, 4, 2, 1): a(f'v_add_f32_dpp {vr(M)}, {vr(M)}, {vr(M)} row_ror:{sh} {DPPF}')
    allred_rows(M, M2, 'v_add_f32')
    a(f'v_min_u32 {vr(XX)}, -2, {vr(XX)}'); a(f'v_min_u32 {vr(XX+1)}, -2, {vr(M)}')
    if not cfg.noB and not cfg.ctl: ensure(C0, C0N, vC0)
    a(f's_lshl_b32 s6, s{sRank}, 3'); a(f's_add_u32 s6, s6, s{sSt}')
    a('s_mov_b64 exec, 1')
    for _ in range(4 if cfg.dup & 4 else 1): a(f'buffer_store_dwordx2 {vr(XX,2)}, off, {srd(S_WS)}, s6 sc1')
    a('s_mov_b64 exec, -1')
    ST = X
    def st_loads(iss):
        for k in range(3): iss(f'buffer_load_dwordx4 {vr(ST+4*k,4)}, off, {srd(S_WS)}, s{sSt} offset:{16*k} sc1')
    def pa(i, dst=PA):
        for u in range(4):
            for r in range(4):
                a(f'v_and_b32_dpp {vr(dst+4*u+r)}, {vr(P+i//4)}, {vr(MASK+r)} row_newbcast:{4*u+i%4} {DPPF}')
    def ev2():
        vm.wait('st')
        a(f's_mov_b32 s7, {cfg.spin_max}')
        a('A_ev2_chk:')
        umax_tree(M, range(ST, ST + 12))
        a(f'v_cmp_eq_u32 vcc, -1, {vr(M)}')
        a('s_cbranch_vccz A_ev2_ok')
        st_loads(a)
        a('s_waitcnt vmcnt(0)')
        a('s_sub_u32 s7, s7, 1'); a('s_cmp_lg_u32 s7, 0'); a('s_cbranch_scc1 A_ev2_chk')
        a('A_ev2_ok:')
        a(f'v_max3_f32 {vr(M)}, {vr(ST)}, {vr(ST+2)}, {vr(ST+4)}'); a(f'v_max3_f32 {vr(M2)}, {vr(ST+6)}, {vr(ST+8)}, {vr(ST+10)}')
        a(f'v_max_f32 {vr(M)}, {vr(M)}, {vr(M2)}')
        for k in range(6): a(f'v_sub_f32 {vr(ST+2*k)}, {vr(ST+2*k)}, {vr(M)}')
        a(f'v_sub_f32 {vr(fN)}, {vr(XX)}, {vr(M)}')
        for k in range(6): a(f'v_exp_f32 {vr(ST+2*k)}, {vr(ST+2*k)}')
        a(f'v_exp_f32 {vr(fN)}, {vr(fN)}')
        a(f'v_mul_f32 {vr(M)}, {vr(ST)}, {vr(ST+1)}')
        for k in range(1, 6): a(f'v_fma_f32 {vr(M)}, {vr(ST+2*k)}, {vr(ST+2*k+1)}, {vr(M)}')
        a(f'v_rcp_f32 {vr(M)}, {vr(M)}')
        a(f'v_mul_f32 {vr(fN)}, {vr(fN)}, {vr(M)}')
    extra = list(range(1, NPV + 1)); frags = wo_frag_list(4, vT)
    NS = 4 * NT
    vm = VM(a)
    vm.q = [(j, u) for j in range(V0, V0 + R) for u in range(4)] + [None]
    if cfg.ctl:
        assert V0 == 8 and R == 8
        vm.q = [x for j in range(V0, V0 + R) for x in [None] * (j % cfg.kper == cfg.kper - 1) + ([('t', j + cfg.fd)] if j % 2 == 0 else []) + [(j, u) for u in range(4)]] + [None]
    def stage(j): return (NS + j - V0) % R
    def comp(i, pre=None):
        K = KR + 16 * stage(i)
        if pre is None: pa(i); pre = PA
        if i < NS - 1: vm.wait((i, 3))
        for u in range(4):
            vm.wait((i, u))
            a(f'v_mfma_f32_16x16x32_bf16 {vr(ACC,4)}, {vr(pre+4*u,4)}, {vr(K+4*u,4)}, {vr(ACC,4)}')
        if i % 4 == 3 and cfg.trips:
            a('s_memrealtime s[100:101]'); a('s_waitcnt lgkmcnt(0)'); a(f'v_writelane_b32 {vr(vTS)}, s100, {NT + (i-V0)//4}')
    c = V0
    sTh, sTo = sD, sDn
    if cfg.thr:
        assert dma_end <= NS
        a(f's_lshr_b32 s{sTo}, s{sH}, 2'); a(f's_lshl_b32 s{sTo}, s{sTo}, 7'); a(f's_add_u32 s{sTo}, s{sTo}, {PROG + 0x4000}')
        if cfg.tstat: a('s_and_b32 s6, s2, 7'); a(f's_lshr_b32 s{sTh}, {cfg.tstat}, s6'); a(f's_and_b32 s{sTh}, s{sTh}, 1')
    for m in range(V0 + R, NS):
        n = m - R - V0; i = m - R
        if m == cfg.st_m: st_loads(lambda t: vm.issue(t, 'st'))
        if m == cfg.ev2_m: ev2()
        if m == cfg.ytouch: vm.issue(f'buffer_load_dword {vr(vC0)}, {vr(vY8)}, {srd(S_WS)}, 0 offen offset:512 sc1')
        dist = max(cfg.dend, min(R, R - (m - cfg.dm0 + cfg.dsl - 1) // cfg.dsl))
        first = True
        while c <= m - dist:
            if not first: a('s_nop 3')
            comp(c); c += 1; first = False
        if cfg.ctl:
            if m == cfg.tm1: a(f's_mov_b32 s{cTh}, 0')
            if m % 2 == 0 and m < cfg.tm1: vm.wait(('t', m))
            ctl((m - 12) % 8, lambda t, g: vm.issue(t, g and (g, m + cfg.fd)), cfg.vper, m < cfg.tm1, m + cfg.fd < cfg.tm1)
        elif prog(n, cfg.pper): vm.q.append(None)
        th = cfg.thr and cfg.tm0 <= m < cfg.tm1
        if th:
            if ('t', m) in vm.q:
                vm.wait(('t', m)); a(f'v_readfirstlane_b32 s{sTh}, {vr(vTh + m // cfg.tper % 4)}')
            a(f's_cmp_eq_u32 s{sTh}, 1')
        if cfg.thr and not cfg.tstat and cfg.tm0 <= m + cfg.tdist < cfg.tm1 and (m + cfg.tdist - cfg.tm0) % cfg.tper == 0:
            vm.issue(f'buffer_load_dword {vr(vTh + (m + cfg.tdist) // cfg.tper % 4)}, off, {srd(S_WS)}, s{sTo} sc1', ('t', m + cfg.tdist))
        for u in range(4):
            if th and u % 2 == 0:
                Ls = lab('thr')
                a(f's_cbranch_scc0 {Ls}'); a(f's_waitcnt vmcnt({cfg.thr})'); a(f'{Ls}:')
            if cfg.ctl and m < cfg.tm1 and u % 2 == 0: hold(cfg.ctl)
            if cfg.vth and m >= cfg.vth0: vm.limit = cfg.vth if m < cfg.vth1 else 63
            vm.issue(ring_ld(stage(m), u), (m, u))
        if th and cfg.stamps: a(f's_addc_u32 s98, s98, 0')
        adv()
        if NS + n < dma_end: dma(n, NT + n // 4)
        if i == cfg.ev_slot - 1: a('s_barrier')
        if i >= cfg.ev_slot - 1:
            for t in frags[:cfg.ev_per]: a(t)
            del frags[:cfg.ev_per]
        if extra and n % cfg.xper == 1:
            e = extra.pop(0)
            pa(e)
            for u in range(4):
                a(f'v_mfma_f32_16x16x32_bf16 {vr(ACC,4)}, {vr(PA+4*u,4)}, {ar(avs(e)+4*u,4)}, {vr(ACC,4)}')
            a('s_nop 3')
    assert not extra and not frags
    if cfg.ev2_m >= NS: ev2()
    while c < NS - 2:
        comp(c); c += 1; a('s_nop 3')
    P2 = KR + 16 * stage(NS - 4)
    pa(NS - 2); pa(NS - 1, P2)
    comp(NS - 2, PA); comp(NS - 1, P2)
    a('A_tail:')
    stamp(3)
    for r in range(4): a(f'v_mul_f32 {vr(ACC+r)}, {vr(ACC+r)}, {vr(fN)}')
    a(f'v_cvt_pk_bf16_f32 {vr(T)}, {vr(ACC)}, {vr(ACC+1)}'); a(f'v_cvt_pk_bf16_f32 {vr(T+1)}, {vr(ACC+2)}, {vr(ACC+3)}')
    a(f'ds_write_b64 {vr(vOw)}, {vr(T,2)}')
    a('s_waitcnt lgkmcnt(0)'); a('s_barrier')
    for ks in range(4): a(f'ds_read_b128 {ar(4*ks,4)}, {vr(vOr)} offset:{64*ks}')
    a('s_waitcnt lgkmcnt(0)')
    def tile(t):
        for ks in range(4):
            c = '0' if ks == 0 else vr(D + 4 * t, 4)
            a(f'v_mfma_f32_16x16x32_bf16 {vr(D+4*t,4)}, {ar(4*ks,4)}, {ar(AW+4*(t*4+ks),4)}, {c}')
    def comb(j, t, first):
        g = G + (4 if t >= 4 else 0)
        for r in range(4):
            if first and r == 0: a(f'v_mul_f32 {vr(O+j)}, {vr(g)}, {vr(D+4*t)}')
            else: a(f'v_fma_f32 {vr(O+j)}, {vr(g+r)}, {vr(D+4*t+r)}, {vr(O+j)}')
    def tail16(src, T, vO, so, ex):
        a(f'v_mov_b32_dpp {vr(T+1)}, {vr(src)} row_shl:2 {DPPF}')
        a(f'v_cvt_pk_bf16_f32 {vr(T)}, {vr(src)}, {vr(T+1)}'); a(f'v_min_u32 {vr(T)}, -2, {vr(T)}')
        for e in range(1, 4): a(f'v_mov_b32_dpp {vr(T+e)}, {vr(T)} row_shl:{4*e} {DPPF}')
        a('s_mov_b32 exec_lo, 0x00030003'); a(f's_mov_b32 exec_hi, {ex}')
        a(f'buffer_store_dwordx4 {vr(T,4)}, {vr(vO)}, {srd(S_WS)}, {so} offen offset:1024 sc1')
        a('s_mov_b64 exec, -1')
    globals()['tail16'] = tail16
    if cfg.y16:
        def cb(t, o):
            a(f'v_mul_f32 {vr(o)}, {vr(F)}, {vr(D+4*t)}')
            for r in range(1, 4): a(f'v_fma_f32 {vr(o)}, {vr(F+r)}, {vr(D+4*t+r)}, {vr(o)}')
        def pk(d): a(f'v_cvt_pk_bf16_f32 {vr(O+d)}, {vr(G+2*d)}, {vr(G+2*d+1)}'); a(f'v_min_u32 {vr(O+d)}, -2, {vr(O+d)}')
        tile(8); tile(0); tile(1); cb(8, O + 4); tile(2)
        tail16(O + 4, T, vY8, 0, 0)
        cb(0, G); tile(3); cb(1, G + 1); tile(4); cb(2, G + 2); pk(0); tile(5); cb(3, G + 3); tile(6); cb(4, G + 4); pk(1)
        tile(7); cb(5, G + 5); pk(2); cb(6, G + 6)
        a('s_mov_b64 exec, 0xffffffff')
        cb(7, G + 7); pk(3)
        a(f'buffer_store_dwordx4 {vr(O,4)}, {vr(vY)}, {srd(S_WS)}, 0 offen sc1')
        a('s_mov_b64 exec, -1')
    else:
        tile(8); tile(0); tile(1)
        a(f'v_mul_f32 {vr(O+4)}, {vr(F)}, {vr(D+32)}')
        for r in range(1, 4): a(f'v_fma_f32 {vr(O+4)}, {vr(F+r)}, {vr(D+32+r)}, {vr(O+4)}')
        tile(2)
        if cfg.t16:
            a(f'v_min_u32 {vr(T)}, -2, {vr(O+4)}')
            for e in range(1, 4): a(f'v_mov_b32_dpp {vr(T+e)}, {vr(T)} row_shl:{4*e} {DPPF}')
            a('s_mov_b64 exec, 0x000f000f')
            a(f'buffer_store_dwordx4 {vr(T,4)}, {vr(vY8)}, {srd(S_WS)}, 0 offen offset:512 sc1')
        else:
            a(f'v_min_u32 {vr(O+4)}, -2, {vr(O+4)}')
            a('s_mov_b64 exec, 0xffffffff')
            a(f'buffer_store_dword {vr(O+4)}, {vr(vY8)}, {srd(S_WS)}, 0 offen offset:512 sc1')
        a('s_mov_b64 exec, -1')
        comb(0, 0, True)
        tile(3); comb(1, 1, True)
        tile(4); comb(2, 2, True)
        tile(5); comb(3, 3, True)
        tile(6); comb(0, 4, False)
        tile(7); comb(1, 5, False); comb(2, 6, False)
        for j in range(3): a(f'v_min_u32 {vr(O+j)}, -2, {vr(O+j)}')
        comb(3, 7, False)
        a(f'v_min_u32 {vr(O+3)}, -2, {vr(O+3)}')
        a(f'buffer_store_dwordx4 {vr(O,4)}, {vr(vY)}, {srd(S_WS)}, 0 offen sc1')
    stamp(4)
    stamp_flush(M, 'A')
    if cfg.trips:
        a(f's_lshl_b32 s6, s2, 2'); a(f's_add_u32 s6, s6, s{sW}'); a('s_lshl_b32 s6, s6, 8'); a(f's_add_u32 s6, s6, {STAMP + 0x100000}')
        a(f'v_lshlrev_b32 {vr(M)}, 2, {vr(vLane)}')
        a(f'buffer_store_dword {vr(vTS)}, {vr(M)}, {srd(S_WS)}, s6 offen')
    a('s_endpgm')

def gen_B():
    V = VAlloc(1)
    vLane = V(); vL16 = V(); vWoff = V(); vXoff = V(); t0 = V(); t1 = V(); t2 = V(); vI = V(); vG = V(); vL16x = V(); vC0 = V()
    base = V.n
    sHalf, sBeta, sB2, sCh, sM0, sSo = 8, 9, 10, 11, 12, 13
    CROW = 1088; CB = 64 * CROW
    QROW = 1056; SQ = 2 * CB; QRED = SQ
    PB = SQ + 16 * QROW; MX = PB + 4096; LS = MX + 512
    assert LS + 512 <= LDS_TOTAL
    fl = cfg.b_flags
    a('B_role:')
    if cfg.noB: a('s_endpgm')
    a(f's_mov_b32 s{sHalf}, s{sR}')
    a(f's_lshl_b32 s{sBeta}, s{sH}, 1'); a(f's_add_u32 s{sBeta}, s{sBeta}, s{sHalf}')
    a(f's_lshr_b32 s{sB2}, s{sBeta}, 4'); a(f's_and_b32 s{sCh}, s{sBeta}, 15')
    a(f'v_and_b32 {vr(vLane)}, 63, v0'); a(f'v_lshlrev_b32 {vr(vL16)}, 4, {vr(vLane)}')
    a(f'v_lshrrev_b32 {vr(vG)}, 4, {vr(vLane)}'); a(f'v_and_b32 {vr(vI)}, 15, {vr(vLane)}')
    if cfg.warm & 2: warm_code('B_role', 'B_end', vLane, t0, t1)
    a('s_waitcnt lgkmcnt(0)')
    a(f's_mul_i32 s6, s{sW}, 288'); a('s_sub_u32 s7, 4608, s6'); mk_srd(S_X, P_BX, 's6', 's7')
    a(f's_mul_i32 s6, s{sW}, {144*8192}'); a(f's_lshl_b32 s7, s{sH}, 8'); a('s_add_u32 s6, s6, s7')
    a(f's_sub_u32 s7, {576*8192}, s6'); mk_srd(S_W, P_BWQ, 's6', 's7')
    a(f's_lshl_b32 s6, s{sHalf}, 2'); a(f's_add_u32 s6, s6, s{sW}'); a('s_lshl_b32 s6, s6, 19')
    a(f's_lshl_b32 s7, s{sH}, 8'); a('s_add_u32 s6, s6, s7'); a(f's_sub_u32 s7, {512*8192}, s6')
    mk_srd(S_U, P_WUK, 's6', 's7')
    if cfg.cwin == 0:
        a(f's_lshl_b32 s6, s{sBeta}, 18'); mk_srd(S_K, P_CKV, 's6', 0x40000)
    else:
        a(f's_lshl_b32 s6, s{sB2}, 22'); mk_srd(S_K, P_CKV, 's6', 0x400000)
    for bit, R in ((1, S_W), (2, S_U), (4, S_K)):
        if cfg.bskip & bit: a(f's_mov_b32 s{R+2}, 0')
    if cfg.emu & 1:
        a(f's_cmp_eq_u32 s{sHalf}, 1'); a(f's_cselect_b32 s{S_W+2}, 0, s{S_W+2}')
    MASK = V(4); SEL = V(8); X0 = V(18); X1 = V(18); PA = V(16, 4); AC0 = V(4, 4); AC1 = V(4, 4)
    UK = V(64, 4); QB = V(16); T = V(4); XX = V(2); U = V(16, 4); D = V(32, 4); vUoff = V()
    a(f'v_mul_u32_u24 {vr(vWoff)}, {36*8192}, {vr(vG)}'); a(f'v_lshl_add_u32 {vr(vWoff)}, {vr(vI)}, 4, {vr(vWoff)}')
    a(f'v_mul_u32_u24 {vr(vXoff)}, 72, {vr(vG)}'); a(f'v_lshrrev_b32 {vr(t1)}, 3, {vr(vI)}')
    a(f'v_mul_u32_u24 {vr(t1)}, 1152, {vr(t1)}'); a(f'v_add_u32 {vr(vXoff)}, {vr(vXoff)}, {vr(t1)}')
    a(f'v_lshlrev_b32 {vr(vUoff)}, 17, {vr(vG)}'); a(f'v_lshl_add_u32 {vr(vUoff)}, {vr(vI)}, 4, {vr(vUoff)}')
    a(f'v_xor_b32 {vr(vL16x)}, 32, {vr(vL16)}')
    mk_srd(S_WS, P_WS, None, WS_USED)
    vm = VM(a, 49)
    x_loads(vm, X0, vXoff, 0); x_loads(vm, X1, vXoff, 2304)
    Lc, Lc1 = lab('noclr'), lab('clr1')
    a(f's_cmp_ge_u32 s{sW}, 2'); a(f's_cbranch_scc1 {Lc}')
    for r in range(4): a(f'v_mov_b32 {vr(D+r)}, -1')
    a(f's_cmp_eq_u32 s{sW}, 1'); a(f's_cbranch_scc1 {Lc1}')
    a(f'v_lshrrev_b32 {vr(t0)}, 5, {vr(vLane)}'); a(f'v_lshlrev_b32 {vr(t0)}, 15, {vr(t0)}')
    a(f'v_and_b32 {vr(t1)}, 31, {vr(vLane)}'); a(f'v_lshl_add_u32 {vr(t0)}, {vr(t1)}, 4, {vr(t0)}')
    a(f's_lshl_b32 s6, s{sBeta}, 9'); a(f's_add_u32 s7, s6, {QABS + 65536}'); a(f's_add_u32 s6, s6, {QABS}')
    a(f'buffer_store_dwordx4 {vr(D,4)}, {vr(t0)}, {srd(S_WS)}, s6 offen sc1')
    a(f'buffer_store_dwordx4 {vr(D,4)}, {vr(t0)}, {srd(S_WS)}, s7 offen sc1')
    a(f's_add_u32 s6, s6, {PSTAT - QABS}')
    a('s_mov_b64 exec, 0xffffffff')
    a(f'buffer_store_dwordx4 {vr(D,4)}, {vr(vL16)}, {srd(S_WS)}, s6 offen sc1')
    a(f's_lshl_b32 s6, s{sBeta}, 7'); a(f's_add_u32 s6, s6, {AST}')
    a('s_mov_b64 exec, 0xff')
    a(f'buffer_store_dwordx4 {vr(D,4)}, {vr(vL16)}, {srd(S_WS)}, s6 offen sc1')
    if cfg.dyn:
        a(f's_mul_i32 s6, s{sBeta}, {cfg.psp}'); a(f's_add_u32 s6, s6, {PROG}')
        a('s_mov_b32 exec_lo, 1'); a(f's_mov_b32 exec_hi, {1 if cfg.mon else 0}')
        a(f'buffer_store_dwordx4 {vr(D,4)}, {vr(t0)}, {srd(S_WS)}, s6 offen sc1')
    a('s_mov_b64 exec, -1')
    a(f'{Lc1}:')
    a(f's_mul_i32 s6, s{sBeta}, 9216'); a(f's_mul_i32 s7, s{sW}, {YB - YA}'); a('s_add_u32 s6, s6, s7'); a(f's_add_u32 s6, s6, {YA if not cfg.bskip & 1024 else OOB}')
    for k in range(9):
        if k in (4, 8): a('s_add_u32 s6, s6, 4096')
        a(f'buffer_store_dwordx4 {vr(D,4)}, {vr(vL16)}, {srd(S_WS)}, s6 offen offset:{1024*(k&3)} {cfg.clr_flags}')
    a(f'{Lc}:')
    for jj in range(36): wunit_load(vm, jj, vWoff, cfg.bwq_flags)
    def uk_load(u):
        a(f's_mov_b32 s6, {u*8192}')
        vm.issue(f'buffer_load_dwordx4 {vr(UK+4*u,4)}, {vr(vUoff)}, {srd(S_U)}, s6 offen {fl}', ('u', u))
    for u in range(3): uk_load(u)
    mk_srd(S_DBG, P_DBG, None, 256); mk_srd(S_OUT, P_OUT, None, 9216)
    mk_masks(vLane, MASK, SEL, t0, t1)
    def coff(rho, k):
        if cfg.cwin == 0: return (64 * rho + k) * 1024
        if cfg.cwin == 1: return (1024 * rho + k) * 1024
        return (1024 * rho + 256 * (k >> 2) + (k & 3)) * 1024
    def c_dma(rho, k):
        a(f's_add_u32 m0, s{sM0}, {(rho&1)*CB + k*CROW}')
        a(f's_add_u32 s6, s{sSo}, {coff(rho, k)}')
        vm.issue(f'buffer_load_dwordx4 {vr(vL16x if k >= 8 else vL16)}, {srd(S_K)}, s6 offen {fl} lds', ('c', rho))
    def c_reg(rho, k):
        a(f's_add_u32 s6, s{sSo}, {coff(rho, k)}')
        vm.issue(f'buffer_load_dwordx4 {ar(64*rho+4*k,4)}, {vr(vL16x if k >= 8 else vL16)}, {srd(S_K)}, s6 offen {fl}', ('c', rho))
    a(f's_mul_i32 s{sM0}, s{sW}, {16*CROW}'); a(f's_lshl_b32 s{sSo}, s{sW}, 14')
    if cfg.cwin:
        a(f's_lshl_b32 s6, s{sCh}, 16'); a(f's_add_u32 s{sSo}, s{sSo}, s6')
        if cfg.cwin == 2: a(f's_lshr_b32 s{sSo}, s{sSo}, 2')
    dma = [(rho, k) for rho in range(2) for k in range(16)]
    for jj in range(36):
        vm.wait(('w', jj))
        if jj == 0:
            Ls = lab('sig0')
            a(f's_cmp_ge_u32 s{sW}, 2'); a(f's_cbranch_scc1 {Ls}')
            a(f'v_mov_b32 {vr(t2)}, 1'); a('s_mov_b64 exec, 1')
            a(f'buffer_atomic_add {vr(t2)}, off, {srd(S_DBG)}, 0 offset:{C0}')
            a('s_mov_b64 exec, -1')
            a(f'{Ls}:')
            vm.limit = 61
            for u in range(3, 16): uk_load(u)
        wunit_mfma(jj, [X0, X1], [AC0, AC1], SEL, PA)
        if jj == 28: vm.issue(f'buffer_load_dword {vr(vC0)}, off, {srd(S_DBG)}, 0 offset:{C0} sc1', 'c0')
        if dma: c_dma(*dma.pop(0))
    assert not dma
    a(f'v_lshlrev_b32 {vr(t0)}, 5, {vr(vI)}')
    a(f'v_and_b32 {vr(t1)}, 1, {vr(vG)}'); a(f'v_lshl_add_u32 {vr(t1)}, {vr(t1)}, 4, {vr(t0)}')
    a(f'v_lshrrev_b32 {vr(t2)}, 5, {vr(vLane)}'); a(f'v_lshl_add_u32 {vr(t1)}, {vr(t2)}, 9, {vr(t1)}')
    a(f's_lshl_b32 s6, s{sW}, 11'); a(f's_add_u32 s6, s6, {QRED}'); a(f'v_add_u32 {vr(t1)}, s6, {vr(t1)}')
    a(f'ds_write_b128 {vr(t1)}, {vr(AC0,4)}'); a(f'ds_write_b128 {vr(t1)}, {vr(AC1,4)} offset:1024')
    a(f'v_add_u32 {vr(t0)}, {QRED}, {vr(t0)}')
    a('s_waitcnt lgkmcnt(0)'); a('s_barrier')
    for b in range(4):
        for w in range(4):
            a(f'ds_read_b128 {vr(D+8*w,4)}, {vr(t0)} offset:{2048*w+512*b}')
            a(f'ds_read_b128 {vr(D+8*w+4,4)}, {vr(t0)} offset:{2048*w+512*b+16}')
        a('s_waitcnt lgkmcnt(0)')
        for e in range(8):
            a(f'v_add_f32 {vr(D+e)}, {vr(D+e)}, {vr(D+8+e)}'); a(f'v_add_f32 {vr(D+16+e)}, {vr(D+16+e)}, {vr(D+24+e)}')
        for e in range(8): a(f'v_add_f32 {vr(D+e)}, {vr(D+e)}, {vr(D+16+e)}')
        for k in range(4): a(f'v_cvt_pk_bf16_f32 {vr(QB+4*b+k)}, {vr(D+2*k)}, {vr(D+2*k+1)}')
    vm.wait(('u', 15))
    for u in range(16):
        for k in range(4):
            for b in range(4):
                c = '0' if k == 0 else vr(T + b)
                a(f'v_dot2_f32_bf16 {vr(T+b)}, {vr(UK+4*u+k)}, {vr(QB+4*b+k)}, {c}')
        reduce4(T, XX, U + u)
    for k in range(8): a(f'v_cvt_pk_bf16_f32 {vr(D+k)}, {vr(U+2*k)}, {vr(U+2*k+1)}')
    for k in range(8): a(f'v_min_u32 {vr(D+k)}, -2, {vr(D+k)}')
    a(f'v_bfe_u32 {vr(t0)}, {vr(vLane)}, 2, 2'); a(f'v_lshlrev_b32 {vr(t0)}, 15, {vr(t0)}')
    a(f'v_lshl_add_u32 {vr(t0)}, {vr(vG)}, 5, {vr(t0)}')
    a(f's_lshl_b32 s6, s{sH}, 10'); a(f's_lshl_b32 s7, s{sHalf}, 9'); a('s_add_u32 s6, s6, s7')
    a(f's_lshl_b32 s7, s{sW}, 7'); a('s_add_u32 s6, s6, s7'); a(f's_add_u32 s6, s6, {QABS}')
    if cfg.qfull:
        a(f'v_and_b32 {vr(t1)}, 1, {vr(vLane)}'); a(f'v_lshl_add_u32 {vr(t0)}, {vr(t1)}, 4, {vr(t0)}')
        a(f'v_cmp_eq_u32 vcc, 1, {vr(t1)}')
        for k in range(4): a(f'v_cndmask_b32 {vr(D+k)}, {vr(D+k)}, {vr(D+4+k)}, vcc')
        a('s_mov_b32 exec_lo, 0x33333333'); a('s_mov_b32 exec_hi, 0x33333333')
        vm.issue(f'buffer_store_dwordx4 {vr(D,4)}, {vr(t0)}, {srd(S_WS)}, s6 offen sc1')
    else:
        a('s_mov_b32 exec_lo, 0x11111111'); a('s_mov_b32 exec_hi, 0x11111111')
        vm.issue(f'buffer_store_dwordx4 {vr(D,4)}, {vr(t0)}, {srd(S_WS)}, s6 offen sc1')
        vm.issue(f'buffer_store_dwordx4 {vr(D+4,4)}, {vr(t0)}, {srd(S_WS)}, s6 offen offset:16 sc1')
    a('s_mov_b64 exec, -1')
    stamp(1)
    vm.wait('c0')
    ensure(C0, C0N, vC0)
    stamp(2)
    if cfg.bstop == 1: a('s_branch B_end')
    V = VAlloc(base)
    ACC = V(64, 4); S = V(8, 4); CF = V(64, 4); PF = V(16, 4); MXR = V(12, 4)
    mQ = V(2); mP = V(); lQ = V(2); aQ = V(2); aP = V(); vC = V(); PK = V(4, 2); Mx = V(2); tt = V()
    vA = V(2); vTr = V(2); vMw = V(); vMr = V(); vMp = V(); vPw = V(); vPr = V(); vQ = V(); vQw = V(); vCw = V(2)
    sQ = 14
    a(f's_lshl_b32 s{sQ}, s{sB2}, 15'); a(f's_lshl_b32 s6, s{sW}, 12'); a(f's_add_u32 s{sQ}, s{sQ}, s6'); a(f's_add_u32 s{sQ}, s{sQ}, {QABS}')
    a(f's_add_u32 s{sQ+1}, s{sQ}, 16384')
    def q_loads(iss):
        for nt in range(2):
            for k in range(4):
                iss(f'buffer_load_dwordx4 {vr(CF+16*nt+4*k,4)}, {vr(vL16)}, {srd(S_WS)}, s{sQ+nt} offen offset:{1024*k} sc1')
    a('s_nop 1')
    q_loads(lambda t: vm.issue(t, 'q'))
    for rho in (2, 3):
        for k in range(16): c_reg(rho, k)
    a(f's_lshl_b32 s6, s{sW}, 4'); a(f'v_add_u32 {vr(t0)}, s6, {vr(vI)}'); a(f'v_mul_u32_u24 {vr(t0)}, {CROW}, {vr(t0)}')
    a(f'v_lshrrev_b32 {vr(t1)}, 3, {vr(vI)}'); a(f'v_lshlrev_b32 {vr(t1)}, 1, {vr(t1)}'); a(f'v_xor_b32 {vr(t1)}, {vr(t1)}, {vr(vG)}')
    a(f'v_lshl_add_u32 {vr(vA)}, {vr(t1)}, 4, {vr(t0)}'); a(f'v_add_u32 {vr(vA+1)}, {CB}, {vr(vA)}')
    a(f'v_lshrrev_b32 {vr(t0)}, 5, {vr(vLane)}'); a(f'v_lshlrev_b32 {vr(t0)}, 3, {vr(t0)}')
    a(f'v_bfe_u32 {vr(t1)}, {vr(vLane)}, 2, 2'); a(f'v_add_u32 {vr(t0)}, {vr(t0)}, {vr(t1)}'); a(f'v_mul_u32_u24 {vr(t0)}, {CROW}, {vr(t0)}')
    a(f'v_lshrrev_b32 {vr(t1)}, 1, {vr(vG)}'); a(f'v_xor_b32 {vr(t1)}, {vr(t1)}, {vr(vG)}')
    a(f'v_and_b32 {vr(t1)}, 1, {vr(t1)}'); a(f'v_lshl_add_u32 {vr(t0)}, {vr(t1)}, 5, {vr(t0)}')
    a(f'v_and_b32 {vr(t1)}, 3, {vr(vLane)}'); a(f'v_lshl_add_u32 {vr(t0)}, {vr(t1)}, 3, {vr(t0)}')
    a(f's_lshl_b32 s6, s{sW}, 8'); a(f'v_add_u32 {vr(vTr)}, s6, {vr(t0)}'); a(f'v_add_u32 {vr(vTr+1)}, {CB}, {vr(vTr)}')
    a(f'v_lshlrev_b32 {vr(vMr)}, 4, {vr(vI)}'); a(f'v_add_u32 {vr(vMr)}, {MX}, {vr(vMr)}')
    a(f's_lshl_b32 s6, s{sW}, 2'); a(f'v_add_u32 {vr(vMw)}, s6, {vr(vMr)}')
    a(f'v_and_b32 {vr(t0)}, 31, {vr(vLane)}'); a(f'v_lshlrev_b32 {vr(vMp)}, 4, {vr(t0)}'); a(f'v_add_u32 {vr(vMp)}, {MX}, {vr(vMp)}')
    a(f'v_lshlrev_b32 {vr(vPr)}, 5, {vr(t0)}'); a(f'v_lshrrev_b32 {vr(t1)}, 5, {vr(vLane)}')
    a(f'v_lshl_add_u32 {vr(vPr)}, {vr(t1)}, 4, {vr(vPr)}'); a(f'v_add_u32 {vr(vPr)}, {PB}, {vr(vPr)}')
    a(f'v_lshlrev_b32 {vr(vPw)}, 5, {vr(vI)}'); a(f'v_lshl_add_u32 {vr(vPw)}, {vr(vG)}, 3, {vr(vPw)}')
    a(f's_lshl_b32 s6, s{sW}, 10'); a(f's_add_u32 s6, s6, {PB}'); a(f'v_add_u32 {vr(vPw)}, s6, {vr(vPw)}')
    a(f'v_mul_u32_u24 {vr(vQ)}, {QROW}, {vr(vI)}'); a(f'v_lshl_add_u32 {vr(vQ)}, {vr(vG)}, 4, {vr(vQ)}'); a(f'v_add_u32 {vr(vQ)}, {SQ}, {vr(vQ)}')
    a(f's_mul_i32 s6, s{sW}, {4*QROW}'); a(f's_add_u32 s6, s6, {SQ}'); a(f'v_add_u32 {vr(vQw)}, s6, {vr(vL16)}')
    a(f'v_add_u32 {vr(vCw)}, s{sM0}, {vr(vL16)}'); a(f'v_add_u32 {vr(vCw+1)}, {CB}, {vr(vCw)}')
    a(f'v_mov_b32 {vr(vC)}, {f2u(SCALE):#x}')
    for r in (mQ, mQ + 1, mP): a(f'v_mov_b32 {vr(r)}, 0xff800000')
    a(f'v_mov_b32 {vr(lQ)}, 0'); a(f'v_mov_b32 {vr(lQ+1)}, 0')
    vm.wait('q')
    a(f's_mov_b32 s7, {cfg.spin_max}')
    a('Q_chk:')
    umax_tree(tt, range(CF, CF + 32))
    a(f'v_cmp_eq_u32 vcc, -1, {vr(tt)}')
    a('s_cbranch_vccz Q_ok')
    a(f's_sleep {cfg.qsleep}')
    q_loads(a)
    a('s_waitcnt vmcnt(0)')
    a('s_sub_u32 s7, s7, 1'); a('s_cmp_lg_u32 s7, 0'); a('s_cbranch_scc1 Q_chk')
    a('Q_ok:')
    stamp(3)
    for nt in range(2):
        a('s_barrier')
        for k in range(4): a(f'ds_write_b128 {vr(vQw)}, {vr(CF+16*nt+4*k,4)} offset:{QROW*k}')
        a('s_waitcnt lgkmcnt(0)'); a('s_barrier')
        for ks in range(16): a(f'ds_read_b128 {ar(64*nt+4*ks,4)}, {vr(vQ)} offset:{64*ks}')
        a('s_waitcnt lgkmcnt(0)')
    for rho in range(4):
        par = rho & 1
        for ks in range(16):
            a(f'ds_read_b128 {vr(CF+4*ks,4)}, {vr(vA+par)} offset:{64*ks}')
        for ks in range(16):
            a(f's_waitcnt lgkmcnt({15-ks})')
            for nt in range(2):
                c = '0' if ks == 0 else vr(S + 4 * nt, 4)
                a(f'v_mfma_f32_16x16x32_bf16 {vr(S+4*nt,4)}, {vr(CF+4*ks,4)}, {ar(64*nt+4*ks,4)}, {c}')
        for nt in range(2):
            a(f'v_max_f32 {vr(Mx+nt)}, {vr(S+4*nt)}, {vr(S+4*nt+1)}')
            a(f'v_max3_f32 {vr(Mx+nt)}, {vr(Mx+nt)}, {vr(S+4*nt+2)}, {vr(S+4*nt+3)}')
            allred_rows(Mx + nt, tt, 'v_max_f32')
            a(f'ds_write_b32 {vr(vMw)}, {vr(Mx+nt)} offset:{256*nt}')
        a('s_waitcnt lgkmcnt(0)'); a('s_barrier')
        a(f'ds_read_b128 {vr(MXR,4)}, {vr(vMr)}'); a(f'ds_read_b128 {vr(MXR+4,4)}, {vr(vMr)} offset:256'); a(f'ds_read_b128 {vr(MXR+8,4)}, {vr(vMp)}')
        if 1 <= rho <= 2:
            vm.wait(('c', rho + 1))
            for k in range(16): a(f'ds_write_b128 {vr(vCw+1-par)}, {ar(64*(rho+1)+4*k,4)} offset:{k*CROW}')
            a('s_waitcnt lgkmcnt(15)')
        else:
            a('s_waitcnt lgkmcnt(0)')
        for i, (m, al) in enumerate(((mQ, aQ), (mQ + 1, aQ + 1), (mP, aP))):
            R = MXR + 4 * i
            a(f'v_max_f32 {vr(R)}, {vr(R)}, {vr(R+1)}'); a(f'v_max3_f32 {vr(R)}, {vr(R)}, {vr(R+2)}, {vr(R+3)}')
            a(f'v_mul_f32 {vr(R)}, {vr(R)}, {vr(vC)}'); a(f'v_max_f32 {vr(R)}, {vr(R)}, {vr(m)}')
            a(f'v_sub_f32 {vr(al)}, {vr(m)}, {vr(R)}'); a(f'v_exp_f32 {vr(al)}, {vr(al)}'); a(f'v_mov_b32 {vr(m)}, {vr(R)}')
        for nt in range(2):
            for r in range(4):
                a(f'v_fma_f32 {vr(S+4*nt+r)}, {vr(S+4*nt+r)}, {vr(vC)}, -{vr(mQ+nt)}')
            for r in range(4): a(f'v_exp_f32 {vr(S+4*nt+r)}, {vr(S+4*nt+r)}')
            a(f'v_mul_f32 {vr(lQ+nt)}, {vr(lQ+nt)}, {vr(aQ+nt)}')
            a(f'v_cvt_pk_bf16_f32 {vr(PK+2*nt)}, {vr(S+4*nt)}, {vr(S+4*nt+1)}'); a(f'v_cvt_pk_bf16_f32 {vr(PK+2*nt+1)}, {vr(S+4*nt+2)}, {vr(S+4*nt+3)}')
            a(f'ds_write_b64 {vr(vPw)}, {vr(PK+2*nt,2)} offset:{512*nt}')
            for r in range(4): a(f'v_add_f32 {vr(lQ+nt)}, {vr(lQ+nt)}, {vr(S+4*nt+r)}')
        if rho > 0:
            for r in range(64): a(f'v_mul_f32 {vr(ACC+r)}, {vr(ACC+r)}, {vr(aP)}')
        a('s_waitcnt lgkmcnt(0)'); a('s_barrier')
        for ks in range(4): a(f'ds_read_b128 {vr(PF+4*ks,4)}, {vr(vPr)} offset:{1024*ks}')
        for ks in range(4):
            for ct in range(4):
                for sec in range(2):
                    a(f'ds_read_b64_tr_b16 {vr(CF+16*ks+4*ct+2*sec,2)}, {vr(vTr+par)} offset:{(16*ks+4*sec)*CROW + 64*ct}')
        for ks in range(4):
            a(f's_waitcnt lgkmcnt({min(15, 8*(3-ks))})')
            for ct in range(4):
                c = '0' if (rho == 0 and ks == 0) else vr(ACC + 16 * ct, 16)
                a(f'v_mfma_f32_32x32x16_bf16 {vr(ACC+16*ct,16)}, {vr(CF+16*ks+4*ct,4)}, {vr(PF+4*ks,4)}, {c}')
    stamp(4)
    for nt in range(2):
        allred_rows(lQ + nt, tt, 'v_add_f32')
        a(f'ds_write_b32 {vr(vMw)}, {vr(lQ+nt)} offset:{512+256*nt}')
    TROW = 1040
    a(f'v_and_b32 {vr(t0)}, 31, {vr(vLane)}'); a(f'v_mul_u32_u24 {vr(t0)}, {TROW}, {vr(t0)}')
    a(f'v_lshrrev_b32 {vr(t1)}, 5, {vr(vLane)}'); a(f'v_lshl_add_u32 {vr(t0)}, {vr(t1)}, 3, {vr(t0)}')
    a(f's_lshl_b32 s6, s{sW}, 8'); a(f'v_add_u32 {vr(t0)}, s6, {vr(t0)}')
    for ct in range(4):
        for rq in range(4):
            R = ACC + 16 * ct + 4 * rq; P = CF + 2 * (4 * ct + rq)
            a(f'v_cvt_pk_bf16_f32 {vr(P)}, {vr(R)}, {vr(R+1)}'); a(f'v_cvt_pk_bf16_f32 {vr(P+1)}, {vr(R+2)}, {vr(R+3)}')
            a(f'ds_write_b64 {vr(t0)}, {vr(P,2)} offset:{64*ct+16*rq}')
    a('s_waitcnt lgkmcnt(0)'); a('s_barrier')
    a(f's_mul_i32 s6, s{sW}, {8*TROW}'); a(f'v_add_u32 {vr(t0)}, s6, {vr(vL16)}')
    for k in range(8): a(f'ds_read_b128 {vr(CF+32+4*k,4)}, {vr(t0)} offset:{k*TROW}')
    a(f'ds_read_b128 {vr(MXR,4)}, {vr(vMp)} offset:512')
    a(f's_lshl_b32 s7, s{sW}, 19'); a(f's_lshl_b32 s6, s{sBeta}, 10'); a('s_add_u32 s7, s7, s6'); a(f's_add_u32 s7, s7, {PART if not cfg.bskip & 16 else OOB}')
    if cfg.emu & 4:
        a(f's_cmp_eq_u32 s{sHalf}, 1'); a(f's_cselect_b32 s7, {OOB}, s7')
    for k in range(8):
        a(f's_waitcnt lgkmcnt({8-k})')
        a(f's_add_u32 s6, s7, {k*65536}')
        a(f'buffer_store_dwordx4 {vr(CF+32+4*k,4)}, {vr(vL16)}, {srd(S_WS)}, s6 offen {cfg.pst_flags}')
    a('s_waitcnt lgkmcnt(0)')
    a(f'v_add_f32 {vr(MXR)}, {vr(MXR)}, {vr(MXR+1)}'); a(f'v_add_f32 {vr(MXR+2)}, {vr(MXR+2)}, {vr(MXR+3)}')
    a(f'v_add_f32 {vr(PK+1)}, {vr(MXR)}, {vr(MXR+2)}'); a(f'v_mov_b32 {vr(PK)}, {vr(mP)}')
    a(f'v_and_b32 {vr(t0)}, 31, {vr(vLane)}'); a(f'v_lshrrev_b32 {vr(t1)}, 5, {vr(vLane)}')
    a(f'v_lshl_add_u32 {vr(t0)}, {vr(t0)}, 1, {vr(t1)}'); a(f'v_lshlrev_b32 {vr(t0)}, 9, {vr(t0)}')
    a(f's_lshl_b32 s6, s{sBeta}, 3'); a(f's_add_u32 s6, s6, {PSTAT}')
    a(f'v_min_u32 {vr(PK)}, -2, {vr(PK)}'); a(f'v_min_u32 {vr(PK+1)}, -2, {vr(PK+1)}')
    a('s_waitcnt vmcnt(0)'); a('s_barrier')
    Ls = lab('nops')
    a(f's_cmp_lg_u32 s{sW}, 0'); a(f's_cbranch_scc1 {Ls}')
    if cfg.pshare: a('s_mov_b64 exec, 0xffffffff')
    a(f'buffer_store_dwordx2 {vr(PK,2)}, {vr(t0)}, {srd(S_WS)}, s6 offen sc1')
    if cfg.pshare: a('s_mov_b64 exec, -1')
    a(f'{Ls}:')
    stamp(5)
    if cfg.bstop == 2: a('s_branch B_end')
    V = VAlloc(base)
    UB = 73728; OT = UB + 65536; RED = OT + 2048
    AF = V(64, 4); BF = V(32, 4); D = V(36, 4); F = V(4); ST = V(2); Mx = V(); Lx = V(); vU = V(2); vR = V(4); vT = V(4); PA = V(8, 4); O = V(12, 4)
    a(f's_mul_i32 s6, s{sBeta}, 73728'); mk_srd(S_WO, P_BWO, 's6', 73728)
    a(f's_lshl_b32 s6, s{sBeta}, 7'); a(f's_sub_u32 s7, {512*8192}, s6'); mk_srd(S_U, P_WUV, 's6', 's7')
    for bit, Rr in ((64, S_U), (128, S_WO)):
        if cfg.bskip & bit: a(f's_mov_b32 s{Rr+2}, 0')
    a(f'v_lshrrev_b32 {vr(t0)}, 3, {vr(vLane)}'); a(f'v_and_b32 {vr(t1)}, 7, {vr(vLane)}')
    a(f'v_and_b32 {vr(t2)}, 2, {vr(t0)}'); a(f'v_xor_b32 {vr(t1)}, {vr(t1)}, {vr(t2)}')
    a(f'v_lshlrev_b32 {vr(t0)}, 13, {vr(t0)}')
    a(f'v_lshl_add_u32 {vr(vU)}, {vr(t1)}, 4, {vr(t0)}')
    a(f'v_xor_b32 {vr(t1)}, 4, {vr(t1)}'); a(f'v_lshl_add_u32 {vr(vU+1)}, {vr(t1)}, 4, {vr(t0)}')
    a(f's_lshl_b32 s{sM0}, s{sW}, 14'); a(f's_lshl_b32 s{sSo}, s{sW}, 20')
    if cfg.emu & 2:
        a(f's_lshl_b32 s6, s{sH}, 8'); a(f's_lshl_b32 s7, s{sHalf}, 21'); a('s_add_u32 s6, s6, s7'); a(f's_sub_u32 s7, {512*8192}, s6'); mk_srd(S_U, P_WUV, 's6', 's7')
        a(f'v_lshlrev_b32 {vr(vU)}, 13, {vr(vG)}'); a(f'v_lshl_add_u32 {vr(vU)}, {vr(vI)}, 4, {vr(vU)}'); a(f'v_mov_b32 {vr(vU+1)}, {vr(vU)}')
        a(f's_lshl_b32 s{sSo}, s{sW}, 19')
    for k in range(16):
        a(f's_add_u32 m0, s{sM0}, {UB + k*1024}'); a(f's_add_u32 s6, s{sSo}, {k*(32768 if cfg.emu & 2 else 65536)}')
        a(f'buffer_load_dwordx4 {vr(vU+(k&1))}, {srd(S_U)}, s6 offen {fl} lds')
    a(f's_mul_i32 s{sM0}, s{sW}, 18432')
    for k in range(18):
        a(f's_add_u32 s6, s{sM0}, {k*1024}'); a('s_mov_b32 m0, s6')
        a(f'buffer_load_dwordx4 {vr(vL16)}, {srd(S_WO)}, s6 offen {fl} lds')
    mk_wo_tr_addr(vLane, vT, t0, t1, False)
    a(f'v_bfe_u32 {vr(t0)}, {vr(vLane)}, 2, 2'); a(f'v_lshl_add_u32 {vr(t0)}, {vr(vG)}, 3, {vr(t0)}'); a(f'v_lshlrev_b32 {vr(t0)}, 7, {vr(t0)}')
    a(f'v_and_b32 {vr(t1)}, 3, {vr(vLane)}'); a(f'v_lshl_add_u32 {vr(t0)}, {vr(t1)}, 3, {vr(t0)}'); a(f'v_add_u32 {vr(t0)}, {UB}, {vr(t0)}')
    a(f'v_bfe_u32 {vr(t1)}, {vr(vLane)}, 3, 2')
    for t in range(4):
        a(f'v_xor_b32 {vr(t2)}, {t}, {vr(t1)}'); a(f'v_lshl_add_u32 {vr(vR+t)}, {vr(t2)}, 5, {vr(t0)}')
    a(f'v_lshlrev_b32 {vr(t0)}, 10, {vr(vI)}'); a(f'v_lshl_add_u32 {vr(t0)}, {vr(vG)}, 4, {vr(t0)}')
    a(f'v_lshlrev_b32 {vr(t1)}, 3, {vr(vI)}')
    a(f's_lshl_b32 s6, s{sH}, 10' if cfg.pshare else f's_lshl_b32 s6, s{sBeta}, 9'); a(f's_lshl_b32 s7, s{sW}, 7'); a('s_add_u32 s6, s6, s7'); a(f's_add_u32 s6, s6, {PSTAT}')
    a(f's_mov_b32 s7, {cfg.spin_max}')
    a('P_poll:')
    a(f'buffer_load_dwordx2 {vr(ST,2)}, {vr(t1)}, {srd(S_WS)}, s6 offen sc1')
    a('s_waitcnt vmcnt(0)')
    a(f'v_max_u32 {vr(Mx)}, {vr(ST)}, {vr(ST+1)}'); a(f'v_cmp_eq_u32 vcc, -1, {vr(Mx)}')
    a('s_cbranch_vccz P_ok')
    a(f's_sleep {cfg.psleep}')
    a('s_sub_u32 s7, s7, 1'); a('s_cmp_lg_u32 s7, 0'); a('s_cbranch_scc1 P_poll')
    a('P_ok:')
    stamp(6)
    vm = VM(a)
    a(f's_lshl_b32 s6, s{sH}, 16'); a(f's_lshl_b32 s7, s{sW}, 14'); a('s_add_u32 s6, s6, s7'); a(f's_add_u32 s6, s6, {PART if not cfg.bskip & 256 else OOB}')
    if cfg.emu & 4:
        a(f's_cmp_eq_u32 s{sHalf}, 1'); a(f's_cselect_b32 s6, {OOB}, s6')
    for ks in range(16):
        if cfg.emu & 4:
            vm.issue(f'buffer_load_dwordx4 {vr(AF+4*ks,4)}, {vr(vL16)}, {srd(S_WS)}, s6 offen offset:{2048*(ks&1)} sc1', ('a', ks))
            if ks & 1: a(f's_add_u32 s6, s6, {4096 if ks != 7 else OOB}')
            continue
        if cfg.bskip & 512:
            vm.issue(f'buffer_load_dwordx4 {vr(AF+4*ks,4)}, {vr(vL16)}, {srd(S_WS)}, s6 offen offset:{1024*(ks&3)} sc1', ('a', ks))
            if ks & 3 == 3: a('s_add_u32 s6, s6, 4096')
            continue
        vm.issue(f'buffer_load_dwordx4 {vr(AF+4*ks,4)}, {vr(t0)}, {srd(S_WS)}, s6 offen offset:{64*ks} {cfg.pld_flags}', ('a', ks))
    a('s_barrier')
    wo_frag_reads(2, vT)
    a(f'v_mov_b32 {vr(Mx)}, {vr(ST)}')
    for sh in (8, 4, 2, 1): a(f'v_max_f32_dpp {vr(Mx)}, {vr(Mx)}, {vr(Mx)} row_ror:{sh} {DPPF}')
    a(f'v_sub_f32 {vr(ST)}, {vr(ST)}, {vr(Mx)}'); a(f'v_exp_f32 {vr(ST)}, {vr(ST)}')
    a(f'v_mul_f32 {vr(Lx)}, {vr(ST)}, {vr(ST+1)}')
    for sh in (8, 4, 2, 1): a(f'v_add_f32_dpp {vr(Lx)}, {vr(Lx)}, {vr(Lx)} row_ror:{sh} {DPPF}')
    a(f'v_rcp_f32 {vr(Lx)}, {vr(Lx)}'); a(f'v_mul_f32 {vr(ST)}, {vr(ST)}, {vr(Lx)}')
    for r in range(4):
        for q in range(4):
            a(f'v_mov_b32_dpp {vr(F+r)}, {vr(ST)} row_newbcast:{4*q+r} row_mask:{1<<q:#x} bank_mask:0xf')
    a('s_waitcnt lgkmcnt(0)')
    def u_reads(ks):
        for t in range(4):
            for sec in range(2):
                a(f'ds_read_b64_tr_b16 {vr(BF+16*(ks&1)+4*t+2*sec,2)}, {vr(vR+t)} offset:{(32*ks+4*sec)*128}')
    u_reads(0)
    for ks in range(16):
        if ks + 1 < 16: u_reads(ks + 1)
        vm.wait(('a', ks))
        a(f's_waitcnt lgkmcnt({8 if ks + 1 < 16 else 0})')
        for t in range(4):
            c = '0' if ks == 0 else vr(D + 4 * t, 4)
            a(f'v_mfma_f32_16x16x32_bf16 {vr(D+4*t,4)}, {vr(AF+4*ks,4)}, {vr(BF+16*(ks&1)+4*t,4)}, {c}')
    a(f'v_lshlrev_b32 {vr(t0)}, 7, {vr(vG)}'); a(f'v_lshl_add_u32 {vr(t0)}, {vr(vI)}, 1, {vr(t0)}')
    a(f's_lshl_b32 s6, s{sW}, 9'); a(f's_add_u32 s6, s6, {OT}'); a(f'v_add_u32 {vr(t0)}, s6, {vr(t0)}')
    for t in range(4):
        a(f'v_mul_f32 {vr(O+t)}, {vr(F)}, {vr(D+4*t)}')
        for r in range(1, 4): a(f'v_fma_f32 {vr(O+t)}, {vr(F+r)}, {vr(D+4*t+r)}, {vr(O+t)}')
        a(f'v_cvt_pk_bf16_f32 {vr(O+t)}, {vr(O+t)}, {vr(O+t)}')
        a(f'ds_write_b16 {vr(t0)}, {vr(O+t)} offset:{32*t}')
    a(f'v_lshlrev_b32 {vr(t1)}, 7, {vr(vI)}'); a(f'v_lshl_add_u32 {vr(t1)}, {vr(vG)}, 4, {vr(t1)}'); a(f'v_add_u32 {vr(t1)}, {OT}, {vr(t1)}')
    if cfg.dyn:
        a(f'v_mov_b32 {vr(vC0)}, {RED}'); a(f'v_mov_b32 {vr(t2)}, 0'); a(f'ds_write_b32 {vr(vC0)}, {vr(t2)}')
    a('s_waitcnt lgkmcnt(0)'); a('s_barrier')
    for ks in range(2): a(f'ds_read_b128 {vr(PA+4*ks,4)}, {vr(t1)} offset:{64*ks}')
    a(f'v_mul_u32_u24 {vr(t0)}, {64*2304}, {vr(vG)}')
    a(f'v_and_b32 {vr(t1)}, 3, {vr(vLane)}'); a(f'v_bfe_u32 {vr(t2)}, {vr(vLane)}, 2, 2')
    a(f'v_lshl_add_u32 {vr(t1)}, {vr(t1)}, 2, {vr(t2)}'); a(f'v_lshl_add_u32 {vr(t1)}, {vr(t1)}, 2, {vr(t0)}')
    a(f'v_lshl_add_u32 {vr(t0)}, {vr(vI)}, 4, {vr(t0)}')
    a(f's_mul_i32 s6, s{sBeta}, 2304'); a(f's_mul_i32 s7, s{sW}, 576'); a('s_add_u32 s6, s6, s7'); a(f's_add_u32 s6, s6, {YB}')
    a('s_waitcnt lgkmcnt(0)')
    for t in range(9):
        for ks in range(2):
            c = '0' if ks == 0 else vr(D + 4 * t, 4)
            a(f'v_mfma_f32_16x16x32_bf16 {vr(D+4*t,4)}, {vr(PA+4*ks,4)}, {ar(AW+4*(t*2+ks),4)}, {c}')
    for t in range(9):
        a(f'v_add_f32 {vr(D+4*t)}, {vr(D+4*t)}, {vr(D+4*t+1)}'); a(f'v_add_f32 {vr(D+4*t+2)}, {vr(D+4*t+2)}, {vr(D+4*t+3)}')
        a(f'v_add_f32 {vr(O+t)}, {vr(D+4*t)}, {vr(D+4*t+2)}'); a(f'v_min_u32 {vr(O+t)}, -2, {vr(O+t)}')
    a(f'buffer_store_dwordx4 {vr(O,4)}, {vr(t0)}, {srd(S_WS)}, s6 offen sc1')
    a(f'buffer_store_dwordx4 {vr(O+4,4)}, {vr(t0)}, {srd(S_WS)}, s6 offen offset:256 sc1')
    a(f'buffer_store_dword {vr(O+8)}, {vr(t1)}, {srd(S_WS)}, s6 offen offset:512 sc1')
    stamp(7)
    if cfg.bstop == 3: a('s_branch B_end')
    gen_final(vLane, vG, t0, t1, vC0, sHalf, sBeta, base)


class Mon:
    sX, sG, sDl, sO, sS = 16, 17, 18, 19, 22
    def __init__(self, r):
        self.PG = r; self.vP, self.vA, self.vB, self.S = r + 4, r + 5, r + 6, r + 7
    def init(self, vLane, sBeta):
        GL = PROG + 2 * TFO; vP, vA = self.vP, self.vA
        assert 8 * cfg.pxs <= TFO
        a(f's_lshr_b32 s{self.sX}, s{sBeta}, 3'); a(f's_mul_i32 s{self.sG}, s{self.sX}, {cfg.pxs}')
        a(f'v_and_b32 {vr(vP)}, 7, {vr(vLane)}'); a(f'v_mul_u32_u24 {vr(vP)}, {cfg.psp}, {vr(vP)}')
        a(f'v_add_u32 {vr(vP)}, s{self.sG}, {vr(vP)}'); a(f'v_add_u32 {vr(vP)}, {PROG}, {vr(vP)}')
        a(f'v_and_b32 {vr(vA)}, {cfg.mref-1}, {vr(vLane)}')
        if cfg.mref == 4: a(f's_and_b32 s6, s{self.sX}, 4'); a(f'v_add_u32 {vr(vA)}, s6, {vr(vA)}')
        a(f'v_mul_u32_u24 {vr(vA)}, {128 if cfg.msh else cfg.pxs}, {vr(vA)}'); a(f'v_add_u32 {vr(vA)}, {GL}, {vr(vA)}')
        if cfg.msh: a(f's_lshl_b32 s{self.sG}, s{self.sX}, 7'); a('s_mov_b32 s23, -1')
        a(f's_add_u32 s{self.sG}, s{self.sG}, {GL}')
        a(f's_mov_b32 s{self.sDl}, 0')
    def loads(self):
        if cfg.mrate: a('s_memrealtime s[24:25]')
        a(f'buffer_load_dwordx3 {vr(self.PG,3)}, {vr(self.vP)}, {srd(S_WS)}, 0 offen sc1')
        if cfg.msh:
            a('s_waitcnt lgkmcnt(0)'); a(f'v_mov_b32 {vr(self.S)}, s24'); a(f'v_subrev_u32 {vr(self.S)}, {1 << cfg.msh}, {vr(self.S)}')
            a(f'v_bfe_u32 {vr(self.S)}, {vr(self.S)}, {cfg.msh}, 5'); a(f'v_mul_u32_u24 {vr(self.S)}, {cfg.gls}, {vr(self.S)}')
            a(f'v_add_u32 {vr(self.S)}, {vr(self.S)}, {vr(self.vA)}')
            a(f'buffer_load_dword {vr(self.vB)}, {vr(self.S)}, {srd(S_WS)}, 0 offen sc1')
        elif not cfg.cdbg & 8: a(f'buffer_load_dword {vr(self.vB)}, {vr(self.vA)}, {srd(S_WS)}, 0 offen sc1')
    def step(self):
        PG, vP, vB, S, sX, sG, sDl, sO, sS = self.PG, self.vP, self.vB, self.S, self.sX, self.sG, self.sDl, self.sO, self.sS
        Ln = lab('mnext')
        a(f'v_min3_i32 {vr(S)}, {vr(PG)}, {vr(PG+1)}, {vr(PG+2)}'); a(f'v_cmp_gt_i32 vcc, 0, {vr(S)}')
        a(f's_mov_b32 s{sS}, 0'); a(f's_cbranch_vccnz {Ln}')
        a(f'v_add3_u32 {vr(S)}, {vr(PG)}, {vr(PG+1)}, {vr(PG+2)}')
        for sh in (4, 2, 1): a(f'v_add_u32_dpp {vr(S)}, {vr(S)}, {vr(S)} row_ror:{sh} {DPPF}')
        a(f'v_lshlrev_b32 {vr(S)}, 3, {vr(S)}')
        a(f'v_readfirstlane_b32 s{sS}, {vr(S)}')
        if cfg.mrate:
            assert cfg.mrate % 2 == 0
            a('s_waitcnt lgkmcnt(0)'); a(f's_mul_i32 s6, s24, {cfg.mrate}'); a(f's_sub_u32 s{sO}, s{sS}, s6'); a(f'v_mov_b32 {vr(S)}, s{sO}')
        if cfg.msh:
            Lk = lab('same')
            a(f's_bfe_u32 s6, s24, {(5 << 16) | cfg.msh:#x}'); a('s_cmp_eq_u32 s6, s23'); a(f's_cbranch_scc1 {Lk}')
            a('s_mov_b32 s23, s6'); a(f's_mul_i32 s6, s6, {cfg.gls}'); a(f's_add_u32 s6, s6, s{sG}')
            a('s_mov_b64 exec, 1')
            a(f'buffer_store_dword {vr(S)}, off, {srd(S_WS)}, s6 {cfg.gl_flags}')
            a('s_mov_b64 exec, -1')
            a(f'{Lk}:')
        else:
            a('s_mov_b64 exec, 1')
            if not cfg.cdbg & 4: a(f'buffer_store_dword {vr(S)}, off, {srd(S_WS)}, s{sG} {cfg.gl_flags}')
            a('s_mov_b64 exec, -1')
        if cfg.msh or not cfg.mrate: a(f'v_readlane_b32 s{sO}, {vr(vB)}, s{sX}')
        a(f'v_cmp_eq_u32 vcc, -1, {vr(vB)}')
        a(f's_cbranch_vccnz {Ln}')
        a(f'v_subrev_u32 {vr(vB)}, s{sO}, {vr(vB)}')
        for sh in (4, 2, 1): a(f'v_add_u32_dpp {vr(vB)}, {vr(vB)}, {vr(vB)} row_ror:{sh} {DPPF}')
        a(f'v_readfirstlane_b32 s6, {vr(vB)}')
        a('s_ashr_i32 s6, s6, 3')
        a(f's_sub_i32 s6, s6, s{sDl}'); a(f's_ashr_i32 s6, s6, {cfg.mf}'); a(f's_add_i32 s{sDl}, s{sDl}, s6')
        a(f's_mul_i32 s6, s{sS}, {cfg.mal}'); a('s_ashr_i32 s6, s6, 2'); a(f's_add_i32 s6, s6, s{sDl}'); a(f's_add_i32 s6, s6, {cfg.mth}')
        a(f's_add_i32 s{sO}, s6, {cfg.mth2 - cfg.mth}')
        if cfg.tforce: a(f's_lshr_b32 s6, {cfg.tforce}, s{sX}'); a('s_lshl_b32 s6, s6, 31'); a('s_or_b32 s6, s6, 0x100000')
        for j in range(3):
            a(f'v_mul_u32_u24 {vr(S)}, {48 * cfg.mal}, {vr(PG+j)}'); a(f'v_cmp_lt_i32 vcc, s6, {vr(S)}')
            a(f'v_cndmask_b32 {vr(PG+j)}, 0, 1, vcc')
            a(f'v_cmp_lt_i32 vcc, s{sO}, {vr(S)}'); a(f'v_cndmask_b32 {vr(PG+j)}, {vr(PG+j)}, 2, vcc')
        a('s_mov_b64 exec, 0xff'); a(f's_mov_b32 s6, {TFO}')
        a(f'buffer_store_dwordx3 {vr(PG,3)}, {vr(vP)}, {srd(S_WS)}, s6 offen')
        a('s_mov_b64 exec, -1'); a('s_nop 1')
        a(f'{Ln}:')

def gen_CD():
    V = VAlloc(1)
    vLane = V(); vL16 = V(); vWoff = V(); vXoff = V(); t0 = V(); t1 = V(); t2 = V(); vI = V(); vG = V(); vL16x = V(); vC0 = V()
    base = V.n
    sHalf, sBeta, sB2, sCh, sM0, sSo = 8, 9, 10, 11, 12, 13
    FLAG = LDS_TOTAL - 16
    NCH = cfg.nch; LC = NCH.bit_length() - 1; RORS = (4, 2, 1)[3 - LC:]
    fl = cfg.b_flags; SQ_ = globals()['SQ']
    def flag_init():
        if cfg.dyn:
            a(f'v_mov_b32 {vr(vC0)}, {FLAG}'); a(f'v_mov_b32 {vr(t2)}, 0'); a(f'ds_write_b32 {vr(vC0)}, {vr(t2)}')
    a('B_role:')
    if cfg.noB: a('s_endpgm')
    a(f's_mov_b32 s{sHalf}, s{sR}')
    a(f's_lshl_b32 s{sBeta}, s{sH}, 1'); a(f's_add_u32 s{sBeta}, s{sBeta}, s{sHalf}')
    a(f'v_and_b32 {vr(vLane)}, 63, v0'); a(f'v_lshlrev_b32 {vr(vL16)}, 4, {vr(vLane)}')
    a(f'v_lshrrev_b32 {vr(vG)}, 4, {vr(vLane)}'); a(f'v_and_b32 {vr(vI)}, 15, {vr(vLane)}')
    a(f's_cmp_eq_u32 s{sHalf}, 1'); a('s_cbranch_scc1 D_role')
    if cfg.warm & 2: warm_code('', 'D_role', vLane, t0, t1, 1)
    QRED = 147456; XB = QRED; XS = 1040; OT = QRED + 8192; OS = 272
    assert OT + 16 * OS <= FLAG
    MASK = V(4); SEL = V(8); X0 = V(20, 4); X1 = V(20, 4); PA = V(16, 4); AC0 = V(4, 4); AC1 = V(4, 4)
    UK = V(128, 4); QB = V(16, 4); T = V(4); XX = V(2); vUoff = V(); vT = V(4); E8 = V(8, 4)
    D = X0; U = PA
    a(f'v_mul_u32_u24 {vr(vWoff)}, {36*8192}, {vr(vG)}'); a(f'v_lshl_add_u32 {vr(vWoff)}, {vr(vI)}, 4, {vr(vWoff)}')
    a(f'v_mul_u32_u24 {vr(vXoff)}, 72, {vr(vG)}'); a(f'v_lshrrev_b32 {vr(t1)}, 3, {vr(vI)}')
    a(f'v_mul_u32_u24 {vr(t1)}, 1152, {vr(t1)}'); a(f'v_add_u32 {vr(vXoff)}, {vr(vXoff)}, {vr(t1)}')
    a(f'v_lshlrev_b32 {vr(vUoff)}, 17, {vr(vG)}'); a(f'v_lshl_add_u32 {vr(vUoff)}, {vr(vI)}, 4, {vr(vUoff)}')
    a('s_waitcnt lgkmcnt(0)')
    a(f's_mul_i32 s6, s{sW}, 288'); a('s_sub_u32 s7, 4608, s6'); mk_srd(S_X, P_BX, 's6', 's7')
    a(f's_mul_i32 s6, s{sW}, {144*8192}'); a(f's_lshl_b32 s7, s{sH}, 8'); a('s_add_u32 s6, s6, s7')
    a(f's_sub_u32 s7, {576*8192}, s6'); mk_srd(S_W, P_BWQ, 's6', 's7')
    vm = VM(a, 62)
    x_loads(vm, X0, vXoff, 0); x_loads(vm, X1, vXoff, 2304)
    for jj in range(36): wunit_load(vm, jj, vWoff, cfg.bwq_flags)
    a(f's_lshl_b32 s6, s{sW}, 20'); a(f's_lshl_b32 s7, s{sH}, 8'); a('s_add_u32 s6, s6, s7'); a(f's_sub_u32 s7, {512*8192}, s6')
    mk_srd(S_U, P_WUK, 's6', 's7'); mk_srd(S_K, P_WUV, 's6', 's7')
    def uk_load(u):
        a(f's_mov_b32 s6, {(64*(u>>4) + (u&15))*8192}')
        vm.issue(f'buffer_load_dwordx4 {vr(UK+4*u,4)}, {vr(vUoff)}, {srd(S_U)}, s6 offen {fl}', ('u', u))
    for u in range(12): uk_load(u)
    mk_srd(S_WS, P_WS, None, WS_USED); mk_srd(S_DBG, P_DBG, None, 256); mk_srd(S_OUT, P_OUT, None, 9216)
    a(f's_mul_i32 s6, s{sH}, 147456'); mk_srd(S_WO, P_BWO, 's6', 147456)
    mk_masks(vLane, MASK, SEL, t0, t1)
    mk_wo_tr_addr(vLane, vT, t0, t1, True)
    a(f's_mul_i32 s{sM0}, s{sW}, 36864')
    nd = [0]
    def wo_dma():
        k = nd[0]; nd[0] += 1
        if k % 4 == 0:
            if k: a(f's_add_u32 s{sM0}, s{sM0}, 4096')
            a(f's_mov_b32 m0, s{sM0}')
        vm.issue(f'buffer_load_dwordx4 {vr(vL16)}, {srd(S_WO)}, s{sM0} offen offset:{1024*(k%4)} {fl} lds', 'wo')
    nu = 12
    for jj in range(36):
        vm.wait(('w', jj))
        wunit_mfma(jj, [X0, X1], [AC0, AC1], SEL, PA)
        if nu < 32: uk_load(nu); nu += 1
        elif nu == 32: vm.issue(f'buffer_load_dword {vr(vC0)}, off, {srd(S_DBG)}, 0 offset:{C0} sc1', 'c0'); nu += 1
        elif nd[0] < cfg.cpre: wo_dma()
    stamp(3)
    a(f'v_lshlrev_b32 {vr(t0)}, 5, {vr(vI)}')
    a(f'v_and_b32 {vr(t1)}, 1, {vr(vG)}'); a(f'v_lshl_add_u32 {vr(t1)}, {vr(t1)}, 4, {vr(t0)}')
    a(f'v_lshrrev_b32 {vr(t2)}, 5, {vr(vLane)}'); a(f'v_lshl_add_u32 {vr(t1)}, {vr(t2)}, 9, {vr(t1)}')
    a(f's_lshl_b32 s6, s{sW}, 11'); a(f's_add_u32 s6, s6, {QRED}'); a(f'v_add_u32 {vr(t1)}, s6, {vr(t1)}')
    a(f'ds_write_b128 {vr(t1)}, {vr(AC0,4)}'); a(f'ds_write_b128 {vr(t1)}, {vr(AC1,4)} offset:1024')
    a(f'v_add_u32 {vr(t0)}, {QRED}, {vr(t0)}')
    a('s_waitcnt lgkmcnt(0)'); a('s_barrier')
    for b in range(4):
        for w in range(4):
            a(f'ds_read_b128 {vr(D+8*w,4)}, {vr(t0)} offset:{2048*w+512*b}')
            a(f'ds_read_b128 {vr(D+8*w+4,4)}, {vr(t0)} offset:{2048*w+512*b+16}')
        a('s_waitcnt lgkmcnt(0)')
        for e in range(8):
            a(f'v_add_f32 {vr(D+e)}, {vr(D+e)}, {vr(D+8+e)}'); a(f'v_add_f32 {vr(D+16+e)}, {vr(D+16+e)}, {vr(D+24+e)}')
        for e in range(8): a(f'v_add_f32 {vr(D+e)}, {vr(D+e)}, {vr(D+16+e)}')
        for k in range(4): a(f'v_cvt_pk_bf16_f32 {vr(QB+4*b+k)}, {vr(D+2*k)}, {vr(D+2*k+1)}')
    a(f'v_bfe_u32 {vr(t0)}, {vr(vLane)}, 2, 2'); a(f'v_mul_u32_u24 {vr(t0)}, {8 * SQ_}, {vr(t0)}')
    a(f'v_lshl_add_u32 {vr(t0)}, {vr(vG)}, 5, {vr(t0)}')
    a(f'v_and_b32 {vr(t1)}, 1, {vr(vLane)}'); a(f'v_lshl_add_u32 {vr(t0)}, {vr(t1)}, 4, {vr(t0)}')
    a(f'v_bfe_u32 {vr(t2)}, {vr(vLane)}, 1, 1'); a(f'v_lshl_add_u32 {vr(t0)}, {vr(t2)}, 7, {vr(t0)}')
    for hf in range(2):
        stamp(4 + hf)
        for u in range(16):
            vm.wait(('u', 16 * hf + u))
            for k in range(4):
                for b in range(4):
                    c = '0' if k == 0 else vr(T + b)
                    a(f'v_dot2_f32_bf16 {vr(T+b)}, {vr(UK+64*hf+4*u+k)}, {vr(QB+4*b+k)}, {c}')
            reduce4(T, XX, U + u)
        for k in range(8): a(f'v_cvt_pk_bf16_f32 {vr(D+k)}, {vr(U+2*k)}, {vr(U+2*k+1)}')
        a(f'v_cmp_eq_u32 vcc, 1, {vr(t1)}')
        for k in range(4): a(f'v_cndmask_b32 {vr(E8+4*hf+k)}, {vr(D+k)}, {vr(D+4+k)}, vcc')
    a(f'v_cmp_eq_u32 vcc, 1, {vr(t2)}')
    for k in range(4): a(f'v_cndmask_b32 {vr(E8+k)}, {vr(E8+k)}, {vr(E8+4+k)}, vcc')
    for k in range(4): a(f'v_min_u32 {vr(E8+k)}, -2, {vr(E8+k)}')
    vm.wait('c0')
    ensure(C0, C0N, vC0)
    a(f's_lshl_b32 s6, s{sH}, 10'); a(f's_lshl_b32 s7, s{sW}, 8'); a('s_add_u32 s6, s6, s7'); a(f's_add_u32 s6, s6, {QABS}')
    if cfg.cell: a(f's_lshr_b32 s7, s{sH}, 2'); a(f's_mul_i32 s7, s7, {SQ_ - 4096}'); a('s_add_u32 s6, s6, s7')
    vm.issue(f'buffer_store_dwordx4 {vr(E8,4)}, {vr(t0)}, {srd(S_WS)}, s6 offen sc1')
    stamp(1)
    if cfg.cthr: vm.limit = cfg.cthr
    if cfg.ctl: vm.limit = cfg.cuv
    while nd[0] < 36 and not cfg.ctl: wo_dma()
    a(f'v_lshlrev_b32 {vr(vUoff)}, 18, {vr(vG)}'); a(f'v_lshl_add_u32 {vr(vUoff)}, {vr(vI)}, 4, {vr(vUoff)}')
    for j in range(32):
        a(f's_mov_b32 s6, {j*8192}')
        vm.issue(f'buffer_load_dwordx4 {vr(UK+4*j,4)}, {vr(vUoff)}, {srd(S_K)}, s6 offen {fl}', 'uv')
    sMon, sIt = 14, 15
    if cfg.ctl:
        assert cfg.cpre == 0 and 36 % cfg.cdn == 0
        mon = Mon(PA)
        a(f's_and_b32 s6, s{sH}, 3'); a(f's_lshl_b32 s6, s6, 2'); a(f's_add_u32 s{sMon}, s6, s{sW}')
        Ls = lab('nomon')
        a(f's_cmp_lg_u32 s{sMon}, 13'); a(f's_cbranch_scc1 {Ls}'); mon.init(vLane, sBeta); a(f'{Ls}:')
        a(f's_mov_b32 s{sIt}, {36 // cfg.cdn}')
        a('C_dma:')
        Ls, L2 = lab('nomon'), lab('nomon')
        a(f's_cmp_lg_u32 s{sMon}, 13'); a(f's_cbranch_scc1 {Ls}'); mon.loads(); a(f'{Ls}:')
        a(f's_mov_b32 m0, s{sM0}')
        for k in range(cfg.cdn): a(f'buffer_load_dwordx4 {vr(vL16)}, {srd(S_WO)}, s{sM0} offen offset:{1024*k} {fl} lds')
        a(f's_waitcnt vmcnt({cfg.cdn})')
        a(f's_cbranch_scc1 {L2}'); mon.step(); a(f'{L2}:')
        a(f's_add_u32 s{sM0}, s{sM0}, {1024*cfg.cdn}')
        a(f's_sub_u32 s{sIt}, s{sIt}, 1'); a(f's_cmp_lg_u32 s{sIt}, 0'); a('s_cbranch_scc1 C_dma')
        a('s_waitcnt vmcnt(0)')
    else: vm.wait('wo')
    flag_init()
    a('s_waitcnt lgkmcnt(0)'); a('s_barrier')
    wo_frag_reads(4, vT)
    stamp(2)
    ST = T; Mx = T + 2; Lx = T + 3; AF = X0; CX = QB; sF = 26
    a(f'v_and_b32 {vr(t1)}, {NCH-1}, {vr(vLane)}'); a(f'v_mul_u32_u24 {vr(t1)}, {cfg.pstt or 8}, {vr(t1)}')
    a(f's_lshl_b32 s6, s{sH}, {3 if cfg.pstt else 8}'); a(f's_mul_i32 s7, s{sW}, {(cfg.pstt or 8) * NCH}'); a('s_add_u32 s6, s6, s7'); a(f's_add_u32 s{sIt}, s6, {PSTAT}')
    a(f's_mov_b32 s7, {cfg.spin_max}')
    a('P_poll:')
    if cfg.ctl:
        Ls = lab('nomon')
        a(f's_cmp_lg_u32 s{sMon}, 13'); a(f's_cbranch_scc1 {Ls}'); mon.loads(); a(f'{Ls}:')
    a(f'buffer_load_dwordx2 {vr(ST,2)}, {vr(t1)}, {srd(S_WS)}, s{sIt} offen sc1')
    a('s_waitcnt vmcnt(0)')
    a(f'v_max_u32 {vr(Mx)}, {vr(ST)}, {vr(ST+1)}'); a(f'v_cmp_eq_u32 vcc, -1, {vr(Mx)}')
    a('s_cbranch_vccz P_ok')
    if cfg.ctl:
        Ls, L2 = lab('nomon'), lab('nomon')
        a(f's_cbranch_scc1 {Ls}'); mon.step(); a(f's_branch {L2}'); a(f'{Ls}:')
    a(f's_sleep {cfg.psleep}')
    if cfg.ctl: a(f'{L2}:')
    a('s_sub_u32 s7, s7, 1'); a('s_cmp_lg_u32 s7, 0'); a('s_cbranch_scc1 P_poll')
    a('P_ok:')
    for _ in range(cfg.pdel): a('s_sleep 64')
    stamp(6)
    vm = VM(a)
    PW = {0: 1 << 15 + LC, 5: 1 << 20}.get(cfg.psx, 1 << 19)
    PB3 = {0: [4096 * NCH << i for i in range(3)], 1: [1 << 16, 1 << 17, 1 << 18], 2: [3 << 15, 1 << 17, 1 << 18], 3: [1 << 15, 1 << 16, 1 << 18],
           4: [1 << 15, 1 << 16, 3 << 17], 5: [1 << 17, 1 << 18, 1 << 19]}[cfg.psx]
    if cfg.cell: PW = 8 * cfg.cell; PB3 = [cfg.cell << i for i in range(3)]
    def pk(k): return sum(PB3[i] for i in range(3) if k >> i & 1)
    a(f's_lshr_b32 s6, s{sH}, 3'); a(f's_mul_i32 s6, s6, {PW}')
    for i in range(3):
        a(f's_bitcmp1_b32 s{sH}, {i}'); a(f's_cselect_b32 s7, {PB3[i]}, 0'); a('s_add_u32 s6, s6, s7')
    a(f's_lshl_b32 s7, s{sW}, {10+LC}'); a('s_add_u32 s6, s6, s7'); a(f's_add_u32 s6, s6, {OOB if cfg.dsk2 & 2 else PART}')
    for ch in range(NCH):
        if ch == 4: a('s_add_u32 s6, s6, 4096')
        vm.issue(f'buffer_load_dwordx4 {vr(AF+4*ch,4)}, {vr(vL16)}, {srd(S_WS)}, s6 offen offset:{1024*(ch&3)} {cfg.pl2}', ('a', ch))
    a(f'v_mov_b32 {vr(Mx)}, {vr(ST)}')
    for sh in RORS: a(f'v_max_f32_dpp {vr(Mx)}, {vr(Mx)}, {vr(Mx)} row_ror:{sh} {DPPF}')
    a(f'v_sub_f32 {vr(ST)}, {vr(ST)}, {vr(Mx)}'); a(f'v_exp_f32 {vr(ST)}, {vr(ST)}')
    a(f'v_mul_f32 {vr(Lx)}, {vr(ST)}, {vr(ST+1)}')
    for sh in RORS: a(f'v_add_f32_dpp {vr(Lx)}, {vr(Lx)}, {vr(Lx)} row_ror:{sh} {DPPF}')
    a(f'v_rcp_f32 {vr(Lx)}, {vr(Lx)}'); a(f'v_mul_f32 {vr(ST)}, {vr(ST)}, {vr(Lx)}')
    for ch in range(NCH): a(f'v_readlane_b32 s{sF+ch}, {vr(ST)}, {ch}')
    a(f's_mul_i32 s6, s{sW}, {XS}'); a(f's_add_u32 s6, s6, {XB}'); a(f'v_add_u32 {vr(t0)}, s6, {vr(vL16)}')
    a(f'v_lshrrev_b32 {vr(t1)}, 3, {vr(vI)}'); a(f'v_mul_u32_u24 {vr(t1)}, {XS}, {vr(t1)}'); a(f'v_lshl_add_u32 {vr(t1)}, {vr(vG)}, 6, {vr(t1)}')
    a(f's_lshl_b32 s6, s{sW}, 8'); a(f's_add_u32 s6, s6, {XB}'); a(f'v_add_u32 {vr(t1)}, s6, {vr(t1)}')
    for ch in range(NCH):
        vm.wait(('a', ch))
        for d in range(4):
            a(f'v_lshlrev_b32 {vr(E8+2*d)}, 16, {vr(AF+4*ch+d)}'); a(f'v_and_b32 {vr(E8+2*d+1)}, 0xffff0000, {vr(AF+4*ch+d)}')
        for e in range(8):
            if ch == 0: a(f'v_mul_f32 {vr(CX+e)}, s{sF}, {vr(E8+e)}')
            else: a(f'v_fma_f32 {vr(CX+e)}, {vr(E8+e)}, s{sF+ch}, {vr(CX+e)}')
    for d in range(4): a(f'v_cvt_pk_bf16_f32 {vr(CX+8+d)}, {vr(CX+2*d)}, {vr(CX+2*d+1)}')
    a(f'ds_write_b128 {vr(t0)}, {vr(CX+8,4)}')
    a('s_waitcnt lgkmcnt(0)'); a('s_barrier')
    for k in range(4):
        a(f'ds_read_b128 {vr(X0+4*k,4)}, {vr(t1)} offset:{16*k}'); a(f'ds_read_b128 {vr(X1+4*k,4)}, {vr(t1)} offset:{2*XS+16*k}')
    a(f'v_lshrrev_b32 {vr(t0)}, 5, {vr(vLane)}'); a(f'v_mul_u32_u24 {vr(t0)}, {4*OS}, {vr(t0)}'); a(f'v_lshl_add_u32 {vr(t0)}, {vr(vI)}, 4, {vr(t0)}')
    a(f'v_and_b32 {vr(t2)}, 1, {vr(vG)}'); a(f'v_lshl_add_u32 {vr(t0)}, {vr(t2)}, 3, {vr(t0)}')
    a(f's_mul_i32 s6, s{sW}, {OS}'); a(f's_add_u32 s6, s6, {OT}'); a(f'v_add_u32 {vr(t0)}, s6, {vr(t0)}')
    a(f'v_mul_u32_u24 {vr(t2)}, {OS}, {vr(vI)}'); a(f'v_lshl_add_u32 {vr(t2)}, {vr(vG)}, 4, {vr(t2)}'); a(f'v_add_u32 {vr(t2)}, {OT}, {vr(t2)}')
    a('s_waitcnt lgkmcnt(0)')
    for j in range(32): wunit_mfma(j, [X0, X1], [AC0, AC1], SEL, PA, UK)
    for s_, AC in enumerate((AC0, AC1)):
        a(f'v_cvt_pk_bf16_f32 {vr(E8+2*s_)}, {vr(AC)}, {vr(AC+1)}'); a(f'v_cvt_pk_bf16_f32 {vr(E8+2*s_+1)}, {vr(AC+2)}, {vr(AC+3)}')
        a(f'ds_write_b64 {vr(t0)}, {vr(E8+2*s_,2)} offset:{8*OS*s_}')
    a('s_waitcnt lgkmcnt(0)'); a('s_barrier')
    for ks in range(4): a(f'ds_read_b128 {vr(PA+4*ks,4)}, {vr(t2)} offset:{64*ks}')
    O = QB
    if cfg.y16:
        a(f'v_mul_u32_u24 {vr(t0)}, {32*1152}, {vr(vG)}'); a(f'v_lshl_add_u32 {vr(t0)}, {vr(vI)}, 4, {vr(t0)}')
        a(f's_mul_i32 s6, s{sH}, 1152'); a(f's_add_u32 s6, s6, {YB}'); a(f's_lshl_b32 s7, s{sW}, 5'); a(f'v_add_u32 {vr(t1)}, s7, {vr(t0)}')
        a(f's_lshl_b32 s7, s{sW}, 8'); a(f'v_add_u32 {vr(t0)}, s7, {vr(t0)}')
    else:
        a(f'v_mul_u32_u24 {vr(t0)}, {8 * SB}, {vr(vG)}')
        a(f'v_and_b32 {vr(t1)}, 3, {vr(vLane)}'); a(f'v_bfe_u32 {vr(t2)}, {vr(vLane)}, 2, 2')
        a(f'v_lshl_add_u32 {vr(t1)}, {vr(t1)}, 2, {vr(t2)}'); a(f'v_lshl_add_u32 {vr(t1)}, {vr(t1)}, 2, {vr(t0)}')
        a(f'v_lshl_add_u32 {vr(t0)}, {vr(vI)}, 4, {vr(t0)}')
        a(f's_mul_i32 s6, s{sH}, 2304'); a(f's_mul_i32 s7, s{sW}, 576'); a('s_add_u32 s6, s6, s7'); a(f's_add_u32 s6, s6, {OOB if cfg.dsk2 & 4 else YB}')
        if cfg.cell: a(f's_lshr_b32 s7, s{sH}, 2'); a(f's_mul_i32 s7, s7, {SB - 9216}'); a('s_add_u32 s6, s6, s7')
    a('s_waitcnt lgkmcnt(0)')
    for t in range(9):
        for ks in range(4):
            c = '0' if ks == 0 else vr(D + 4 * t, 4)
            a(f'v_mfma_f32_16x16x32_bf16 {vr(D+4*t,4)}, {vr(PA+4*ks,4)}, {ar(AW+4*(t*4+ks),4)}, {c}')
    for t in range(9):
        a(f'v_add_f32 {vr(D+4*t)}, {vr(D+4*t)}, {vr(D+4*t+1)}'); a(f'v_add_f32 {vr(D+4*t+2)}, {vr(D+4*t+2)}, {vr(D+4*t+3)}')
        a(f'v_add_f32 {vr(O+t)}, {vr(D+4*t)}, {vr(D+4*t+2)}'); a(f'v_min_u32 {vr(O+t)}, -2, {vr(O+t)}')
    if cfg.y16:
        for d in range(4): a(f'v_cvt_pk_bf16_f32 {vr(O+d)}, {vr(O+2*d)}, {vr(O+2*d+1)}'); a(f'v_min_u32 {vr(O+d)}, -2, {vr(O+d)}')
        a(f'buffer_store_dwordx4 {vr(O,4)}, {vr(t0)}, {srd(S_WS)}, s6 offen sc1')
        tail16(O + 8, O + 12, t1, 's6', 0x00030003)
    else:
        a(f'buffer_store_dwordx4 {vr(O,4)}, {vr(t0)}, {srd(S_WS)}, s6 offen sc1')
        a(f'buffer_store_dwordx4 {vr(O+4,4)}, {vr(t0)}, {srd(S_WS)}, s6 offen offset:256 sc1')
        if cfg.t16:
            for e in range(1, 4): a(f'v_mov_b32_dpp {vr(O+8+e)}, {vr(O+8)} row_shl:{4*e} {DPPF}')
            a('s_mov_b32 exec_lo, 0x000f000f'); a('s_mov_b32 exec_hi, 0x000f000f')
            a(f'buffer_store_dwordx4 {vr(O+8,4)}, {vr(t1)}, {srd(S_WS)}, s6 offen offset:512 sc1')
            a('s_mov_b64 exec, -1')
        else: a(f'buffer_store_dword {vr(O+8)}, {vr(t1)}, {srd(S_WS)}, s6 offen offset:512 sc1')
    stamp(7)
    a('s_nop 1')
    a('s_branch B_final')
    NR = 64 // NCH; sDl, sRho = 80, 81
    CROW = 1088; CB = 64 * CROW
    QROW = 1056; SQ = 2 * CB
    PB = SQ + 16 * QROW; MX = PB + 4096; LS = MX + 512
    assert LS + 512 <= FLAG
    V = VAlloc(base)
    ACC = V(64, 4); S = V(8, 4); CF = V(64, 4); PF = V(16, 4); MXR = V(12, 4)
    mQ = V(2); mP = V(); lQ = V(2); aQ = V(2); aP = V(); vC = V(); PK = V(4, 2); Mx = V(2); tt = V()
    vA = V(2); vTr = V(2); vMw = V(); vMr = V(); vMp = V(); vPw = V(); vPr = V(); vQ = V(); vQw = V(); vCw = V(2)
    a('D_role:')
    if cfg.warm & 4: warm_code('', 'B_end', vLane, t0, t1, 2)
    a(f's_lshr_b32 s{sB2}, s{sH}, 3'); a(f's_lshr_b32 s{sDl}, s{sH}, {3-LC}'); a(f's_and_b32 s{sCh}, s{sDl}, {NCH-1}')
    a(f'v_xor_b32 {vr(vL16x)}, 32, {vr(vL16)}')
    for r in range(4): a(f'v_mov_b32 {vr(S+r)}, -1')
    a('s_waitcnt lgkmcnt(0)')
    mk_srd(S_WS, P_WS, None, WS_USED)
    a(f's_lshl_b32 s6, s{sB2}, 22'); mk_srd(S_K, P_CKV, 's6', 0x400000)
    def dpf():
        if not cfg.dpf: return
        NWV = 2 * NCH
        a(f'v_lshrrev_b32 {vr(t0)}, 3, {vr(vLane)}'); a(f'v_lshlrev_b32 {vr(t0)}, 13, {vr(t0)}')
        a(f'v_and_b32 {vr(t1)}, 7, {vr(vLane)}'); a(f'v_lshl_add_u32 {vr(t0)}, {vr(t1)}, 7, {vr(t0)}')
        a(f's_and_b32 s6, s{sDl}, {NWV//4-1}'); a('s_lshl_b32 s6, s6, 2'); a(f's_add_u32 s14, s6, s{sW}')
        a(f's_lshr_b32 s15, s{sH}, 2'); a('s_lshl_b32 s15, s15, 10')
        n = 0
        for bit, P, rows in ((2, P_BWQ, 576), (1, P_WUK, 512)):
            if not cfg.dpf & bit: continue
            mk_srd(S_U, P, None, rows * 8192)
            a(f's_mul_i32 s6, s14, {8*8192}'); a('s_add_u32 s6, s6, s15')
            for k in range(-(-rows // (8 * NWV))):
                a(f'buffer_load_dword {vr(CF+n)}, {vr(t0)}, {srd(S_U)}, s6 offen'); n += 1
                a(f's_add_u32 s6, s6, {8*NWV*8192}')
    L3, Lc = lab('clr3'), lab('clrd')
    a(f's_cmp_eq_u32 s{sW}, 3'); a(f's_cbranch_scc1 {L3}')
    a(f's_mul_i32 s6, s{sH}, {SA >> cfg.y16}'); a(f's_mul_i32 s7, s{sW}, {9216 >> cfg.y16}'); a('s_add_u32 s6, s6, s7'); a(f's_add_u32 s6, s6, {YA}')
    a(f's_mul_i32 s7, s{sH}, {SB >> cfg.y16}'); a(f's_add_u32 s7, s7, {YB}'); a(f's_cmp_eq_u32 s{sW}, 2'); a('s_cselect_b32 s6, s7, s6')
    for k in range(5 if cfg.y16 else 9):
        if k in (4, 8): a('s_add_u32 s6, s6, 4096')
        if cfg.y16 and k == 4: a('s_mov_b64 exec, 0xffffffff')
        a(f'buffer_store_dwordx4 {vr(S,4)}, {vr(vL16)}, {srd(S_WS)}, s6 offen offset:{1024*(k&3)} sc1')
    a('s_mov_b64 exec, -1')
    a(f's_branch {Lc}')
    a(f'{L3}:')
    a(f's_mul_i32 s6, s{sH}, {SQ_}'); a(f's_add_u32 s6, s6, {QABS}')
    for k in range(4): a(f'buffer_store_dwordx4 {vr(S,4)}, {vr(vL16)}, {srd(S_WS)}, s6 offen offset:{1024*k} sc1')
    a('s_mov_b64 exec, 0xffff')
    a(f's_mul_i32 s6, s{sH}, {cfg.pstt or 256}'); a(f's_mul_i32 s7, s{sH}, {4 * cfg.astr}'); a(f's_add_u32 s7, s7, {AST}'); a(f's_add_u32 s6, s6, {PSTAT}')
    a(f'v_lshrrev_b32 {vr(t1)}, 2, {vr(vLane)}'); a(f'v_mul_u32_u24 {vr(t1)}, {cfg.astr - 64}, {vr(t1)}'); a(f'v_add_u32 {vr(t1)}, {vr(t1)}, {vr(vL16)}')
    a(f'buffer_store_dwordx4 {vr(S,4)}, {vr(vL16)}, {srd(S_WS)}, s6 offen sc1')
    a(f'buffer_store_dwordx4 {vr(S,4)}, {vr(t1)}, {srd(S_WS)}, s7 offen sc1')
    if cfg.dyn:
        a('s_mov_b64 exec, 3')
        a(f's_mul_i32 s6, s{sH}, {2 * cfg.psp}'); a(f's_add_u32 s6, s6, {PROG}')
        if cfg.pxs != 8 * cfg.psp: a(f's_lshr_b32 s7, s{sH}, 2'); a(f's_mul_i32 s7, s7, {cfg.pxs - 8 * cfg.psp}'); a('s_add_u32 s6, s6, s7')
        a(f'v_mul_u32_u24 {vr(t0)}, {cfg.psp}, {vr(vLane)}')
        a(f'buffer_store_dwordx4 {vr(S,4)}, {vr(t0)}, {srd(S_WS)}, s6 offen sc1')
        if cfg.mon or cfg.ctl:
            for _ in range(1 if cfg.msh else 2):
                a(f's_add_u32 s6, s6, {TFO if cfg.ctl else 0x4000}')
                a(f'buffer_store_dwordx4 {vr(S,4)}, {vr(t0)}, {srd(S_WS)}, s6 offen sc1')
    a('s_mov_b64 exec, -1')
    if cfg.msh:
        a(f's_mul_i32 s6, s{sH}, {cfg.gls}'); a(f's_add_u32 s6, s6, {PROG + 2 * TFO}')
        a(f'buffer_store_dwordx4 {vr(S,4)}, {vr(vL16)}, {srd(S_WS)}, s6 offen sc1')
    a(f'{Lc}:')
    mk_srd(S_DBG, P_DBG, None, 256); mk_srd(S_OUT, P_OUT, None, 9216)
    cw = cfg.cw2
    def coff(rho, k): return (64 * NCH * rho + (4 * NCH << cw) * (k >> cw) + (k & ((1 << cw) - 1))) * 1024
    vm = VM(a, 52)
    def c_dma(rho, k):
        a(f's_add_u32 m0, s{sM0}, {(rho&1)*CB + k*CROW}')
        a(f's_add_u32 s6, s{sSo}, {coff(rho, k)}')
        vm.issue(f'buffer_load_dwordx4 {vr(vL16x if k >= 8 else vL16)}, {srd(S_K)}, s6 offen {fl} lds', ('c', rho))
    def stg(rho): return 128 + 64 * (rho & 1)
    def c_reg(rho, k):
        a(f's_add_u32 s6, s{sSo}, {coff(rho, k)}')
        vm.issue(f'buffer_load_dwordx4 {ar(stg(rho)+4*k,4)}, {vr(vL16x if k >= 8 else vL16)}, {srd(S_K)}, s6 offen {fl}', ('c', rho))
    a(f's_mul_i32 s{sM0}, s{sW}, {16*CROW}')
    a(f's_lshl_b32 s{sSo}, s{sCh}, 2'); a(f's_add_u32 s{sSo}, s{sSo}, s{sW}'); a(f's_lshl_b32 s{sSo}, s{sSo}, {10 + cw}')
    def sig():
        a(f'v_mov_b32 {vr(t2)}, 1'); a('s_mov_b64 exec, 1')
        a(f'buffer_atomic_add {vr(t2)}, off, {srd(S_DBG)}, 0 offset:{C0}')
        a('s_mov_b64 exec, -1')
    if NCH == 4:
        a(f's_bitcmp0_b32 s{sH}, 0'); a('s_cbranch_scc1 D_act')
        a('s_waitcnt vmcnt(0)'); sig()
        dpf()
        a('s_sleep 127'); a('s_sleep 127')
        a(f'buffer_load_dword {vr(vC0)}, off, {srd(S_DBG)}, 0 offset:{C0} sc1')
        a('s_waitcnt vmcnt(0)')
        ensure(C0, C0N, vC0)
        flag_init()
        a('s_waitcnt lgkmcnt(0)'); a('s_barrier')
        a('s_branch B_final')
        a('D_act:')
    for k in range(8): c_dma(0, k)
    a('s_waitcnt vmcnt(8)')
    sig()
    if NCH == 8: dpf()
    if cfg.dthr: vm.limit = cfg.dthr
    for k in range(8, 16): c_dma(0, k)
    for k in range(16): c_dma(1, k)
    for rho in (2, 3):
        for k in range(16 if rho == 2 or not cfg.dloop else 8): c_reg(rho, k)
    vm.limit = 52
    if cfg.dskip:
        a(f's_and_b32 s6, s2, 7'); a(f's_mov_b32 s7, {cfg.dskip}'); a('s_bitcmp1_b32 s7, s6'); a(f's_cselect_b32 s{S_K+2}, 0, s{S_K+2}')
    vm.issue(f'buffer_load_dword {vr(vC0)}, off, {srd(S_DBG)}, 0 offset:{C0} sc1', 'c0')
    stamp(1)
    sQ = 14
    a(f's_lshl_b32 s{sQ}, s{sB2}, 3'); a(f's_add_u32 s{sQ}, s{sQ}, s{sW}'); a(f's_mul_i32 s{sQ}, s{sQ}, {SQ_}'); a(f's_add_u32 s{sQ}, s{sQ}, {QABS}')
    a(f's_add_u32 s{sQ+1}, s{sQ}, {4 * SQ_}')
    def q_loads():
        for nt in range(2):
            for k in range(4):
                a(f'buffer_load_dwordx4 {vr(CF+16*nt+4*k,4)}, {vr(vL16)}, {srd(S_WS)}, s{sQ+nt} offen offset:{1024*k} sc1')
    a(f's_lshl_b32 s6, s{sW}, 4'); a(f'v_add_u32 {vr(t0)}, s6, {vr(vI)}'); a(f'v_mul_u32_u24 {vr(t0)}, {CROW}, {vr(t0)}')
    a(f'v_lshrrev_b32 {vr(t1)}, 3, {vr(vI)}'); a(f'v_lshlrev_b32 {vr(t1)}, 1, {vr(t1)}'); a(f'v_xor_b32 {vr(t1)}, {vr(t1)}, {vr(vG)}')
    a(f'v_lshl_add_u32 {vr(vA)}, {vr(t1)}, 4, {vr(t0)}'); a(f'v_add_u32 {vr(vA+1)}, {CB}, {vr(vA)}')
    a(f'v_lshrrev_b32 {vr(t0)}, 5, {vr(vLane)}'); a(f'v_lshlrev_b32 {vr(t0)}, 3, {vr(t0)}')
    a(f'v_bfe_u32 {vr(t1)}, {vr(vLane)}, 2, 2'); a(f'v_add_u32 {vr(t0)}, {vr(t0)}, {vr(t1)}'); a(f'v_mul_u32_u24 {vr(t0)}, {CROW}, {vr(t0)}')
    a(f'v_lshrrev_b32 {vr(t1)}, 1, {vr(vG)}'); a(f'v_xor_b32 {vr(t1)}, {vr(t1)}, {vr(vG)}')
    a(f'v_and_b32 {vr(t1)}, 1, {vr(t1)}'); a(f'v_lshl_add_u32 {vr(t0)}, {vr(t1)}, 5, {vr(t0)}')
    a(f'v_and_b32 {vr(t1)}, 3, {vr(vLane)}'); a(f'v_lshl_add_u32 {vr(t0)}, {vr(t1)}, 3, {vr(t0)}')
    a(f's_lshl_b32 s6, s{sW}, 8'); a(f'v_add_u32 {vr(vTr)}, s6, {vr(t0)}'); a(f'v_add_u32 {vr(vTr+1)}, {CB}, {vr(vTr)}')
    a(f'v_lshlrev_b32 {vr(vMr)}, 4, {vr(vI)}'); a(f'v_add_u32 {vr(vMr)}, {MX}, {vr(vMr)}')
    a(f's_lshl_b32 s6, s{sW}, 2'); a(f'v_add_u32 {vr(vMw)}, s6, {vr(vMr)}')
    a(f'v_and_b32 {vr(t0)}, 31, {vr(vLane)}'); a(f'v_lshlrev_b32 {vr(vMp)}, 4, {vr(t0)}'); a(f'v_add_u32 {vr(vMp)}, {MX}, {vr(vMp)}')
    a(f'v_lshlrev_b32 {vr(vPr)}, 5, {vr(t0)}'); a(f'v_lshrrev_b32 {vr(t1)}, 5, {vr(vLane)}')
    a(f'v_lshl_add_u32 {vr(vPr)}, {vr(t1)}, 4, {vr(vPr)}'); a(f'v_add_u32 {vr(vPr)}, {PB}, {vr(vPr)}')
    a(f'v_lshlrev_b32 {vr(vPw)}, 5, {vr(vI)}'); a(f'v_lshl_add_u32 {vr(vPw)}, {vr(vG)}, 3, {vr(vPw)}')
    a(f's_lshl_b32 s6, s{sW}, 10'); a(f's_add_u32 s6, s6, {PB}'); a(f'v_add_u32 {vr(vPw)}, s6, {vr(vPw)}')
    a(f'v_mul_u32_u24 {vr(vQ)}, {QROW}, {vr(vI)}'); a(f'v_lshl_add_u32 {vr(vQ)}, {vr(vG)}, 4, {vr(vQ)}'); a(f'v_add_u32 {vr(vQ)}, {SQ}, {vr(vQ)}')
    a(f's_mul_i32 s6, s{sW}, {4*QROW}'); a(f's_add_u32 s6, s6, {SQ}'); a(f'v_add_u32 {vr(vQw)}, s6, {vr(vL16)}')
    a(f'v_add_u32 {vr(vCw)}, s{sM0}, {vr(vL16)}'); a(f'v_add_u32 {vr(vCw+1)}, {CB}, {vr(vCw)}')
    a(f'v_mov_b32 {vr(vC)}, {f2u(SCALE):#x}')
    for r in (mQ, mQ + 1, mP): a(f'v_mov_b32 {vr(r)}, 0xff800000')
    a(f'v_mov_b32 {vr(lQ)}, 0'); a(f'v_mov_b32 {vr(lQ+1)}, 0')
    vm.wait('c0')
    ensure(C0, C0N, vC0)
    stamp(2)
    a(f's_mov_b32 s7, {cfg.spin_max}')
    if cfg.qslow:
        a(f'v_and_b32 {vr(t0)}, 3, {vr(vLane)}'); a(f'v_bfe_u32 {vr(t1)}, {vr(vLane)}, 2, 1'); a(f'v_mul_u32_u24 {vr(t1)}, {4 * SQ_}, {vr(t1)}')
        a(f'v_lshl_add_u32 {vr(t0)}, {vr(t0)}, 10, {vr(t1)}')
        a('Q_slow:')
        a(f'buffer_load_dword {vr(tt)}, {vr(t0)}, {srd(S_WS)}, s{sQ} offen offset:768 sc1')
        a('s_waitcnt vmcnt(0)')
        a(f'v_cmp_eq_u32 vcc, -1, {vr(tt)}')
        a('s_cbranch_vccz Q_chk')
        a(f's_sleep {cfg.qslow}')
        a('s_sub_u32 s7, s7, 1'); a('s_cmp_lg_u32 s7, 1'); a('s_cbranch_scc1 Q_slow')
    a('Q_chk:')
    q_loads()
    a('s_waitcnt vmcnt(0)')
    umax_tree(tt, range(CF, CF + 32))
    a(f'v_cmp_eq_u32 vcc, -1, {vr(tt)}')
    a('s_cbranch_vccz Q_ok')
    a(f's_sleep {cfg.qsleep}')
    a('s_sub_u32 s7, s7, 1'); a('s_cmp_lg_u32 s7, 0'); a('s_cbranch_scc1 Q_chk')
    a('Q_ok:')
    stamp(3)
    for nt in range(2):
        if nt: a('s_barrier')
        for k in range(4): a(f'ds_write_b128 {vr(vQw)}, {vr(CF+16*nt+4*k,4)} offset:{QROW*k}')
        a('s_waitcnt lgkmcnt(0)'); a('s_barrier')
        for ks in range(16): a(f'ds_read_b128 {ar(64*nt+4*ks,4)}, {vr(vQ)} offset:{64*ks}')
        a('s_waitcnt lgkmcnt(0)')
    pend = []
    def more(n=1):
        for _ in range(n):
            if pend: c_reg(*pend.pop(0))
    a(f's_mov_b32 s{sRho}, {NR//2}')
    for rho in range(3 if cfg.dloop else NR):
        par = rho & 1
        if cfg.dloop and rho == 1:
            a('D_loop:'); pend = [(3, k) for k in range(8, 16)]
        for ks in range(16):
            a(f'ds_read_b128 {vr(CF+4*ks,4)}, {vr(vA+par)} offset:{64*ks}')
        for ks in range(16):
            a(f's_waitcnt lgkmcnt({15-ks})')
            for nt in range(2):
                c = '0' if ks == 0 else vr(S + 4 * nt, 4)
                a(f'v_mfma_f32_16x16x32_bf16 {vr(S+4*nt,4)}, {vr(CF+4*ks,4)}, {ar(64*nt+4*ks,4)}, {c}')
            if ks & 1: more()
        assert not pend
        for nt in range(2):
            a(f'v_max_f32 {vr(Mx+nt)}, {vr(S+4*nt)}, {vr(S+4*nt+1)}')
            a(f'v_max3_f32 {vr(Mx+nt)}, {vr(Mx+nt)}, {vr(S+4*nt+2)}, {vr(S+4*nt+3)}')
            allred_rows(Mx + nt, tt, 'v_max_f32')
            a(f'ds_write_b32 {vr(vMw)}, {vr(Mx+nt)} offset:{256*nt}')
        a('s_waitcnt lgkmcnt(0)'); a('s_barrier')
        a(f'ds_read_b128 {vr(MXR,4)}, {vr(vMr)}'); a(f'ds_read_b128 {vr(MXR+4,4)}, {vr(vMr)} offset:256'); a(f'ds_read_b128 {vr(MXR+8,4)}, {vr(vMp)}')
        if 1 <= rho <= NR - 2:
            if cfg.dloop: a('s_waitcnt vmcnt(16)'); vm.reset()
            else: vm.wait(('c', rho + 1))
            for k in range(16): a(f'ds_write_b128 {vr(vCw+1-par)}, {ar(stg(rho+1)+4*k,4)} offset:{k*CROW}')
            a('s_waitcnt lgkmcnt(15)')
            if rho + 3 < NR: pend = [(rho + 3, k) for k in range(16)]
        else:
            a('s_waitcnt lgkmcnt(0)')
        for i, (m, al) in enumerate(((mQ, aQ), (mQ + 1, aQ + 1), (mP, aP))):
            R = MXR + 4 * i
            a(f'v_max_f32 {vr(R)}, {vr(R)}, {vr(R+1)}'); a(f'v_max3_f32 {vr(R)}, {vr(R)}, {vr(R+2)}, {vr(R+3)}')
            a(f'v_mul_f32 {vr(R)}, {vr(R)}, {vr(vC)}'); a(f'v_max_f32 {vr(R)}, {vr(R)}, {vr(m)}')
            a(f'v_sub_f32 {vr(al)}, {vr(m)}, {vr(R)}'); a(f'v_exp_f32 {vr(al)}, {vr(al)}'); a(f'v_mov_b32 {vr(m)}, {vr(R)}')
        for nt in range(2):
            for r in range(4):
                a(f'v_fma_f32 {vr(S+4*nt+r)}, {vr(S+4*nt+r)}, {vr(vC)}, -{vr(mQ+nt)}')
            for r in range(4): a(f'v_exp_f32 {vr(S+4*nt+r)}, {vr(S+4*nt+r)}')
            a(f'v_mul_f32 {vr(lQ+nt)}, {vr(lQ+nt)}, {vr(aQ+nt)}')
            a(f'v_cvt_pk_bf16_f32 {vr(PK+2*nt)}, {vr(S+4*nt)}, {vr(S+4*nt+1)}'); a(f'v_cvt_pk_bf16_f32 {vr(PK+2*nt+1)}, {vr(S+4*nt+2)}, {vr(S+4*nt+3)}')
            a(f'ds_write_b64 {vr(vPw)}, {vr(PK+2*nt,2)} offset:{512*nt}')
            for r in range(4): a(f'v_add_f32 {vr(lQ+nt)}, {vr(lQ+nt)}, {vr(S+4*nt+r)}')
        if rho > 0:
            for r in range(64): a(f'v_mul_f32 {vr(ACC+r)}, {vr(ACC+r)}, {vr(aP)}')
        a('s_waitcnt lgkmcnt(0)'); a('s_barrier')
        for ks in range(4): a(f'ds_read_b128 {vr(PF+4*ks,4)}, {vr(vPr)} offset:{1024*ks}')
        for ks in range(4):
            for ct in range(4):
                for sec in range(2):
                    a(f'ds_read_b64_tr_b16 {vr(CF+16*ks+4*ct+2*sec,2)}, {vr(vTr+par)} offset:{(16*ks+4*sec)*CROW + 64*ct}')
        for ks in range(4):
            a(f's_waitcnt lgkmcnt({min(15, 8*(3-ks))})')
            for ct in range(4):
                c = '0' if (rho == 0 and ks == 0) else vr(ACC + 16 * ct, 16)
                a(f'v_mfma_f32_32x32x16_bf16 {vr(ACC+16*ct,16)}, {vr(CF+16*ks+4*ct,4)}, {vr(PF+4*ks,4)}, {c}')
                if ct & 1: more()
        if cfg.dloop and rho == 1:
            a(f's_sub_u32 s{sRho}, s{sRho}, 1'); a(f's_cmp_eq_u32 s{sRho}, 0'); a('s_cbranch_scc1 D_done')
        if cfg.dloop and rho == 2:
            a(f's_add_u32 s{sSo}, s{sSo}, {coff(2, 0)}'); a('s_branch D_loop'); a('D_done:'); a('s_nop 7'); a('s_nop 7')
    stamp(4)
    for nt in range(2):
        allred_rows(lQ + nt, tt, 'v_add_f32')
        a(f'ds_write_b32 {vr(vMw)}, {vr(lQ+nt)} offset:{512+256*nt}')
    TROW = 1040
    a(f'v_and_b32 {vr(t0)}, 31, {vr(vLane)}'); a(f'v_mul_u32_u24 {vr(t0)}, {TROW}, {vr(t0)}')
    a(f'v_lshrrev_b32 {vr(t1)}, 5, {vr(vLane)}'); a(f'v_lshl_add_u32 {vr(t0)}, {vr(t1)}, 3, {vr(t0)}')
    a(f's_lshl_b32 s6, s{sW}, 8'); a(f'v_add_u32 {vr(t0)}, s6, {vr(t0)}')
    for ct in range(4):
        for rq in range(4):
            R = ACC + 16 * ct + 4 * rq; P = CF + 2 * (4 * ct + rq)
            a(f'v_cvt_pk_bf16_f32 {vr(P)}, {vr(R)}, {vr(R+1)}'); a(f'v_cvt_pk_bf16_f32 {vr(P+1)}, {vr(R+2)}, {vr(R+3)}')
            a(f'ds_write_b64 {vr(t0)}, {vr(P,2)} offset:{64*ct+16*rq}')
    flag_init()
    a('s_waitcnt lgkmcnt(0)'); a('s_barrier')
    a(f's_mul_i32 s6, s{sW}, {8*TROW}'); a(f'v_add_u32 {vr(t0)}, s6, {vr(vL16)}')
    for k in range(8): a(f'ds_read_b128 {vr(CF+32+4*k,4)}, {vr(t0)} offset:{k*TROW}')
    a(f'ds_read_b128 {vr(MXR,4)}, {vr(vMp)} offset:512')
    a(f's_mul_i32 s7, s{sW}, {PW}'); a(f's_lshl_b32 s6, s{sDl}, 10'); a('s_add_u32 s7, s7, s6'); a(f's_add_u32 s7, s7, {OOB if cfg.dsk2 & 1 else PART}')
    for k in range(8):
        a(f's_waitcnt lgkmcnt({8-k})')
        a(f's_add_u32 s6, s7, {pk(k)}')
        a(f'buffer_store_dwordx4 {vr(CF+32+4*k,4)}, {vr(vL16)}, {srd(S_WS)}, s6 offen {cfg.pst_flags}')
    a('s_waitcnt lgkmcnt(0)')
    a(f'v_add_f32 {vr(MXR)}, {vr(MXR)}, {vr(MXR+1)}'); a(f'v_add_f32 {vr(MXR+2)}, {vr(MXR+2)}, {vr(MXR+3)}')
    a(f'v_add_f32 {vr(PK+1)}, {vr(MXR)}, {vr(MXR+2)}'); a(f'v_mov_b32 {vr(PK)}, {vr(mP)}')
    a(f'v_lshlrev_b32 {vr(t0)}, {3 if cfg.pstt else 8}, {vr(vLane)}')
    a(f's_mul_i32 s6, s{sDl}, {cfg.pstt or 8}'); a(f's_add_u32 s6, s6, {PSTAT}')
    a(f'v_min_u32 {vr(PK)}, -2, {vr(PK)}'); a(f'v_min_u32 {vr(PK+1)}, -2, {vr(PK+1)}')
    a('s_waitcnt vmcnt(0)'); a('s_barrier')
    Ls = lab('nops')
    a(f's_cmp_lg_u32 s{sW}, 0'); a(f's_cbranch_scc1 {Ls}')
    a('s_mov_b64 exec, 0xffffffff')
    a(f'buffer_store_dwordx2 {vr(PK,2)}, {vr(t0)}, {srd(S_WS)}, s6 offen sc1')
    a('s_mov_b64 exec, -1')
    a(f'{Ls}:')
    stamp(5)
    gen_final(vLane, vG, t0, t1, vC0, sHalf, sBeta, base)

def gen_final(vLane, vG, t0, t1, vC0, sHalf, sBeta, base):
    a('B_final:')
    if cfg.dsk2 & 8: a('s_branch B_end')
    V = VAlloc(base)
    Y = V(32, 4); AS = Y; vYo = V(); vOo = V(); E = V()
    sTau, sTb, sSg, sY, sDone, sO = 14, 15, 80, 81, 82, 83
    if cfg.dyn:
        a(f's_cmp_eq_u32 s{sW}, 3'); a('s_cbranch_scc1 H_start')
        a(f's_mov_b32 s{sTau}, s{sBeta}'); a(f's_lshr_b32 s7, s{sW}, 1')
        Ls = lab('w1')
        a(f's_cmp_lg_u32 s{sW}, 1'); a(f's_cbranch_scc1 {Ls}')
        a(f's_and_b32 s7, s{sBeta}, 7')
        if cfg.mon: a('s_cmp_eq_u32 s7, 7'); a('s_cbranch_scc1 H_start')
        if cfg.ctl: a('s_cmp_eq_u32 s7, 7'); a('s_cbranch_scc1 M2_start')
        a('s_cmp_ge_u32 s7, 2'); a('s_cbranch_scc1 B_end')
        a(f's_lshr_b32 s{sTau}, s{sBeta}, 3'); a(f's_add_u32 s{sTau}, s{sTau}, 64')
        a(f'{Ls}:')
    else:
        a(f's_and_b32 s6, s{sW}, 1'); a('s_lshl_b32 s6, s6, 6'); a(f's_add_u32 s{sTau}, s{sBeta}, s6')
        a(f's_cmp_ge_u32 s{sTau}, 72'); a('s_cbranch_scc1 B_end')
        a(f's_lshr_b32 s7, s{sW}, 1')
    a(f's_mul_i32 s{sTb}, s{sTau}, 57'); a(f's_lshr_b32 s{sTb}, s{sTb}, 10')
    a(f's_mul_i32 s6, s{sTb}, 18'); a(f's_sub_u32 s{sSg}, s{sTau}, s6')
    if cfg.y16:
        assert cfg.cd and not cfg.cell
        U = V(16, 4)
        a(f's_mul_i32 s{sY}, s{sTb}, {64*1152}'); a(f's_lshr_b32 s{sY}, s{sY}, s7')
        a(f's_lshl_b32 s6, s{sSg}, 6'); a(f's_add_u32 s{sY}, s{sY}, s6')
        a(f's_mul_i32 s6, s7, {YB - YA}'); a(f's_add_u32 s{sY}, s{sY}, s6'); a(f's_add_u32 s{sY}, s{sY}, {YA}')
        a(f'v_lshrrev_b32 {vr(t0)}, 2, {vr(vLane)}'); a(f'v_and_b32 {vr(t1)}, 3, {vr(vLane)}')
        a(f'v_mul_u32_u24 {vr(vYo)}, 1152, {vr(t0)}'); a(f'v_lshl_add_u32 {vr(vYo)}, {vr(t1)}, 4, {vr(vYo)}')
        a(f'v_bfe_u32 {vr(t0)}, {vr(vLane)}, 3, 2'); a(f'v_lshl_add_u32 {vr(t0)}, {vr(t0)}, 2, {vr(t1)}')
        a(f'v_lshrrev_b32 {vr(E)}, 5, {vr(vLane)}'); a(f'v_lshl_add_u32 {vr(vOo)}, {vr(E)}, 6, {vr(t0)}')
        a(f'v_lshrrev_b32 {vr(t0)}, 1, {vr(t1)}'); a(f'v_mul_u32_u24 {vr(t0)}, 142, {vr(t0)}'); a(f'v_add_u32 {vr(t0)}, {vr(t0)}, {vr(t1)}')
        a(f'v_lshrrev_b32 {vr(E)}, 3, {vr(vLane)}'); a(f'v_lshl_add_u32 {vr(t0)}, {vr(E)}, 1, {vr(t0)}')
        a(f's_lshr_b32 s6, s{sSg}, 2'); a(f's_mul_i32 s6, s6, 80'); a(f's_lshl_b32 s{sO}, s{sSg}, 4'); a(f's_add_u32 s{sO}, s{sO}, s6')
        a(f's_mul_i32 s6, s{sSg}, 288'); a(f's_sub_u32 s6, s6, {16*288 - 128}')
        a(f's_cmp_ge_u32 s{sSg}, 16'); a(f's_cselect_b32 s{sO}, s6, s{sO}'); a('s_cselect_b64 vcc, -1, 0')
        a(f'v_cndmask_b32 {vr(vOo)}, {vr(vOo)}, {vr(t0)}, vcc'); a(f'v_lshlrev_b32 {vr(vOo)}, 1, {vr(vOo)}')
        a(f's_lshl_b32 s{sO}, s{sO}, 1'); a(f's_mul_i32 s6, s{sTb}, 2304'); a(f's_add_u32 s{sO}, s{sO}, s6')
        a('s_mul_i32 s6, s7, 1152'); a(f's_add_u32 s{sO}, s{sO}, s6')
        stamp(9)
        a(f's_mul_i32 s{sDone}, s7, 12')
        for k in range(8, 16): a(f'v_mov_b32 {vr(U+k)}, 0')
        a(f's_mov_b32 s7, {cfg.spin_max}')
        if cfg.slow:
            a(f'v_lshrrev_b32 {vr(t0)}, 3, {vr(vLane)}'); a(f'v_mul_u32_u24 {vr(t0)}, 4608, {vr(t0)}')
            a('R_slow:')
            a(f'buffer_load_dword {vr(E)}, {vr(t0)}, {srd(S_WS)}, s{sY} offen {cfg.r_flags}')
            a('s_waitcnt vmcnt(0)')
            a(f'v_cmp_ne_u32 vcc, -1, {vr(E)}')
            a('s_cbranch_vccnz R_pass')
            a(f's_sleep {cfg.slow}')
            a('s_sub_u32 s7, s7, 1'); a('s_cmp_lg_u32 s7, 1'); a('s_cbranch_scc1 R_slow')
        a('R_pass:')
        for t in range(4):
            Ls = lab('ld')
            a(f's_bitcmp1_b32 s{sDone}, {t}'); a(f's_cbranch_scc1 {Ls}')
            a(f's_add_u32 s6, s{sY}, {t*16*1152}')
            a(f'buffer_load_dwordx4 {vr(U+4*t,4)}, {vr(vYo)}, {srd(S_WS)}, s6 offen {cfg.r_flags}')
            a(f'{Ls}:')
        a('s_waitcnt vmcnt(0)')
        for t in range(4):
            Ls = lab('ck'); y = U + 4 * t
            a(f's_bitcmp1_b32 s{sDone}, {t}'); a(f's_cbranch_scc1 {Ls}')
            a(f'v_max3_u32 {vr(E)}, {vr(y)}, {vr(y+1)}, {vr(y+2)}'); a(f'v_max_u32 {vr(E)}, {vr(E)}, {vr(y+3)}')
            a(f'v_cmp_eq_u32 vcc, -1, {vr(E)}')
            a(f's_cbranch_vccnz {Ls}')
            a(f's_bitset1_b32 s{sDone}, {t}')
            a(f'{Ls}:')
        a(f's_cmp_eq_u32 s{sDone}, 15'); a('s_cbranch_scc1 R_done')
        if cfg.rsleep: a(f's_sleep {cfg.rsleep}')
        a('s_sub_u32 s7, s7, 1'); a('s_cmp_lg_u32 s7, 0'); a('s_cbranch_scc1 R_pass')
        a('R_done:')
        stamp(10)
        for k in range(16):
            a(f'v_lshlrev_b32 {vr(Y+2*k)}, 16, {vr(U+k)}'); a(f'v_and_b32 {vr(Y+2*k+1)}, 0xffff0000, {vr(U+k)}')
        for st in (16, 8):
            for k in range(0, st, 2): a(f'v_pk_add_f32 {vr(Y+k,2)}, {vr(Y+k,2)}, {vr(Y+k+st,2)}')
        for t in range(4): a(f'v_permlane32_swap_b32 {vr(Y+t)}, {vr(Y+t+4)}')
        for t in (0, 2): a(f'v_pk_add_f32 {vr(Y+t,2)}, {vr(Y+t,2)}, {vr(Y+t+4,2)}')
        for t in range(2): a(f'v_permlane16_swap_b32 {vr(Y+t)}, {vr(Y+t+2)}')
        a(f'v_pk_add_f32 {vr(Y,2)}, {vr(Y,2)}, {vr(Y+2,2)}')
        for t in range(2): a(f'v_add_f32_dpp {vr(Y+t)}, {vr(Y+t)}, {vr(Y+t)} row_ror:4 {DPPF}')
        a(f'v_add_f32_dpp {vr(E)}, {vr(Y)}, {vr(Y)} row_ror:8 row_mask:0xf bank_mask:0x3')
        a(f'v_add_f32_dpp {vr(E)}, {vr(Y+1)}, {vr(Y+1)} row_ror:8 row_mask:0xf bank_mask:0xc')
        a(f'v_cvt_pk_bf16_f32 {vr(E)}, {vr(E)}, {vr(E)}')
        a('s_mov_b32 exec_lo, 0x0f0f0f0f'); a('s_mov_b32 exec_hi, 0x0f0f0f0f')
        a(f'buffer_store_short {vr(E)}, {vr(vOo)}, {srd(S_OUT)}, s{sO} offen {cfg.out_flags}')
        a('s_mov_b64 exec, -1')
    else:
        a(f's_mul_i32 s{sY}, s{sTb}, {8 * SA}')
        if cfg.cd and not cfg.cell: a(f's_lshr_b32 s{sY}, s{sY}, s7')
        a(f's_lshl_b32 s6, s{sSg}, 7'); a(f's_add_u32 s{sY}, s{sY}, s6')
        a(f's_mul_i32 s6, s7, {YB - YA}'); a(f's_add_u32 s{sY}, s{sY}, s6'); a(f's_add_u32 s{sY}, s{sY}, {YA}')
        a(f's_mul_i32 s{sO}, s{sTb}, 2304'); a(f's_lshl_b32 s6, s{sSg}, 6'); a(f's_add_u32 s{sO}, s{sO}, s6')
        a('s_mul_i32 s6, s7, 1152'); a(f's_add_u32 s{sO}, s{sO}, s6')
        a(f'v_lshrrev_b32 {vr(t0)}, 3, {vr(vLane)}'); a(f'v_and_b32 {vr(t1)}, 7, {vr(vLane)}')
        a(f'v_mul_u32_u24 {vr(vYo)}, 2304, {vr(t0)}'); a(f'v_lshl_add_u32 {vr(vYo)}, {vr(t1)}, 4, {vr(vYo)}')
        if cfg.cell:
            a(f's_mul_i32 s6, s7, {SB - 9216}'); a(f'v_lshrrev_b32 {vr(t0)}, 5, {vr(vLane)}'); a(f'v_mul_u32_u24 {vr(t0)}, s6, {vr(t0)}')
            a(f'v_add_u32 {vr(vYo)}, {vr(vYo)}, {vr(t0)}'); a(f's_lshl_b32 s{sTau}, {cfg.cell}, s7')
        a(f'v_bfe_u32 {vr(t0)}, {vr(vLane)}, 2, 1'); a(f'v_lshl_add_u32 {vr(t0)}, {vr(t0)}, 2, {vr(vG)}')
        a(f'v_and_b32 {vr(t1)}, 3, {vr(vLane)}'); a(f'v_lshl_add_u32 {vr(t0)}, {vr(t0)}, 2, {vr(t1)}'); a(f'v_lshlrev_b32 {vr(vOo)}, 1, {vr(t0)}')
        stamp(9)
        if cfg.cd:
            a(f's_mul_i32 s{sDone}, s7, 0xf0')
            for k in range(16, 32): a(f'v_mov_b32 {vr(Y+k)}, 0')
        else: a(f's_mov_b32 s{sDone}, 0')
        a(f's_mov_b32 s7, {cfg.spin_max}')
        if cfg.slow:
            a(f'v_lshrrev_b32 {vr(t0)}, 3, {vr(vLane)}'); a(f'v_mul_u32_u24 {vr(t0)}, {cfg.cell or 9216}, {vr(t0)}')
            a('R_slow:')
            a(f'buffer_load_dword {vr(E)}, {vr(t0)}, {srd(S_WS)}, s{sY} offen {cfg.r_flags}')
            a('s_waitcnt vmcnt(0)')
            a(f'v_cmp_ne_u32 vcc, -1, {vr(E)}')
            a('s_cbranch_vccnz R_pass')
            a(f's_sleep {cfg.slow}')
            a('s_sub_u32 s7, s7, 1'); a('s_cmp_lg_u32 s7, 1'); a('s_cbranch_scc1 R_slow')
        a('R_pass:')
        for t in range(8):
            Ls = lab('ld')
            a(f's_bitcmp1_b32 s{sDone}, {t}'); a(f's_cbranch_scc1 {Ls}')
            if cfg.cell: a(f's_mul_i32 s6, s{sTau}, {t}'); a(f's_add_u32 s6, s6, s{sY}')
            else: a(f's_add_u32 s6, s{sY}, {t*8*2304}')
            a(f'buffer_load_dwordx4 {vr(Y+4*t,4)}, {vr(vYo)}, {srd(S_WS)}, s6 offen {cfg.r_flags}')
            a(f'{Ls}:')
        a('s_waitcnt vmcnt(0)')
        for t in range(8):
            Ls = lab('ck'); y = Y + 4 * t
            a(f's_bitcmp1_b32 s{sDone}, {t}'); a(f's_cbranch_scc1 {Ls}')
            a(f'v_max3_u32 {vr(E)}, {vr(y)}, {vr(y+1)}, {vr(y+2)}'); a(f'v_max_u32 {vr(E)}, {vr(E)}, {vr(y+3)}')
            a(f'v_cmp_eq_u32 vcc, -1, {vr(E)}')
            a(f's_cbranch_vccnz {Ls}')
            a(f's_bitset1_b32 s{sDone}, {t}')
            a(f'{Ls}:')
        a(f's_cmp_eq_u32 s{sDone}, 255'); a('s_cbranch_scc1 R_done')
        if cfg.rsleep: a(f's_sleep {cfg.rsleep}')
        a('s_sub_u32 s7, s7, 1'); a('s_cmp_lg_u32 s7, 0'); a('s_cbranch_scc1 R_pass')
        a('R_done:')
        stamp(10)
        for st in (16, 8, 4):
            for k in range(0, st, 2): a(f'v_pk_add_f32 {vr(Y+k,2)}, {vr(Y+k,2)}, {vr(Y+k+st,2)}')
        a(f'v_permlane32_swap_b32 {vr(AS)}, {vr(AS+2)}'); a(f'v_permlane32_swap_b32 {vr(AS+1)}, {vr(AS+3)}')
        a(f'v_add_f32 {vr(AS)}, {vr(AS)}, {vr(AS+2)}'); a(f'v_add_f32 {vr(AS+1)}, {vr(AS+1)}, {vr(AS+3)}')
        a(f'v_permlane16_swap_b32 {vr(AS)}, {vr(AS+1)}')
        a(f'v_add_f32 {vr(AS)}, {vr(AS)}, {vr(AS+1)}')
        a(f'v_add_f32_dpp {vr(AS)}, {vr(AS)}, {vr(AS)} row_ror:8 {DPPF}')
        a(f'v_cvt_pk_bf16_f32 {vr(AS)}, {vr(AS)}, {vr(AS)}')
        a('s_mov_b32 exec_lo, 0x00ff00ff'); a('s_mov_b32 exec_hi, 0x00ff00ff')
        a(f'buffer_store_short {vr(AS)}, {vr(vOo)}, {srd(S_OUT)}, s{sO} offen {cfg.out_flags}')
        a('s_mov_b64 exec, -1')
    if cfg.dyn:
        a(f's_cmp_lg_u32 s{sW}, 0'); a('s_cbranch_scc1 B_fin')
        a(f'ds_write_b32 {vr(vC0)}, {vr(vC0)}'); a('s_waitcnt lgkmcnt(0)')
        a('B_fin:')
    stamp(11)
    a('B_end:')
    stamp_flush(t0, 'B')
    a('s_endpgm')
    if cfg.dyn: gen_helper(vLane, sHalf, sBeta, base, vC0)

def gen_helper(vLane, sHalf, sBeta, base, vFl):
    V = VAlloc(base)
    PG = V(4, 4); vA = V(); vB = V(); vO = V(); vP = V(); S = V(); t = V(); dm = V(2)
    pf, p, d, sS, sJ, sD, sN = 16, 20, 24, 28, 29, 30, 31
    BIG = 0x2000000
    a('H_start:')
    if cfg.xh:
        a(f's_bitcmp1_b32 s{sH}, 2'); a('s_cbranch_scc1 B_end')
        a(f's_add_u32 s{sH}, s{sH}, {cfg.xd}'); a(f's_and_b32 s{sH}, s{sH}, 31')
    a(f's_lshl_b32 s6, s{sHalf}, 6'); a(f's_add_u32 s6, s6, s{sH}'); a('s_lshl_b32 s6, s6, 20')
    mk_srd(S_V, P_V, 's6', BIG + 0x100000)
    a(f'v_lshlrev_b32 {vr(vA)}, 7, {vr(vLane)}'); a(f'v_and_b32 {vr(vB)}, 4095, {vr(vA)}'); a(f'v_add_u32 {vr(vA)}, 4096, {vr(vA)}')
    a(f'v_lshrrev_b32 {vr(t)}, 5, {vr(vLane)}'); a(f'v_mul_u32_u24 {vr(t)}, 20480, {vr(t)}'); a(f'v_add_u32 {vr(vB)}, {vr(vB)}, {vr(t)}')
    if cfg.hloc:
        a(f's_and_b32 s6, s{sBeta}, 56'); a(f'v_and_b32 {vr(vP)}, 7, {vr(vLane)}'); a(f'v_add_u32 {vr(vP)}, s6, {vr(vP)}')
        a(f'v_mul_u32_u24 {vr(vP)}, {cfg.psp}, {vr(vP)}')
    else: a(f'v_mul_u32_u24 {vr(vP)}, {cfg.psp}, {vr(vLane)}')
    a(f'v_add_u32 {vr(vP)}, {PROG}, {vr(vP)}')
    if cfg.pxs != 8 * cfg.psp: a(f's_lshr_b32 s7, s{sH}, 2'); a(f's_mul_i32 s7, s7, {cfg.pxs - 8 * cfg.psp}'); a(f'v_add_u32 {vr(vP)}, s7, {vr(vP)}')
    for j in range(3): a(f's_mov_b32 s{pf+j}, 43')
    a(f's_mov_b32 s{sN}, {cfg.spin_max}')
    if cfg.dyn == 2: a('s_branch H_end')
    if cfg.mon: a(f's_cmp_eq_u32 s{sW}, 1'); a('s_cbranch_scc1 M_start')
    NP = 4 if cfg.mon and not cfg.thr else 3
    def psum():
        for j in range(3):
            if cfg.ctl:
                a(f'v_subrev_u32 {vr(PG+j)}, {44 - cfg.hoff}, {vr(PG+j)}')
                if not cfg.hlo: a(f'v_cmp_lt_i32 vcc, {cfg.hoff}, {vr(PG+j)}'); a(f'v_cndmask_b32 {vr(PG+j)}, -1, {vr(PG+j)}, vcc')
            a(f'v_med3_i32 {vr(PG+j)}, {vr(PG+j)}, {-cfg.hlo if cfg.hlo else -1}, {28 + cfg.hoff}')
        a(f'v_add3_u32 {vr(S)}, {vr(PG)}, {vr(PG+1)}, {vr(PG+2)}')
        for sh in (4, 2, 1): a(f'v_add_u32_dpp {vr(S)}, {vr(S)}, {vr(S)} row_ror:{sh} {DPPF}')
        a(f'v_lshlrev_b32 {vr(S)}, 3, {vr(S)}')
        a(f'v_readfirstlane_b32 s{sS}, {vr(S)}')
    a(f'buffer_load_dwordx{NP} {vr(PG,NP)}, {vr(vP)}, {srd(S_WS)}, 0 offen {cfg.pl_flags}')
    a('s_waitcnt vmcnt(0)')
    a('H_loop:')
    psum()
    for j in range(3): a(f'v_readlane_b32 s{p+j}, {vr(PG+j)}, s{sBeta}')
    if NP == 4: a(f'v_readlane_b32 s6, {vr(PG+3)}, 7'); a(f's_add_i32 s{sS}, s{sS}, s6')
    if cfg.hforce:
        a(f's_and_b32 s6, s2, 7'); a(f's_mov_b32 s7, {cfg.hforce}'); a('s_bitcmp1_b32 s7, s6'); a(f's_cselect_b32 s6, {cfg.hfa}, 0'); a(f's_add_i32 s{sS}, s{sS}, s6')
    a(f'buffer_load_dwordx{NP} {vr(PG,NP)}, {vr(vP)}, {srd(S_WS)}, 0 offen {cfg.pl_flags}')
    NEG = -(1 << 20)
    for j in range(3):
        a(f's_mul_i32 s6, s{p+j}, 192'); a(f's_sub_i32 s{d+j}, s{sS}, s6')
        a(f's_mul_i32 s6, s{pf+j}, {cfg.hK}'); a(f's_add_i32 s{d+j}, s{d+j}, s6')
        a(f's_add_i32 s6, s{pf+j}, {cfg.hoff - 16 - cfg.hmar}'); a(f's_cmp_ge_i32 s6, s{p+j}')
        a(f's_cselect_b32 s{d+j}, s{d+j}, {NEG}')
    if cfg.xh:
        for j in range(3):
            a(f's_lshl_b32 s{d+j}, s{pf+j}, 12'); a(f's_cmp_gt_i32 s{pf+j}, {43 - cfg.xh}'); a(f's_cselect_b32 s{d+j}, s{d+j}, {NEG}')
    a(f's_cmp_ge_i32 s{d}, s{d+1}'); a(f's_cselect_b32 s{sJ}, 0, 1'); a(f's_max_i32 s{sD}, s{d}, s{d+1}')
    a(f's_cmp_ge_i32 s{sD}, s{d+2}'); a(f's_cselect_b32 s{sJ}, s{sJ}, 2'); a(f's_max_i32 s{sD}, s{sD}, s{d+2}')
    a(f's_cmp_eq_i32 s{sD}, {NEG}'); a('s_cbranch_scc1 H_end')
    a(f's_sub_u32 s{sN}, s{sN}, 1'); a(f's_cmp_eq_u32 s{sN}, 0'); a('s_cbranch_scc1 H_end')
    a(f's_cmp_lt_i32 s{sD}, {43 * cfg.hK + cfg.hth}'); a('s_cbranch_scc1 H_idle')
    for j in range(3):
        a(f's_cmp_eq_u32 s{sJ}, {j}'); a(f's_cselect_b32 s6, s{pf+j}, s6'); a(f's_subb_u32 s{pf+j}, s{pf+j}, 0')
    a('s_mul_i32 s6, s6, 24576'); a('s_sub_u32 s6, s6, 32768')
    a(f's_cmp_eq_u32 s{sJ}, 2'); a(f's_cselect_b32 s7, {BIG}, 0'); a('s_add_u32 s6, s6, s7')
    a(f's_cmp_eq_u32 s{sJ}, 1'); a('s_cselect_b64 vcc, -1, 0'); a('s_cselect_b32 s7, 25, 13'); a('s_lshl_b32 s7, 1, s7'); a('s_add_u32 s7, s7, s6')
    a(f'v_cndmask_b32 {vr(vO)}, {vr(vA)}, {vr(vB)}, vcc')
    a(f'buffer_load_dword {vr(dm)}, {vr(vO)}, {srd(S_V)}, s6 offen {cfg.h_flags}')
    a(f'buffer_load_dword {vr(dm+1)}, {vr(vO)}, {srd(S_V)}, s7 offen {cfg.h_flags}')
    a('s_waitcnt vmcnt(2)')
    a('s_branch H_loop')
    a('H_idle:')
    a(f'ds_read_b32 {vr(t)}, {vr(vFl)}')
    a('s_waitcnt vmcnt(0) lgkmcnt(0)'); a(f's_sleep {cfg.hsleep}')
    a(f'v_cmp_eq_u32 vcc, 0, {vr(t)}')
    a('s_cbranch_vccnz H_loop')
    a('H_end:')
    if cfg.stamps:
        a(f's_add_u32 s98, s{pf}, s{pf+1}'); a(f's_add_u32 s98, s98, s{pf+2}'); a('s_sub_u32 s98, 129, s98')
        a(f's_lshl_b32 s99, s{pf+1}, 8'); a(f's_or_b32 s99, s99, s{pf}'); a(f's_lshl_b32 s6, s{pf+2}, 16'); a('s_or_b32 s99, s99, s6')
    stamp(8)
    a('s_branch B_end')
    if cfg.ctl:
        mon = Mon(V(8, 4))
        a('M2_start:')
        mon.init(vLane, sBeta)
        a(f's_mov_b32 s{sN}, {cfg.spin_max}')
        a('M2_loop:')
        mon.loads()
        a(f'ds_read_b32 {vr(t)}, {vr(vFl)}')
        a('s_waitcnt vmcnt(0) lgkmcnt(0)')
        mon.step()
        if cfg.msleep: a(f's_sleep {cfg.msleep}')
        a(f's_cmp_ge_i32 s{mon.sS}, {192 * (28 + cfg.tm1 - 4)}'); a('s_cbranch_scc1 B_end')
        a(f's_sub_u32 s{sN}, s{sN}, 1'); a(f's_cmp_eq_u32 s{sN}, 0'); a('s_cbranch_scc1 B_end')
        a(f'v_cmp_eq_u32 vcc, 0, {vr(t)}')
        a('s_cbranch_vccnz M2_loop')
        a('s_branch B_end')
    if cfg.mon:
        GL = PROG + 0x8000; sX, sG, sDl, sO, sL = 16, 17, 18, 19, 20
        a('M_start:')
        a(f'v_and_b32 {vr(vA)}, {cfg.mref-1}, {vr(vLane)}'); a(f'v_lshlrev_b32 {vr(vA)}, 7, {vr(vA)}'); a(f'v_add_u32 {vr(vA)}, {GL}, {vr(vA)}')
        if cfg.mref == 4: a(f's_and_b32 s6, s{sBeta}, 32'); a('s_lshl_b32 s6, s6, 4'); a(f'v_add_u32 {vr(vA)}, s6, {vr(vA)}')
        a(f's_lshr_b32 s{sX}, s{sBeta}, 3'); a(f's_lshl_b32 s{sG}, s{sX}, 7'); a(f's_add_u32 s{sG}, s{sG}, {GL}')
        a(f's_mul_i32 s{sL}, s{sBeta}, {cfg.psp}'); a(f's_add_u32 s{sL}, s{sL}, {PROG + 12}')
        if cfg.thr: a(f's_sub_u32 s{sL}, s{sG}, 0x4000')
        a(f's_mov_b32 s{sDl}, 0')
        a('M_loop:')
        a(f'buffer_load_dwordx3 {vr(PG,3)}, {vr(vP)}, {srd(S_WS)}, 0 offen {cfg.pl_flags}')
        a(f'buffer_load_dword {vr(vB)}, {vr(vA)}, {srd(S_WS)}, 0 offen sc1')
        a(f'ds_read_b32 {vr(t)}, {vr(vFl)}')
        a('s_waitcnt vmcnt(1)')
        psum()
        a('s_mov_b64 exec, 1')
        a(f'buffer_store_dword {vr(S)}, off, {srd(S_WS)}, s{sG} sc1')
        a('s_mov_b64 exec, -1')
        a('s_waitcnt vmcnt(1) lgkmcnt(0)')
        a(f'v_readlane_b32 s{sO}, {vr(vB)}, s{sX}')
        a(f'v_cmp_eq_u32 vcc, -1, {vr(vB)}')
        a(f's_cmp_eq_u32 s{sO}, -1'); a('s_cbranch_scc1 M_next')
        a(f'v_subrev_u32 {vr(vB)}, s{sO}, {vr(vB)}')
        a(f'v_cndmask_b32 {vr(vB)}, {vr(vB)}, 0, vcc')
        for sh in (4, 2, 1): a(f'{"v_min_i32_dpp" if cfg.mmin else "v_add_u32_dpp"} {vr(vB)}, {vr(vB)}, {vr(vB)} row_ror:{sh} {DPPF}')
        a(f'v_readfirstlane_b32 s6, {vr(vB)}')
        if not cfg.mmin: a(f's_mul_i32 s6, s6, {cfg.mg}'); a('s_ashr_i32 s6, s6, 5')
        a(f's_sub_i32 s6, s6, s{sDl}'); a(f's_ashr_i32 s6, s6, {cfg.mf}'); a(f's_add_i32 s{sDl}, s{sDl}, s6')
        if cfg.thr:
            a(f's_cmp_lt_i32 s{sDl}, {-cfg.mth}')
            if cfg.tforce: a(f's_mov_b32 s6, {cfg.tforce}'); a(f's_bitcmp1_b32 s6, s{sX}')
            a('s_cselect_b32 s6, 1, 0'); a(f'v_mov_b32 {vr(vO)}, s6')
        else: a(f'v_mov_b32 {vr(vO)}, s{sDl}')
        a('s_mov_b64 exec, 1')
        a(f'buffer_store_dword {vr(vO)}, off, {srd(S_WS)}, s{sL}')
        a('s_mov_b64 exec, -1')
        a('M_next:')
        if cfg.msleep: a(f's_sleep {cfg.msleep}')
        a(f's_cmp_ge_i32 s{sS}, {192 * (28 + cfg.hoff)}'); a('s_cbranch_scc1 M_end')
        a(f's_sub_u32 s{sN}, s{sN}, 1'); a(f's_cmp_eq_u32 s{sN}, 0'); a('s_cbranch_scc1 M_end')
        a(f'v_cmp_eq_u32 vcc, 0, {vr(t)}')
        a('s_cbranch_vccnz M_loop')
        a('M_end:')
        if cfg.stamps: a(f's_sub_u32 s98, {cfg.spin_max}, s{sN}')
        a('s_branch B_end')

def gen():
    hdr = open('/code/' + NAME + '.s.ref').read().split('; Override')[0]
    a(f'{NAME}_kernel:')
    a('s_cmp_ge_u32 s2, 256'); a('s_cbranch_scc1 L_exit')
    a('s_load_dwordx16 s[16:31], s[0:1], 0'); a('s_load_dwordx8 s[32:39], s[0:1], 64'); a('s_load_dwordx4 s[40:43], s[0:1], 96')
    a('v_lshrrev_b32 v1, 6, v0'); a(f'v_readfirstlane_b32 s{sW}, v1')
    if cfg.hmap == 0:
        a('s_and_b32 s6, s2, 7'); a('s_bfe_u32 s7, s2, 0x20003'); a(f's_lshl_b32 s{sH}, s6, 2'); a(f's_add_u32 s{sH}, s{sH}, s7')
    else:
        a(f's_and_b32 s{sH}, s2, 31')
    a(f's_lshr_b32 s{sR}, s2, 5')
    if cfg.stamps:
        a('s_waitcnt lgkmcnt(0)')
        for k in range(16): a(f's_mov_b32 s{84+k}, 0')
        stamp(0)
        a('s_getreg_b32 s96, hwreg(HW_REG_HW_ID)'); a('s_getreg_b32 s97, hwreg(HW_REG_XCC_ID)')
    a(f's_cmp_lt_u32 s{sR}, 2'); a('s_cbranch_scc1 B_role')
    gen_A()
    a('L_exit:'); a('s_endpgm')
    gen_CD() if cfg.cd else gen_B()
    body = a.finish()
    out = hdr + f'; @launch grid=(256,1,1) block=(256,1,1) lds={LDS_TOTAL}\n'
    out += '; generated by gen/gen.py (hand-written generator)\n'
    out += f'.amdgcn_target "amdgcn-amd-amdhsa--gfx950"\n.text\n.globl {NAME}_kernel\n.p2align 8\n.type {NAME}_kernel,@function\n'
    out += body
    out += f'''.section .rodata,"a"
.p2align 6
.amdhsa_kernel {NAME}_kernel
  .amdhsa_next_free_vgpr 512
  .amdhsa_next_free_sgpr 102
  .amdhsa_accum_offset 256
  .amdhsa_group_segment_fixed_size 0
  .amdhsa_kernarg_size 112
  .amdhsa_user_sgpr_count 2
  .amdhsa_user_sgpr_kernarg_segment_ptr 1
  .amdhsa_system_sgpr_workgroup_id_x 1
.end_amdhsa_kernel
'''
    return out

if __name__ == '__main__':
    outp = sys.argv[1]
    for kv in sys.argv[2:]:
        k, v = kv.split('=', 1); v = v.replace('+', ' ')
        cur = getattr(cfg, k)
        setattr(cfg, k, (v == '1') if isinstance(cur, bool) else (int(v, 0) if isinstance(cur, int) else v))
    PART = cfg.part << 12; YA = cfg.ya << 12; YB = cfg.yb << 12; QABS = cfg.qa << 12
    if cfg.cell: SA = SB = SQ = cfg.cell; YA = PART + 32768; YB = YA + 18432; QABS = YB + 9216
    if cfg.astr > 64: AST = 0x600000
    if cfg.pstt > 256: PSTAT = 0xa00000
    open(outp, 'w').write(gen())
```

```python
import sys, math, struct
from asmlib import Asm, VM
NAME = 'concat_heads__mha_block_cached__compressed_kv_cla__decode'

class Cfg:
    stamps = False
    R = 8
    wq_flags = ''
    wo_flags = ''
    b_flags = 'nt'
    dma_t0 = 0
    dma_per = 4
    ev_trip = 16
    hmap = 0
    trips = False
    diag = ''
    rsleep = 0
    wq_per = 3
    spin_max = 400000
    noB = False
    bskip = 0
    askip = 0
    bstop = 0
    psleep = 16
    qsleep = 16
    nodma = False
    kv_flags = 'nt'
    warm = 0
    wqpf = 2
    dyn = 1
    hloc = 1
    dup = 0
    pl_flags = 'sc1'
    ps_flags = ''
    r_flags = 'sc1'
    psp = 16
    pper = 1
    hK = 24
    hth = 384
    hmar = 2
    hsleep = 4
    hoff = 3
    thr = 0
    mth = 96
    tm0 = 20
    tm1 = 42
    tforce = 0
    cthr = 4
    fast = 3
    est = 0
    y16 = 1
    pdel = 0
    t16 = 0
    pl2 = 'sc1'
    dsk2 = 0
    cell = 0
    mth2 = 100000
    lv2 = 2
    msh = 0
    gl_flags = 'sc1'
    gls = 1280
    astr = 64
    pstt = 0
    pth = 0
    vth = 0
    vth0 = 16
    vth1 = 99
    kper = 2
    fd = 8
    vper = 1
    pxs = 4352
    tf_flags = 'sc1'
    tfw = 0
    cdbg = 0
    mrate = 4
    ctl = 0
    thrk = 14
    toff = 1
    mal = 0
    hlo = 0
    cuv = 8
    cdn = 2
    tstat = 0
    tsv = 7
    rnb = 2
    rth = 12
    rmf = 1
    c0x = 2
    ne = 2
    y_flags = 'sc1'
    sk = 4
    flg = 0
    pre4 = 1
    smf = 1
    rd = 5
    tsp = 2
    tst = '32,99,32,99,32,99,32,99'
    part = 0x200
    ya = 0x400
    yb = 0x500
    qa = 0
    psx = 2
    hforce = 0
    hfa = 400
    dskip = 0
    dthr = 6
    mref = 8
    mmin = 0
    tdist = 3
    tper = 1
    nch = 8
    dloop = 0
    qslow = 8
    dpf = 0
    cd = 1
    slow = 8
    cw2 = 2
    cpre = 0
    dhold = 0
    pf_flags = ''
    qfull = 1
    pshare = 1
    c0_trip = 8
    ytouch = 0
    xh = 0
    xd = 4
    h_flags = ''
    mon = 0
    mf = 1
    mg = 4
    msleep = 0
    emu = 0
    bwq_flags = 'nt'
    pst_flags = 'sc1'
    pld_flags = 'sc1'
    clr_flags = 'sc1'
    yb_flags = 'sc1'
    dmask = 0
    dmul = 1
    out_flags = ''
    stag = '8,20,32'
    wopf_at = 4
    dgrp = 3
    dstep = 1
    vck = 0
    vcv = 0
    vsw = 16
    vcp = 63
    cwin = 2
    help = 0
    hsh = 4
    ev_per = 4
    wmix = 0
    st_per = 4
    kfirst = 0
    dma_mode = 0
    npv = 7
    st_m = 36
    ev2_m = 41
    dend = 4
    dm0 = 36
    dsl = 1
    xper = 4
    ev_slot = 12
    vhold = 0
cfg = Cfg()

QABS = 0x000000; PSTAT = 0x040000; AST = 0x050000; PROG = 0x060000; PART = 0x100000; YA = 0x400000; YB = 0x500000
WS_USED = 0x1000000
STAMP = 0x10000000
SA, SB, SQ = 18432, 9216, 4096
C1 = 192; C2 = 128
C0 = 0; C0N = 128; TFO = 0x10400
OOB = 0x7ff00000
LDS_TOTAL = 163840
SCALE = (128 ** -0.5) * math.log2(math.e)
def f2u(x): return struct.unpack('<I', struct.pack('<f', x))[0]

P_AX, P_K, P_V, P_WQ, P_WO, P_BX, P_CKV, P_BWQ, P_WUK, P_WUV, P_BWO, P_OUT, P_DBG, P_WS = 16, 18, 20, 22, 24, 26, 28, 30, 32, 34, 36, 38, 40, 42
S_X, S_W, S_K, S_V, S_WO, S_WS, S_DBG, S_OUT, S_U = 44, 48, 52, 56, 60, 64, 68, 72, 76
sW, sH, sR = 3, 4, 5
def srd(n): return f's[{n}:{n+3}]'
def vr(n, k=1): return f'v{n}' if k == 1 else f'v[{n}:{n+k-1}]'
def ar(n, k=1): return f'a{n}' if k == 1 else f'a[{n}:{n+k-1}]'

class VAlloc:
    def __init__(self, start=1): self.n = start
    def __call__(self, k=1, align=1):
        align = max(align, 2 if k > 1 else 1)
        self.n = (self.n + align - 1) // align * align
        r = self.n; self.n += k
        assert self.n <= 256, 'out of vgprs'
        return r

a = Asm()
nstamp = [0]
def stamp(k):
    if cfg.stamps:
        a(f's_memrealtime s[100:101]'); a('s_waitcnt lgkmcnt(0)'); a(f's_mov_b32 s{84+k}, s100')
def stamp_flush(vt, role=''):
    if cfg.diag:
        k = int(cfg.diag[1:]) if cfg.diag[0] == role else 0
        L = lab('diag')
        a(f's_cmp_eq_u32 s{84+k}, 0'); a(f's_cselect_b32 s6, s84, s{84+k}'); a('s_add_u32 s6, s6, 10000')
        a(f'{L}:'); a('s_sleep 4'); a('s_memrealtime s[100:101]'); a('s_waitcnt lgkmcnt(0)')
        a('s_sub_u32 s7, s100, s6'); a('s_cmp_lt_i32 s7, 0'); a(f's_cbranch_scc1 {L}')
        return
    if cfg.stamps:
        a(f's_lshl_b32 s6, s2, 2'); a(f's_add_u32 s6, s6, s{sW}'); a('s_lshl_b32 s6, s6, 6'); a(f's_add_u32 s6, s6, {STAMP}')
        a(f's_mov_b32 s{S_WS+2}, 0x20000000')
        a(f'v_mov_b32 {vr(vt+1)}, 0')
        a('s_mov_b64 exec, 1')
        for k in range(16):
            a(f'v_mov_b32 {vr(vt)}, s{84+k}')
            a(f'buffer_store_dword {vr(vt)}, {vr(vt+1)}, {srd(S_WS)}, s6 offen offset:{4*k}')
            a('s_nop 1')
        a('s_mov_b64 exec, -1')

def karg_wait():
    a('s_waitcnt lgkmcnt(0)')
    if cfg.stamps: a('s_mov_b32 s84, s78')
def mk_srd(d, p, off, size):
    if off is None:
        a(f's_mov_b32 s{d}, s{p}'); a(f's_mov_b32 s{d+1}, s{p+1}')
    else:
        a(f's_add_u32 s{d}, s{p}, {off}'); a(f's_addc_u32 s{d+1}, s{p+1}, 0')
    a(f's_mov_b32 s{d+2}, {size}'); a(f's_mov_b32 s{d+3}, 0x20000')

uid = [0]
def lab(p):
    uid[0] += 1
    return f'L_{p}_{uid[0]}'

def poll(coff, target, vt):
    L, D = lab('poll'), lab('polld')
    a(f's_cmp_lg_u32 s{sW}, 0'); a(f's_cbranch_scc1 {D}')
    a(f's_mov_b32 s7, {cfg.spin_max}')
    a(f'{L}:')
    a(f'buffer_load_dword {vr(vt)}, off, {srd(S_DBG)}, 0 offset:{coff} sc1')
    a('s_waitcnt vmcnt(0)')
    a(f'v_readfirstlane_b32 s6, {vr(vt)}')
    a(f's_cmp_ge_u32 s6, {target}'); a(f's_cbranch_scc1 {D}')
    a(f's_sleep {cfg.psleep}')
    a('s_sub_u32 s7, s7, 1'); a('s_cmp_lg_u32 s7, 0'); a(f's_cbranch_scc1 {L}')
    a(f'{D}:')
    a('s_barrier')

def ensure(coff, target, vt):
    if coff == C0 and cfg.c0x & 1: return
    if coff == C0 and cfg.c0x == 2: target = 32
    L, D = lab('ens'), lab('ensd')
    a(f's_mov_b32 s7, {cfg.spin_max}')
    a(f'{L}:')
    a(f'v_readfirstlane_b32 s6, {vr(vt)}')
    a(f's_cmp_ge_u32 s6, {target}'); a(f's_cbranch_scc1 {D}')
    a(f's_sleep {cfg.psleep}')
    a(f'buffer_load_dword {vr(vt)}, off, {srd(S_DBG)}, 0 offset:{coff} sc1')
    a('s_waitcnt vmcnt(0)')
    a('s_sub_u32 s7, s7, 1'); a('s_cmp_lg_u32 s7, 0'); a(f's_cbranch_scc1 {L}')
    a(f'{D}:')

def umax_tree(dst, regs):
    regs = list(regs)
    a(f'v_max3_u32 {vr(dst)}, {vr(regs[0])}, {vr(regs[1])}, {vr(regs[2])}'); regs = regs[3:]
    while len(regs) >= 2:
        a(f'v_max3_u32 {vr(dst)}, {vr(dst)}, {vr(regs[0])}, {vr(regs[1])}'); regs = regs[2:]
    if regs: a(f'v_max_u32 {vr(dst)}, {vr(dst)}, {vr(regs[0])}')

def signal(coff, vt):
    D = lab('sig')
    a('s_waitcnt vmcnt(0) lgkmcnt(0)'); a('s_barrier')
    a(f's_cmp_lg_u32 s{sW}, 0'); a(f's_cbranch_scc1 {D}')
    a(f'v_mov_b32 {vr(vt)}, 1'); a('s_mov_b64 exec, 1')
    a(f'buffer_atomic_add {vr(vt)}, off, {srd(S_DBG)}, 0 offset:{coff}')
    a('s_mov_b64 exec, -1')
    a(f'{D}:')

def allred_rows(x, t, op):
    for sw in ('v_permlane16_swap_b32', 'v_permlane32_swap_b32'):
        a(f'v_mov_b32 {vr(t)}, {vr(x)}')
        a(f'{sw} {vr(x)}, {vr(t)}')
        a(f'{op} {vr(x)}, {vr(x)}, {vr(t)}')

DPPF = 'row_mask:0xf bank_mask:0xf'
def reduce4(T, X, S):
    a(f'v_add_f32_dpp {vr(X)}, {vr(T)}, {vr(T)} row_ror:8 row_mask:0xf bank_mask:0x3')
    a(f'v_add_f32_dpp {vr(X+1)}, {vr(T+1)}, {vr(T+1)} row_ror:8 row_mask:0xf bank_mask:0x3')
    a(f'v_add_f32_dpp {vr(X)}, {vr(T+2)}, {vr(T+2)} row_ror:8 row_mask:0xf bank_mask:0xc')
    a(f'v_add_f32_dpp {vr(X+1)}, {vr(T+3)}, {vr(T+3)} row_ror:8 row_mask:0xf bank_mask:0xc')
    a(f'v_add_f32_dpp {vr(S)}, {vr(X)}, {vr(X)} row_half_mirror row_mask:0xf bank_mask:0x5')
    a(f'v_add_f32_dpp {vr(S)}, {vr(X+1)}, {vr(X+1)} row_half_mirror row_mask:0xf bank_mask:0xa')
    a(f'v_add_f32_dpp {vr(S)}, {vr(S)}, {vr(S)} quad_perm:[1,0,3,2] {DPPF}')
    a(f'v_add_f32_dpp {vr(S)}, {vr(S)}, {vr(S)} quad_perm:[2,3,0,1] {DPPF}')

def mk_masks(vLane, MASK, SEL, t0, t1):
    a(f'v_and_b32 {vr(t0)}, 1, {vr(vLane)}'); a(f'v_lshlrev_b32 {vr(t0)}, 4, {vr(t0)}')
    a(f'v_mov_b32 {vr(t1)}, 0xffff'); a(f'v_lshlrev_b32 {vr(t0)}, {vr(t0)}, {vr(t1)}')
    a(f'v_bfe_u32 {vr(t1)}, {vr(vLane)}, 1, 2')
    for r in range(4):
        a(f'v_cmp_eq_u32 vcc, {r}, {vr(t1)}')
        a(f'v_cndmask_b32 {vr(MASK+r)}, 0, {vr(t0)}, vcc')
    a(f'v_mov_b32 {vr(t0)}, 0x0c0c0c0c')
    a('s_mov_b32 s6, 0x01000100'); a('s_mov_b32 s7, 0x03020302')
    for par in range(2):
        for r in range(4):
            a(f'v_bfi_b32 {vr(SEL+4*par+r)}, {vr(MASK+r)}, s{6+par}, {vr(t0)}')

def warm_code(l0, l1, vLane, t0, t1, n=2):
    L = lab('pc')
    a('s_getpc_b64 s[98:99]'); a(f'{L}:')
    for k in range(n):
        a(f'v_lshlrev_b32 {vr(t0)}, 7, v0')
        if k: a(f'v_add_u32 {vr(t0)}, {32768*k}, {vr(t0)}')
        a(f'v_min_u32 {vr(t0)}, {l1}-{L}, {vr(t0)}')
        a(f'global_load_dword {ar(255-k)}, {vr(t0)}, s[98:99]')

AW = 96

def x_loads(vm, X, vXoff, extra):
    for k in range(4):
        vm.issue(f'buffer_load_dwordx4 {vr(X+4*k,4)}, {vr(vXoff)}, {srd(S_X)}, 0 offen offset:{extra+16*k}', 'x')
    vm.issue(f'buffer_load_dwordx2 {vr(X+16,2)}, {vr(vXoff)}, {srd(S_X)}, 0 offen offset:{extra+64}', 'x')

def wunit_load(vm, jj, vWoff, flags):
    a(f's_mov_b32 s6, {jj*8192}')
    vm.issue(f'buffer_load_dwordx4 {ar(AW+4*jj,4)}, {vr(vWoff)}, {srd(S_W)}, s6 offen {flags}', ('w', jj))

def wunit_mfma(jj, Xs, ACCs, SEL, PA, W=None):
    for s, (X, ACC) in enumerate(zip(Xs, ACCs)):
        P = PA + 4 * ((jj * len(Xs) + s) & 3)
        for r in range(4):
            a(f'v_perm_b32 {vr(P+r)}, {vr(X+jj//2)}, {vr(X+jj//2)}, {vr(SEL+4*(jj&1)+r)}')
        c = '0' if jj == 0 else vr(ACC, 4)
        a(f'v_mfma_f32_16x16x32_bf16 {vr(ACC,4)}, {vr(P,4)}, {ar(AW+4*jj,4) if W is None else vr(W+4*jj,4)}, {c}')

def wo_frag_list(nks, vT, pair=False):
    out = []
    if pair:
        for j in range(4):
            for ks in range(nks):
                for i in range(4):
                    out.append(f'ds_read_b64_tr_b16 {ar(AW+8*(j*nks+ks)+2*i,2)}, {vr(vT + (2 if ks >= 2 else 0))} offset:{(32 * (ks & 1) + 2 * (i & 1) + 16 * (i >> 1)) * 1152 + 8 * j}')
    for t in range(8 if pair else 0, 9):
        for ks in range(nks):
            for sec in range(2):
                reg = vT + (1 if t == 8 else 0) + (2 if ks >= 2 else 0)
                off = (32 * (ks & 1) + 4 * sec) * 1152 + (0 if t == 8 else 128 * (t >> 2) + 8 * (t & 3))
                out.append(f'ds_read_b64_tr_b16 {ar(AW+4*(t*nks+ks)+2*sec,2)}, {vr(reg)} offset:{off}')
    return out
def wo_frag_reads(nks, vT):
    for t in wo_frag_list(nks, vT): a(t)

def mk_wo_tr_addr(vLane, vT, t0, t1, two, pair=False):
    a(f'v_lshrrev_b32 {vr(t0)}, 4, {vr(vLane)}'); a(f'v_lshlrev_b32 {vr(t0)}, 3, {vr(t0)}')
    a(f'v_bfe_u32 {vr(t1)}, {vr(vLane)}, 2, 2'); a(f'v_add_u32 {vr(t0)}, {vr(t0)}, {vr(t1)}')
    a(f'v_mul_u32_u24 {vr(t0)}, 1152, {vr(t0)}')
    a(f's_mul_i32 s6, s{sW}, 288'); a(f'v_add_u32 {vr(t0)}, s6, {vr(t0)}')
    a(f'v_and_b32 {vr(t1)}, 3, {vr(vLane)}')
    a(f'v_lshl_add_u32 {vr(vT)}, {vr(t1)}, 5, {vr(t0)}')
    a(f'v_lshl_add_u32 {vr(vT+1)}, {vr(t1)}, 3, {vr(t0)}'); a(f'v_add_u32 {vr(vT+1)}, 256, {vr(vT+1)}')
    if pair:
        a(f'v_bfe_u32 {vr(t1)}, {vr(vLane)}, 3, 1'); a(f'v_mul_u32_u24 {vr(t1)}, {2304 - 128}, {vr(t1)}'); a(f'v_sub_u32 {vr(vT)}, {vr(vT)}, {vr(t1)}')
        a(f'v_lshrrev_b32 {vr(t1)}, 4, {vr(vLane)}'); a(f'v_mul_u32_u24 {vr(t1)}, 4608, {vr(t1)}'); a(f'v_sub_u32 {vr(vT)}, {vr(vT)}, {vr(t1)}')
    if two:
        a(f'v_add_u32 {vr(vT+2)}, 73728, {vr(vT)}'); a(f'v_add_u32 {vr(vT+3)}, 73728, {vr(vT+1)}')

def gen_A():
    R = cfg.R; NT = 11; RT = R // 4
    assert R % 4 == 0
    V = VAlloc(1)
    vLane = V(); vL16 = V(); vWoff = V(); vXoff = V(); t0 = V(); t1 = V(); vC = V()
    MASK = V(4); SEL = V(8); ACC = V(4, 4); Q = V(4); T = V(4); XX = V(2); S = V(); M = V(); M2 = V(); fN = V()
    X = V(20, 4); PA = V(16, 4); D = X
    P = V(NT); vT = V(4); vY = V(); vY8 = V(); vOw = V(); vOr = V(); vC0 = V(); G = V(8); F = V(4); O = V(6, 2); vTS = V(); vPg = V(); vPo = V()
    KR = V(16 * R, 4)
    QRED = 147456; OT = QRED + 4096
    sJJ, sPair, sB, sRank, sOff, sReal, sBeg, sD, sDn, sTrip, sSt, sBsel = 8, 9, 10, 11, 12, 13, 14, 15, 80, 81, 82, 83
    sMk = 72
    sVo = 34
    STEP = 6 * 4096
    a('A_role:')
    a(f's_sub_u32 s{sJJ}, s{sR}, 2')
    a(f's_cmp_ge_u32 s{sJJ}, 3'); a(f's_cselect_b32 s{sPair}, 1, 0'); a(f's_cselect_b32 s6, 3, 0')
    a(f's_sub_u32 s{sJJ}, s{sJJ}, s6')
    a(f's_lshl_b32 s{sRank}, s{sJJ}, 2'); a(f's_add_u32 s{sRank}, s{sRank}, s{sW}')
    a(f's_cmp_ge_u32 s{sRank}, 6'); a(f's_cselect_b32 s{sBsel}, 1, 0'); a(f's_cselect_b32 s6, -1, 1')
    a(f's_add_u32 s{sRank}, s{sRank}, s6')
    a(f's_cmp_ge_u32 s{sRank}, 6'); a(f's_cselect_b32 s6, 6, 0'); a(f's_sub_u32 s{sRank}, s{sRank}, s6')
    a(f's_lshl_b32 s{sB}, s{sPair}, 1'); a(f's_add_u32 s{sB}, s{sB}, s{sBsel}')
    a(f'v_and_b32 {vr(vLane)}, 63, v0'); a(f'v_lshlrev_b32 {vr(vL16)}, 4, {vr(vLane)}')
    if cfg.warm & 1: warm_code('A_role', 'L_exit', vLane, t0, t1, 1)
    a(f's_sub_u32 s{sBeg}, s{sRank}, 8'); a(f's_lshl_b32 s{sBeg}, s{sBeg}, 12'); a(f's_mov_b32 s{sReal}, s{sBeg}')
    def adv():
        a(f's_add_u32 s{sReal}, s{sReal}, {STEP}'); a(f's_min_u32 s{sOff}, s{sReal}, {OOB}')
    adv()
    a(f's_lshl_b32 s{sSt}, s{sB}, 5'); a(f's_add_u32 s{sSt}, s{sSt}, s{sH}')
    def ring_ld(s, u):
        return f'buffer_load_dwordx4 {vr(KR+16*s+4*u,4)}, {vr(vL16)}, {srd(S_K)}, s{sOff} offen offset:{1024*u} {cfg.kv_flags}'
    early = 0
    if cfg.fast:
        assert cfg.wqpf == 2 and cfg.stag
        vm = VM(a, cfg.vcp)
        oK, oX, oW, oP = 72, 73, 74, 75
        def tail_srd(d, size): a(f's_mov_b32 s{d+2}, {size}'); a(f's_mov_b32 s{d+3}, 0x20000')
        def base_srd(d, p, o): a(f's_add_u32 s{d}, s{p}, s{o}'); a(f's_addc_u32 s{d+1}, s{p+1}, 0')
        def pre_pf():
            a(f's_lshr_b32 s6, s2, 3'); a('s_sub_u32 s6, s6, 8'); a('s_lshl_b32 s6, s6, 2'); a(f's_add_u32 s6, s6, s{sW}')
            a(f's_mul_i32 s6, s6, {6*8192}'); a('s_and_b32 s7, s2, 7'); a('s_lshl_b32 s7, s7, 10'); a(f's_add_u32 s{oP}, s6, s7')
            tail_srd(S_WO, 576 * 8192)
            a(f'v_min_u32 {vr(M)}, 47, {vr(vLane)}'); a(f'v_lshrrev_b32 {vr(M2)}, 3, {vr(M)}'); a(f'v_mul_u32_u24 {vr(M2)}, {8192-1024}, {vr(M2)}')
            a(f'v_lshl_add_u32 {vr(M2)}, {vr(M)}, 7, {vr(M2)}')
        def do_pf():
            a(f's_mov_b64 s[{S_WO}:{S_WO+1}], s[{P_WQ}:{P_WQ+1}]')
            vm.issue(f'buffer_load_dword {vr(KR)}, {vr(M2)}, {srd(S_WO)}, s{oP} offen {cfg.pf_flags}')
        def pre_rest():
            tail_srd(S_V, 0x100000)
            a(f's_mul_i32 s6, s{sPair}, 2304'); a(f's_mul_i32 s7, s{sW}, 288'); a(f's_add_u32 s{oX}, s6, s7')
            a(f's_sub_u32 s{S_X+2}, 4608, s{oX}'); a(f's_mov_b32 s{S_X+3}, 0x20000')
            a(f's_mul_i32 s6, s{sW}, {144*8192}'); a(f's_lshl_b32 s7, s{sH}, 8'); a(f's_add_u32 s{oW}, s6, s7')
            a(f's_sub_u32 s{S_W+2}, {576*8192}, s{oW}'); a(f's_mov_b32 s{S_W+3}, 0x20000')
            a(f'v_lshrrev_b32 {vr(t0)}, 4, {vr(vLane)}'); a(f'v_and_b32 {vr(t1)}, 15, {vr(vLane)}')
            a(f'v_mul_u32_u24 {vr(vWoff)}, {36*8192}, {vr(t0)}'); a(f'v_lshl_add_u32 {vr(vWoff)}, {vr(t1)}, 4, {vr(vWoff)}')
            a(f'v_mul_u32_u24 {vr(vXoff)}, 72, {vr(t0)}'); a(f'v_lshrrev_b32 {vr(t1)}, 3, {vr(t1)}')
            a(f'v_mul_u32_u24 {vr(t1)}, 1152, {vr(t1)}'); a(f'v_add_u32 {vr(vXoff)}, {vr(vXoff)}, {vr(t1)}')
        def do_k(s0=1, s1=cfg.ne):
            if s0 == 1: base_srd(S_K, P_K, oK)
            for sl in range(s0, s1 + 1):
                for u in range(4):
                    vm.issue(ring_ld(sl, u), ('k', sl, u))
                    if cfg.est and (sl, u) in ((1, 0), (2, 3)): stamp(6 if u == 0 else 7)
                adv()
        a(f's_lshl_b32 s{oK}, s{sSt}, 20'); tail_srd(S_K, 0x100000)
        if cfg.fast == 1: pre_pf(); pre_rest(); karg_wait(); do_pf(); do_k()
        elif cfg.fast == 2: pre_pf(); karg_wait(); do_pf(); do_k(); pre_rest()
        elif cfg.fast == 3: karg_wait(); do_k(); pre_pf(); do_pf(); pre_rest()
        elif cfg.fast == 5: karg_wait(); do_k(1, 2); pre_pf(); do_pf(); do_k(3); pre_rest()
        else: pre_pf(); pre_rest(); karg_wait(); do_k(); do_pf()
        base_srd(S_X, P_AX, oX); x_loads(vm, X, vXoff, 0)
        base_srd(S_V, P_V, oK); base_srd(S_W, P_WQ, oW)
        if cfg.est == 2: a('s_waitcnt vmcnt(8)'); stamp(9)
        early = 4 * cfg.ne
    else:
        a(f's_lshl_b32 s6, s{sSt}, 20')
        karg_wait()
        mk_srd(S_K, P_K, 's6', 0x100000); mk_srd(S_V, P_V, 's6', 0x100000)
        a(f's_mul_i32 s6, s{sPair}, 2304'); a(f's_mul_i32 s7, s{sW}, 288'); a('s_add_u32 s6, s6, s7')
        a(f's_sub_u32 s7, 4608, s6')
        mk_srd(S_X, P_AX, 's6', 's7')
        a(f's_mul_i32 s6, s{sW}, {144*8192}'); a(f's_lshl_b32 s7, s{sH}, 8'); a('s_add_u32 s6, s6, s7')
        a(f's_sub_u32 s7, {576*8192}, s6')
        mk_srd(S_W, P_WQ, 's6', 's7')
        if cfg.askip & 1: a(f's_mov_b32 s{S_W+2}, 0')
        a(f'v_lshrrev_b32 {vr(t0)}, 4, {vr(vLane)}'); a(f'v_and_b32 {vr(t1)}, 15, {vr(vLane)}')
        a(f'v_mul_u32_u24 {vr(vWoff)}, {36*8192}, {vr(t0)}'); a(f'v_lshl_add_u32 {vr(vWoff)}, {vr(t1)}, 4, {vr(vWoff)}')
        a(f'v_mul_u32_u24 {vr(vXoff)}, 72, {vr(t0)}'); a(f'v_lshrrev_b32 {vr(t1)}, 3, {vr(t1)}')
        a(f'v_mul_u32_u24 {vr(t1)}, 1152, {vr(t1)}'); a(f'v_add_u32 {vr(vXoff)}, {vr(vXoff)}, {vr(t1)}')
        vm = VM(a, cfg.vcp)
        a(f'v_mov_b32 {vr(vC)}, {8192-1024}')
        if cfg.wqpf:
            a('s_lshr_b32 s6, s2, 3'); a('s_sub_u32 s6, s6, 8'); a('s_lshl_b32 s6, s6, 2'); a(f's_add_u32 s6, s6, s{sW}')
            a(f's_mul_i32 s6, s6, {6*8192}'); a('s_and_b32 s7, s2, 7'); a('s_lshl_b32 s7, s7, 10'); a('s_add_u32 s6, s6, s7')
            mk_srd(S_WO, P_WQ, None, 576 * 8192)
            if cfg.wqpf == 1:
                for k in range(6):
                    vm.issue(f'buffer_load_dwordx4 {vr(KR+4*(k&3),4)}, {vr(vL16)}, {srd(S_WO)}, s6 offen')
                    if k < 5: a('s_add_u32 s6, s6, 8192')
            else:
                a(f'v_min_u32 {vr(M)}, 47, {vr(vLane)}'); a(f'v_lshrrev_b32 {vr(M2)}, 3, {vr(M)}'); a(f'v_lshlrev_b32 {vr(M)}, 7, {vr(M)}')
                a(f'v_mad_u32_u24 {vr(M2)}, {vr(M2)}, {vr(vC)}, {vr(M)}')
                vm.issue(f'buffer_load_dword {vr(KR)}, {vr(M2)}, {srd(S_WO)}, s6 offen {cfg.pf_flags}')
        x_loads(vm, X, vXoff, 0)
    stream = [('k', s, u) for s in range(1, R) for u in range(4)]
    if cfg.wmix: stream += [('v', s, u) for s in range(1, cfg.npv + 1) for u in range(4)]
    order = stream[:cfg.kfirst]; wi = 0; si = cfg.kfirst
    while wi < 36 or si < len(stream):
        for _ in range(cfg.wq_per):
            if wi < 36: order.append(('w', wi)); wi += 1
        for _ in range(cfg.st_per):
            if si < len(stream): order.append(stream[si]); si += 1
    NPV = cfg.npv; V0 = NPV + 1 if NPV else 0
    def avs(s): return 16 * (s - 1) if s < 7 else 240
    if not cfg.wmix: order += [('v', s, u) for s in range(1, NPV + 1) for u in range(4)]
    def issue(o):
        if cfg.pth and o[0] != 'w': a(f's_waitcnt vmcnt({cfg.pth-1})')
        if o[0] == 'w': wunit_load(vm, o[1], vWoff, cfg.wq_flags)
        elif o[0] == 'v':
            if o[2] == 0: a(f's_add_u32 s{sVo}, s{sBeg}, {o[1]*STEP}'); a(f's_min_u32 s{sVo}, s{sVo}, {OOB}')
            vm.issue(f'buffer_load_dwordx4 {ar(avs(o[1])+4*o[2],4)}, {vr(vL16)}, {srd(S_V)}, s{sVo} offen offset:{1024*o[2]} {cfg.kv_flags}', o)
        else:
            vm.issue(ring_ld(o[1], o[2]), o)
            if o[2] == 3: adv()
    pos = 0
    def wo_pf():
        a(f's_mul_i32 s6, s{sH}, 147456'); mk_srd(S_WO, P_WO, 's6', 147456)
        a(f's_sub_u32 s6, s{sR}, 2'); a('s_lshl_b32 s6, s6, 2'); a(f's_add_u32 s6, s6, s{sW}'); a('s_mul_i32 s6, s6, 6144')
        vm.issue(f'buffer_load_dword {vr(KR+1)}, {vr(M)}, {srd(S_WO)}, s6 offen')
    if cfg.stag:
        sp = [int(x) for x in cfg.stag.split(',')]
        stream = [('k', s, u) for s in range(1, R) for u in range(4)] + [('v', s, u) for s in range(1, NPV + 1) for u in range(4)]
        order = stream[:sp[-1]] + [('w', j) for j in range(36)] + stream[sp[-1]:]
        vm.limit = 1000
        assert sp[0] >= early
        for idx in range(early, sp[-1] + 1):
            if idx in sp:
                Ls = lab('nowq')
                a(f's_cmp_lg_u32 s{sJJ}, {sp.index(idx)}'); a(f's_cbranch_scc1 {Ls}')
                a('s_waitcnt vmcnt(20)')
                n0 = len(vm.q)
                for j in range(36): wunit_load(vm, j, vWoff, cfg.wq_flags)
                if idx != sp[-1]: del vm.q[n0:]
                a(f'{Ls}:')
            if idx == sp[-1]: break
            if idx % 4 == 0: a('s_waitcnt vmcnt(54)')
            if idx == cfg.wopf_at and cfg.dma_mode == 3: wo_pf()
            issue(stream[idx])
            if cfg.est and idx in (0, 7): stamp(6 if idx == 0 else 7)
            if cfg.est == 2 and idx == 7: a('s_waitcnt vmcnt(3)'); stamp(9)
        pos = sp[-1] + 36
        vm.limit = 63; vm.done = max(0, len(vm.q) - 60)
    while pos < min(56 - 6 * cfg.wqpf, len(order)):
        issue(order[pos]); pos += 1
    if cfg.dma_mode == 3 and not cfg.stag: wo_pf()
    stamp(1)
    mk_srd(S_WS, P_WS, None, WS_USED); mk_srd(S_DBG, P_DBG, None, 256)
    a(f's_mul_i32 s6, s{sH}, 147456'); mk_srd(S_WO, P_WO, 's6', 147456)
    mk_masks(vLane, MASK, SEL, t0, t1)
    a(f'v_mov_b32 {vr(vC)}, {f2u(SCALE):#x}')
    a(f'v_mov_b32 {vr(P+NT-1)}, 0xff800000')
    mk_wo_tr_addr(vLane, vT, t0, t1, True, cfg.smf)
    a(f's_mul_i32 s{sSt}, s{sSt}, {cfg.astr}'); a(f's_add_u32 s{sSt}, s{sSt}, {AST}')
    a(f's_mov_b64 s[{sMk}:{sMk+1}], 0')
    a(f's_cmp_ge_u32 s{sRank}, 2'); a(f's_cselect_b32 s{sMk+2}, 0x22222222, 0'); a(f's_mov_b32 s{sMk+3}, s{sMk+2}')
    for j in (2, 3):
        a(f's_mov_b32 s{sMk+2*j}, {0x11111111 << j:#x}'); a(f's_mov_b32 s{sMk+2*j+1}, s{sMk+2*j}')
    a(f'v_bfe_u32 {vr(t0)}, {vr(vLane)}, 4, 1')
    a(f's_lshl_b32 s6, s{sPair}, 7'); a(f's_lshl_b32 s7, s{sH}, 1'); a('s_add_u32 s6, s6, s7'); a(f's_add_u32 s6, s6, s{sJJ}')
    a(f'v_mul_u32_u24 {vr(t1)}, 63, {vr(t0)}'); a(f'v_add_u32 {vr(t1)}, s6, {vr(t1)}')
    a(f'v_mul_u32_u24 {vr(vY)}, {1152 if cfg.y16 else 2304}, {vr(t1)}'); a(f'v_add_u32 {vr(vY)}, {YA}, {vr(vY)}')
    if cfg.cell: a(f'v_lshrrev_b32 {vr(t1)}, 3, {vr(t1)}'); a(f'v_mul_u32_u24 {vr(t1)}, {SA - 18432}, {vr(t1)}'); a(f'v_add_u32 {vr(vY)}, {vr(vY)}, {vr(t1)}')
    a(f'v_sub_u32 {vr(t1)}, s{sJJ}, {vr(t0)}')
    a(f'v_cmp_lt_u32 vcc, 1, {vr(t1)}')
    a(f'v_mov_b32 {vr(t1)}, {OOB}')
    a(f'v_cndmask_b32 {vr(vY)}, {vr(vY)}, {vr(t1)}, vcc')
    if cfg.y16:
        a(f'v_and_b32 {vr(M)}, 15, {vr(vLane)}'); a(f'v_lshl_add_u32 {vr(vY)}, {vr(M)}, 4, {vr(vY)}')
        a(f's_lshl_b32 s6, s{sW}, 5'); a(f'v_add_u32 {vr(vY8)}, s6, {vr(vY)}'); a(f's_lshl_b32 s6, s{sW}, 8'); a(f'v_add_u32 {vr(vY)}, s6, {vr(vY)}')
    else:
        a(f's_mul_i32 s6, s{sW}, 576')
        a(f'v_add_u32 {vr(vY)}, s6, {vr(vY)}')
        a(f'v_and_b32 {vr(M)}, 3, {vr(vLane)}'); a(f'v_bfe_u32 {vr(M2)}, {vr(vLane)}, 2, 2')
        a(f'v_lshl_add_u32 {vr(M)}, {vr(M)}, 2, {vr(M2)}'); a(f'v_lshl_add_u32 {vr(vY8)}, {vr(M)}, 2, {vr(vY)}')
        a(f'v_and_b32 {vr(M)}, 15, {vr(vLane)}'); a(f'v_lshrrev_b32 {vr(M2)}, 5, {vr(vLane)}')
        a(f'v_lshl_add_u32 {vr(M)}, {vr(M2)}, 4, {vr(M)}'); a(f'v_lshl_add_u32 {vr(vY)}, {vr(M)}, 4, {vr(vY)}')
    for r in range(4):
        a(f's_lshl_b32 s6, s{sJJ}, 2'); a(f's_add_u32 s6, s6, {r}'); a('s_cmp_ge_u32 s6, 6'); a('s_cselect_b32 s6, 1, 0')
        a(f'v_cmp_eq_u32 vcc, s6, {vr(t0)}')
        a(f'v_cndmask_b32 {vr(F+r)}, 0, 1.0, vcc')
    if cfg.smf:
        a(f'v_bfe_i32 {vr(M)}, {vr(vLane)}, 3, 1'); a(f'v_and_b32 {vr(M)}, 0xaaaaaaaa, {vr(M)}'); a(f'v_or_b32 {vr(G+7)}, 0x44444444, {vr(M)}')
    else: a(f'v_cmp_gt_u32 vcc, 32, {vr(vLane)}')
    for r in range(0 if cfg.smf else 4):
        a(f'v_cndmask_b32 {vr(G+r)}, 0, {vr(F+r)}, vcc'); a(f'v_cndmask_b32 {vr(G+4+r)}, {vr(F+r)}, 0, vcc')
    a(f'v_and_b32 {vr(M)}, 15, {vr(vLane)}'); a(f'v_lshlrev_b32 {vr(M)}, 4, {vr(M)}')
    a(f'v_lshl_add_u32 {vr(vOw)}, {vr(t0)}, 3, {vr(M)}')
    a(f's_lshl_b32 s6, s{sW}, 8'); a(f's_add_u32 s6, s6, {OT}'); a(f'v_add_u32 {vr(vOw)}, s6, {vr(vOw)}')
    a(f'v_and_b32 {vr(M)}, 3, {vr(vLane)}'); a(f'v_lshlrev_b32 {vr(M)}, 8, {vr(M)}')
    a(f'v_lshrrev_b32 {vr(M2)}, 4, {vr(vLane)}'); a(f'v_lshl_add_u32 {vr(vOr)}, {vr(M2)}, 4, {vr(M)}')
    a(f'v_add_u32 {vr(vOr)}, {OT}, {vr(vOr)}')
    a(f's_mul_i32 s{sD}, s{sW}, {4096 if cfg.dma_mode == 1 else 36864}')
    a(f's_mov_b32 s{sDn}, {(-cfg.dma_t0) & 0xffffffff:#x}'); a(f's_mov_b32 s{sTrip}, 0')
    if cfg.dma_mode == 3: a(f's_mul_i32 s{sDn}, s{sJJ if cfg.dgrp == 3 else sR}, {cfg.dstep}'); a(f's_add_u32 s{sDn}, s{sDn}, {cfg.dma_t0 - (0 if cfg.dgrp == 3 else 2 * cfg.dstep)}')
    if cfg.dyn:
        a(f's_lshl_b32 s6, s{sH}, 1'); a(f's_add_u32 s6, s6, s{sPair}'); a(f's_mul_i32 s6, s6, {cfg.psp//4}'); a(f's_add_u32 s6, s6, s{sJJ}')
        a('s_lshl_b32 s6, s6, 2'); a(f's_add_u32 s6, s6, {PROG}')
        if cfg.pxs != 8 * cfg.psp: a(f's_lshr_b32 s7, s{sH}, 2'); a(f's_mul_i32 s7, s7, {cfg.pxs - 8 * cfg.psp}'); a('s_add_u32 s6, s6, s7')
        a(f'v_mov_b32 {vr(vPo)}, {OOB}'); a(f'v_mov_b32 {vr(vPg)}, s6'); a('v_cmp_eq_u32 vcc, 0, v0')
        a(f'v_cndmask_b32 {vr(vPo)}, {vr(vPo)}, {vr(vPg)}, vcc'); a(f'v_mov_b32 {vr(vPg)}, {0 if cfg.ctl else cfg.hoff}')
    vTh = V(4); cTh, cTo, cPo, cTr = 26, 27, 28, 29
    if cfg.ctl:
        a(f's_add_u32 s{cTr}, s6, {TFO}'); a(f's_mov_b32 s{cTo}, {OOB}'); a(f's_mov_b32 s{cPo}, {OOB}'); a(f's_mov_b32 s{cTh}, 0')
        for r in range(4): a(f'v_mov_b32 {vr(vTh+r)}, 0')
    def ctl(s, iss, per, rd=True, ld=True):
        if s % 2 == 0 and rd:
            a(f'v_readfirstlane_b32 s{cTh}, {vr(vTh + (s + 8 - cfg.fd) // 2 % 4)}')
            a(f's_cmp_gt_u32 s{cTh}, 2'); a(f's_cselect_b32 s{cTh}, 0, s{cTh}')
        if s % per == per - 1:
            a(f'v_add_u32 {vr(vPg)}, {per}, {vr(vPg)}')
            a(f's_cmp_lg_u32 s{cTh}, 0')
            a(f's_cselect_b32 s6, {cfg.toff}, 0'); a(f'v_add_u32 {vr(t0)}, s6, {vr(vPg)}')
            iss(f'buffer_store_dword {vr(t0)}, {vr(vPo)}, {srd(S_WS)}, s{cPo} offen', None)
        if s % 2 == 0 and ld: iss(f'buffer_load_dword {vr(vTh + s // 2 % 4)}, off, {srd(S_WS)}, s{cTo} {cfg.tf_flags}', 't')
        if cfg.stamps: a(f's_mul_i32 s6, s{cTh}, s{cTh}'); a('s_mul_i32 s6, s6, s6'); a('s_mul_i32 s6, s6, s6'); a(f's_add_u32 s98, s98, s6')
    def hold(n):
        Ls = lab('thr')
        a(f's_cmp_eq_u32 s{cTh}, 0'); a(f's_cbranch_scc1 {Ls}'); a(f's_waitcnt vmcnt({n})')
        a(f's_cmp_eq_u32 s{cTh}, 1'); a(f's_cbranch_scc1 {Ls}'); a(f's_waitcnt vmcnt({n - cfg.lv2})')
        a(f'{Ls}:')
    def prog(g, per):
        if cfg.dyn and g % per == per - 1:
            a(f'v_add_u32 {vr(vPg)}, {per}, {vr(vPg)}')
            a(f'buffer_store_dword {vr(vPg)}, {vr(vPo)}, {srd(S_WS)}, 0 offen {cfg.ps_flags}')
            return True
    a(f'v_and_b32 {vr(M)}, 15, {vr(vLane)}'); a(f'v_lshlrev_b32 {vr(M)}, 5, {vr(M)}')
    a(f'v_lshl_add_u32 {vr(M2)}, {vr(t0)}, 4, {vr(M)}')
    a(f'v_lshrrev_b32 {vr(t1)}, 5, {vr(vLane)}'); a(f'v_lshl_add_u32 {vr(M2)}, {vr(t1)}, 9, {vr(M2)}')
    a(f's_lshl_b32 s6, s{sW}, 10'); a(f's_add_u32 s6, s6, {QRED}'); a(f'v_add_u32 {vr(M2)}, s6, {vr(M2)}')
    a(f's_lshl_b32 s6, s{sBsel}, 9'); a(f's_add_u32 s6, s6, {QRED}'); a(f'v_add_u32 {vr(M)}, s6, {vr(M)}')
    for jj in range(36):
        while ('w', jj) not in vm.q:
            issue(order[pos]); pos += 1
        vm.wait(('w', jj))
        wunit_mfma(jj, [X], [ACC], SEL, PA)
        k = 0
        while pos < len(order) - cfg.vhold and vm.after(('w', jj)) < 60 and (k < 1 or order[pos][0] != 'v' or jj == 35 or cfg.wmix):
            issue(order[pos]); pos += 1; k += 1
    a(f'ds_write_b128 {vr(M2)}, {vr(ACC,4)}')
    while pos < len(order):
        issue(order[pos]); pos += 1
    a('s_waitcnt lgkmcnt(0)'); a('s_barrier')
    for w in range(4):
        a(f'ds_read_b128 {vr(D+8*w,4)}, {vr(M)} offset:{1024*w}')
        a(f'ds_read_b128 {vr(D+8*w+4,4)}, {vr(M)} offset:{1024*w+16}')
    for r in range(4): a(f'v_mov_b32 {vr(ACC+r)}, 0')
    a('s_waitcnt lgkmcnt(0)')
    for e in range(8):
        a(f'v_add_f32 {vr(D+e)}, {vr(D+e)}, {vr(D+8+e)}'); a(f'v_add_f32 {vr(D+16+e)}, {vr(D+16+e)}, {vr(D+24+e)}')
    for e in range(8): a(f'v_add_f32 {vr(D+e)}, {vr(D+e)}, {vr(D+16+e)}')
    for k in range(4): a(f'v_cvt_pk_bf16_f32 {vr(Q+k)}, {vr(D+2*k)}, {vr(D+2*k+1)}')
    stamp(2)
    NW = 4 * R - 4
    if cfg.ctl:
        ex = lambda s: (s % cfg.kper == cfg.kper - 1) + (s % 2 == 0)
        NW = min(min(28 + sum(ex(s + k) for k in range(1, 8)) for s in range(8)), min(4 * cfg.fd + sum(ex(s + k) for k in range(1, cfg.fd)) for s in range(0, 8, 2)))
    def dma(s, vtrip=None):
        if (s % 4) not in {1: (0,), 2: (0, 2), 3: (0, 1, 2), 4: (0, 1, 2, 3)}[cfg.dma_per]: return
        Ls = lab('nodma')
        if cfg.dma_mode == 3:
            if s % 4: return
            a(f's_cmp_lg_u32 s{sDn}, s{sTrip}'); a(f's_cbranch_scc1 {Ls}')
            a('s_waitcnt vmcnt(24)')
            for k in range(9):
                a(f's_mov_b32 m0, s{sD}')
                for u in range(4):
                    a(f'buffer_load_dwordx4 {vr(vL16)}, {srd(S_WO)}, s{sD} offen offset:{1024*u} {cfg.wo_flags} lds')
                a(f's_add_u32 s{sD}, s{sD}, 4096')
            a(f'{Ls}:')
            return
        if cfg.dma_mode:
            if s % 4: return
            a(f's_cmp_ge_u32 s{sDn}, {0 if cfg.nodma else 36}'); a(f's_cbranch_scc1 {Ls}')
            for u in range(4):
                a(f's_add_u32 m0, s{sD}, {1024*u}') if cfg.dma_mode == 9 else None
                if u == 0: a(f's_mov_b32 m0, s{sD}')
                a(f'buffer_load_dwordx4 {vr(vL16)}, {srd(S_WO)}, s{sD} offen offset:{1024*u} {cfg.wo_flags} lds')
            a(f's_add_u32 s{sD}, s{sD}, {16384 if cfg.dma_mode == 1 else 4096}')
            a(f'{Ls}:')
            a(f's_add_u32 s{sDn}, s{sDn}, 4')
            return
        if cfg.dmask:
            if vtrip is not None:
                if not (cfg.dmask >> vtrip) & 1: return
            else: a(f's_bitcmp0_b32 s{sDn}, s{sTrip}'); a(f's_cbranch_scc1 {Ls}')
            a(f's_mov_b32 m0, s{sD}')
            for u in range(cfg.dmul):
                a(f'buffer_load_dwordx4 {vr(vL16)}, {srd(S_WO)}, s{sD} offen offset:{1024*u} {cfg.wo_flags} lds')
            a(f's_add_u32 s{sD}, s{sD}, {1024*cfg.dmul}')
            a(f'{Ls}:')
            return
        a(f's_cmp_ge_u32 s{sDn}, {0 if cfg.nodma else 36}'); a(f's_cbranch_scc1 {Ls}')
        a(f's_mov_b32 m0, s{sD}')
        a(f'buffer_load_dwordx4 {vr(vL16)}, {srd(S_WO)}, s{sD} offen {cfg.wo_flags} lds')
        a(f's_add_u32 s{sD}, s{sD}, 1024')
        a(f'{Ls}:')
        a(f's_add_u32 s{sDn}, s{sDn}, 1')
    def shiftP():
        for k in range(NT - 1): a(f'v_mov_b32 {vr(P+k)}, {vr(P+k+1)}')
    dma_end = -(-(cfg.dma_t0 + 36) // cfg.dma_per) * 4
    if cfg.dmask:
        assert bin(cfg.dmask).count('1') * cfg.dma_per * cfg.dmul == 36
        dma_end = 4 * cfg.dmask.bit_length()
        a(f's_mov_b32 s{sDn}, {cfg.dmask}')
    if cfg.dma_mode == 3:
        dma_end = 4 * (cfg.dma_t0 + (cfg.dgrp - 1) * cfg.dstep) + 1
        assert dma_end <= 4 * NT
    assert dma_end + R <= 4 * NT + cfg.ev_slot - V0
    a(f's_add_u32 s{sBeg}, s{sBeg}, {V0*STEP}')
    a('K_loop:')
    for s in range(R):
        K = KR + 16 * s; j = s % 4
        if j == 0:
            if (NT - RT) % RT == s // 4:
                a(f's_cmp_eq_u32 s{sTrip}, {NT-RT}')
                a(f's_cselect_b32 s{S_K}, s{S_V}, s{S_K}'); a(f's_cselect_b32 s{S_K+1}, s{S_V+1}, s{S_K+1}')
                a(f's_cselect_b32 s{sReal}, s{sBeg}, s{sReal}'); a(f's_min_u32 s{sOff}, s{sReal}, {OOB}')
            if cfg.c0_trip % RT == s // 4 and cfg.c0x != 3:
                Ls = lab('c0')
                a(f's_cmp_lg_u32 s{sTrip}, {cfg.c0_trip}'); a(f's_cbranch_scc1 {Ls}')
                a(f'buffer_load_dword {vr(vC0)}, off, {srd(S_DBG)}, 0 offset:{C0} sc1')
                a(f'{Ls}:')
        a(f's_waitcnt vmcnt({NW})')
        for k in range(4):
            for u in range(4):
                c = '0' if k == 0 else vr(T + u)
                a(f'v_dot2_f32_bf16 {vr(T+u)}, {vr(K+4*u+k)}, {vr(Q+k)}, {c}')
        if cfg.ctl: ctl(s, lambda t, g: a(t), cfg.kper)
        for u in range(4):
            if cfg.vck: a(f's_waitcnt vmcnt({cfg.vck-1})')
            if cfg.ctl and u % 2 == 0: hold(cfg.thrk)
            a(ring_ld(s, u))
        adv(); dma(s)
        reduce4(T, XX, S)
        a(f'v_cndmask_b32 {vr(P+NT-1)}, {vr(P+NT-1)}, {vr(S)}, s[{sMk+2*j}:{sMk+2*j+1}]')
        if j == 3:
            if cfg.trips:
                a('s_memrealtime s[100:101]'); a('s_waitcnt lgkmcnt(0)'); a(f's_mov_b32 m0, s{sTrip}'); a(f'v_writelane_b32 {vr(vTS)}, s100, m0')
            if cfg.ctl and s == 7:
                assert cfg.c0_trip == 0
                Ls = lab('c0ok')
                a(f's_cmp_lg_u32 s{sTrip}, 1'); a(f's_cbranch_scc1 {Ls}')
                a('s_waitcnt vmcnt(36)')
                ensure(C0, C0N, vC0)
                if not cfg.cdbg & 2: a(f's_mov_b32 s{cPo}, 0')
                if not cfg.cdbg & 1: a(f's_mov_b32 s{cTo}, s{cTr}')
                if cfg.tfw: a(f's_mov_b32 s6, {TFO}'); a(f'buffer_store_dword {vr(vLane)}, {vr(vPo)}, {srd(S_WS)}, s6 offen')
                a(f'{Ls}:')
            a(f's_add_u32 s{sTrip}, s{sTrip}, 1')
            if (NT - 1) % RT == s // 4:
                a(f's_cmp_eq_u32 s{sTrip}, {NT}'); a('s_cbranch_scc1 A_mid')
            shiftP()
            if s == 3:
                a(f's_lshr_b64 s[{sMk}:{sMk+1}], s[{sMk+4}:{sMk+5}], 2'); a(f's_lshr_b64 s[{sMk+2}:{sMk+3}], s[{sMk+4}:{sMk+5}], 1')
    a('s_branch K_loop')
    a('A_mid:')
    stamp(5)
    if cfg.cdbg & 2: a(f's_mov_b32 s{cPo}, 0')
    a(f'v_max3_f32 {vr(M)}, {vr(P)}, {vr(P+1)}, {vr(P+2)}')
    for k in range(3, NT, 2): a(f'v_max3_f32 {vr(M)}, {vr(M)}, {vr(P+k)}, {vr(P+k+1)}')
    for sh in (8, 4, 2, 1): a(f'v_max_f32_dpp {vr(M)}, {vr(M)}, {vr(M)} row_ror:{sh} {DPPF}')
    allred_rows(M, M2, 'v_max_f32')
    a(f'v_mul_f32 {vr(XX)}, {vr(M)}, {vr(vC)}')
    for k in range(NT): a(f'v_fma_f32 {vr(P+k)}, {vr(P+k)}, {vr(vC)}, -{vr(XX)}')
    for k in range(NT): a(f'v_exp_f32 {vr(P+k)}, {vr(P+k)}')
    a(f'v_add_f32 {vr(M)}, {vr(P)}, {vr(P+1)}')
    for k in range(2, NT): a(f'v_add_f32 {vr(M)}, {vr(M)}, {vr(P+k)}')
    for k in range(NT): a(f'v_cvt_pk_bf16_f32 {vr(P+k)}, {vr(P+k)}, {vr(P+k)}')
    for sh in (8, 4, 2, 1): a(f'v_add_f32_dpp {vr(M)}, {vr(M)}, {vr(M)} row_ror:{sh} {DPPF}')
    allred_rows(M, M2, 'v_add_f32')
    a(f'v_min_u32 {vr(XX)}, -2, {vr(XX)}'); a(f'v_min_u32 {vr(XX+1)}, -2, {vr(M)}')
    if not cfg.noB and not cfg.ctl: ensure(C0, C0N, vC0)
    a(f's_lshl_b32 s6, s{sRank}, 3'); a(f's_add_u32 s6, s6, s{sSt}')
    a('s_mov_b64 exec, 1')
    for _ in range(4 if cfg.dup & 4 else 1): a(f'buffer_store_dwordx2 {vr(XX,2)}, off, {srd(S_WS)}, s6 sc1')
    a('s_mov_b64 exec, -1')
    ST = X
    def st_loads(iss):
        for k in range(3): iss(f'buffer_load_dwordx4 {vr(ST+4*k,4)}, off, {srd(S_WS)}, s{sSt} offset:{16*k} sc1')
    def pa(i, dst=PA):
        for u in range(4):
            for r in range(4):
                a(f'v_and_b32_dpp {vr(dst+4*u+r)}, {vr(P+i//4)}, {vr(MASK+r)} row_newbcast:{4*u+i%4} {DPPF}')
    def ev2():
        vm.wait('st')
        a(f's_mov_b32 s7, {cfg.spin_max}')
        a('A_ev2_chk:')
        umax_tree(M, range(ST, ST + 12))
        a(f'v_cmp_eq_u32 vcc, -1, {vr(M)}')
        a('s_cbranch_vccz A_ev2_ok')
        st_loads(a)
        a('s_waitcnt vmcnt(0)')
        a('s_sub_u32 s7, s7, 1'); a('s_cmp_lg_u32 s7, 0'); a('s_cbranch_scc1 A_ev2_chk')
        a('A_ev2_ok:')
        a(f'v_max3_f32 {vr(M)}, {vr(ST)}, {vr(ST+2)}, {vr(ST+4)}'); a(f'v_max3_f32 {vr(M2)}, {vr(ST+6)}, {vr(ST+8)}, {vr(ST+10)}')
        a(f'v_max_f32 {vr(M)}, {vr(M)}, {vr(M2)}')
        for k in range(6): a(f'v_sub_f32 {vr(ST+2*k)}, {vr(ST+2*k)}, {vr(M)}')
        a(f'v_sub_f32 {vr(fN)}, {vr(XX)}, {vr(M)}')
        for k in range(6): a(f'v_exp_f32 {vr(ST+2*k)}, {vr(ST+2*k)}')
        a(f'v_exp_f32 {vr(fN)}, {vr(fN)}')
        a(f'v_mul_f32 {vr(M)}, {vr(ST)}, {vr(ST+1)}')
        for k in range(1, 6): a(f'v_fma_f32 {vr(M)}, {vr(ST+2*k)}, {vr(ST+2*k+1)}, {vr(M)}')
        a(f'v_rcp_f32 {vr(M)}, {vr(M)}')
        a(f'v_mul_f32 {vr(fN)}, {vr(fN)}, {vr(M)}')
    extra = list(range(1, NPV + 1)); frags = wo_frag_list(4, vT, cfg.smf)
    NS = 4 * NT
    vm = VM(a)
    vm.q = [(j, u) for j in range(V0, V0 + R) for u in range(4)] + [None]
    if cfg.ctl:
        assert V0 == 8 and R == 8
        vm.q = [x for j in range(V0, V0 + R) for x in [None] * (j % cfg.kper == cfg.kper - 1) + ([('t', j + cfg.fd)] if j % 2 == 0 else []) + [(j, u) for u in range(4)]] + [None]
    def stage(j): return (NS + j - V0) % R
    def comp(i, pre=None):
        K = KR + 16 * stage(i)
        if pre is None: pa(i); pre = PA
        if i < NS - 1: vm.wait((i, 3))
        for u in range(4):
            vm.wait((i, u))
            a(f'v_mfma_f32_16x16x32_bf16 {vr(ACC,4)}, {vr(pre+4*u,4)}, {vr(K+4*u,4)}, {vr(ACC,4)}')
        if i % 4 == 3 and cfg.trips:
            a('s_memrealtime s[100:101]'); a('s_waitcnt lgkmcnt(0)'); a(f'v_writelane_b32 {vr(vTS)}, s100, {NT + (i-V0)//4}')
    c = V0
    sTh, sTo = sD, sDn
    if cfg.thr:
        assert dma_end <= NS
        a(f's_lshr_b32 s{sTo}, s{sH}, 2'); a(f's_lshl_b32 s{sTo}, s{sTo}, 7'); a(f's_add_u32 s{sTo}, s{sTo}, {PROG + 0x4000}')
        if cfg.tstat: a('s_and_b32 s6, s2, 7'); a(f's_lshr_b32 s{sTh}, {cfg.tstat}, s6'); a(f's_and_b32 s{sTh}, s{sTh}, 1')
    if cfg.tst:
        assert dma_end <= NS and not cfg.thr
        tb = [int(x) for x in str(cfg.tst).split(',')]; assert len(tb) == 8
        pk = lambda l: sum(x << 8 * k for k, x in enumerate(l))
        a(f's_mov_b32 s6, {pk(tb[:4]):#x}'); a(f's_mov_b32 s7, {pk(tb[4:]):#x}')
        a(f's_and_b32 s{sTh}, s2, 7'); a(f's_lshl_b32 s{sTh}, s{sTh}, 3'); a(f's_lshr_b64 s[6:7], s[6:7], s{sTh}'); a(f's_and_b32 s{sTh}, s6, 255')
    for m in range(V0 + R, NS):
        n = m - R - V0; i = m - R
        if m == cfg.st_m: st_loads(lambda t: vm.issue(t, 'st'))
        if m == cfg.ev2_m: ev2()
        if m == cfg.ytouch: vm.issue(f'buffer_load_dword {vr(vC0)}, {vr(vY8)}, {srd(S_WS)}, 0 offen offset:512 sc1')
        dist = max(cfg.dend, min(R, R - (m - cfg.dm0 + cfg.dsl - 1) // cfg.dsl))
        first = True
        while c <= m - dist:
            if not first: a('s_nop 3')
            comp(c); c += 1; first = False
        if cfg.ctl:
            if m == cfg.tm1: a(f's_mov_b32 s{cTh}, 0')
            if m % 2 == 0 and m < cfg.tm1: vm.wait(('t', m))
            ctl((m - 12) % 8, lambda t, g: vm.issue(t, g and (g, m + cfg.fd)), cfg.vper, m < cfg.tm1, m + cfg.fd < cfg.tm1)
        elif prog(n, cfg.pper): vm.q.append(None)
        th = cfg.thr and cfg.tm0 <= m < cfg.tm1
        if th:
            if ('t', m) in vm.q:
                vm.wait(('t', m)); a(f'v_readfirstlane_b32 s{sTh}, {vr(vTh + m // cfg.tper % 4)}')
            a(f's_cmp_eq_u32 s{sTh}, 1')
        ts = cfg.tst and min(tb) <= m < cfg.tm1
        if ts: a(f's_cmp_le_u32 s{sTh}, {m}')
        if cfg.thr and not cfg.tstat and cfg.tm0 <= m + cfg.tdist < cfg.tm1 and (m + cfg.tdist - cfg.tm0) % cfg.tper == 0:
            vm.issue(f'buffer_load_dword {vr(vTh + (m + cfg.tdist) // cfg.tper % 4)}, off, {srd(S_WS)}, s{sTo} sc1', ('t', m + cfg.tdist))
        for u in range(4):
            if th and u % 2 == 0:
                Ls = lab('thr')
                a(f's_cbranch_scc0 {Ls}'); a(f's_waitcnt vmcnt({cfg.thr})'); a(f'{Ls}:')
            if ts and u % cfg.tsp == 0:
                Ls = lab('thr')
                a(f's_cbranch_scc0 {Ls}'); a(f's_waitcnt vmcnt({cfg.tsv})'); a(f'{Ls}:')
            if cfg.ctl and m < cfg.tm1 and u % 2 == 0: hold(cfg.ctl)
            if cfg.vth and m >= cfg.vth0: vm.limit = cfg.vth if m < cfg.vth1 else 63
            vm.issue(ring_ld(stage(m), u), (m, u))
        if th and cfg.stamps: a(f's_addc_u32 s98, s98, 0')
        adv()
        if NS + n < dma_end: dma(n, NT + n // 4)
        if i == cfg.ev_slot - 1: a('s_barrier')
        if i >= cfg.ev_slot - 1:
            for t in frags[:cfg.ev_per]: a(t)
            del frags[:cfg.ev_per]
        if extra and n % cfg.xper == 1:
            e = extra.pop(0)
            pa(e)
            for u in range(4):
                a(f'v_mfma_f32_16x16x32_bf16 {vr(ACC,4)}, {vr(PA+4*u,4)}, {ar(avs(e)+4*u,4)}, {vr(ACC,4)}')
            a('s_nop 3')
    assert not extra and not frags
    if cfg.ev2_m >= NS: ev2()
    if cfg.pre4:
        assert NS - c <= 4
        if cfg.smf:
            for r in range(16): a(f'v_mov_b32 {vr(D+r)}, 0')
        dst = {i: KR + 16 * stage(i - 4) for i in range(c, NS)}
        for i in range(c, NS): pa(i, dst[i])
        for i in range(c, NS): comp(i, dst[i])
    else:
        while c < NS - 2:
            comp(c); c += 1; a('s_nop 3')
        P2 = KR + 16 * stage(NS - 4)
        pa(NS - 2); pa(NS - 1, P2)
        if cfg.smf:
            for r in range(16): a(f'v_mov_b32 {vr(D+r)}, 0')
        comp(NS - 2, PA); comp(NS - 1, P2)
    a('A_tail:')
    stamp(3)
    for r in range(4): a(f'v_mul_f32 {vr(ACC+r)}, {vr(ACC+r)}, {vr(fN)}')
    a(f'v_cvt_pk_bf16_f32 {vr(T)}, {vr(ACC)}, {vr(ACC+1)}'); a(f'v_cvt_pk_bf16_f32 {vr(T+1)}, {vr(ACC+2)}, {vr(ACC+3)}')
    a(f'ds_write_b64 {vr(vOw)}, {vr(T,2)}')
    a('s_waitcnt lgkmcnt(0)'); a('s_barrier')
    for ks in range(4): a(f'ds_read_b128 {ar(4*ks,4)}, {vr(vOr)} offset:{64*ks}')
    if not cfg.smf: a('s_waitcnt lgkmcnt(0)')
    def tile(t):
        for ks in range(4):
            c = '0' if ks == 0 else vr(D + 4 * t, 4)
            a(f'v_mfma_f32_16x16x32_bf16 {vr(D+4*t,4)}, {ar(4*ks,4)}, {ar(AW+4*(t*4+ks),4)}, {c}')
    def comb(j, t, first):
        g = G + (4 if t >= 4 else 0)
        for r in range(4):
            if first and r == 0: a(f'v_mul_f32 {vr(O+j)}, {vr(g)}, {vr(D+4*t)}')
            else: a(f'v_fma_f32 {vr(O+j)}, {vr(g+r)}, {vr(D+4*t+r)}, {vr(O+j)}')
    def tail16(src, T, vO, so, ex):
        a(f'v_mov_b32_dpp {vr(T+1)}, {vr(src)} row_shl:2 {DPPF}')
        a(f'v_cvt_pk_bf16_f32 {vr(T)}, {vr(src)}, {vr(T+1)}'); a(f'v_min_u32 {vr(T)}, -2, {vr(T)}')
        for e in range(1, 4): a(f'v_mov_b32_dpp {vr(T+e)}, {vr(T)} row_shl:{4*e} {DPPF}')
        a('s_mov_b32 exec_lo, 0x00030003'); a(f's_mov_b32 exec_hi, {ex}')
        a(f'buffer_store_dwordx4 {vr(T,4)}, {vr(vO)}, {srd(S_WS)}, {so} offen offset:1024 sc1')
        a('s_mov_b64 exec, -1')
    globals()['tail16'] = tail16
    if cfg.smf:
        assert cfg.y16
        def cbl(d, o):
            return [f'v_pk_mul_f32 {vr(G+4,2)}, {vr(F,2)}, {vr(d,2)}', f'v_pk_fma_f32 {vr(G+4,2)}, {vr(F+2,2)}, {vr(d+2,2)}, {vr(G+4,2)}',
                    f'v_add_f32 {vr(o)}, {vr(G+4)}, {vr(G+5)}']
        pkl = lambda d: [f'v_cvt_pk_bf16_f32 {vr(O+d)}, {vr(G+2*d)}, {vr(G+2*d+1)}', f'v_min_u32 {vr(O+d)}, -2, {vr(O+d)}']
        c0, c1 = cbl(D, G), cbl(D + 4, G + 1)
        q = cbl(D + 32, O + 4) + c0[:2] + [f'v_mov_b32_dpp {vr(T+1)}, {vr(O+4)} row_shl:2 {DPPF}', f'v_cvt_pk_bf16_f32 {vr(T)}, {vr(O+4)}, {vr(T+1)}',
             f'v_min_u32 {vr(T)}, -2, {vr(T)}'] + c0[2:] + c1[:1] + [f'v_mov_b32_dpp {vr(T+e)}, {vr(T)} row_shl:{4*e} {DPPF}' for e in range(1, 4)]
        q += ['s_mov_b64 exec, 0x00030003\n' + f'buffer_store_dwordx4 {vr(T,4)}, {vr(vY8)}, {srd(S_WS)}, 0 offen offset:1024 {cfg.y_flags}\n' + 's_mov_b64 exec, -1']
        swp = lambda d: [f'v_permlane32_swap_b32 {vr(O+d)}, {vr(O+2+d)}']
        q += c1[1:] + pkl(0) + cbl(D + 8, G + 2) + swp(0) + cbl(D + 12, G + 3) + pkl(1) + swp(1)
        for ks in range(4):
            a(f's_waitcnt lgkmcnt({3-ks})')
            a(f'v_mfma_f32_16x16x32_bf16 {vr(D+32,4)}, {ar(4*ks,4)}, {ar(AW+4*(32+ks),4)}, {vr(D+32,4) if ks else 0}')
        for i in range(16):
            a(f'v_smfmac_f32_16x16x64_bf16 {vr(D+4*(i//4),4)}, {ar(4*(i%4),4)}, {ar(AW+8*i,8)}, {vr(G+7)}')
            if i >= 7: a(q.pop(0)); a(q.pop(0))
        for t in q: a(t)
        a('s_mov_b64 exec, 0xffffffff')
        a(f'buffer_store_dwordx4 {vr(O,4)}, {vr(vY)}, {srd(S_WS)}, 0 offen {cfg.y_flags}')
        a('s_mov_b64 exec, -1')
    elif cfg.y16:
        def cb(t, o):
            a(f'v_mul_f32 {vr(o)}, {vr(F)}, {vr(D+4*t)}')
            for r in range(1, 4): a(f'v_fma_f32 {vr(o)}, {vr(F+r)}, {vr(D+4*t+r)}, {vr(o)}')
        def pk(d): a(f'v_cvt_pk_bf16_f32 {vr(O+d)}, {vr(G+2*d)}, {vr(G+2*d+1)}'); a(f'v_min_u32 {vr(O+d)}, -2, {vr(O+d)}')
        tile(8); tile(0); tile(1); cb(8, O + 4); tile(2)
        tail16(O + 4, T, vY8, 0, 0)
        cb(0, G); tile(3); cb(1, G + 1); tile(4); cb(2, G + 2); pk(0); tile(5); cb(3, G + 3); tile(6); cb(4, G + 4); pk(1)
        tile(7); cb(5, G + 5); pk(2); cb(6, G + 6)
        a('s_mov_b64 exec, 0xffffffff')
        cb(7, G + 7); pk(3)
        a(f'buffer_store_dwordx4 {vr(O,4)}, {vr(vY)}, {srd(S_WS)}, 0 offen sc1')
        a('s_mov_b64 exec, -1')
    else:
        tile(8); tile(0); tile(1)
        a(f'v_mul_f32 {vr(O+4)}, {vr(F)}, {vr(D+32)}')
        for r in range(1, 4): a(f'v_fma_f32 {vr(O+4)}, {vr(F+r)}, {vr(D+32+r)}, {vr(O+4)}')
        tile(2)
        if cfg.t16:
            a(f'v_min_u32 {vr(T)}, -2, {vr(O+4)}')
            for e in range(1, 4): a(f'v_mov_b32_dpp {vr(T+e)}, {vr(T)} row_shl:{4*e} {DPPF}')
            a('s_mov_b64 exec, 0x000f000f')
            a(f'buffer_store_dwordx4 {vr(T,4)}, {vr(vY8)}, {srd(S_WS)}, 0 offen offset:512 sc1')
        else:
            a(f'v_min_u32 {vr(O+4)}, -2, {vr(O+4)}')
            a('s_mov_b64 exec, 0xffffffff')
            a(f'buffer_store_dword {vr(O+4)}, {vr(vY8)}, {srd(S_WS)}, 0 offen offset:512 sc1')
        a('s_mov_b64 exec, -1')
        comb(0, 0, True)
        tile(3); comb(1, 1, True)
        tile(4); comb(2, 2, True)
        tile(5); comb(3, 3, True)
        tile(6); comb(0, 4, False)
        tile(7); comb(1, 5, False); comb(2, 6, False)
        for j in range(3): a(f'v_min_u32 {vr(O+j)}, -2, {vr(O+j)}')
        comb(3, 7, False)
        a(f'v_min_u32 {vr(O+3)}, -2, {vr(O+3)}')
        a(f'buffer_store_dwordx4 {vr(O,4)}, {vr(vY)}, {srd(S_WS)}, 0 offen sc1')
    stamp(4)
    stamp_flush(M, 'A')
    if cfg.trips:
        a(f's_lshl_b32 s6, s2, 2'); a(f's_add_u32 s6, s6, s{sW}'); a('s_lshl_b32 s6, s6, 8'); a(f's_add_u32 s6, s6, {STAMP + 0x100000}')
        a(f'v_lshlrev_b32 {vr(M)}, 2, {vr(vLane)}')
        a(f'buffer_store_dword {vr(vTS)}, {vr(M)}, {srd(S_WS)}, s6 offen')
    a('s_endpgm')

def gen_B():
    V = VAlloc(1)
    vLane = V(); vL16 = V(); vWoff = V(); vXoff = V(); t0 = V(); t1 = V(); t2 = V(); vI = V(); vG = V(); vL16x = V(); vC0 = V()
    base = V.n
    sHalf, sBeta, sB2, sCh, sM0, sSo = 8, 9, 10, 11, 12, 13
    CROW = 1088; CB = 64 * CROW
    QROW = 1056; SQ = 2 * CB; QRED = SQ
    PB = SQ + 16 * QROW; MX = PB + 4096; LS = MX + 512
    assert LS + 512 <= LDS_TOTAL
    fl = cfg.b_flags
    a('B_role:')
    if cfg.noB: a('s_endpgm')
    a(f's_mov_b32 s{sHalf}, s{sR}')
    a(f's_lshl_b32 s{sBeta}, s{sH}, 1'); a(f's_add_u32 s{sBeta}, s{sBeta}, s{sHalf}')
    a(f's_lshr_b32 s{sB2}, s{sBeta}, 4'); a(f's_and_b32 s{sCh}, s{sBeta}, 15')
    a(f'v_and_b32 {vr(vLane)}, 63, v0'); a(f'v_lshlrev_b32 {vr(vL16)}, 4, {vr(vLane)}')
    a(f'v_lshrrev_b32 {vr(vG)}, 4, {vr(vLane)}'); a(f'v_and_b32 {vr(vI)}, 15, {vr(vLane)}')
    if cfg.warm & 2: warm_code('B_role', 'B_end', vLane, t0, t1)
    a('s_waitcnt lgkmcnt(0)')
    a(f's_mul_i32 s6, s{sW}, 288'); a('s_sub_u32 s7, 4608, s6'); mk_srd(S_X, P_BX, 's6', 's7')
    a(f's_mul_i32 s6, s{sW}, {144*8192}'); a(f's_lshl_b32 s7, s{sH}, 8'); a('s_add_u32 s6, s6, s7')
    a(f's_sub_u32 s7, {576*8192}, s6'); mk_srd(S_W, P_BWQ, 's6', 's7')
    a(f's_lshl_b32 s6, s{sHalf}, 2'); a(f's_add_u32 s6, s6, s{sW}'); a('s_lshl_b32 s6, s6, 19')
    a(f's_lshl_b32 s7, s{sH}, 8'); a('s_add_u32 s6, s6, s7'); a(f's_sub_u32 s7, {512*8192}, s6')
    mk_srd(S_U, P_WUK, 's6', 's7')
    if cfg.cwin == 0:
        a(f's_lshl_b32 s6, s{sBeta}, 18'); mk_srd(S_K, P_CKV, 's6', 0x40000)
    else:
        a(f's_lshl_b32 s6, s{sB2}, 22'); mk_srd(S_K, P_CKV, 's6', 0x400000)
    for bit, R in ((1, S_W), (2, S_U), (4, S_K)):
        if cfg.bskip & bit: a(f's_mov_b32 s{R+2}, 0')
    if cfg.emu & 1:
        a(f's_cmp_eq_u32 s{sHalf}, 1'); a(f's_cselect_b32 s{S_W+2}, 0, s{S_W+2}')
    MASK = V(4); SEL = V(8); X0 = V(18); X1 = V(18); PA = V(16, 4); AC0 = V(4, 4); AC1 = V(4, 4)
    UK = V(64, 4); QB = V(16); T = V(4); XX = V(2); U = V(16, 4); D = V(32, 4); vUoff = V()
    a(f'v_mul_u32_u24 {vr(vWoff)}, {36*8192}, {vr(vG)}'); a(f'v_lshl_add_u32 {vr(vWoff)}, {vr(vI)}, 4, {vr(vWoff)}')
    a(f'v_mul_u32_u24 {vr(vXoff)}, 72, {vr(vG)}'); a(f'v_lshrrev_b32 {vr(t1)}, 3, {vr(vI)}')
    a(f'v_mul_u32_u24 {vr(t1)}, 1152, {vr(t1)}'); a(f'v_add_u32 {vr(vXoff)}, {vr(vXoff)}, {vr(t1)}')
    a(f'v_lshlrev_b32 {vr(vUoff)}, 17, {vr(vG)}'); a(f'v_lshl_add_u32 {vr(vUoff)}, {vr(vI)}, 4, {vr(vUoff)}')
    a(f'v_xor_b32 {vr(vL16x)}, 32, {vr(vL16)}')
    mk_srd(S_WS, P_WS, None, WS_USED)
    vm = VM(a, 49)
    x_loads(vm, X0, vXoff, 0); x_loads(vm, X1, vXoff, 2304)
    Lc, Lc1 = lab('noclr'), lab('clr1')
    a(f's_cmp_ge_u32 s{sW}, 2'); a(f's_cbranch_scc1 {Lc}')
    for r in range(4): a(f'v_mov_b32 {vr(D+r)}, -1')
    a(f's_cmp_eq_u32 s{sW}, 1'); a(f's_cbranch_scc1 {Lc1}')
    a(f'v_lshrrev_b32 {vr(t0)}, 5, {vr(vLane)}'); a(f'v_lshlrev_b32 {vr(t0)}, 15, {vr(t0)}')
    a(f'v_and_b32 {vr(t1)}, 31, {vr(vLane)}'); a(f'v_lshl_add_u32 {vr(t0)}, {vr(t1)}, 4, {vr(t0)}')
    a(f's_lshl_b32 s6, s{sBeta}, 9'); a(f's_add_u32 s7, s6, {QABS + 65536}'); a(f's_add_u32 s6, s6, {QABS}')
    a(f'buffer_store_dwordx4 {vr(D,4)}, {vr(t0)}, {srd(S_WS)}, s6 offen sc1')
    a(f'buffer_store_dwordx4 {vr(D,4)}, {vr(t0)}, {srd(S_WS)}, s7 offen sc1')
    a(f's_add_u32 s6, s6, {PSTAT - QABS}')
    a('s_mov_b64 exec, 0xffffffff')
    a(f'buffer_store_dwordx4 {vr(D,4)}, {vr(vL16)}, {srd(S_WS)}, s6 offen sc1')
    a(f's_lshl_b32 s6, s{sBeta}, 7'); a(f's_add_u32 s6, s6, {AST}')
    a('s_mov_b64 exec, 0xff')
    a(f'buffer_store_dwordx4 {vr(D,4)}, {vr(vL16)}, {srd(S_WS)}, s6 offen sc1')
    if cfg.dyn:
        a(f's_mul_i32 s6, s{sBeta}, {cfg.psp}'); a(f's_add_u32 s6, s6, {PROG}')
        a('s_mov_b32 exec_lo, 1'); a(f's_mov_b32 exec_hi, {1 if cfg.mon else 0}')
        a(f'buffer_store_dwordx4 {vr(D,4)}, {vr(t0)}, {srd(S_WS)}, s6 offen sc1')
    a('s_mov_b64 exec, -1')
    a(f'{Lc1}:')
    a(f's_mul_i32 s6, s{sBeta}, 9216'); a(f's_mul_i32 s7, s{sW}, {YB - YA}'); a('s_add_u32 s6, s6, s7'); a(f's_add_u32 s6, s6, {YA if not cfg.bskip & 1024 else OOB}')
    for k in range(9):
        if k in (4, 8): a('s_add_u32 s6, s6, 4096')
        a(f'buffer_store_dwordx4 {vr(D,4)}, {vr(vL16)}, {srd(S_WS)}, s6 offen offset:{1024*(k&3)} {cfg.clr_flags}')
    a(f'{Lc}:')
    for jj in range(36): wunit_load(vm, jj, vWoff, cfg.bwq_flags)
    def uk_load(u):
        a(f's_mov_b32 s6, {u*8192}')
        vm.issue(f'buffer_load_dwordx4 {vr(UK+4*u,4)}, {vr(vUoff)}, {srd(S_U)}, s6 offen {fl}', ('u', u))
    for u in range(3): uk_load(u)
    mk_srd(S_DBG, P_DBG, None, 256); mk_srd(S_OUT, P_OUT, None, 9216)
    mk_masks(vLane, MASK, SEL, t0, t1)
    def coff(rho, k):
        if cfg.cwin == 0: return (64 * rho + k) * 1024
        if cfg.cwin == 1: return (1024 * rho + k) * 1024
        return (1024 * rho + 256 * (k >> 2) + (k & 3)) * 1024
    def c_dma(rho, k):
        a(f's_add_u32 m0, s{sM0}, {(rho&1)*CB + k*CROW}')
        a(f's_add_u32 s6, s{sSo}, {coff(rho, k)}')
        vm.issue(f'buffer_load_dwordx4 {vr(vL16x if k >= 8 else vL16)}, {srd(S_K)}, s6 offen {fl} lds', ('c', rho))
    def c_reg(rho, k):
        a(f's_add_u32 s6, s{sSo}, {coff(rho, k)}')
        vm.issue(f'buffer_load_dwordx4 {ar(64*rho+4*k,4)}, {vr(vL16x if k >= 8 else vL16)}, {srd(S_K)}, s6 offen {fl}', ('c', rho))
    a(f's_mul_i32 s{sM0}, s{sW}, {16*CROW}'); a(f's_lshl_b32 s{sSo}, s{sW}, 14')
    if cfg.cwin:
        a(f's_lshl_b32 s6, s{sCh}, 16'); a(f's_add_u32 s{sSo}, s{sSo}, s6')
        if cfg.cwin == 2: a(f's_lshr_b32 s{sSo}, s{sSo}, 2')
    dma = [(rho, k) for rho in range(2) for k in range(16)]
    for jj in range(36):
        vm.wait(('w', jj))
        if jj == 0:
            Ls = lab('sig0')
            a(f's_cmp_ge_u32 s{sW}, 2'); a(f's_cbranch_scc1 {Ls}')
            a(f'v_mov_b32 {vr(t2)}, 1'); a('s_mov_b64 exec, 1')
            a(f'buffer_atomic_add {vr(t2)}, off, {srd(S_DBG)}, 0 offset:{C0}')
            a('s_mov_b64 exec, -1')
            a(f'{Ls}:')
            vm.limit = 61
            for u in range(3, 16): uk_load(u)
        wunit_mfma(jj, [X0, X1], [AC0, AC1], SEL, PA)
        if jj == 28: vm.issue(f'buffer_load_dword {vr(vC0)}, off, {srd(S_DBG)}, 0 offset:{C0} sc1', 'c0')
        if dma: c_dma(*dma.pop(0))
    assert not dma
    a(f'v_lshlrev_b32 {vr(t0)}, 5, {vr(vI)}')
    a(f'v_and_b32 {vr(t1)}, 1, {vr(vG)}'); a(f'v_lshl_add_u32 {vr(t1)}, {vr(t1)}, 4, {vr(t0)}')
    a(f'v_lshrrev_b32 {vr(t2)}, 5, {vr(vLane)}'); a(f'v_lshl_add_u32 {vr(t1)}, {vr(t2)}, 9, {vr(t1)}')
    a(f's_lshl_b32 s6, s{sW}, 11'); a(f's_add_u32 s6, s6, {QRED}'); a(f'v_add_u32 {vr(t1)}, s6, {vr(t1)}')
    a(f'ds_write_b128 {vr(t1)}, {vr(AC0,4)}'); a(f'ds_write_b128 {vr(t1)}, {vr(AC1,4)} offset:1024')
    a(f'v_add_u32 {vr(t0)}, {QRED}, {vr(t0)}')
    a('s_waitcnt lgkmcnt(0)'); a('s_barrier')
    for b in range(4):
        for w in range(4):
            a(f'ds_read_b128 {vr(D+8*w,4)}, {vr(t0)} offset:{2048*w+512*b}')
            a(f'ds_read_b128 {vr(D+8*w+4,4)}, {vr(t0)} offset:{2048*w+512*b+16}')
        a('s_waitcnt lgkmcnt(0)')
        for e in range(8):
            a(f'v_add_f32 {vr(D+e)}, {vr(D+e)}, {vr(D+8+e)}'); a(f'v_add_f32 {vr(D+16+e)}, {vr(D+16+e)}, {vr(D+24+e)}')
        for e in range(8): a(f'v_add_f32 {vr(D+e)}, {vr(D+e)}, {vr(D+16+e)}')
        for k in range(4): a(f'v_cvt_pk_bf16_f32 {vr(QB+4*b+k)}, {vr(D+2*k)}, {vr(D+2*k+1)}')
    vm.wait(('u', 15))
    for u in range(16):
        for k in range(4):
            for b in range(4):
                c = '0' if k == 0 else vr(T + b)
                a(f'v_dot2_f32_bf16 {vr(T+b)}, {vr(UK+4*u+k)}, {vr(QB+4*b+k)}, {c}')
        reduce4(T, XX, U + u)
    for k in range(8): a(f'v_cvt_pk_bf16_f32 {vr(D+k)}, {vr(U+2*k)}, {vr(U+2*k+1)}')
    for k in range(8): a(f'v_min_u32 {vr(D+k)}, -2, {vr(D+k)}')
    a(f'v_bfe_u32 {vr(t0)}, {vr(vLane)}, 2, 2'); a(f'v_lshlrev_b32 {vr(t0)}, 15, {vr(t0)}')
    a(f'v_lshl_add_u32 {vr(t0)}, {vr(vG)}, 5, {vr(t0)}')
    a(f's_lshl_b32 s6, s{sH}, 10'); a(f's_lshl_b32 s7, s{sHalf}, 9'); a('s_add_u32 s6, s6, s7')
    a(f's_lshl_b32 s7, s{sW}, 7'); a('s_add_u32 s6, s6, s7'); a(f's_add_u32 s6, s6, {QABS}')
    if cfg.qfull:
        a(f'v_and_b32 {vr(t1)}, 1, {vr(vLane)}'); a(f'v_lshl_add_u32 {vr(t0)}, {vr(t1)}, 4, {vr(t0)}')
        a(f'v_cmp_eq_u32 vcc, 1, {vr(t1)}')
        for k in range(4): a(f'v_cndmask_b32 {vr(D+k)}, {vr(D+k)}, {vr(D+4+k)}, vcc')
        a('s_mov_b32 exec_lo, 0x33333333'); a('s_mov_b32 exec_hi, 0x33333333')
        vm.issue(f'buffer_store_dwordx4 {vr(D,4)}, {vr(t0)}, {srd(S_WS)}, s6 offen sc1')
    else:
        a('s_mov_b32 exec_lo, 0x11111111'); a('s_mov_b32 exec_hi, 0x11111111')
        vm.issue(f'buffer_store_dwordx4 {vr(D,4)}, {vr(t0)}, {srd(S_WS)}, s6 offen sc1')
        vm.issue(f'buffer_store_dwordx4 {vr(D+4,4)}, {vr(t0)}, {srd(S_WS)}, s6 offen offset:16 sc1')
    a('s_mov_b64 exec, -1')
    stamp(1)
    vm.wait('c0')
    ensure(C0, C0N, vC0)
    stamp(2)
    if cfg.bstop == 1: a('s_branch B_end')
    V = VAlloc(base)
    ACC = V(64, 4); S = V(8, 4); CF = V(64, 4); PF = V(16, 4); MXR = V(12, 4)
    mQ = V(2); mP = V(); lQ = V(2); aQ = V(2); aP = V(); vC = V(); PK = V(4, 2); Mx = V(2); tt = V()
    vA = V(2); vTr = V(2); vMw = V(); vMr = V(); vMp = V(); vPw = V(); vPr = V(); vQ = V(); vQw = V(); vCw = V(2)
    sQ = 14
    a(f's_lshl_b32 s{sQ}, s{sB2}, 15'); a(f's_lshl_b32 s6, s{sW}, 12'); a(f's_add_u32 s{sQ}, s{sQ}, s6'); a(f's_add_u32 s{sQ}, s{sQ}, {QABS}')
    a(f's_add_u32 s{sQ+1}, s{sQ}, 16384')
    def q_loads(iss):
        for nt in range(2):
            for k in range(4):
                iss(f'buffer_load_dwordx4 {vr(CF+16*nt+4*k,4)}, {vr(vL16)}, {srd(S_WS)}, s{sQ+nt} offen offset:{1024*k} sc1')
    a('s_nop 1')
    q_loads(lambda t: vm.issue(t, 'q'))
    for rho in (2, 3):
        for k in range(16): c_reg(rho, k)
    a(f's_lshl_b32 s6, s{sW}, 4'); a(f'v_add_u32 {vr(t0)}, s6, {vr(vI)}'); a(f'v_mul_u32_u24 {vr(t0)}, {CROW}, {vr(t0)}')
    a(f'v_lshrrev_b32 {vr(t1)}, 3, {vr(vI)}'); a(f'v_lshlrev_b32 {vr(t1)}, 1, {vr(t1)}'); a(f'v_xor_b32 {vr(t1)}, {vr(t1)}, {vr(vG)}')
    a(f'v_lshl_add_u32 {vr(vA)}, {vr(t1)}, 4, {vr(t0)}'); a(f'v_add_u32 {vr(vA+1)}, {CB}, {vr(vA)}')
    a(f'v_lshrrev_b32 {vr(t0)}, 5, {vr(vLane)}'); a(f'v_lshlrev_b32 {vr(t0)}, 3, {vr(t0)}')
    a(f'v_bfe_u32 {vr(t1)}, {vr(vLane)}, 2, 2'); a(f'v_add_u32 {vr(t0)}, {vr(t0)}, {vr(t1)}'); a(f'v_mul_u32_u24 {vr(t0)}, {CROW}, {vr(t0)}')
    a(f'v_lshrrev_b32 {vr(t1)}, 1, {vr(vG)}'); a(f'v_xor_b32 {vr(t1)}, {vr(t1)}, {vr(vG)}')
    a(f'v_and_b32 {vr(t1)}, 1, {vr(t1)}'); a(f'v_lshl_add_u32 {vr(t0)}, {vr(t1)}, 5, {vr(t0)}')
    a(f'v_and_b32 {vr(t1)}, 3, {vr(vLane)}'); a(f'v_lshl_add_u32 {vr(t0)}, {vr(t1)}, 3, {vr(t0)}')
    a(f's_lshl_b32 s6, s{sW}, 8'); a(f'v_add_u32 {vr(vTr)}, s6, {vr(t0)}'); a(f'v_add_u32 {vr(vTr+1)}, {CB}, {vr(vTr)}')
    a(f'v_lshlrev_b32 {vr(vMr)}, 4, {vr(vI)}'); a(f'v_add_u32 {vr(vMr)}, {MX}, {vr(vMr)}')
    a(f's_lshl_b32 s6, s{sW}, 2'); a(f'v_add_u32 {vr(vMw)}, s6, {vr(vMr)}')
    a(f'v_and_b32 {vr(t0)}, 31, {vr(vLane)}'); a(f'v_lshlrev_b32 {vr(vMp)}, 4, {vr(t0)}'); a(f'v_add_u32 {vr(vMp)}, {MX}, {vr(vMp)}')
    a(f'v_lshlrev_b32 {vr(vPr)}, 5, {vr(t0)}'); a(f'v_lshrrev_b32 {vr(t1)}, 5, {vr(vLane)}')
    a(f'v_lshl_add_u32 {vr(vPr)}, {vr(t1)}, 4, {vr(vPr)}'); a(f'v_add_u32 {vr(vPr)}, {PB}, {vr(vPr)}')
    a(f'v_lshlrev_b32 {vr(vPw)}, 5, {vr(vI)}'); a(f'v_lshl_add_u32 {vr(vPw)}, {vr(vG)}, 3, {vr(vPw)}')
    a(f's_lshl_b32 s6, s{sW}, 10'); a(f's_add_u32 s6, s6, {PB}'); a(f'v_add_u32 {vr(vPw)}, s6, {vr(vPw)}')
    a(f'v_mul_u32_u24 {vr(vQ)}, {QROW}, {vr(vI)}'); a(f'v_lshl_add_u32 {vr(vQ)}, {vr(vG)}, 4, {vr(vQ)}'); a(f'v_add_u32 {vr(vQ)}, {SQ}, {vr(vQ)}')
    a(f's_mul_i32 s6, s{sW}, {4*QROW}'); a(f's_add_u32 s6, s6, {SQ}'); a(f'v_add_u32 {vr(vQw)}, s6, {vr(vL16)}')
    a(f'v_add_u32 {vr(vCw)}, s{sM0}, {vr(vL16)}'); a(f'v_add_u32 {vr(vCw+1)}, {CB}, {vr(vCw)}')
    a(f'v_mov_b32 {vr(vC)}, {f2u(SCALE):#x}')
    for r in (mQ, mQ + 1, mP): a(f'v_mov_b32 {vr(r)}, 0xff800000')
    a(f'v_mov_b32 {vr(lQ)}, 0'); a(f'v_mov_b32 {vr(lQ+1)}, 0')
    vm.wait('q')
    a(f's_mov_b32 s7, {cfg.spin_max}')
    a('Q_chk:')
    umax_tree(tt, range(CF, CF + 32))
    a(f'v_cmp_eq_u32 vcc, -1, {vr(tt)}')
    a('s_cbranch_vccz Q_ok')
    a(f's_sleep {cfg.qsleep}')
    q_loads(a)
    a('s_waitcnt vmcnt(0)')
    a('s_sub_u32 s7, s7, 1'); a('s_cmp_lg_u32 s7, 0'); a('s_cbranch_scc1 Q_chk')
    a('Q_ok:')
    stamp(3)
    for nt in range(2):
        a('s_barrier')
        for k in range(4): a(f'ds_write_b128 {vr(vQw)}, {vr(CF+16*nt+4*k,4)} offset:{QROW*k}')
        a('s_waitcnt lgkmcnt(0)'); a('s_barrier')
        for ks in range(16): a(f'ds_read_b128 {ar(64*nt+4*ks,4)}, {vr(vQ)} offset:{64*ks}')
        a('s_waitcnt lgkmcnt(0)')
    for rho in range(4):
        par = rho & 1
        for ks in range(16):
            a(f'ds_read_b128 {vr(CF+4*ks,4)}, {vr(vA+par)} offset:{64*ks}')
        for ks in range(16):
            a(f's_waitcnt lgkmcnt({15-ks})')
            for nt in range(2):
                c = '0' if ks == 0 else vr(S + 4 * nt, 4)
                a(f'v_mfma_f32_16x16x32_bf16 {vr(S+4*nt,4)}, {vr(CF+4*ks,4)}, {ar(64*nt+4*ks,4)}, {c}')
        for nt in range(2):
            a(f'v_max_f32 {vr(Mx+nt)}, {vr(S+4*nt)}, {vr(S+4*nt+1)}')
            a(f'v_max3_f32 {vr(Mx+nt)}, {vr(Mx+nt)}, {vr(S+4*nt+2)}, {vr(S+4*nt+3)}')
            allred_rows(Mx + nt, tt, 'v_max_f32')
            a(f'ds_write_b32 {vr(vMw)}, {vr(Mx+nt)} offset:{256*nt}')
        a('s_waitcnt lgkmcnt(0)'); a('s_barrier')
        a(f'ds_read_b128 {vr(MXR,4)}, {vr(vMr)}'); a(f'ds_read_b128 {vr(MXR+4,4)}, {vr(vMr)} offset:256'); a(f'ds_read_b128 {vr(MXR+8,4)}, {vr(vMp)}')
        if 1 <= rho <= 2:
            vm.wait(('c', rho + 1))
            for k in range(16): a(f'ds_write_b128 {vr(vCw+1-par)}, {ar(64*(rho+1)+4*k,4)} offset:{k*CROW}')
            a('s_waitcnt lgkmcnt(15)')
        else:
            a('s_waitcnt lgkmcnt(0)')
        for i, (m, al) in enumerate(((mQ, aQ), (mQ + 1, aQ + 1), (mP, aP))):
            R = MXR + 4 * i
            a(f'v_max_f32 {vr(R)}, {vr(R)}, {vr(R+1)}'); a(f'v_max3_f32 {vr(R)}, {vr(R)}, {vr(R+2)}, {vr(R+3)}')
            a(f'v_mul_f32 {vr(R)}, {vr(R)}, {vr(vC)}'); a(f'v_max_f32 {vr(R)}, {vr(R)}, {vr(m)}')
            a(f'v_sub_f32 {vr(al)}, {vr(m)}, {vr(R)}'); a(f'v_exp_f32 {vr(al)}, {vr(al)}'); a(f'v_mov_b32 {vr(m)}, {vr(R)}')
        for nt in range(2):
            for r in range(4):
                a(f'v_fma_f32 {vr(S+4*nt+r)}, {vr(S+4*nt+r)}, {vr(vC)}, -{vr(mQ+nt)}')
            for r in range(4): a(f'v_exp_f32 {vr(S+4*nt+r)}, {vr(S+4*nt+r)}')
            a(f'v_mul_f32 {vr(lQ+nt)}, {vr(lQ+nt)}, {vr(aQ+nt)}')
            a(f'v_cvt_pk_bf16_f32 {vr(PK+2*nt)}, {vr(S+4*nt)}, {vr(S+4*nt+1)}'); a(f'v_cvt_pk_bf16_f32 {vr(PK+2*nt+1)}, {vr(S+4*nt+2)}, {vr(S+4*nt+3)}')
            a(f'ds_write_b64 {vr(vPw)}, {vr(PK+2*nt,2)} offset:{512*nt}')
            for r in range(4): a(f'v_add_f32 {vr(lQ+nt)}, {vr(lQ+nt)}, {vr(S+4*nt+r)}')
        if rho > 0:
            for r in range(64): a(f'v_mul_f32 {vr(ACC+r)}, {vr(ACC+r)}, {vr(aP)}')
        a('s_waitcnt lgkmcnt(0)'); a('s_barrier')
        for ks in range(4): a(f'ds_read_b128 {vr(PF+4*ks,4)}, {vr(vPr)} offset:{1024*ks}')
        for ks in range(4):
            for ct in range(4):
                for sec in range(2):
                    a(f'ds_read_b64_tr_b16 {vr(CF+16*ks+4*ct+2*sec,2)}, {vr(vTr+par)} offset:{(16*ks+4*sec)*CROW + 64*ct}')
        for ks in range(4):
            a(f's_waitcnt lgkmcnt({min(15, 8*(3-ks))})')
            for ct in range(4):
                c = '0' if (rho == 0 and ks == 0) else vr(ACC + 16 * ct, 16)
                a(f'v_mfma_f32_32x32x16_bf16 {vr(ACC+16*ct,16)}, {vr(CF+16*ks+4*ct,4)}, {vr(PF+4*ks,4)}, {c}')
    stamp(4)
    for nt in range(2):
        allred_rows(lQ + nt, tt, 'v_add_f32')
        a(f'ds_write_b32 {vr(vMw)}, {vr(lQ+nt)} offset:{512+256*nt}')
    TROW = 1040
    a(f'v_and_b32 {vr(t0)}, 31, {vr(vLane)}'); a(f'v_mul_u32_u24 {vr(t0)}, {TROW}, {vr(t0)}')
    a(f'v_lshrrev_b32 {vr(t1)}, 5, {vr(vLane)}'); a(f'v_lshl_add_u32 {vr(t0)}, {vr(t1)}, 3, {vr(t0)}')
    a(f's_lshl_b32 s6, s{sW}, 8'); a(f'v_add_u32 {vr(t0)}, s6, {vr(t0)}')
    for ct in range(4):
        for rq in range(4):
            R = ACC + 16 * ct + 4 * rq; P = CF + 2 * (4 * ct + rq)
            a(f'v_cvt_pk_bf16_f32 {vr(P)}, {vr(R)}, {vr(R+1)}'); a(f'v_cvt_pk_bf16_f32 {vr(P+1)}, {vr(R+2)}, {vr(R+3)}')
            a(f'ds_write_b64 {vr(t0)}, {vr(P,2)} offset:{64*ct+16*rq}')
    a('s_waitcnt lgkmcnt(0)'); a('s_barrier')
    a(f's_mul_i32 s6, s{sW}, {8*TROW}'); a(f'v_add_u32 {vr(t0)}, s6, {vr(vL16)}')
    for k in range(8): a(f'ds_read_b128 {vr(CF+32+4*k,4)}, {vr(t0)} offset:{k*TROW}')
    a(f'ds_read_b128 {vr(MXR,4)}, {vr(vMp)} offset:512')
    a(f's_lshl_b32 s7, s{sW}, 19'); a(f's_lshl_b32 s6, s{sBeta}, 10'); a('s_add_u32 s7, s7, s6'); a(f's_add_u32 s7, s7, {PART if not cfg.bskip & 16 else OOB}')
    if cfg.emu & 4:
        a(f's_cmp_eq_u32 s{sHalf}, 1'); a(f's_cselect_b32 s7, {OOB}, s7')
    for k in range(8):
        a(f's_waitcnt lgkmcnt({8-k})')
        a(f's_add_u32 s6, s7, {k*65536}')
        a(f'buffer_store_dwordx4 {vr(CF+32+4*k,4)}, {vr(vL16)}, {srd(S_WS)}, s6 offen {cfg.pst_flags}')
    a('s_waitcnt lgkmcnt(0)')
    a(f'v_add_f32 {vr(MXR)}, {vr(MXR)}, {vr(MXR+1)}'); a(f'v_add_f32 {vr(MXR+2)}, {vr(MXR+2)}, {vr(MXR+3)}')
    a(f'v_add_f32 {vr(PK+1)}, {vr(MXR)}, {vr(MXR+2)}'); a(f'v_mov_b32 {vr(PK)}, {vr(mP)}')
    a(f'v_and_b32 {vr(t0)}, 31, {vr(vLane)}'); a(f'v_lshrrev_b32 {vr(t1)}, 5, {vr(vLane)}')
    a(f'v_lshl_add_u32 {vr(t0)}, {vr(t0)}, 1, {vr(t1)}'); a(f'v_lshlrev_b32 {vr(t0)}, 9, {vr(t0)}')
    a(f's_lshl_b32 s6, s{sBeta}, 3'); a(f's_add_u32 s6, s6, {PSTAT}')
    a(f'v_min_u32 {vr(PK)}, -2, {vr(PK)}'); a(f'v_min_u32 {vr(PK+1)}, -2, {vr(PK+1)}')
    a('s_waitcnt vmcnt(0)'); a('s_barrier')
    Ls = lab('nops')
    a(f's_cmp_lg_u32 s{sW}, 0'); a(f's_cbranch_scc1 {Ls}')
    if cfg.pshare: a('s_mov_b64 exec, 0xffffffff')
    a(f'buffer_store_dwordx2 {vr(PK,2)}, {vr(t0)}, {srd(S_WS)}, s6 offen sc1')
    if cfg.pshare: a('s_mov_b64 exec, -1')
    a(f'{Ls}:')
    stamp(5)
    if cfg.bstop == 2: a('s_branch B_end')
    V = VAlloc(base)
    UB = 73728; OT = UB + 65536; RED = OT + 2048
    AF = V(64, 4); BF = V(32, 4); D = V(36, 4); F = V(4); ST = V(2); Mx = V(); Lx = V(); vU = V(2); vR = V(4); vT = V(4); PA = V(8, 4); O = V(12, 4)
    a(f's_mul_i32 s6, s{sBeta}, 73728'); mk_srd(S_WO, P_BWO, 's6', 73728)
    a(f's_lshl_b32 s6, s{sBeta}, 7'); a(f's_sub_u32 s7, {512*8192}, s6'); mk_srd(S_U, P_WUV, 's6', 's7')
    for bit, Rr in ((64, S_U), (128, S_WO)):
        if cfg.bskip & bit: a(f's_mov_b32 s{Rr+2}, 0')
    a(f'v_lshrrev_b32 {vr(t0)}, 3, {vr(vLane)}'); a(f'v_and_b32 {vr(t1)}, 7, {vr(vLane)}')
    a(f'v_and_b32 {vr(t2)}, 2, {vr(t0)}'); a(f'v_xor_b32 {vr(t1)}, {vr(t1)}, {vr(t2)}')
    a(f'v_lshlrev_b32 {vr(t0)}, 13, {vr(t0)}')
    a(f'v_lshl_add_u32 {vr(vU)}, {vr(t1)}, 4, {vr(t0)}')
    a(f'v_xor_b32 {vr(t1)}, 4, {vr(t1)}'); a(f'v_lshl_add_u32 {vr(vU+1)}, {vr(t1)}, 4, {vr(t0)}')
    a(f's_lshl_b32 s{sM0}, s{sW}, 14'); a(f's_lshl_b32 s{sSo}, s{sW}, 20')
    if cfg.emu & 2:
        a(f's_lshl_b32 s6, s{sH}, 8'); a(f's_lshl_b32 s7, s{sHalf}, 21'); a('s_add_u32 s6, s6, s7'); a(f's_sub_u32 s7, {512*8192}, s6'); mk_srd(S_U, P_WUV, 's6', 's7')
        a(f'v_lshlrev_b32 {vr(vU)}, 13, {vr(vG)}'); a(f'v_lshl_add_u32 {vr(vU)}, {vr(vI)}, 4, {vr(vU)}'); a(f'v_mov_b32 {vr(vU+1)}, {vr(vU)}')
        a(f's_lshl_b32 s{sSo}, s{sW}, 19')
    for k in range(16):
        a(f's_add_u32 m0, s{sM0}, {UB + k*1024}'); a(f's_add_u32 s6, s{sSo}, {k*(32768 if cfg.emu & 2 else 65536)}')
        a(f'buffer_load_dwordx4 {vr(vU+(k&1))}, {srd(S_U)}, s6 offen {fl} lds')
    a(f's_mul_i32 s{sM0}, s{sW}, 18432')
    for k in range(18):
        a(f's_add_u32 s6, s{sM0}, {k*1024}'); a('s_mov_b32 m0, s6')
        a(f'buffer_load_dwordx4 {vr(vL16)}, {srd(S_WO)}, s6 offen {fl} lds')
    mk_wo_tr_addr(vLane, vT, t0, t1, False)
    a(f'v_bfe_u32 {vr(t0)}, {vr(vLane)}, 2, 2'); a(f'v_lshl_add_u32 {vr(t0)}, {vr(vG)}, 3, {vr(t0)}'); a(f'v_lshlrev_b32 {vr(t0)}, 7, {vr(t0)}')
    a(f'v_and_b32 {vr(t1)}, 3, {vr(vLane)}'); a(f'v_lshl_add_u32 {vr(t0)}, {vr(t1)}, 3, {vr(t0)}'); a(f'v_add_u32 {vr(t0)}, {UB}, {vr(t0)}')
    a(f'v_bfe_u32 {vr(t1)}, {vr(vLane)}, 3, 2')
    for t in range(4):
        a(f'v_xor_b32 {vr(t2)}, {t}, {vr(t1)}'); a(f'v_lshl_add_u32 {vr(vR+t)}, {vr(t2)}, 5, {vr(t0)}')
    a(f'v_lshlrev_b32 {vr(t0)}, 10, {vr(vI)}'); a(f'v_lshl_add_u32 {vr(t0)}, {vr(vG)}, 4, {vr(t0)}')
    a(f'v_lshlrev_b32 {vr(t1)}, 3, {vr(vI)}')
    a(f's_lshl_b32 s6, s{sH}, 10' if cfg.pshare else f's_lshl_b32 s6, s{sBeta}, 9'); a(f's_lshl_b32 s7, s{sW}, 7'); a('s_add_u32 s6, s6, s7'); a(f's_add_u32 s6, s6, {PSTAT}')
    a(f's_mov_b32 s7, {cfg.spin_max}')
    a('P_poll:')
    a(f'buffer_load_dwordx2 {vr(ST,2)}, {vr(t1)}, {srd(S_WS)}, s6 offen sc1')
    a('s_waitcnt vmcnt(0)')
    a(f'v_max_u32 {vr(Mx)}, {vr(ST)}, {vr(ST+1)}'); a(f'v_cmp_eq_u32 vcc, -1, {vr(Mx)}')
    a('s_cbranch_vccz P_ok')
    a(f's_sleep {cfg.psleep}')
    a('s_sub_u32 s7, s7, 1'); a('s_cmp_lg_u32 s7, 0'); a('s_cbranch_scc1 P_poll')
    a('P_ok:')
    stamp(6)
    vm = VM(a)
    a(f's_lshl_b32 s6, s{sH}, 16'); a(f's_lshl_b32 s7, s{sW}, 14'); a('s_add_u32 s6, s6, s7'); a(f's_add_u32 s6, s6, {PART if not cfg.bskip & 256 else OOB}')
    if cfg.emu & 4:
        a(f's_cmp_eq_u32 s{sHalf}, 1'); a(f's_cselect_b32 s6, {OOB}, s6')
    for ks in range(16):
        if cfg.emu & 4:
            vm.issue(f'buffer_load_dwordx4 {vr(AF+4*ks,4)}, {vr(vL16)}, {srd(S_WS)}, s6 offen offset:{2048*(ks&1)} sc1', ('a', ks))
            if ks & 1: a(f's_add_u32 s6, s6, {4096 if ks != 7 else OOB}')
            continue
        if cfg.bskip & 512:
            vm.issue(f'buffer_load_dwordx4 {vr(AF+4*ks,4)}, {vr(vL16)}, {srd(S_WS)}, s6 offen offset:{1024*(ks&3)} sc1', ('a', ks))
            if ks & 3 == 3: a('s_add_u32 s6, s6, 4096')
            continue
        vm.issue(f'buffer_load_dwordx4 {vr(AF+4*ks,4)}, {vr(t0)}, {srd(S_WS)}, s6 offen offset:{64*ks} {cfg.pld_flags}', ('a', ks))
    a('s_barrier')
    wo_frag_reads(2, vT)
    a(f'v_mov_b32 {vr(Mx)}, {vr(ST)}')
    for sh in (8, 4, 2, 1): a(f'v_max_f32_dpp {vr(Mx)}, {vr(Mx)}, {vr(Mx)} row_ror:{sh} {DPPF}')
    a(f'v_sub_f32 {vr(ST)}, {vr(ST)}, {vr(Mx)}'); a(f'v_exp_f32 {vr(ST)}, {vr(ST)}')
    a(f'v_mul_f32 {vr(Lx)}, {vr(ST)}, {vr(ST+1)}')
    for sh in (8, 4, 2, 1): a(f'v_add_f32_dpp {vr(Lx)}, {vr(Lx)}, {vr(Lx)} row_ror:{sh} {DPPF}')
    a(f'v_rcp_f32 {vr(Lx)}, {vr(Lx)}'); a(f'v_mul_f32 {vr(ST)}, {vr(ST)}, {vr(Lx)}')
    for r in range(4):
        for q in range(4):
            a(f'v_mov_b32_dpp {vr(F+r)}, {vr(ST)} row_newbcast:{4*q+r} row_mask:{1<<q:#x} bank_mask:0xf')
    a('s_waitcnt lgkmcnt(0)')
    def u_reads(ks):
        for t in range(4):
            for sec in range(2):
                a(f'ds_read_b64_tr_b16 {vr(BF+16*(ks&1)+4*t+2*sec,2)}, {vr(vR+t)} offset:{(32*ks+4*sec)*128}')
    u_reads(0)
    for ks in range(16):
        if ks + 1 < 16: u_reads(ks + 1)
        vm.wait(('a', ks))
        a(f's_waitcnt lgkmcnt({8 if ks + 1 < 16 else 0})')
        for t in range(4):
            c = '0' if ks == 0 else vr(D + 4 * t, 4)
            a(f'v_mfma_f32_16x16x32_bf16 {vr(D+4*t,4)}, {vr(AF+4*ks,4)}, {vr(BF+16*(ks&1)+4*t,4)}, {c}')
    a(f'v_lshlrev_b32 {vr(t0)}, 7, {vr(vG)}'); a(f'v_lshl_add_u32 {vr(t0)}, {vr(vI)}, 1, {vr(t0)}')
    a(f's_lshl_b32 s6, s{sW}, 9'); a(f's_add_u32 s6, s6, {OT}'); a(f'v_add_u32 {vr(t0)}, s6, {vr(t0)}')
    for t in range(4):
        a(f'v_mul_f32 {vr(O+t)}, {vr(F)}, {vr(D+4*t)}')
        for r in range(1, 4): a(f'v_fma_f32 {vr(O+t)}, {vr(F+r)}, {vr(D+4*t+r)}, {vr(O+t)}')
        a(f'v_cvt_pk_bf16_f32 {vr(O+t)}, {vr(O+t)}, {vr(O+t)}')
        a(f'ds_write_b16 {vr(t0)}, {vr(O+t)} offset:{32*t}')
    a(f'v_lshlrev_b32 {vr(t1)}, 7, {vr(vI)}'); a(f'v_lshl_add_u32 {vr(t1)}, {vr(vG)}, 4, {vr(t1)}'); a(f'v_add_u32 {vr(t1)}, {OT}, {vr(t1)}')
    if cfg.dyn:
        a(f'v_mov_b32 {vr(vC0)}, {RED}'); a(f'v_mov_b32 {vr(t2)}, 0'); a(f'ds_write_b32 {vr(vC0)}, {vr(t2)}')
    a('s_waitcnt lgkmcnt(0)'); a('s_barrier')
    for ks in range(2): a(f'ds_read_b128 {vr(PA+4*ks,4)}, {vr(t1)} offset:{64*ks}')
    a(f'v_mul_u32_u24 {vr(t0)}, {64*2304}, {vr(vG)}')
    a(f'v_and_b32 {vr(t1)}, 3, {vr(vLane)}'); a(f'v_bfe_u32 {vr(t2)}, {vr(vLane)}, 2, 2')
    a(f'v_lshl_add_u32 {vr(t1)}, {vr(t1)}, 2, {vr(t2)}'); a(f'v_lshl_add_u32 {vr(t1)}, {vr(t1)}, 2, {vr(t0)}')
    a(f'v_lshl_add_u32 {vr(t0)}, {vr(vI)}, 4, {vr(t0)}')
    a(f's_mul_i32 s6, s{sBeta}, 2304'); a(f's_mul_i32 s7, s{sW}, 576'); a('s_add_u32 s6, s6, s7'); a(f's_add_u32 s6, s6, {YB}')
    a('s_waitcnt lgkmcnt(0)')
    for t in range(9):
        for ks in range(2):
            c = '0' if ks == 0 else vr(D + 4 * t, 4)
            a(f'v_mfma_f32_16x16x32_bf16 {vr(D+4*t,4)}, {vr(PA+4*ks,4)}, {ar(AW+4*(t*2+ks),4)}, {c}')
    for t in range(9):
        a(f'v_add_f32 {vr(D+4*t)}, {vr(D+4*t)}, {vr(D+4*t+1)}'); a(f'v_add_f32 {vr(D+4*t+2)}, {vr(D+4*t+2)}, {vr(D+4*t+3)}')
        a(f'v_add_f32 {vr(O+t)}, {vr(D+4*t)}, {vr(D+4*t+2)}'); a(f'v_min_u32 {vr(O+t)}, -2, {vr(O+t)}')
    a(f'buffer_store_dwordx4 {vr(O,4)}, {vr(t0)}, {srd(S_WS)}, s6 offen sc1')
    a(f'buffer_store_dwordx4 {vr(O+4,4)}, {vr(t0)}, {srd(S_WS)}, s6 offen offset:256 sc1')
    a(f'buffer_store_dword {vr(O+8)}, {vr(t1)}, {srd(S_WS)}, s6 offen offset:512 sc1')
    stamp(7)
    if cfg.bstop == 3: a('s_branch B_end')
    gen_final(vLane, vG, t0, t1, vC0, sHalf, sBeta, base)


class Mon:
    sX, sG, sDl, sO, sS = 16, 17, 18, 19, 22
    def __init__(self, r):
        self.PG = r; self.vP, self.vA, self.vB, self.S = r + 4, r + 5, r + 6, r + 7
    def init(self, vLane, sBeta):
        GL = PROG + 2 * TFO; vP, vA = self.vP, self.vA
        assert 8 * cfg.pxs <= TFO
        a(f's_lshr_b32 s{self.sX}, s{sBeta}, 3'); a(f's_mul_i32 s{self.sG}, s{self.sX}, {cfg.pxs}')
        a(f'v_and_b32 {vr(vP)}, 7, {vr(vLane)}'); a(f'v_mul_u32_u24 {vr(vP)}, {cfg.psp}, {vr(vP)}')
        a(f'v_add_u32 {vr(vP)}, s{self.sG}, {vr(vP)}'); a(f'v_add_u32 {vr(vP)}, {PROG}, {vr(vP)}')
        a(f'v_and_b32 {vr(vA)}, {cfg.mref-1}, {vr(vLane)}')
        if cfg.mref == 4: a(f's_and_b32 s6, s{self.sX}, 4'); a(f'v_add_u32 {vr(vA)}, s6, {vr(vA)}')
        a(f'v_mul_u32_u24 {vr(vA)}, {128 if cfg.msh else cfg.pxs}, {vr(vA)}'); a(f'v_add_u32 {vr(vA)}, {GL}, {vr(vA)}')
        if cfg.msh: a(f's_lshl_b32 s{self.sG}, s{self.sX}, 7'); a('s_mov_b32 s23, -1')
        a(f's_add_u32 s{self.sG}, s{self.sG}, {GL}')
        a(f's_mov_b32 s{self.sDl}, 0')
    def loads(self):
        if cfg.mrate: a('s_memrealtime s[24:25]')
        a(f'buffer_load_dwordx3 {vr(self.PG,3)}, {vr(self.vP)}, {srd(S_WS)}, 0 offen sc1')
        if cfg.msh:
            a('s_waitcnt lgkmcnt(0)'); a(f'v_mov_b32 {vr(self.S)}, s24'); a(f'v_subrev_u32 {vr(self.S)}, {1 << cfg.msh}, {vr(self.S)}')
            a(f'v_bfe_u32 {vr(self.S)}, {vr(self.S)}, {cfg.msh}, 5'); a(f'v_mul_u32_u24 {vr(self.S)}, {cfg.gls}, {vr(self.S)}')
            a(f'v_add_u32 {vr(self.S)}, {vr(self.S)}, {vr(self.vA)}')
            a(f'buffer_load_dword {vr(self.vB)}, {vr(self.S)}, {srd(S_WS)}, 0 offen sc1')
        elif not cfg.cdbg & 8: a(f'buffer_load_dword {vr(self.vB)}, {vr(self.vA)}, {srd(S_WS)}, 0 offen sc1')
    def step(self):
        PG, vP, vB, S, sX, sG, sDl, sO, sS = self.PG, self.vP, self.vB, self.S, self.sX, self.sG, self.sDl, self.sO, self.sS
        Ln = lab('mnext')
        a(f'v_min3_i32 {vr(S)}, {vr(PG)}, {vr(PG+1)}, {vr(PG+2)}'); a(f'v_cmp_gt_i32 vcc, 0, {vr(S)}')
        a(f's_mov_b32 s{sS}, 0'); a(f's_cbranch_vccnz {Ln}')
        a(f'v_add3_u32 {vr(S)}, {vr(PG)}, {vr(PG+1)}, {vr(PG+2)}')
        for sh in (4, 2, 1): a(f'v_add_u32_dpp {vr(S)}, {vr(S)}, {vr(S)} row_ror:{sh} {DPPF}')
        a(f'v_lshlrev_b32 {vr(S)}, 3, {vr(S)}')
        a(f'v_readfirstlane_b32 s{sS}, {vr(S)}')
        if cfg.mrate:
            assert cfg.mrate % 2 == 0
            a('s_waitcnt lgkmcnt(0)'); a(f's_mul_i32 s6, s24, {cfg.mrate}'); a(f's_sub_u32 s{sO}, s{sS}, s6'); a(f'v_mov_b32 {vr(S)}, s{sO}')
        if cfg.msh:
            Lk = lab('same')
            a(f's_bfe_u32 s6, s24, {(5 << 16) | cfg.msh:#x}'); a('s_cmp_eq_u32 s6, s23'); a(f's_cbranch_scc1 {Lk}')
            a('s_mov_b32 s23, s6'); a(f's_mul_i32 s6, s6, {cfg.gls}'); a(f's_add_u32 s6, s6, s{sG}')
            a('s_mov_b64 exec, 1')
            a(f'buffer_store_dword {vr(S)}, off, {srd(S_WS)}, s6 {cfg.gl_flags}')
            a('s_mov_b64 exec, -1')
            a(f'{Lk}:')
        else:
            a('s_mov_b64 exec, 1')
            if not cfg.cdbg & 4: a(f'buffer_store_dword {vr(S)}, off, {srd(S_WS)}, s{sG} {cfg.gl_flags}')
            a('s_mov_b64 exec, -1')
        if cfg.msh or not cfg.mrate: a(f'v_readlane_b32 s{sO}, {vr(vB)}, s{sX}')
        a(f'v_cmp_eq_u32 vcc, -1, {vr(vB)}')
        a(f's_cbranch_vccnz {Ln}')
        a(f'v_subrev_u32 {vr(vB)}, s{sO}, {vr(vB)}')
        for sh in (4, 2, 1): a(f'v_add_u32_dpp {vr(vB)}, {vr(vB)}, {vr(vB)} row_ror:{sh} {DPPF}')
        a(f'v_readfirstlane_b32 s6, {vr(vB)}')
        a('s_ashr_i32 s6, s6, 3')
        a(f's_sub_i32 s6, s6, s{sDl}'); a(f's_ashr_i32 s6, s6, {cfg.mf}'); a(f's_add_i32 s{sDl}, s{sDl}, s6')
        a(f's_mul_i32 s6, s{sS}, {cfg.mal}'); a('s_ashr_i32 s6, s6, 2'); a(f's_add_i32 s6, s6, s{sDl}'); a(f's_add_i32 s6, s6, {cfg.mth}')
        a(f's_add_i32 s{sO}, s6, {cfg.mth2 - cfg.mth}')
        if cfg.tforce: a(f's_lshr_b32 s6, {cfg.tforce}, s{sX}'); a('s_lshl_b32 s6, s6, 31'); a('s_or_b32 s6, s6, 0x100000')
        for j in range(3):
            a(f'v_mul_u32_u24 {vr(S)}, {48 * cfg.mal}, {vr(PG+j)}'); a(f'v_cmp_lt_i32 vcc, s6, {vr(S)}')
            a(f'v_cndmask_b32 {vr(PG+j)}, 0, 1, vcc')
            a(f'v_cmp_lt_i32 vcc, s{sO}, {vr(S)}'); a(f'v_cndmask_b32 {vr(PG+j)}, {vr(PG+j)}, 2, vcc')
        a('s_mov_b64 exec, 0xff'); a(f's_mov_b32 s6, {TFO}')
        a(f'buffer_store_dwordx3 {vr(PG,3)}, {vr(vP)}, {srd(S_WS)}, s6 offen')
        a('s_mov_b64 exec, -1'); a('s_nop 1')
        a(f'{Ln}:')

def gen_CD():
    V = VAlloc(1)
    vLane = V(); vL16 = V(); vWoff = V(); vXoff = V(); t0 = V(); t1 = V(); t2 = V(); vI = V(); vG = V(); vL16x = V(); vC0 = V()
    base = V.n
    sHalf, sBeta, sB2, sCh, sM0, sSo = 8, 9, 10, 11, 12, 13
    FLAG = LDS_TOTAL - 16
    NCH = cfg.nch; LC = NCH.bit_length() - 1; RORS = (4, 2, 1)[3 - LC:]
    fl = cfg.b_flags; SQ_ = globals()['SQ']
    def flag_init():
        if cfg.dyn:
            a(f'v_mov_b32 {vr(vC0)}, {FLAG}'); a(f'v_mov_b32 {vr(t2)}, 0'); a(f'ds_write_b32 {vr(vC0)}, {vr(t2)}')
    a('B_role:')
    if cfg.noB: a('s_endpgm')
    a(f's_mov_b32 s{sHalf}, s{sR}')
    a(f's_lshl_b32 s{sBeta}, s{sH}, 1'); a(f's_add_u32 s{sBeta}, s{sBeta}, s{sHalf}')
    a(f'v_and_b32 {vr(vLane)}, 63, v0'); a(f'v_lshlrev_b32 {vr(vL16)}, 4, {vr(vLane)}')
    a(f'v_lshrrev_b32 {vr(vG)}, 4, {vr(vLane)}'); a(f'v_and_b32 {vr(vI)}, 15, {vr(vLane)}')
    a(f's_cmp_eq_u32 s{sHalf}, 1'); a('s_cbranch_scc1 D_role')
    if cfg.warm & 2: warm_code('', 'D_role', vLane, t0, t1, 1)
    QRED = 147456; XB = QRED; XS = 1040; OT = QRED + 8192; OS = 272
    assert OT + 16 * OS <= FLAG
    MASK = V(4); SEL = V(8); X0 = V(20, 4); X1 = V(20, 4); PA = V(16, 4); AC0 = V(4, 4); AC1 = V(4, 4)
    UK = V(128, 4); QB = V(16, 4); T = V(4); XX = V(2); vUoff = V(); vT = V(4); E8 = V(8, 4)
    D = X0; U = PA
    a(f'v_mul_u32_u24 {vr(vWoff)}, {36*8192}, {vr(vG)}'); a(f'v_lshl_add_u32 {vr(vWoff)}, {vr(vI)}, 4, {vr(vWoff)}')
    a(f'v_mul_u32_u24 {vr(vXoff)}, 72, {vr(vG)}'); a(f'v_lshrrev_b32 {vr(t1)}, 3, {vr(vI)}')
    a(f'v_mul_u32_u24 {vr(t1)}, 1152, {vr(t1)}'); a(f'v_add_u32 {vr(vXoff)}, {vr(vXoff)}, {vr(t1)}')
    a(f'v_lshlrev_b32 {vr(vUoff)}, 17, {vr(vG)}'); a(f'v_lshl_add_u32 {vr(vUoff)}, {vr(vI)}, 4, {vr(vUoff)}')
    karg_wait()
    a(f's_mul_i32 s6, s{sW}, 288'); a('s_sub_u32 s7, 4608, s6'); mk_srd(S_X, P_BX, 's6', 's7')
    a(f's_mul_i32 s6, s{sW}, {144*8192}'); a(f's_lshl_b32 s7, s{sH}, 8'); a('s_add_u32 s6, s6, s7')
    a(f's_sub_u32 s7, {576*8192}, s6'); mk_srd(S_W, P_BWQ, 's6', 's7')
    vm = VM(a, 62)
    x_loads(vm, X0, vXoff, 0); x_loads(vm, X1, vXoff, 2304)
    for jj in range(36): wunit_load(vm, jj, vWoff, cfg.bwq_flags)
    a(f's_lshl_b32 s6, s{sW}, 20'); a(f's_lshl_b32 s7, s{sH}, 8'); a('s_add_u32 s6, s6, s7'); a(f's_sub_u32 s7, {512*8192}, s6')
    mk_srd(S_U, P_WUK, 's6', 's7'); mk_srd(S_K, P_WUV, 's6', 's7')
    def uk_load(u):
        a(f's_mov_b32 s6, {(64*(u>>4) + (u&15))*8192}')
        vm.issue(f'buffer_load_dwordx4 {vr(UK+4*u,4)}, {vr(vUoff)}, {srd(S_U)}, s6 offen {fl}', ('u', u))
    for u in range(12): uk_load(u)
    mk_srd(S_WS, P_WS, None, WS_USED); mk_srd(S_DBG, P_DBG, None, 256); mk_srd(S_OUT, P_OUT, None, 9216)
    a(f's_mul_i32 s6, s{sH}, 147456'); mk_srd(S_WO, P_BWO, 's6', 147456)
    mk_masks(vLane, MASK, SEL, t0, t1)
    mk_wo_tr_addr(vLane, vT, t0, t1, True)
    a(f's_mul_i32 s{sM0}, s{sW}, 36864')
    nd = [0]
    def wo_dma():
        k = nd[0]; nd[0] += 1
        if k % 4 == 0:
            if k: a(f's_add_u32 s{sM0}, s{sM0}, 4096')
            a(f's_mov_b32 m0, s{sM0}')
        vm.issue(f'buffer_load_dwordx4 {vr(vL16)}, {srd(S_WO)}, s{sM0} offen offset:{1024*(k%4)} {fl} lds', 'wo')
    nu = 12
    for jj in range(36):
        vm.wait(('w', jj))
        wunit_mfma(jj, [X0, X1], [AC0, AC1], SEL, PA)
        if nu < 32: uk_load(nu); nu += 1
        elif nu == 32: vm.issue(f'buffer_load_dword {vr(vC0)}, off, {srd(S_DBG)}, 0 offset:{C0} sc1', 'c0'); nu += 1
        elif nd[0] < cfg.cpre: wo_dma()
    stamp(3)
    a(f'v_lshlrev_b32 {vr(t0)}, 5, {vr(vI)}')
    a(f'v_and_b32 {vr(t1)}, 1, {vr(vG)}'); a(f'v_lshl_add_u32 {vr(t1)}, {vr(t1)}, 4, {vr(t0)}')
    a(f'v_lshrrev_b32 {vr(t2)}, 5, {vr(vLane)}'); a(f'v_lshl_add_u32 {vr(t1)}, {vr(t2)}, 9, {vr(t1)}')
    a(f's_lshl_b32 s6, s{sW}, 11'); a(f's_add_u32 s6, s6, {QRED}'); a(f'v_add_u32 {vr(t1)}, s6, {vr(t1)}')
    a(f'ds_write_b128 {vr(t1)}, {vr(AC0,4)}'); a(f'ds_write_b128 {vr(t1)}, {vr(AC1,4)} offset:1024')
    a(f'v_add_u32 {vr(t0)}, {QRED}, {vr(t0)}')
    a('s_waitcnt lgkmcnt(0)'); a('s_barrier')
    for b in range(4):
        for w in range(4):
            a(f'ds_read_b128 {vr(D+8*w,4)}, {vr(t0)} offset:{2048*w+512*b}')
            a(f'ds_read_b128 {vr(D+8*w+4,4)}, {vr(t0)} offset:{2048*w+512*b+16}')
        a('s_waitcnt lgkmcnt(0)')
        for e in range(8):
            a(f'v_add_f32 {vr(D+e)}, {vr(D+e)}, {vr(D+8+e)}'); a(f'v_add_f32 {vr(D+16+e)}, {vr(D+16+e)}, {vr(D+24+e)}')
        for e in range(8): a(f'v_add_f32 {vr(D+e)}, {vr(D+e)}, {vr(D+16+e)}')
        for k in range(4): a(f'v_cvt_pk_bf16_f32 {vr(QB+4*b+k)}, {vr(D+2*k)}, {vr(D+2*k+1)}')
    a(f'v_bfe_u32 {vr(t0)}, {vr(vLane)}, 2, 2'); a(f'v_mul_u32_u24 {vr(t0)}, {8 * SQ_}, {vr(t0)}')
    a(f'v_lshl_add_u32 {vr(t0)}, {vr(vG)}, 5, {vr(t0)}')
    a(f'v_and_b32 {vr(t1)}, 1, {vr(vLane)}'); a(f'v_lshl_add_u32 {vr(t0)}, {vr(t1)}, 4, {vr(t0)}')
    a(f'v_bfe_u32 {vr(t2)}, {vr(vLane)}, 1, 1'); a(f'v_lshl_add_u32 {vr(t0)}, {vr(t2)}, 7, {vr(t0)}')
    for hf in range(2):
        stamp(4 + hf)
        for u in range(16):
            vm.wait(('u', 16 * hf + u))
            for k in range(4):
                for b in range(4):
                    c = '0' if k == 0 else vr(T + b)
                    a(f'v_dot2_f32_bf16 {vr(T+b)}, {vr(UK+64*hf+4*u+k)}, {vr(QB+4*b+k)}, {c}')
            reduce4(T, XX, U + u)
        for k in range(8): a(f'v_cvt_pk_bf16_f32 {vr(D+k)}, {vr(U+2*k)}, {vr(U+2*k+1)}')
        a(f'v_cmp_eq_u32 vcc, 1, {vr(t1)}')
        for k in range(4): a(f'v_cndmask_b32 {vr(E8+4*hf+k)}, {vr(D+k)}, {vr(D+4+k)}, vcc')
    a(f'v_cmp_eq_u32 vcc, 1, {vr(t2)}')
    for k in range(4): a(f'v_cndmask_b32 {vr(E8+k)}, {vr(E8+k)}, {vr(E8+4+k)}, vcc')
    for k in range(4): a(f'v_min_u32 {vr(E8+k)}, -2, {vr(E8+k)}')
    vm.wait('c0')
    ensure(C0, C0N, vC0)
    a(f's_lshl_b32 s6, s{sH}, 10'); a(f's_lshl_b32 s7, s{sW}, 8'); a('s_add_u32 s6, s6, s7'); a(f's_add_u32 s6, s6, {QABS}')
    if cfg.cell: a(f's_lshr_b32 s7, s{sH}, 2'); a(f's_mul_i32 s7, s7, {SQ_ - 4096}'); a('s_add_u32 s6, s6, s7')
    vm.issue(f'buffer_store_dwordx4 {vr(E8,4)}, {vr(t0)}, {srd(S_WS)}, s6 offen sc1')
    if cfg.flg & 2: signal(C2, t1); vm.done = len(vm.q)
    stamp(1)
    if cfg.cthr: vm.limit = cfg.cthr
    if cfg.dsk2 & 32: a(f's_mov_b32 s{S_K+2}, 0'); a(f's_mov_b32 s{S_WO+2}, 0')
    if cfg.ctl: vm.limit = cfg.cuv
    while nd[0] < 36 and not cfg.ctl: wo_dma()
    a(f'v_lshlrev_b32 {vr(vUoff)}, 18, {vr(vG)}'); a(f'v_lshl_add_u32 {vr(vUoff)}, {vr(vI)}, 4, {vr(vUoff)}')
    for j in range(32):
        a(f's_mov_b32 s6, {j*8192}')
        vm.issue(f'buffer_load_dwordx4 {vr(UK+4*j,4)}, {vr(vUoff)}, {srd(S_K)}, s6 offen {fl}', 'uv')
    sMon, sIt = 14, 15
    if cfg.ctl:
        assert cfg.cpre == 0 and 36 % cfg.cdn == 0
        mon = Mon(PA)
        a(f's_and_b32 s6, s{sH}, 3'); a(f's_lshl_b32 s6, s6, 2'); a(f's_add_u32 s{sMon}, s6, s{sW}')
        Ls = lab('nomon')
        a(f's_cmp_lg_u32 s{sMon}, 13'); a(f's_cbranch_scc1 {Ls}'); mon.init(vLane, sBeta); a(f'{Ls}:')
        a(f's_mov_b32 s{sIt}, {36 // cfg.cdn}')
        a('C_dma:')
        Ls, L2 = lab('nomon'), lab('nomon')
        a(f's_cmp_lg_u32 s{sMon}, 13'); a(f's_cbranch_scc1 {Ls}'); mon.loads(); a(f'{Ls}:')
        a(f's_mov_b32 m0, s{sM0}')
        for k in range(cfg.cdn): a(f'buffer_load_dwordx4 {vr(vL16)}, {srd(S_WO)}, s{sM0} offen offset:{1024*k} {fl} lds')
        a(f's_waitcnt vmcnt({cfg.cdn})')
        a(f's_cbranch_scc1 {L2}'); mon.step(); a(f'{L2}:')
        a(f's_add_u32 s{sM0}, s{sM0}, {1024*cfg.cdn}')
        a(f's_sub_u32 s{sIt}, s{sIt}, 1'); a(f's_cmp_lg_u32 s{sIt}, 0'); a('s_cbranch_scc1 C_dma')
        a('s_waitcnt vmcnt(0)')
    else: vm.wait('wo')
    flag_init()
    a('s_waitcnt lgkmcnt(0)'); a('s_barrier')
    wo_frag_reads(4, vT)
    stamp(2)
    ST = T; Mx = T + 2; Lx = T + 3; AF = X0; CX = QB; sF = 26
    a(f'v_and_b32 {vr(t1)}, {NCH-1}, {vr(vLane)}'); a(f'v_mul_u32_u24 {vr(t1)}, {cfg.pstt or 8}, {vr(t1)}')
    a(f's_lshl_b32 s6, s{sH}, {3 if cfg.pstt else 8}'); a(f's_mul_i32 s7, s{sW}, {(cfg.pstt or 8) * NCH}'); a('s_add_u32 s6, s6, s7'); a(f's_add_u32 s{sIt}, s6, {PSTAT}')
    a(f's_mov_b32 s7, {cfg.spin_max}')
    a('P_poll:')
    if cfg.ctl:
        Ls = lab('nomon')
        a(f's_cmp_lg_u32 s{sMon}, 13'); a(f's_cbranch_scc1 {Ls}'); mon.loads(); a(f'{Ls}:')
    a(f'buffer_load_dwordx2 {vr(ST,2)}, {vr(t1)}, {srd(S_WS)}, s{sIt} offen sc1')
    a('s_waitcnt vmcnt(0)')
    a(f'v_max_u32 {vr(Mx)}, {vr(ST)}, {vr(ST+1)}'); a(f'v_cmp_eq_u32 vcc, -1, {vr(Mx)}')
    a('s_cbranch_vccz P_ok')
    if cfg.ctl:
        Ls, L2 = lab('nomon'), lab('nomon')
        a(f's_cbranch_scc1 {Ls}'); mon.step(); a(f's_branch {L2}'); a(f'{Ls}:')
    a(f's_sleep {cfg.psleep}')
    if cfg.ctl: a(f'{L2}:')
    a('s_sub_u32 s7, s7, 1'); a('s_cmp_lg_u32 s7, 0'); a('s_cbranch_scc1 P_poll')
    a('P_ok:')
    for _ in range(cfg.pdel): a('s_sleep 64')
    stamp(6)
    vm = VM(a)
    PW = {0: 1 << 15 + LC, 5: 1 << 20}.get(cfg.psx, 1 << 19)
    PB3 = {0: [4096 * NCH << i for i in range(3)], 1: [1 << 16, 1 << 17, 1 << 18], 2: [3 << 15, 1 << 17, 1 << 18], 3: [1 << 15, 1 << 16, 1 << 18],
           4: [1 << 15, 1 << 16, 3 << 17], 5: [1 << 17, 1 << 18, 1 << 19]}[cfg.psx]
    if cfg.cell: PW = 8 * cfg.cell; PB3 = [cfg.cell << i for i in range(3)]
    def pk(k): return sum(PB3[i] for i in range(3) if k >> i & 1)
    a(f's_lshr_b32 s6, s{sH}, 3'); a(f's_mul_i32 s6, s6, {PW}')
    for i in range(3):
        a(f's_bitcmp1_b32 s{sH}, {i}'); a(f's_cselect_b32 s7, {PB3[i]}, 0'); a('s_add_u32 s6, s6, s7')
    a(f's_lshl_b32 s7, s{sW}, {10+LC}'); a('s_add_u32 s6, s6, s7'); a(f's_add_u32 s6, s6, {OOB if cfg.dsk2 & 2 else PART}')
    for ch in range(NCH):
        if ch == 4: a('s_add_u32 s6, s6, 4096')
        vm.issue(f'buffer_load_dwordx4 {vr(AF+4*ch,4)}, {vr(vL16)}, {srd(S_WS)}, s6 offen offset:{1024*(ch&3)} {cfg.pl2}', ('a', ch))
    a(f'v_mov_b32 {vr(Mx)}, {vr(ST)}')
    for sh in RORS: a(f'v_max_f32_dpp {vr(Mx)}, {vr(Mx)}, {vr(Mx)} row_ror:{sh} {DPPF}')
    a(f'v_sub_f32 {vr(ST)}, {vr(ST)}, {vr(Mx)}'); a(f'v_exp_f32 {vr(ST)}, {vr(ST)}')
    a(f'v_mul_f32 {vr(Lx)}, {vr(ST)}, {vr(ST+1)}')
    for sh in RORS: a(f'v_add_f32_dpp {vr(Lx)}, {vr(Lx)}, {vr(Lx)} row_ror:{sh} {DPPF}')
    a(f'v_rcp_f32 {vr(Lx)}, {vr(Lx)}'); a(f'v_mul_f32 {vr(ST)}, {vr(ST)}, {vr(Lx)}')
    for ch in range(NCH): a(f'v_readlane_b32 s{sF+ch}, {vr(ST)}, {ch}')
    a(f's_mul_i32 s6, s{sW}, {XS}'); a(f's_add_u32 s6, s6, {XB}'); a(f'v_add_u32 {vr(t0)}, s6, {vr(vL16)}')
    a(f'v_lshrrev_b32 {vr(t1)}, 3, {vr(vI)}'); a(f'v_mul_u32_u24 {vr(t1)}, {XS}, {vr(t1)}'); a(f'v_lshl_add_u32 {vr(t1)}, {vr(vG)}, 6, {vr(t1)}')
    a(f's_lshl_b32 s6, s{sW}, 8'); a(f's_add_u32 s6, s6, {XB}'); a(f'v_add_u32 {vr(t1)}, s6, {vr(t1)}')
    for ch in range(NCH):
        vm.wait(('a', ch))
        for d in range(4):
            a(f'v_lshlrev_b32 {vr(E8+2*d)}, 16, {vr(AF+4*ch+d)}'); a(f'v_and_b32 {vr(E8+2*d+1)}, 0xffff0000, {vr(AF+4*ch+d)}')
        for e in range(8):
            if ch == 0: a(f'v_mul_f32 {vr(CX+e)}, s{sF}, {vr(E8+e)}')
            else: a(f'v_fma_f32 {vr(CX+e)}, {vr(E8+e)}, s{sF+ch}, {vr(CX+e)}')
    for d in range(4): a(f'v_cvt_pk_bf16_f32 {vr(CX+8+d)}, {vr(CX+2*d)}, {vr(CX+2*d+1)}')
    a(f'ds_write_b128 {vr(t0)}, {vr(CX+8,4)}')
    a('s_waitcnt lgkmcnt(0)'); a('s_barrier')
    for k in range(4):
        a(f'ds_read_b128 {vr(X0+4*k,4)}, {vr(t1)} offset:{16*k}'); a(f'ds_read_b128 {vr(X1+4*k,4)}, {vr(t1)} offset:{2*XS+16*k}')
    a(f'v_lshrrev_b32 {vr(t0)}, 5, {vr(vLane)}'); a(f'v_mul_u32_u24 {vr(t0)}, {4*OS}, {vr(t0)}'); a(f'v_lshl_add_u32 {vr(t0)}, {vr(vI)}, 4, {vr(t0)}')
    a(f'v_and_b32 {vr(t2)}, 1, {vr(vG)}'); a(f'v_lshl_add_u32 {vr(t0)}, {vr(t2)}, 3, {vr(t0)}')
    a(f's_mul_i32 s6, s{sW}, {OS}'); a(f's_add_u32 s6, s6, {OT}'); a(f'v_add_u32 {vr(t0)}, s6, {vr(t0)}')
    a(f'v_mul_u32_u24 {vr(t2)}, {OS}, {vr(vI)}'); a(f'v_lshl_add_u32 {vr(t2)}, {vr(vG)}, 4, {vr(t2)}'); a(f'v_add_u32 {vr(t2)}, {OT}, {vr(t2)}')
    a('s_waitcnt lgkmcnt(0)')
    for j in range(32): wunit_mfma(j, [X0, X1], [AC0, AC1], SEL, PA, UK)
    for s_, AC in enumerate((AC0, AC1)):
        a(f'v_cvt_pk_bf16_f32 {vr(E8+2*s_)}, {vr(AC)}, {vr(AC+1)}'); a(f'v_cvt_pk_bf16_f32 {vr(E8+2*s_+1)}, {vr(AC+2)}, {vr(AC+3)}')
        a(f'ds_write_b64 {vr(t0)}, {vr(E8+2*s_,2)} offset:{8*OS*s_}')
    a('s_waitcnt lgkmcnt(0)'); a('s_barrier')
    for ks in range(4): a(f'ds_read_b128 {vr(PA+4*ks,4)}, {vr(t2)} offset:{64*ks}')
    O = QB
    if cfg.y16:
        a(f'v_mul_u32_u24 {vr(t0)}, {32*1152}, {vr(vG)}'); a(f'v_lshl_add_u32 {vr(t0)}, {vr(vI)}, 4, {vr(t0)}')
        a(f's_mul_i32 s6, s{sH}, 1152'); a(f's_add_u32 s6, s6, {OOB if cfg.dsk2 & 4 else YB}'); a(f's_lshl_b32 s7, s{sW}, 5'); a(f'v_add_u32 {vr(t1)}, s7, {vr(t0)}')
        a(f's_lshl_b32 s7, s{sW}, 8'); a(f'v_add_u32 {vr(t0)}, s7, {vr(t0)}')
    else:
        a(f'v_mul_u32_u24 {vr(t0)}, {8 * SB}, {vr(vG)}')
        a(f'v_and_b32 {vr(t1)}, 3, {vr(vLane)}'); a(f'v_bfe_u32 {vr(t2)}, {vr(vLane)}, 2, 2')
        a(f'v_lshl_add_u32 {vr(t1)}, {vr(t1)}, 2, {vr(t2)}'); a(f'v_lshl_add_u32 {vr(t1)}, {vr(t1)}, 2, {vr(t0)}')
        a(f'v_lshl_add_u32 {vr(t0)}, {vr(vI)}, 4, {vr(t0)}')
        a(f's_mul_i32 s6, s{sH}, 2304'); a(f's_mul_i32 s7, s{sW}, 576'); a('s_add_u32 s6, s6, s7'); a(f's_add_u32 s6, s6, {OOB if cfg.dsk2 & 4 else YB}')
        if cfg.cell: a(f's_lshr_b32 s7, s{sH}, 2'); a(f's_mul_i32 s7, s7, {SB - 9216}'); a('s_add_u32 s6, s6, s7')
    a('s_waitcnt lgkmcnt(0)')
    for t in range(9):
        for ks in range(4):
            c = '0' if ks == 0 else vr(D + 4 * t, 4)
            a(f'v_mfma_f32_16x16x32_bf16 {vr(D+4*t,4)}, {vr(PA+4*ks,4)}, {ar(AW+4*(t*4+ks),4)}, {c}')
    for t in range(9):
        a(f'v_add_f32 {vr(D+4*t)}, {vr(D+4*t)}, {vr(D+4*t+1)}'); a(f'v_add_f32 {vr(D+4*t+2)}, {vr(D+4*t+2)}, {vr(D+4*t+3)}')
        a(f'v_add_f32 {vr(O+t)}, {vr(D+4*t)}, {vr(D+4*t+2)}'); a(f'v_min_u32 {vr(O+t)}, -2, {vr(O+t)}')
    if cfg.y16:
        for d in range(4): a(f'v_cvt_pk_bf16_f32 {vr(O+d)}, {vr(O+2*d)}, {vr(O+2*d+1)}'); a(f'v_min_u32 {vr(O+d)}, -2, {vr(O+d)}')
        a(f'buffer_store_dwordx4 {vr(O,4)}, {vr(t0)}, {srd(S_WS)}, s6 offen sc1')
        tail16(O + 8, O + 12, t1, 's6', 0x00030003)
    else:
        a(f'buffer_store_dwordx4 {vr(O,4)}, {vr(t0)}, {srd(S_WS)}, s6 offen sc1')
        a(f'buffer_store_dwordx4 {vr(O+4,4)}, {vr(t0)}, {srd(S_WS)}, s6 offen offset:256 sc1')
        if cfg.t16:
            for e in range(1, 4): a(f'v_mov_b32_dpp {vr(O+8+e)}, {vr(O+8)} row_shl:{4*e} {DPPF}')
            a('s_mov_b32 exec_lo, 0x000f000f'); a('s_mov_b32 exec_hi, 0x000f000f')
            a(f'buffer_store_dwordx4 {vr(O+8,4)}, {vr(t1)}, {srd(S_WS)}, s6 offen offset:512 sc1')
            a('s_mov_b64 exec, -1')
        else: a(f'buffer_store_dword {vr(O+8)}, {vr(t1)}, {srd(S_WS)}, s6 offen offset:512 sc1')
    if cfg.flg & 1: signal(C1, t2)
    stamp(7)
    a('s_nop 1')
    a('s_branch B_final')
    NR = 64 // NCH; sDl, sRho = 80, 81
    CROW = 1088; CB = 64 * CROW
    QROW = 1056; SQ = 2 * CB
    PB = SQ + 16 * QROW; MX = PB + 4096; LS = MX + 512
    assert LS + 512 <= FLAG
    V = VAlloc(base)
    ACC = V(64, 4); S = V(8, 4); CF = V(64, 4); PF = V(16, 4); MXR = V(12, 4)
    mQ = V(2); mP = V(); lQ = V(2); aQ = V(2); aP = V(); vC = V(); PK = V(4, 2); Mx = V(2); tt = V()
    vA = V(2); vTr = V(2); vMw = V(); vMr = V(); vMp = V(); vPw = V(); vPr = V(); vQ = V(); vQw = V(); vCw = V(2)
    a('D_role:')
    if cfg.warm & 4: warm_code('', 'B_end', vLane, t0, t1, 2)
    a(f's_lshr_b32 s{sB2}, s{sH}, 3'); a(f's_lshr_b32 s{sDl}, s{sH}, {3-LC}'); a(f's_and_b32 s{sCh}, s{sDl}, {NCH-1}')
    a(f'v_xor_b32 {vr(vL16x)}, 32, {vr(vL16)}')
    for r in range(4): a(f'v_mov_b32 {vr(S+r)}, -1')
    karg_wait()
    mk_srd(S_WS, P_WS, None, WS_USED)
    a(f's_lshl_b32 s6, s{sB2}, 22'); mk_srd(S_K, P_CKV, 's6', 0 if cfg.dsk2 & 64 else 0x400000)
    def dpf():
        if not cfg.dpf: return
        NWV = 2 * NCH
        a(f'v_lshrrev_b32 {vr(t0)}, 3, {vr(vLane)}'); a(f'v_lshlrev_b32 {vr(t0)}, 13, {vr(t0)}')
        a(f'v_and_b32 {vr(t1)}, 7, {vr(vLane)}'); a(f'v_lshl_add_u32 {vr(t0)}, {vr(t1)}, 7, {vr(t0)}')
        a(f's_and_b32 s6, s{sDl}, {NWV//4-1}'); a('s_lshl_b32 s6, s6, 2'); a(f's_add_u32 s14, s6, s{sW}')
        a(f's_lshr_b32 s15, s{sH}, 2'); a('s_lshl_b32 s15, s15, 10')
        n = 0
        for bit, P, rows in ((2, P_BWQ, 576), (1, P_WUK, 512)):
            if not cfg.dpf & bit: continue
            mk_srd(S_U, P, None, rows * 8192)
            a(f's_mul_i32 s6, s14, {8*8192}'); a('s_add_u32 s6, s6, s15')
            for k in range(-(-rows // (8 * NWV))):
                a(f'buffer_load_dword {vr(CF+n)}, {vr(t0)}, {srd(S_U)}, s6 offen'); n += 1
                a(f's_add_u32 s6, s6, {8*NWV*8192}')
    L3, Lc = lab('clr3'), lab('clrd')
    a(f's_cmp_eq_u32 s{sW}, 3'); a(f's_cbranch_scc1 {L3}')
    if cfg.flg & 1: a(f's_cmp_eq_u32 s{sW}, 2'); a(f's_cbranch_scc1 {Lc}')
    a(f's_mul_i32 s6, s{sH}, {SA >> cfg.y16}'); a(f's_mul_i32 s7, s{sW}, {9216 >> cfg.y16}'); a('s_add_u32 s6, s6, s7'); a(f's_add_u32 s6, s6, {YA}')
    a(f's_mul_i32 s7, s{sH}, {SB >> cfg.y16}'); a(f's_add_u32 s7, s7, {YB}'); a(f's_cmp_eq_u32 s{sW}, 2'); a('s_cselect_b32 s6, s7, s6')
    for k in range(0 if cfg.dsk2 & 16 else 5 if cfg.y16 else 9):
        if k in (4, 8): a('s_add_u32 s6, s6, 4096')
        if cfg.y16 and k == 4: a('s_mov_b64 exec, 0xffffffff')
        a(f'buffer_store_dwordx4 {vr(S,4)}, {vr(vL16)}, {srd(S_WS)}, s6 offen offset:{1024*(k&3)} sc1')
    a('s_mov_b64 exec, -1')
    a(f's_branch {Lc}')
    a(f'{L3}:')
    a(f's_mul_i32 s6, s{sH}, {SQ_}'); a(f's_add_u32 s6, s6, {QABS}')
    for k in range(0 if cfg.flg & 2 else 4): a(f'buffer_store_dwordx4 {vr(S,4)}, {vr(vL16)}, {srd(S_WS)}, s6 offen offset:{1024*k} sc1')
    a('s_mov_b64 exec, 0xffff')
    a(f's_mul_i32 s6, s{sH}, {cfg.pstt or 256}'); a(f's_mul_i32 s7, s{sH}, {4 * cfg.astr}'); a(f's_add_u32 s7, s7, {AST}'); a(f's_add_u32 s6, s6, {PSTAT}')
    a(f'v_lshrrev_b32 {vr(t1)}, 2, {vr(vLane)}'); a(f'v_mul_u32_u24 {vr(t1)}, {cfg.astr - 64}, {vr(t1)}'); a(f'v_add_u32 {vr(t1)}, {vr(t1)}, {vr(vL16)}')
    a(f'buffer_store_dwordx4 {vr(S,4)}, {vr(vL16)}, {srd(S_WS)}, s6 offen sc1')
    a(f'buffer_store_dwordx4 {vr(S,4)}, {vr(t1)}, {srd(S_WS)}, s7 offen sc1')
    if cfg.dyn:
        a('s_mov_b64 exec, 3')
        a(f's_mul_i32 s6, s{sH}, {2 * cfg.psp}'); a(f's_add_u32 s6, s6, {PROG}')
        if cfg.pxs != 8 * cfg.psp: a(f's_lshr_b32 s7, s{sH}, 2'); a(f's_mul_i32 s7, s7, {cfg.pxs - 8 * cfg.psp}'); a('s_add_u32 s6, s6, s7')
        a(f'v_mul_u32_u24 {vr(t0)}, {cfg.psp}, {vr(vLane)}')
        a(f'buffer_store_dwordx4 {vr(S,4)}, {vr(t0)}, {srd(S_WS)}, s6 offen sc1')
        if cfg.mon or cfg.ctl:
            for _ in range(1 if cfg.msh else 2):
                a(f's_add_u32 s6, s6, {TFO if cfg.ctl else 0x4000}')
                a(f'buffer_store_dwordx4 {vr(S,4)}, {vr(t0)}, {srd(S_WS)}, s6 offen sc1')
    a('s_mov_b64 exec, -1')
    if cfg.msh:
        a(f's_mul_i32 s6, s{sH}, {cfg.gls}'); a(f's_add_u32 s6, s6, {PROG + 2 * TFO}')
        a(f'buffer_store_dwordx4 {vr(S,4)}, {vr(vL16)}, {srd(S_WS)}, s6 offen sc1')
    a(f'{Lc}:')
    mk_srd(S_DBG, P_DBG, None, 256); mk_srd(S_OUT, P_OUT, None, 9216)
    cw = cfg.cw2
    def coff(rho, k): return (64 * NCH * rho + (4 * NCH << cw) * (k >> cw) + (k & ((1 << cw) - 1))) * 1024
    vm = VM(a, 52)
    def c_dma(rho, k):
        a(f's_add_u32 m0, s{sM0}, {(rho&1)*CB + k*CROW}')
        a(f's_add_u32 s6, s{sSo}, {coff(rho, k)}')
        vm.issue(f'buffer_load_dwordx4 {vr(vL16x if k >= 8 else vL16)}, {srd(S_K)}, s6 offen {fl} lds', ('c', rho))
    def stg(rho): return 128 + 64 * (rho & 1)
    def c_reg(rho, k):
        a(f's_add_u32 s6, s{sSo}, {coff(rho, k)}')
        vm.issue(f'buffer_load_dwordx4 {ar(stg(rho)+4*k,4)}, {vr(vL16x if k >= 8 else vL16)}, {srd(S_K)}, s6 offen {fl}', ('c', rho))
    a(f's_mul_i32 s{sM0}, s{sW}, {16*CROW}')
    a(f's_lshl_b32 s{sSo}, s{sCh}, 2'); a(f's_add_u32 s{sSo}, s{sSo}, s{sW}'); a(f's_lshl_b32 s{sSo}, s{sSo}, {10 + cw}')
    def sig():
        a(f'v_mov_b32 {vr(t2)}, 1'); a('s_mov_b64 exec, 1')
        a(f'buffer_atomic_add {vr(t2)}, off, {srd(S_DBG)}, 0 offset:{C0}')
        a('s_mov_b64 exec, -1')
    if NCH == 4:
        a(f's_bitcmp0_b32 s{sH}, 0'); a('s_cbranch_scc1 D_act')
        a('s_waitcnt vmcnt(0)'); sig()
        dpf()
        a('s_sleep 127'); a('s_sleep 127')
        a(f'buffer_load_dword {vr(vC0)}, off, {srd(S_DBG)}, 0 offset:{C0} sc1')
        a('s_waitcnt vmcnt(0)')
        ensure(C0, C0N, vC0)
        flag_init()
        a('s_waitcnt lgkmcnt(0)'); a('s_barrier')
        a('s_branch B_final')
        a('D_act:')
    for k in range(8): c_dma(0, k)
    a('s_waitcnt vmcnt(8)')
    if cfg.c0x == 2: a('s_barrier'); a(f's_cmp_lg_u32 s{sW}, 0'); a('s_cbranch_scc1 D_nosig')
    if not cfg.c0x & 1: sig()
    if cfg.c0x == 2: a('D_nosig:')
    if NCH == 8: dpf()
    if cfg.dthr: vm.limit = cfg.dthr
    for k in range(8, 16): c_dma(0, k)
    for k in range(16): c_dma(1, k)
    for rho in (2, 3):
        for k in range(16 if rho == 2 or not cfg.dloop else 8): c_reg(rho, k)
    vm.limit = 52
    if cfg.dskip:
        a(f's_and_b32 s6, s2, 7'); a(f's_mov_b32 s7, {cfg.dskip}'); a('s_bitcmp1_b32 s7, s6'); a(f's_cselect_b32 s{S_K+2}, 0, s{S_K+2}')
    vm.issue(f'buffer_load_dword {vr(vC0)}, off, {srd(S_DBG)}, 0 offset:{C0} sc1', 'c0')
    stamp(1)
    sQ = 14
    a(f's_lshl_b32 s{sQ}, s{sB2}, 3'); a(f's_add_u32 s{sQ}, s{sQ}, s{sW}'); a(f's_mul_i32 s{sQ}, s{sQ}, {SQ_}'); a(f's_add_u32 s{sQ}, s{sQ}, {QABS}')
    a(f's_add_u32 s{sQ+1}, s{sQ}, {4 * SQ_}')
    def q_loads():
        for nt in range(2):
            for k in range(4):
                a(f'buffer_load_dwordx4 {vr(CF+16*nt+4*k,4)}, {vr(vL16)}, {srd(S_WS)}, s{sQ+nt} offen offset:{1024*k} sc1')
    a(f's_lshl_b32 s6, s{sW}, 4'); a(f'v_add_u32 {vr(t0)}, s6, {vr(vI)}'); a(f'v_mul_u32_u24 {vr(t0)}, {CROW}, {vr(t0)}')
    a(f'v_lshrrev_b32 {vr(t1)}, 3, {vr(vI)}'); a(f'v_lshlrev_b32 {vr(t1)}, 1, {vr(t1)}'); a(f'v_xor_b32 {vr(t1)}, {vr(t1)}, {vr(vG)}')
    a(f'v_lshl_add_u32 {vr(vA)}, {vr(t1)}, 4, {vr(t0)}'); a(f'v_add_u32 {vr(vA+1)}, {CB}, {vr(vA)}')
    a(f'v_lshrrev_b32 {vr(t0)}, 5, {vr(vLane)}'); a(f'v_lshlrev_b32 {vr(t0)}, 3, {vr(t0)}')
    a(f'v_bfe_u32 {vr(t1)}, {vr(vLane)}, 2, 2'); a(f'v_add_u32 {vr(t0)}, {vr(t0)}, {vr(t1)}'); a(f'v_mul_u32_u24 {vr(t0)}, {CROW}, {vr(t0)}')
    a(f'v_lshrrev_b32 {vr(t1)}, 1, {vr(vG)}'); a(f'v_xor_b32 {vr(t1)}, {vr(t1)}, {vr(vG)}')
    a(f'v_and_b32 {vr(t1)}, 1, {vr(t1)}'); a(f'v_lshl_add_u32 {vr(t0)}, {vr(t1)}, 5, {vr(t0)}')
    a(f'v_and_b32 {vr(t1)}, 3, {vr(vLane)}'); a(f'v_lshl_add_u32 {vr(t0)}, {vr(t1)}, 3, {vr(t0)}')
    a(f's_lshl_b32 s6, s{sW}, 8'); a(f'v_add_u32 {vr(vTr)}, s6, {vr(t0)}'); a(f'v_add_u32 {vr(vTr+1)}, {CB}, {vr(vTr)}')
    a(f'v_lshlrev_b32 {vr(vMr)}, 4, {vr(vI)}'); a(f'v_add_u32 {vr(vMr)}, {MX}, {vr(vMr)}')
    a(f's_lshl_b32 s6, s{sW}, 2'); a(f'v_add_u32 {vr(vMw)}, s6, {vr(vMr)}')
    a(f'v_and_b32 {vr(t0)}, 31, {vr(vLane)}'); a(f'v_lshlrev_b32 {vr(vMp)}, 4, {vr(t0)}'); a(f'v_add_u32 {vr(vMp)}, {MX}, {vr(vMp)}')
    a(f'v_lshlrev_b32 {vr(vPr)}, 5, {vr(t0)}'); a(f'v_lshrrev_b32 {vr(t1)}, 5, {vr(vLane)}')
    a(f'v_lshl_add_u32 {vr(vPr)}, {vr(t1)}, 4, {vr(vPr)}'); a(f'v_add_u32 {vr(vPr)}, {PB}, {vr(vPr)}')
    a(f'v_lshlrev_b32 {vr(vPw)}, 5, {vr(vI)}'); a(f'v_lshl_add_u32 {vr(vPw)}, {vr(vG)}, 3, {vr(vPw)}')
    a(f's_lshl_b32 s6, s{sW}, 10'); a(f's_add_u32 s6, s6, {PB}'); a(f'v_add_u32 {vr(vPw)}, s6, {vr(vPw)}')
    a(f'v_mul_u32_u24 {vr(vQ)}, {QROW}, {vr(vI)}'); a(f'v_lshl_add_u32 {vr(vQ)}, {vr(vG)}, 4, {vr(vQ)}'); a(f'v_add_u32 {vr(vQ)}, {SQ}, {vr(vQ)}')
    a(f's_mul_i32 s6, s{sW}, {4*QROW}'); a(f's_add_u32 s6, s6, {SQ}'); a(f'v_add_u32 {vr(vQw)}, s6, {vr(vL16)}')
    a(f'v_add_u32 {vr(vCw)}, s{sM0}, {vr(vL16)}'); a(f'v_add_u32 {vr(vCw+1)}, {CB}, {vr(vCw)}')
    a(f'v_mov_b32 {vr(vC)}, {f2u(SCALE):#x}')
    for r in (mQ, mQ + 1, mP): a(f'v_mov_b32 {vr(r)}, 0xff800000')
    a(f'v_mov_b32 {vr(lQ)}, 0'); a(f'v_mov_b32 {vr(lQ+1)}, 0')
    vm.wait('c0')
    ensure(C0, C0N, vC0)
    stamp(2)
    if cfg.flg & 2: poll(C2, 32, tt)
    a(f's_mov_b32 s7, {cfg.spin_max}')
    if cfg.qslow and not cfg.flg & 2:
        a(f'v_and_b32 {vr(t0)}, 3, {vr(vLane)}'); a(f'v_bfe_u32 {vr(t1)}, {vr(vLane)}, 2, 1'); a(f'v_mul_u32_u24 {vr(t1)}, {4 * SQ_}, {vr(t1)}')
        a(f'v_lshl_add_u32 {vr(t0)}, {vr(t0)}, 10, {vr(t1)}')
        a('Q_slow:')
        a(f'buffer_load_dword {vr(tt)}, {vr(t0)}, {srd(S_WS)}, s{sQ} offen offset:768 sc1')
        a('s_waitcnt vmcnt(0)')
        a(f'v_cmp_eq_u32 vcc, -1, {vr(tt)}')
        a('s_cbranch_vccz Q_chk')
        a(f's_sleep {cfg.qslow}')
        a('s_sub_u32 s7, s7, 1'); a('s_cmp_lg_u32 s7, 1'); a('s_cbranch_scc1 Q_slow')
    a('Q_chk:')
    q_loads()
    a('s_waitcnt vmcnt(0)')
    umax_tree(tt, range(CF, CF + 32))
    a(f'v_cmp_eq_u32 vcc, -1, {vr(tt)}')
    a('s_cbranch_vccz Q_ok')
    a(f's_sleep {cfg.qsleep}')
    a('s_sub_u32 s7, s7, 1'); a('s_cmp_lg_u32 s7, 0'); a('s_cbranch_scc1 Q_chk')
    a('Q_ok:')
    stamp(3)
    for nt in range(2):
        if nt: a('s_barrier')
        for k in range(4): a(f'ds_write_b128 {vr(vQw)}, {vr(CF+16*nt+4*k,4)} offset:{QROW*k}')
        a('s_waitcnt lgkmcnt(0)'); a('s_barrier')
        for ks in range(16): a(f'ds_read_b128 {ar(64*nt+4*ks,4)}, {vr(vQ)} offset:{64*ks}')
        a('s_waitcnt lgkmcnt(0)')
    pend = []
    def more(n=1):
        for _ in range(n):
            if pend: c_reg(*pend.pop(0))
    a(f's_mov_b32 s{sRho}, {NR//2}')
    for rho in range(3 if cfg.dloop else NR):
        par = rho & 1
        if cfg.dloop and rho == 1:
            a('D_loop:'); pend = [(3, k) for k in range(8, 16)]
        for ks in range(16):
            a(f'ds_read_b128 {vr(CF+4*ks,4)}, {vr(vA+par)} offset:{64*ks}')
        for ks in range(16):
            a(f's_waitcnt lgkmcnt({15-ks})')
            for nt in range(2):
                c = '0' if ks == 0 else vr(S + 4 * nt, 4)
                a(f'v_mfma_f32_16x16x32_bf16 {vr(S+4*nt,4)}, {vr(CF+4*ks,4)}, {ar(64*nt+4*ks,4)}, {c}')
            if ks & 1: more()
        assert not pend
        for nt in range(2):
            a(f'v_max_f32 {vr(Mx+nt)}, {vr(S+4*nt)}, {vr(S+4*nt+1)}')
            a(f'v_max3_f32 {vr(Mx+nt)}, {vr(Mx+nt)}, {vr(S+4*nt+2)}, {vr(S+4*nt+3)}')
            allred_rows(Mx + nt, tt, 'v_max_f32')
            a(f'ds_write_b32 {vr(vMw)}, {vr(Mx+nt)} offset:{256*nt}')
        a('s_waitcnt lgkmcnt(0)'); a('s_barrier')
        a(f'ds_read_b128 {vr(MXR,4)}, {vr(vMr)}'); a(f'ds_read_b128 {vr(MXR+4,4)}, {vr(vMr)} offset:256'); a(f'ds_read_b128 {vr(MXR+8,4)}, {vr(vMp)}')
        if 1 <= rho <= NR - 2:
            if cfg.dloop: a('s_waitcnt vmcnt(16)'); vm.reset()
            else: vm.wait(('c', rho + 1))
            for k in range(16): a(f'ds_write_b128 {vr(vCw+1-par)}, {ar(stg(rho+1)+4*k,4)} offset:{k*CROW}')
            a('s_waitcnt lgkmcnt(15)')
            if rho + 3 < NR: pend = [(rho + 3, k) for k in range(16)]
        else:
            a('s_waitcnt lgkmcnt(0)')
        for i, (m, al) in enumerate(((mQ, aQ), (mQ + 1, aQ + 1), (mP, aP))):
            R = MXR + 4 * i
            a(f'v_max_f32 {vr(R)}, {vr(R)}, {vr(R+1)}'); a(f'v_max3_f32 {vr(R)}, {vr(R)}, {vr(R+2)}, {vr(R+3)}')
            a(f'v_mul_f32 {vr(R)}, {vr(R)}, {vr(vC)}'); a(f'v_max_f32 {vr(R)}, {vr(R)}, {vr(m)}')
            a(f'v_sub_f32 {vr(al)}, {vr(m)}, {vr(R)}'); a(f'v_exp_f32 {vr(al)}, {vr(al)}'); a(f'v_mov_b32 {vr(m)}, {vr(R)}')
        for nt in range(2):
            for r in range(4):
                a(f'v_fma_f32 {vr(S+4*nt+r)}, {vr(S+4*nt+r)}, {vr(vC)}, -{vr(mQ+nt)}')
            for r in range(4): a(f'v_exp_f32 {vr(S+4*nt+r)}, {vr(S+4*nt+r)}')
            a(f'v_mul_f32 {vr(lQ+nt)}, {vr(lQ+nt)}, {vr(aQ+nt)}')
            a(f'v_cvt_pk_bf16_f32 {vr(PK+2*nt)}, {vr(S+4*nt)}, {vr(S+4*nt+1)}'); a(f'v_cvt_pk_bf16_f32 {vr(PK+2*nt+1)}, {vr(S+4*nt+2)}, {vr(S+4*nt+3)}')
            a(f'ds_write_b64 {vr(vPw)}, {vr(PK+2*nt,2)} offset:{512*nt}')
            for r in range(4): a(f'v_add_f32 {vr(lQ+nt)}, {vr(lQ+nt)}, {vr(S+4*nt+r)}')
        if rho > 0:
            for r in range(64): a(f'v_mul_f32 {vr(ACC+r)}, {vr(ACC+r)}, {vr(aP)}')
        a('s_waitcnt lgkmcnt(0)'); a('s_barrier')
        for ks in range(4): a(f'ds_read_b128 {vr(PF+4*ks,4)}, {vr(vPr)} offset:{1024*ks}')
        for ks in range(4):
            for ct in range(4):
                for sec in range(2):
                    a(f'ds_read_b64_tr_b16 {vr(CF+16*ks+4*ct+2*sec,2)}, {vr(vTr+par)} offset:{(16*ks+4*sec)*CROW + 64*ct}')
        for ks in range(4):
            a(f's_waitcnt lgkmcnt({min(15, 8*(3-ks))})')
            for ct in range(4):
                c = '0' if (rho == 0 and ks == 0) else vr(ACC + 16 * ct, 16)
                a(f'v_mfma_f32_32x32x16_bf16 {vr(ACC+16*ct,16)}, {vr(CF+16*ks+4*ct,4)}, {vr(PF+4*ks,4)}, {c}')
                if ct & 1: more()
        if cfg.dloop and rho == 1:
            a(f's_sub_u32 s{sRho}, s{sRho}, 1'); a(f's_cmp_eq_u32 s{sRho}, 0'); a('s_cbranch_scc1 D_done')
        if cfg.dloop and rho == 2:
            a(f's_add_u32 s{sSo}, s{sSo}, {coff(2, 0)}'); a('s_branch D_loop'); a('D_done:'); a('s_nop 7'); a('s_nop 7')
    stamp(4)
    for nt in range(2):
        allred_rows(lQ + nt, tt, 'v_add_f32')
        a(f'ds_write_b32 {vr(vMw)}, {vr(lQ+nt)} offset:{512+256*nt}')
    TROW = 1040
    a(f'v_and_b32 {vr(t0)}, 31, {vr(vLane)}'); a(f'v_mul_u32_u24 {vr(t0)}, {TROW}, {vr(t0)}')
    a(f'v_lshrrev_b32 {vr(t1)}, 5, {vr(vLane)}'); a(f'v_lshl_add_u32 {vr(t0)}, {vr(t1)}, 3, {vr(t0)}')
    a(f's_lshl_b32 s6, s{sW}, 8'); a(f'v_add_u32 {vr(t0)}, s6, {vr(t0)}')
    for ct in range(4):
        for rq in range(4):
            R = ACC + 16 * ct + 4 * rq; P = CF + 2 * (4 * ct + rq)
            a(f'v_cvt_pk_bf16_f32 {vr(P)}, {vr(R)}, {vr(R+1)}'); a(f'v_cvt_pk_bf16_f32 {vr(P+1)}, {vr(R+2)}, {vr(R+3)}')
            a(f'ds_write_b64 {vr(t0)}, {vr(P,2)} offset:{64*ct+16*rq}')
    flag_init()
    a('s_waitcnt lgkmcnt(0)'); a('s_barrier')
    a(f's_mul_i32 s6, s{sW}, {8*TROW}'); a(f'v_add_u32 {vr(t0)}, s6, {vr(vL16)}')
    for k in range(8): a(f'ds_read_b128 {vr(CF+32+4*k,4)}, {vr(t0)} offset:{k*TROW}')
    a(f'ds_read_b128 {vr(MXR,4)}, {vr(vMp)} offset:512')
    a(f's_mul_i32 s7, s{sW}, {PW}'); a(f's_lshl_b32 s6, s{sDl}, 10'); a('s_add_u32 s7, s7, s6'); a(f's_add_u32 s7, s7, {OOB if cfg.dsk2 & 1 else PART}')
    for k in range(8):
        a(f's_waitcnt lgkmcnt({8-k})')
        a(f's_add_u32 s6, s7, {pk(k)}')
        a(f'buffer_store_dwordx4 {vr(CF+32+4*k,4)}, {vr(vL16)}, {srd(S_WS)}, s6 offen {cfg.pst_flags}')
    a('s_waitcnt lgkmcnt(0)')
    a(f'v_add_f32 {vr(MXR)}, {vr(MXR)}, {vr(MXR+1)}'); a(f'v_add_f32 {vr(MXR+2)}, {vr(MXR+2)}, {vr(MXR+3)}')
    a(f'v_add_f32 {vr(PK+1)}, {vr(MXR)}, {vr(MXR+2)}'); a(f'v_mov_b32 {vr(PK)}, {vr(mP)}')
    a(f'v_lshlrev_b32 {vr(t0)}, {3 if cfg.pstt else 8}, {vr(vLane)}')
    a(f's_mul_i32 s6, s{sDl}, {cfg.pstt or 8}'); a(f's_add_u32 s6, s6, {PSTAT}')
    a(f'v_min_u32 {vr(PK)}, -2, {vr(PK)}'); a(f'v_min_u32 {vr(PK+1)}, -2, {vr(PK+1)}')
    a('s_waitcnt vmcnt(0)'); a('s_barrier')
    Ls = lab('nops')
    a(f's_cmp_lg_u32 s{sW}, 0'); a(f's_cbranch_scc1 {Ls}')
    a('s_mov_b64 exec, 0xffffffff')
    a(f'buffer_store_dwordx2 {vr(PK,2)}, {vr(t0)}, {srd(S_WS)}, s6 offen sc1')
    a('s_mov_b64 exec, -1')
    a(f'{Ls}:')
    stamp(5)
    gen_final(vLane, vG, t0, t1, vC0, sHalf, sBeta, base)

def gen_final(vLane, vG, t0, t1, vC0, sHalf, sBeta, base):
    a('B_final:')
    if cfg.dsk2 & 8: a('s_branch B_end')
    V = VAlloc(base)
    Y = V(32, 4); AS = Y; vYo = V(); vOo = V(); E = V()
    sTau, sTb, sSg, sY, sDone, sO = 14, 15, 80, 81, 82, 83
    if cfg.dyn:
        a(f's_cmp_eq_u32 s{sW}, 3'); a('s_cbranch_scc1 H_start')
        a(f's_mov_b32 s{sTau}, s{sBeta}'); a(f's_lshr_b32 s7, s{sW}, 1')
        Ls = lab('w1')
        a(f's_cmp_lg_u32 s{sW}, 1'); a(f's_cbranch_scc1 {Ls}')
        a(f's_and_b32 s7, s{sBeta}, 7')
        if cfg.mon: a('s_cmp_eq_u32 s7, 7'); a('s_cbranch_scc1 H_start')
        if cfg.ctl: a('s_cmp_eq_u32 s7, 7'); a('s_cbranch_scc1 M2_start')
        a('s_cmp_ge_u32 s7, 2'); a('s_cbranch_scc1 B_end')
        a(f's_lshr_b32 s{sTau}, s{sBeta}, 3'); a(f's_add_u32 s{sTau}, s{sTau}, 64')
        a(f'{Ls}:')
    else:
        a(f's_and_b32 s6, s{sW}, 1'); a('s_lshl_b32 s6, s6, 6'); a(f's_add_u32 s{sTau}, s{sBeta}, s6')
        a(f's_cmp_ge_u32 s{sTau}, 72'); a('s_cbranch_scc1 B_end')
        a(f's_lshr_b32 s7, s{sW}, 1')
    a(f's_mul_i32 s{sTb}, s{sTau}, 57'); a(f's_lshr_b32 s{sTb}, s{sTb}, 10')
    a(f's_mul_i32 s6, s{sTb}, 18'); a(f's_sub_u32 s{sSg}, s{sTau}, s6')
    if cfg.y16:
        assert cfg.cd and not cfg.cell
        U = V(16, 4)
        a(f's_mul_i32 s{sY}, s{sTb}, {64*1152}'); a(f's_lshr_b32 s{sY}, s{sY}, s7')
        a(f's_lshl_b32 s6, s{sSg}, 6'); a(f's_add_u32 s{sY}, s{sY}, s6')
        a(f's_mul_i32 s6, s7, {YB - YA}'); a(f's_add_u32 s{sY}, s{sY}, s6'); a(f's_add_u32 s{sY}, s{sY}, {YA}')
        a(f'v_lshrrev_b32 {vr(t0)}, 2, {vr(vLane)}'); a(f'v_and_b32 {vr(t1)}, 3, {vr(vLane)}')
        a(f'v_mul_u32_u24 {vr(vYo)}, 1152, {vr(t0)}'); a(f'v_lshl_add_u32 {vr(vYo)}, {vr(t1)}, 4, {vr(vYo)}')
        sh = 2 if cfg.rmf else 3
        a(f'v_bfe_u32 {vr(t0)}, {vr(vLane)}, {sh}, 2'); a(f'v_lshl_add_u32 {vr(t0)}, {vr(t0)}, 2, {vr(t1)}')
        a(f'v_lshrrev_b32 {vr(E)}, {sh+2}, {vr(vLane)}'); a(f'v_lshl_add_u32 {vr(vOo)}, {vr(E)}, 6, {vr(t0)}')
        a(f'v_lshrrev_b32 {vr(t0)}, 1, {vr(t1)}'); a(f'v_mul_u32_u24 {vr(t0)}, 142, {vr(t0)}'); a(f'v_add_u32 {vr(t0)}, {vr(t0)}, {vr(t1)}')
        a(f'v_lshrrev_b32 {vr(E)}, {sh}, {vr(vLane)}'); a(f'v_lshl_add_u32 {vr(t0)}, {vr(E)}, 1, {vr(t0)}')
        a(f's_lshr_b32 s6, s{sSg}, 2'); a(f's_mul_i32 s6, s6, 80'); a(f's_lshl_b32 s{sO}, s{sSg}, 4'); a(f's_add_u32 s{sO}, s{sO}, s6')
        a(f's_mul_i32 s6, s{sSg}, 288'); a(f's_sub_u32 s6, s6, {16*288 - 128}')
        a(f's_cmp_ge_u32 s{sSg}, 16'); a(f's_cselect_b32 s{sO}, s6, s{sO}'); a('s_cselect_b64 vcc, -1, 0')
        a(f'v_cndmask_b32 {vr(vOo)}, {vr(vOo)}, {vr(t0)}, vcc'); a(f'v_lshlrev_b32 {vr(vOo)}, 1, {vr(vOo)}')
        a(f's_lshl_b32 s{sO}, s{sO}, 1'); a(f's_mul_i32 s6, s{sTb}, 2304'); a(f's_add_u32 s{sO}, s{sO}, s6')
        a('s_mul_i32 s6, s7, 1152'); a(f's_add_u32 s{sO}, s{sO}, s6')
        if cfg.rmf:
            SL = Y + 8
            a(f'v_and_b32 {vr(t1)}, 1, {vr(vLane)}'); a(f'v_lshlrev_b32 {vr(t1)}, 4, {vr(t1)}')
            a(f'v_mov_b32 {vr(E)}, 0x3f80'); a(f'v_lshlrev_b32 {vr(E)}, {vr(t1)}, {vr(E)}'); a(f'v_bfe_u32 {vr(t1)}, {vr(vLane)}, 1, 3')
            for r in range(4): a(f'v_cmp_eq_u32 vcc, {r}, {vr(t1)}'); a(f'v_cndmask_b32 {vr(SL+r)}, 0, {vr(E)}, vcc')
        stamp(9)
        if cfg.rnb:
            NL = V(16 * cfg.rnb, 4)
            a('s_sub_u32 s6, s7, 1')
            for k in range(8): a(f's_mov_b32 s{16+k}, {-1 if k < 4 else "s6"}')
            for k in range(16): a(f'v_mov_b32 {vr(U+k)}, {-1 if k < 8 else "s6"}')
            for k in range(16 * cfg.rnb): a(f'v_mov_b32 {vr(NL+k)}, -1')
            for t in range(4): a(f's_add_u32 s{24+t}, s{sY}, {t*16*1152}')
        else:
            a(f's_mul_i32 s{sDone}, s7, 12')
            for k in range(8, 16): a(f'v_mov_b32 {vr(U+k)}, 0')
        if cfg.flg & 1:
            a('s_cmp_eq_u32 s7, 0'); a('s_cbranch_scc1 R_a')
            a(f'v_mov_b32 {vr(E)}, 0'); ensure(C1, 32, E)
            a('R_a:')
        a(f's_mov_b32 s7, {cfg.spin_max}')
        if cfg.slow:
            a(f'v_lshrrev_b32 {vr(t0)}, 3, {vr(vLane)}'); a(f'v_mul_u32_u24 {vr(t0)}, 4608, {vr(t0)}')
            if cfg.sk: a('s_and_b32 s6, s20, 1'); a(f'v_lshlrev_b32 {vr(t0)}, s6, {vr(t0)}')
            a('R_slow:')
            a(f'buffer_load_dword {vr(E)}, {vr(t0)}, {srd(S_WS)}, s{sY} offen {cfg.r_flags}')
            a('s_waitcnt vmcnt(0)')
            a(f'v_cmp_ne_u32 vcc, -1, {vr(E)}')
            if cfg.sk: a('s_bcnt1_i32_b64 s6, vcc'); a(f's_cmp_ge_u32 s6, {8*cfg.sk}'); a('s_cbranch_scc1 R_pass')
            else: a('s_cbranch_vccnz R_pass')
            a(f's_sleep {cfg.slow}')
            a('s_sub_u32 s7, s7, 1'); a('s_cmp_lg_u32 s7, 1'); a('s_cbranch_scc1 R_slow')
        if cfg.rnb:
            MK = 16; mk = lambda t: f's[{MK+2*t}:{MK+2*t+1}]'
            def ld(j, t): a(f'buffer_load_dwordx4 {vr(NL+16*j+4*t,4)}, {vr(vYo)}, {srd(S_WS)}, s{24+t} offen {cfg.r_flags}')
            def merge(j):
                for t in range(4):
                    Ls = lab('ck'); y = U + 4 * t
                    a(f's_cmp_eq_u64 {mk(t)}, 0'); a(f's_cbranch_scc1 {Ls}')
                    for r in range(4): a(f'v_min_u32 {vr(y+r)}, {vr(y+r)}, {vr(NL+16*j+4*t+r)}')
                    a(f'v_max3_u32 {vr(E)}, {vr(y)}, {vr(y+1)}, {vr(y+2)}'); a(f'v_max_u32 {vr(E)}, {vr(E)}, {vr(y+3)}')
                    a(f'v_cmp_eq_u32 {mk(t)}, -1, {vr(E)}')
                    a(f'{Ls}:')
                a(f's_or_b64 s[28:29], {mk(0)}, {mk(1)}'); a(f's_or_b64 s[30:31], {mk(2)}, {mk(3)}')
                a('s_or_b64 s[28:29], s[28:29], s[30:31]'); a('s_cbranch_scc0 R_done')
            def issue(j):
                for t in range(4): a(f's_or_b64 exec, {mk(t)}, 1'); ld(j, t)
                a('s_mov_b64 exec, -1')
            a('R_pass:')
            for t in range(4):
                Ls = lab('ld')
                a(f's_mov_b64 exec, {mk(t)}'); a(f's_cbranch_execz {Ls}'); ld(0, t); a(f'{Ls}:')
            a('s_mov_b64 exec, -1'); a('s_waitcnt vmcnt(0)')
            merge(0)
            a(f's_bcnt1_i32_b64 s6, {mk(0)}')
            for t in range(1, 4): a(f's_bcnt1_i32_b64 s28, {mk(t)}'); a('s_add_u32 s6, s6, s28')
            a(f's_cmp_le_u32 s6, {4*cfg.rth}'); a('s_cbranch_scc1 R_fast')
            if cfg.rsleep: a(f's_sleep {cfg.rsleep}')
            a('s_sub_u32 s7, s7, 1'); a('s_cmp_gt_u32 s7, 1'); a('s_cbranch_scc1 R_pass')
            a('R_fast:')
            for j in range(cfg.rnb):
                if j: a(f's_sleep {cfg.rd}')
                issue(j)
            a('R_loop:')
            for j in range(cfg.rnb):
                a(f's_waitcnt vmcnt({4*(cfg.rnb-1)})'); merge(j); issue(j)
            a('s_sub_u32 s7, s7, 1'); a('s_cmp_gt_i32 s7, 0'); a('s_cbranch_scc1 R_loop')
        else:
            a('R_pass:')
            for t in range(4):
                Ls = lab('ld')
                a(f's_bitcmp1_b32 s{sDone}, {t}'); a(f's_cbranch_scc1 {Ls}')
                a(f's_add_u32 s6, s{sY}, {t*16*1152}')
                a(f'buffer_load_dwordx4 {vr(U+4*t,4)}, {vr(vYo)}, {srd(S_WS)}, s6 offen {cfg.r_flags}')
                a(f'{Ls}:')
            a('s_waitcnt vmcnt(0)')
            for t in range(4):
                Ls = lab('ck'); y = U + 4 * t
                a(f's_bitcmp1_b32 s{sDone}, {t}'); a(f's_cbranch_scc1 {Ls}')
                a(f'v_max3_u32 {vr(E)}, {vr(y)}, {vr(y+1)}, {vr(y+2)}'); a(f'v_max_u32 {vr(E)}, {vr(E)}, {vr(y+3)}')
                a(f'v_cmp_eq_u32 vcc, -1, {vr(E)}')
                a(f's_cbranch_vccnz {Ls}')
                a(f's_bitset1_b32 s{sDone}, {t}')
                a(f'{Ls}:')
            a(f's_cmp_eq_u32 s{sDone}, 15'); a('s_cbranch_scc1 R_done')
            if cfg.rsleep: a(f's_sleep {cfg.rsleep}')
            a('s_sub_u32 s7, s7, 1'); a('s_cmp_lg_u32 s7, 0'); a('s_cbranch_scc1 R_pass')
        a('R_done:')
        stamp(10)
        if cfg.rmf:
            for t in range(4): a(f'v_mfma_f32_16x16x32_bf16 {vr(Y,4)}, {vr(SL,4)}, {vr(U+4*t,4)}, {vr(Y,4) if t else 0}')
            for r in range(4): a(f'v_add_f32_dpp {vr(Y+4+(r&1))}, {vr(Y+r)}, {vr(Y+r)} row_ror:8 row_mask:0xf bank_mask:{0xc if r > 1 else 0x3:#x}')
            a(f'v_add_f32_dpp {vr(E)}, {vr(Y+4)}, {vr(Y+4)} row_shl:4 row_mask:0xf bank_mask:0x5')
            a(f'v_add_f32_dpp {vr(E)}, {vr(Y+5)}, {vr(Y+5)} row_shr:4 row_mask:0xf bank_mask:0xa')
            a('s_mov_b64 exec, 0xffffffff')
            a(f'v_cvt_pk_bf16_f32 {vr(E)}, {vr(E)}, {vr(E)}')
        else:
            for k in range(16):
                a(f'v_lshlrev_b32 {vr(Y+2*k)}, 16, {vr(U+k)}'); a(f'v_and_b32 {vr(Y+2*k+1)}, 0xffff0000, {vr(U+k)}')
            for st in (16, 8):
                for k in range(0, st, 2): a(f'v_pk_add_f32 {vr(Y+k,2)}, {vr(Y+k,2)}, {vr(Y+k+st,2)}')
            for t in range(4): a(f'v_permlane32_swap_b32 {vr(Y+t)}, {vr(Y+t+4)}')
            for t in (0, 2): a(f'v_pk_add_f32 {vr(Y+t,2)}, {vr(Y+t,2)}, {vr(Y+t+4,2)}')
            for t in range(2): a(f'v_permlane16_swap_b32 {vr(Y+t)}, {vr(Y+t+2)}')
            a(f'v_pk_add_f32 {vr(Y,2)}, {vr(Y,2)}, {vr(Y+2,2)}')
            for t in range(2): a(f'v_add_f32_dpp {vr(Y+t)}, {vr(Y+t)}, {vr(Y+t)} row_ror:4 {DPPF}')
            a(f'v_add_f32_dpp {vr(E)}, {vr(Y)}, {vr(Y)} row_ror:8 row_mask:0xf bank_mask:0x3')
            a(f'v_add_f32_dpp {vr(E)}, {vr(Y+1)}, {vr(Y+1)} row_ror:8 row_mask:0xf bank_mask:0xc')
            a(f'v_cvt_pk_bf16_f32 {vr(E)}, {vr(E)}, {vr(E)}')
            a('s_mov_b32 exec_lo, 0x0f0f0f0f'); a('s_mov_b32 exec_hi, 0x0f0f0f0f')
        a(f'buffer_store_short {vr(E)}, {vr(vOo)}, {srd(S_OUT)}, s{sO} offen {cfg.out_flags}')
        a('s_mov_b64 exec, -1')
    else:
        a(f's_mul_i32 s{sY}, s{sTb}, {8 * SA}')
        if cfg.cd and not cfg.cell: a(f's_lshr_b32 s{sY}, s{sY}, s7')
        a(f's_lshl_b32 s6, s{sSg}, 7'); a(f's_add_u32 s{sY}, s{sY}, s6')
        a(f's_mul_i32 s6, s7, {YB - YA}'); a(f's_add_u32 s{sY}, s{sY}, s6'); a(f's_add_u32 s{sY}, s{sY}, {YA}')
        a(f's_mul_i32 s{sO}, s{sTb}, 2304'); a(f's_lshl_b32 s6, s{sSg}, 6'); a(f's_add_u32 s{sO}, s{sO}, s6')
        a('s_mul_i32 s6, s7, 1152'); a(f's_add_u32 s{sO}, s{sO}, s6')
        a(f'v_lshrrev_b32 {vr(t0)}, 3, {vr(vLane)}'); a(f'v_and_b32 {vr(t1)}, 7, {vr(vLane)}')
        a(f'v_mul_u32_u24 {vr(vYo)}, 2304, {vr(t0)}'); a(f'v_lshl_add_u32 {vr(vYo)}, {vr(t1)}, 4, {vr(vYo)}')
        if cfg.cell:
            a(f's_mul_i32 s6, s7, {SB - 9216}'); a(f'v_lshrrev_b32 {vr(t0)}, 5, {vr(vLane)}'); a(f'v_mul_u32_u24 {vr(t0)}, s6, {vr(t0)}')
            a(f'v_add_u32 {vr(vYo)}, {vr(vYo)}, {vr(t0)}'); a(f's_lshl_b32 s{sTau}, {cfg.cell}, s7')
        a(f'v_bfe_u32 {vr(t0)}, {vr(vLane)}, 2, 1'); a(f'v_lshl_add_u32 {vr(t0)}, {vr(t0)}, 2, {vr(vG)}')
        a(f'v_and_b32 {vr(t1)}, 3, {vr(vLane)}'); a(f'v_lshl_add_u32 {vr(t0)}, {vr(t0)}, 2, {vr(t1)}'); a(f'v_lshlrev_b32 {vr(vOo)}, 1, {vr(t0)}')
        stamp(9)
        if cfg.cd:
            a(f's_mul_i32 s{sDone}, s7, 0xf0')
            for k in range(16, 32): a(f'v_mov_b32 {vr(Y+k)}, 0')
        else: a(f's_mov_b32 s{sDone}, 0')
        a(f's_mov_b32 s7, {cfg.spin_max}')
        if cfg.slow:
            a(f'v_lshrrev_b32 {vr(t0)}, 3, {vr(vLane)}'); a(f'v_mul_u32_u24 {vr(t0)}, {cfg.cell or 9216}, {vr(t0)}')
            a('R_slow:')
            a(f'buffer_load_dword {vr(E)}, {vr(t0)}, {srd(S_WS)}, s{sY} offen {cfg.r_flags}')
            a('s_waitcnt vmcnt(0)')
            a(f'v_cmp_ne_u32 vcc, -1, {vr(E)}')
            a('s_cbranch_vccnz R_pass')
            a(f's_sleep {cfg.slow}')
            a('s_sub_u32 s7, s7, 1'); a('s_cmp_lg_u32 s7, 1'); a('s_cbranch_scc1 R_slow')
        a('R_pass:')
        for t in range(8):
            Ls = lab('ld')
            a(f's_bitcmp1_b32 s{sDone}, {t}'); a(f's_cbranch_scc1 {Ls}')
            if cfg.cell: a(f's_mul_i32 s6, s{sTau}, {t}'); a(f's_add_u32 s6, s6, s{sY}')
            else: a(f's_add_u32 s6, s{sY}, {t*8*2304}')
            a(f'buffer_load_dwordx4 {vr(Y+4*t,4)}, {vr(vYo)}, {srd(S_WS)}, s6 offen {cfg.r_flags}')
            a(f'{Ls}:')
        a('s_waitcnt vmcnt(0)')
        for t in range(8):
            Ls = lab('ck'); y = Y + 4 * t
            a(f's_bitcmp1_b32 s{sDone}, {t}'); a(f's_cbranch_scc1 {Ls}')
            a(f'v_max3_u32 {vr(E)}, {vr(y)}, {vr(y+1)}, {vr(y+2)}'); a(f'v_max_u32 {vr(E)}, {vr(E)}, {vr(y+3)}')
            a(f'v_cmp_eq_u32 vcc, -1, {vr(E)}')
            a(f's_cbranch_vccnz {Ls}')
            a(f's_bitset1_b32 s{sDone}, {t}')
            a(f'{Ls}:')
        a(f's_cmp_eq_u32 s{sDone}, 255'); a('s_cbranch_scc1 R_done')
        if cfg.rsleep: a(f's_sleep {cfg.rsleep}')
        a('s_sub_u32 s7, s7, 1'); a('s_cmp_lg_u32 s7, 0'); a('s_cbranch_scc1 R_pass')
        a('R_done:')
        stamp(10)
        for st in (16, 8, 4):
            for k in range(0, st, 2): a(f'v_pk_add_f32 {vr(Y+k,2)}, {vr(Y+k,2)}, {vr(Y+k+st,2)}')
        a(f'v_permlane32_swap_b32 {vr(AS)}, {vr(AS+2)}'); a(f'v_permlane32_swap_b32 {vr(AS+1)}, {vr(AS+3)}')
        a(f'v_add_f32 {vr(AS)}, {vr(AS)}, {vr(AS+2)}'); a(f'v_add_f32 {vr(AS+1)}, {vr(AS+1)}, {vr(AS+3)}')
        a(f'v_permlane16_swap_b32 {vr(AS)}, {vr(AS+1)}')
        a(f'v_add_f32 {vr(AS)}, {vr(AS)}, {vr(AS+1)}')
        a(f'v_add_f32_dpp {vr(AS)}, {vr(AS)}, {vr(AS)} row_ror:8 {DPPF}')
        a(f'v_cvt_pk_bf16_f32 {vr(AS)}, {vr(AS)}, {vr(AS)}')
        a('s_mov_b32 exec_lo, 0x00ff00ff'); a('s_mov_b32 exec_hi, 0x00ff00ff')
        a(f'buffer_store_short {vr(AS)}, {vr(vOo)}, {srd(S_OUT)}, s{sO} offen {cfg.out_flags}')
        a('s_mov_b64 exec, -1')
    if cfg.dyn:
        a(f's_cmp_lg_u32 s{sW}, 0'); a('s_cbranch_scc1 B_fin')
        a(f'ds_write_b32 {vr(vC0)}, {vr(vC0)}'); a('s_waitcnt lgkmcnt(0)')
        a('B_fin:')
    stamp(11)
    a('B_end:')
    stamp_flush(t0, 'B')
    a('s_endpgm')
    if cfg.dyn: gen_helper(vLane, sHalf, sBeta, base, vC0)

def gen_helper(vLane, sHalf, sBeta, base, vFl):
    V = VAlloc(base)
    PG = V(4, 4); vA = V(); vB = V(); vO = V(); vP = V(); S = V(); t = V(); dm = V(2)
    pf, p, d, sS, sJ, sD, sN = 16, 20, 24, 28, 29, 30, 31
    BIG = 0x2000000
    a('H_start:')
    if cfg.xh:
        a(f's_bitcmp1_b32 s{sH}, 2'); a('s_cbranch_scc1 B_end')
        a(f's_add_u32 s{sH}, s{sH}, {cfg.xd}'); a(f's_and_b32 s{sH}, s{sH}, 31')
    a(f's_lshl_b32 s6, s{sHalf}, 6'); a(f's_add_u32 s6, s6, s{sH}'); a('s_lshl_b32 s6, s6, 20')
    mk_srd(S_V, P_V, 's6', BIG + 0x100000)
    a(f'v_lshlrev_b32 {vr(vA)}, 7, {vr(vLane)}'); a(f'v_and_b32 {vr(vB)}, 4095, {vr(vA)}'); a(f'v_add_u32 {vr(vA)}, 4096, {vr(vA)}')
    a(f'v_lshrrev_b32 {vr(t)}, 5, {vr(vLane)}'); a(f'v_mul_u32_u24 {vr(t)}, 20480, {vr(t)}'); a(f'v_add_u32 {vr(vB)}, {vr(vB)}, {vr(t)}')
    if cfg.hloc:
        a(f's_and_b32 s6, s{sBeta}, 56'); a(f'v_and_b32 {vr(vP)}, 7, {vr(vLane)}'); a(f'v_add_u32 {vr(vP)}, s6, {vr(vP)}')
        a(f'v_mul_u32_u24 {vr(vP)}, {cfg.psp}, {vr(vP)}')
    else: a(f'v_mul_u32_u24 {vr(vP)}, {cfg.psp}, {vr(vLane)}')
    a(f'v_add_u32 {vr(vP)}, {PROG}, {vr(vP)}')
    if cfg.pxs != 8 * cfg.psp: a(f's_lshr_b32 s7, s{sH}, 2'); a(f's_mul_i32 s7, s7, {cfg.pxs - 8 * cfg.psp}'); a(f'v_add_u32 {vr(vP)}, s7, {vr(vP)}')
    for j in range(3): a(f's_mov_b32 s{pf+j}, 43')
    a(f's_mov_b32 s{sN}, {cfg.spin_max}')
    if cfg.dyn == 2: a('s_branch H_end')
    if cfg.mon: a(f's_cmp_eq_u32 s{sW}, 1'); a('s_cbranch_scc1 M_start')
    NP = 4 if cfg.mon and not cfg.thr else 3
    def psum():
        for j in range(3):
            if cfg.ctl:
                a(f'v_subrev_u32 {vr(PG+j)}, {44 - cfg.hoff}, {vr(PG+j)}')
                if not cfg.hlo: a(f'v_cmp_lt_i32 vcc, {cfg.hoff}, {vr(PG+j)}'); a(f'v_cndmask_b32 {vr(PG+j)}, -1, {vr(PG+j)}, vcc')
            a(f'v_med3_i32 {vr(PG+j)}, {vr(PG+j)}, {-cfg.hlo if cfg.hlo else -1}, {28 + cfg.hoff}')
        a(f'v_add3_u32 {vr(S)}, {vr(PG)}, {vr(PG+1)}, {vr(PG+2)}')
        for sh in (4, 2, 1): a(f'v_add_u32_dpp {vr(S)}, {vr(S)}, {vr(S)} row_ror:{sh} {DPPF}')
        a(f'v_lshlrev_b32 {vr(S)}, 3, {vr(S)}')
        a(f'v_readfirstlane_b32 s{sS}, {vr(S)}')
    a(f'buffer_load_dwordx{NP} {vr(PG,NP)}, {vr(vP)}, {srd(S_WS)}, 0 offen {cfg.pl_flags}')
    a('s_waitcnt vmcnt(0)')
    a('H_loop:')
    psum()
    for j in range(3): a(f'v_readlane_b32 s{p+j}, {vr(PG+j)}, s{sBeta}')
    if NP == 4: a(f'v_readlane_b32 s6, {vr(PG+3)}, 7'); a(f's_add_i32 s{sS}, s{sS}, s6')
    if cfg.hforce:
        a(f's_and_b32 s6, s2, 7'); a(f's_mov_b32 s7, {cfg.hforce}'); a('s_bitcmp1_b32 s7, s6'); a(f's_cselect_b32 s6, {cfg.hfa}, 0'); a(f's_add_i32 s{sS}, s{sS}, s6')
    a(f'buffer_load_dwordx{NP} {vr(PG,NP)}, {vr(vP)}, {srd(S_WS)}, 0 offen {cfg.pl_flags}')
    NEG = -(1 << 20)
    for j in range(3):
        a(f's_mul_i32 s6, s{p+j}, 192'); a(f's_sub_i32 s{d+j}, s{sS}, s6')
        a(f's_mul_i32 s6, s{pf+j}, {cfg.hK}'); a(f's_add_i32 s{d+j}, s{d+j}, s6')
        a(f's_add_i32 s6, s{pf+j}, {cfg.hoff - 16 - cfg.hmar}'); a(f's_cmp_ge_i32 s6, s{p+j}')
        a(f's_cselect_b32 s{d+j}, s{d+j}, {NEG}')
    if cfg.xh:
        for j in range(3):
            a(f's_lshl_b32 s{d+j}, s{pf+j}, 12'); a(f's_cmp_gt_i32 s{pf+j}, {43 - cfg.xh}'); a(f's_cselect_b32 s{d+j}, s{d+j}, {NEG}')
    a(f's_cmp_ge_i32 s{d}, s{d+1}'); a(f's_cselect_b32 s{sJ}, 0, 1'); a(f's_max_i32 s{sD}, s{d}, s{d+1}')
    a(f's_cmp_ge_i32 s{sD}, s{d+2}'); a(f's_cselect_b32 s{sJ}, s{sJ}, 2'); a(f's_max_i32 s{sD}, s{sD}, s{d+2}')
    a(f's_cmp_eq_i32 s{sD}, {NEG}'); a('s_cbranch_scc1 H_end')
    a(f's_sub_u32 s{sN}, s{sN}, 1'); a(f's_cmp_eq_u32 s{sN}, 0'); a('s_cbranch_scc1 H_end')
    a(f's_cmp_lt_i32 s{sD}, {43 * cfg.hK + cfg.hth}'); a('s_cbranch_scc1 H_idle')
    for j in range(3):
        a(f's_cmp_eq_u32 s{sJ}, {j}'); a(f's_cselect_b32 s6, s{pf+j}, s6'); a(f's_subb_u32 s{pf+j}, s{pf+j}, 0')
    a('s_mul_i32 s6, s6, 24576'); a('s_sub_u32 s6, s6, 32768')
    a(f's_cmp_eq_u32 s{sJ}, 2'); a(f's_cselect_b32 s7, {BIG}, 0'); a('s_add_u32 s6, s6, s7')
    a(f's_cmp_eq_u32 s{sJ}, 1'); a('s_cselect_b64 vcc, -1, 0'); a('s_cselect_b32 s7, 25, 13'); a('s_lshl_b32 s7, 1, s7'); a('s_add_u32 s7, s7, s6')
    a(f'v_cndmask_b32 {vr(vO)}, {vr(vA)}, {vr(vB)}, vcc')
    a(f'buffer_load_dword {vr(dm)}, {vr(vO)}, {srd(S_V)}, s6 offen {cfg.h_flags}')
    a(f'buffer_load_dword {vr(dm+1)}, {vr(vO)}, {srd(S_V)}, s7 offen {cfg.h_flags}')
    a('s_waitcnt vmcnt(2)')
    a('s_branch H_loop')
    a('H_idle:')
    a(f'ds_read_b32 {vr(t)}, {vr(vFl)}')
    a('s_waitcnt vmcnt(0) lgkmcnt(0)'); a(f's_sleep {cfg.hsleep}')
    a(f'v_cmp_eq_u32 vcc, 0, {vr(t)}')
    a('s_cbranch_vccnz H_loop')
    a('H_end:')
    if cfg.stamps:
        a(f's_add_u32 s98, s{pf}, s{pf+1}'); a(f's_add_u32 s98, s98, s{pf+2}'); a('s_sub_u32 s98, 129, s98')
        a(f's_lshl_b32 s99, s{pf+1}, 8'); a(f's_or_b32 s99, s99, s{pf}'); a(f's_lshl_b32 s6, s{pf+2}, 16'); a('s_or_b32 s99, s99, s6')
    stamp(8)
    a('s_branch B_end')
    if cfg.ctl:
        mon = Mon(V(8, 4))
        a('M2_start:')
        mon.init(vLane, sBeta)
        a(f's_mov_b32 s{sN}, {cfg.spin_max}')
        a('M2_loop:')
        mon.loads()
        a(f'ds_read_b32 {vr(t)}, {vr(vFl)}')
        a('s_waitcnt vmcnt(0) lgkmcnt(0)')
        mon.step()
        if cfg.msleep: a(f's_sleep {cfg.msleep}')
        a(f's_cmp_ge_i32 s{mon.sS}, {192 * (28 + cfg.tm1 - 4)}'); a('s_cbranch_scc1 B_end')
        a(f's_sub_u32 s{sN}, s{sN}, 1'); a(f's_cmp_eq_u32 s{sN}, 0'); a('s_cbranch_scc1 B_end')
        a(f'v_cmp_eq_u32 vcc, 0, {vr(t)}')
        a('s_cbranch_vccnz M2_loop')
        a('s_branch B_end')
    if cfg.mon:
        GL = PROG + 0x8000; sX, sG, sDl, sO, sL = 16, 17, 18, 19, 20
        a('M_start:')
        a(f'v_and_b32 {vr(vA)}, {cfg.mref-1}, {vr(vLane)}'); a(f'v_lshlrev_b32 {vr(vA)}, 7, {vr(vA)}'); a(f'v_add_u32 {vr(vA)}, {GL}, {vr(vA)}')
        if cfg.mref == 4: a(f's_and_b32 s6, s{sBeta}, 32'); a('s_lshl_b32 s6, s6, 4'); a(f'v_add_u32 {vr(vA)}, s6, {vr(vA)}')
        a(f's_lshr_b32 s{sX}, s{sBeta}, 3'); a(f's_lshl_b32 s{sG}, s{sX}, 7'); a(f's_add_u32 s{sG}, s{sG}, {GL}')
        a(f's_mul_i32 s{sL}, s{sBeta}, {cfg.psp}'); a(f's_add_u32 s{sL}, s{sL}, {PROG + 12}')
        if cfg.thr: a(f's_sub_u32 s{sL}, s{sG}, 0x4000')
        a(f's_mov_b32 s{sDl}, 0')
        a('M_loop:')
        a(f'buffer_load_dwordx3 {vr(PG,3)}, {vr(vP)}, {srd(S_WS)}, 0 offen {cfg.pl_flags}')
        a(f'buffer_load_dword {vr(vB)}, {vr(vA)}, {srd(S_WS)}, 0 offen sc1')
        a(f'ds_read_b32 {vr(t)}, {vr(vFl)}')
        a('s_waitcnt vmcnt(1)')
        psum()
        a('s_mov_b64 exec, 1')
        a(f'buffer_store_dword {vr(S)}, off, {srd(S_WS)}, s{sG} sc1')
        a('s_mov_b64 exec, -1')
        a('s_waitcnt vmcnt(1) lgkmcnt(0)')
        a(f'v_readlane_b32 s{sO}, {vr(vB)}, s{sX}')
        a(f'v_cmp_eq_u32 vcc, -1, {vr(vB)}')
        a(f's_cmp_eq_u32 s{sO}, -1'); a('s_cbranch_scc1 M_next')
        a(f'v_subrev_u32 {vr(vB)}, s{sO}, {vr(vB)}')
        a(f'v_cndmask_b32 {vr(vB)}, {vr(vB)}, 0, vcc')
        for sh in (4, 2, 1): a(f'{"v_min_i32_dpp" if cfg.mmin else "v_add_u32_dpp"} {vr(vB)}, {vr(vB)}, {vr(vB)} row_ror:{sh} {DPPF}')
        a(f'v_readfirstlane_b32 s6, {vr(vB)}')
        if not cfg.mmin: a(f's_mul_i32 s6, s6, {cfg.mg}'); a('s_ashr_i32 s6, s6, 5')
        a(f's_sub_i32 s6, s6, s{sDl}'); a(f's_ashr_i32 s6, s6, {cfg.mf}'); a(f's_add_i32 s{sDl}, s{sDl}, s6')
        if cfg.thr:
            a(f's_cmp_lt_i32 s{sDl}, {-cfg.mth}')
            if cfg.tforce: a(f's_mov_b32 s6, {cfg.tforce}'); a(f's_bitcmp1_b32 s6, s{sX}')
            a('s_cselect_b32 s6, 1, 0'); a(f'v_mov_b32 {vr(vO)}, s6')
        else: a(f'v_mov_b32 {vr(vO)}, s{sDl}')
        a('s_mov_b64 exec, 1')
        a(f'buffer_store_dword {vr(vO)}, off, {srd(S_WS)}, s{sL}')
        a('s_mov_b64 exec, -1')
        a('M_next:')
        if cfg.msleep: a(f's_sleep {cfg.msleep}')
        a(f's_cmp_ge_i32 s{sS}, {192 * (28 + cfg.hoff)}'); a('s_cbranch_scc1 M_end')
        a(f's_sub_u32 s{sN}, s{sN}, 1'); a(f's_cmp_eq_u32 s{sN}, 0'); a('s_cbranch_scc1 M_end')
        a(f'v_cmp_eq_u32 vcc, 0, {vr(t)}')
        a('s_cbranch_vccnz M_loop')
        a('M_end:')
        if cfg.stamps: a(f's_sub_u32 s98, {cfg.spin_max}, s{sN}')
        a('s_branch B_end')

def gen():
    hdr = open('/code/' + NAME + '.s.ref').read().split('; Override')[0]
    a(f'{NAME}_kernel:')
    if cfg.stamps: a('s_memrealtime s[78:79]')
    a('s_cmp_ge_u32 s2, 256'); a('s_cbranch_scc1 L_exit')
    a('s_load_dwordx16 s[16:31], s[0:1], 0'); a('s_load_dwordx8 s[32:39], s[0:1], 64'); a('s_load_dwordx4 s[40:43], s[0:1], 96')
    a('v_lshrrev_b32 v1, 6, v0'); a(f'v_readfirstlane_b32 s{sW}, v1')
    if cfg.hmap == 0:
        a('s_and_b32 s6, s2, 7'); a('s_bfe_u32 s7, s2, 0x20003'); a(f's_lshl_b32 s{sH}, s6, 2'); a(f's_add_u32 s{sH}, s{sH}, s7')
    else:
        a(f's_and_b32 s{sH}, s2, 31')
    a(f's_lshr_b32 s{sR}, s2, 5')
    if cfg.stamps:
        for k in range(0, 16, 2): a(f's_mov_b64 s[{84+k}:{85+k}], 0')
    a(f's_cmp_lt_u32 s{sR}, 2'); a('s_cbranch_scc1 B_role')
    gen_A()
    a('L_exit:'); a('s_endpgm')
    gen_CD() if cfg.cd else gen_B()
    body = a.finish()
    out = hdr + f'; @launch grid=(256,1,1) block=(256,1,1) lds={LDS_TOTAL}\n'
    out += '; generated by gen/gen.py (hand-written generator)\n'
    out += f'.amdgcn_target "amdgcn-amd-amdhsa--gfx950"\n.text\n.globl {NAME}_kernel\n.p2align 8\n.type {NAME}_kernel,@function\n'
    out += body
    out += f'''.section .rodata,"a"
.p2align 6
.amdhsa_kernel {NAME}_kernel
  .amdhsa_next_free_vgpr 512
  .amdhsa_next_free_sgpr 102
  .amdhsa_accum_offset 256
  .amdhsa_group_segment_fixed_size 0
  .amdhsa_kernarg_size 112
  .amdhsa_user_sgpr_count 2
  .amdhsa_user_sgpr_kernarg_segment_ptr 1
  .amdhsa_system_sgpr_workgroup_id_x 1
.end_amdhsa_kernel
'''
    return out

if __name__ == '__main__':
    outp = sys.argv[1]
    for kv in sys.argv[2:]:
        k, v = kv.split('=', 1); v = v.replace('+', ' ')
        cur = getattr(cfg, k)
        setattr(cfg, k, (v == '1') if isinstance(cur, bool) else (int(v, 0) if isinstance(cur, int) else v))
    PART = cfg.part << 12; YA = cfg.ya << 12; YB = cfg.yb << 12; QABS = cfg.qa << 12
    if cfg.cell: SA = SB = SQ = cfg.cell; YA = PART + 32768; YB = YA + 18432; QABS = YB + 9216
    if cfg.astr > 64: AST = 0x600000
    if cfg.pstt > 256: PSTAT = 0xa00000
    open(outp, 'w').write(gen())
```

```python
import sys, math, struct
from asmlib import Asm, VM
NAME = 'concat_heads__mha_block_cached__compressed_kv_cla__decode'

class Cfg:
    stamps = False
    R = 8
    wq_flags = ''
    wo_flags = ''
    b_flags = 'nt'
    dma_t0 = 0
    dma_per = 4
    ev_trip = 16
    hmap = 0
    trips = False
    diag = ''
    rsleep = 0
    wq_per = 3
    spin_max = 400000
    noB = False
    bskip = 0
    askip = 0
    bstop = 0
    psleep = 16
    qsleep = 16
    nodma = False
    kv_flags = 'nt'
    warm = 0
    wqpf = 2
    dyn = 1
    hloc = 1
    dup = 0
    pl_flags = 'sc1'
    ps_flags = ''
    r_flags = 'sc1'
    psp = 16
    pper = 1
    hK = 24
    hth = 384
    hmar = 2
    hsleep = 4
    hoff = 3
    thr = 0
    mth = 96
    tm0 = 20
    tm1 = 42
    tforce = 0
    cthr = 4
    fast = 3
    est = 0
    y16 = 1
    pdel = 0
    t16 = 0
    pl2 = 'sc1'
    dsk2 = 0
    cell = 0
    mth2 = 100000
    lv2 = 2
    msh = 0
    gl_flags = 'sc1'
    gls = 1280
    astr = 64
    pstt = 0
    pth = 0
    vth = 0
    vth0 = 16
    vth1 = 99
    kper = 2
    fd = 8
    vper = 1
    pxs = 4352
    tf_flags = 'sc1'
    tfw = 0
    cdbg = 0
    mrate = 4
    ctl = 0
    thrk = 14
    toff = 1
    mal = 0
    hlo = 0
    cuv = 8
    cdn = 2
    tstat = 0
    tsv = 7
    rnb = 2
    rth = 12
    rmf = 1
    c0x = 2
    ne = 2
    djmp = 1
    y_flags = 'sc1'
    sk = 4
    flg = 0
    pre4 = 1
    smf = 1
    rd = 5
    tsp = 2
    tst = ''
    part = 0x200
    ya = 0x400
    yb = 0x500
    qa = 0
    psx = 2
    hforce = 0
    hfa = 400
    dskip = 0
    dthr = 6
    mref = 8
    mmin = 0
    tdist = 3
    tper = 1
    nch = 8
    dloop = 0
    qslow = 8
    dpf = 0
    cd = 1
    slow = 8
    cw2 = 2
    cpre = 0
    dhold = 0
    pf_flags = ''
    qfull = 1
    pshare = 1
    c0_trip = 8
    ytouch = 0
    xh = 0
    xd = 4
    h_flags = ''
    mon = 0
    mf = 1
    mg = 4
    msleep = 0
    emu = 0
    bwq_flags = 'nt'
    pst_flags = 'sc1'
    pld_flags = 'sc1'
    clr_flags = 'sc1'
    yb_flags = 'sc1'
    dmask = 0
    dmul = 1
    out_flags = ''
    stag = '8,20,32'
    wopf_at = 4
    dgrp = 3
    dstep = 1
    vck = 0
    vcv = 0
    vsw = 16
    vcp = 63
    cwin = 2
    help = 0
    hsh = 4
    ev_per = 4
    wmix = 0
    st_per = 4
    kfirst = 0
    dma_mode = 0
    npv = 7
    st_m = 36
    ev2_m = 41
    dend = 4
    dm0 = 36
    dsl = 1
    xper = 4
    ev_slot = 12
    vhold = 0
cfg = Cfg()

QABS = 0x000000; PSTAT = 0x040000; AST = 0x050000; PROG = 0x060000; PART = 0x100000; YA = 0x400000; YB = 0x500000
WS_USED = 0x1000000
STAMP = 0x10000000
SA, SB, SQ = 18432, 9216, 4096
C1 = 192; C2 = 128
C0 = 0; C0N = 128; TFO = 0x10400
OOB = 0x7ff00000
LDS_TOTAL = 163840
SCALE = (128 ** -0.5) * math.log2(math.e)
def f2u(x): return struct.unpack('<I', struct.pack('<f', x))[0]

P_AX, P_K, P_V, P_WQ, P_WO, P_BX, P_CKV, P_BWQ, P_WUK, P_WUV, P_BWO, P_OUT, P_DBG, P_WS = 16, 18, 20, 22, 24, 26, 28, 30, 32, 34, 36, 38, 40, 42
S_X, S_W, S_K, S_V, S_WO, S_WS, S_DBG, S_OUT, S_U = 44, 48, 52, 56, 60, 64, 68, 72, 76
sW, sH, sR = 3, 4, 5
def srd(n): return f's[{n}:{n+3}]'
def vr(n, k=1): return f'v{n}' if k == 1 else f'v[{n}:{n+k-1}]'
def ar(n, k=1): return f'a{n}' if k == 1 else f'a[{n}:{n+k-1}]'

class VAlloc:
    def __init__(self, start=1): self.n = start
    def __call__(self, k=1, align=1):
        align = max(align, 2 if k > 1 else 1)
        self.n = (self.n + align - 1) // align * align
        r = self.n; self.n += k
        assert self.n <= 256, 'out of vgprs'
        return r

a = Asm()
nstamp = [0]
def stamp(k):
    if cfg.stamps:
        a(f's_memrealtime s[100:101]'); a('s_waitcnt lgkmcnt(0)'); a(f's_mov_b32 s{84+k}, s100')
def stamp_flush(vt, role=''):
    if cfg.diag:
        k = int(cfg.diag[1:]) if cfg.diag[0] == role else 0
        L = lab('diag')
        a(f's_cmp_eq_u32 s{84+k}, 0'); a(f's_cselect_b32 s6, s84, s{84+k}'); a('s_add_u32 s6, s6, 10000')
        a(f'{L}:'); a('s_sleep 4'); a('s_memrealtime s[100:101]'); a('s_waitcnt lgkmcnt(0)')
        a('s_sub_u32 s7, s100, s6'); a('s_cmp_lt_i32 s7, 0'); a(f's_cbranch_scc1 {L}')
        return
    if cfg.stamps:
        a(f's_lshl_b32 s6, s2, 2'); a(f's_add_u32 s6, s6, s{sW}'); a('s_lshl_b32 s6, s6, 6'); a(f's_add_u32 s6, s6, {STAMP}')
        a(f's_mov_b32 s{S_WS+2}, 0x20000000')
        a(f'v_mov_b32 {vr(vt+1)}, 0')
        a('s_mov_b64 exec, 1')
        for k in range(16):
            a(f'v_mov_b32 {vr(vt)}, s{84+k}')
            a(f'buffer_store_dword {vr(vt)}, {vr(vt+1)}, {srd(S_WS)}, s6 offen offset:{4*k}')
            a('s_nop 1')
        a('s_mov_b64 exec, -1')

def karg_wait():
    a('s_waitcnt lgkmcnt(0)')
    if cfg.stamps: a('s_mov_b32 s84, s78')
def mk_srd(d, p, off, size):
    if off is None:
        a(f's_mov_b32 s{d}, s{p}'); a(f's_mov_b32 s{d+1}, s{p+1}')
    else:
        a(f's_add_u32 s{d}, s{p}, {off}'); a(f's_addc_u32 s{d+1}, s{p+1}, 0')
    a(f's_mov_b32 s{d+2}, {size}'); a(f's_mov_b32 s{d+3}, 0x20000')

uid = [0]
def lab(p):
    uid[0] += 1
    return f'L_{p}_{uid[0]}'

def poll(coff, target, vt):
    L, D = lab('poll'), lab('polld')
    a(f's_cmp_lg_u32 s{sW}, 0'); a(f's_cbranch_scc1 {D}')
    a(f's_mov_b32 s7, {cfg.spin_max}')
    a(f'{L}:')
    a(f'buffer_load_dword {vr(vt)}, off, {srd(S_DBG)}, 0 offset:{coff} sc1')
    a('s_waitcnt vmcnt(0)')
    a(f'v_readfirstlane_b32 s6, {vr(vt)}')
    a(f's_cmp_ge_u32 s6, {target}'); a(f's_cbranch_scc1 {D}')
    a(f's_sleep {cfg.psleep}')
    a('s_sub_u32 s7, s7, 1'); a('s_cmp_lg_u32 s7, 0'); a(f's_cbranch_scc1 {L}')
    a(f'{D}:')
    a('s_barrier')

def ensure(coff, target, vt):
    if coff == C0 and cfg.c0x & 1: return
    if coff == C0 and cfg.c0x == 2: target = 32
    L, D = lab('ens'), lab('ensd')
    a(f's_mov_b32 s7, {cfg.spin_max}')
    a(f'{L}:')
    a(f'v_readfirstlane_b32 s6, {vr(vt)}')
    a(f's_cmp_ge_u32 s6, {target}'); a(f's_cbranch_scc1 {D}')
    a(f's_sleep {cfg.psleep}')
    a(f'buffer_load_dword {vr(vt)}, off, {srd(S_DBG)}, 0 offset:{coff} sc1')
    a('s_waitcnt vmcnt(0)')
    a('s_sub_u32 s7, s7, 1'); a('s_cmp_lg_u32 s7, 0'); a(f's_cbranch_scc1 {L}')
    a(f'{D}:')

def umax_tree(dst, regs):
    regs = list(regs)
    a(f'v_max3_u32 {vr(dst)}, {vr(regs[0])}, {vr(regs[1])}, {vr(regs[2])}'); regs = regs[3:]
    while len(regs) >= 2:
        a(f'v_max3_u32 {vr(dst)}, {vr(dst)}, {vr(regs[0])}, {vr(regs[1])}'); regs = regs[2:]
    if regs: a(f'v_max_u32 {vr(dst)}, {vr(dst)}, {vr(regs[0])}')

def signal(coff, vt):
    D = lab('sig')
    a('s_waitcnt vmcnt(0) lgkmcnt(0)'); a('s_barrier')
    a(f's_cmp_lg_u32 s{sW}, 0'); a(f's_cbranch_scc1 {D}')
    a(f'v_mov_b32 {vr(vt)}, 1'); a('s_mov_b64 exec, 1')
    a(f'buffer_atomic_add {vr(vt)}, off, {srd(S_DBG)}, 0 offset:{coff}')
    a('s_mov_b64 exec, -1')
    a(f'{D}:')

def allred_rows(x, t, op):
    for sw in ('v_permlane16_swap_b32', 'v_permlane32_swap_b32'):
        a(f'v_mov_b32 {vr(t)}, {vr(x)}')
        a(f'{sw} {vr(x)}, {vr(t)}')
        a(f'{op} {vr(x)}, {vr(x)}, {vr(t)}')

DPPF = 'row_mask:0xf bank_mask:0xf'
def reduce4(T, X, S):
    a(f'v_add_f32_dpp {vr(X)}, {vr(T)}, {vr(T)} row_ror:8 row_mask:0xf bank_mask:0x3')
    a(f'v_add_f32_dpp {vr(X+1)}, {vr(T+1)}, {vr(T+1)} row_ror:8 row_mask:0xf bank_mask:0x3')
    a(f'v_add_f32_dpp {vr(X)}, {vr(T+2)}, {vr(T+2)} row_ror:8 row_mask:0xf bank_mask:0xc')
    a(f'v_add_f32_dpp {vr(X+1)}, {vr(T+3)}, {vr(T+3)} row_ror:8 row_mask:0xf bank_mask:0xc')
    a(f'v_add_f32_dpp {vr(S)}, {vr(X)}, {vr(X)} row_half_mirror row_mask:0xf bank_mask:0x5')
    a(f'v_add_f32_dpp {vr(S)}, {vr(X+1)}, {vr(X+1)} row_half_mirror row_mask:0xf bank_mask:0xa')
    a(f'v_add_f32_dpp {vr(S)}, {vr(S)}, {vr(S)} quad_perm:[1,0,3,2] {DPPF}')
    a(f'v_add_f32_dpp {vr(S)}, {vr(S)}, {vr(S)} quad_perm:[2,3,0,1] {DPPF}')

def mk_masks(vLane, MASK, SEL, t0, t1):
    a(f'v_and_b32 {vr(t0)}, 1, {vr(vLane)}'); a(f'v_lshlrev_b32 {vr(t0)}, 4, {vr(t0)}')
    a(f'v_mov_b32 {vr(t1)}, 0xffff'); a(f'v_lshlrev_b32 {vr(t0)}, {vr(t0)}, {vr(t1)}')
    a(f'v_bfe_u32 {vr(t1)}, {vr(vLane)}, 1, 2')
    for r in range(4):
        a(f'v_cmp_eq_u32 vcc, {r}, {vr(t1)}')
        a(f'v_cndmask_b32 {vr(MASK+r)}, 0, {vr(t0)}, vcc')
    a(f'v_mov_b32 {vr(t0)}, 0x0c0c0c0c')
    a('s_mov_b32 s6, 0x01000100'); a('s_mov_b32 s7, 0x03020302')
    for par in range(2):
        for r in range(4):
            a(f'v_bfi_b32 {vr(SEL+4*par+r)}, {vr(MASK+r)}, s{6+par}, {vr(t0)}')

def warm_code(l0, l1, vLane, t0, t1, n=2):
    L = lab('pc')
    a('s_getpc_b64 s[98:99]'); a(f'{L}:')
    for k in range(n):
        a(f'v_lshlrev_b32 {vr(t0)}, 7, v0')
        if k: a(f'v_add_u32 {vr(t0)}, {32768*k}, {vr(t0)}')
        a(f'v_min_u32 {vr(t0)}, {l1}-{L}, {vr(t0)}')
        a(f'global_load_dword {ar(255-k)}, {vr(t0)}, s[98:99]')

AW = 96

def x_loads(vm, X, vXoff, extra):
    for k in range(4):
        vm.issue(f'buffer_load_dwordx4 {vr(X+4*k,4)}, {vr(vXoff)}, {srd(S_X)}, 0 offen offset:{extra+16*k}', 'x')
    vm.issue(f'buffer_load_dwordx2 {vr(X+16,2)}, {vr(vXoff)}, {srd(S_X)}, 0 offen offset:{extra+64}', 'x')

def wunit_load(vm, jj, vWoff, flags):
    a(f's_mov_b32 s6, {jj*8192}')
    vm.issue(f'buffer_load_dwordx4 {ar(AW+4*jj,4)}, {vr(vWoff)}, {srd(S_W)}, s6 offen {flags}', ('w', jj))

def wunit_mfma(jj, Xs, ACCs, SEL, PA, W=None):
    for s, (X, ACC) in enumerate(zip(Xs, ACCs)):
        P = PA + 4 * ((jj * len(Xs) + s) & 3)
        for r in range(4):
            a(f'v_perm_b32 {vr(P+r)}, {vr(X+jj//2)}, {vr(X+jj//2)}, {vr(SEL+4*(jj&1)+r)}')
        c = '0' if jj == 0 else vr(ACC, 4)
        a(f'v_mfma_f32_16x16x32_bf16 {vr(ACC,4)}, {vr(P,4)}, {ar(AW+4*jj,4) if W is None else vr(W+4*jj,4)}, {c}')

def wo_frag_list(nks, vT, pair=False):
    out = []
    if pair:
        for j in range(4):
            for ks in range(nks):
                for i in range(4):
                    out.append(f'ds_read_b64_tr_b16 {ar(AW+8*(j*nks+ks)+2*i,2)}, {vr(vT + (2 if ks >= 2 else 0))} offset:{(32 * (ks & 1) + 2 * (i & 1) + 16 * (i >> 1)) * 1152 + 8 * j}')
    for t in range(8 if pair else 0, 9):
        for ks in range(nks):
            for sec in range(2):
                reg = vT + (1 if t == 8 else 0) + (2 if ks >= 2 else 0)
                off = (32 * (ks & 1) + 4 * sec) * 1152 + (0 if t == 8 else 128 * (t >> 2) + 8 * (t & 3))
                out.append(f'ds_read_b64_tr_b16 {ar(AW+4*(t*nks+ks)+2*sec,2)}, {vr(reg)} offset:{off}')
    return out
def wo_frag_reads(nks, vT):
    for t in wo_frag_list(nks, vT): a(t)

def mk_wo_tr_addr(vLane, vT, t0, t1, two, pair=False):
    a(f'v_lshrrev_b32 {vr(t0)}, 4, {vr(vLane)}'); a(f'v_lshlrev_b32 {vr(t0)}, 3, {vr(t0)}')
    a(f'v_bfe_u32 {vr(t1)}, {vr(vLane)}, 2, 2'); a(f'v_add_u32 {vr(t0)}, {vr(t0)}, {vr(t1)}')
    a(f'v_mul_u32_u24 {vr(t0)}, 1152, {vr(t0)}')
    a(f's_mul_i32 s6, s{sW}, 288'); a(f'v_add_u32 {vr(t0)}, s6, {vr(t0)}')
    a(f'v_and_b32 {vr(t1)}, 3, {vr(vLane)}')
    a(f'v_lshl_add_u32 {vr(vT)}, {vr(t1)}, 5, {vr(t0)}')
    a(f'v_lshl_add_u32 {vr(vT+1)}, {vr(t1)}, 3, {vr(t0)}'); a(f'v_add_u32 {vr(vT+1)}, 256, {vr(vT+1)}')
    if pair:
        a(f'v_bfe_u32 {vr(t1)}, {vr(vLane)}, 3, 1'); a(f'v_mul_u32_u24 {vr(t1)}, {2304 - 128}, {vr(t1)}'); a(f'v_sub_u32 {vr(vT)}, {vr(vT)}, {vr(t1)}')
        a(f'v_lshrrev_b32 {vr(t1)}, 4, {vr(vLane)}'); a(f'v_mul_u32_u24 {vr(t1)}, 4608, {vr(t1)}'); a(f'v_sub_u32 {vr(vT)}, {vr(vT)}, {vr(t1)}')
    if two:
        a(f'v_add_u32 {vr(vT+2)}, 73728, {vr(vT)}'); a(f'v_add_u32 {vr(vT+3)}, 73728, {vr(vT+1)}')

def gen_A():
    R = cfg.R; NT = 11; RT = R // 4
    assert R % 4 == 0
    V = VAlloc(1)
    vLane = V(); vL16 = V(); vWoff = V(); vXoff = V(); t0 = V(); t1 = V(); vC = V()
    MASK = V(4); SEL = V(8); ACC = V(4, 4); Q = V(4); T = V(4); XX = V(2); S = V(); M = V(); M2 = V(); fN = V()
    X = V(20, 4); PA = V(16, 4); D = X
    P = V(NT); vT = V(4); vY = V(); vY8 = V(); vOw = V(); vOr = V(); vC0 = V(); G = V(8); F = V(4); O = V(6, 2); vTS = V(); vPg = V(); vPo = V()
    KR = V(16 * R, 4)
    QRED = 147456; OT = QRED + 4096
    sJJ, sPair, sB, sRank, sOff, sReal, sBeg, sD, sDn, sTrip, sSt, sBsel = 8, 9, 10, 11, 12, 13, 14, 15, 80, 81, 82, 83
    sMk = 72
    sVo = 34
    STEP = 6 * 4096
    a('A_role:')
    a(f's_sub_u32 s{sJJ}, s{sR}, 2')
    a(f's_cmp_ge_u32 s{sJJ}, 3'); a(f's_cselect_b32 s{sPair}, 1, 0'); a(f's_cselect_b32 s6, 3, 0')
    a(f's_sub_u32 s{sJJ}, s{sJJ}, s6')
    a(f's_lshl_b32 s{sRank}, s{sJJ}, 2'); a(f's_add_u32 s{sRank}, s{sRank}, s{sW}')
    a(f's_cmp_ge_u32 s{sRank}, 6'); a(f's_cselect_b32 s{sBsel}, 1, 0'); a(f's_cselect_b32 s6, -1, 1')
    a(f's_add_u32 s{sRank}, s{sRank}, s6')
    a(f's_cmp_ge_u32 s{sRank}, 6'); a(f's_cselect_b32 s6, 6, 0'); a(f's_sub_u32 s{sRank}, s{sRank}, s6')
    a(f's_lshl_b32 s{sB}, s{sPair}, 1'); a(f's_add_u32 s{sB}, s{sB}, s{sBsel}')
    a(f'v_and_b32 {vr(vLane)}, 63, v0'); a(f'v_lshlrev_b32 {vr(vL16)}, 4, {vr(vLane)}')
    if cfg.warm & 1: warm_code('A_role', 'L_exit', vLane, t0, t1, 1)
    a(f's_sub_u32 s{sBeg}, s{sRank}, 8'); a(f's_lshl_b32 s{sBeg}, s{sBeg}, 12'); a(f's_mov_b32 s{sReal}, s{sBeg}')
    def adv():
        a(f's_add_u32 s{sReal}, s{sReal}, {STEP}'); a(f's_min_u32 s{sOff}, s{sReal}, {OOB}')
    adv()
    a(f's_lshl_b32 s{sSt}, s{sB}, 5'); a(f's_add_u32 s{sSt}, s{sSt}, s{sH}')
    def ring_ld(s, u):
        return f'buffer_load_dwordx4 {vr(KR+16*s+4*u,4)}, {vr(vL16)}, {srd(S_K)}, s{sOff} offen offset:{1024*u} {cfg.kv_flags}'
    early = 0
    if cfg.fast:
        assert cfg.wqpf == 2 and cfg.stag
        vm = VM(a, cfg.vcp)
        oK, oX, oW, oP = 72, 73, 74, 75
        def tail_srd(d, size): a(f's_mov_b32 s{d+2}, {size}'); a(f's_mov_b32 s{d+3}, 0x20000')
        def base_srd(d, p, o): a(f's_add_u32 s{d}, s{p}, s{o}'); a(f's_addc_u32 s{d+1}, s{p+1}, 0')
        def pre_pf():
            a(f's_lshr_b32 s6, s2, 3'); a('s_sub_u32 s6, s6, 8'); a('s_lshl_b32 s6, s6, 2'); a(f's_add_u32 s6, s6, s{sW}')
            a(f's_mul_i32 s6, s6, {6*8192}'); a('s_and_b32 s7, s2, 7'); a('s_lshl_b32 s7, s7, 10'); a(f's_add_u32 s{oP}, s6, s7')
            tail_srd(S_WO, 576 * 8192)
            a(f'v_min_u32 {vr(M)}, 47, {vr(vLane)}'); a(f'v_lshrrev_b32 {vr(M2)}, 3, {vr(M)}'); a(f'v_mul_u32_u24 {vr(M2)}, {8192-1024}, {vr(M2)}')
            a(f'v_lshl_add_u32 {vr(M2)}, {vr(M)}, 7, {vr(M2)}')
        def do_pf():
            a(f's_mov_b64 s[{S_WO}:{S_WO+1}], s[{P_WQ}:{P_WQ+1}]')
            vm.issue(f'buffer_load_dword {vr(KR)}, {vr(M2)}, {srd(S_WO)}, s{oP} offen {cfg.pf_flags}')
        def pre_rest():
            tail_srd(S_V, 0x100000)
            a(f's_mul_i32 s6, s{sPair}, 2304'); a(f's_mul_i32 s7, s{sW}, 288'); a(f's_add_u32 s{oX}, s6, s7')
            a(f's_sub_u32 s{S_X+2}, 4608, s{oX}'); a(f's_mov_b32 s{S_X+3}, 0x20000')
            a(f's_mul_i32 s6, s{sW}, {144*8192}'); a(f's_lshl_b32 s7, s{sH}, 8'); a(f's_add_u32 s{oW}, s6, s7')
            a(f's_sub_u32 s{S_W+2}, {576*8192}, s{oW}'); a(f's_mov_b32 s{S_W+3}, 0x20000')
            a(f'v_lshrrev_b32 {vr(t0)}, 4, {vr(vLane)}'); a(f'v_and_b32 {vr(t1)}, 15, {vr(vLane)}')
            a(f'v_mul_u32_u24 {vr(vWoff)}, {36*8192}, {vr(t0)}'); a(f'v_lshl_add_u32 {vr(vWoff)}, {vr(t1)}, 4, {vr(vWoff)}')
            a(f'v_mul_u32_u24 {vr(vXoff)}, 72, {vr(t0)}'); a(f'v_lshrrev_b32 {vr(t1)}, 3, {vr(t1)}')
            a(f'v_mul_u32_u24 {vr(t1)}, 1152, {vr(t1)}'); a(f'v_add_u32 {vr(vXoff)}, {vr(vXoff)}, {vr(t1)}')
        def do_k(s0=1, s1=cfg.ne):
            if s0 == 1: base_srd(S_K, P_K, oK)
            for sl in range(s0, s1 + 1):
                for u in range(4):
                    vm.issue(ring_ld(sl, u), ('k', sl, u))
                    if cfg.est and (sl, u) in ((1, 0), (2, 3)): stamp(6 if u == 0 else 7)
                adv()
        a(f's_lshl_b32 s{oK}, s{sSt}, 20'); tail_srd(S_K, 0x100000)
        if cfg.fast == 1: pre_pf(); pre_rest(); karg_wait(); do_pf(); do_k()
        elif cfg.fast == 2: pre_pf(); karg_wait(); do_pf(); do_k(); pre_rest()
        elif cfg.fast == 3: karg_wait(); do_k(); pre_pf(); do_pf(); pre_rest()
        elif cfg.fast == 5: karg_wait(); do_k(1, 2); pre_pf(); do_pf(); do_k(3); pre_rest()
        else: pre_pf(); pre_rest(); karg_wait(); do_k(); do_pf()
        base_srd(S_X, P_AX, oX); x_loads(vm, X, vXoff, 0)
        base_srd(S_V, P_V, oK); base_srd(S_W, P_WQ, oW)
        if cfg.est == 2: a('s_waitcnt vmcnt(8)'); stamp(9)
        early = 4 * cfg.ne
    else:
        a(f's_lshl_b32 s6, s{sSt}, 20')
        karg_wait()
        mk_srd(S_K, P_K, 's6', 0x100000); mk_srd(S_V, P_V, 's6', 0x100000)
        a(f's_mul_i32 s6, s{sPair}, 2304'); a(f's_mul_i32 s7, s{sW}, 288'); a('s_add_u32 s6, s6, s7')
        a(f's_sub_u32 s7, 4608, s6')
        mk_srd(S_X, P_AX, 's6', 's7')
        a(f's_mul_i32 s6, s{sW}, {144*8192}'); a(f's_lshl_b32 s7, s{sH}, 8'); a('s_add_u32 s6, s6, s7')
        a(f's_sub_u32 s7, {576*8192}, s6')
        mk_srd(S_W, P_WQ, 's6', 's7')
        if cfg.askip & 1: a(f's_mov_b32 s{S_W+2}, 0')
        a(f'v_lshrrev_b32 {vr(t0)}, 4, {vr(vLane)}'); a(f'v_and_b32 {vr(t1)}, 15, {vr(vLane)}')
        a(f'v_mul_u32_u24 {vr(vWoff)}, {36*8192}, {vr(t0)}'); a(f'v_lshl_add_u32 {vr(vWoff)}, {vr(t1)}, 4, {vr(vWoff)}')
        a(f'v_mul_u32_u24 {vr(vXoff)}, 72, {vr(t0)}'); a(f'v_lshrrev_b32 {vr(t1)}, 3, {vr(t1)}')
        a(f'v_mul_u32_u24 {vr(t1)}, 1152, {vr(t1)}'); a(f'v_add_u32 {vr(vXoff)}, {vr(vXoff)}, {vr(t1)}')
        vm = VM(a, cfg.vcp)
        a(f'v_mov_b32 {vr(vC)}, {8192-1024}')
        if cfg.wqpf:
            a('s_lshr_b32 s6, s2, 3'); a('s_sub_u32 s6, s6, 8'); a('s_lshl_b32 s6, s6, 2'); a(f's_add_u32 s6, s6, s{sW}')
            a(f's_mul_i32 s6, s6, {6*8192}'); a('s_and_b32 s7, s2, 7'); a('s_lshl_b32 s7, s7, 10'); a('s_add_u32 s6, s6, s7')
            mk_srd(S_WO, P_WQ, None, 576 * 8192)
            if cfg.wqpf == 1:
                for k in range(6):
                    vm.issue(f'buffer_load_dwordx4 {vr(KR+4*(k&3),4)}, {vr(vL16)}, {srd(S_WO)}, s6 offen')
                    if k < 5: a('s_add_u32 s6, s6, 8192')
            else:
                a(f'v_min_u32 {vr(M)}, 47, {vr(vLane)}'); a(f'v_lshrrev_b32 {vr(M2)}, 3, {vr(M)}'); a(f'v_lshlrev_b32 {vr(M)}, 7, {vr(M)}')
                a(f'v_mad_u32_u24 {vr(M2)}, {vr(M2)}, {vr(vC)}, {vr(M)}')
                vm.issue(f'buffer_load_dword {vr(KR)}, {vr(M2)}, {srd(S_WO)}, s6 offen {cfg.pf_flags}')
        x_loads(vm, X, vXoff, 0)
    stream = [('k', s, u) for s in range(1, R) for u in range(4)]
    if cfg.wmix: stream += [('v', s, u) for s in range(1, cfg.npv + 1) for u in range(4)]
    order = stream[:cfg.kfirst]; wi = 0; si = cfg.kfirst
    while wi < 36 or si < len(stream):
        for _ in range(cfg.wq_per):
            if wi < 36: order.append(('w', wi)); wi += 1
        for _ in range(cfg.st_per):
            if si < len(stream): order.append(stream[si]); si += 1
    NPV = cfg.npv; V0 = NPV + 1 if NPV else 0
    def avs(s): return 16 * (s - 1) if s < 7 else 240
    if not cfg.wmix: order += [('v', s, u) for s in range(1, NPV + 1) for u in range(4)]
    def issue(o):
        if cfg.pth and o[0] != 'w': a(f's_waitcnt vmcnt({cfg.pth-1})')
        if o[0] == 'w': wunit_load(vm, o[1], vWoff, cfg.wq_flags)
        elif o[0] == 'v':
            if o[2] == 0: a(f's_add_u32 s{sVo}, s{sBeg}, {o[1]*STEP}'); a(f's_min_u32 s{sVo}, s{sVo}, {OOB}')
            vm.issue(f'buffer_load_dwordx4 {ar(avs(o[1])+4*o[2],4)}, {vr(vL16)}, {srd(S_V)}, s{sVo} offen offset:{1024*o[2]} {cfg.kv_flags}', o)
        else:
            vm.issue(ring_ld(o[1], o[2]), o)
            if o[2] == 3: adv()
    pos = 0
    def wo_pf():
        a(f's_mul_i32 s6, s{sH}, 147456'); mk_srd(S_WO, P_WO, 's6', 147456)
        a(f's_sub_u32 s6, s{sR}, 2'); a('s_lshl_b32 s6, s6, 2'); a(f's_add_u32 s6, s6, s{sW}'); a('s_mul_i32 s6, s6, 6144')
        vm.issue(f'buffer_load_dword {vr(KR+1)}, {vr(M)}, {srd(S_WO)}, s6 offen')
    if cfg.stag:
        sp = [int(x) for x in cfg.stag.split(',')]
        stream = [('k', s, u) for s in range(1, R) for u in range(4)] + [('v', s, u) for s in range(1, NPV + 1) for u in range(4)]
        order = stream[:sp[-1]] + [('w', j) for j in range(36)] + stream[sp[-1]:]
        vm.limit = 1000
        assert sp[0] >= early
        for idx in range(early, sp[-1] + 1):
            if idx in sp:
                Ls = lab('nowq')
                a(f's_cmp_lg_u32 s{sJJ}, {sp.index(idx)}'); a(f's_cbranch_scc1 {Ls}')
                a('s_waitcnt vmcnt(20)')
                n0 = len(vm.q)
                for j in range(36): wunit_load(vm, j, vWoff, cfg.wq_flags)
                if idx != sp[-1]: del vm.q[n0:]
                a(f'{Ls}:')
            if idx == sp[-1]: break
            if idx % 4 == 0: a('s_waitcnt vmcnt(54)')
            if idx == cfg.wopf_at and cfg.dma_mode == 3: wo_pf()
            issue(stream[idx])
            if cfg.est and idx in (0, 7): stamp(6 if idx == 0 else 7)
            if cfg.est == 2 and idx == 7: a('s_waitcnt vmcnt(3)'); stamp(9)
        pos = sp[-1] + 36
        vm.limit = 63; vm.done = max(0, len(vm.q) - 60)
    while pos < min(56 - 6 * cfg.wqpf, len(order)):
        issue(order[pos]); pos += 1
    if cfg.dma_mode == 3 and not cfg.stag: wo_pf()
    stamp(1)
    mk_srd(S_WS, P_WS, None, WS_USED); mk_srd(S_DBG, P_DBG, None, 256)
    a(f's_mul_i32 s6, s{sH}, 147456'); mk_srd(S_WO, P_WO, 's6', 147456)
    mk_masks(vLane, MASK, SEL, t0, t1)
    a(f'v_mov_b32 {vr(vC)}, {f2u(SCALE):#x}')
    a(f'v_mov_b32 {vr(P+NT-1)}, 0xff800000')
    mk_wo_tr_addr(vLane, vT, t0, t1, True, cfg.smf)
    a(f's_mul_i32 s{sSt}, s{sSt}, {cfg.astr}'); a(f's_add_u32 s{sSt}, s{sSt}, {AST}')
    a(f's_mov_b64 s[{sMk}:{sMk+1}], 0')
    a(f's_cmp_ge_u32 s{sRank}, 2'); a(f's_cselect_b32 s{sMk+2}, 0x22222222, 0'); a(f's_mov_b32 s{sMk+3}, s{sMk+2}')
    for j in (2, 3):
        a(f's_mov_b32 s{sMk+2*j}, {0x11111111 << j:#x}'); a(f's_mov_b32 s{sMk+2*j+1}, s{sMk+2*j}')
    a(f'v_bfe_u32 {vr(t0)}, {vr(vLane)}, 4, 1')
    a(f's_lshl_b32 s6, s{sPair}, 7'); a(f's_lshl_b32 s7, s{sH}, 1'); a('s_add_u32 s6, s6, s7'); a(f's_add_u32 s6, s6, s{sJJ}')
    a(f'v_mul_u32_u24 {vr(t1)}, 63, {vr(t0)}'); a(f'v_add_u32 {vr(t1)}, s6, {vr(t1)}')
    a(f'v_mul_u32_u24 {vr(vY)}, {1152 if cfg.y16 else 2304}, {vr(t1)}'); a(f'v_add_u32 {vr(vY)}, {YA}, {vr(vY)}')
    if cfg.cell: a(f'v_lshrrev_b32 {vr(t1)}, 3, {vr(t1)}'); a(f'v_mul_u32_u24 {vr(t1)}, {SA - 18432}, {vr(t1)}'); a(f'v_add_u32 {vr(vY)}, {vr(vY)}, {vr(t1)}')
    a(f'v_sub_u32 {vr(t1)}, s{sJJ}, {vr(t0)}')
    a(f'v_cmp_lt_u32 vcc, 1, {vr(t1)}')
    a(f'v_mov_b32 {vr(t1)}, {OOB}')
    a(f'v_cndmask_b32 {vr(vY)}, {vr(vY)}, {vr(t1)}, vcc')
    if cfg.y16:
        a(f'v_and_b32 {vr(M)}, 15, {vr(vLane)}'); a(f'v_lshl_add_u32 {vr(vY)}, {vr(M)}, 4, {vr(vY)}')
        a(f's_lshl_b32 s6, s{sW}, 5'); a(f'v_add_u32 {vr(vY8)}, s6, {vr(vY)}'); a(f's_lshl_b32 s6, s{sW}, 8'); a(f'v_add_u32 {vr(vY)}, s6, {vr(vY)}')
    else:
        a(f's_mul_i32 s6, s{sW}, 576')
        a(f'v_add_u32 {vr(vY)}, s6, {vr(vY)}')
        a(f'v_and_b32 {vr(M)}, 3, {vr(vLane)}'); a(f'v_bfe_u32 {vr(M2)}, {vr(vLane)}, 2, 2')
        a(f'v_lshl_add_u32 {vr(M)}, {vr(M)}, 2, {vr(M2)}'); a(f'v_lshl_add_u32 {vr(vY8)}, {vr(M)}, 2, {vr(vY)}')
        a(f'v_and_b32 {vr(M)}, 15, {vr(vLane)}'); a(f'v_lshrrev_b32 {vr(M2)}, 5, {vr(vLane)}')
        a(f'v_lshl_add_u32 {vr(M)}, {vr(M2)}, 4, {vr(M)}'); a(f'v_lshl_add_u32 {vr(vY)}, {vr(M)}, 4, {vr(vY)}')
    for r in range(4):
        a(f's_lshl_b32 s6, s{sJJ}, 2'); a(f's_add_u32 s6, s6, {r}'); a('s_cmp_ge_u32 s6, 6'); a('s_cselect_b32 s6, 1, 0')
        a(f'v_cmp_eq_u32 vcc, s6, {vr(t0)}')
        a(f'v_cndmask_b32 {vr(F+r)}, 0, 1.0, vcc')
    if cfg.smf:
        a(f'v_bfe_i32 {vr(M)}, {vr(vLane)}, 3, 1'); a(f'v_and_b32 {vr(M)}, 0xaaaaaaaa, {vr(M)}'); a(f'v_or_b32 {vr(G+7)}, 0x44444444, {vr(M)}')
    else: a(f'v_cmp_gt_u32 vcc, 32, {vr(vLane)}')
    for r in range(0 if cfg.smf else 4):
        a(f'v_cndmask_b32 {vr(G+r)}, 0, {vr(F+r)}, vcc'); a(f'v_cndmask_b32 {vr(G+4+r)}, {vr(F+r)}, 0, vcc')
    a(f'v_and_b32 {vr(M)}, 15, {vr(vLane)}'); a(f'v_lshlrev_b32 {vr(M)}, 4, {vr(M)}')
    a(f'v_lshl_add_u32 {vr(vOw)}, {vr(t0)}, 3, {vr(M)}')
    a(f's_lshl_b32 s6, s{sW}, 8'); a(f's_add_u32 s6, s6, {OT}'); a(f'v_add_u32 {vr(vOw)}, s6, {vr(vOw)}')
    a(f'v_and_b32 {vr(M)}, 3, {vr(vLane)}'); a(f'v_lshlrev_b32 {vr(M)}, 8, {vr(M)}')
    a(f'v_lshrrev_b32 {vr(M2)}, 4, {vr(vLane)}'); a(f'v_lshl_add_u32 {vr(vOr)}, {vr(M2)}, 4, {vr(M)}')
    a(f'v_add_u32 {vr(vOr)}, {OT}, {vr(vOr)}')
    a(f's_mul_i32 s{sD}, s{sW}, {4096 if cfg.dma_mode == 1 else 36864}')
    a(f's_mov_b32 s{sDn}, {(-cfg.dma_t0) & 0xffffffff:#x}'); a(f's_mov_b32 s{sTrip}, 0')
    if cfg.dma_mode == 3: a(f's_mul_i32 s{sDn}, s{sJJ if cfg.dgrp == 3 else sR}, {cfg.dstep}'); a(f's_add_u32 s{sDn}, s{sDn}, {cfg.dma_t0 - (0 if cfg.dgrp == 3 else 2 * cfg.dstep)}')
    if cfg.dyn:
        a(f's_lshl_b32 s6, s{sH}, 1'); a(f's_add_u32 s6, s6, s{sPair}'); a(f's_mul_i32 s6, s6, {cfg.psp//4}'); a(f's_add_u32 s6, s6, s{sJJ}')
        a('s_lshl_b32 s6, s6, 2'); a(f's_add_u32 s6, s6, {PROG}')
        if cfg.pxs != 8 * cfg.psp: a(f's_lshr_b32 s7, s{sH}, 2'); a(f's_mul_i32 s7, s7, {cfg.pxs - 8 * cfg.psp}'); a('s_add_u32 s6, s6, s7')
        a(f'v_mov_b32 {vr(vPo)}, {OOB}'); a(f'v_mov_b32 {vr(vPg)}, s6'); a('v_cmp_eq_u32 vcc, 0, v0')
        a(f'v_cndmask_b32 {vr(vPo)}, {vr(vPo)}, {vr(vPg)}, vcc'); a(f'v_mov_b32 {vr(vPg)}, {0 if cfg.ctl else cfg.hoff}')
    vTh = V(4); cTh, cTo, cPo, cTr = 26, 27, 28, 29
    if cfg.ctl:
        a(f's_add_u32 s{cTr}, s6, {TFO}'); a(f's_mov_b32 s{cTo}, {OOB}'); a(f's_mov_b32 s{cPo}, {OOB}'); a(f's_mov_b32 s{cTh}, 0')
        for r in range(4): a(f'v_mov_b32 {vr(vTh+r)}, 0')
    def ctl(s, iss, per, rd=True, ld=True):
        if s % 2 == 0 and rd:
            a(f'v_readfirstlane_b32 s{cTh}, {vr(vTh + (s + 8 - cfg.fd) // 2 % 4)}')
            a(f's_cmp_gt_u32 s{cTh}, 2'); a(f's_cselect_b32 s{cTh}, 0, s{cTh}')
        if s % per == per - 1:
            a(f'v_add_u32 {vr(vPg)}, {per}, {vr(vPg)}')
            a(f's_cmp_lg_u32 s{cTh}, 0')
            a(f's_cselect_b32 s6, {cfg.toff}, 0'); a(f'v_add_u32 {vr(t0)}, s6, {vr(vPg)}')
            iss(f'buffer_store_dword {vr(t0)}, {vr(vPo)}, {srd(S_WS)}, s{cPo} offen', None)
        if s % 2 == 0 and ld: iss(f'buffer_load_dword {vr(vTh + s // 2 % 4)}, off, {srd(S_WS)}, s{cTo} {cfg.tf_flags}', 't')
        if cfg.stamps: a(f's_mul_i32 s6, s{cTh}, s{cTh}'); a('s_mul_i32 s6, s6, s6'); a('s_mul_i32 s6, s6, s6'); a(f's_add_u32 s98, s98, s6')
    def hold(n):
        Ls = lab('thr')
        a(f's_cmp_eq_u32 s{cTh}, 0'); a(f's_cbranch_scc1 {Ls}'); a(f's_waitcnt vmcnt({n})')
        a(f's_cmp_eq_u32 s{cTh}, 1'); a(f's_cbranch_scc1 {Ls}'); a(f's_waitcnt vmcnt({n - cfg.lv2})')
        a(f'{Ls}:')
    def prog(g, per):
        if cfg.dyn and g % per == per - 1:
            a(f'v_add_u32 {vr(vPg)}, {per}, {vr(vPg)}')
            a(f'buffer_store_dword {vr(vPg)}, {vr(vPo)}, {srd(S_WS)}, 0 offen {cfg.ps_flags}')
            return True
    a(f'v_and_b32 {vr(M)}, 15, {vr(vLane)}'); a(f'v_lshlrev_b32 {vr(M)}, 5, {vr(M)}')
    a(f'v_lshl_add_u32 {vr(M2)}, {vr(t0)}, 4, {vr(M)}')
    a(f'v_lshrrev_b32 {vr(t1)}, 5, {vr(vLane)}'); a(f'v_lshl_add_u32 {vr(M2)}, {vr(t1)}, 9, {vr(M2)}')
    a(f's_lshl_b32 s6, s{sW}, 10'); a(f's_add_u32 s6, s6, {QRED}'); a(f'v_add_u32 {vr(M2)}, s6, {vr(M2)}')
    a(f's_lshl_b32 s6, s{sBsel}, 9'); a(f's_add_u32 s6, s6, {QRED}'); a(f'v_add_u32 {vr(M)}, s6, {vr(M)}')
    for jj in range(36):
        while ('w', jj) not in vm.q:
            issue(order[pos]); pos += 1
        vm.wait(('w', jj))
        wunit_mfma(jj, [X], [ACC], SEL, PA)
        k = 0
        while pos < len(order) - cfg.vhold and vm.after(('w', jj)) < 60 and (k < 1 or order[pos][0] != 'v' or jj == 35 or cfg.wmix):
            issue(order[pos]); pos += 1; k += 1
    a(f'ds_write_b128 {vr(M2)}, {vr(ACC,4)}')
    while pos < len(order):
        issue(order[pos]); pos += 1
    a('s_waitcnt lgkmcnt(0)'); a('s_barrier')
    for w in range(4):
        a(f'ds_read_b128 {vr(D+8*w,4)}, {vr(M)} offset:{1024*w}')
        a(f'ds_read_b128 {vr(D+8*w+4,4)}, {vr(M)} offset:{1024*w+16}')
    for r in range(4): a(f'v_mov_b32 {vr(ACC+r)}, 0')
    a('s_waitcnt lgkmcnt(0)')
    for e in range(8):
        a(f'v_add_f32 {vr(D+e)}, {vr(D+e)}, {vr(D+8+e)}'); a(f'v_add_f32 {vr(D+16+e)}, {vr(D+16+e)}, {vr(D+24+e)}')
    for e in range(8): a(f'v_add_f32 {vr(D+e)}, {vr(D+e)}, {vr(D+16+e)}')
    for k in range(4): a(f'v_cvt_pk_bf16_f32 {vr(Q+k)}, {vr(D+2*k)}, {vr(D+2*k+1)}')
    stamp(2)
    NW = 4 * R - 4
    if cfg.ctl:
        ex = lambda s: (s % cfg.kper == cfg.kper - 1) + (s % 2 == 0)
        NW = min(min(28 + sum(ex(s + k) for k in range(1, 8)) for s in range(8)), min(4 * cfg.fd + sum(ex(s + k) for k in range(1, cfg.fd)) for s in range(0, 8, 2)))
    def dma(s, vtrip=None):
        if (s % 4) not in {1: (0,), 2: (0, 2), 3: (0, 1, 2), 4: (0, 1, 2, 3)}[cfg.dma_per]: return
        Ls = lab('nodma')
        if cfg.dma_mode == 3:
            if s % 4: return
            a(f's_cmp_lg_u32 s{sDn}, s{sTrip}'); a(f's_cbranch_scc1 {Ls}')
            a('s_waitcnt vmcnt(24)')
            for k in range(9):
                a(f's_mov_b32 m0, s{sD}')
                for u in range(4):
                    a(f'buffer_load_dwordx4 {vr(vL16)}, {srd(S_WO)}, s{sD} offen offset:{1024*u} {cfg.wo_flags} lds')
                a(f's_add_u32 s{sD}, s{sD}, 4096')
            a(f'{Ls}:')
            return
        if cfg.dma_mode:
            if s % 4: return
            a(f's_cmp_ge_u32 s{sDn}, {0 if cfg.nodma else 36}'); a(f's_cbranch_scc1 {Ls}')
            for u in range(4):
                a(f's_add_u32 m0, s{sD}, {1024*u}') if cfg.dma_mode == 9 else None
                if u == 0: a(f's_mov_b32 m0, s{sD}')
                a(f'buffer_load_dwordx4 {vr(vL16)}, {srd(S_WO)}, s{sD} offen offset:{1024*u} {cfg.wo_flags} lds')
            a(f's_add_u32 s{sD}, s{sD}, {16384 if cfg.dma_mode == 1 else 4096}')
            a(f'{Ls}:')
            a(f's_add_u32 s{sDn}, s{sDn}, 4')
            return
        if cfg.dmask:
            if vtrip is not None:
                if not (cfg.dmask >> vtrip) & 1: return
            else: a(f's_bitcmp0_b32 s{sDn}, s{sTrip}'); a(f's_cbranch_scc1 {Ls}')
            a(f's_mov_b32 m0, s{sD}')
            for u in range(cfg.dmul):
                a(f'buffer_load_dwordx4 {vr(vL16)}, {srd(S_WO)}, s{sD} offen offset:{1024*u} {cfg.wo_flags} lds')
            a(f's_add_u32 s{sD}, s{sD}, {1024*cfg.dmul}')
            a(f'{Ls}:')
            return
        a(f's_cmp_ge_u32 s{sDn}, {0 if cfg.nodma else 36}'); a(f's_cbranch_scc1 {Ls}')
        a(f's_mov_b32 m0, s{sD}')
        a(f'buffer_load_dwordx4 {vr(vL16)}, {srd(S_WO)}, s{sD} offen {cfg.wo_flags} lds')
        a(f's_add_u32 s{sD}, s{sD}, 1024')
        a(f'{Ls}:')
        a(f's_add_u32 s{sDn}, s{sDn}, 1')
    def shiftP():
        for k in range(NT - 1): a(f'v_mov_b32 {vr(P+k)}, {vr(P+k+1)}')
    dma_end = -(-(cfg.dma_t0 + 36) // cfg.dma_per) * 4
    if cfg.dmask:
        assert bin(cfg.dmask).count('1') * cfg.dma_per * cfg.dmul == 36
        dma_end = 4 * cfg.dmask.bit_length()
        a(f's_mov_b32 s{sDn}, {cfg.dmask}')
    if cfg.dma_mode == 3:
        dma_end = 4 * (cfg.dma_t0 + (cfg.dgrp - 1) * cfg.dstep) + 1
        assert dma_end <= 4 * NT
    assert dma_end + R <= 4 * NT + cfg.ev_slot - V0
    a(f's_add_u32 s{sBeg}, s{sBeg}, {V0*STEP}')
    a('K_loop:')
    for s in range(R):
        K = KR + 16 * s; j = s % 4
        if j == 0:
            if (NT - RT) % RT == s // 4:
                a(f's_cmp_eq_u32 s{sTrip}, {NT-RT}')
                a(f's_cselect_b32 s{S_K}, s{S_V}, s{S_K}'); a(f's_cselect_b32 s{S_K+1}, s{S_V+1}, s{S_K+1}')
                a(f's_cselect_b32 s{sReal}, s{sBeg}, s{sReal}'); a(f's_min_u32 s{sOff}, s{sReal}, {OOB}')
            if cfg.c0_trip % RT == s // 4 and cfg.c0x != 3:
                Ls = lab('c0')
                a(f's_cmp_lg_u32 s{sTrip}, {cfg.c0_trip}'); a(f's_cbranch_scc1 {Ls}')
                a(f'buffer_load_dword {vr(vC0)}, off, {srd(S_DBG)}, 0 offset:{C0} sc1')
                a(f'{Ls}:')
        a(f's_waitcnt vmcnt({NW})')
        for k in range(4):
            for u in range(4):
                c = '0' if k == 0 else vr(T + u)
                a(f'v_dot2_f32_bf16 {vr(T+u)}, {vr(K+4*u+k)}, {vr(Q+k)}, {c}')
        if cfg.ctl: ctl(s, lambda t, g: a(t), cfg.kper)
        for u in range(4):
            if cfg.vck: a(f's_waitcnt vmcnt({cfg.vck-1})')
            if cfg.ctl and u % 2 == 0: hold(cfg.thrk)
            a(ring_ld(s, u))
        adv(); dma(s)
        reduce4(T, XX, S)
        a(f'v_cndmask_b32 {vr(P+NT-1)}, {vr(P+NT-1)}, {vr(S)}, s[{sMk+2*j}:{sMk+2*j+1}]')
        if j == 3:
            if cfg.trips:
                a('s_memrealtime s[100:101]'); a('s_waitcnt lgkmcnt(0)'); a(f's_mov_b32 m0, s{sTrip}'); a(f'v_writelane_b32 {vr(vTS)}, s100, m0')
            if cfg.ctl and s == 7:
                assert cfg.c0_trip == 0
                Ls = lab('c0ok')
                a(f's_cmp_lg_u32 s{sTrip}, 1'); a(f's_cbranch_scc1 {Ls}')
                a('s_waitcnt vmcnt(36)')
                ensure(C0, C0N, vC0)
                if not cfg.cdbg & 2: a(f's_mov_b32 s{cPo}, 0')
                if not cfg.cdbg & 1: a(f's_mov_b32 s{cTo}, s{cTr}')
                if cfg.tfw: a(f's_mov_b32 s6, {TFO}'); a(f'buffer_store_dword {vr(vLane)}, {vr(vPo)}, {srd(S_WS)}, s6 offen')
                a(f'{Ls}:')
            a(f's_add_u32 s{sTrip}, s{sTrip}, 1')
            if (NT - 1) % RT == s // 4:
                a(f's_cmp_eq_u32 s{sTrip}, {NT}'); a('s_cbranch_scc1 A_mid')
            shiftP()
            if s == 3:
                a(f's_lshr_b64 s[{sMk}:{sMk+1}], s[{sMk+4}:{sMk+5}], 2'); a(f's_lshr_b64 s[{sMk+2}:{sMk+3}], s[{sMk+4}:{sMk+5}], 1')
    a('s_branch K_loop')
    a('A_mid:')
    stamp(5)
    if cfg.cdbg & 2: a(f's_mov_b32 s{cPo}, 0')
    a(f'v_max3_f32 {vr(M)}, {vr(P)}, {vr(P+1)}, {vr(P+2)}')
    for k in range(3, NT, 2): a(f'v_max3_f32 {vr(M)}, {vr(M)}, {vr(P+k)}, {vr(P+k+1)}')
    for sh in (8, 4, 2, 1): a(f'v_max_f32_dpp {vr(M)}, {vr(M)}, {vr(M)} row_ror:{sh} {DPPF}')
    allred_rows(M, M2, 'v_max_f32')
    a(f'v_mul_f32 {vr(XX)}, {vr(M)}, {vr(vC)}')
    for k in range(NT): a(f'v_fma_f32 {vr(P+k)}, {vr(P+k)}, {vr(vC)}, -{vr(XX)}')
    for k in range(NT): a(f'v_exp_f32 {vr(P+k)}, {vr(P+k)}')
    a(f'v_add_f32 {vr(M)}, {vr(P)}, {vr(P+1)}')
    for k in range(2, NT): a(f'v_add_f32 {vr(M)}, {vr(M)}, {vr(P+k)}')
    for k in range(NT): a(f'v_cvt_pk_bf16_f32 {vr(P+k)}, {vr(P+k)}, {vr(P+k)}')
    for sh in (8, 4, 2, 1): a(f'v_add_f32_dpp {vr(M)}, {vr(M)}, {vr(M)} row_ror:{sh} {DPPF}')
    allred_rows(M, M2, 'v_add_f32')
    a(f'v_min_u32 {vr(XX)}, -2, {vr(XX)}'); a(f'v_min_u32 {vr(XX+1)}, -2, {vr(M)}')
    if not cfg.noB and not cfg.ctl: ensure(C0, C0N, vC0)
    a(f's_lshl_b32 s6, s{sRank}, 3'); a(f's_add_u32 s6, s6, s{sSt}')
    a('s_mov_b64 exec, 1')
    for _ in range(4 if cfg.dup & 4 else 1): a(f'buffer_store_dwordx2 {vr(XX,2)}, off, {srd(S_WS)}, s6 sc1')
    a('s_mov_b64 exec, -1')
    ST = X
    def st_loads(iss):
        for k in range(3): iss(f'buffer_load_dwordx4 {vr(ST+4*k,4)}, off, {srd(S_WS)}, s{sSt} offset:{16*k} sc1')
    def pa(i, dst=PA):
        for u in range(4):
            for r in range(4):
                a(f'v_and_b32_dpp {vr(dst+4*u+r)}, {vr(P+i//4)}, {vr(MASK+r)} row_newbcast:{4*u+i%4} {DPPF}')
    def ev2():
        vm.wait('st')
        a(f's_mov_b32 s7, {cfg.spin_max}')
        a('A_ev2_chk:')
        umax_tree(M, range(ST, ST + 12))
        a(f'v_cmp_eq_u32 vcc, -1, {vr(M)}')
        a('s_cbranch_vccz A_ev2_ok')
        st_loads(a)
        a('s_waitcnt vmcnt(0)')
        a('s_sub_u32 s7, s7, 1'); a('s_cmp_lg_u32 s7, 0'); a('s_cbranch_scc1 A_ev2_chk')
        a('A_ev2_ok:')
        a(f'v_max3_f32 {vr(M)}, {vr(ST)}, {vr(ST+2)}, {vr(ST+4)}'); a(f'v_max3_f32 {vr(M2)}, {vr(ST+6)}, {vr(ST+8)}, {vr(ST+10)}')
        a(f'v_max_f32 {vr(M)}, {vr(M)}, {vr(M2)}')
        for k in range(6): a(f'v_sub_f32 {vr(ST+2*k)}, {vr(ST+2*k)}, {vr(M)}')
        a(f'v_sub_f32 {vr(fN)}, {vr(XX)}, {vr(M)}')
        for k in range(6): a(f'v_exp_f32 {vr(ST+2*k)}, {vr(ST+2*k)}')
        a(f'v_exp_f32 {vr(fN)}, {vr(fN)}')
        a(f'v_mul_f32 {vr(M)}, {vr(ST)}, {vr(ST+1)}')
        for k in range(1, 6): a(f'v_fma_f32 {vr(M)}, {vr(ST+2*k)}, {vr(ST+2*k+1)}, {vr(M)}')
        a(f'v_rcp_f32 {vr(M)}, {vr(M)}')
        a(f'v_mul_f32 {vr(fN)}, {vr(fN)}, {vr(M)}')
    extra = list(range(1, NPV + 1)); frags = wo_frag_list(4, vT, cfg.smf)
    NS = 4 * NT
    vm = VM(a)
    vm.q = [(j, u) for j in range(V0, V0 + R) for u in range(4)] + [None]
    if cfg.ctl:
        assert V0 == 8 and R == 8
        vm.q = [x for j in range(V0, V0 + R) for x in [None] * (j % cfg.kper == cfg.kper - 1) + ([('t', j + cfg.fd)] if j % 2 == 0 else []) + [(j, u) for u in range(4)]] + [None]
    def stage(j): return (NS + j - V0) % R
    def comp(i, pre=None):
        K = KR + 16 * stage(i)
        if pre is None: pa(i); pre = PA
        if i < NS - 1: vm.wait((i, 3))
        for u in range(4):
            vm.wait((i, u))
            a(f'v_mfma_f32_16x16x32_bf16 {vr(ACC,4)}, {vr(pre+4*u,4)}, {vr(K+4*u,4)}, {vr(ACC,4)}')
        if i % 4 == 3 and cfg.trips:
            a('s_memrealtime s[100:101]'); a('s_waitcnt lgkmcnt(0)'); a(f'v_writelane_b32 {vr(vTS)}, s100, {NT + (i-V0)//4}')
    c = V0
    sTh, sTo = sD, sDn
    if cfg.thr:
        assert dma_end <= NS
        a(f's_lshr_b32 s{sTo}, s{sH}, 2'); a(f's_lshl_b32 s{sTo}, s{sTo}, 7'); a(f's_add_u32 s{sTo}, s{sTo}, {PROG + 0x4000}')
        if cfg.tstat: a('s_and_b32 s6, s2, 7'); a(f's_lshr_b32 s{sTh}, {cfg.tstat}, s6'); a(f's_and_b32 s{sTh}, s{sTh}, 1')
    if cfg.tst:
        assert dma_end <= NS and not cfg.thr
        tb = [int(x) for x in str(cfg.tst).split(',')]; assert len(tb) == 8
        pk = lambda l: sum(x << 8 * k for k, x in enumerate(l))
        a(f's_mov_b32 s6, {pk(tb[:4]):#x}'); a(f's_mov_b32 s7, {pk(tb[4:]):#x}')
        a(f's_and_b32 s{sTh}, s2, 7'); a(f's_lshl_b32 s{sTh}, s{sTh}, 3'); a(f's_lshr_b64 s[6:7], s[6:7], s{sTh}'); a(f's_and_b32 s{sTh}, s6, 255')
    for m in range(V0 + R, NS):
        n = m - R - V0; i = m - R
        if m == cfg.st_m: st_loads(lambda t: vm.issue(t, 'st'))
        if m == cfg.ev2_m: ev2()
        if m == cfg.ytouch: vm.issue(f'buffer_load_dword {vr(vC0)}, {vr(vY8)}, {srd(S_WS)}, 0 offen offset:512 sc1')
        dist = max(cfg.dend, min(R, R - (m - cfg.dm0 + cfg.dsl - 1) // cfg.dsl))
        first = True
        while c <= m - dist:
            if not first: a('s_nop 3')
            comp(c); c += 1; first = False
        if cfg.ctl:
            if m == cfg.tm1: a(f's_mov_b32 s{cTh}, 0')
            if m % 2 == 0 and m < cfg.tm1: vm.wait(('t', m))
            ctl((m - 12) % 8, lambda t, g: vm.issue(t, g and (g, m + cfg.fd)), cfg.vper, m < cfg.tm1, m + cfg.fd < cfg.tm1)
        elif prog(n, cfg.pper): vm.q.append(None)
        th = cfg.thr and cfg.tm0 <= m < cfg.tm1
        if th:
            if ('t', m) in vm.q:
                vm.wait(('t', m)); a(f'v_readfirstlane_b32 s{sTh}, {vr(vTh + m // cfg.tper % 4)}')
            a(f's_cmp_eq_u32 s{sTh}, 1')
        ts = cfg.tst and min(tb) <= m < cfg.tm1
        if ts: a(f's_cmp_le_u32 s{sTh}, {m}')
        if cfg.thr and not cfg.tstat and cfg.tm0 <= m + cfg.tdist < cfg.tm1 and (m + cfg.tdist - cfg.tm0) % cfg.tper == 0:
            vm.issue(f'buffer_load_dword {vr(vTh + (m + cfg.tdist) // cfg.tper % 4)}, off, {srd(S_WS)}, s{sTo} sc1', ('t', m + cfg.tdist))
        for u in range(4):
            if th and u % 2 == 0:
                Ls = lab('thr')
                a(f's_cbranch_scc0 {Ls}'); a(f's_waitcnt vmcnt({cfg.thr})'); a(f'{Ls}:')
            if ts and u % cfg.tsp == 0:
                Ls = lab('thr')
                a(f's_cbranch_scc0 {Ls}'); a(f's_waitcnt vmcnt({cfg.tsv})'); a(f'{Ls}:')
            if cfg.ctl and m < cfg.tm1 and u % 2 == 0: hold(cfg.ctl)
            if cfg.vth and m >= cfg.vth0: vm.limit = cfg.vth if m < cfg.vth1 else 63
            vm.issue(ring_ld(stage(m), u), (m, u))
        if th and cfg.stamps: a(f's_addc_u32 s98, s98, 0')
        adv()
        if NS + n < dma_end: dma(n, NT + n // 4)
        if i == cfg.ev_slot - 1: a('s_barrier')
        if i >= cfg.ev_slot - 1:
            for t in frags[:cfg.ev_per]: a(t)
            del frags[:cfg.ev_per]
        if extra and n % cfg.xper == 1:
            e = extra.pop(0)
            pa(e)
            for u in range(4):
                a(f'v_mfma_f32_16x16x32_bf16 {vr(ACC,4)}, {vr(PA+4*u,4)}, {ar(avs(e)+4*u,4)}, {vr(ACC,4)}')
            a('s_nop 3')
    assert not extra and not frags
    if cfg.ev2_m >= NS: ev2()
    if cfg.pre4:
        assert NS - c <= 4
        if cfg.smf:
            for r in range(16): a(f'v_mov_b32 {vr(D+r)}, 0')
        dst = {i: KR + 16 * stage(i - 4) for i in range(c, NS)}
        for i in range(c, NS): pa(i, dst[i])
        for i in range(c, NS): comp(i, dst[i])
    else:
        while c < NS - 2:
            comp(c); c += 1; a('s_nop 3')
        P2 = KR + 16 * stage(NS - 4)
        pa(NS - 2); pa(NS - 1, P2)
        if cfg.smf:
            for r in range(16): a(f'v_mov_b32 {vr(D+r)}, 0')
        comp(NS - 2, PA); comp(NS - 1, P2)
    a('A_tail:')
    stamp(3)
    for r in range(4): a(f'v_mul_f32 {vr(ACC+r)}, {vr(ACC+r)}, {vr(fN)}')
    a(f'v_cvt_pk_bf16_f32 {vr(T)}, {vr(ACC)}, {vr(ACC+1)}'); a(f'v_cvt_pk_bf16_f32 {vr(T+1)}, {vr(ACC+2)}, {vr(ACC+3)}')
    a(f'ds_write_b64 {vr(vOw)}, {vr(T,2)}')
    a('s_waitcnt lgkmcnt(0)'); a('s_barrier')
    for ks in range(4): a(f'ds_read_b128 {ar(4*ks,4)}, {vr(vOr)} offset:{64*ks}')
    if not cfg.smf: a('s_waitcnt lgkmcnt(0)')
    def tile(t):
        for ks in range(4):
            c = '0' if ks == 0 else vr(D + 4 * t, 4)
            a(f'v_mfma_f32_16x16x32_bf16 {vr(D+4*t,4)}, {ar(4*ks,4)}, {ar(AW+4*(t*4+ks),4)}, {c}')
    def comb(j, t, first):
        g = G + (4 if t >= 4 else 0)
        for r in range(4):
            if first and r == 0: a(f'v_mul_f32 {vr(O+j)}, {vr(g)}, {vr(D+4*t)}')
            else: a(f'v_fma_f32 {vr(O+j)}, {vr(g+r)}, {vr(D+4*t+r)}, {vr(O+j)}')
    def tail16(src, T, vO, so, ex):
        a(f'v_mov_b32_dpp {vr(T+1)}, {vr(src)} row_shl:2 {DPPF}')
        a(f'v_cvt_pk_bf16_f32 {vr(T)}, {vr(src)}, {vr(T+1)}'); a(f'v_min_u32 {vr(T)}, -2, {vr(T)}')
        for e in range(1, 4): a(f'v_mov_b32_dpp {vr(T+e)}, {vr(T)} row_shl:{4*e} {DPPF}')
        a('s_mov_b32 exec_lo, 0x00030003'); a(f's_mov_b32 exec_hi, {ex}')
        a(f'buffer_store_dwordx4 {vr(T,4)}, {vr(vO)}, {srd(S_WS)}, {so} offen offset:1024 sc1')
        a('s_mov_b64 exec, -1')
    globals()['tail16'] = tail16
    if cfg.smf:
        assert cfg.y16
        def cbl(d, o):
            return [f'v_pk_mul_f32 {vr(G+4,2)}, {vr(F,2)}, {vr(d,2)}', f'v_pk_fma_f32 {vr(G+4,2)}, {vr(F+2,2)}, {vr(d+2,2)}, {vr(G+4,2)}',
                    f'v_add_f32 {vr(o)}, {vr(G+4)}, {vr(G+5)}']
        pkl = lambda d: [f'v_cvt_pk_bf16_f32 {vr(O+d)}, {vr(G+2*d)}, {vr(G+2*d+1)}', f'v_min_u32 {vr(O+d)}, -2, {vr(O+d)}']
        c0, c1 = cbl(D, G), cbl(D + 4, G + 1)
        q = cbl(D + 32, O + 4) + c0[:2] + [f'v_mov_b32_dpp {vr(T+1)}, {vr(O+4)} row_shl:2 {DPPF}', f'v_cvt_pk_bf16_f32 {vr(T)}, {vr(O+4)}, {vr(T+1)}',
             f'v_min_u32 {vr(T)}, -2, {vr(T)}'] + c0[2:] + c1[:1] + [f'v_mov_b32_dpp {vr(T+e)}, {vr(T)} row_shl:{4*e} {DPPF}' for e in range(1, 4)]
        q += ['s_mov_b64 exec, 0x00030003\n' + f'buffer_store_dwordx4 {vr(T,4)}, {vr(vY8)}, {srd(S_WS)}, 0 offen offset:1024 {cfg.y_flags}\n' + 's_mov_b64 exec, -1']
        swp = lambda d: [f'v_permlane32_swap_b32 {vr(O+d)}, {vr(O+2+d)}']
        q += c1[1:] + pkl(0) + cbl(D + 8, G + 2) + swp(0) + cbl(D + 12, G + 3) + pkl(1) + swp(1)
        for ks in range(4):
            a(f's_waitcnt lgkmcnt({3-ks})')
            a(f'v_mfma_f32_16x16x32_bf16 {vr(D+32,4)}, {ar(4*ks,4)}, {ar(AW+4*(32+ks),4)}, {vr(D+32,4) if ks else 0}')
        for i in range(16):
            a(f'v_smfmac_f32_16x16x64_bf16 {vr(D+4*(i//4),4)}, {ar(4*(i%4),4)}, {ar(AW+8*i,8)}, {vr(G+7)}')
            if i >= 7: a(q.pop(0)); a(q.pop(0))
        for t in q: a(t)
        a('s_mov_b64 exec, 0xffffffff')
        a(f'buffer_store_dwordx4 {vr(O,4)}, {vr(vY)}, {srd(S_WS)}, 0 offen {cfg.y_flags}')
        a('s_mov_b64 exec, -1')
    elif cfg.y16:
        def cb(t, o):
            a(f'v_mul_f32 {vr(o)}, {vr(F)}, {vr(D+4*t)}')
            for r in range(1, 4): a(f'v_fma_f32 {vr(o)}, {vr(F+r)}, {vr(D+4*t+r)}, {vr(o)}')
        def pk(d): a(f'v_cvt_pk_bf16_f32 {vr(O+d)}, {vr(G+2*d)}, {vr(G+2*d+1)}'); a(f'v_min_u32 {vr(O+d)}, -2, {vr(O+d)}')
        tile(8); tile(0); tile(1); cb(8, O + 4); tile(2)
        tail16(O + 4, T, vY8, 0, 0)
        cb(0, G); tile(3); cb(1, G + 1); tile(4); cb(2, G + 2); pk(0); tile(5); cb(3, G + 3); tile(6); cb(4, G + 4); pk(1)
        tile(7); cb(5, G + 5); pk(2); cb(6, G + 6)
        a('s_mov_b64 exec, 0xffffffff')
        cb(7, G + 7); pk(3)
        a(f'buffer_store_dwordx4 {vr(O,4)}, {vr(vY)}, {srd(S_WS)}, 0 offen sc1')
        a('s_mov_b64 exec, -1')
    else:
        tile(8); tile(0); tile(1)
        a(f'v_mul_f32 {vr(O+4)}, {vr(F)}, {vr(D+32)}')
        for r in range(1, 4): a(f'v_fma_f32 {vr(O+4)}, {vr(F+r)}, {vr(D+32+r)}, {vr(O+4)}')
        tile(2)
        if cfg.t16:
            a(f'v_min_u32 {vr(T)}, -2, {vr(O+4)}')
            for e in range(1, 4): a(f'v_mov_b32_dpp {vr(T+e)}, {vr(T)} row_shl:{4*e} {DPPF}')
            a('s_mov_b64 exec, 0x000f000f')
            a(f'buffer_store_dwordx4 {vr(T,4)}, {vr(vY8)}, {srd(S_WS)}, 0 offen offset:512 sc1')
        else:
            a(f'v_min_u32 {vr(O+4)}, -2, {vr(O+4)}')
            a('s_mov_b64 exec, 0xffffffff')
            a(f'buffer_store_dword {vr(O+4)}, {vr(vY8)}, {srd(S_WS)}, 0 offen offset:512 sc1')
        a('s_mov_b64 exec, -1')
        comb(0, 0, True)
        tile(3); comb(1, 1, True)
        tile(4); comb(2, 2, True)
        tile(5); comb(3, 3, True)
        tile(6); comb(0, 4, False)
        tile(7); comb(1, 5, False); comb(2, 6, False)
        for j in range(3): a(f'v_min_u32 {vr(O+j)}, -2, {vr(O+j)}')
        comb(3, 7, False)
        a(f'v_min_u32 {vr(O+3)}, -2, {vr(O+3)}')
        a(f'buffer_store_dwordx4 {vr(O,4)}, {vr(vY)}, {srd(S_WS)}, 0 offen sc1')
    stamp(4)
    stamp_flush(M, 'A')
    if cfg.trips:
        a(f's_lshl_b32 s6, s2, 2'); a(f's_add_u32 s6, s6, s{sW}'); a('s_lshl_b32 s6, s6, 8'); a(f's_add_u32 s6, s6, {STAMP + 0x100000}')
        a(f'v_lshlrev_b32 {vr(M)}, 2, {vr(vLane)}')
        a(f'buffer_store_dword {vr(vTS)}, {vr(M)}, {srd(S_WS)}, s6 offen')
    a('s_endpgm')

def gen_B():
    V = VAlloc(1)
    vLane = V(); vL16 = V(); vWoff = V(); vXoff = V(); t0 = V(); t1 = V(); t2 = V(); vI = V(); vG = V(); vL16x = V(); vC0 = V()
    base = V.n
    sHalf, sBeta, sB2, sCh, sM0, sSo = 8, 9, 10, 11, 12, 13
    CROW = 1088; CB = 64 * CROW
    QROW = 1056; SQ = 2 * CB; QRED = SQ
    PB = SQ + 16 * QROW; MX = PB + 4096; LS = MX + 512
    assert LS + 512 <= LDS_TOTAL
    fl = cfg.b_flags
    a('B_role:')
    if cfg.noB: a('s_endpgm')
    a(f's_mov_b32 s{sHalf}, s{sR}')
    a(f's_lshl_b32 s{sBeta}, s{sH}, 1'); a(f's_add_u32 s{sBeta}, s{sBeta}, s{sHalf}')
    a(f's_lshr_b32 s{sB2}, s{sBeta}, 4'); a(f's_and_b32 s{sCh}, s{sBeta}, 15')
    a(f'v_and_b32 {vr(vLane)}, 63, v0'); a(f'v_lshlrev_b32 {vr(vL16)}, 4, {vr(vLane)}')
    a(f'v_lshrrev_b32 {vr(vG)}, 4, {vr(vLane)}'); a(f'v_and_b32 {vr(vI)}, 15, {vr(vLane)}')
    if cfg.warm & 2: warm_code('B_role', 'B_end', vLane, t0, t1)
    a('s_waitcnt lgkmcnt(0)')
    a(f's_mul_i32 s6, s{sW}, 288'); a('s_sub_u32 s7, 4608, s6'); mk_srd(S_X, P_BX, 's6', 's7')
    a(f's_mul_i32 s6, s{sW}, {144*8192}'); a(f's_lshl_b32 s7, s{sH}, 8'); a('s_add_u32 s6, s6, s7')
    a(f's_sub_u32 s7, {576*8192}, s6'); mk_srd(S_W, P_BWQ, 's6', 's7')
    a(f's_lshl_b32 s6, s{sHalf}, 2'); a(f's_add_u32 s6, s6, s{sW}'); a('s_lshl_b32 s6, s6, 19')
    a(f's_lshl_b32 s7, s{sH}, 8'); a('s_add_u32 s6, s6, s7'); a(f's_sub_u32 s7, {512*8192}, s6')
    mk_srd(S_U, P_WUK, 's6', 's7')
    if cfg.cwin == 0:
        a(f's_lshl_b32 s6, s{sBeta}, 18'); mk_srd(S_K, P_CKV, 's6', 0x40000)
    else:
        a(f's_lshl_b32 s6, s{sB2}, 22'); mk_srd(S_K, P_CKV, 's6', 0x400000)
    for bit, R in ((1, S_W), (2, S_U), (4, S_K)):
        if cfg.bskip & bit: a(f's_mov_b32 s{R+2}, 0')
    if cfg.emu & 1:
        a(f's_cmp_eq_u32 s{sHalf}, 1'); a(f's_cselect_b32 s{S_W+2}, 0, s{S_W+2}')
    MASK = V(4); SEL = V(8); X0 = V(18); X1 = V(18); PA = V(16, 4); AC0 = V(4, 4); AC1 = V(4, 4)
    UK = V(64, 4); QB = V(16); T = V(4); XX = V(2); U = V(16, 4); D = V(32, 4); vUoff = V()
    a(f'v_mul_u32_u24 {vr(vWoff)}, {36*8192}, {vr(vG)}'); a(f'v_lshl_add_u32 {vr(vWoff)}, {vr(vI)}, 4, {vr(vWoff)}')
    a(f'v_mul_u32_u24 {vr(vXoff)}, 72, {vr(vG)}'); a(f'v_lshrrev_b32 {vr(t1)}, 3, {vr(vI)}')
    a(f'v_mul_u32_u24 {vr(t1)}, 1152, {vr(t1)}'); a(f'v_add_u32 {vr(vXoff)}, {vr(vXoff)}, {vr(t1)}')
    a(f'v_lshlrev_b32 {vr(vUoff)}, 17, {vr(vG)}'); a(f'v_lshl_add_u32 {vr(vUoff)}, {vr(vI)}, 4, {vr(vUoff)}')
    a(f'v_xor_b32 {vr(vL16x)}, 32, {vr(vL16)}')
    mk_srd(S_WS, P_WS, None, WS_USED)
    vm = VM(a, 49)
    x_loads(vm, X0, vXoff, 0); x_loads(vm, X1, vXoff, 2304)
    Lc, Lc1 = lab('noclr'), lab('clr1')
    a(f's_cmp_ge_u32 s{sW}, 2'); a(f's_cbranch_scc1 {Lc}')
    for r in range(4): a(f'v_mov_b32 {vr(D+r)}, -1')
    a(f's_cmp_eq_u32 s{sW}, 1'); a(f's_cbranch_scc1 {Lc1}')
    a(f'v_lshrrev_b32 {vr(t0)}, 5, {vr(vLane)}'); a(f'v_lshlrev_b32 {vr(t0)}, 15, {vr(t0)}')
    a(f'v_and_b32 {vr(t1)}, 31, {vr(vLane)}'); a(f'v_lshl_add_u32 {vr(t0)}, {vr(t1)}, 4, {vr(t0)}')
    a(f's_lshl_b32 s6, s{sBeta}, 9'); a(f's_add_u32 s7, s6, {QABS + 65536}'); a(f's_add_u32 s6, s6, {QABS}')
    a(f'buffer_store_dwordx4 {vr(D,4)}, {vr(t0)}, {srd(S_WS)}, s6 offen sc1')
    a(f'buffer_store_dwordx4 {vr(D,4)}, {vr(t0)}, {srd(S_WS)}, s7 offen sc1')
    a(f's_add_u32 s6, s6, {PSTAT - QABS}')
    a('s_mov_b64 exec, 0xffffffff')
    a(f'buffer_store_dwordx4 {vr(D,4)}, {vr(vL16)}, {srd(S_WS)}, s6 offen sc1')
    a(f's_lshl_b32 s6, s{sBeta}, 7'); a(f's_add_u32 s6, s6, {AST}')
    a('s_mov_b64 exec, 0xff')
    a(f'buffer_store_dwordx4 {vr(D,4)}, {vr(vL16)}, {srd(S_WS)}, s6 offen sc1')
    if cfg.dyn:
        a(f's_mul_i32 s6, s{sBeta}, {cfg.psp}'); a(f's_add_u32 s6, s6, {PROG}')
        a('s_mov_b32 exec_lo, 1'); a(f's_mov_b32 exec_hi, {1 if cfg.mon else 0}')
        a(f'buffer_store_dwordx4 {vr(D,4)}, {vr(t0)}, {srd(S_WS)}, s6 offen sc1')
    a('s_mov_b64 exec, -1')
    a(f'{Lc1}:')
    a(f's_mul_i32 s6, s{sBeta}, 9216'); a(f's_mul_i32 s7, s{sW}, {YB - YA}'); a('s_add_u32 s6, s6, s7'); a(f's_add_u32 s6, s6, {YA if not cfg.bskip & 1024 else OOB}')
    for k in range(9):
        if k in (4, 8): a('s_add_u32 s6, s6, 4096')
        a(f'buffer_store_dwordx4 {vr(D,4)}, {vr(vL16)}, {srd(S_WS)}, s6 offen offset:{1024*(k&3)} {cfg.clr_flags}')
    a(f'{Lc}:')
    for jj in range(36): wunit_load(vm, jj, vWoff, cfg.bwq_flags)
    def uk_load(u):
        a(f's_mov_b32 s6, {u*8192}')
        vm.issue(f'buffer_load_dwordx4 {vr(UK+4*u,4)}, {vr(vUoff)}, {srd(S_U)}, s6 offen {fl}', ('u', u))
    for u in range(3): uk_load(u)
    mk_srd(S_DBG, P_DBG, None, 256); mk_srd(S_OUT, P_OUT, None, 9216)
    mk_masks(vLane, MASK, SEL, t0, t1)
    def coff(rho, k):
        if cfg.cwin == 0: return (64 * rho + k) * 1024
        if cfg.cwin == 1: return (1024 * rho + k) * 1024
        return (1024 * rho + 256 * (k >> 2) + (k & 3)) * 1024
    def c_dma(rho, k):
        a(f's_add_u32 m0, s{sM0}, {(rho&1)*CB + k*CROW}')
        a(f's_add_u32 s6, s{sSo}, {coff(rho, k)}')
        vm.issue(f'buffer_load_dwordx4 {vr(vL16x if k >= 8 else vL16)}, {srd(S_K)}, s6 offen {fl} lds', ('c', rho))
    def c_reg(rho, k):
        a(f's_add_u32 s6, s{sSo}, {coff(rho, k)}')
        vm.issue(f'buffer_load_dwordx4 {ar(64*rho+4*k,4)}, {vr(vL16x if k >= 8 else vL16)}, {srd(S_K)}, s6 offen {fl}', ('c', rho))
    a(f's_mul_i32 s{sM0}, s{sW}, {16*CROW}'); a(f's_lshl_b32 s{sSo}, s{sW}, 14')
    if cfg.cwin:
        a(f's_lshl_b32 s6, s{sCh}, 16'); a(f's_add_u32 s{sSo}, s{sSo}, s6')
        if cfg.cwin == 2: a(f's_lshr_b32 s{sSo}, s{sSo}, 2')
    dma = [(rho, k) for rho in range(2) for k in range(16)]
    for jj in range(36):
        vm.wait(('w', jj))
        if jj == 0:
            Ls = lab('sig0')
            a(f's_cmp_ge_u32 s{sW}, 2'); a(f's_cbranch_scc1 {Ls}')
            a(f'v_mov_b32 {vr(t2)}, 1'); a('s_mov_b64 exec, 1')
            a(f'buffer_atomic_add {vr(t2)}, off, {srd(S_DBG)}, 0 offset:{C0}')
            a('s_mov_b64 exec, -1')
            a(f'{Ls}:')
            vm.limit = 61
            for u in range(3, 16): uk_load(u)
        wunit_mfma(jj, [X0, X1], [AC0, AC1], SEL, PA)
        if jj == 28: vm.issue(f'buffer_load_dword {vr(vC0)}, off, {srd(S_DBG)}, 0 offset:{C0} sc1', 'c0')
        if dma: c_dma(*dma.pop(0))
    assert not dma
    a(f'v_lshlrev_b32 {vr(t0)}, 5, {vr(vI)}')
    a(f'v_and_b32 {vr(t1)}, 1, {vr(vG)}'); a(f'v_lshl_add_u32 {vr(t1)}, {vr(t1)}, 4, {vr(t0)}')
    a(f'v_lshrrev_b32 {vr(t2)}, 5, {vr(vLane)}'); a(f'v_lshl_add_u32 {vr(t1)}, {vr(t2)}, 9, {vr(t1)}')
    a(f's_lshl_b32 s6, s{sW}, 11'); a(f's_add_u32 s6, s6, {QRED}'); a(f'v_add_u32 {vr(t1)}, s6, {vr(t1)}')
    a(f'ds_write_b128 {vr(t1)}, {vr(AC0,4)}'); a(f'ds_write_b128 {vr(t1)}, {vr(AC1,4)} offset:1024')
    a(f'v_add_u32 {vr(t0)}, {QRED}, {vr(t0)}')
    a('s_waitcnt lgkmcnt(0)'); a('s_barrier')
    for b in range(4):
        for w in range(4):
            a(f'ds_read_b128 {vr(D+8*w,4)}, {vr(t0)} offset:{2048*w+512*b}')
            a(f'ds_read_b128 {vr(D+8*w+4,4)}, {vr(t0)} offset:{2048*w+512*b+16}')
        a('s_waitcnt lgkmcnt(0)')
        for e in range(8):
            a(f'v_add_f32 {vr(D+e)}, {vr(D+e)}, {vr(D+8+e)}'); a(f'v_add_f32 {vr(D+16+e)}, {vr(D+16+e)}, {vr(D+24+e)}')
        for e in range(8): a(f'v_add_f32 {vr(D+e)}, {vr(D+e)}, {vr(D+16+e)}')
        for k in range(4): a(f'v_cvt_pk_bf16_f32 {vr(QB+4*b+k)}, {vr(D+2*k)}, {vr(D+2*k+1)}')
    vm.wait(('u', 15))
    for u in range(16):
        for k in range(4):
            for b in range(4):
                c = '0' if k == 0 else vr(T + b)
                a(f'v_dot2_f32_bf16 {vr(T+b)}, {vr(UK+4*u+k)}, {vr(QB+4*b+k)}, {c}')
        reduce4(T, XX, U + u)
    for k in range(8): a(f'v_cvt_pk_bf16_f32 {vr(D+k)}, {vr(U+2*k)}, {vr(U+2*k+1)}')
    for k in range(8): a(f'v_min_u32 {vr(D+k)}, -2, {vr(D+k)}')
    a(f'v_bfe_u32 {vr(t0)}, {vr(vLane)}, 2, 2'); a(f'v_lshlrev_b32 {vr(t0)}, 15, {vr(t0)}')
    a(f'v_lshl_add_u32 {vr(t0)}, {vr(vG)}, 5, {vr(t0)}')
    a(f's_lshl_b32 s6, s{sH}, 10'); a(f's_lshl_b32 s7, s{sHalf}, 9'); a('s_add_u32 s6, s6, s7')
    a(f's_lshl_b32 s7, s{sW}, 7'); a('s_add_u32 s6, s6, s7'); a(f's_add_u32 s6, s6, {QABS}')
    if cfg.qfull:
        a(f'v_and_b32 {vr(t1)}, 1, {vr(vLane)}'); a(f'v_lshl_add_u32 {vr(t0)}, {vr(t1)}, 4, {vr(t0)}')
        a(f'v_cmp_eq_u32 vcc, 1, {vr(t1)}')
        for k in range(4): a(f'v_cndmask_b32 {vr(D+k)}, {vr(D+k)}, {vr(D+4+k)}, vcc')
        a('s_mov_b32 exec_lo, 0x33333333'); a('s_mov_b32 exec_hi, 0x33333333')
        vm.issue(f'buffer_store_dwordx4 {vr(D,4)}, {vr(t0)}, {srd(S_WS)}, s6 offen sc1')
    else:
        a('s_mov_b32 exec_lo, 0x11111111'); a('s_mov_b32 exec_hi, 0x11111111')
        vm.issue(f'buffer_store_dwordx4 {vr(D,4)}, {vr(t0)}, {srd(S_WS)}, s6 offen sc1')
        vm.issue(f'buffer_store_dwordx4 {vr(D+4,4)}, {vr(t0)}, {srd(S_WS)}, s6 offen offset:16 sc1')
    a('s_mov_b64 exec, -1')
    stamp(1)
    vm.wait('c0')
    ensure(C0, C0N, vC0)
    stamp(2)
    if cfg.bstop == 1: a('s_branch B_end')
    V = VAlloc(base)
    ACC = V(64, 4); S = V(8, 4); CF = V(64, 4); PF = V(16, 4); MXR = V(12, 4)
    mQ = V(2); mP = V(); lQ = V(2); aQ = V(2); aP = V(); vC = V(); PK = V(4, 2); Mx = V(2); tt = V()
    vA = V(2); vTr = V(2); vMw = V(); vMr = V(); vMp = V(); vPw = V(); vPr = V(); vQ = V(); vQw = V(); vCw = V(2)
    sQ = 14
    a(f's_lshl_b32 s{sQ}, s{sB2}, 15'); a(f's_lshl_b32 s6, s{sW}, 12'); a(f's_add_u32 s{sQ}, s{sQ}, s6'); a(f's_add_u32 s{sQ}, s{sQ}, {QABS}')
    a(f's_add_u32 s{sQ+1}, s{sQ}, 16384')
    def q_loads(iss):
        for nt in range(2):
            for k in range(4):
                iss(f'buffer_load_dwordx4 {vr(CF+16*nt+4*k,4)}, {vr(vL16)}, {srd(S_WS)}, s{sQ+nt} offen offset:{1024*k} sc1')
    a('s_nop 1')
    q_loads(lambda t: vm.issue(t, 'q'))
    for rho in (2, 3):
        for k in range(16): c_reg(rho, k)
    a(f's_lshl_b32 s6, s{sW}, 4'); a(f'v_add_u32 {vr(t0)}, s6, {vr(vI)}'); a(f'v_mul_u32_u24 {vr(t0)}, {CROW}, {vr(t0)}')
    a(f'v_lshrrev_b32 {vr(t1)}, 3, {vr(vI)}'); a(f'v_lshlrev_b32 {vr(t1)}, 1, {vr(t1)}'); a(f'v_xor_b32 {vr(t1)}, {vr(t1)}, {vr(vG)}')
    a(f'v_lshl_add_u32 {vr(vA)}, {vr(t1)}, 4, {vr(t0)}'); a(f'v_add_u32 {vr(vA+1)}, {CB}, {vr(vA)}')
    a(f'v_lshrrev_b32 {vr(t0)}, 5, {vr(vLane)}'); a(f'v_lshlrev_b32 {vr(t0)}, 3, {vr(t0)}')
    a(f'v_bfe_u32 {vr(t1)}, {vr(vLane)}, 2, 2'); a(f'v_add_u32 {vr(t0)}, {vr(t0)}, {vr(t1)}'); a(f'v_mul_u32_u24 {vr(t0)}, {CROW}, {vr(t0)}')
    a(f'v_lshrrev_b32 {vr(t1)}, 1, {vr(vG)}'); a(f'v_xor_b32 {vr(t1)}, {vr(t1)}, {vr(vG)}')
    a(f'v_and_b32 {vr(t1)}, 1, {vr(t1)}'); a(f'v_lshl_add_u32 {vr(t0)}, {vr(t1)}, 5, {vr(t0)}')
    a(f'v_and_b32 {vr(t1)}, 3, {vr(vLane)}'); a(f'v_lshl_add_u32 {vr(t0)}, {vr(t1)}, 3, {vr(t0)}')
    a(f's_lshl_b32 s6, s{sW}, 8'); a(f'v_add_u32 {vr(vTr)}, s6, {vr(t0)}'); a(f'v_add_u32 {vr(vTr+1)}, {CB}, {vr(vTr)}')
    a(f'v_lshlrev_b32 {vr(vMr)}, 4, {vr(vI)}'); a(f'v_add_u32 {vr(vMr)}, {MX}, {vr(vMr)}')
    a(f's_lshl_b32 s6, s{sW}, 2'); a(f'v_add_u32 {vr(vMw)}, s6, {vr(vMr)}')
    a(f'v_and_b32 {vr(t0)}, 31, {vr(vLane)}'); a(f'v_lshlrev_b32 {vr(vMp)}, 4, {vr(t0)}'); a(f'v_add_u32 {vr(vMp)}, {MX}, {vr(vMp)}')
    a(f'v_lshlrev_b32 {vr(vPr)}, 5, {vr(t0)}'); a(f'v_lshrrev_b32 {vr(t1)}, 5, {vr(vLane)}')
    a(f'v_lshl_add_u32 {vr(vPr)}, {vr(t1)}, 4, {vr(vPr)}'); a(f'v_add_u32 {vr(vPr)}, {PB}, {vr(vPr)}')
    a(f'v_lshlrev_b32 {vr(vPw)}, 5, {vr(vI)}'); a(f'v_lshl_add_u32 {vr(vPw)}, {vr(vG)}, 3, {vr(vPw)}')
    a(f's_lshl_b32 s6, s{sW}, 10'); a(f's_add_u32 s6, s6, {PB}'); a(f'v_add_u32 {vr(vPw)}, s6, {vr(vPw)}')
    a(f'v_mul_u32_u24 {vr(vQ)}, {QROW}, {vr(vI)}'); a(f'v_lshl_add_u32 {vr(vQ)}, {vr(vG)}, 4, {vr(vQ)}'); a(f'v_add_u32 {vr(vQ)}, {SQ}, {vr(vQ)}')
    a(f's_mul_i32 s6, s{sW}, {4*QROW}'); a(f's_add_u32 s6, s6, {SQ}'); a(f'v_add_u32 {vr(vQw)}, s6, {vr(vL16)}')
    a(f'v_add_u32 {vr(vCw)}, s{sM0}, {vr(vL16)}'); a(f'v_add_u32 {vr(vCw+1)}, {CB}, {vr(vCw)}')
    a(f'v_mov_b32 {vr(vC)}, {f2u(SCALE):#x}')
    for r in (mQ, mQ + 1, mP): a(f'v_mov_b32 {vr(r)}, 0xff800000')
    a(f'v_mov_b32 {vr(lQ)}, 0'); a(f'v_mov_b32 {vr(lQ+1)}, 0')
    vm.wait('q')
    a(f's_mov_b32 s7, {cfg.spin_max}')
    a('Q_chk:')
    umax_tree(tt, range(CF, CF + 32))
    a(f'v_cmp_eq_u32 vcc, -1, {vr(tt)}')
    a('s_cbranch_vccz Q_ok')
    a(f's_sleep {cfg.qsleep}')
    q_loads(a)
    a('s_waitcnt vmcnt(0)')
    a('s_sub_u32 s7, s7, 1'); a('s_cmp_lg_u32 s7, 0'); a('s_cbranch_scc1 Q_chk')
    a('Q_ok:')
    stamp(3)
    for nt in range(2):
        a('s_barrier')
        for k in range(4): a(f'ds_write_b128 {vr(vQw)}, {vr(CF+16*nt+4*k,4)} offset:{QROW*k}')
        a('s_waitcnt lgkmcnt(0)'); a('s_barrier')
        for ks in range(16): a(f'ds_read_b128 {ar(64*nt+4*ks,4)}, {vr(vQ)} offset:{64*ks}')
        a('s_waitcnt lgkmcnt(0)')
    for rho in range(4):
        par = rho & 1
        for ks in range(16):
            a(f'ds_read_b128 {vr(CF+4*ks,4)}, {vr(vA+par)} offset:{64*ks}')
        for ks in range(16):
            a(f's_waitcnt lgkmcnt({15-ks})')
            for nt in range(2):
                c = '0' if ks == 0 else vr(S + 4 * nt, 4)
                a(f'v_mfma_f32_16x16x32_bf16 {vr(S+4*nt,4)}, {vr(CF+4*ks,4)}, {ar(64*nt+4*ks,4)}, {c}')
        for nt in range(2):
            a(f'v_max_f32 {vr(Mx+nt)}, {vr(S+4*nt)}, {vr(S+4*nt+1)}')
            a(f'v_max3_f32 {vr(Mx+nt)}, {vr(Mx+nt)}, {vr(S+4*nt+2)}, {vr(S+4*nt+3)}')
            allred_rows(Mx + nt, tt, 'v_max_f32')
            a(f'ds_write_b32 {vr(vMw)}, {vr(Mx+nt)} offset:{256*nt}')
        a('s_waitcnt lgkmcnt(0)'); a('s_barrier')
        a(f'ds_read_b128 {vr(MXR,4)}, {vr(vMr)}'); a(f'ds_read_b128 {vr(MXR+4,4)}, {vr(vMr)} offset:256'); a(f'ds_read_b128 {vr(MXR+8,4)}, {vr(vMp)}')
        if 1 <= rho <= 2:
            vm.wait(('c', rho + 1))
            for k in range(16): a(f'ds_write_b128 {vr(vCw+1-par)}, {ar(64*(rho+1)+4*k,4)} offset:{k*CROW}')
            a('s_waitcnt lgkmcnt(15)')
        else:
            a('s_waitcnt lgkmcnt(0)')
        for i, (m, al) in enumerate(((mQ, aQ), (mQ + 1, aQ + 1), (mP, aP))):
            R = MXR + 4 * i
            a(f'v_max_f32 {vr(R)}, {vr(R)}, {vr(R+1)}'); a(f'v_max3_f32 {vr(R)}, {vr(R)}, {vr(R+2)}, {vr(R+3)}')
            a(f'v_mul_f32 {vr(R)}, {vr(R)}, {vr(vC)}'); a(f'v_max_f32 {vr(R)}, {vr(R)}, {vr(m)}')
            a(f'v_sub_f32 {vr(al)}, {vr(m)}, {vr(R)}'); a(f'v_exp_f32 {vr(al)}, {vr(al)}'); a(f'v_mov_b32 {vr(m)}, {vr(R)}')
        for nt in range(2):
            for r in range(4):
                a(f'v_fma_f32 {vr(S+4*nt+r)}, {vr(S+4*nt+r)}, {vr(vC)}, -{vr(mQ+nt)}')
            for r in range(4): a(f'v_exp_f32 {vr(S+4*nt+r)}, {vr(S+4*nt+r)}')
            a(f'v_mul_f32 {vr(lQ+nt)}, {vr(lQ+nt)}, {vr(aQ+nt)}')
            a(f'v_cvt_pk_bf16_f32 {vr(PK+2*nt)}, {vr(S+4*nt)}, {vr(S+4*nt+1)}'); a(f'v_cvt_pk_bf16_f32 {vr(PK+2*nt+1)}, {vr(S+4*nt+2)}, {vr(S+4*nt+3)}')
            a(f'ds_write_b64 {vr(vPw)}, {vr(PK+2*nt,2)} offset:{512*nt}')
            for r in range(4): a(f'v_add_f32 {vr(lQ+nt)}, {vr(lQ+nt)}, {vr(S+4*nt+r)}')
        if rho > 0:
            for r in range(64): a(f'v_mul_f32 {vr(ACC+r)}, {vr(ACC+r)}, {vr(aP)}')
        a('s_waitcnt lgkmcnt(0)'); a('s_barrier')
        for ks in range(4): a(f'ds_read_b128 {vr(PF+4*ks,4)}, {vr(vPr)} offset:{1024*ks}')
        for ks in range(4):
            for ct in range(4):
                for sec in range(2):
                    a(f'ds_read_b64_tr_b16 {vr(CF+16*ks+4*ct+2*sec,2)}, {vr(vTr+par)} offset:{(16*ks+4*sec)*CROW + 64*ct}')
        for ks in range(4):
            a(f's_waitcnt lgkmcnt({min(15, 8*(3-ks))})')
            for ct in range(4):
                c = '0' if (rho == 0 and ks == 0) else vr(ACC + 16 * ct, 16)
                a(f'v_mfma_f32_32x32x16_bf16 {vr(ACC+16*ct,16)}, {vr(CF+16*ks+4*ct,4)}, {vr(PF+4*ks,4)}, {c}')
    stamp(4)
    for nt in range(2):
        allred_rows(lQ + nt, tt, 'v_add_f32')
        a(f'ds_write_b32 {vr(vMw)}, {vr(lQ+nt)} offset:{512+256*nt}')
    TROW = 1040
    a(f'v_and_b32 {vr(t0)}, 31, {vr(vLane)}'); a(f'v_mul_u32_u24 {vr(t0)}, {TROW}, {vr(t0)}')
    a(f'v_lshrrev_b32 {vr(t1)}, 5, {vr(vLane)}'); a(f'v_lshl_add_u32 {vr(t0)}, {vr(t1)}, 3, {vr(t0)}')
    a(f's_lshl_b32 s6, s{sW}, 8'); a(f'v_add_u32 {vr(t0)}, s6, {vr(t0)}')
    for ct in range(4):
        for rq in range(4):
            R = ACC + 16 * ct + 4 * rq; P = CF + 2 * (4 * ct + rq)
            a(f'v_cvt_pk_bf16_f32 {vr(P)}, {vr(R)}, {vr(R+1)}'); a(f'v_cvt_pk_bf16_f32 {vr(P+1)}, {vr(R+2)}, {vr(R+3)}')
            a(f'ds_write_b64 {vr(t0)}, {vr(P,2)} offset:{64*ct+16*rq}')
    a('s_waitcnt lgkmcnt(0)'); a('s_barrier')
    a(f's_mul_i32 s6, s{sW}, {8*TROW}'); a(f'v_add_u32 {vr(t0)}, s6, {vr(vL16)}')
    for k in range(8): a(f'ds_read_b128 {vr(CF+32+4*k,4)}, {vr(t0)} offset:{k*TROW}')
    a(f'ds_read_b128 {vr(MXR,4)}, {vr(vMp)} offset:512')
    a(f's_lshl_b32 s7, s{sW}, 19'); a(f's_lshl_b32 s6, s{sBeta}, 10'); a('s_add_u32 s7, s7, s6'); a(f's_add_u32 s7, s7, {PART if not cfg.bskip & 16 else OOB}')
    if cfg.emu & 4:
        a(f's_cmp_eq_u32 s{sHalf}, 1'); a(f's_cselect_b32 s7, {OOB}, s7')
    for k in range(8):
        a(f's_waitcnt lgkmcnt({8-k})')
        a(f's_add_u32 s6, s7, {k*65536}')
        a(f'buffer_store_dwordx4 {vr(CF+32+4*k,4)}, {vr(vL16)}, {srd(S_WS)}, s6 offen {cfg.pst_flags}')
    a('s_waitcnt lgkmcnt(0)')
    a(f'v_add_f32 {vr(MXR)}, {vr(MXR)}, {vr(MXR+1)}'); a(f'v_add_f32 {vr(MXR+2)}, {vr(MXR+2)}, {vr(MXR+3)}')
    a(f'v_add_f32 {vr(PK+1)}, {vr(MXR)}, {vr(MXR+2)}'); a(f'v_mov_b32 {vr(PK)}, {vr(mP)}')
    a(f'v_and_b32 {vr(t0)}, 31, {vr(vLane)}'); a(f'v_lshrrev_b32 {vr(t1)}, 5, {vr(vLane)}')
    a(f'v_lshl_add_u32 {vr(t0)}, {vr(t0)}, 1, {vr(t1)}'); a(f'v_lshlrev_b32 {vr(t0)}, 9, {vr(t0)}')
    a(f's_lshl_b32 s6, s{sBeta}, 3'); a(f's_add_u32 s6, s6, {PSTAT}')
    a(f'v_min_u32 {vr(PK)}, -2, {vr(PK)}'); a(f'v_min_u32 {vr(PK+1)}, -2, {vr(PK+1)}')
    a('s_waitcnt vmcnt(0)'); a('s_barrier')
    Ls = lab('nops')
    a(f's_cmp_lg_u32 s{sW}, 0'); a(f's_cbranch_scc1 {Ls}')
    if cfg.pshare: a('s_mov_b64 exec, 0xffffffff')
    a(f'buffer_store_dwordx2 {vr(PK,2)}, {vr(t0)}, {srd(S_WS)}, s6 offen sc1')
    if cfg.pshare: a('s_mov_b64 exec, -1')
    a(f'{Ls}:')
    stamp(5)
    if cfg.bstop == 2: a('s_branch B_end')
    V = VAlloc(base)
    UB = 73728; OT = UB + 65536; RED = OT + 2048
    AF = V(64, 4); BF = V(32, 4); D = V(36, 4); F = V(4); ST = V(2); Mx = V(); Lx = V(); vU = V(2); vR = V(4); vT = V(4); PA = V(8, 4); O = V(12, 4)
    a(f's_mul_i32 s6, s{sBeta}, 73728'); mk_srd(S_WO, P_BWO, 's6', 73728)
    a(f's_lshl_b32 s6, s{sBeta}, 7'); a(f's_sub_u32 s7, {512*8192}, s6'); mk_srd(S_U, P_WUV, 's6', 's7')
    for bit, Rr in ((64, S_U), (128, S_WO)):
        if cfg.bskip & bit: a(f's_mov_b32 s{Rr+2}, 0')
    a(f'v_lshrrev_b32 {vr(t0)}, 3, {vr(vLane)}'); a(f'v_and_b32 {vr(t1)}, 7, {vr(vLane)}')
    a(f'v_and_b32 {vr(t2)}, 2, {vr(t0)}'); a(f'v_xor_b32 {vr(t1)}, {vr(t1)}, {vr(t2)}')
    a(f'v_lshlrev_b32 {vr(t0)}, 13, {vr(t0)}')
    a(f'v_lshl_add_u32 {vr(vU)}, {vr(t1)}, 4, {vr(t0)}')
    a(f'v_xor_b32 {vr(t1)}, 4, {vr(t1)}'); a(f'v_lshl_add_u32 {vr(vU+1)}, {vr(t1)}, 4, {vr(t0)}')
    a(f's_lshl_b32 s{sM0}, s{sW}, 14'); a(f's_lshl_b32 s{sSo}, s{sW}, 20')
    if cfg.emu & 2:
        a(f's_lshl_b32 s6, s{sH}, 8'); a(f's_lshl_b32 s7, s{sHalf}, 21'); a('s_add_u32 s6, s6, s7'); a(f's_sub_u32 s7, {512*8192}, s6'); mk_srd(S_U, P_WUV, 's6', 's7')
        a(f'v_lshlrev_b32 {vr(vU)}, 13, {vr(vG)}'); a(f'v_lshl_add_u32 {vr(vU)}, {vr(vI)}, 4, {vr(vU)}'); a(f'v_mov_b32 {vr(vU+1)}, {vr(vU)}')
        a(f's_lshl_b32 s{sSo}, s{sW}, 19')
    for k in range(16):
        a(f's_add_u32 m0, s{sM0}, {UB + k*1024}'); a(f's_add_u32 s6, s{sSo}, {k*(32768 if cfg.emu & 2 else 65536)}')
        a(f'buffer_load_dwordx4 {vr(vU+(k&1))}, {srd(S_U)}, s6 offen {fl} lds')
    a(f's_mul_i32 s{sM0}, s{sW}, 18432')
    for k in range(18):
        a(f's_add_u32 s6, s{sM0}, {k*1024}'); a('s_mov_b32 m0, s6')
        a(f'buffer_load_dwordx4 {vr(vL16)}, {srd(S_WO)}, s6 offen {fl} lds')
    mk_wo_tr_addr(vLane, vT, t0, t1, False)
    a(f'v_bfe_u32 {vr(t0)}, {vr(vLane)}, 2, 2'); a(f'v_lshl_add_u32 {vr(t0)}, {vr(vG)}, 3, {vr(t0)}'); a(f'v_lshlrev_b32 {vr(t0)}, 7, {vr(t0)}')
    a(f'v_and_b32 {vr(t1)}, 3, {vr(vLane)}'); a(f'v_lshl_add_u32 {vr(t0)}, {vr(t1)}, 3, {vr(t0)}'); a(f'v_add_u32 {vr(t0)}, {UB}, {vr(t0)}')
    a(f'v_bfe_u32 {vr(t1)}, {vr(vLane)}, 3, 2')
    for t in range(4):
        a(f'v_xor_b32 {vr(t2)}, {t}, {vr(t1)}'); a(f'v_lshl_add_u32 {vr(vR+t)}, {vr(t2)}, 5, {vr(t0)}')
    a(f'v_lshlrev_b32 {vr(t0)}, 10, {vr(vI)}'); a(f'v_lshl_add_u32 {vr(t0)}, {vr(vG)}, 4, {vr(t0)}')
    a(f'v_lshlrev_b32 {vr(t1)}, 3, {vr(vI)}')
    a(f's_lshl_b32 s6, s{sH}, 10' if cfg.pshare else f's_lshl_b32 s6, s{sBeta}, 9'); a(f's_lshl_b32 s7, s{sW}, 7'); a('s_add_u32 s6, s6, s7'); a(f's_add_u32 s6, s6, {PSTAT}')
    a(f's_mov_b32 s7, {cfg.spin_max}')
    a('P_poll:')
    a(f'buffer_load_dwordx2 {vr(ST,2)}, {vr(t1)}, {srd(S_WS)}, s6 offen sc1')
    a('s_waitcnt vmcnt(0)')
    a(f'v_max_u32 {vr(Mx)}, {vr(ST)}, {vr(ST+1)}'); a(f'v_cmp_eq_u32 vcc, -1, {vr(Mx)}')
    a('s_cbranch_vccz P_ok')
    a(f's_sleep {cfg.psleep}')
    a('s_sub_u32 s7, s7, 1'); a('s_cmp_lg_u32 s7, 0'); a('s_cbranch_scc1 P_poll')
    a('P_ok:')
    stamp(6)
    vm = VM(a)
    a(f's_lshl_b32 s6, s{sH}, 16'); a(f's_lshl_b32 s7, s{sW}, 14'); a('s_add_u32 s6, s6, s7'); a(f's_add_u32 s6, s6, {PART if not cfg.bskip & 256 else OOB}')
    if cfg.emu & 4:
        a(f's_cmp_eq_u32 s{sHalf}, 1'); a(f's_cselect_b32 s6, {OOB}, s6')
    for ks in range(16):
        if cfg.emu & 4:
            vm.issue(f'buffer_load_dwordx4 {vr(AF+4*ks,4)}, {vr(vL16)}, {srd(S_WS)}, s6 offen offset:{2048*(ks&1)} sc1', ('a', ks))
            if ks & 1: a(f's_add_u32 s6, s6, {4096 if ks != 7 else OOB}')
            continue
        if cfg.bskip & 512:
            vm.issue(f'buffer_load_dwordx4 {vr(AF+4*ks,4)}, {vr(vL16)}, {srd(S_WS)}, s6 offen offset:{1024*(ks&3)} sc1', ('a', ks))
            if ks & 3 == 3: a('s_add_u32 s6, s6, 4096')
            continue
        vm.issue(f'buffer_load_dwordx4 {vr(AF+4*ks,4)}, {vr(t0)}, {srd(S_WS)}, s6 offen offset:{64*ks} {cfg.pld_flags}', ('a', ks))
    a('s_barrier')
    wo_frag_reads(2, vT)
    a(f'v_mov_b32 {vr(Mx)}, {vr(ST)}')
    for sh in (8, 4, 2, 1): a(f'v_max_f32_dpp {vr(Mx)}, {vr(Mx)}, {vr(Mx)} row_ror:{sh} {DPPF}')
    a(f'v_sub_f32 {vr(ST)}, {vr(ST)}, {vr(Mx)}'); a(f'v_exp_f32 {vr(ST)}, {vr(ST)}')
    a(f'v_mul_f32 {vr(Lx)}, {vr(ST)}, {vr(ST+1)}')
    for sh in (8, 4, 2, 1): a(f'v_add_f32_dpp {vr(Lx)}, {vr(Lx)}, {vr(Lx)} row_ror:{sh} {DPPF}')
    a(f'v_rcp_f32 {vr(Lx)}, {vr(Lx)}'); a(f'v_mul_f32 {vr(ST)}, {vr(ST)}, {vr(Lx)}')
    for r in range(4):
        for q in range(4):
            a(f'v_mov_b32_dpp {vr(F+r)}, {vr(ST)} row_newbcast:{4*q+r} row_mask:{1<<q:#x} bank_mask:0xf')
    a('s_waitcnt lgkmcnt(0)')
    def u_reads(ks):
        for t in range(4):
            for sec in range(2):
                a(f'ds_read_b64_tr_b16 {vr(BF+16*(ks&1)+4*t+2*sec,2)}, {vr(vR+t)} offset:{(32*ks+4*sec)*128}')
    u_reads(0)
    for ks in range(16):
        if ks + 1 < 16: u_reads(ks + 1)
        vm.wait(('a', ks))
        a(f's_waitcnt lgkmcnt({8 if ks + 1 < 16 else 0})')
        for t in range(4):
            c = '0' if ks == 0 else vr(D + 4 * t, 4)
            a(f'v_mfma_f32_16x16x32_bf16 {vr(D+4*t,4)}, {vr(AF+4*ks,4)}, {vr(BF+16*(ks&1)+4*t,4)}, {c}')
    a(f'v_lshlrev_b32 {vr(t0)}, 7, {vr(vG)}'); a(f'v_lshl_add_u32 {vr(t0)}, {vr(vI)}, 1, {vr(t0)}')
    a(f's_lshl_b32 s6, s{sW}, 9'); a(f's_add_u32 s6, s6, {OT}'); a(f'v_add_u32 {vr(t0)}, s6, {vr(t0)}')
    for t in range(4):
        a(f'v_mul_f32 {vr(O+t)}, {vr(F)}, {vr(D+4*t)}')
        for r in range(1, 4): a(f'v_fma_f32 {vr(O+t)}, {vr(F+r)}, {vr(D+4*t+r)}, {vr(O+t)}')
        a(f'v_cvt_pk_bf16_f32 {vr(O+t)}, {vr(O+t)}, {vr(O+t)}')
        a(f'ds_write_b16 {vr(t0)}, {vr(O+t)} offset:{32*t}')
    a(f'v_lshlrev_b32 {vr(t1)}, 7, {vr(vI)}'); a(f'v_lshl_add_u32 {vr(t1)}, {vr(vG)}, 4, {vr(t1)}'); a(f'v_add_u32 {vr(t1)}, {OT}, {vr(t1)}')
    if cfg.dyn:
        a(f'v_mov_b32 {vr(vC0)}, {RED}'); a(f'v_mov_b32 {vr(t2)}, 0'); a(f'ds_write_b32 {vr(vC0)}, {vr(t2)}')
    a('s_waitcnt lgkmcnt(0)'); a('s_barrier')
    for ks in range(2): a(f'ds_read_b128 {vr(PA+4*ks,4)}, {vr(t1)} offset:{64*ks}')
    a(f'v_mul_u32_u24 {vr(t0)}, {64*2304}, {vr(vG)}')
    a(f'v_and_b32 {vr(t1)}, 3, {vr(vLane)}'); a(f'v_bfe_u32 {vr(t2)}, {vr(vLane)}, 2, 2')
    a(f'v_lshl_add_u32 {vr(t1)}, {vr(t1)}, 2, {vr(t2)}'); a(f'v_lshl_add_u32 {vr(t1)}, {vr(t1)}, 2, {vr(t0)}')
    a(f'v_lshl_add_u32 {vr(t0)}, {vr(vI)}, 4, {vr(t0)}')
    a(f's_mul_i32 s6, s{sBeta}, 2304'); a(f's_mul_i32 s7, s{sW}, 576'); a('s_add_u32 s6, s6, s7'); a(f's_add_u32 s6, s6, {YB}')
    a('s_waitcnt lgkmcnt(0)')
    for t in range(9):
        for ks in range(2):
            c = '0' if ks == 0 else vr(D + 4 * t, 4)
            a(f'v_mfma_f32_16x16x32_bf16 {vr(D+4*t,4)}, {vr(PA+4*ks,4)}, {ar(AW+4*(t*2+ks),4)}, {c}')
    for t in range(9):
        a(f'v_add_f32 {vr(D+4*t)}, {vr(D+4*t)}, {vr(D+4*t+1)}'); a(f'v_add_f32 {vr(D+4*t+2)}, {vr(D+4*t+2)}, {vr(D+4*t+3)}')
        a(f'v_add_f32 {vr(O+t)}, {vr(D+4*t)}, {vr(D+4*t+2)}'); a(f'v_min_u32 {vr(O+t)}, -2, {vr(O+t)}')
    a(f'buffer_store_dwordx4 {vr(O,4)}, {vr(t0)}, {srd(S_WS)}, s6 offen sc1')
    a(f'buffer_store_dwordx4 {vr(O+4,4)}, {vr(t0)}, {srd(S_WS)}, s6 offen offset:256 sc1')
    a(f'buffer_store_dword {vr(O+8)}, {vr(t1)}, {srd(S_WS)}, s6 offen offset:512 sc1')
    stamp(7)
    if cfg.bstop == 3: a('s_branch B_end')
    gen_final(vLane, vG, t0, t1, vC0, sHalf, sBeta, base)


class Mon:
    sX, sG, sDl, sO, sS = 16, 17, 18, 19, 22
    def __init__(self, r):
        self.PG = r; self.vP, self.vA, self.vB, self.S = r + 4, r + 5, r + 6, r + 7
    def init(self, vLane, sBeta):
        GL = PROG + 2 * TFO; vP, vA = self.vP, self.vA
        assert 8 * cfg.pxs <= TFO
        a(f's_lshr_b32 s{self.sX}, s{sBeta}, 3'); a(f's_mul_i32 s{self.sG}, s{self.sX}, {cfg.pxs}')
        a(f'v_and_b32 {vr(vP)}, 7, {vr(vLane)}'); a(f'v_mul_u32_u24 {vr(vP)}, {cfg.psp}, {vr(vP)}')
        a(f'v_add_u32 {vr(vP)}, s{self.sG}, {vr(vP)}'); a(f'v_add_u32 {vr(vP)}, {PROG}, {vr(vP)}')
        a(f'v_and_b32 {vr(vA)}, {cfg.mref-1}, {vr(vLane)}')
        if cfg.mref == 4: a(f's_and_b32 s6, s{self.sX}, 4'); a(f'v_add_u32 {vr(vA)}, s6, {vr(vA)}')
        a(f'v_mul_u32_u24 {vr(vA)}, {128 if cfg.msh else cfg.pxs}, {vr(vA)}'); a(f'v_add_u32 {vr(vA)}, {GL}, {vr(vA)}')
        if cfg.msh: a(f's_lshl_b32 s{self.sG}, s{self.sX}, 7'); a('s_mov_b32 s23, -1')
        a(f's_add_u32 s{self.sG}, s{self.sG}, {GL}')
        a(f's_mov_b32 s{self.sDl}, 0')
    def loads(self):
        if cfg.mrate: a('s_memrealtime s[24:25]')
        a(f'buffer_load_dwordx3 {vr(self.PG,3)}, {vr(self.vP)}, {srd(S_WS)}, 0 offen sc1')
        if cfg.msh:
            a('s_waitcnt lgkmcnt(0)'); a(f'v_mov_b32 {vr(self.S)}, s24'); a(f'v_subrev_u32 {vr(self.S)}, {1 << cfg.msh}, {vr(self.S)}')
            a(f'v_bfe_u32 {vr(self.S)}, {vr(self.S)}, {cfg.msh}, 5'); a(f'v_mul_u32_u24 {vr(self.S)}, {cfg.gls}, {vr(self.S)}')
            a(f'v_add_u32 {vr(self.S)}, {vr(self.S)}, {vr(self.vA)}')
            a(f'buffer_load_dword {vr(self.vB)}, {vr(self.S)}, {srd(S_WS)}, 0 offen sc1')
        elif not cfg.cdbg & 8: a(f'buffer_load_dword {vr(self.vB)}, {vr(self.vA)}, {srd(S_WS)}, 0 offen sc1')
    def step(self):
        PG, vP, vB, S, sX, sG, sDl, sO, sS = self.PG, self.vP, self.vB, self.S, self.sX, self.sG, self.sDl, self.sO, self.sS
        Ln = lab('mnext')
        a(f'v_min3_i32 {vr(S)}, {vr(PG)}, {vr(PG+1)}, {vr(PG+2)}'); a(f'v_cmp_gt_i32 vcc, 0, {vr(S)}')
        a(f's_mov_b32 s{sS}, 0'); a(f's_cbranch_vccnz {Ln}')
        a(f'v_add3_u32 {vr(S)}, {vr(PG)}, {vr(PG+1)}, {vr(PG+2)}')
        for sh in (4, 2, 1): a(f'v_add_u32_dpp {vr(S)}, {vr(S)}, {vr(S)} row_ror:{sh} {DPPF}')
        a(f'v_lshlrev_b32 {vr(S)}, 3, {vr(S)}')
        a(f'v_readfirstlane_b32 s{sS}, {vr(S)}')
        if cfg.mrate:
            assert cfg.mrate % 2 == 0
            a('s_waitcnt lgkmcnt(0)'); a(f's_mul_i32 s6, s24, {cfg.mrate}'); a(f's_sub_u32 s{sO}, s{sS}, s6'); a(f'v_mov_b32 {vr(S)}, s{sO}')
        if cfg.msh:
            Lk = lab('same')
            a(f's_bfe_u32 s6, s24, {(5 << 16) | cfg.msh:#x}'); a('s_cmp_eq_u32 s6, s23'); a(f's_cbranch_scc1 {Lk}')
            a('s_mov_b32 s23, s6'); a(f's_mul_i32 s6, s6, {cfg.gls}'); a(f's_add_u32 s6, s6, s{sG}')
            a('s_mov_b64 exec, 1')
            a(f'buffer_store_dword {vr(S)}, off, {srd(S_WS)}, s6 {cfg.gl_flags}')
            a('s_mov_b64 exec, -1')
            a(f'{Lk}:')
        else:
            a('s_mov_b64 exec, 1')
            if not cfg.cdbg & 4: a(f'buffer_store_dword {vr(S)}, off, {srd(S_WS)}, s{sG} {cfg.gl_flags}')
            a('s_mov_b64 exec, -1')
        if cfg.msh or not cfg.mrate: a(f'v_readlane_b32 s{sO}, {vr(vB)}, s{sX}')
        a(f'v_cmp_eq_u32 vcc, -1, {vr(vB)}')
        a(f's_cbranch_vccnz {Ln}')
        a(f'v_subrev_u32 {vr(vB)}, s{sO}, {vr(vB)}')
        for sh in (4, 2, 1): a(f'v_add_u32_dpp {vr(vB)}, {vr(vB)}, {vr(vB)} row_ror:{sh} {DPPF}')
        a(f'v_readfirstlane_b32 s6, {vr(vB)}')
        a('s_ashr_i32 s6, s6, 3')
        a(f's_sub_i32 s6, s6, s{sDl}'); a(f's_ashr_i32 s6, s6, {cfg.mf}'); a(f's_add_i32 s{sDl}, s{sDl}, s6')
        a(f's_mul_i32 s6, s{sS}, {cfg.mal}'); a('s_ashr_i32 s6, s6, 2'); a(f's_add_i32 s6, s6, s{sDl}'); a(f's_add_i32 s6, s6, {cfg.mth}')
        a(f's_add_i32 s{sO}, s6, {cfg.mth2 - cfg.mth}')
        if cfg.tforce: a(f's_lshr_b32 s6, {cfg.tforce}, s{sX}'); a('s_lshl_b32 s6, s6, 31'); a('s_or_b32 s6, s6, 0x100000')
        for j in range(3):
            a(f'v_mul_u32_u24 {vr(S)}, {48 * cfg.mal}, {vr(PG+j)}'); a(f'v_cmp_lt_i32 vcc, s6, {vr(S)}')
            a(f'v_cndmask_b32 {vr(PG+j)}, 0, 1, vcc')
            a(f'v_cmp_lt_i32 vcc, s{sO}, {vr(S)}'); a(f'v_cndmask_b32 {vr(PG+j)}, {vr(PG+j)}, 2, vcc')
        a('s_mov_b64 exec, 0xff'); a(f's_mov_b32 s6, {TFO}')
        a(f'buffer_store_dwordx3 {vr(PG,3)}, {vr(vP)}, {srd(S_WS)}, s6 offen')
        a('s_mov_b64 exec, -1'); a('s_nop 1')
        a(f'{Ln}:')

def gen_CD():
    V = VAlloc(1)
    vLane = V(); vL16 = V(); vWoff = V(); vXoff = V(); t0 = V(); t1 = V(); t2 = V(); vI = V(); vG = V(); vL16x = V(); vC0 = V()
    base = V.n
    sHalf, sBeta, sB2, sCh, sM0, sSo = 8, 9, 10, 11, 12, 13
    FLAG = LDS_TOTAL - 16
    NCH = cfg.nch; LC = NCH.bit_length() - 1; RORS = (4, 2, 1)[3 - LC:]
    fl = cfg.b_flags; SQ_ = globals()['SQ']
    def flag_init():
        if cfg.dyn:
            a(f'v_mov_b32 {vr(vC0)}, {FLAG}'); a(f'v_mov_b32 {vr(t2)}, 0'); a(f'ds_write_b32 {vr(vC0)}, {vr(t2)}')
    def prefix():
        if cfg.noB: a('s_endpgm')
        a(f's_mov_b32 s{sHalf}, s{sR}')
        a(f's_lshl_b32 s{sBeta}, s{sH}, 1'); a(f's_add_u32 s{sBeta}, s{sBeta}, s{sHalf}')
        a(f'v_and_b32 {vr(vLane)}, 63, v0'); a(f'v_lshlrev_b32 {vr(vL16)}, 4, {vr(vLane)}')
        a(f'v_lshrrev_b32 {vr(vG)}, 4, {vr(vLane)}'); a(f'v_and_b32 {vr(vI)}, 15, {vr(vLane)}')
    if cfg.djmp > 1: a('.p2align 7')
    a('B_role:')
    prefix()
    if not cfg.djmp: a(f's_cmp_eq_u32 s{sHalf}, 1'); a('s_cbranch_scc1 D_role')
    if cfg.warm & 2: warm_code('', 'D_role', vLane, t0, t1, 1)
    QRED = 147456; XB = QRED; XS = 1040; OT = QRED + 8192; OS = 272
    assert OT + 16 * OS <= FLAG
    MASK = V(4); SEL = V(8); X0 = V(20, 4); X1 = V(20, 4); PA = V(16, 4); AC0 = V(4, 4); AC1 = V(4, 4)
    UK = V(128, 4); QB = V(16, 4); T = V(4); XX = V(2); vUoff = V(); vT = V(4); E8 = V(8, 4)
    D = X0; U = PA
    a(f'v_mul_u32_u24 {vr(vWoff)}, {36*8192}, {vr(vG)}'); a(f'v_lshl_add_u32 {vr(vWoff)}, {vr(vI)}, 4, {vr(vWoff)}')
    a(f'v_mul_u32_u24 {vr(vXoff)}, 72, {vr(vG)}'); a(f'v_lshrrev_b32 {vr(t1)}, 3, {vr(vI)}')
    a(f'v_mul_u32_u24 {vr(t1)}, 1152, {vr(t1)}'); a(f'v_add_u32 {vr(vXoff)}, {vr(vXoff)}, {vr(t1)}')
    a(f'v_lshlrev_b32 {vr(vUoff)}, 17, {vr(vG)}'); a(f'v_lshl_add_u32 {vr(vUoff)}, {vr(vI)}, 4, {vr(vUoff)}')
    karg_wait()
    a(f's_mul_i32 s6, s{sW}, 288'); a('s_sub_u32 s7, 4608, s6'); mk_srd(S_X, P_BX, 's6', 's7')
    a(f's_mul_i32 s6, s{sW}, {144*8192}'); a(f's_lshl_b32 s7, s{sH}, 8'); a('s_add_u32 s6, s6, s7')
    a(f's_sub_u32 s7, {576*8192}, s6'); mk_srd(S_W, P_BWQ, 's6', 's7')
    vm = VM(a, 62)
    x_loads(vm, X0, vXoff, 0); x_loads(vm, X1, vXoff, 2304)
    for jj in range(36): wunit_load(vm, jj, vWoff, cfg.bwq_flags)
    a(f's_lshl_b32 s6, s{sW}, 20'); a(f's_lshl_b32 s7, s{sH}, 8'); a('s_add_u32 s6, s6, s7'); a(f's_sub_u32 s7, {512*8192}, s6')
    mk_srd(S_U, P_WUK, 's6', 's7'); mk_srd(S_K, P_WUV, 's6', 's7')
    def uk_load(u):
        a(f's_mov_b32 s6, {(64*(u>>4) + (u&15))*8192}')
        vm.issue(f'buffer_load_dwordx4 {vr(UK+4*u,4)}, {vr(vUoff)}, {srd(S_U)}, s6 offen {fl}', ('u', u))
    for u in range(12): uk_load(u)
    mk_srd(S_WS, P_WS, None, WS_USED); mk_srd(S_DBG, P_DBG, None, 256); mk_srd(S_OUT, P_OUT, None, 9216)
    a(f's_mul_i32 s6, s{sH}, 147456'); mk_srd(S_WO, P_BWO, 's6', 147456)
    mk_masks(vLane, MASK, SEL, t0, t1)
    mk_wo_tr_addr(vLane, vT, t0, t1, True)
    a(f's_mul_i32 s{sM0}, s{sW}, 36864')
    nd = [0]
    def wo_dma():
        k = nd[0]; nd[0] += 1
        if k % 4 == 0:
            if k: a(f's_add_u32 s{sM0}, s{sM0}, 4096')
            a(f's_mov_b32 m0, s{sM0}')
        vm.issue(f'buffer_load_dwordx4 {vr(vL16)}, {srd(S_WO)}, s{sM0} offen offset:{1024*(k%4)} {fl} lds', 'wo')
    nu = 12
    for jj in range(36):
        vm.wait(('w', jj))
        wunit_mfma(jj, [X0, X1], [AC0, AC1], SEL, PA)
        if nu < 32: uk_load(nu); nu += 1
        elif nu == 32: vm.issue(f'buffer_load_dword {vr(vC0)}, off, {srd(S_DBG)}, 0 offset:{C0} sc1', 'c0'); nu += 1
        elif nd[0] < cfg.cpre: wo_dma()
    stamp(3)
    a(f'v_lshlrev_b32 {vr(t0)}, 5, {vr(vI)}')
    a(f'v_and_b32 {vr(t1)}, 1, {vr(vG)}'); a(f'v_lshl_add_u32 {vr(t1)}, {vr(t1)}, 4, {vr(t0)}')
    a(f'v_lshrrev_b32 {vr(t2)}, 5, {vr(vLane)}'); a(f'v_lshl_add_u32 {vr(t1)}, {vr(t2)}, 9, {vr(t1)}')
    a(f's_lshl_b32 s6, s{sW}, 11'); a(f's_add_u32 s6, s6, {QRED}'); a(f'v_add_u32 {vr(t1)}, s6, {vr(t1)}')
    a(f'ds_write_b128 {vr(t1)}, {vr(AC0,4)}'); a(f'ds_write_b128 {vr(t1)}, {vr(AC1,4)} offset:1024')
    a(f'v_add_u32 {vr(t0)}, {QRED}, {vr(t0)}')
    a('s_waitcnt lgkmcnt(0)'); a('s_barrier')
    for b in range(4):
        for w in range(4):
            a(f'ds_read_b128 {vr(D+8*w,4)}, {vr(t0)} offset:{2048*w+512*b}')
            a(f'ds_read_b128 {vr(D+8*w+4,4)}, {vr(t0)} offset:{2048*w+512*b+16}')
        a('s_waitcnt lgkmcnt(0)')
        for e in range(8):
            a(f'v_add_f32 {vr(D+e)}, {vr(D+e)}, {vr(D+8+e)}'); a(f'v_add_f32 {vr(D+16+e)}, {vr(D+16+e)}, {vr(D+24+e)}')
        for e in range(8): a(f'v_add_f32 {vr(D+e)}, {vr(D+e)}, {vr(D+16+e)}')
        for k in range(4): a(f'v_cvt_pk_bf16_f32 {vr(QB+4*b+k)}, {vr(D+2*k)}, {vr(D+2*k+1)}')
    a(f'v_bfe_u32 {vr(t0)}, {vr(vLane)}, 2, 2'); a(f'v_mul_u32_u24 {vr(t0)}, {8 * SQ_}, {vr(t0)}')
    a(f'v_lshl_add_u32 {vr(t0)}, {vr(vG)}, 5, {vr(t0)}')
    a(f'v_and_b32 {vr(t1)}, 1, {vr(vLane)}'); a(f'v_lshl_add_u32 {vr(t0)}, {vr(t1)}, 4, {vr(t0)}')
    a(f'v_bfe_u32 {vr(t2)}, {vr(vLane)}, 1, 1'); a(f'v_lshl_add_u32 {vr(t0)}, {vr(t2)}, 7, {vr(t0)}')
    for hf in range(2):
        stamp(4 + hf)
        for u in range(16):
            vm.wait(('u', 16 * hf + u))
            for k in range(4):
                for b in range(4):
                    c = '0' if k == 0 else vr(T + b)
                    a(f'v_dot2_f32_bf16 {vr(T+b)}, {vr(UK+64*hf+4*u+k)}, {vr(QB+4*b+k)}, {c}')
            reduce4(T, XX, U + u)
        for k in range(8): a(f'v_cvt_pk_bf16_f32 {vr(D+k)}, {vr(U+2*k)}, {vr(U+2*k+1)}')
        a(f'v_cmp_eq_u32 vcc, 1, {vr(t1)}')
        for k in range(4): a(f'v_cndmask_b32 {vr(E8+4*hf+k)}, {vr(D+k)}, {vr(D+4+k)}, vcc')
    a(f'v_cmp_eq_u32 vcc, 1, {vr(t2)}')
    for k in range(4): a(f'v_cndmask_b32 {vr(E8+k)}, {vr(E8+k)}, {vr(E8+4+k)}, vcc')
    for k in range(4): a(f'v_min_u32 {vr(E8+k)}, -2, {vr(E8+k)}')
    vm.wait('c0')
    ensure(C0, C0N, vC0)
    a(f's_lshl_b32 s6, s{sH}, 10'); a(f's_lshl_b32 s7, s{sW}, 8'); a('s_add_u32 s6, s6, s7'); a(f's_add_u32 s6, s6, {QABS}')
    if cfg.cell: a(f's_lshr_b32 s7, s{sH}, 2'); a(f's_mul_i32 s7, s7, {SQ_ - 4096}'); a('s_add_u32 s6, s6, s7')
    vm.issue(f'buffer_store_dwordx4 {vr(E8,4)}, {vr(t0)}, {srd(S_WS)}, s6 offen sc1')
    if cfg.flg & 2: signal(C2, t1); vm.done = len(vm.q)
    stamp(1)
    if cfg.cthr: vm.limit = cfg.cthr
    if cfg.dsk2 & 32: a(f's_mov_b32 s{S_K+2}, 0'); a(f's_mov_b32 s{S_WO+2}, 0')
    if cfg.ctl: vm.limit = cfg.cuv
    while nd[0] < 36 and not cfg.ctl: wo_dma()
    a(f'v_lshlrev_b32 {vr(vUoff)}, 18, {vr(vG)}'); a(f'v_lshl_add_u32 {vr(vUoff)}, {vr(vI)}, 4, {vr(vUoff)}')
    for j in range(32):
        a(f's_mov_b32 s6, {j*8192}')
        vm.issue(f'buffer_load_dwordx4 {vr(UK+4*j,4)}, {vr(vUoff)}, {srd(S_K)}, s6 offen {fl}', 'uv')
    sMon, sIt = 14, 15
    if cfg.ctl:
        assert cfg.cpre == 0 and 36 % cfg.cdn == 0
        mon = Mon(PA)
        a(f's_and_b32 s6, s{sH}, 3'); a(f's_lshl_b32 s6, s6, 2'); a(f's_add_u32 s{sMon}, s6, s{sW}')
        Ls = lab('nomon')
        a(f's_cmp_lg_u32 s{sMon}, 13'); a(f's_cbranch_scc1 {Ls}'); mon.init(vLane, sBeta); a(f'{Ls}:')
        a(f's_mov_b32 s{sIt}, {36 // cfg.cdn}')
        a('C_dma:')
        Ls, L2 = lab('nomon'), lab('nomon')
        a(f's_cmp_lg_u32 s{sMon}, 13'); a(f's_cbranch_scc1 {Ls}'); mon.loads(); a(f'{Ls}:')
        a(f's_mov_b32 m0, s{sM0}')
        for k in range(cfg.cdn): a(f'buffer_load_dwordx4 {vr(vL16)}, {srd(S_WO)}, s{sM0} offen offset:{1024*k} {fl} lds')
        a(f's_waitcnt vmcnt({cfg.cdn})')
        a(f's_cbranch_scc1 {L2}'); mon.step(); a(f'{L2}:')
        a(f's_add_u32 s{sM0}, s{sM0}, {1024*cfg.cdn}')
        a(f's_sub_u32 s{sIt}, s{sIt}, 1'); a(f's_cmp_lg_u32 s{sIt}, 0'); a('s_cbranch_scc1 C_dma')
        a('s_waitcnt vmcnt(0)')
    else: vm.wait('wo')
    flag_init()
    a('s_waitcnt lgkmcnt(0)'); a('s_barrier')
    wo_frag_reads(4, vT)
    stamp(2)
    ST = T; Mx = T + 2; Lx = T + 3; AF = X0; CX = QB; sF = 26
    a(f'v_and_b32 {vr(t1)}, {NCH-1}, {vr(vLane)}'); a(f'v_mul_u32_u24 {vr(t1)}, {cfg.pstt or 8}, {vr(t1)}')
    a(f's_lshl_b32 s6, s{sH}, {3 if cfg.pstt else 8}'); a(f's_mul_i32 s7, s{sW}, {(cfg.pstt or 8) * NCH}'); a('s_add_u32 s6, s6, s7'); a(f's_add_u32 s{sIt}, s6, {PSTAT}')
    a(f's_mov_b32 s7, {cfg.spin_max}')
    a('P_poll:')
    if cfg.ctl:
        Ls = lab('nomon')
        a(f's_cmp_lg_u32 s{sMon}, 13'); a(f's_cbranch_scc1 {Ls}'); mon.loads(); a(f'{Ls}:')
    a(f'buffer_load_dwordx2 {vr(ST,2)}, {vr(t1)}, {srd(S_WS)}, s{sIt} offen sc1')
    a('s_waitcnt vmcnt(0)')
    a(f'v_max_u32 {vr(Mx)}, {vr(ST)}, {vr(ST+1)}'); a(f'v_cmp_eq_u32 vcc, -1, {vr(Mx)}')
    a('s_cbranch_vccz P_ok')
    if cfg.ctl:
        Ls, L2 = lab('nomon'), lab('nomon')
        a(f's_cbranch_scc1 {Ls}'); mon.step(); a(f's_branch {L2}'); a(f'{Ls}:')
    a(f's_sleep {cfg.psleep}')
    if cfg.ctl: a(f'{L2}:')
    a('s_sub_u32 s7, s7, 1'); a('s_cmp_lg_u32 s7, 0'); a('s_cbranch_scc1 P_poll')
    a('P_ok:')
    for _ in range(cfg.pdel): a('s_sleep 64')
    stamp(6)
    vm = VM(a)
    PW = {0: 1 << 15 + LC, 5: 1 << 20}.get(cfg.psx, 1 << 19)
    PB3 = {0: [4096 * NCH << i for i in range(3)], 1: [1 << 16, 1 << 17, 1 << 18], 2: [3 << 15, 1 << 17, 1 << 18], 3: [1 << 15, 1 << 16, 1 << 18],
           4: [1 << 15, 1 << 16, 3 << 17], 5: [1 << 17, 1 << 18, 1 << 19]}[cfg.psx]
    if cfg.cell: PW = 8 * cfg.cell; PB3 = [cfg.cell << i for i in range(3)]
    def pk(k): return sum(PB3[i] for i in range(3) if k >> i & 1)
    a(f's_lshr_b32 s6, s{sH}, 3'); a(f's_mul_i32 s6, s6, {PW}')
    for i in range(3):
        a(f's_bitcmp1_b32 s{sH}, {i}'); a(f's_cselect_b32 s7, {PB3[i]}, 0'); a('s_add_u32 s6, s6, s7')
    a(f's_lshl_b32 s7, s{sW}, {10+LC}'); a('s_add_u32 s6, s6, s7'); a(f's_add_u32 s6, s6, {OOB if cfg.dsk2 & 2 else PART}')
    for ch in range(NCH):
        if ch == 4: a('s_add_u32 s6, s6, 4096')
        vm.issue(f'buffer_load_dwordx4 {vr(AF+4*ch,4)}, {vr(vL16)}, {srd(S_WS)}, s6 offen offset:{1024*(ch&3)} {cfg.pl2}', ('a', ch))
    a(f'v_mov_b32 {vr(Mx)}, {vr(ST)}')
    for sh in RORS: a(f'v_max_f32_dpp {vr(Mx)}, {vr(Mx)}, {vr(Mx)} row_ror:{sh} {DPPF}')
    a(f'v_sub_f32 {vr(ST)}, {vr(ST)}, {vr(Mx)}'); a(f'v_exp_f32 {vr(ST)}, {vr(ST)}')
    a(f'v_mul_f32 {vr(Lx)}, {vr(ST)}, {vr(ST+1)}')
    for sh in RORS: a(f'v_add_f32_dpp {vr(Lx)}, {vr(Lx)}, {vr(Lx)} row_ror:{sh} {DPPF}')
    a(f'v_rcp_f32 {vr(Lx)}, {vr(Lx)}'); a(f'v_mul_f32 {vr(ST)}, {vr(ST)}, {vr(Lx)}')
    for ch in range(NCH): a(f'v_readlane_b32 s{sF+ch}, {vr(ST)}, {ch}')
    a(f's_mul_i32 s6, s{sW}, {XS}'); a(f's_add_u32 s6, s6, {XB}'); a(f'v_add_u32 {vr(t0)}, s6, {vr(vL16)}')
    a(f'v_lshrrev_b32 {vr(t1)}, 3, {vr(vI)}'); a(f'v_mul_u32_u24 {vr(t1)}, {XS}, {vr(t1)}'); a(f'v_lshl_add_u32 {vr(t1)}, {vr(vG)}, 6, {vr(t1)}')
    a(f's_lshl_b32 s6, s{sW}, 8'); a(f's_add_u32 s6, s6, {XB}'); a(f'v_add_u32 {vr(t1)}, s6, {vr(t1)}')
    for ch in range(NCH):
        vm.wait(('a', ch))
        for d in range(4):
            a(f'v_lshlrev_b32 {vr(E8+2*d)}, 16, {vr(AF+4*ch+d)}'); a(f'v_and_b32 {vr(E8+2*d+1)}, 0xffff0000, {vr(AF+4*ch+d)}')
        for e in range(8):
            if ch == 0: a(f'v_mul_f32 {vr(CX+e)}, s{sF}, {vr(E8+e)}')
            else: a(f'v_fma_f32 {vr(CX+e)}, {vr(E8+e)}, s{sF+ch}, {vr(CX+e)}')
    for d in range(4): a(f'v_cvt_pk_bf16_f32 {vr(CX+8+d)}, {vr(CX+2*d)}, {vr(CX+2*d+1)}')
    a(f'ds_write_b128 {vr(t0)}, {vr(CX+8,4)}')
    a('s_waitcnt lgkmcnt(0)'); a('s_barrier')
    for k in range(4):
        a(f'ds_read_b128 {vr(X0+4*k,4)}, {vr(t1)} offset:{16*k}'); a(f'ds_read_b128 {vr(X1+4*k,4)}, {vr(t1)} offset:{2*XS+16*k}')
    a(f'v_lshrrev_b32 {vr(t0)}, 5, {vr(vLane)}'); a(f'v_mul_u32_u24 {vr(t0)}, {4*OS}, {vr(t0)}'); a(f'v_lshl_add_u32 {vr(t0)}, {vr(vI)}, 4, {vr(t0)}')
    a(f'v_and_b32 {vr(t2)}, 1, {vr(vG)}'); a(f'v_lshl_add_u32 {vr(t0)}, {vr(t2)}, 3, {vr(t0)}')
    a(f's_mul_i32 s6, s{sW}, {OS}'); a(f's_add_u32 s6, s6, {OT}'); a(f'v_add_u32 {vr(t0)}, s6, {vr(t0)}')
    a(f'v_mul_u32_u24 {vr(t2)}, {OS}, {vr(vI)}'); a(f'v_lshl_add_u32 {vr(t2)}, {vr(vG)}, 4, {vr(t2)}'); a(f'v_add_u32 {vr(t2)}, {OT}, {vr(t2)}')
    a('s_waitcnt lgkmcnt(0)')
    for j in range(32): wunit_mfma(j, [X0, X1], [AC0, AC1], SEL, PA, UK)
    for s_, AC in enumerate((AC0, AC1)):
        a(f'v_cvt_pk_bf16_f32 {vr(E8+2*s_)}, {vr(AC)}, {vr(AC+1)}'); a(f'v_cvt_pk_bf16_f32 {vr(E8+2*s_+1)}, {vr(AC+2)}, {vr(AC+3)}')
        a(f'ds_write_b64 {vr(t0)}, {vr(E8+2*s_,2)} offset:{8*OS*s_}')
    a('s_waitcnt lgkmcnt(0)'); a('s_barrier')
    for ks in range(4): a(f'ds_read_b128 {vr(PA+4*ks,4)}, {vr(t2)} offset:{64*ks}')
    O = QB
    if cfg.y16:
        a(f'v_mul_u32_u24 {vr(t0)}, {32*1152}, {vr(vG)}'); a(f'v_lshl_add_u32 {vr(t0)}, {vr(vI)}, 4, {vr(t0)}')
        a(f's_mul_i32 s6, s{sH}, 1152'); a(f's_add_u32 s6, s6, {OOB if cfg.dsk2 & 4 else YB}'); a(f's_lshl_b32 s7, s{sW}, 5'); a(f'v_add_u32 {vr(t1)}, s7, {vr(t0)}')
        a(f's_lshl_b32 s7, s{sW}, 8'); a(f'v_add_u32 {vr(t0)}, s7, {vr(t0)}')
    else:
        a(f'v_mul_u32_u24 {vr(t0)}, {8 * SB}, {vr(vG)}')
        a(f'v_and_b32 {vr(t1)}, 3, {vr(vLane)}'); a(f'v_bfe_u32 {vr(t2)}, {vr(vLane)}, 2, 2')
        a(f'v_lshl_add_u32 {vr(t1)}, {vr(t1)}, 2, {vr(t2)}'); a(f'v_lshl_add_u32 {vr(t1)}, {vr(t1)}, 2, {vr(t0)}')
        a(f'v_lshl_add_u32 {vr(t0)}, {vr(vI)}, 4, {vr(t0)}')
        a(f's_mul_i32 s6, s{sH}, 2304'); a(f's_mul_i32 s7, s{sW}, 576'); a('s_add_u32 s6, s6, s7'); a(f's_add_u32 s6, s6, {OOB if cfg.dsk2 & 4 else YB}')
        if cfg.cell: a(f's_lshr_b32 s7, s{sH}, 2'); a(f's_mul_i32 s7, s7, {SB - 9216}'); a('s_add_u32 s6, s6, s7')
    a('s_waitcnt lgkmcnt(0)')
    for t in range(9):
        for ks in range(4):
            c = '0' if ks == 0 else vr(D + 4 * t, 4)
            a(f'v_mfma_f32_16x16x32_bf16 {vr(D+4*t,4)}, {vr(PA+4*ks,4)}, {ar(AW+4*(t*4+ks),4)}, {c}')
    for t in range(9):
        a(f'v_add_f32 {vr(D+4*t)}, {vr(D+4*t)}, {vr(D+4*t+1)}'); a(f'v_add_f32 {vr(D+4*t+2)}, {vr(D+4*t+2)}, {vr(D+4*t+3)}')
        a(f'v_add_f32 {vr(O+t)}, {vr(D+4*t)}, {vr(D+4*t+2)}'); a(f'v_min_u32 {vr(O+t)}, -2, {vr(O+t)}')
    if cfg.y16:
        for d in range(4): a(f'v_cvt_pk_bf16_f32 {vr(O+d)}, {vr(O+2*d)}, {vr(O+2*d+1)}'); a(f'v_min_u32 {vr(O+d)}, -2, {vr(O+d)}')
        a(f'buffer_store_dwordx4 {vr(O,4)}, {vr(t0)}, {srd(S_WS)}, s6 offen sc1')
        tail16(O + 8, O + 12, t1, 's6', 0x00030003)
    else:
        a(f'buffer_store_dwordx4 {vr(O,4)}, {vr(t0)}, {srd(S_WS)}, s6 offen sc1')
        a(f'buffer_store_dwordx4 {vr(O+4,4)}, {vr(t0)}, {srd(S_WS)}, s6 offen offset:256 sc1')
        if cfg.t16:
            for e in range(1, 4): a(f'v_mov_b32_dpp {vr(O+8+e)}, {vr(O+8)} row_shl:{4*e} {DPPF}')
            a('s_mov_b32 exec_lo, 0x000f000f'); a('s_mov_b32 exec_hi, 0x000f000f')
            a(f'buffer_store_dwordx4 {vr(O+8,4)}, {vr(t1)}, {srd(S_WS)}, s6 offen offset:512 sc1')
            a('s_mov_b64 exec, -1')
        else: a(f'buffer_store_dword {vr(O+8)}, {vr(t1)}, {srd(S_WS)}, s6 offen offset:512 sc1')
    if cfg.flg & 1: signal(C1, t2)
    stamp(7)
    a('s_nop 1')
    a('s_branch B_final')
    NR = 64 // NCH; sDl, sRho = 80, 81
    CROW = 1088; CB = 64 * CROW
    QROW = 1056; SQ = 2 * CB
    PB = SQ + 16 * QROW; MX = PB + 4096; LS = MX + 512
    assert LS + 512 <= FLAG
    V = VAlloc(base)
    ACC = V(64, 4); S = V(8, 4); CF = V(64, 4); PF = V(16, 4); MXR = V(12, 4)
    mQ = V(2); mP = V(); lQ = V(2); aQ = V(2); aP = V(); vC = V(); PK = V(4, 2); Mx = V(2); tt = V()
    vA = V(2); vTr = V(2); vMw = V(); vMr = V(); vMp = V(); vPw = V(); vPr = V(); vQ = V(); vQw = V(); vCw = V(2)
    if cfg.djmp > 1: a('.p2align 7')
    a('D_role:')
    if cfg.djmp: prefix()
    if cfg.warm & 4: warm_code('', 'B_end', vLane, t0, t1, 2)
    a(f's_lshr_b32 s{sB2}, s{sH}, 3'); a(f's_lshr_b32 s{sDl}, s{sH}, {3-LC}'); a(f's_and_b32 s{sCh}, s{sDl}, {NCH-1}')
    a(f'v_xor_b32 {vr(vL16x)}, 32, {vr(vL16)}')
    for r in range(4): a(f'v_mov_b32 {vr(S+r)}, -1')
    karg_wait()
    mk_srd(S_WS, P_WS, None, WS_USED)
    a(f's_lshl_b32 s6, s{sB2}, 22'); mk_srd(S_K, P_CKV, 's6', 0 if cfg.dsk2 & 64 else 0x400000)
    def dpf():
        if not cfg.dpf: return
        NWV = 2 * NCH
        a(f'v_lshrrev_b32 {vr(t0)}, 3, {vr(vLane)}'); a(f'v_lshlrev_b32 {vr(t0)}, 13, {vr(t0)}')
        a(f'v_and_b32 {vr(t1)}, 7, {vr(vLane)}'); a(f'v_lshl_add_u32 {vr(t0)}, {vr(t1)}, 7, {vr(t0)}')
        a(f's_and_b32 s6, s{sDl}, {NWV//4-1}'); a('s_lshl_b32 s6, s6, 2'); a(f's_add_u32 s14, s6, s{sW}')
        a(f's_lshr_b32 s15, s{sH}, 2'); a('s_lshl_b32 s15, s15, 10')
        n = 0
        for bit, P, rows in ((2, P_BWQ, 576), (1, P_WUK, 512)):
            if not cfg.dpf & bit: continue
            mk_srd(S_U, P, None, rows * 8192)
            a(f's_mul_i32 s6, s14, {8*8192}'); a('s_add_u32 s6, s6, s15')
            for k in range(-(-rows // (8 * NWV))):
                a(f'buffer_load_dword {vr(CF+n)}, {vr(t0)}, {srd(S_U)}, s6 offen'); n += 1
                a(f's_add_u32 s6, s6, {8*NWV*8192}')
    L3, Lc = lab('clr3'), lab('clrd')
    a(f's_cmp_eq_u32 s{sW}, 3'); a(f's_cbranch_scc1 {L3}')
    if cfg.flg & 1: a(f's_cmp_eq_u32 s{sW}, 2'); a(f's_cbranch_scc1 {Lc}')
    a(f's_mul_i32 s6, s{sH}, {SA >> cfg.y16}'); a(f's_mul_i32 s7, s{sW}, {9216 >> cfg.y16}'); a('s_add_u32 s6, s6, s7'); a(f's_add_u32 s6, s6, {YA}')
    a(f's_mul_i32 s7, s{sH}, {SB >> cfg.y16}'); a(f's_add_u32 s7, s7, {YB}'); a(f's_cmp_eq_u32 s{sW}, 2'); a('s_cselect_b32 s6, s7, s6')
    for k in range(0 if cfg.dsk2 & 16 else 5 if cfg.y16 else 9):
        if k in (4, 8): a('s_add_u32 s6, s6, 4096')
        if cfg.y16 and k == 4: a('s_mov_b64 exec, 0xffffffff')
        a(f'buffer_store_dwordx4 {vr(S,4)}, {vr(vL16)}, {srd(S_WS)}, s6 offen offset:{1024*(k&3)} sc1')
    a('s_mov_b64 exec, -1')
    a(f's_branch {Lc}')
    a(f'{L3}:')
    a(f's_mul_i32 s6, s{sH}, {SQ_}'); a(f's_add_u32 s6, s6, {QABS}')
    for k in range(0 if cfg.flg & 2 else 4): a(f'buffer_store_dwordx4 {vr(S,4)}, {vr(vL16)}, {srd(S_WS)}, s6 offen offset:{1024*k} sc1')
    a('s_mov_b64 exec, 0xffff')
    a(f's_mul_i32 s6, s{sH}, {cfg.pstt or 256}'); a(f's_mul_i32 s7, s{sH}, {4 * cfg.astr}'); a(f's_add_u32 s7, s7, {AST}'); a(f's_add_u32 s6, s6, {PSTAT}')
    a(f'v_lshrrev_b32 {vr(t1)}, 2, {vr(vLane)}'); a(f'v_mul_u32_u24 {vr(t1)}, {cfg.astr - 64}, {vr(t1)}'); a(f'v_add_u32 {vr(t1)}, {vr(t1)}, {vr(vL16)}')
    a(f'buffer_store_dwordx4 {vr(S,4)}, {vr(vL16)}, {srd(S_WS)}, s6 offen sc1')
    a(f'buffer_store_dwordx4 {vr(S,4)}, {vr(t1)}, {srd(S_WS)}, s7 offen sc1')
    if cfg.dyn:
        a('s_mov_b64 exec, 3')
        a(f's_mul_i32 s6, s{sH}, {2 * cfg.psp}'); a(f's_add_u32 s6, s6, {PROG}')
        if cfg.pxs != 8 * cfg.psp: a(f's_lshr_b32 s7, s{sH}, 2'); a(f's_mul_i32 s7, s7, {cfg.pxs - 8 * cfg.psp}'); a('s_add_u32 s6, s6, s7')
        a(f'v_mul_u32_u24 {vr(t0)}, {cfg.psp}, {vr(vLane)}')
        a(f'buffer_store_dwordx4 {vr(S,4)}, {vr(t0)}, {srd(S_WS)}, s6 offen sc1')
        if cfg.mon or cfg.ctl:
            for _ in range(1 if cfg.msh else 2):
                a(f's_add_u32 s6, s6, {TFO if cfg.ctl else 0x4000}')
                a(f'buffer_store_dwordx4 {vr(S,4)}, {vr(t0)}, {srd(S_WS)}, s6 offen sc1')
    a('s_mov_b64 exec, -1')
    if cfg.msh:
        a(f's_mul_i32 s6, s{sH}, {cfg.gls}'); a(f's_add_u32 s6, s6, {PROG + 2 * TFO}')
        a(f'buffer_store_dwordx4 {vr(S,4)}, {vr(vL16)}, {srd(S_WS)}, s6 offen sc1')
    a(f'{Lc}:')
    mk_srd(S_DBG, P_DBG, None, 256); mk_srd(S_OUT, P_OUT, None, 9216)
    cw = cfg.cw2
    def coff(rho, k): return (64 * NCH * rho + (4 * NCH << cw) * (k >> cw) + (k & ((1 << cw) - 1))) * 1024
    vm = VM(a, 52)
    def c_dma(rho, k):
        a(f's_add_u32 m0, s{sM0}, {(rho&1)*CB + k*CROW}')
        a(f's_add_u32 s6, s{sSo}, {coff(rho, k)}')
        vm.issue(f'buffer_load_dwordx4 {vr(vL16x if k >= 8 else vL16)}, {srd(S_K)}, s6 offen {fl} lds', ('c', rho))
    def stg(rho): return 128 + 64 * (rho & 1)
    def c_reg(rho, k):
        a(f's_add_u32 s6, s{sSo}, {coff(rho, k)}')
        vm.issue(f'buffer_load_dwordx4 {ar(stg(rho)+4*k,4)}, {vr(vL16x if k >= 8 else vL16)}, {srd(S_K)}, s6 offen {fl}', ('c', rho))
    a(f's_mul_i32 s{sM0}, s{sW}, {16*CROW}')
    a(f's_lshl_b32 s{sSo}, s{sCh}, 2'); a(f's_add_u32 s{sSo}, s{sSo}, s{sW}'); a(f's_lshl_b32 s{sSo}, s{sSo}, {10 + cw}')
    def sig():
        a(f'v_mov_b32 {vr(t2)}, 1'); a('s_mov_b64 exec, 1')
        a(f'buffer_atomic_add {vr(t2)}, off, {srd(S_DBG)}, 0 offset:{C0}')
        a('s_mov_b64 exec, -1')
    if NCH == 4:
        a(f's_bitcmp0_b32 s{sH}, 0'); a('s_cbranch_scc1 D_act')
        a('s_waitcnt vmcnt(0)'); sig()
        dpf()
        a('s_sleep 127'); a('s_sleep 127')
        a(f'buffer_load_dword {vr(vC0)}, off, {srd(S_DBG)}, 0 offset:{C0} sc1')
        a('s_waitcnt vmcnt(0)')
        ensure(C0, C0N, vC0)
        flag_init()
        a('s_waitcnt lgkmcnt(0)'); a('s_barrier')
        a('s_branch B_final')
        a('D_act:')
    for k in range(8): c_dma(0, k)
    a('s_waitcnt vmcnt(8)')
    if cfg.c0x == 2: a('s_barrier'); a(f's_cmp_lg_u32 s{sW}, 0'); a('s_cbranch_scc1 D_nosig')
    if not cfg.c0x & 1: sig()
    if cfg.c0x == 2: a('D_nosig:')
    if NCH == 8: dpf()
    if cfg.dthr: vm.limit = cfg.dthr
    for k in range(8, 16): c_dma(0, k)
    for k in range(16): c_dma(1, k)
    for rho in (2, 3):
        for k in range(16 if rho == 2 or not cfg.dloop else 8): c_reg(rho, k)
    vm.limit = 52
    if cfg.dskip:
        a(f's_and_b32 s6, s2, 7'); a(f's_mov_b32 s7, {cfg.dskip}'); a('s_bitcmp1_b32 s7, s6'); a(f's_cselect_b32 s{S_K+2}, 0, s{S_K+2}')
    vm.issue(f'buffer_load_dword {vr(vC0)}, off, {srd(S_DBG)}, 0 offset:{C0} sc1', 'c0')
    stamp(1)
    sQ = 14
    a(f's_lshl_b32 s{sQ}, s{sB2}, 3'); a(f's_add_u32 s{sQ}, s{sQ}, s{sW}'); a(f's_mul_i32 s{sQ}, s{sQ}, {SQ_}'); a(f's_add_u32 s{sQ}, s{sQ}, {QABS}')
    a(f's_add_u32 s{sQ+1}, s{sQ}, {4 * SQ_}')
    def q_loads():
        for nt in range(2):
            for k in range(4):
                a(f'buffer_load_dwordx4 {vr(CF+16*nt+4*k,4)}, {vr(vL16)}, {srd(S_WS)}, s{sQ+nt} offen offset:{1024*k} sc1')
    a(f's_lshl_b32 s6, s{sW}, 4'); a(f'v_add_u32 {vr(t0)}, s6, {vr(vI)}'); a(f'v_mul_u32_u24 {vr(t0)}, {CROW}, {vr(t0)}')
    a(f'v_lshrrev_b32 {vr(t1)}, 3, {vr(vI)}'); a(f'v_lshlrev_b32 {vr(t1)}, 1, {vr(t1)}'); a(f'v_xor_b32 {vr(t1)}, {vr(t1)}, {vr(vG)}')
    a(f'v_lshl_add_u32 {vr(vA)}, {vr(t1)}, 4, {vr(t0)}'); a(f'v_add_u32 {vr(vA+1)}, {CB}, {vr(vA)}')
    a(f'v_lshrrev_b32 {vr(t0)}, 5, {vr(vLane)}'); a(f'v_lshlrev_b32 {vr(t0)}, 3, {vr(t0)}')
    a(f'v_bfe_u32 {vr(t1)}, {vr(vLane)}, 2, 2'); a(f'v_add_u32 {vr(t0)}, {vr(t0)}, {vr(t1)}'); a(f'v_mul_u32_u24 {vr(t0)}, {CROW}, {vr(t0)}')
    a(f'v_lshrrev_b32 {vr(t1)}, 1, {vr(vG)}'); a(f'v_xor_b32 {vr(t1)}, {vr(t1)}, {vr(vG)}')
    a(f'v_and_b32 {vr(t1)}, 1, {vr(t1)}'); a(f'v_lshl_add_u32 {vr(t0)}, {vr(t1)}, 5, {vr(t0)}')
    a(f'v_and_b32 {vr(t1)}, 3, {vr(vLane)}'); a(f'v_lshl_add_u32 {vr(t0)}, {vr(t1)}, 3, {vr(t0)}')
    a(f's_lshl_b32 s6, s{sW}, 8'); a(f'v_add_u32 {vr(vTr)}, s6, {vr(t0)}'); a(f'v_add_u32 {vr(vTr+1)}, {CB}, {vr(vTr)}')
    a(f'v_lshlrev_b32 {vr(vMr)}, 4, {vr(vI)}'); a(f'v_add_u32 {vr(vMr)}, {MX}, {vr(vMr)}')
    a(f's_lshl_b32 s6, s{sW}, 2'); a(f'v_add_u32 {vr(vMw)}, s6, {vr(vMr)}')
    a(f'v_and_b32 {vr(t0)}, 31, {vr(vLane)}'); a(f'v_lshlrev_b32 {vr(vMp)}, 4, {vr(t0)}'); a(f'v_add_u32 {vr(vMp)}, {MX}, {vr(vMp)}')
    a(f'v_lshlrev_b32 {vr(vPr)}, 5, {vr(t0)}'); a(f'v_lshrrev_b32 {vr(t1)}, 5, {vr(vLane)}')
    a(f'v_lshl_add_u32 {vr(vPr)}, {vr(t1)}, 4, {vr(vPr)}'); a(f'v_add_u32 {vr(vPr)}, {PB}, {vr(vPr)}')
    a(f'v_lshlrev_b32 {vr(vPw)}, 5, {vr(vI)}'); a(f'v_lshl_add_u32 {vr(vPw)}, {vr(vG)}, 3, {vr(vPw)}')
    a(f's_lshl_b32 s6, s{sW}, 10'); a(f's_add_u32 s6, s6, {PB}'); a(f'v_add_u32 {vr(vPw)}, s6, {vr(vPw)}')
    a(f'v_mul_u32_u24 {vr(vQ)}, {QROW}, {vr(vI)}'); a(f'v_lshl_add_u32 {vr(vQ)}, {vr(vG)}, 4, {vr(vQ)}'); a(f'v_add_u32 {vr(vQ)}, {SQ}, {vr(vQ)}')
    a(f's_mul_i32 s6, s{sW}, {4*QROW}'); a(f's_add_u32 s6, s6, {SQ}'); a(f'v_add_u32 {vr(vQw)}, s6, {vr(vL16)}')
    a(f'v_add_u32 {vr(vCw)}, s{sM0}, {vr(vL16)}'); a(f'v_add_u32 {vr(vCw+1)}, {CB}, {vr(vCw)}')
    a(f'v_mov_b32 {vr(vC)}, {f2u(SCALE):#x}')
    for r in (mQ, mQ + 1, mP): a(f'v_mov_b32 {vr(r)}, 0xff800000')
    a(f'v_mov_b32 {vr(lQ)}, 0'); a(f'v_mov_b32 {vr(lQ+1)}, 0')
    vm.wait('c0')
    ensure(C0, C0N, vC0)
    stamp(2)
    if cfg.flg & 2: poll(C2, 32, tt)
    a(f's_mov_b32 s7, {cfg.spin_max}')
    if cfg.qslow and not cfg.flg & 2:
        a(f'v_and_b32 {vr(t0)}, 3, {vr(vLane)}'); a(f'v_bfe_u32 {vr(t1)}, {vr(vLane)}, 2, 1'); a(f'v_mul_u32_u24 {vr(t1)}, {4 * SQ_}, {vr(t1)}')
        a(f'v_lshl_add_u32 {vr(t0)}, {vr(t0)}, 10, {vr(t1)}')
        a('Q_slow:')
        a(f'buffer_load_dword {vr(tt)}, {vr(t0)}, {srd(S_WS)}, s{sQ} offen offset:768 sc1')
        a('s_waitcnt vmcnt(0)')
        a(f'v_cmp_eq_u32 vcc, -1, {vr(tt)}')
        a('s_cbranch_vccz Q_chk')
        a(f's_sleep {cfg.qslow}')
        a('s_sub_u32 s7, s7, 1'); a('s_cmp_lg_u32 s7, 1'); a('s_cbranch_scc1 Q_slow')
    a('Q_chk:')
    q_loads()
    a('s_waitcnt vmcnt(0)')
    umax_tree(tt, range(CF, CF + 32))
    a(f'v_cmp_eq_u32 vcc, -1, {vr(tt)}')
    a('s_cbranch_vccz Q_ok')
    a(f's_sleep {cfg.qsleep}')
    a('s_sub_u32 s7, s7, 1'); a('s_cmp_lg_u32 s7, 0'); a('s_cbranch_scc1 Q_chk')
    a('Q_ok:')
    stamp(3)
    for nt in range(2):
        if nt: a('s_barrier')
        for k in range(4): a(f'ds_write_b128 {vr(vQw)}, {vr(CF+16*nt+4*k,4)} offset:{QROW*k}')
        a('s_waitcnt lgkmcnt(0)'); a('s_barrier')
        for ks in range(16): a(f'ds_read_b128 {ar(64*nt+4*ks,4)}, {vr(vQ)} offset:{64*ks}')
        a('s_waitcnt lgkmcnt(0)')
    pend = []
    def more(n=1):
        for _ in range(n):
            if pend: c_reg(*pend.pop(0))
    a(f's_mov_b32 s{sRho}, {NR//2}')
    for rho in range(3 if cfg.dloop else NR):
        par = rho & 1
        if cfg.dloop and rho == 1:
            a('D_loop:'); pend = [(3, k) for k in range(8, 16)]
        for ks in range(16):
            a(f'ds_read_b128 {vr(CF+4*ks,4)}, {vr(vA+par)} offset:{64*ks}')
        for ks in range(16):
            a(f's_waitcnt lgkmcnt({15-ks})')
            for nt in range(2):
                c = '0' if ks == 0 else vr(S + 4 * nt, 4)
                a(f'v_mfma_f32_16x16x32_bf16 {vr(S+4*nt,4)}, {vr(CF+4*ks,4)}, {ar(64*nt+4*ks,4)}, {c}')
            if ks & 1: more()
        assert not pend
        for nt in range(2):
            a(f'v_max_f32 {vr(Mx+nt)}, {vr(S+4*nt)}, {vr(S+4*nt+1)}')
            a(f'v_max3_f32 {vr(Mx+nt)}, {vr(Mx+nt)}, {vr(S+4*nt+2)}, {vr(S+4*nt+3)}')
            allred_rows(Mx + nt, tt, 'v_max_f32')
            a(f'ds_write_b32 {vr(vMw)}, {vr(Mx+nt)} offset:{256*nt}')
        a('s_waitcnt lgkmcnt(0)'); a('s_barrier')
        a(f'ds_read_b128 {vr(MXR,4)}, {vr(vMr)}'); a(f'ds_read_b128 {vr(MXR+4,4)}, {vr(vMr)} offset:256'); a(f'ds_read_b128 {vr(MXR+8,4)}, {vr(vMp)}')
        if 1 <= rho <= NR - 2:
            if cfg.dloop: a('s_waitcnt vmcnt(16)'); vm.reset()
            else: vm.wait(('c', rho + 1))
            for k in range(16): a(f'ds_write_b128 {vr(vCw+1-par)}, {ar(stg(rho+1)+4*k,4)} offset:{k*CROW}')
            a('s_waitcnt lgkmcnt(15)')
            if rho + 3 < NR: pend = [(rho + 3, k) for k in range(16)]
        else:
            a('s_waitcnt lgkmcnt(0)')
        for i, (m, al) in enumerate(((mQ, aQ), (mQ + 1, aQ + 1), (mP, aP))):
            R = MXR + 4 * i
            a(f'v_max_f32 {vr(R)}, {vr(R)}, {vr(R+1)}'); a(f'v_max3_f32 {vr(R)}, {vr(R)}, {vr(R+2)}, {vr(R+3)}')
            a(f'v_mul_f32 {vr(R)}, {vr(R)}, {vr(vC)}'); a(f'v_max_f32 {vr(R)}, {vr(R)}, {vr(m)}')
            a(f'v_sub_f32 {vr(al)}, {vr(m)}, {vr(R)}'); a(f'v_exp_f32 {vr(al)}, {vr(al)}'); a(f'v_mov_b32 {vr(m)}, {vr(R)}')
        for nt in range(2):
            for r in range(4):
                a(f'v_fma_f32 {vr(S+4*nt+r)}, {vr(S+4*nt+r)}, {vr(vC)}, -{vr(mQ+nt)}')
            for r in range(4): a(f'v_exp_f32 {vr(S+4*nt+r)}, {vr(S+4*nt+r)}')
            a(f'v_mul_f32 {vr(lQ+nt)}, {vr(lQ+nt)}, {vr(aQ+nt)}')
            a(f'v_cvt_pk_bf16_f32 {vr(PK+2*nt)}, {vr(S+4*nt)}, {vr(S+4*nt+1)}'); a(f'v_cvt_pk_bf16_f32 {vr(PK+2*nt+1)}, {vr(S+4*nt+2)}, {vr(S+4*nt+3)}')
            a(f'ds_write_b64 {vr(vPw)}, {vr(PK+2*nt,2)} offset:{512*nt}')
            for r in range(4): a(f'v_add_f32 {vr(lQ+nt)}, {vr(lQ+nt)}, {vr(S+4*nt+r)}')
        if rho > 0:
            for r in range(64): a(f'v_mul_f32 {vr(ACC+r)}, {vr(ACC+r)}, {vr(aP)}')
        a('s_waitcnt lgkmcnt(0)'); a('s_barrier')
        for ks in range(4): a(f'ds_read_b128 {vr(PF+4*ks,4)}, {vr(vPr)} offset:{1024*ks}')
        for ks in range(4):
            for ct in range(4):
                for sec in range(2):
                    a(f'ds_read_b64_tr_b16 {vr(CF+16*ks+4*ct+2*sec,2)}, {vr(vTr+par)} offset:{(16*ks+4*sec)*CROW + 64*ct}')
        for ks in range(4):
            a(f's_waitcnt lgkmcnt({min(15, 8*(3-ks))})')
            for ct in range(4):
                c = '0' if (rho == 0 and ks == 0) else vr(ACC + 16 * ct, 16)
                a(f'v_mfma_f32_32x32x16_bf16 {vr(ACC+16*ct,16)}, {vr(CF+16*ks+4*ct,4)}, {vr(PF+4*ks,4)}, {c}')
                if ct & 1: more()
        if cfg.dloop and rho == 1:
            a(f's_sub_u32 s{sRho}, s{sRho}, 1'); a(f's_cmp_eq_u32 s{sRho}, 0'); a('s_cbranch_scc1 D_done')
        if cfg.dloop and rho == 2:
            a(f's_add_u32 s{sSo}, s{sSo}, {coff(2, 0)}'); a('s_branch D_loop'); a('D_done:'); a('s_nop 7'); a('s_nop 7')
    stamp(4)
    for nt in range(2):
        allred_rows(lQ + nt, tt, 'v_add_f32')
        a(f'ds_write_b32 {vr(vMw)}, {vr(lQ+nt)} offset:{512+256*nt}')
    TROW = 1040
    a(f'v_and_b32 {vr(t0)}, 31, {vr(vLane)}'); a(f'v_mul_u32_u24 {vr(t0)}, {TROW}, {vr(t0)}')
    a(f'v_lshrrev_b32 {vr(t1)}, 5, {vr(vLane)}'); a(f'v_lshl_add_u32 {vr(t0)}, {vr(t1)}, 3, {vr(t0)}')
    a(f's_lshl_b32 s6, s{sW}, 8'); a(f'v_add_u32 {vr(t0)}, s6, {vr(t0)}')
    for ct in range(4):
        for rq in range(4):
            R = ACC + 16 * ct + 4 * rq; P = CF + 2 * (4 * ct + rq)
            a(f'v_cvt_pk_bf16_f32 {vr(P)}, {vr(R)}, {vr(R+1)}'); a(f'v_cvt_pk_bf16_f32 {vr(P+1)}, {vr(R+2)}, {vr(R+3)}')
            a(f'ds_write_b64 {vr(t0)}, {vr(P,2)} offset:{64*ct+16*rq}')
    flag_init()
    a('s_waitcnt lgkmcnt(0)'); a('s_barrier')
    a(f's_mul_i32 s6, s{sW}, {8*TROW}'); a(f'v_add_u32 {vr(t0)}, s6, {vr(vL16)}')
    for k in range(8): a(f'ds_read_b128 {vr(CF+32+4*k,4)}, {vr(t0)} offset:{k*TROW}')
    a(f'ds_read_b128 {vr(MXR,4)}, {vr(vMp)} offset:512')
    a(f's_mul_i32 s7, s{sW}, {PW}'); a(f's_lshl_b32 s6, s{sDl}, 10'); a('s_add_u32 s7, s7, s6'); a(f's_add_u32 s7, s7, {OOB if cfg.dsk2 & 1 else PART}')
    for k in range(8):
        a(f's_waitcnt lgkmcnt({8-k})')
        a(f's_add_u32 s6, s7, {pk(k)}')
        a(f'buffer_store_dwordx4 {vr(CF+32+4*k,4)}, {vr(vL16)}, {srd(S_WS)}, s6 offen {cfg.pst_flags}')
    a('s_waitcnt lgkmcnt(0)')
    a(f'v_add_f32 {vr(MXR)}, {vr(MXR)}, {vr(MXR+1)}'); a(f'v_add_f32 {vr(MXR+2)}, {vr(MXR+2)}, {vr(MXR+3)}')
    a(f'v_add_f32 {vr(PK+1)}, {vr(MXR)}, {vr(MXR+2)}'); a(f'v_mov_b32 {vr(PK)}, {vr(mP)}')
    a(f'v_lshlrev_b32 {vr(t0)}, {3 if cfg.pstt else 8}, {vr(vLane)}')
    a(f's_mul_i32 s6, s{sDl}, {cfg.pstt or 8}'); a(f's_add_u32 s6, s6, {PSTAT}')
    a(f'v_min_u32 {vr(PK)}, -2, {vr(PK)}'); a(f'v_min_u32 {vr(PK+1)}, -2, {vr(PK+1)}')
    a('s_waitcnt vmcnt(0)'); a('s_barrier')
    Ls = lab('nops')
    a(f's_cmp_lg_u32 s{sW}, 0'); a(f's_cbranch_scc1 {Ls}')
    a('s_mov_b64 exec, 0xffffffff')
    a(f'buffer_store_dwordx2 {vr(PK,2)}, {vr(t0)}, {srd(S_WS)}, s6 offen sc1')
    a('s_mov_b64 exec, -1')
    a(f'{Ls}:')
    stamp(5)
    gen_final(vLane, vG, t0, t1, vC0, sHalf, sBeta, base)

def gen_final(vLane, vG, t0, t1, vC0, sHalf, sBeta, base):
    a('B_final:')
    if cfg.dsk2 & 8: a('s_branch B_end')
    V = VAlloc(base)
    Y = V(32, 4); AS = Y; vYo = V(); vOo = V(); E = V()
    sTau, sTb, sSg, sY, sDone, sO = 14, 15, 80, 81, 82, 83
    if cfg.dyn:
        a(f's_cmp_eq_u32 s{sW}, 3'); a('s_cbranch_scc1 H_start')
        a(f's_mov_b32 s{sTau}, s{sBeta}'); a(f's_lshr_b32 s7, s{sW}, 1')
        Ls = lab('w1')
        a(f's_cmp_lg_u32 s{sW}, 1'); a(f's_cbranch_scc1 {Ls}')
        a(f's_and_b32 s7, s{sBeta}, 7')
        if cfg.mon: a('s_cmp_eq_u32 s7, 7'); a('s_cbranch_scc1 H_start')
        if cfg.ctl: a('s_cmp_eq_u32 s7, 7'); a('s_cbranch_scc1 M2_start')
        a('s_cmp_ge_u32 s7, 2'); a('s_cbranch_scc1 B_end')
        a(f's_lshr_b32 s{sTau}, s{sBeta}, 3'); a(f's_add_u32 s{sTau}, s{sTau}, 64')
        a(f'{Ls}:')
    else:
        a(f's_and_b32 s6, s{sW}, 1'); a('s_lshl_b32 s6, s6, 6'); a(f's_add_u32 s{sTau}, s{sBeta}, s6')
        a(f's_cmp_ge_u32 s{sTau}, 72'); a('s_cbranch_scc1 B_end')
        a(f's_lshr_b32 s7, s{sW}, 1')
    a(f's_mul_i32 s{sTb}, s{sTau}, 57'); a(f's_lshr_b32 s{sTb}, s{sTb}, 10')
    a(f's_mul_i32 s6, s{sTb}, 18'); a(f's_sub_u32 s{sSg}, s{sTau}, s6')
    if cfg.y16:
        assert cfg.cd and not cfg.cell
        U = V(16, 4)
        a(f's_mul_i32 s{sY}, s{sTb}, {64*1152}'); a(f's_lshr_b32 s{sY}, s{sY}, s7')
        a(f's_lshl_b32 s6, s{sSg}, 6'); a(f's_add_u32 s{sY}, s{sY}, s6')
        a(f's_mul_i32 s6, s7, {YB - YA}'); a(f's_add_u32 s{sY}, s{sY}, s6'); a(f's_add_u32 s{sY}, s{sY}, {YA}')
        a(f'v_lshrrev_b32 {vr(t0)}, 2, {vr(vLane)}'); a(f'v_and_b32 {vr(t1)}, 3, {vr(vLane)}')
        a(f'v_mul_u32_u24 {vr(vYo)}, 1152, {vr(t0)}'); a(f'v_lshl_add_u32 {vr(vYo)}, {vr(t1)}, 4, {vr(vYo)}')
        sh = 2 if cfg.rmf else 3
        a(f'v_bfe_u32 {vr(t0)}, {vr(vLane)}, {sh}, 2'); a(f'v_lshl_add_u32 {vr(t0)}, {vr(t0)}, 2, {vr(t1)}')
        a(f'v_lshrrev_b32 {vr(E)}, {sh+2}, {vr(vLane)}'); a(f'v_lshl_add_u32 {vr(vOo)}, {vr(E)}, 6, {vr(t0)}')
        a(f'v_lshrrev_b32 {vr(t0)}, 1, {vr(t1)}'); a(f'v_mul_u32_u24 {vr(t0)}, 142, {vr(t0)}'); a(f'v_add_u32 {vr(t0)}, {vr(t0)}, {vr(t1)}')
        a(f'v_lshrrev_b32 {vr(E)}, {sh}, {vr(vLane)}'); a(f'v_lshl_add_u32 {vr(t0)}, {vr(E)}, 1, {vr(t0)}')
        a(f's_lshr_b32 s6, s{sSg}, 2'); a(f's_mul_i32 s6, s6, 80'); a(f's_lshl_b32 s{sO}, s{sSg}, 4'); a(f's_add_u32 s{sO}, s{sO}, s6')
        a(f's_mul_i32 s6, s{sSg}, 288'); a(f's_sub_u32 s6, s6, {16*288 - 128}')
        a(f's_cmp_ge_u32 s{sSg}, 16'); a(f's_cselect_b32 s{sO}, s6, s{sO}'); a('s_cselect_b64 vcc, -1, 0')
        a(f'v_cndmask_b32 {vr(vOo)}, {vr(vOo)}, {vr(t0)}, vcc'); a(f'v_lshlrev_b32 {vr(vOo)}, 1, {vr(vOo)}')
        a(f's_lshl_b32 s{sO}, s{sO}, 1'); a(f's_mul_i32 s6, s{sTb}, 2304'); a(f's_add_u32 s{sO}, s{sO}, s6')
        a('s_mul_i32 s6, s7, 1152'); a(f's_add_u32 s{sO}, s{sO}, s6')
        if cfg.rmf:
            SL = Y + 8
            a(f'v_and_b32 {vr(t1)}, 1, {vr(vLane)}'); a(f'v_lshlrev_b32 {vr(t1)}, 4, {vr(t1)}')
            a(f'v_mov_b32 {vr(E)}, 0x3f80'); a(f'v_lshlrev_b32 {vr(E)}, {vr(t1)}, {vr(E)}'); a(f'v_bfe_u32 {vr(t1)}, {vr(vLane)}, 1, 3')
            for r in range(4): a(f'v_cmp_eq_u32 vcc, {r}, {vr(t1)}'); a(f'v_cndmask_b32 {vr(SL+r)}, 0, {vr(E)}, vcc')
        stamp(9)
        if cfg.rnb:
            NL = V(16 * cfg.rnb, 4)
            a('s_sub_u32 s6, s7, 1')
            for k in range(8): a(f's_mov_b32 s{16+k}, {-1 if k < 4 else "s6"}')
            for k in range(16): a(f'v_mov_b32 {vr(U+k)}, {-1 if k < 8 else "s6"}')
            for k in range(16 * cfg.rnb): a(f'v_mov_b32 {vr(NL+k)}, -1')
            for t in range(4): a(f's_add_u32 s{24+t}, s{sY}, {t*16*1152}')
        else:
            a(f's_mul_i32 s{sDone}, s7, 12')
            for k in range(8, 16): a(f'v_mov_b32 {vr(U+k)}, 0')
        if cfg.flg & 1:
            a('s_cmp_eq_u32 s7, 0'); a('s_cbranch_scc1 R_a')
            a(f'v_mov_b32 {vr(E)}, 0'); ensure(C1, 32, E)
            a('R_a:')
        a(f's_mov_b32 s7, {cfg.spin_max}')
        if cfg.slow:
            a(f'v_lshrrev_b32 {vr(t0)}, 3, {vr(vLane)}'); a(f'v_mul_u32_u24 {vr(t0)}, 4608, {vr(t0)}')
            if cfg.sk: a('s_and_b32 s6, s20, 1'); a(f'v_lshlrev_b32 {vr(t0)}, s6, {vr(t0)}')
            a('R_slow:')
            a(f'buffer_load_dword {vr(E)}, {vr(t0)}, {srd(S_WS)}, s{sY} offen {cfg.r_flags}')
            a('s_waitcnt vmcnt(0)')
            a(f'v_cmp_ne_u32 vcc, -1, {vr(E)}')
            if cfg.sk: a('s_bcnt1_i32_b64 s6, vcc'); a(f's_cmp_ge_u32 s6, {8*cfg.sk}'); a('s_cbranch_scc1 R_pass')
            else: a('s_cbranch_vccnz R_pass')
            a(f's_sleep {cfg.slow}')
            a('s_sub_u32 s7, s7, 1'); a('s_cmp_lg_u32 s7, 1'); a('s_cbranch_scc1 R_slow')
        if cfg.rnb:
            MK = 16; mk = lambda t: f's[{MK+2*t}:{MK+2*t+1}]'
            def ld(j, t): a(f'buffer_load_dwordx4 {vr(NL+16*j+4*t,4)}, {vr(vYo)}, {srd(S_WS)}, s{24+t} offen {cfg.r_flags}')
            def merge(j):
                for t in range(4):
                    Ls = lab('ck'); y = U + 4 * t
                    a(f's_cmp_eq_u64 {mk(t)}, 0'); a(f's_cbranch_scc1 {Ls}')
                    for r in range(4): a(f'v_min_u32 {vr(y+r)}, {vr(y+r)}, {vr(NL+16*j+4*t+r)}')
                    a(f'v_max3_u32 {vr(E)}, {vr(y)}, {vr(y+1)}, {vr(y+2)}'); a(f'v_max_u32 {vr(E)}, {vr(E)}, {vr(y+3)}')
                    a(f'v_cmp_eq_u32 {mk(t)}, -1, {vr(E)}')
                    a(f'{Ls}:')
                a(f's_or_b64 s[28:29], {mk(0)}, {mk(1)}'); a(f's_or_b64 s[30:31], {mk(2)}, {mk(3)}')
                a('s_or_b64 s[28:29], s[28:29], s[30:31]'); a('s_cbranch_scc0 R_done')
            def issue(j):
                for t in range(4): a(f's_or_b64 exec, {mk(t)}, 1'); ld(j, t)
                a('s_mov_b64 exec, -1')
            a('R_pass:')
            for t in range(4):
                Ls = lab('ld')
                a(f's_mov_b64 exec, {mk(t)}'); a(f's_cbranch_execz {Ls}'); ld(0, t); a(f'{Ls}:')
            a('s_mov_b64 exec, -1'); a('s_waitcnt vmcnt(0)')
            merge(0)
            a(f's_bcnt1_i32_b64 s6, {mk(0)}')
            for t in range(1, 4): a(f's_bcnt1_i32_b64 s28, {mk(t)}'); a('s_add_u32 s6, s6, s28')
            a(f's_cmp_le_u32 s6, {4*cfg.rth}'); a('s_cbranch_scc1 R_fast')
            if cfg.rsleep: a(f's_sleep {cfg.rsleep}')
            a('s_sub_u32 s7, s7, 1'); a('s_cmp_gt_u32 s7, 1'); a('s_cbranch_scc1 R_pass')
            a('R_fast:')
            for j in range(cfg.rnb):
                if j: a(f's_sleep {cfg.rd}')
                issue(j)
            a('R_loop:')
            for j in range(cfg.rnb):
                a(f's_waitcnt vmcnt({4*(cfg.rnb-1)})'); merge(j); issue(j)
            a('s_sub_u32 s7, s7, 1'); a('s_cmp_gt_i32 s7, 0'); a('s_cbranch_scc1 R_loop')
        else:
            a('R_pass:')
            for t in range(4):
                Ls = lab('ld')
                a(f's_bitcmp1_b32 s{sDone}, {t}'); a(f's_cbranch_scc1 {Ls}')
                a(f's_add_u32 s6, s{sY}, {t*16*1152}')
                a(f'buffer_load_dwordx4 {vr(U+4*t,4)}, {vr(vYo)}, {srd(S_WS)}, s6 offen {cfg.r_flags}')
                a(f'{Ls}:')
            a('s_waitcnt vmcnt(0)')
            for t in range(4):
                Ls = lab('ck'); y = U + 4 * t
                a(f's_bitcmp1_b32 s{sDone}, {t}'); a(f's_cbranch_scc1 {Ls}')
                a(f'v_max3_u32 {vr(E)}, {vr(y)}, {vr(y+1)}, {vr(y+2)}'); a(f'v_max_u32 {vr(E)}, {vr(E)}, {vr(y+3)}')
                a(f'v_cmp_eq_u32 vcc, -1, {vr(E)}')
                a(f's_cbranch_vccnz {Ls}')
                a(f's_bitset1_b32 s{sDone}, {t}')
                a(f'{Ls}:')
            a(f's_cmp_eq_u32 s{sDone}, 15'); a('s_cbranch_scc1 R_done')
            if cfg.rsleep: a(f's_sleep {cfg.rsleep}')
            a('s_sub_u32 s7, s7, 1'); a('s_cmp_lg_u32 s7, 0'); a('s_cbranch_scc1 R_pass')
        a('R_done:')
        stamp(10)
        if cfg.rmf:
            for t in range(4): a(f'v_mfma_f32_16x16x32_bf16 {vr(Y,4)}, {vr(SL,4)}, {vr(U+4*t,4)}, {vr(Y,4) if t else 0}')
            for r in range(4): a(f'v_add_f32_dpp {vr(Y+4+(r&1))}, {vr(Y+r)}, {vr(Y+r)} row_ror:8 row_mask:0xf bank_mask:{0xc if r > 1 else 0x3:#x}')
            a(f'v_add_f32_dpp {vr(E)}, {vr(Y+4)}, {vr(Y+4)} row_shl:4 row_mask:0xf bank_mask:0x5')
            a(f'v_add_f32_dpp {vr(E)}, {vr(Y+5)}, {vr(Y+5)} row_shr:4 row_mask:0xf bank_mask:0xa')
            a('s_mov_b64 exec, 0xffffffff')
            a(f'v_cvt_pk_bf16_f32 {vr(E)}, {vr(E)}, {vr(E)}')
        else:
            for k in range(16):
                a(f'v_lshlrev_b32 {vr(Y+2*k)}, 16, {vr(U+k)}'); a(f'v_and_b32 {vr(Y+2*k+1)}, 0xffff0000, {vr(U+k)}')
            for st in (16, 8):
                for k in range(0, st, 2): a(f'v_pk_add_f32 {vr(Y+k,2)}, {vr(Y+k,2)}, {vr(Y+k+st,2)}')
            for t in range(4): a(f'v_permlane32_swap_b32 {vr(Y+t)}, {vr(Y+t+4)}')
            for t in (0, 2): a(f'v_pk_add_f32 {vr(Y+t,2)}, {vr(Y+t,2)}, {vr(Y+t+4,2)}')
            for t in range(2): a(f'v_permlane16_swap_b32 {vr(Y+t)}, {vr(Y+t+2)}')
            a(f'v_pk_add_f32 {vr(Y,2)}, {vr(Y,2)}, {vr(Y+2,2)}')
            for t in range(2): a(f'v_add_f32_dpp {vr(Y+t)}, {vr(Y+t)}, {vr(Y+t)} row_ror:4 {DPPF}')
            a(f'v_add_f32_dpp {vr(E)}, {vr(Y)}, {vr(Y)} row_ror:8 row_mask:0xf bank_mask:0x3')
            a(f'v_add_f32_dpp {vr(E)}, {vr(Y+1)}, {vr(Y+1)} row_ror:8 row_mask:0xf bank_mask:0xc')
            a(f'v_cvt_pk_bf16_f32 {vr(E)}, {vr(E)}, {vr(E)}')
            a('s_mov_b32 exec_lo, 0x0f0f0f0f'); a('s_mov_b32 exec_hi, 0x0f0f0f0f')
        a(f'buffer_store_short {vr(E)}, {vr(vOo)}, {srd(S_OUT)}, s{sO} offen {cfg.out_flags}')
        a('s_mov_b64 exec, -1')
    else:
        a(f's_mul_i32 s{sY}, s{sTb}, {8 * SA}')
        if cfg.cd and not cfg.cell: a(f's_lshr_b32 s{sY}, s{sY}, s7')
        a(f's_lshl_b32 s6, s{sSg}, 7'); a(f's_add_u32 s{sY}, s{sY}, s6')
        a(f's_mul_i32 s6, s7, {YB - YA}'); a(f's_add_u32 s{sY}, s{sY}, s6'); a(f's_add_u32 s{sY}, s{sY}, {YA}')
        a(f's_mul_i32 s{sO}, s{sTb}, 2304'); a(f's_lshl_b32 s6, s{sSg}, 6'); a(f's_add_u32 s{sO}, s{sO}, s6')
        a('s_mul_i32 s6, s7, 1152'); a(f's_add_u32 s{sO}, s{sO}, s6')
        a(f'v_lshrrev_b32 {vr(t0)}, 3, {vr(vLane)}'); a(f'v_and_b32 {vr(t1)}, 7, {vr(vLane)}')
        a(f'v_mul_u32_u24 {vr(vYo)}, 2304, {vr(t0)}'); a(f'v_lshl_add_u32 {vr(vYo)}, {vr(t1)}, 4, {vr(vYo)}')
        if cfg.cell:
            a(f's_mul_i32 s6, s7, {SB - 9216}'); a(f'v_lshrrev_b32 {vr(t0)}, 5, {vr(vLane)}'); a(f'v_mul_u32_u24 {vr(t0)}, s6, {vr(t0)}')
            a(f'v_add_u32 {vr(vYo)}, {vr(vYo)}, {vr(t0)}'); a(f's_lshl_b32 s{sTau}, {cfg.cell}, s7')
        a(f'v_bfe_u32 {vr(t0)}, {vr(vLane)}, 2, 1'); a(f'v_lshl_add_u32 {vr(t0)}, {vr(t0)}, 2, {vr(vG)}')
        a(f'v_and_b32 {vr(t1)}, 3, {vr(vLane)}'); a(f'v_lshl_add_u32 {vr(t0)}, {vr(t0)}, 2, {vr(t1)}'); a(f'v_lshlrev_b32 {vr(vOo)}, 1, {vr(t0)}')
        stamp(9)
        if cfg.cd:
            a(f's_mul_i32 s{sDone}, s7, 0xf0')
            for k in range(16, 32): a(f'v_mov_b32 {vr(Y+k)}, 0')
        else: a(f's_mov_b32 s{sDone}, 0')
        a(f's_mov_b32 s7, {cfg.spin_max}')
        if cfg.slow:
            a(f'v_lshrrev_b32 {vr(t0)}, 3, {vr(vLane)}'); a(f'v_mul_u32_u24 {vr(t0)}, {cfg.cell or 9216}, {vr(t0)}')
            a('R_slow:')
            a(f'buffer_load_dword {vr(E)}, {vr(t0)}, {srd(S_WS)}, s{sY} offen {cfg.r_flags}')
            a('s_waitcnt vmcnt(0)')
            a(f'v_cmp_ne_u32 vcc, -1, {vr(E)}')
            a('s_cbranch_vccnz R_pass')
            a(f's_sleep {cfg.slow}')
            a('s_sub_u32 s7, s7, 1'); a('s_cmp_lg_u32 s7, 1'); a('s_cbranch_scc1 R_slow')
        a('R_pass:')
        for t in range(8):
            Ls = lab('ld')
            a(f's_bitcmp1_b32 s{sDone}, {t}'); a(f's_cbranch_scc1 {Ls}')
            if cfg.cell: a(f's_mul_i32 s6, s{sTau}, {t}'); a(f's_add_u32 s6, s6, s{sY}')
            else: a(f's_add_u32 s6, s{sY}, {t*8*2304}')
            a(f'buffer_load_dwordx4 {vr(Y+4*t,4)}, {vr(vYo)}, {srd(S_WS)}, s6 offen {cfg.r_flags}')
            a(f'{Ls}:')
        a('s_waitcnt vmcnt(0)')
        for t in range(8):
            Ls = lab('ck'); y = Y + 4 * t
            a(f's_bitcmp1_b32 s{sDone}, {t}'); a(f's_cbranch_scc1 {Ls}')
            a(f'v_max3_u32 {vr(E)}, {vr(y)}, {vr(y+1)}, {vr(y+2)}'); a(f'v_max_u32 {vr(E)}, {vr(E)}, {vr(y+3)}')
            a(f'v_cmp_eq_u32 vcc, -1, {vr(E)}')
            a(f's_cbranch_vccnz {Ls}')
            a(f's_bitset1_b32 s{sDone}, {t}')
            a(f'{Ls}:')
        a(f's_cmp_eq_u32 s{sDone}, 255'); a('s_cbranch_scc1 R_done')
        if cfg.rsleep: a(f's_sleep {cfg.rsleep}')
        a('s_sub_u32 s7, s7, 1'); a('s_cmp_lg_u32 s7, 0'); a('s_cbranch_scc1 R_pass')
        a('R_done:')
        stamp(10)
        for st in (16, 8, 4):
            for k in range(0, st, 2): a(f'v_pk_add_f32 {vr(Y+k,2)}, {vr(Y+k,2)}, {vr(Y+k+st,2)}')
        a(f'v_permlane32_swap_b32 {vr(AS)}, {vr(AS+2)}'); a(f'v_permlane32_swap_b32 {vr(AS+1)}, {vr(AS+3)}')
        a(f'v_add_f32 {vr(AS)}, {vr(AS)}, {vr(AS+2)}'); a(f'v_add_f32 {vr(AS+1)}, {vr(AS+1)}, {vr(AS+3)}')
        a(f'v_permlane16_swap_b32 {vr(AS)}, {vr(AS+1)}')
        a(f'v_add_f32 {vr(AS)}, {vr(AS)}, {vr(AS+1)}')
        a(f'v_add_f32_dpp {vr(AS)}, {vr(AS)}, {vr(AS)} row_ror:8 {DPPF}')
        a(f'v_cvt_pk_bf16_f32 {vr(AS)}, {vr(AS)}, {vr(AS)}')
        a('s_mov_b32 exec_lo, 0x00ff00ff'); a('s_mov_b32 exec_hi, 0x00ff00ff')
        a(f'buffer_store_short {vr(AS)}, {vr(vOo)}, {srd(S_OUT)}, s{sO} offen {cfg.out_flags}')
        a('s_mov_b64 exec, -1')
    if cfg.dyn:
        a(f's_cmp_lg_u32 s{sW}, 0'); a('s_cbranch_scc1 B_fin')
        a(f'ds_write_b32 {vr(vC0)}, {vr(vC0)}'); a('s_waitcnt lgkmcnt(0)')
        a('B_fin:')
    stamp(11)
    a('B_end:')
    stamp_flush(t0, 'B')
    a('s_endpgm')
    if cfg.dyn: gen_helper(vLane, sHalf, sBeta, base, vC0)

def gen_helper(vLane, sHalf, sBeta, base, vFl):
    V = VAlloc(base)
    PG = V(4, 4); vA = V(); vB = V(); vO = V(); vP = V(); S = V(); t = V(); dm = V(2)
    pf, p, d, sS, sJ, sD, sN = 16, 20, 24, 28, 29, 30, 31
    BIG = 0x2000000
    a('H_start:')
    if cfg.xh:
        a(f's_bitcmp1_b32 s{sH}, 2'); a('s_cbranch_scc1 B_end')
        a(f's_add_u32 s{sH}, s{sH}, {cfg.xd}'); a(f's_and_b32 s{sH}, s{sH}, 31')
    a(f's_lshl_b32 s6, s{sHalf}, 6'); a(f's_add_u32 s6, s6, s{sH}'); a('s_lshl_b32 s6, s6, 20')
    mk_srd(S_V, P_V, 's6', BIG + 0x100000)
    a(f'v_lshlrev_b32 {vr(vA)}, 7, {vr(vLane)}'); a(f'v_and_b32 {vr(vB)}, 4095, {vr(vA)}'); a(f'v_add_u32 {vr(vA)}, 4096, {vr(vA)}')
    a(f'v_lshrrev_b32 {vr(t)}, 5, {vr(vLane)}'); a(f'v_mul_u32_u24 {vr(t)}, 20480, {vr(t)}'); a(f'v_add_u32 {vr(vB)}, {vr(vB)}, {vr(t)}')
    if cfg.hloc:
        a(f's_and_b32 s6, s{sBeta}, 56'); a(f'v_and_b32 {vr(vP)}, 7, {vr(vLane)}'); a(f'v_add_u32 {vr(vP)}, s6, {vr(vP)}')
        a(f'v_mul_u32_u24 {vr(vP)}, {cfg.psp}, {vr(vP)}')
    else: a(f'v_mul_u32_u24 {vr(vP)}, {cfg.psp}, {vr(vLane)}')
    a(f'v_add_u32 {vr(vP)}, {PROG}, {vr(vP)}')
    if cfg.pxs != 8 * cfg.psp: a(f's_lshr_b32 s7, s{sH}, 2'); a(f's_mul_i32 s7, s7, {cfg.pxs - 8 * cfg.psp}'); a(f'v_add_u32 {vr(vP)}, s7, {vr(vP)}')
    for j in range(3): a(f's_mov_b32 s{pf+j}, 43')
    a(f's_mov_b32 s{sN}, {cfg.spin_max}')
    if cfg.dyn == 2: a('s_branch H_end')
    if cfg.mon: a(f's_cmp_eq_u32 s{sW}, 1'); a('s_cbranch_scc1 M_start')
    NP = 4 if cfg.mon and not cfg.thr else 3
    def psum():
        for j in range(3):
            if cfg.ctl:
                a(f'v_subrev_u32 {vr(PG+j)}, {44 - cfg.hoff}, {vr(PG+j)}')
                if not cfg.hlo: a(f'v_cmp_lt_i32 vcc, {cfg.hoff}, {vr(PG+j)}'); a(f'v_cndmask_b32 {vr(PG+j)}, -1, {vr(PG+j)}, vcc')
            a(f'v_med3_i32 {vr(PG+j)}, {vr(PG+j)}, {-cfg.hlo if cfg.hlo else -1}, {28 + cfg.hoff}')
        a(f'v_add3_u32 {vr(S)}, {vr(PG)}, {vr(PG+1)}, {vr(PG+2)}')
        for sh in (4, 2, 1): a(f'v_add_u32_dpp {vr(S)}, {vr(S)}, {vr(S)} row_ror:{sh} {DPPF}')
        a(f'v_lshlrev_b32 {vr(S)}, 3, {vr(S)}')
        a(f'v_readfirstlane_b32 s{sS}, {vr(S)}')
    a(f'buffer_load_dwordx{NP} {vr(PG,NP)}, {vr(vP)}, {srd(S_WS)}, 0 offen {cfg.pl_flags}')
    a('s_waitcnt vmcnt(0)')
    a('H_loop:')
    psum()
    for j in range(3): a(f'v_readlane_b32 s{p+j}, {vr(PG+j)}, s{sBeta}')
    if NP == 4: a(f'v_readlane_b32 s6, {vr(PG+3)}, 7'); a(f's_add_i32 s{sS}, s{sS}, s6')
    if cfg.hforce:
        a(f's_and_b32 s6, s2, 7'); a(f's_mov_b32 s7, {cfg.hforce}'); a('s_bitcmp1_b32 s7, s6'); a(f's_cselect_b32 s6, {cfg.hfa}, 0'); a(f's_add_i32 s{sS}, s{sS}, s6')
    a(f'buffer_load_dwordx{NP} {vr(PG,NP)}, {vr(vP)}, {srd(S_WS)}, 0 offen {cfg.pl_flags}')
    NEG = -(1 << 20)
    for j in range(3):
        a(f's_mul_i32 s6, s{p+j}, 192'); a(f's_sub_i32 s{d+j}, s{sS}, s6')
        a(f's_mul_i32 s6, s{pf+j}, {cfg.hK}'); a(f's_add_i32 s{d+j}, s{d+j}, s6')
        a(f's_add_i32 s6, s{pf+j}, {cfg.hoff - 16 - cfg.hmar}'); a(f's_cmp_ge_i32 s6, s{p+j}')
        a(f's_cselect_b32 s{d+j}, s{d+j}, {NEG}')
    if cfg.xh:
        for j in range(3):
            a(f's_lshl_b32 s{d+j}, s{pf+j}, 12'); a(f's_cmp_gt_i32 s{pf+j}, {43 - cfg.xh}'); a(f's_cselect_b32 s{d+j}, s{d+j}, {NEG}')
    a(f's_cmp_ge_i32 s{d}, s{d+1}'); a(f's_cselect_b32 s{sJ}, 0, 1'); a(f's_max_i32 s{sD}, s{d}, s{d+1}')
    a(f's_cmp_ge_i32 s{sD}, s{d+2}'); a(f's_cselect_b32 s{sJ}, s{sJ}, 2'); a(f's_max_i32 s{sD}, s{sD}, s{d+2}')
    a(f's_cmp_eq_i32 s{sD}, {NEG}'); a('s_cbranch_scc1 H_end')
    a(f's_sub_u32 s{sN}, s{sN}, 1'); a(f's_cmp_eq_u32 s{sN}, 0'); a('s_cbranch_scc1 H_end')
    a(f's_cmp_lt_i32 s{sD}, {43 * cfg.hK + cfg.hth}'); a('s_cbranch_scc1 H_idle')
    for j in range(3):
        a(f's_cmp_eq_u32 s{sJ}, {j}'); a(f's_cselect_b32 s6, s{pf+j}, s6'); a(f's_subb_u32 s{pf+j}, s{pf+j}, 0')
    a('s_mul_i32 s6, s6, 24576'); a('s_sub_u32 s6, s6, 32768')
    a(f's_cmp_eq_u32 s{sJ}, 2'); a(f's_cselect_b32 s7, {BIG}, 0'); a('s_add_u32 s6, s6, s7')
    a(f's_cmp_eq_u32 s{sJ}, 1'); a('s_cselect_b64 vcc, -1, 0'); a('s_cselect_b32 s7, 25, 13'); a('s_lshl_b32 s7, 1, s7'); a('s_add_u32 s7, s7, s6')
    a(f'v_cndmask_b32 {vr(vO)}, {vr(vA)}, {vr(vB)}, vcc')
    a(f'buffer_load_dword {vr(dm)}, {vr(vO)}, {srd(S_V)}, s6 offen {cfg.h_flags}')
    a(f'buffer_load_dword {vr(dm+1)}, {vr(vO)}, {srd(S_V)}, s7 offen {cfg.h_flags}')
    a('s_waitcnt vmcnt(2)')
    a('s_branch H_loop')
    a('H_idle:')
    a(f'ds_read_b32 {vr(t)}, {vr(vFl)}')
    a('s_waitcnt vmcnt(0) lgkmcnt(0)'); a(f's_sleep {cfg.hsleep}')
    a(f'v_cmp_eq_u32 vcc, 0, {vr(t)}')
    a('s_cbranch_vccnz H_loop')
    a('H_end:')
    if cfg.stamps:
        a(f's_add_u32 s98, s{pf}, s{pf+1}'); a(f's_add_u32 s98, s98, s{pf+2}'); a('s_sub_u32 s98, 129, s98')
        a(f's_lshl_b32 s99, s{pf+1}, 8'); a(f's_or_b32 s99, s99, s{pf}'); a(f's_lshl_b32 s6, s{pf+2}, 16'); a('s_or_b32 s99, s99, s6')
    stamp(8)
    a('s_branch B_end')
    if cfg.ctl:
        mon = Mon(V(8, 4))
        a('M2_start:')
        mon.init(vLane, sBeta)
        a(f's_mov_b32 s{sN}, {cfg.spin_max}')
        a('M2_loop:')
        mon.loads()
        a(f'ds_read_b32 {vr(t)}, {vr(vFl)}')
        a('s_waitcnt vmcnt(0) lgkmcnt(0)')
        mon.step()
        if cfg.msleep: a(f's_sleep {cfg.msleep}')
        a(f's_cmp_ge_i32 s{mon.sS}, {192 * (28 + cfg.tm1 - 4)}'); a('s_cbranch_scc1 B_end')
        a(f's_sub_u32 s{sN}, s{sN}, 1'); a(f's_cmp_eq_u32 s{sN}, 0'); a('s_cbranch_scc1 B_end')
        a(f'v_cmp_eq_u32 vcc, 0, {vr(t)}')
        a('s_cbranch_vccnz M2_loop')
        a('s_branch B_end')
    if cfg.mon:
        GL = PROG + 0x8000; sX, sG, sDl, sO, sL = 16, 17, 18, 19, 20
        a('M_start:')
        a(f'v_and_b32 {vr(vA)}, {cfg.mref-1}, {vr(vLane)}'); a(f'v_lshlrev_b32 {vr(vA)}, 7, {vr(vA)}'); a(f'v_add_u32 {vr(vA)}, {GL}, {vr(vA)}')
        if cfg.mref == 4: a(f's_and_b32 s6, s{sBeta}, 32'); a('s_lshl_b32 s6, s6, 4'); a(f'v_add_u32 {vr(vA)}, s6, {vr(vA)}')
        a(f's_lshr_b32 s{sX}, s{sBeta}, 3'); a(f's_lshl_b32 s{sG}, s{sX}, 7'); a(f's_add_u32 s{sG}, s{sG}, {GL}')
        a(f's_mul_i32 s{sL}, s{sBeta}, {cfg.psp}'); a(f's_add_u32 s{sL}, s{sL}, {PROG + 12}')
        if cfg.thr: a(f's_sub_u32 s{sL}, s{sG}, 0x4000')
        a(f's_mov_b32 s{sDl}, 0')
        a('M_loop:')
        a(f'buffer_load_dwordx3 {vr(PG,3)}, {vr(vP)}, {srd(S_WS)}, 0 offen {cfg.pl_flags}')
        a(f'buffer_load_dword {vr(vB)}, {vr(vA)}, {srd(S_WS)}, 0 offen sc1')
        a(f'ds_read_b32 {vr(t)}, {vr(vFl)}')
        a('s_waitcnt vmcnt(1)')
        psum()
        a('s_mov_b64 exec, 1')
        a(f'buffer_store_dword {vr(S)}, off, {srd(S_WS)}, s{sG} sc1')
        a('s_mov_b64 exec, -1')
        a('s_waitcnt vmcnt(1) lgkmcnt(0)')
        a(f'v_readlane_b32 s{sO}, {vr(vB)}, s{sX}')
        a(f'v_cmp_eq_u32 vcc, -1, {vr(vB)}')
        a(f's_cmp_eq_u32 s{sO}, -1'); a('s_cbranch_scc1 M_next')
        a(f'v_subrev_u32 {vr(vB)}, s{sO}, {vr(vB)}')
        a(f'v_cndmask_b32 {vr(vB)}, {vr(vB)}, 0, vcc')
        for sh in (4, 2, 1): a(f'{"v_min_i32_dpp" if cfg.mmin else "v_add_u32_dpp"} {vr(vB)}, {vr(vB)}, {vr(vB)} row_ror:{sh} {DPPF}')
        a(f'v_readfirstlane_b32 s6, {vr(vB)}')
        if not cfg.mmin: a(f's_mul_i32 s6, s6, {cfg.mg}'); a('s_ashr_i32 s6, s6, 5')
        a(f's_sub_i32 s6, s6, s{sDl}'); a(f's_ashr_i32 s6, s6, {cfg.mf}'); a(f's_add_i32 s{sDl}, s{sDl}, s6')
        if cfg.thr:
            a(f's_cmp_lt_i32 s{sDl}, {-cfg.mth}')
            if cfg.tforce: a(f's_mov_b32 s6, {cfg.tforce}'); a(f's_bitcmp1_b32 s6, s{sX}')
            a('s_cselect_b32 s6, 1, 0'); a(f'v_mov_b32 {vr(vO)}, s6')
        else: a(f'v_mov_b32 {vr(vO)}, s{sDl}')
        a('s_mov_b64 exec, 1')
        a(f'buffer_store_dword {vr(vO)}, off, {srd(S_WS)}, s{sL}')
        a('s_mov_b64 exec, -1')
        a('M_next:')
        if cfg.msleep: a(f's_sleep {cfg.msleep}')
        a(f's_cmp_ge_i32 s{sS}, {192 * (28 + cfg.hoff)}'); a('s_cbranch_scc1 M_end')
        a(f's_sub_u32 s{sN}, s{sN}, 1'); a(f's_cmp_eq_u32 s{sN}, 0'); a('s_cbranch_scc1 M_end')
        a(f'v_cmp_eq_u32 vcc, 0, {vr(t)}')
        a('s_cbranch_vccnz M_loop')
        a('M_end:')
        if cfg.stamps: a(f's_sub_u32 s98, {cfg.spin_max}, s{sN}')
        a('s_branch B_end')

def gen():
    hdr = open('/code/' + NAME + '.s.ref').read().split('; Override')[0]
    a(f'{NAME}_kernel:')
    if cfg.stamps: a('s_memrealtime s[78:79]')
    a('s_cmp_ge_u32 s2, 256'); a('s_cbranch_scc1 L_exit')
    a('s_load_dwordx16 s[16:31], s[0:1], 0'); a('s_load_dwordx8 s[32:39], s[0:1], 64'); a('s_load_dwordx4 s[40:43], s[0:1], 96')
    a('v_lshrrev_b32 v1, 6, v0'); a(f'v_readfirstlane_b32 s{sW}, v1')
    if cfg.hmap == 0:
        a('s_and_b32 s6, s2, 7'); a('s_bfe_u32 s7, s2, 0x20003'); a(f's_lshl_b32 s{sH}, s6, 2'); a(f's_add_u32 s{sH}, s{sH}, s7')
    else:
        a(f's_and_b32 s{sH}, s2, 31')
    a(f's_lshr_b32 s{sR}, s2, 5')
    if cfg.stamps:
        for k in range(0, 16, 2): a(f's_mov_b64 s[{84+k}:{85+k}], 0')
    if cfg.djmp: a('s_cbranch_scc0 B_role'); a(f's_cmp_eq_u32 s{sR}, 1'); a('s_cbranch_scc1 D_role')
    else: a(f's_cmp_lt_u32 s{sR}, 2'); a('s_cbranch_scc1 B_role')
    gen_A()
    a('L_exit:'); a('s_endpgm')
    gen_CD() if cfg.cd else gen_B()
    body = a.finish()
    out = hdr + f'; @launch grid=(256,1,1) block=(256,1,1) lds={LDS_TOTAL}\n'
    out += '; generated by gen/gen.py (hand-written generator)\n'
    out += f'.amdgcn_target "amdgcn-amd-amdhsa--gfx950"\n.text\n.globl {NAME}_kernel\n.p2align 8\n.type {NAME}_kernel,@function\n'
    out += body
    out += f'''.section .rodata,"a"
.p2align 6
.amdhsa_kernel {NAME}_kernel
  .amdhsa_next_free_vgpr 512
  .amdhsa_next_free_sgpr 102
  .amdhsa_accum_offset 256
  .amdhsa_group_segment_fixed_size 0
  .amdhsa_kernarg_size 112
  .amdhsa_user_sgpr_count 2
  .amdhsa_user_sgpr_kernarg_segment_ptr 1
  .amdhsa_system_sgpr_workgroup_id_x 1
.end_amdhsa_kernel
'''
    return out

if __name__ == '__main__':
    outp = sys.argv[1]
    for kv in sys.argv[2:]:
        k, v = kv.split('=', 1); v = v.replace('+', ' ')
        cur = getattr(cfg, k)
        setattr(cfg, k, (v == '1') if isinstance(cur, bool) else (int(v, 0) if isinstance(cur, int) else v))
    PART = cfg.part << 12; YA = cfg.ya << 12; YB = cfg.yb << 12; QABS = cfg.qa << 12
    if cfg.cell: SA = SB = SQ = cfg.cell; YA = PART + 32768; YB = YA + 18432; QABS = YB + 9216
    if cfg.astr > 64: AST = 0x600000
    if cfg.pstt > 256: PSTAT = 0xa00000
    open(outp, 'w').write(gen())
```

```python
import sys, math, struct
from asmlib import Asm, VM
NAME = 'concat_heads__mha_block_cached__compressed_kv_cla__decode'

class Cfg:
    stamps = False
    R = 8
    wq_flags = ''
    wo_flags = ''
    b_flags = 'nt'
    dma_t0 = 0
    dma_per = 4
    ev_trip = 16
    hmap = 0
    trips = False
    diag = ''
    rsleep = 0
    wq_per = 3
    spin_max = 400000
    noB = False
    bskip = 0
    askip = 0
    bstop = 0
    psleep = 16
    qsleep = 16
    nodma = False
    kv_flags = 'nt'
    warm = 0
    wqpf = 2
    dyn = 1
    hloc = 1
    dup = 0
    pl_flags = 'sc1'
    ps_flags = ''
    r_flags = 'sc1'
    psp = 16
    pper = 1
    hK = 24
    hth = 384
    hmar = 2
    hsleep = 4
    hoff = 3
    thr = 0
    mth = 96
    tm0 = 20
    tm1 = 42
    tforce = 0
    cthr = 4
    fast = 3
    est = 0
    y16 = 1
    pdel = 0
    t16 = 0
    pl2 = 'sc1'
    dsk2 = 0
    cell = 0
    mth2 = 100000
    lv2 = 2
    msh = 0
    gl_flags = 'sc1'
    gls = 1280
    astr = 64
    pstt = 0
    pth = 0
    vth = 0
    vth0 = 16
    vth1 = 99
    kper = 2
    fd = 8
    vper = 1
    pxs = 4352
    tf_flags = 'sc1'
    tfw = 0
    cdbg = 0
    mrate = 4
    ctl = 0
    thrk = 14
    toff = 1
    mal = 0
    hlo = 0
    cuv = 8
    cdn = 2
    tstat = 0
    tsv = 7
    rnb = 2
    rth = 12
    rmf = 1
    c0x = 2
    ne = 2
    ks1 = 0
    djmp = 1
    y_flags = 'sc1'
    sk = 4
    flg = 0
    pre4 = 1
    smf = 1
    rd = 5
    tsp = 2
    tst = ''
    part = 0x200
    ya = 0x400
    yb = 0x500
    qa = 0
    psx = 2
    hforce = 0
    hfa = 400
    dskip = 0
    dthr = 6
    mref = 8
    mmin = 0
    tdist = 3
    tper = 1
    nch = 8
    dloop = 0
    qslow = 8
    dpf = 0
    cd = 1
    slow = 8
    cw2 = 2
    cpre = 0
    dhold = 0
    pf_flags = ''
    qfull = 1
    pshare = 1
    c0_trip = 8
    ytouch = 0
    xh = 0
    xd = 4
    h_flags = ''
    mon = 0
    mf = 1
    mg = 4
    msleep = 0
    emu = 0
    bwq_flags = 'nt'
    pst_flags = 'sc1'
    pld_flags = 'sc1'
    clr_flags = 'sc1'
    yb_flags = 'sc1'
    dmask = 0
    dmul = 1
    out_flags = ''
    stag = '8,20,32'
    wopf_at = 4
    dgrp = 3
    dstep = 1
    vck = 0
    vcv = 0
    vsw = 16
    vcp = 63
    cwin = 2
    help = 0
    hsh = 4
    ev_per = 4
    wmix = 0
    st_per = 4
    kfirst = 0
    dma_mode = 0
    npv = 7
    st_m = 36
    ev2_m = 41
    dend = 4
    dm0 = 36
    dsl = 1
    xper = 4
    ev_slot = 12
    vhold = 0
cfg = Cfg()

QABS = 0x000000; PSTAT = 0x040000; AST = 0x050000; PROG = 0x060000; PART = 0x100000; YA = 0x400000; YB = 0x500000
WS_USED = 0x1000000
STAMP = 0x10000000
SA, SB, SQ = 18432, 9216, 4096
C1 = 192; C2 = 128
C0 = 0; C0N = 128; TFO = 0x10400
OOB = 0x7ff00000
LDS_TOTAL = 163840
SCALE = (128 ** -0.5) * math.log2(math.e)
def f2u(x): return struct.unpack('<I', struct.pack('<f', x))[0]

P_AX, P_K, P_V, P_WQ, P_WO, P_BX, P_CKV, P_BWQ, P_WUK, P_WUV, P_BWO, P_OUT, P_DBG, P_WS = 16, 18, 20, 22, 24, 26, 28, 30, 32, 34, 36, 38, 40, 42
S_X, S_W, S_K, S_V, S_WO, S_WS, S_DBG, S_OUT, S_U = 44, 48, 52, 56, 60, 64, 68, 72, 76
sW, sH, sR = 3, 4, 5
def srd(n): return f's[{n}:{n+3}]'
def vr(n, k=1): return f'v{n}' if k == 1 else f'v[{n}:{n+k-1}]'
def ar(n, k=1): return f'a{n}' if k == 1 else f'a[{n}:{n+k-1}]'

class VAlloc:
    def __init__(self, start=1): self.n = start
    def __call__(self, k=1, align=1):
        align = max(align, 2 if k > 1 else 1)
        self.n = (self.n + align - 1) // align * align
        r = self.n; self.n += k
        assert self.n <= 256, 'out of vgprs'
        return r

a = Asm()
nstamp = [0]
def stamp(k):
    if cfg.stamps:
        a(f's_memrealtime s[100:101]'); a('s_waitcnt lgkmcnt(0)'); a(f's_mov_b32 s{84+k}, s100')
def stamp_flush(vt, role=''):
    if cfg.diag:
        k = int(cfg.diag[1:]) if cfg.diag[0] == role else 0
        L = lab('diag')
        a(f's_cmp_eq_u32 s{84+k}, 0'); a(f's_cselect_b32 s6, s84, s{84+k}'); a('s_add_u32 s6, s6, 10000')
        a(f'{L}:'); a('s_sleep 4'); a('s_memrealtime s[100:101]'); a('s_waitcnt lgkmcnt(0)')
        a('s_sub_u32 s7, s100, s6'); a('s_cmp_lt_i32 s7, 0'); a(f's_cbranch_scc1 {L}')
        return
    if cfg.stamps:
        a(f's_lshl_b32 s6, s2, 2'); a(f's_add_u32 s6, s6, s{sW}'); a('s_lshl_b32 s6, s6, 6'); a(f's_add_u32 s6, s6, {STAMP}')
        a(f's_mov_b32 s{S_WS+2}, 0x20000000')
        a(f'v_mov_b32 {vr(vt+1)}, 0')
        a('s_mov_b64 exec, 1')
        for k in range(16):
            a(f'v_mov_b32 {vr(vt)}, s{84+k}')
            a(f'buffer_store_dword {vr(vt)}, {vr(vt+1)}, {srd(S_WS)}, s6 offen offset:{4*k}')
            a('s_nop 1')
        a('s_mov_b64 exec, -1')

def karg_wait():
    a('s_waitcnt lgkmcnt(0)')
    if cfg.stamps: a('s_mov_b32 s84, s78')
def mk_srd(d, p, off, size):
    if off is None:
        a(f's_mov_b32 s{d}, s{p}'); a(f's_mov_b32 s{d+1}, s{p+1}')
    else:
        a(f's_add_u32 s{d}, s{p}, {off}'); a(f's_addc_u32 s{d+1}, s{p+1}, 0')
    a(f's_mov_b32 s{d+2}, {size}'); a(f's_mov_b32 s{d+3}, 0x20000')

uid = [0]
def lab(p):
    uid[0] += 1
    return f'L_{p}_{uid[0]}'

def poll(coff, target, vt):
    L, D = lab('poll'), lab('polld')
    a(f's_cmp_lg_u32 s{sW}, 0'); a(f's_cbranch_scc1 {D}')
    a(f's_mov_b32 s7, {cfg.spin_max}')
    a(f'{L}:')
    a(f'buffer_load_dword {vr(vt)}, off, {srd(S_DBG)}, 0 offset:{coff} sc1')
    a('s_waitcnt vmcnt(0)')
    a(f'v_readfirstlane_b32 s6, {vr(vt)}')
    a(f's_cmp_ge_u32 s6, {target}'); a(f's_cbranch_scc1 {D}')
    a(f's_sleep {cfg.psleep}')
    a('s_sub_u32 s7, s7, 1'); a('s_cmp_lg_u32 s7, 0'); a(f's_cbranch_scc1 {L}')
    a(f'{D}:')
    a('s_barrier')

def ensure(coff, target, vt):
    if coff == C0 and cfg.c0x & 1: return
    if coff == C0 and cfg.c0x == 2: target = 32
    L, D = lab('ens'), lab('ensd')
    a(f's_mov_b32 s7, {cfg.spin_max}')
    a(f'{L}:')
    a(f'v_readfirstlane_b32 s6, {vr(vt)}')
    a(f's_cmp_ge_u32 s6, {target}'); a(f's_cbranch_scc1 {D}')
    a(f's_sleep {cfg.psleep}')
    a(f'buffer_load_dword {vr(vt)}, off, {srd(S_DBG)}, 0 offset:{coff} sc1')
    a('s_waitcnt vmcnt(0)')
    a('s_sub_u32 s7, s7, 1'); a('s_cmp_lg_u32 s7, 0'); a(f's_cbranch_scc1 {L}')
    a(f'{D}:')

def umax_tree(dst, regs):
    regs = list(regs)
    a(f'v_max3_u32 {vr(dst)}, {vr(regs[0])}, {vr(regs[1])}, {vr(regs[2])}'); regs = regs[3:]
    while len(regs) >= 2:
        a(f'v_max3_u32 {vr(dst)}, {vr(dst)}, {vr(regs[0])}, {vr(regs[1])}'); regs = regs[2:]
    if regs: a(f'v_max_u32 {vr(dst)}, {vr(dst)}, {vr(regs[0])}')

def signal(coff, vt):
    D = lab('sig')
    a('s_waitcnt vmcnt(0) lgkmcnt(0)'); a('s_barrier')
    a(f's_cmp_lg_u32 s{sW}, 0'); a(f's_cbranch_scc1 {D}')
    a(f'v_mov_b32 {vr(vt)}, 1'); a('s_mov_b64 exec, 1')
    a(f'buffer_atomic_add {vr(vt)}, off, {srd(S_DBG)}, 0 offset:{coff}')
    a('s_mov_b64 exec, -1')
    a(f'{D}:')

def allred_rows(x, t, op):
    for sw in ('v_permlane16_swap_b32', 'v_permlane32_swap_b32'):
        a(f'v_mov_b32 {vr(t)}, {vr(x)}')
        a(f'{sw} {vr(x)}, {vr(t)}')
        a(f'{op} {vr(x)}, {vr(x)}, {vr(t)}')

DPPF = 'row_mask:0xf bank_mask:0xf'
def reduce4(T, X, S):
    a(f'v_add_f32_dpp {vr(X)}, {vr(T)}, {vr(T)} row_ror:8 row_mask:0xf bank_mask:0x3')
    a(f'v_add_f32_dpp {vr(X+1)}, {vr(T+1)}, {vr(T+1)} row_ror:8 row_mask:0xf bank_mask:0x3')
    a(f'v_add_f32_dpp {vr(X)}, {vr(T+2)}, {vr(T+2)} row_ror:8 row_mask:0xf bank_mask:0xc')
    a(f'v_add_f32_dpp {vr(X+1)}, {vr(T+3)}, {vr(T+3)} row_ror:8 row_mask:0xf bank_mask:0xc')
    a(f'v_add_f32_dpp {vr(S)}, {vr(X)}, {vr(X)} row_half_mirror row_mask:0xf bank_mask:0x5')
    a(f'v_add_f32_dpp {vr(S)}, {vr(X+1)}, {vr(X+1)} row_half_mirror row_mask:0xf bank_mask:0xa')
    a(f'v_add_f32_dpp {vr(S)}, {vr(S)}, {vr(S)} quad_perm:[1,0,3,2] {DPPF}')
    a(f'v_add_f32_dpp {vr(S)}, {vr(S)}, {vr(S)} quad_perm:[2,3,0,1] {DPPF}')

def mk_masks(vLane, MASK, SEL, t0, t1):
    a(f'v_and_b32 {vr(t0)}, 1, {vr(vLane)}'); a(f'v_lshlrev_b32 {vr(t0)}, 4, {vr(t0)}')
    a(f'v_mov_b32 {vr(t1)}, 0xffff'); a(f'v_lshlrev_b32 {vr(t0)}, {vr(t0)}, {vr(t1)}')
    a(f'v_bfe_u32 {vr(t1)}, {vr(vLane)}, 1, 2')
    for r in range(4):
        a(f'v_cmp_eq_u32 vcc, {r}, {vr(t1)}')
        a(f'v_cndmask_b32 {vr(MASK+r)}, 0, {vr(t0)}, vcc')
    a(f'v_mov_b32 {vr(t0)}, 0x0c0c0c0c')
    a('s_mov_b32 s6, 0x01000100'); a('s_mov_b32 s7, 0x03020302')
    for par in range(2):
        for r in range(4):
            a(f'v_bfi_b32 {vr(SEL+4*par+r)}, {vr(MASK+r)}, s{6+par}, {vr(t0)}')

def warm_code(l0, l1, vLane, t0, t1, n=2):
    L = lab('pc')
    a('s_getpc_b64 s[98:99]'); a(f'{L}:')
    for k in range(n):
        a(f'v_lshlrev_b32 {vr(t0)}, 7, v0')
        if k: a(f'v_add_u32 {vr(t0)}, {32768*k}, {vr(t0)}')
        a(f'v_min_u32 {vr(t0)}, {l1}-{L}, {vr(t0)}')
        a(f'global_load_dword {ar(255-k)}, {vr(t0)}, s[98:99]')

AW = 96

def x_loads(vm, X, vXoff, extra):
    for k in range(4):
        vm.issue(f'buffer_load_dwordx4 {vr(X+4*k,4)}, {vr(vXoff)}, {srd(S_X)}, 0 offen offset:{extra+16*k}', 'x')
    vm.issue(f'buffer_load_dwordx2 {vr(X+16,2)}, {vr(vXoff)}, {srd(S_X)}, 0 offen offset:{extra+64}', 'x')

def wunit_load(vm, jj, vWoff, flags):
    a(f's_mov_b32 s6, {jj*8192}')
    vm.issue(f'buffer_load_dwordx4 {ar(AW+4*jj,4)}, {vr(vWoff)}, {srd(S_W)}, s6 offen {flags}', ('w', jj))

def wunit_mfma(jj, Xs, ACCs, SEL, PA, W=None):
    for s, (X, ACC) in enumerate(zip(Xs, ACCs)):
        P = PA + 4 * ((jj * len(Xs) + s) & 3)
        for r in range(4):
            a(f'v_perm_b32 {vr(P+r)}, {vr(X+jj//2)}, {vr(X+jj//2)}, {vr(SEL+4*(jj&1)+r)}')
        c = '0' if jj == 0 else vr(ACC, 4)
        a(f'v_mfma_f32_16x16x32_bf16 {vr(ACC,4)}, {vr(P,4)}, {ar(AW+4*jj,4) if W is None else vr(W+4*jj,4)}, {c}')

def wo_frag_list(nks, vT, pair=False):
    out = []
    if pair:
        for j in range(4):
            for ks in range(nks):
                for i in range(4):
                    out.append(f'ds_read_b64_tr_b16 {ar(AW+8*(j*nks+ks)+2*i,2)}, {vr(vT + (2 if ks >= 2 else 0))} offset:{(32 * (ks & 1) + 2 * (i & 1) + 16 * (i >> 1)) * 1152 + 8 * j}')
    for t in range(8 if pair else 0, 9):
        for ks in range(nks):
            for sec in range(2):
                reg = vT + (1 if t == 8 else 0) + (2 if ks >= 2 else 0)
                off = (32 * (ks & 1) + 4 * sec) * 1152 + (0 if t == 8 else 128 * (t >> 2) + 8 * (t & 3))
                out.append(f'ds_read_b64_tr_b16 {ar(AW+4*(t*nks+ks)+2*sec,2)}, {vr(reg)} offset:{off}')
    return out
def wo_frag_reads(nks, vT):
    for t in wo_frag_list(nks, vT): a(t)

def mk_wo_tr_addr(vLane, vT, t0, t1, two, pair=False):
    a(f'v_lshrrev_b32 {vr(t0)}, 4, {vr(vLane)}'); a(f'v_lshlrev_b32 {vr(t0)}, 3, {vr(t0)}')
    a(f'v_bfe_u32 {vr(t1)}, {vr(vLane)}, 2, 2'); a(f'v_add_u32 {vr(t0)}, {vr(t0)}, {vr(t1)}')
    a(f'v_mul_u32_u24 {vr(t0)}, 1152, {vr(t0)}')
    a(f's_mul_i32 s6, s{sW}, 288'); a(f'v_add_u32 {vr(t0)}, s6, {vr(t0)}')
    a(f'v_and_b32 {vr(t1)}, 3, {vr(vLane)}')
    a(f'v_lshl_add_u32 {vr(vT)}, {vr(t1)}, 5, {vr(t0)}')
    a(f'v_lshl_add_u32 {vr(vT+1)}, {vr(t1)}, 3, {vr(t0)}'); a(f'v_add_u32 {vr(vT+1)}, 256, {vr(vT+1)}')
    if pair:
        a(f'v_bfe_u32 {vr(t1)}, {vr(vLane)}, 3, 1'); a(f'v_mul_u32_u24 {vr(t1)}, {2304 - 128}, {vr(t1)}'); a(f'v_sub_u32 {vr(vT)}, {vr(vT)}, {vr(t1)}')
        a(f'v_lshrrev_b32 {vr(t1)}, 4, {vr(vLane)}'); a(f'v_mul_u32_u24 {vr(t1)}, 4608, {vr(t1)}'); a(f'v_sub_u32 {vr(vT)}, {vr(vT)}, {vr(t1)}')
    if two:
        a(f'v_add_u32 {vr(vT+2)}, 73728, {vr(vT)}'); a(f'v_add_u32 {vr(vT+3)}, 73728, {vr(vT+1)}')

def gen_A():
    R = cfg.R; NT = 11; RT = R // 4
    assert R % 4 == 0
    V = VAlloc(1)
    vLane = V(); vL16 = V(); vWoff = V(); vXoff = V(); t0 = V(); t1 = V(); vC = V()
    MASK = V(4); SEL = V(8); ACC = V(4, 4); Q = V(4); T = V(4); XX = V(2); S = V(); M = V(); M2 = V(); fN = V()
    X = V(20, 4); PA = V(16, 4); D = X
    P = V(NT); vT = V(4); vY = V(); vY8 = V(); vOw = V(); vOr = V(); vC0 = V(); G = V(8); F = V(4); O = V(6, 2); vTS = V(); vPg = V(); vPo = V()
    KR = V(16 * R, 4)
    QRED = 147456; OT = QRED + 4096
    sJJ, sPair, sB, sRank, sOff, sReal, sBeg, sD, sDn, sTrip, sSt, sBsel = 8, 9, 10, 11, 12, 13, 14, 15, 80, 81, 82, 83
    sMk = 72
    sVo = 34
    STEP = 6 * 4096
    a('A_role:')
    a(f's_sub_u32 s{sJJ}, s{sR}, 2')
    if cfg.ks1 > 1:
        a(f's_lshl2_add_u32 s6, s{sJJ}, s{sW}'); a(f's_mul_i32 s{sB}, s6, 43'); a(f's_lshr_b32 s{sB}, s{sB}, 8')
        a(f's_mul_i32 s7, s{sB}, 6'); a(f's_sub_u32 s{sRank}, s6, s7')
        a(f's_and_b32 s{sBsel}, s{sB}, 1'); a('s_cselect_b32 s7, 5, 1'); a(f's_add_u32 s{sRank}, s{sRank}, s7')
        a(f's_cmp_ge_u32 s{sRank}, 6'); a(f's_cselect_b32 s6, 6, 0'); a(f's_sub_u32 s{sRank}, s{sRank}, s6')
    else:
        a(f's_cmp_ge_u32 s{sJJ}, 3'); a(f's_cselect_b32 s{sPair}, 1, 0'); a(f's_cselect_b32 s6, 3, 0')
        a(f's_sub_u32 s{sJJ}, s{sJJ}, s6')
        a(f's_lshl_b32 s{sRank}, s{sJJ}, 2'); a(f's_add_u32 s{sRank}, s{sRank}, s{sW}')
        a(f's_cmp_ge_u32 s{sRank}, 6'); a(f's_cselect_b32 s{sBsel}, 1, 0'); a(f's_cselect_b32 s6, -1, 1')
        a(f's_add_u32 s{sRank}, s{sRank}, s6')
        a(f's_cmp_ge_u32 s{sRank}, 6'); a(f's_cselect_b32 s6, 6, 0'); a(f's_sub_u32 s{sRank}, s{sRank}, s6')
        a(f's_lshl_b32 s{sB}, s{sPair}, 1'); a(f's_add_u32 s{sB}, s{sB}, s{sBsel}')
    a(f'v_and_b32 {vr(vLane)}, 63, v0'); a(f'v_lshlrev_b32 {vr(vL16)}, 4, {vr(vLane)}')
    if cfg.warm & 1: warm_code('A_role', 'L_exit', vLane, t0, t1, 1)
    a(f's_sub_u32 s{sBeg}, s{sRank}, 8'); a(f's_lshl_b32 s{sBeg}, s{sBeg}, 12'); a(f's_mov_b32 s{sReal}, s{sBeg}')
    def adv():
        a(f's_add_u32 s{sReal}, s{sReal}, {STEP}'); a(f's_min_u32 s{sOff}, s{sReal}, {OOB}')
    adv()
    a(f's_lshl_b32 s{sSt}, s{sB}, 5'); a(f's_add_u32 s{sSt}, s{sSt}, s{sH}')
    def ring_ld(s, u):
        return f'buffer_load_dwordx4 {vr(KR+16*s+4*u,4)}, {vr(vL16)}, {srd(S_K)}, s{sOff} offen offset:{1024*u} {cfg.kv_flags}'
    early = 0
    if cfg.fast:
        assert cfg.wqpf == 2 and cfg.stag
        vm = VM(a, cfg.vcp)
        oK, oX, oW, oP = 72, 73, 74, 75
        def tail_srd(d, size): a(f's_mov_b32 s{d+2}, {size}'); a(f's_mov_b32 s{d+3}, 0x20000')
        def base_srd(d, p, o): a(f's_add_u32 s{d}, s{p}, s{o}'); a(f's_addc_u32 s{d+1}, s{p+1}, 0')
        def pre_pf():
            a(f's_lshr_b32 s6, s2, 3'); a('s_sub_u32 s6, s6, 8'); a('s_lshl_b32 s6, s6, 2'); a(f's_add_u32 s6, s6, s{sW}')
            a(f's_mul_i32 s6, s6, {6*8192}'); a('s_and_b32 s7, s2, 7'); a('s_lshl_b32 s7, s7, 10'); a(f's_add_u32 s{oP}, s6, s7')
            tail_srd(S_WO, 576 * 8192)
            a(f'v_min_u32 {vr(M)}, 47, {vr(vLane)}'); a(f'v_lshrrev_b32 {vr(M2)}, 3, {vr(M)}'); a(f'v_mul_u32_u24 {vr(M2)}, {8192-1024}, {vr(M2)}')
            a(f'v_lshl_add_u32 {vr(M2)}, {vr(M)}, 7, {vr(M2)}')
        def do_pf():
            a(f's_mov_b64 s[{S_WO}:{S_WO+1}], s[{P_WQ}:{P_WQ+1}]')
            vm.issue(f'buffer_load_dword {vr(KR)}, {vr(M2)}, {srd(S_WO)}, s{oP} offen {cfg.pf_flags}')
        def pre_rest():
            tail_srd(S_V, 0x100000)
            a(f's_mul_i32 s6, s{sPair}, 2304'); a(f's_mul_i32 s7, s{sW}, 288'); a(f's_add_u32 s{oX}, s6, s7')
            a(f's_sub_u32 s{S_X+2}, 4608, s{oX}'); a(f's_mov_b32 s{S_X+3}, 0x20000')
            a(f's_mul_i32 s6, s{sW}, {144*8192}'); a(f's_lshl_b32 s7, s{sH}, 8'); a(f's_add_u32 s{oW}, s6, s7')
            a(f's_sub_u32 s{S_W+2}, {576*8192}, s{oW}'); a(f's_mov_b32 s{S_W+3}, 0x20000')
            a(f'v_lshrrev_b32 {vr(t0)}, 4, {vr(vLane)}'); a(f'v_and_b32 {vr(t1)}, 15, {vr(vLane)}')
            a(f'v_mul_u32_u24 {vr(vWoff)}, {36*8192}, {vr(t0)}'); a(f'v_lshl_add_u32 {vr(vWoff)}, {vr(t1)}, 4, {vr(vWoff)}')
            a(f'v_mul_u32_u24 {vr(vXoff)}, 72, {vr(t0)}'); a(f'v_lshrrev_b32 {vr(t1)}, 3, {vr(t1)}')
            a(f'v_mul_u32_u24 {vr(t1)}, 1152, {vr(t1)}'); a(f'v_add_u32 {vr(vXoff)}, {vr(vXoff)}, {vr(t1)}')
        def do_k(s0=1, s1=cfg.ne):
            if s0 == 1: base_srd(S_K, P_K, oK)
            for sl in range(s0, s1 + 1):
                for u in range(4):
                    vm.issue(ring_ld(sl, u), ('k', sl, u))
                    if cfg.est and (sl, u) in ((1, 0), (2, 3)): stamp(6 if u == 0 else 7)
                adv()
        a(f's_lshl_b32 s{oK}, s{sSt}, 20')
        if cfg.ks1 > 1: a(f's_lshl_b32 s{S_K+2}, 1, 20'); a(f's_lshl_b32 s{S_K+3}, 1, 17')
        else: tail_srd(S_K, 0x100000)
        if cfg.fast == 1: pre_pf(); pre_rest(); karg_wait(); do_pf(); do_k()
        elif cfg.fast == 2: pre_pf(); karg_wait(); do_pf(); do_k(); pre_rest()
        elif cfg.fast == 3:
            karg_wait(); do_k(); pre_pf(); do_pf()
            if cfg.ks1 > 1: a(f's_lshr_b32 s{sPair}, s{sB}, 1'); a(f's_mul_i32 s6, s{sPair}, 3'); a(f's_sub_u32 s{sJJ}, s{sJJ}, s6')
            pre_rest()
        elif cfg.fast == 5: karg_wait(); do_k(1, 2); pre_pf(); do_pf(); do_k(3); pre_rest()
        else: pre_pf(); pre_rest(); karg_wait(); do_k(); do_pf()
        if cfg.ks1: a('s_load_dwordx4 s[40:43], s[0:1], 96')
        base_srd(S_X, P_AX, oX); x_loads(vm, X, vXoff, 0)
        base_srd(S_V, P_V, oK); base_srd(S_W, P_WQ, oW)
        if cfg.est == 2: a('s_waitcnt vmcnt(8)'); stamp(9)
        early = 4 * cfg.ne
    else:
        a(f's_lshl_b32 s6, s{sSt}, 20')
        karg_wait()
        mk_srd(S_K, P_K, 's6', 0x100000); mk_srd(S_V, P_V, 's6', 0x100000)
        a(f's_mul_i32 s6, s{sPair}, 2304'); a(f's_mul_i32 s7, s{sW}, 288'); a('s_add_u32 s6, s6, s7')
        a(f's_sub_u32 s7, 4608, s6')
        mk_srd(S_X, P_AX, 's6', 's7')
        a(f's_mul_i32 s6, s{sW}, {144*8192}'); a(f's_lshl_b32 s7, s{sH}, 8'); a('s_add_u32 s6, s6, s7')
        a(f's_sub_u32 s7, {576*8192}, s6')
        mk_srd(S_W, P_WQ, 's6', 's7')
        if cfg.askip & 1: a(f's_mov_b32 s{S_W+2}, 0')
        a(f'v_lshrrev_b32 {vr(t0)}, 4, {vr(vLane)}'); a(f'v_and_b32 {vr(t1)}, 15, {vr(vLane)}')
        a(f'v_mul_u32_u24 {vr(vWoff)}, {36*8192}, {vr(t0)}'); a(f'v_lshl_add_u32 {vr(vWoff)}, {vr(t1)}, 4, {vr(vWoff)}')
        a(f'v_mul_u32_u24 {vr(vXoff)}, 72, {vr(t0)}'); a(f'v_lshrrev_b32 {vr(t1)}, 3, {vr(t1)}')
        a(f'v_mul_u32_u24 {vr(t1)}, 1152, {vr(t1)}'); a(f'v_add_u32 {vr(vXoff)}, {vr(vXoff)}, {vr(t1)}')
        vm = VM(a, cfg.vcp)
        a(f'v_mov_b32 {vr(vC)}, {8192-1024}')
        if cfg.wqpf:
            a('s_lshr_b32 s6, s2, 3'); a('s_sub_u32 s6, s6, 8'); a('s_lshl_b32 s6, s6, 2'); a(f's_add_u32 s6, s6, s{sW}')
            a(f's_mul_i32 s6, s6, {6*8192}'); a('s_and_b32 s7, s2, 7'); a('s_lshl_b32 s7, s7, 10'); a('s_add_u32 s6, s6, s7')
            mk_srd(S_WO, P_WQ, None, 576 * 8192)
            if cfg.wqpf == 1:
                for k in range(6):
                    vm.issue(f'buffer_load_dwordx4 {vr(KR+4*(k&3),4)}, {vr(vL16)}, {srd(S_WO)}, s6 offen')
                    if k < 5: a('s_add_u32 s6, s6, 8192')
            else:
                a(f'v_min_u32 {vr(M)}, 47, {vr(vLane)}'); a(f'v_lshrrev_b32 {vr(M2)}, 3, {vr(M)}'); a(f'v_lshlrev_b32 {vr(M)}, 7, {vr(M)}')
                a(f'v_mad_u32_u24 {vr(M2)}, {vr(M2)}, {vr(vC)}, {vr(M)}')
                vm.issue(f'buffer_load_dword {vr(KR)}, {vr(M2)}, {srd(S_WO)}, s6 offen {cfg.pf_flags}')
        x_loads(vm, X, vXoff, 0)
    stream = [('k', s, u) for s in range(1, R) for u in range(4)]
    if cfg.wmix: stream += [('v', s, u) for s in range(1, cfg.npv + 1) for u in range(4)]
    order = stream[:cfg.kfirst]; wi = 0; si = cfg.kfirst
    while wi < 36 or si < len(stream):
        for _ in range(cfg.wq_per):
            if wi < 36: order.append(('w', wi)); wi += 1
        for _ in range(cfg.st_per):
            if si < len(stream): order.append(stream[si]); si += 1
    NPV = cfg.npv; V0 = NPV + 1 if NPV else 0
    def avs(s): return 16 * (s - 1) if s < 7 else 240
    if not cfg.wmix: order += [('v', s, u) for s in range(1, NPV + 1) for u in range(4)]
    def issue(o):
        if cfg.pth and o[0] != 'w': a(f's_waitcnt vmcnt({cfg.pth-1})')
        if o[0] == 'w': wunit_load(vm, o[1], vWoff, cfg.wq_flags)
        elif o[0] == 'v':
            if o[2] == 0: a(f's_add_u32 s{sVo}, s{sBeg}, {o[1]*STEP}'); a(f's_min_u32 s{sVo}, s{sVo}, {OOB}')
            vm.issue(f'buffer_load_dwordx4 {ar(avs(o[1])+4*o[2],4)}, {vr(vL16)}, {srd(S_V)}, s{sVo} offen offset:{1024*o[2]} {cfg.kv_flags}', o)
        else:
            vm.issue(ring_ld(o[1], o[2]), o)
            if o[2] == 3: adv()
    pos = 0
    def wo_pf():
        a(f's_mul_i32 s6, s{sH}, 147456'); mk_srd(S_WO, P_WO, 's6', 147456)
        a(f's_sub_u32 s6, s{sR}, 2'); a('s_lshl_b32 s6, s6, 2'); a(f's_add_u32 s6, s6, s{sW}'); a('s_mul_i32 s6, s6, 6144')
        vm.issue(f'buffer_load_dword {vr(KR+1)}, {vr(M)}, {srd(S_WO)}, s6 offen')
    if cfg.stag:
        sp = [int(x) for x in cfg.stag.split(',')]
        stream = [('k', s, u) for s in range(1, R) for u in range(4)] + [('v', s, u) for s in range(1, NPV + 1) for u in range(4)]
        order = stream[:sp[-1]] + [('w', j) for j in range(36)] + stream[sp[-1]:]
        vm.limit = 1000
        assert sp[0] >= early
        for idx in range(early, sp[-1] + 1):
            if idx in sp:
                Ls = lab('nowq')
                a(f's_cmp_lg_u32 s{sJJ}, {sp.index(idx)}'); a(f's_cbranch_scc1 {Ls}')
                a('s_waitcnt vmcnt(20)')
                n0 = len(vm.q)
                for j in range(36): wunit_load(vm, j, vWoff, cfg.wq_flags)
                if idx != sp[-1]: del vm.q[n0:]
                a(f'{Ls}:')
            if idx == sp[-1]: break
            if idx % 4 == 0: a('s_waitcnt vmcnt(54)')
            if idx == cfg.wopf_at and cfg.dma_mode == 3: wo_pf()
            issue(stream[idx])
            if cfg.est and idx in (0, 7): stamp(6 if idx == 0 else 7)
            if cfg.est == 2 and idx == 7: a('s_waitcnt vmcnt(3)'); stamp(9)
        pos = sp[-1] + 36
        vm.limit = 63; vm.done = max(0, len(vm.q) - 60)
    while pos < min(56 - 6 * cfg.wqpf, len(order)):
        issue(order[pos]); pos += 1
    if cfg.dma_mode == 3 and not cfg.stag: wo_pf()
    stamp(1)
    if cfg.ks1: a('s_waitcnt lgkmcnt(0)')
    mk_srd(S_WS, P_WS, None, WS_USED); mk_srd(S_DBG, P_DBG, None, 256)
    a(f's_mul_i32 s6, s{sH}, 147456'); mk_srd(S_WO, P_WO, 's6', 147456)
    mk_masks(vLane, MASK, SEL, t0, t1)
    a(f'v_mov_b32 {vr(vC)}, {f2u(SCALE):#x}')
    a(f'v_mov_b32 {vr(P+NT-1)}, 0xff800000')
    mk_wo_tr_addr(vLane, vT, t0, t1, True, cfg.smf)
    a(f's_mul_i32 s{sSt}, s{sSt}, {cfg.astr}'); a(f's_add_u32 s{sSt}, s{sSt}, {AST}')
    a(f's_mov_b64 s[{sMk}:{sMk+1}], 0')
    a(f's_cmp_ge_u32 s{sRank}, 2'); a(f's_cselect_b32 s{sMk+2}, 0x22222222, 0'); a(f's_mov_b32 s{sMk+3}, s{sMk+2}')
    for j in (2, 3):
        a(f's_mov_b32 s{sMk+2*j}, {0x11111111 << j:#x}'); a(f's_mov_b32 s{sMk+2*j+1}, s{sMk+2*j}')
    a(f'v_bfe_u32 {vr(t0)}, {vr(vLane)}, 4, 1')
    a(f's_lshl_b32 s6, s{sPair}, 7'); a(f's_lshl_b32 s7, s{sH}, 1'); a('s_add_u32 s6, s6, s7'); a(f's_add_u32 s6, s6, s{sJJ}')
    a(f'v_mul_u32_u24 {vr(t1)}, 63, {vr(t0)}'); a(f'v_add_u32 {vr(t1)}, s6, {vr(t1)}')
    a(f'v_mul_u32_u24 {vr(vY)}, {1152 if cfg.y16 else 2304}, {vr(t1)}'); a(f'v_add_u32 {vr(vY)}, {YA}, {vr(vY)}')
    if cfg.cell: a(f'v_lshrrev_b32 {vr(t1)}, 3, {vr(t1)}'); a(f'v_mul_u32_u24 {vr(t1)}, {SA - 18432}, {vr(t1)}'); a(f'v_add_u32 {vr(vY)}, {vr(vY)}, {vr(t1)}')
    a(f'v_sub_u32 {vr(t1)}, s{sJJ}, {vr(t0)}')
    a(f'v_cmp_lt_u32 vcc, 1, {vr(t1)}')
    a(f'v_mov_b32 {vr(t1)}, {OOB}')
    a(f'v_cndmask_b32 {vr(vY)}, {vr(vY)}, {vr(t1)}, vcc')
    if cfg.y16:
        a(f'v_and_b32 {vr(M)}, 15, {vr(vLane)}'); a(f'v_lshl_add_u32 {vr(vY)}, {vr(M)}, 4, {vr(vY)}')
        a(f's_lshl_b32 s6, s{sW}, 5'); a(f'v_add_u32 {vr(vY8)}, s6, {vr(vY)}'); a(f's_lshl_b32 s6, s{sW}, 8'); a(f'v_add_u32 {vr(vY)}, s6, {vr(vY)}')
    else:
        a(f's_mul_i32 s6, s{sW}, 576')
        a(f'v_add_u32 {vr(vY)}, s6, {vr(vY)}')
        a(f'v_and_b32 {vr(M)}, 3, {vr(vLane)}'); a(f'v_bfe_u32 {vr(M2)}, {vr(vLane)}, 2, 2')
        a(f'v_lshl_add_u32 {vr(M)}, {vr(M)}, 2, {vr(M2)}'); a(f'v_lshl_add_u32 {vr(vY8)}, {vr(M)}, 2, {vr(vY)}')
        a(f'v_and_b32 {vr(M)}, 15, {vr(vLane)}'); a(f'v_lshrrev_b32 {vr(M2)}, 5, {vr(vLane)}')
        a(f'v_lshl_add_u32 {vr(M)}, {vr(M2)}, 4, {vr(M)}'); a(f'v_lshl_add_u32 {vr(vY)}, {vr(M)}, 4, {vr(vY)}')
    for r in range(4):
        a(f's_lshl_b32 s6, s{sJJ}, 2'); a(f's_add_u32 s6, s6, {r}'); a('s_cmp_ge_u32 s6, 6'); a('s_cselect_b32 s6, 1, 0')
        a(f'v_cmp_eq_u32 vcc, s6, {vr(t0)}')
        a(f'v_cndmask_b32 {vr(F+r)}, 0, 1.0, vcc')
    if cfg.smf:
        a(f'v_bfe_i32 {vr(M)}, {vr(vLane)}, 3, 1'); a(f'v_and_b32 {vr(M)}, 0xaaaaaaaa, {vr(M)}'); a(f'v_or_b32 {vr(G+7)}, 0x44444444, {vr(M)}')
    else: a(f'v_cmp_gt_u32 vcc, 32, {vr(vLane)}')
    for r in range(0 if cfg.smf else 4):
        a(f'v_cndmask_b32 {vr(G+r)}, 0, {vr(F+r)}, vcc'); a(f'v_cndmask_b32 {vr(G+4+r)}, {vr(F+r)}, 0, vcc')
    a(f'v_and_b32 {vr(M)}, 15, {vr(vLane)}'); a(f'v_lshlrev_b32 {vr(M)}, 4, {vr(M)}')
    a(f'v_lshl_add_u32 {vr(vOw)}, {vr(t0)}, 3, {vr(M)}')
    a(f's_lshl_b32 s6, s{sW}, 8'); a(f's_add_u32 s6, s6, {OT}'); a(f'v_add_u32 {vr(vOw)}, s6, {vr(vOw)}')
    a(f'v_and_b32 {vr(M)}, 3, {vr(vLane)}'); a(f'v_lshlrev_b32 {vr(M)}, 8, {vr(M)}')
    a(f'v_lshrrev_b32 {vr(M2)}, 4, {vr(vLane)}'); a(f'v_lshl_add_u32 {vr(vOr)}, {vr(M2)}, 4, {vr(M)}')
    a(f'v_add_u32 {vr(vOr)}, {OT}, {vr(vOr)}')
    a(f's_mul_i32 s{sD}, s{sW}, {4096 if cfg.dma_mode == 1 else 36864}')
    a(f's_mov_b32 s{sDn}, {(-cfg.dma_t0) & 0xffffffff:#x}'); a(f's_mov_b32 s{sTrip}, 0')
    if cfg.dma_mode == 3: a(f's_mul_i32 s{sDn}, s{sJJ if cfg.dgrp == 3 else sR}, {cfg.dstep}'); a(f's_add_u32 s{sDn}, s{sDn}, {cfg.dma_t0 - (0 if cfg.dgrp == 3 else 2 * cfg.dstep)}')
    if cfg.dyn:
        a(f's_lshl_b32 s6, s{sH}, 1'); a(f's_add_u32 s6, s6, s{sPair}'); a(f's_mul_i32 s6, s6, {cfg.psp//4}'); a(f's_add_u32 s6, s6, s{sJJ}')
        a('s_lshl_b32 s6, s6, 2'); a(f's_add_u32 s6, s6, {PROG}')
        if cfg.pxs != 8 * cfg.psp: a(f's_lshr_b32 s7, s{sH}, 2'); a(f's_mul_i32 s7, s7, {cfg.pxs - 8 * cfg.psp}'); a('s_add_u32 s6, s6, s7')
        a(f'v_mov_b32 {vr(vPo)}, {OOB}'); a(f'v_mov_b32 {vr(vPg)}, s6'); a('v_cmp_eq_u32 vcc, 0, v0')
        a(f'v_cndmask_b32 {vr(vPo)}, {vr(vPo)}, {vr(vPg)}, vcc'); a(f'v_mov_b32 {vr(vPg)}, {0 if cfg.ctl else cfg.hoff}')
    vTh = V(4); cTh, cTo, cPo, cTr = 26, 27, 28, 29
    if cfg.ctl:
        a(f's_add_u32 s{cTr}, s6, {TFO}'); a(f's_mov_b32 s{cTo}, {OOB}'); a(f's_mov_b32 s{cPo}, {OOB}'); a(f's_mov_b32 s{cTh}, 0')
        for r in range(4): a(f'v_mov_b32 {vr(vTh+r)}, 0')
    def ctl(s, iss, per, rd=True, ld=True):
        if s % 2 == 0 and rd:
            a(f'v_readfirstlane_b32 s{cTh}, {vr(vTh + (s + 8 - cfg.fd) // 2 % 4)}')
            a(f's_cmp_gt_u32 s{cTh}, 2'); a(f's_cselect_b32 s{cTh}, 0, s{cTh}')
        if s % per == per - 1:
            a(f'v_add_u32 {vr(vPg)}, {per}, {vr(vPg)}')
            a(f's_cmp_lg_u32 s{cTh}, 0')
            a(f's_cselect_b32 s6, {cfg.toff}, 0'); a(f'v_add_u32 {vr(t0)}, s6, {vr(vPg)}')
            iss(f'buffer_store_dword {vr(t0)}, {vr(vPo)}, {srd(S_WS)}, s{cPo} offen', None)
        if s % 2 == 0 and ld: iss(f'buffer_load_dword {vr(vTh + s // 2 % 4)}, off, {srd(S_WS)}, s{cTo} {cfg.tf_flags}', 't')
        if cfg.stamps: a(f's_mul_i32 s6, s{cTh}, s{cTh}'); a('s_mul_i32 s6, s6, s6'); a('s_mul_i32 s6, s6, s6'); a(f's_add_u32 s98, s98, s6')
    def hold(n):
        Ls = lab('thr')
        a(f's_cmp_eq_u32 s{cTh}, 0'); a(f's_cbranch_scc1 {Ls}'); a(f's_waitcnt vmcnt({n})')
        a(f's_cmp_eq_u32 s{cTh}, 1'); a(f's_cbranch_scc1 {Ls}'); a(f's_waitcnt vmcnt({n - cfg.lv2})')
        a(f'{Ls}:')
    def prog(g, per):
        if cfg.dyn and g % per == per - 1:
            a(f'v_add_u32 {vr(vPg)}, {per}, {vr(vPg)}')
            a(f'buffer_store_dword {vr(vPg)}, {vr(vPo)}, {srd(S_WS)}, 0 offen {cfg.ps_flags}')
            return True
    a(f'v_and_b32 {vr(M)}, 15, {vr(vLane)}'); a(f'v_lshlrev_b32 {vr(M)}, 5, {vr(M)}')
    a(f'v_lshl_add_u32 {vr(M2)}, {vr(t0)}, 4, {vr(M)}')
    a(f'v_lshrrev_b32 {vr(t1)}, 5, {vr(vLane)}'); a(f'v_lshl_add_u32 {vr(M2)}, {vr(t1)}, 9, {vr(M2)}')
    a(f's_lshl_b32 s6, s{sW}, 10'); a(f's_add_u32 s6, s6, {QRED}'); a(f'v_add_u32 {vr(M2)}, s6, {vr(M2)}')
    a(f's_lshl_b32 s6, s{sBsel}, 9'); a(f's_add_u32 s6, s6, {QRED}'); a(f'v_add_u32 {vr(M)}, s6, {vr(M)}')
    for jj in range(36):
        while ('w', jj) not in vm.q:
            issue(order[pos]); pos += 1
        vm.wait(('w', jj))
        wunit_mfma(jj, [X], [ACC], SEL, PA)
        k = 0
        while pos < len(order) - cfg.vhold and vm.after(('w', jj)) < 60 and (k < 1 or order[pos][0] != 'v' or jj == 35 or cfg.wmix):
            issue(order[pos]); pos += 1; k += 1
    a(f'ds_write_b128 {vr(M2)}, {vr(ACC,4)}')
    while pos < len(order):
        issue(order[pos]); pos += 1
    a('s_waitcnt lgkmcnt(0)'); a('s_barrier')
    for w in range(4):
        a(f'ds_read_b128 {vr(D+8*w,4)}, {vr(M)} offset:{1024*w}')
        a(f'ds_read_b128 {vr(D+8*w+4,4)}, {vr(M)} offset:{1024*w+16}')
    for r in range(4): a(f'v_mov_b32 {vr(ACC+r)}, 0')
    a('s_waitcnt lgkmcnt(0)')
    for e in range(8):
        a(f'v_add_f32 {vr(D+e)}, {vr(D+e)}, {vr(D+8+e)}'); a(f'v_add_f32 {vr(D+16+e)}, {vr(D+16+e)}, {vr(D+24+e)}')
    for e in range(8): a(f'v_add_f32 {vr(D+e)}, {vr(D+e)}, {vr(D+16+e)}')
    for k in range(4): a(f'v_cvt_pk_bf16_f32 {vr(Q+k)}, {vr(D+2*k)}, {vr(D+2*k+1)}')
    stamp(2)
    NW = 4 * R - 4
    if cfg.ctl:
        ex = lambda s: (s % cfg.kper == cfg.kper - 1) + (s % 2 == 0)
        NW = min(min(28 + sum(ex(s + k) for k in range(1, 8)) for s in range(8)), min(4 * cfg.fd + sum(ex(s + k) for k in range(1, cfg.fd)) for s in range(0, 8, 2)))
    def dma(s, vtrip=None):
        if (s % 4) not in {1: (0,), 2: (0, 2), 3: (0, 1, 2), 4: (0, 1, 2, 3)}[cfg.dma_per]: return
        Ls = lab('nodma')
        if cfg.dma_mode == 3:
            if s % 4: return
            a(f's_cmp_lg_u32 s{sDn}, s{sTrip}'); a(f's_cbranch_scc1 {Ls}')
            a('s_waitcnt vmcnt(24)')
            for k in range(9):
                a(f's_mov_b32 m0, s{sD}')
                for u in range(4):
                    a(f'buffer_load_dwordx4 {vr(vL16)}, {srd(S_WO)}, s{sD} offen offset:{1024*u} {cfg.wo_flags} lds')
                a(f's_add_u32 s{sD}, s{sD}, 4096')
            a(f'{Ls}:')
            return
        if cfg.dma_mode:
            if s % 4: return
            a(f's_cmp_ge_u32 s{sDn}, {0 if cfg.nodma else 36}'); a(f's_cbranch_scc1 {Ls}')
            for u in range(4):
                a(f's_add_u32 m0, s{sD}, {1024*u}') if cfg.dma_mode == 9 else None
                if u == 0: a(f's_mov_b32 m0, s{sD}')
                a(f'buffer_load_dwordx4 {vr(vL16)}, {srd(S_WO)}, s{sD} offen offset:{1024*u} {cfg.wo_flags} lds')
            a(f's_add_u32 s{sD}, s{sD}, {16384 if cfg.dma_mode == 1 else 4096}')
            a(f'{Ls}:')
            a(f's_add_u32 s{sDn}, s{sDn}, 4')
            return
        if cfg.dmask:
            if vtrip is not None:
                if not (cfg.dmask >> vtrip) & 1: return
            else: a(f's_bitcmp0_b32 s{sDn}, s{sTrip}'); a(f's_cbranch_scc1 {Ls}')
            a(f's_mov_b32 m0, s{sD}')
            for u in range(cfg.dmul):
                a(f'buffer_load_dwordx4 {vr(vL16)}, {srd(S_WO)}, s{sD} offen offset:{1024*u} {cfg.wo_flags} lds')
            a(f's_add_u32 s{sD}, s{sD}, {1024*cfg.dmul}')
            a(f'{Ls}:')
            return
        a(f's_cmp_ge_u32 s{sDn}, {0 if cfg.nodma else 36}'); a(f's_cbranch_scc1 {Ls}')
        a(f's_mov_b32 m0, s{sD}')
        a(f'buffer_load_dwordx4 {vr(vL16)}, {srd(S_WO)}, s{sD} offen {cfg.wo_flags} lds')
        a(f's_add_u32 s{sD}, s{sD}, 1024')
        a(f'{Ls}:')
        a(f's_add_u32 s{sDn}, s{sDn}, 1')
    def shiftP():
        for k in range(NT - 1): a(f'v_mov_b32 {vr(P+k)}, {vr(P+k+1)}')
    dma_end = -(-(cfg.dma_t0 + 36) // cfg.dma_per) * 4
    if cfg.dmask:
        assert bin(cfg.dmask).count('1') * cfg.dma_per * cfg.dmul == 36
        dma_end = 4 * cfg.dmask.bit_length()
        a(f's_mov_b32 s{sDn}, {cfg.dmask}')
    if cfg.dma_mode == 3:
        dma_end = 4 * (cfg.dma_t0 + (cfg.dgrp - 1) * cfg.dstep) + 1
        assert dma_end <= 4 * NT
    assert dma_end + R <= 4 * NT + cfg.ev_slot - V0
    a(f's_add_u32 s{sBeg}, s{sBeg}, {V0*STEP}')
    a('K_loop:')
    for s in range(R):
        K = KR + 16 * s; j = s % 4
        if j == 0:
            if (NT - RT) % RT == s // 4:
                a(f's_cmp_eq_u32 s{sTrip}, {NT-RT}')
                a(f's_cselect_b32 s{S_K}, s{S_V}, s{S_K}'); a(f's_cselect_b32 s{S_K+1}, s{S_V+1}, s{S_K+1}')
                a(f's_cselect_b32 s{sReal}, s{sBeg}, s{sReal}'); a(f's_min_u32 s{sOff}, s{sReal}, {OOB}')
            if cfg.c0_trip % RT == s // 4 and cfg.c0x != 3:
                Ls = lab('c0')
                a(f's_cmp_lg_u32 s{sTrip}, {cfg.c0_trip}'); a(f's_cbranch_scc1 {Ls}')
                a(f'buffer_load_dword {vr(vC0)}, off, {srd(S_DBG)}, 0 offset:{C0} sc1')
                a(f'{Ls}:')
        a(f's_waitcnt vmcnt({NW})')
        for k in range(4):
            for u in range(4):
                c = '0' if k == 0 else vr(T + u)
                a(f'v_dot2_f32_bf16 {vr(T+u)}, {vr(K+4*u+k)}, {vr(Q+k)}, {c}')
        if cfg.ctl: ctl(s, lambda t, g: a(t), cfg.kper)
        for u in range(4):
            if cfg.vck: a(f's_waitcnt vmcnt({cfg.vck-1})')
            if cfg.ctl and u % 2 == 0: hold(cfg.thrk)
            a(ring_ld(s, u))
        adv(); dma(s)
        reduce4(T, XX, S)
        a(f'v_cndmask_b32 {vr(P+NT-1)}, {vr(P+NT-1)}, {vr(S)}, s[{sMk+2*j}:{sMk+2*j+1}]')
        if j == 3:
            if cfg.trips:
                a('s_memrealtime s[100:101]'); a('s_waitcnt lgkmcnt(0)'); a(f's_mov_b32 m0, s{sTrip}'); a(f'v_writelane_b32 {vr(vTS)}, s100, m0')
            if cfg.ctl and s == 7:
                assert cfg.c0_trip == 0
                Ls = lab('c0ok')
                a(f's_cmp_lg_u32 s{sTrip}, 1'); a(f's_cbranch_scc1 {Ls}')
                a('s_waitcnt vmcnt(36)')
                ensure(C0, C0N, vC0)
                if not cfg.cdbg & 2: a(f's_mov_b32 s{cPo}, 0')
                if not cfg.cdbg & 1: a(f's_mov_b32 s{cTo}, s{cTr}')
                if cfg.tfw: a(f's_mov_b32 s6, {TFO}'); a(f'buffer_store_dword {vr(vLane)}, {vr(vPo)}, {srd(S_WS)}, s6 offen')
                a(f'{Ls}:')
            a(f's_add_u32 s{sTrip}, s{sTrip}, 1')
            if (NT - 1) % RT == s // 4:
                a(f's_cmp_eq_u32 s{sTrip}, {NT}'); a('s_cbranch_scc1 A_mid')
            shiftP()
            if s == 3:
                a(f's_lshr_b64 s[{sMk}:{sMk+1}], s[{sMk+4}:{sMk+5}], 2'); a(f's_lshr_b64 s[{sMk+2}:{sMk+3}], s[{sMk+4}:{sMk+5}], 1')
    a('s_branch K_loop')
    a('A_mid:')
    stamp(5)
    if cfg.cdbg & 2: a(f's_mov_b32 s{cPo}, 0')
    a(f'v_max3_f32 {vr(M)}, {vr(P)}, {vr(P+1)}, {vr(P+2)}')
    for k in range(3, NT, 2): a(f'v_max3_f32 {vr(M)}, {vr(M)}, {vr(P+k)}, {vr(P+k+1)}')
    for sh in (8, 4, 2, 1): a(f'v_max_f32_dpp {vr(M)}, {vr(M)}, {vr(M)} row_ror:{sh} {DPPF}')
    allred_rows(M, M2, 'v_max_f32')
    a(f'v_mul_f32 {vr(XX)}, {vr(M)}, {vr(vC)}')
    for k in range(NT): a(f'v_fma_f32 {vr(P+k)}, {vr(P+k)}, {vr(vC)}, -{vr(XX)}')
    for k in range(NT): a(f'v_exp_f32 {vr(P+k)}, {vr(P+k)}')
    a(f'v_add_f32 {vr(M)}, {vr(P)}, {vr(P+1)}')
    for k in range(2, NT): a(f'v_add_f32 {vr(M)}, {vr(M)}, {vr(P+k)}')
    for k in range(NT): a(f'v_cvt_pk_bf16_f32 {vr(P+k)}, {vr(P+k)}, {vr(P+k)}')
    for sh in (8, 4, 2, 1): a(f'v_add_f32_dpp {vr(M)}, {vr(M)}, {vr(M)} row_ror:{sh} {DPPF}')
    allred_rows(M, M2, 'v_add_f32')
    a(f'v_min_u32 {vr(XX)}, -2, {vr(XX)}'); a(f'v_min_u32 {vr(XX+1)}, -2, {vr(M)}')
    if not cfg.noB and not cfg.ctl: ensure(C0, C0N, vC0)
    a(f's_lshl_b32 s6, s{sRank}, 3'); a(f's_add_u32 s6, s6, s{sSt}')
    a('s_mov_b64 exec, 1')
    for _ in range(4 if cfg.dup & 4 else 1): a(f'buffer_store_dwordx2 {vr(XX,2)}, off, {srd(S_WS)}, s6 sc1')
    a('s_mov_b64 exec, -1')
    ST = X
    def st_loads(iss):
        for k in range(3): iss(f'buffer_load_dwordx4 {vr(ST+4*k,4)}, off, {srd(S_WS)}, s{sSt} offset:{16*k} sc1')
    def pa(i, dst=PA):
        for u in range(4):
            for r in range(4):
                a(f'v_and_b32_dpp {vr(dst+4*u+r)}, {vr(P+i//4)}, {vr(MASK+r)} row_newbcast:{4*u+i%4} {DPPF}')
    def ev2():
        vm.wait('st')
        a(f's_mov_b32 s7, {cfg.spin_max}')
        a('A_ev2_chk:')
        umax_tree(M, range(ST, ST + 12))
        a(f'v_cmp_eq_u32 vcc, -1, {vr(M)}')
        a('s_cbranch_vccz A_ev2_ok')
        st_loads(a)
        a('s_waitcnt vmcnt(0)')
        a('s_sub_u32 s7, s7, 1'); a('s_cmp_lg_u32 s7, 0'); a('s_cbranch_scc1 A_ev2_chk')
        a('A_ev2_ok:')
        a(f'v_max3_f32 {vr(M)}, {vr(ST)}, {vr(ST+2)}, {vr(ST+4)}'); a(f'v_max3_f32 {vr(M2)}, {vr(ST+6)}, {vr(ST+8)}, {vr(ST+10)}')
        a(f'v_max_f32 {vr(M)}, {vr(M)}, {vr(M2)}')
        for k in range(6): a(f'v_sub_f32 {vr(ST+2*k)}, {vr(ST+2*k)}, {vr(M)}')
        a(f'v_sub_f32 {vr(fN)}, {vr(XX)}, {vr(M)}')
        for k in range(6): a(f'v_exp_f32 {vr(ST+2*k)}, {vr(ST+2*k)}')
        a(f'v_exp_f32 {vr(fN)}, {vr(fN)}')
        a(f'v_mul_f32 {vr(M)}, {vr(ST)}, {vr(ST+1)}')
        for k in range(1, 6): a(f'v_fma_f32 {vr(M)}, {vr(ST+2*k)}, {vr(ST+2*k+1)}, {vr(M)}')
        a(f'v_rcp_f32 {vr(M)}, {vr(M)}')
        a(f'v_mul_f32 {vr(fN)}, {vr(fN)}, {vr(M)}')
    extra = list(range(1, NPV + 1)); frags = wo_frag_list(4, vT, cfg.smf)
    NS = 4 * NT
    vm = VM(a)
    vm.q = [(j, u) for j in range(V0, V0 + R) for u in range(4)] + [None]
    if cfg.ctl:
        assert V0 == 8 and R == 8
        vm.q = [x for j in range(V0, V0 + R) for x in [None] * (j % cfg.kper == cfg.kper - 1) + ([('t', j + cfg.fd)] if j % 2 == 0 else []) + [(j, u) for u in range(4)]] + [None]
    def stage(j): return (NS + j - V0) % R
    def comp(i, pre=None):
        K = KR + 16 * stage(i)
        if pre is None: pa(i); pre = PA
        if i < NS - 1: vm.wait((i, 3))
        for u in range(4):
            vm.wait((i, u))
            a(f'v_mfma_f32_16x16x32_bf16 {vr(ACC,4)}, {vr(pre+4*u,4)}, {vr(K+4*u,4)}, {vr(ACC,4)}')
        if i % 4 == 3 and cfg.trips:
            a('s_memrealtime s[100:101]'); a('s_waitcnt lgkmcnt(0)'); a(f'v_writelane_b32 {vr(vTS)}, s100, {NT + (i-V0)//4}')
    c = V0
    sTh, sTo = sD, sDn
    if cfg.thr:
        assert dma_end <= NS
        a(f's_lshr_b32 s{sTo}, s{sH}, 2'); a(f's_lshl_b32 s{sTo}, s{sTo}, 7'); a(f's_add_u32 s{sTo}, s{sTo}, {PROG + 0x4000}')
        if cfg.tstat: a('s_and_b32 s6, s2, 7'); a(f's_lshr_b32 s{sTh}, {cfg.tstat}, s6'); a(f's_and_b32 s{sTh}, s{sTh}, 1')
    if cfg.tst:
        assert dma_end <= NS and not cfg.thr
        tb = [int(x) for x in str(cfg.tst).split(',')]; assert len(tb) == 8
        pk = lambda l: sum(x << 8 * k for k, x in enumerate(l))
        a(f's_mov_b32 s6, {pk(tb[:4]):#x}'); a(f's_mov_b32 s7, {pk(tb[4:]):#x}')
        a(f's_and_b32 s{sTh}, s2, 7'); a(f's_lshl_b32 s{sTh}, s{sTh}, 3'); a(f's_lshr_b64 s[6:7], s[6:7], s{sTh}'); a(f's_and_b32 s{sTh}, s6, 255')
    for m in range(V0 + R, NS):
        n = m - R - V0; i = m - R
        if m == cfg.st_m: st_loads(lambda t: vm.issue(t, 'st'))
        if m == cfg.ev2_m: ev2()
        if m == cfg.ytouch: vm.issue(f'buffer_load_dword {vr(vC0)}, {vr(vY8)}, {srd(S_WS)}, 0 offen offset:512 sc1')
        dist = max(cfg.dend, min(R, R - (m - cfg.dm0 + cfg.dsl - 1) // cfg.dsl))
        first = True
        while c <= m - dist:
            if not first: a('s_nop 3')
            comp(c); c += 1; first = False
        if cfg.ctl:
            if m == cfg.tm1: a(f's_mov_b32 s{cTh}, 0')
            if m % 2 == 0 and m < cfg.tm1: vm.wait(('t', m))
            ctl((m - 12) % 8, lambda t, g: vm.issue(t, g and (g, m + cfg.fd)), cfg.vper, m < cfg.tm1, m + cfg.fd < cfg.tm1)
        elif prog(n, cfg.pper): vm.q.append(None)
        th = cfg.thr and cfg.tm0 <= m < cfg.tm1
        if th:
            if ('t', m) in vm.q:
                vm.wait(('t', m)); a(f'v_readfirstlane_b32 s{sTh}, {vr(vTh + m // cfg.tper % 4)}')
            a(f's_cmp_eq_u32 s{sTh}, 1')
        ts = cfg.tst and min(tb) <= m < cfg.tm1
        if ts: a(f's_cmp_le_u32 s{sTh}, {m}')
        if cfg.thr and not cfg.tstat and cfg.tm0 <= m + cfg.tdist < cfg.tm1 and (m + cfg.tdist - cfg.tm0) % cfg.tper == 0:
            vm.issue(f'buffer_load_dword {vr(vTh + (m + cfg.tdist) // cfg.tper % 4)}, off, {srd(S_WS)}, s{sTo} sc1', ('t', m + cfg.tdist))
        for u in range(4):
            if th and u % 2 == 0:
                Ls = lab('thr')
                a(f's_cbranch_scc0 {Ls}'); a(f's_waitcnt vmcnt({cfg.thr})'); a(f'{Ls}:')
            if ts and u % cfg.tsp == 0:
                Ls = lab('thr')
                a(f's_cbranch_scc0 {Ls}'); a(f's_waitcnt vmcnt({cfg.tsv})'); a(f'{Ls}:')
            if cfg.ctl and m < cfg.tm1 and u % 2 == 0: hold(cfg.ctl)
            if cfg.vth and m >= cfg.vth0: vm.limit = cfg.vth if m < cfg.vth1 else 63
            vm.issue(ring_ld(stage(m), u), (m, u))
        if th and cfg.stamps: a(f's_addc_u32 s98, s98, 0')
        adv()
        if NS + n < dma_end: dma(n, NT + n // 4)
        if i == cfg.ev_slot - 1: a('s_barrier')
        if i >= cfg.ev_slot - 1:
            for t in frags[:cfg.ev_per]: a(t)
            del frags[:cfg.ev_per]
        if extra and n % cfg.xper == 1:
            e = extra.pop(0)
            pa(e)
            for u in range(4):
                a(f'v_mfma_f32_16x16x32_bf16 {vr(ACC,4)}, {vr(PA+4*u,4)}, {ar(avs(e)+4*u,4)}, {vr(ACC,4)}')
            a('s_nop 3')
    assert not extra and not frags
    if cfg.ev2_m >= NS: ev2()
    if cfg.pre4:
        assert NS - c <= 4
        if cfg.smf:
            for r in range(16): a(f'v_mov_b32 {vr(D+r)}, 0')
        dst = {i: KR + 16 * stage(i - 4) for i in range(c, NS)}
        for i in range(c, NS): pa(i, dst[i])
        for i in range(c, NS): comp(i, dst[i])
    else:
        while c < NS - 2:
            comp(c); c += 1; a('s_nop 3')
        P2 = KR + 16 * stage(NS - 4)
        pa(NS - 2); pa(NS - 1, P2)
        if cfg.smf:
            for r in range(16): a(f'v_mov_b32 {vr(D+r)}, 0')
        comp(NS - 2, PA); comp(NS - 1, P2)
    a('A_tail:')
    stamp(3)
    for r in range(4): a(f'v_mul_f32 {vr(ACC+r)}, {vr(ACC+r)}, {vr(fN)}')
    a(f'v_cvt_pk_bf16_f32 {vr(T)}, {vr(ACC)}, {vr(ACC+1)}'); a(f'v_cvt_pk_bf16_f32 {vr(T+1)}, {vr(ACC+2)}, {vr(ACC+3)}')
    a(f'ds_write_b64 {vr(vOw)}, {vr(T,2)}')
    a('s_waitcnt lgkmcnt(0)'); a('s_barrier')
    for ks in range(4): a(f'ds_read_b128 {ar(4*ks,4)}, {vr(vOr)} offset:{64*ks}')
    if not cfg.smf: a('s_waitcnt lgkmcnt(0)')
    def tile(t):
        for ks in range(4):
            c = '0' if ks == 0 else vr(D + 4 * t, 4)
            a(f'v_mfma_f32_16x16x32_bf16 {vr(D+4*t,4)}, {ar(4*ks,4)}, {ar(AW+4*(t*4+ks),4)}, {c}')
    def comb(j, t, first):
        g = G + (4 if t >= 4 else 0)
        for r in range(4):
            if first and r == 0: a(f'v_mul_f32 {vr(O+j)}, {vr(g)}, {vr(D+4*t)}')
            else: a(f'v_fma_f32 {vr(O+j)}, {vr(g+r)}, {vr(D+4*t+r)}, {vr(O+j)}')
    def tail16(src, T, vO, so, ex):
        a(f'v_mov_b32_dpp {vr(T+1)}, {vr(src)} row_shl:2 {DPPF}')
        a(f'v_cvt_pk_bf16_f32 {vr(T)}, {vr(src)}, {vr(T+1)}'); a(f'v_min_u32 {vr(T)}, -2, {vr(T)}')
        for e in range(1, 4): a(f'v_mov_b32_dpp {vr(T+e)}, {vr(T)} row_shl:{4*e} {DPPF}')
        a('s_mov_b32 exec_lo, 0x00030003'); a(f's_mov_b32 exec_hi, {ex}')
        a(f'buffer_store_dwordx4 {vr(T,4)}, {vr(vO)}, {srd(S_WS)}, {so} offen offset:1024 sc1')
        a('s_mov_b64 exec, -1')
    globals()['tail16'] = tail16
    if cfg.smf:
        assert cfg.y16
        def cbl(d, o):
            return [f'v_pk_mul_f32 {vr(G+4,2)}, {vr(F,2)}, {vr(d,2)}', f'v_pk_fma_f32 {vr(G+4,2)}, {vr(F+2,2)}, {vr(d+2,2)}, {vr(G+4,2)}',
                    f'v_add_f32 {vr(o)}, {vr(G+4)}, {vr(G+5)}']
        pkl = lambda d: [f'v_cvt_pk_bf16_f32 {vr(O+d)}, {vr(G+2*d)}, {vr(G+2*d+1)}', f'v_min_u32 {vr(O+d)}, -2, {vr(O+d)}']
        c0, c1 = cbl(D, G), cbl(D + 4, G + 1)
        q = cbl(D + 32, O + 4) + c0[:2] + [f'v_mov_b32_dpp {vr(T+1)}, {vr(O+4)} row_shl:2 {DPPF}', f'v_cvt_pk_bf16_f32 {vr(T)}, {vr(O+4)}, {vr(T+1)}',
             f'v_min_u32 {vr(T)}, -2, {vr(T)}'] + c0[2:] + c1[:1] + [f'v_mov_b32_dpp {vr(T+e)}, {vr(T)} row_shl:{4*e} {DPPF}' for e in range(1, 4)]
        q += ['s_mov_b64 exec, 0x00030003\n' + f'buffer_store_dwordx4 {vr(T,4)}, {vr(vY8)}, {srd(S_WS)}, 0 offen offset:1024 {cfg.y_flags}\n' + 's_mov_b64 exec, -1']
        swp = lambda d: [f'v_permlane32_swap_b32 {vr(O+d)}, {vr(O+2+d)}']
        q += c1[1:] + pkl(0) + cbl(D + 8, G + 2) + swp(0) + cbl(D + 12, G + 3) + pkl(1) + swp(1)
        for ks in range(4):
            a(f's_waitcnt lgkmcnt({3-ks})')
            a(f'v_mfma_f32_16x16x32_bf16 {vr(D+32,4)}, {ar(4*ks,4)}, {ar(AW+4*(32+ks),4)}, {vr(D+32,4) if ks else 0}')
        for i in range(16):
            a(f'v_smfmac_f32_16x16x64_bf16 {vr(D+4*(i//4),4)}, {ar(4*(i%4),4)}, {ar(AW+8*i,8)}, {vr(G+7)}')
            if i >= 7: a(q.pop(0)); a(q.pop(0))
        for t in q: a(t)
        a('s_mov_b64 exec, 0xffffffff')
        a(f'buffer_store_dwordx4 {vr(O,4)}, {vr(vY)}, {srd(S_WS)}, 0 offen {cfg.y_flags}')
        a('s_mov_b64 exec, -1')
    elif cfg.y16:
        def cb(t, o):
            a(f'v_mul_f32 {vr(o)}, {vr(F)}, {vr(D+4*t)}')
            for r in range(1, 4): a(f'v_fma_f32 {vr(o)}, {vr(F+r)}, {vr(D+4*t+r)}, {vr(o)}')
        def pk(d): a(f'v_cvt_pk_bf16_f32 {vr(O+d)}, {vr(G+2*d)}, {vr(G+2*d+1)}'); a(f'v_min_u32 {vr(O+d)}, -2, {vr(O+d)}')
        tile(8); tile(0); tile(1); cb(8, O + 4); tile(2)
        tail16(O + 4, T, vY8, 0, 0)
        cb(0, G); tile(3); cb(1, G + 1); tile(4); cb(2, G + 2); pk(0); tile(5); cb(3, G + 3); tile(6); cb(4, G + 4); pk(1)
        tile(7); cb(5, G + 5); pk(2); cb(6, G + 6)
        a('s_mov_b64 exec, 0xffffffff')
        cb(7, G + 7); pk(3)
        a(f'buffer_store_dwordx4 {vr(O,4)}, {vr(vY)}, {srd(S_WS)}, 0 offen sc1')
        a('s_mov_b64 exec, -1')
    else:
        tile(8); tile(0); tile(1)
        a(f'v_mul_f32 {vr(O+4)}, {vr(F)}, {vr(D+32)}')
        for r in range(1, 4): a(f'v_fma_f32 {vr(O+4)}, {vr(F+r)}, {vr(D+32+r)}, {vr(O+4)}')
        tile(2)
        if cfg.t16:
            a(f'v_min_u32 {vr(T)}, -2, {vr(O+4)}')
            for e in range(1, 4): a(f'v_mov_b32_dpp {vr(T+e)}, {vr(T)} row_shl:{4*e} {DPPF}')
            a('s_mov_b64 exec, 0x000f000f')
            a(f'buffer_store_dwordx4 {vr(T,4)}, {vr(vY8)}, {srd(S_WS)}, 0 offen offset:512 sc1')
        else:
            a(f'v_min_u32 {vr(O+4)}, -2, {vr(O+4)}')
            a('s_mov_b64 exec, 0xffffffff')
            a(f'buffer_store_dword {vr(O+4)}, {vr(vY8)}, {srd(S_WS)}, 0 offen offset:512 sc1')
        a('s_mov_b64 exec, -1')
        comb(0, 0, True)
        tile(3); comb(1, 1, True)
        tile(4); comb(2, 2, True)
        tile(5); comb(3, 3, True)
        tile(6); comb(0, 4, False)
        tile(7); comb(1, 5, False); comb(2, 6, False)
        for j in range(3): a(f'v_min_u32 {vr(O+j)}, -2, {vr(O+j)}')
        comb(3, 7, False)
        a(f'v_min_u32 {vr(O+3)}, -2, {vr(O+3)}')
        a(f'buffer_store_dwordx4 {vr(O,4)}, {vr(vY)}, {srd(S_WS)}, 0 offen sc1')
    stamp(4)
    stamp_flush(M, 'A')
    if cfg.trips:
        a(f's_lshl_b32 s6, s2, 2'); a(f's_add_u32 s6, s6, s{sW}'); a('s_lshl_b32 s6, s6, 8'); a(f's_add_u32 s6, s6, {STAMP + 0x100000}')
        a(f'v_lshlrev_b32 {vr(M)}, 2, {vr(vLane)}')
        a(f'buffer_store_dword {vr(vTS)}, {vr(M)}, {srd(S_WS)}, s6 offen')
    a('s_endpgm')

def gen_B():
    V = VAlloc(1)
    vLane = V(); vL16 = V(); vWoff = V(); vXoff = V(); t0 = V(); t1 = V(); t2 = V(); vI = V(); vG = V(); vL16x = V(); vC0 = V()
    base = V.n
    sHalf, sBeta, sB2, sCh, sM0, sSo = 8, 9, 10, 11, 12, 13
    CROW = 1088; CB = 64 * CROW
    QROW = 1056; SQ = 2 * CB; QRED = SQ
    PB = SQ + 16 * QROW; MX = PB + 4096; LS = MX + 512
    assert LS + 512 <= LDS_TOTAL
    fl = cfg.b_flags
    a('B_role:')
    if cfg.noB: a('s_endpgm')
    a(f's_mov_b32 s{sHalf}, s{sR}')
    a(f's_lshl_b32 s{sBeta}, s{sH}, 1'); a(f's_add_u32 s{sBeta}, s{sBeta}, s{sHalf}')
    a(f's_lshr_b32 s{sB2}, s{sBeta}, 4'); a(f's_and_b32 s{sCh}, s{sBeta}, 15')
    a(f'v_and_b32 {vr(vLane)}, 63, v0'); a(f'v_lshlrev_b32 {vr(vL16)}, 4, {vr(vLane)}')
    a(f'v_lshrrev_b32 {vr(vG)}, 4, {vr(vLane)}'); a(f'v_and_b32 {vr(vI)}, 15, {vr(vLane)}')
    if cfg.warm & 2: warm_code('B_role', 'B_end', vLane, t0, t1)
    a('s_waitcnt lgkmcnt(0)')
    a(f's_mul_i32 s6, s{sW}, 288'); a('s_sub_u32 s7, 4608, s6'); mk_srd(S_X, P_BX, 's6', 's7')
    a(f's_mul_i32 s6, s{sW}, {144*8192}'); a(f's_lshl_b32 s7, s{sH}, 8'); a('s_add_u32 s6, s6, s7')
    a(f's_sub_u32 s7, {576*8192}, s6'); mk_srd(S_W, P_BWQ, 's6', 's7')
    a(f's_lshl_b32 s6, s{sHalf}, 2'); a(f's_add_u32 s6, s6, s{sW}'); a('s_lshl_b32 s6, s6, 19')
    a(f's_lshl_b32 s7, s{sH}, 8'); a('s_add_u32 s6, s6, s7'); a(f's_sub_u32 s7, {512*8192}, s6')
    mk_srd(S_U, P_WUK, 's6', 's7')
    if cfg.cwin == 0:
        a(f's_lshl_b32 s6, s{sBeta}, 18'); mk_srd(S_K, P_CKV, 's6', 0x40000)
    else:
        a(f's_lshl_b32 s6, s{sB2}, 22'); mk_srd(S_K, P_CKV, 's6', 0x400000)
    for bit, R in ((1, S_W), (2, S_U), (4, S_K)):
        if cfg.bskip & bit: a(f's_mov_b32 s{R+2}, 0')
    if cfg.emu & 1:
        a(f's_cmp_eq_u32 s{sHalf}, 1'); a(f's_cselect_b32 s{S_W+2}, 0, s{S_W+2}')
    MASK = V(4); SEL = V(8); X0 = V(18); X1 = V(18); PA = V(16, 4); AC0 = V(4, 4); AC1 = V(4, 4)
    UK = V(64, 4); QB = V(16); T = V(4); XX = V(2); U = V(16, 4); D = V(32, 4); vUoff = V()
    a(f'v_mul_u32_u24 {vr(vWoff)}, {36*8192}, {vr(vG)}'); a(f'v_lshl_add_u32 {vr(vWoff)}, {vr(vI)}, 4, {vr(vWoff)}')
    a(f'v_mul_u32_u24 {vr(vXoff)}, 72, {vr(vG)}'); a(f'v_lshrrev_b32 {vr(t1)}, 3, {vr(vI)}')
    a(f'v_mul_u32_u24 {vr(t1)}, 1152, {vr(t1)}'); a(f'v_add_u32 {vr(vXoff)}, {vr(vXoff)}, {vr(t1)}')
    a(f'v_lshlrev_b32 {vr(vUoff)}, 17, {vr(vG)}'); a(f'v_lshl_add_u32 {vr(vUoff)}, {vr(vI)}, 4, {vr(vUoff)}')
    a(f'v_xor_b32 {vr(vL16x)}, 32, {vr(vL16)}')
    mk_srd(S_WS, P_WS, None, WS_USED)
    vm = VM(a, 49)
    x_loads(vm, X0, vXoff, 0); x_loads(vm, X1, vXoff, 2304)
    Lc, Lc1 = lab('noclr'), lab('clr1')
    a(f's_cmp_ge_u32 s{sW}, 2'); a(f's_cbranch_scc1 {Lc}')
    for r in range(4): a(f'v_mov_b32 {vr(D+r)}, -1')
    a(f's_cmp_eq_u32 s{sW}, 1'); a(f's_cbranch_scc1 {Lc1}')
    a(f'v_lshrrev_b32 {vr(t0)}, 5, {vr(vLane)}'); a(f'v_lshlrev_b32 {vr(t0)}, 15, {vr(t0)}')
    a(f'v_and_b32 {vr(t1)}, 31, {vr(vLane)}'); a(f'v_lshl_add_u32 {vr(t0)}, {vr(t1)}, 4, {vr(t0)}')
    a(f's_lshl_b32 s6, s{sBeta}, 9'); a(f's_add_u32 s7, s6, {QABS + 65536}'); a(f's_add_u32 s6, s6, {QABS}')
    a(f'buffer_store_dwordx4 {vr(D,4)}, {vr(t0)}, {srd(S_WS)}, s6 offen sc1')
    a(f'buffer_store_dwordx4 {vr(D,4)}, {vr(t0)}, {srd(S_WS)}, s7 offen sc1')
    a(f's_add_u32 s6, s6, {PSTAT - QABS}')
    a('s_mov_b64 exec, 0xffffffff')
    a(f'buffer_store_dwordx4 {vr(D,4)}, {vr(vL16)}, {srd(S_WS)}, s6 offen sc1')
    a(f's_lshl_b32 s6, s{sBeta}, 7'); a(f's_add_u32 s6, s6, {AST}')
    a('s_mov_b64 exec, 0xff')
    a(f'buffer_store_dwordx4 {vr(D,4)}, {vr(vL16)}, {srd(S_WS)}, s6 offen sc1')
    if cfg.dyn:
        a(f's_mul_i32 s6, s{sBeta}, {cfg.psp}'); a(f's_add_u32 s6, s6, {PROG}')
        a('s_mov_b32 exec_lo, 1'); a(f's_mov_b32 exec_hi, {1 if cfg.mon else 0}')
        a(f'buffer_store_dwordx4 {vr(D,4)}, {vr(t0)}, {srd(S_WS)}, s6 offen sc1')
    a('s_mov_b64 exec, -1')
    a(f'{Lc1}:')
    a(f's_mul_i32 s6, s{sBeta}, 9216'); a(f's_mul_i32 s7, s{sW}, {YB - YA}'); a('s_add_u32 s6, s6, s7'); a(f's_add_u32 s6, s6, {YA if not cfg.bskip & 1024 else OOB}')
    for k in range(9):
        if k in (4, 8): a('s_add_u32 s6, s6, 4096')
        a(f'buffer_store_dwordx4 {vr(D,4)}, {vr(vL16)}, {srd(S_WS)}, s6 offen offset:{1024*(k&3)} {cfg.clr_flags}')
    a(f'{Lc}:')
    for jj in range(36): wunit_load(vm, jj, vWoff, cfg.bwq_flags)
    def uk_load(u):
        a(f's_mov_b32 s6, {u*8192}')
        vm.issue(f'buffer_load_dwordx4 {vr(UK+4*u,4)}, {vr(vUoff)}, {srd(S_U)}, s6 offen {fl}', ('u', u))
    for u in range(3): uk_load(u)
    mk_srd(S_DBG, P_DBG, None, 256); mk_srd(S_OUT, P_OUT, None, 9216)
    mk_masks(vLane, MASK, SEL, t0, t1)
    def coff(rho, k):
        if cfg.cwin == 0: return (64 * rho + k) * 1024
        if cfg.cwin == 1: return (1024 * rho + k) * 1024
        return (1024 * rho + 256 * (k >> 2) + (k & 3)) * 1024
    def c_dma(rho, k):
        a(f's_add_u32 m0, s{sM0}, {(rho&1)*CB + k*CROW}')
        a(f's_add_u32 s6, s{sSo}, {coff(rho, k)}')
        vm.issue(f'buffer_load_dwordx4 {vr(vL16x if k >= 8 else vL16)}, {srd(S_K)}, s6 offen {fl} lds', ('c', rho))
    def c_reg(rho, k):
        a(f's_add_u32 s6, s{sSo}, {coff(rho, k)}')
        vm.issue(f'buffer_load_dwordx4 {ar(64*rho+4*k,4)}, {vr(vL16x if k >= 8 else vL16)}, {srd(S_K)}, s6 offen {fl}', ('c', rho))
    a(f's_mul_i32 s{sM0}, s{sW}, {16*CROW}'); a(f's_lshl_b32 s{sSo}, s{sW}, 14')
    if cfg.cwin:
        a(f's_lshl_b32 s6, s{sCh}, 16'); a(f's_add_u32 s{sSo}, s{sSo}, s6')
        if cfg.cwin == 2: a(f's_lshr_b32 s{sSo}, s{sSo}, 2')
    dma = [(rho, k) for rho in range(2) for k in range(16)]
    for jj in range(36):
        vm.wait(('w', jj))
        if jj == 0:
            Ls = lab('sig0')
            a(f's_cmp_ge_u32 s{sW}, 2'); a(f's_cbranch_scc1 {Ls}')
            a(f'v_mov_b32 {vr(t2)}, 1'); a('s_mov_b64 exec, 1')
            a(f'buffer_atomic_add {vr(t2)}, off, {srd(S_DBG)}, 0 offset:{C0}')
            a('s_mov_b64 exec, -1')
            a(f'{Ls}:')
            vm.limit = 61
            for u in range(3, 16): uk_load(u)
        wunit_mfma(jj, [X0, X1], [AC0, AC1], SEL, PA)
        if jj == 28: vm.issue(f'buffer_load_dword {vr(vC0)}, off, {srd(S_DBG)}, 0 offset:{C0} sc1', 'c0')
        if dma: c_dma(*dma.pop(0))
    assert not dma
    a(f'v_lshlrev_b32 {vr(t0)}, 5, {vr(vI)}')
    a(f'v_and_b32 {vr(t1)}, 1, {vr(vG)}'); a(f'v_lshl_add_u32 {vr(t1)}, {vr(t1)}, 4, {vr(t0)}')
    a(f'v_lshrrev_b32 {vr(t2)}, 5, {vr(vLane)}'); a(f'v_lshl_add_u32 {vr(t1)}, {vr(t2)}, 9, {vr(t1)}')
    a(f's_lshl_b32 s6, s{sW}, 11'); a(f's_add_u32 s6, s6, {QRED}'); a(f'v_add_u32 {vr(t1)}, s6, {vr(t1)}')
    a(f'ds_write_b128 {vr(t1)}, {vr(AC0,4)}'); a(f'ds_write_b128 {vr(t1)}, {vr(AC1,4)} offset:1024')
    a(f'v_add_u32 {vr(t0)}, {QRED}, {vr(t0)}')
    a('s_waitcnt lgkmcnt(0)'); a('s_barrier')
    for b in range(4):
        for w in range(4):
            a(f'ds_read_b128 {vr(D+8*w,4)}, {vr(t0)} offset:{2048*w+512*b}')
            a(f'ds_read_b128 {vr(D+8*w+4,4)}, {vr(t0)} offset:{2048*w+512*b+16}')
        a('s_waitcnt lgkmcnt(0)')
        for e in range(8):
            a(f'v_add_f32 {vr(D+e)}, {vr(D+e)}, {vr(D+8+e)}'); a(f'v_add_f32 {vr(D+16+e)}, {vr(D+16+e)}, {vr(D+24+e)}')
        for e in range(8): a(f'v_add_f32 {vr(D+e)}, {vr(D+e)}, {vr(D+16+e)}')
        for k in range(4): a(f'v_cvt_pk_bf16_f32 {vr(QB+4*b+k)}, {vr(D+2*k)}, {vr(D+2*k+1)}')
    vm.wait(('u', 15))
    for u in range(16):
        for k in range(4):
            for b in range(4):
                c = '0' if k == 0 else vr(T + b)
                a(f'v_dot2_f32_bf16 {vr(T+b)}, {vr(UK+4*u+k)}, {vr(QB+4*b+k)}, {c}')
        reduce4(T, XX, U + u)
    for k in range(8): a(f'v_cvt_pk_bf16_f32 {vr(D+k)}, {vr(U+2*k)}, {vr(U+2*k+1)}')
    for k in range(8): a(f'v_min_u32 {vr(D+k)}, -2, {vr(D+k)}')
    a(f'v_bfe_u32 {vr(t0)}, {vr(vLane)}, 2, 2'); a(f'v_lshlrev_b32 {vr(t0)}, 15, {vr(t0)}')
    a(f'v_lshl_add_u32 {vr(t0)}, {vr(vG)}, 5, {vr(t0)}')
    a(f's_lshl_b32 s6, s{sH}, 10'); a(f's_lshl_b32 s7, s{sHalf}, 9'); a('s_add_u32 s6, s6, s7')
    a(f's_lshl_b32 s7, s{sW}, 7'); a('s_add_u32 s6, s6, s7'); a(f's_add_u32 s6, s6, {QABS}')
    if cfg.qfull:
        a(f'v_and_b32 {vr(t1)}, 1, {vr(vLane)}'); a(f'v_lshl_add_u32 {vr(t0)}, {vr(t1)}, 4, {vr(t0)}')
        a(f'v_cmp_eq_u32 vcc, 1, {vr(t1)}')
        for k in range(4): a(f'v_cndmask_b32 {vr(D+k)}, {vr(D+k)}, {vr(D+4+k)}, vcc')
        a('s_mov_b32 exec_lo, 0x33333333'); a('s_mov_b32 exec_hi, 0x33333333')
        vm.issue(f'buffer_store_dwordx4 {vr(D,4)}, {vr(t0)}, {srd(S_WS)}, s6 offen sc1')
    else:
        a('s_mov_b32 exec_lo, 0x11111111'); a('s_mov_b32 exec_hi, 0x11111111')
        vm.issue(f'buffer_store_dwordx4 {vr(D,4)}, {vr(t0)}, {srd(S_WS)}, s6 offen sc1')
        vm.issue(f'buffer_store_dwordx4 {vr(D+4,4)}, {vr(t0)}, {srd(S_WS)}, s6 offen offset:16 sc1')
    a('s_mov_b64 exec, -1')
    stamp(1)
    vm.wait('c0')
    ensure(C0, C0N, vC0)
    stamp(2)
    if cfg.bstop == 1: a('s_branch B_end')
    V = VAlloc(base)
    ACC = V(64, 4); S = V(8, 4); CF = V(64, 4); PF = V(16, 4); MXR = V(12, 4)
    mQ = V(2); mP = V(); lQ = V(2); aQ = V(2); aP = V(); vC = V(); PK = V(4, 2); Mx = V(2); tt = V()
    vA = V(2); vTr = V(2); vMw = V(); vMr = V(); vMp = V(); vPw = V(); vPr = V(); vQ = V(); vQw = V(); vCw = V(2)
    sQ = 14
    a(f's_lshl_b32 s{sQ}, s{sB2}, 15'); a(f's_lshl_b32 s6, s{sW}, 12'); a(f's_add_u32 s{sQ}, s{sQ}, s6'); a(f's_add_u32 s{sQ}, s{sQ}, {QABS}')
    a(f's_add_u32 s{sQ+1}, s{sQ}, 16384')
    def q_loads(iss):
        for nt in range(2):
            for k in range(4):
                iss(f'buffer_load_dwordx4 {vr(CF+16*nt+4*k,4)}, {vr(vL16)}, {srd(S_WS)}, s{sQ+nt} offen offset:{1024*k} sc1')
    a('s_nop 1')
    q_loads(lambda t: vm.issue(t, 'q'))
    for rho in (2, 3):
        for k in range(16): c_reg(rho, k)
    a(f's_lshl_b32 s6, s{sW}, 4'); a(f'v_add_u32 {vr(t0)}, s6, {vr(vI)}'); a(f'v_mul_u32_u24 {vr(t0)}, {CROW}, {vr(t0)}')
    a(f'v_lshrrev_b32 {vr(t1)}, 3, {vr(vI)}'); a(f'v_lshlrev_b32 {vr(t1)}, 1, {vr(t1)}'); a(f'v_xor_b32 {vr(t1)}, {vr(t1)}, {vr(vG)}')
    a(f'v_lshl_add_u32 {vr(vA)}, {vr(t1)}, 4, {vr(t0)}'); a(f'v_add_u32 {vr(vA+1)}, {CB}, {vr(vA)}')
    a(f'v_lshrrev_b32 {vr(t0)}, 5, {vr(vLane)}'); a(f'v_lshlrev_b32 {vr(t0)}, 3, {vr(t0)}')
    a(f'v_bfe_u32 {vr(t1)}, {vr(vLane)}, 2, 2'); a(f'v_add_u32 {vr(t0)}, {vr(t0)}, {vr(t1)}'); a(f'v_mul_u32_u24 {vr(t0)}, {CROW}, {vr(t0)}')
    a(f'v_lshrrev_b32 {vr(t1)}, 1, {vr(vG)}'); a(f'v_xor_b32 {vr(t1)}, {vr(t1)}, {vr(vG)}')
    a(f'v_and_b32 {vr(t1)}, 1, {vr(t1)}'); a(f'v_lshl_add_u32 {vr(t0)}, {vr(t1)}, 5, {vr(t0)}')
    a(f'v_and_b32 {vr(t1)}, 3, {vr(vLane)}'); a(f'v_lshl_add_u32 {vr(t0)}, {vr(t1)}, 3, {vr(t0)}')
    a(f's_lshl_b32 s6, s{sW}, 8'); a(f'v_add_u32 {vr(vTr)}, s6, {vr(t0)}'); a(f'v_add_u32 {vr(vTr+1)}, {CB}, {vr(vTr)}')
    a(f'v_lshlrev_b32 {vr(vMr)}, 4, {vr(vI)}'); a(f'v_add_u32 {vr(vMr)}, {MX}, {vr(vMr)}')
    a(f's_lshl_b32 s6, s{sW}, 2'); a(f'v_add_u32 {vr(vMw)}, s6, {vr(vMr)}')
    a(f'v_and_b32 {vr(t0)}, 31, {vr(vLane)}'); a(f'v_lshlrev_b32 {vr(vMp)}, 4, {vr(t0)}'); a(f'v_add_u32 {vr(vMp)}, {MX}, {vr(vMp)}')
    a(f'v_lshlrev_b32 {vr(vPr)}, 5, {vr(t0)}'); a(f'v_lshrrev_b32 {vr(t1)}, 5, {vr(vLane)}')
    a(f'v_lshl_add_u32 {vr(vPr)}, {vr(t1)}, 4, {vr(vPr)}'); a(f'v_add_u32 {vr(vPr)}, {PB}, {vr(vPr)}')
    a(f'v_lshlrev_b32 {vr(vPw)}, 5, {vr(vI)}'); a(f'v_lshl_add_u32 {vr(vPw)}, {vr(vG)}, 3, {vr(vPw)}')
    a(f's_lshl_b32 s6, s{sW}, 10'); a(f's_add_u32 s6, s6, {PB}'); a(f'v_add_u32 {vr(vPw)}, s6, {vr(vPw)}')
    a(f'v_mul_u32_u24 {vr(vQ)}, {QROW}, {vr(vI)}'); a(f'v_lshl_add_u32 {vr(vQ)}, {vr(vG)}, 4, {vr(vQ)}'); a(f'v_add_u32 {vr(vQ)}, {SQ}, {vr(vQ)}')
    a(f's_mul_i32 s6, s{sW}, {4*QROW}'); a(f's_add_u32 s6, s6, {SQ}'); a(f'v_add_u32 {vr(vQw)}, s6, {vr(vL16)}')
    a(f'v_add_u32 {vr(vCw)}, s{sM0}, {vr(vL16)}'); a(f'v_add_u32 {vr(vCw+1)}, {CB}, {vr(vCw)}')
    a(f'v_mov_b32 {vr(vC)}, {f2u(SCALE):#x}')
    for r in (mQ, mQ + 1, mP): a(f'v_mov_b32 {vr(r)}, 0xff800000')
    a(f'v_mov_b32 {vr(lQ)}, 0'); a(f'v_mov_b32 {vr(lQ+1)}, 0')
    vm.wait('q')
    a(f's_mov_b32 s7, {cfg.spin_max}')
    a('Q_chk:')
    umax_tree(tt, range(CF, CF + 32))
    a(f'v_cmp_eq_u32 vcc, -1, {vr(tt)}')
    a('s_cbranch_vccz Q_ok')
    a(f's_sleep {cfg.qsleep}')
    q_loads(a)
    a('s_waitcnt vmcnt(0)')
    a('s_sub_u32 s7, s7, 1'); a('s_cmp_lg_u32 s7, 0'); a('s_cbranch_scc1 Q_chk')
    a('Q_ok:')
    stamp(3)
    for nt in range(2):
        a('s_barrier')
        for k in range(4): a(f'ds_write_b128 {vr(vQw)}, {vr(CF+16*nt+4*k,4)} offset:{QROW*k}')
        a('s_waitcnt lgkmcnt(0)'); a('s_barrier')
        for ks in range(16): a(f'ds_read_b128 {ar(64*nt+4*ks,4)}, {vr(vQ)} offset:{64*ks}')
        a('s_waitcnt lgkmcnt(0)')
    for rho in range(4):
        par = rho & 1
        for ks in range(16):
            a(f'ds_read_b128 {vr(CF+4*ks,4)}, {vr(vA+par)} offset:{64*ks}')
        for ks in range(16):
            a(f's_waitcnt lgkmcnt({15-ks})')
            for nt in range(2):
                c = '0' if ks == 0 else vr(S + 4 * nt, 4)
                a(f'v_mfma_f32_16x16x32_bf16 {vr(S+4*nt,4)}, {vr(CF+4*ks,4)}, {ar(64*nt+4*ks,4)}, {c}')
        for nt in range(2):
            a(f'v_max_f32 {vr(Mx+nt)}, {vr(S+4*nt)}, {vr(S+4*nt+1)}')
            a(f'v_max3_f32 {vr(Mx+nt)}, {vr(Mx+nt)}, {vr(S+4*nt+2)}, {vr(S+4*nt+3)}')
            allred_rows(Mx + nt, tt, 'v_max_f32')
            a(f'ds_write_b32 {vr(vMw)}, {vr(Mx+nt)} offset:{256*nt}')
        a('s_waitcnt lgkmcnt(0)'); a('s_barrier')
        a(f'ds_read_b128 {vr(MXR,4)}, {vr(vMr)}'); a(f'ds_read_b128 {vr(MXR+4,4)}, {vr(vMr)} offset:256'); a(f'ds_read_b128 {vr(MXR+8,4)}, {vr(vMp)}')
        if 1 <= rho <= 2:
            vm.wait(('c', rho + 1))
            for k in range(16): a(f'ds_write_b128 {vr(vCw+1-par)}, {ar(64*(rho+1)+4*k,4)} offset:{k*CROW}')
            a('s_waitcnt lgkmcnt(15)')
        else:
            a('s_waitcnt lgkmcnt(0)')
        for i, (m, al) in enumerate(((mQ, aQ), (mQ + 1, aQ + 1), (mP, aP))):
            R = MXR + 4 * i
            a(f'v_max_f32 {vr(R)}, {vr(R)}, {vr(R+1)}'); a(f'v_max3_f32 {vr(R)}, {vr(R)}, {vr(R+2)}, {vr(R+3)}')
            a(f'v_mul_f32 {vr(R)}, {vr(R)}, {vr(vC)}'); a(f'v_max_f32 {vr(R)}, {vr(R)}, {vr(m)}')
            a(f'v_sub_f32 {vr(al)}, {vr(m)}, {vr(R)}'); a(f'v_exp_f32 {vr(al)}, {vr(al)}'); a(f'v_mov_b32 {vr(m)}, {vr(R)}')
        for nt in range(2):
            for r in range(4):
                a(f'v_fma_f32 {vr(S+4*nt+r)}, {vr(S+4*nt+r)}, {vr(vC)}, -{vr(mQ+nt)}')
            for r in range(4): a(f'v_exp_f32 {vr(S+4*nt+r)}, {vr(S+4*nt+r)}')
            a(f'v_mul_f32 {vr(lQ+nt)}, {vr(lQ+nt)}, {vr(aQ+nt)}')
            a(f'v_cvt_pk_bf16_f32 {vr(PK+2*nt)}, {vr(S+4*nt)}, {vr(S+4*nt+1)}'); a(f'v_cvt_pk_bf16_f32 {vr(PK+2*nt+1)}, {vr(S+4*nt+2)}, {vr(S+4*nt+3)}')
            a(f'ds_write_b64 {vr(vPw)}, {vr(PK+2*nt,2)} offset:{512*nt}')
            for r in range(4): a(f'v_add_f32 {vr(lQ+nt)}, {vr(lQ+nt)}, {vr(S+4*nt+r)}')
        if rho > 0:
            for r in range(64): a(f'v_mul_f32 {vr(ACC+r)}, {vr(ACC+r)}, {vr(aP)}')
        a('s_waitcnt lgkmcnt(0)'); a('s_barrier')
        for ks in range(4): a(f'ds_read_b128 {vr(PF+4*ks,4)}, {vr(vPr)} offset:{1024*ks}')
        for ks in range(4):
            for ct in range(4):
                for sec in range(2):
                    a(f'ds_read_b64_tr_b16 {vr(CF+16*ks+4*ct+2*sec,2)}, {vr(vTr+par)} offset:{(16*ks+4*sec)*CROW + 64*ct}')
        for ks in range(4):
            a(f's_waitcnt lgkmcnt({min(15, 8*(3-ks))})')
            for ct in range(4):
                c = '0' if (rho == 0 and ks == 0) else vr(ACC + 16 * ct, 16)
                a(f'v_mfma_f32_32x32x16_bf16 {vr(ACC+16*ct,16)}, {vr(CF+16*ks+4*ct,4)}, {vr(PF+4*ks,4)}, {c}')
    stamp(4)
    for nt in range(2):
        allred_rows(lQ + nt, tt, 'v_add_f32')
        a(f'ds_write_b32 {vr(vMw)}, {vr(lQ+nt)} offset:{512+256*nt}')
    TROW = 1040
    a(f'v_and_b32 {vr(t0)}, 31, {vr(vLane)}'); a(f'v_mul_u32_u24 {vr(t0)}, {TROW}, {vr(t0)}')
    a(f'v_lshrrev_b32 {vr(t1)}, 5, {vr(vLane)}'); a(f'v_lshl_add_u32 {vr(t0)}, {vr(t1)}, 3, {vr(t0)}')
    a(f's_lshl_b32 s6, s{sW}, 8'); a(f'v_add_u32 {vr(t0)}, s6, {vr(t0)}')
    for ct in range(4):
        for rq in range(4):
            R = ACC + 16 * ct + 4 * rq; P = CF + 2 * (4 * ct + rq)
            a(f'v_cvt_pk_bf16_f32 {vr(P)}, {vr(R)}, {vr(R+1)}'); a(f'v_cvt_pk_bf16_f32 {vr(P+1)}, {vr(R+2)}, {vr(R+3)}')
            a(f'ds_write_b64 {vr(t0)}, {vr(P,2)} offset:{64*ct+16*rq}')
    a('s_waitcnt lgkmcnt(0)'); a('s_barrier')
    a(f's_mul_i32 s6, s{sW}, {8*TROW}'); a(f'v_add_u32 {vr(t0)}, s6, {vr(vL16)}')
    for k in range(8): a(f'ds_read_b128 {vr(CF+32+4*k,4)}, {vr(t0)} offset:{k*TROW}')
    a(f'ds_read_b128 {vr(MXR,4)}, {vr(vMp)} offset:512')
    a(f's_lshl_b32 s7, s{sW}, 19'); a(f's_lshl_b32 s6, s{sBeta}, 10'); a('s_add_u32 s7, s7, s6'); a(f's_add_u32 s7, s7, {PART if not cfg.bskip & 16 else OOB}')
    if cfg.emu & 4:
        a(f's_cmp_eq_u32 s{sHalf}, 1'); a(f's_cselect_b32 s7, {OOB}, s7')
    for k in range(8):
        a(f's_waitcnt lgkmcnt({8-k})')
        a(f's_add_u32 s6, s7, {k*65536}')
        a(f'buffer_store_dwordx4 {vr(CF+32+4*k,4)}, {vr(vL16)}, {srd(S_WS)}, s6 offen {cfg.pst_flags}')
    a('s_waitcnt lgkmcnt(0)')
    a(f'v_add_f32 {vr(MXR)}, {vr(MXR)}, {vr(MXR+1)}'); a(f'v_add_f32 {vr(MXR+2)}, {vr(MXR+2)}, {vr(MXR+3)}')
    a(f'v_add_f32 {vr(PK+1)}, {vr(MXR)}, {vr(MXR+2)}'); a(f'v_mov_b32 {vr(PK)}, {vr(mP)}')
    a(f'v_and_b32 {vr(t0)}, 31, {vr(vLane)}'); a(f'v_lshrrev_b32 {vr(t1)}, 5, {vr(vLane)}')
    a(f'v_lshl_add_u32 {vr(t0)}, {vr(t0)}, 1, {vr(t1)}'); a(f'v_lshlrev_b32 {vr(t0)}, 9, {vr(t0)}')
    a(f's_lshl_b32 s6, s{sBeta}, 3'); a(f's_add_u32 s6, s6, {PSTAT}')
    a(f'v_min_u32 {vr(PK)}, -2, {vr(PK)}'); a(f'v_min_u32 {vr(PK+1)}, -2, {vr(PK+1)}')
    a('s_waitcnt vmcnt(0)'); a('s_barrier')
    Ls = lab('nops')
    a(f's_cmp_lg_u32 s{sW}, 0'); a(f's_cbranch_scc1 {Ls}')
    if cfg.pshare: a('s_mov_b64 exec, 0xffffffff')
    a(f'buffer_store_dwordx2 {vr(PK,2)}, {vr(t0)}, {srd(S_WS)}, s6 offen sc1')
    if cfg.pshare: a('s_mov_b64 exec, -1')
    a(f'{Ls}:')
    stamp(5)
    if cfg.bstop == 2: a('s_branch B_end')
    V = VAlloc(base)
    UB = 73728; OT = UB + 65536; RED = OT + 2048
    AF = V(64, 4); BF = V(32, 4); D = V(36, 4); F = V(4); ST = V(2); Mx = V(); Lx = V(); vU = V(2); vR = V(4); vT = V(4); PA = V(8, 4); O = V(12, 4)
    a(f's_mul_i32 s6, s{sBeta}, 73728'); mk_srd(S_WO, P_BWO, 's6', 73728)
    a(f's_lshl_b32 s6, s{sBeta}, 7'); a(f's_sub_u32 s7, {512*8192}, s6'); mk_srd(S_U, P_WUV, 's6', 's7')
    for bit, Rr in ((64, S_U), (128, S_WO)):
        if cfg.bskip & bit: a(f's_mov_b32 s{Rr+2}, 0')
    a(f'v_lshrrev_b32 {vr(t0)}, 3, {vr(vLane)}'); a(f'v_and_b32 {vr(t1)}, 7, {vr(vLane)}')
    a(f'v_and_b32 {vr(t2)}, 2, {vr(t0)}'); a(f'v_xor_b32 {vr(t1)}, {vr(t1)}, {vr(t2)}')
    a(f'v_lshlrev_b32 {vr(t0)}, 13, {vr(t0)}')
    a(f'v_lshl_add_u32 {vr(vU)}, {vr(t1)}, 4, {vr(t0)}')
    a(f'v_xor_b32 {vr(t1)}, 4, {vr(t1)}'); a(f'v_lshl_add_u32 {vr(vU+1)}, {vr(t1)}, 4, {vr(t0)}')
    a(f's_lshl_b32 s{sM0}, s{sW}, 14'); a(f's_lshl_b32 s{sSo}, s{sW}, 20')
    if cfg.emu & 2:
        a(f's_lshl_b32 s6, s{sH}, 8'); a(f's_lshl_b32 s7, s{sHalf}, 21'); a('s_add_u32 s6, s6, s7'); a(f's_sub_u32 s7, {512*8192}, s6'); mk_srd(S_U, P_WUV, 's6', 's7')
        a(f'v_lshlrev_b32 {vr(vU)}, 13, {vr(vG)}'); a(f'v_lshl_add_u32 {vr(vU)}, {vr(vI)}, 4, {vr(vU)}'); a(f'v_mov_b32 {vr(vU+1)}, {vr(vU)}')
        a(f's_lshl_b32 s{sSo}, s{sW}, 19')
    for k in range(16):
        a(f's_add_u32 m0, s{sM0}, {UB + k*1024}'); a(f's_add_u32 s6, s{sSo}, {k*(32768 if cfg.emu & 2 else 65536)}')
        a(f'buffer_load_dwordx4 {vr(vU+(k&1))}, {srd(S_U)}, s6 offen {fl} lds')
    a(f's_mul_i32 s{sM0}, s{sW}, 18432')
    for k in range(18):
        a(f's_add_u32 s6, s{sM0}, {k*1024}'); a('s_mov_b32 m0, s6')
        a(f'buffer_load_dwordx4 {vr(vL16)}, {srd(S_WO)}, s6 offen {fl} lds')
    mk_wo_tr_addr(vLane, vT, t0, t1, False)
    a(f'v_bfe_u32 {vr(t0)}, {vr(vLane)}, 2, 2'); a(f'v_lshl_add_u32 {vr(t0)}, {vr(vG)}, 3, {vr(t0)}'); a(f'v_lshlrev_b32 {vr(t0)}, 7, {vr(t0)}')
    a(f'v_and_b32 {vr(t1)}, 3, {vr(vLane)}'); a(f'v_lshl_add_u32 {vr(t0)}, {vr(t1)}, 3, {vr(t0)}'); a(f'v_add_u32 {vr(t0)}, {UB}, {vr(t0)}')
    a(f'v_bfe_u32 {vr(t1)}, {vr(vLane)}, 3, 2')
    for t in range(4):
        a(f'v_xor_b32 {vr(t2)}, {t}, {vr(t1)}'); a(f'v_lshl_add_u32 {vr(vR+t)}, {vr(t2)}, 5, {vr(t0)}')
    a(f'v_lshlrev_b32 {vr(t0)}, 10, {vr(vI)}'); a(f'v_lshl_add_u32 {vr(t0)}, {vr(vG)}, 4, {vr(t0)}')
    a(f'v_lshlrev_b32 {vr(t1)}, 3, {vr(vI)}')
    a(f's_lshl_b32 s6, s{sH}, 10' if cfg.pshare else f's_lshl_b32 s6, s{sBeta}, 9'); a(f's_lshl_b32 s7, s{sW}, 7'); a('s_add_u32 s6, s6, s7'); a(f's_add_u32 s6, s6, {PSTAT}')
    a(f's_mov_b32 s7, {cfg.spin_max}')
    a('P_poll:')
    a(f'buffer_load_dwordx2 {vr(ST,2)}, {vr(t1)}, {srd(S_WS)}, s6 offen sc1')
    a('s_waitcnt vmcnt(0)')
    a(f'v_max_u32 {vr(Mx)}, {vr(ST)}, {vr(ST+1)}'); a(f'v_cmp_eq_u32 vcc, -1, {vr(Mx)}')
    a('s_cbranch_vccz P_ok')
    a(f's_sleep {cfg.psleep}')
    a('s_sub_u32 s7, s7, 1'); a('s_cmp_lg_u32 s7, 0'); a('s_cbranch_scc1 P_poll')
    a('P_ok:')
    stamp(6)
    vm = VM(a)
    a(f's_lshl_b32 s6, s{sH}, 16'); a(f's_lshl_b32 s7, s{sW}, 14'); a('s_add_u32 s6, s6, s7'); a(f's_add_u32 s6, s6, {PART if not cfg.bskip & 256 else OOB}')
    if cfg.emu & 4:
        a(f's_cmp_eq_u32 s{sHalf}, 1'); a(f's_cselect_b32 s6, {OOB}, s6')
    for ks in range(16):
        if cfg.emu & 4:
            vm.issue(f'buffer_load_dwordx4 {vr(AF+4*ks,4)}, {vr(vL16)}, {srd(S_WS)}, s6 offen offset:{2048*(ks&1)} sc1', ('a', ks))
            if ks & 1: a(f's_add_u32 s6, s6, {4096 if ks != 7 else OOB}')
            continue
        if cfg.bskip & 512:
            vm.issue(f'buffer_load_dwordx4 {vr(AF+4*ks,4)}, {vr(vL16)}, {srd(S_WS)}, s6 offen offset:{1024*(ks&3)} sc1', ('a', ks))
            if ks & 3 == 3: a('s_add_u32 s6, s6, 4096')
            continue
        vm.issue(f'buffer_load_dwordx4 {vr(AF+4*ks,4)}, {vr(t0)}, {srd(S_WS)}, s6 offen offset:{64*ks} {cfg.pld_flags}', ('a', ks))
    a('s_barrier')
    wo_frag_reads(2, vT)
    a(f'v_mov_b32 {vr(Mx)}, {vr(ST)}')
    for sh in (8, 4, 2, 1): a(f'v_max_f32_dpp {vr(Mx)}, {vr(Mx)}, {vr(Mx)} row_ror:{sh} {DPPF}')
    a(f'v_sub_f32 {vr(ST)}, {vr(ST)}, {vr(Mx)}'); a(f'v_exp_f32 {vr(ST)}, {vr(ST)}')
    a(f'v_mul_f32 {vr(Lx)}, {vr(ST)}, {vr(ST+1)}')
    for sh in (8, 4, 2, 1): a(f'v_add_f32_dpp {vr(Lx)}, {vr(Lx)}, {vr(Lx)} row_ror:{sh} {DPPF}')
    a(f'v_rcp_f32 {vr(Lx)}, {vr(Lx)}'); a(f'v_mul_f32 {vr(ST)}, {vr(ST)}, {vr(Lx)}')
    for r in range(4):
        for q in range(4):
            a(f'v_mov_b32_dpp {vr(F+r)}, {vr(ST)} row_newbcast:{4*q+r} row_mask:{1<<q:#x} bank_mask:0xf')
    a('s_waitcnt lgkmcnt(0)')
    def u_reads(ks):
        for t in range(4):
            for sec in range(2):
                a(f'ds_read_b64_tr_b16 {vr(BF+16*(ks&1)+4*t+2*sec,2)}, {vr(vR+t)} offset:{(32*ks+4*sec)*128}')
    u_reads(0)
    for ks in range(16):
        if ks + 1 < 16: u_reads(ks + 1)
        vm.wait(('a', ks))
        a(f's_waitcnt lgkmcnt({8 if ks + 1 < 16 else 0})')
        for t in range(4):
            c = '0' if ks == 0 else vr(D + 4 * t, 4)
            a(f'v_mfma_f32_16x16x32_bf16 {vr(D+4*t,4)}, {vr(AF+4*ks,4)}, {vr(BF+16*(ks&1)+4*t,4)}, {c}')
    a(f'v_lshlrev_b32 {vr(t0)}, 7, {vr(vG)}'); a(f'v_lshl_add_u32 {vr(t0)}, {vr(vI)}, 1, {vr(t0)}')
    a(f's_lshl_b32 s6, s{sW}, 9'); a(f's_add_u32 s6, s6, {OT}'); a(f'v_add_u32 {vr(t0)}, s6, {vr(t0)}')
    for t in range(4):
        a(f'v_mul_f32 {vr(O+t)}, {vr(F)}, {vr(D+4*t)}')
        for r in range(1, 4): a(f'v_fma_f32 {vr(O+t)}, {vr(F+r)}, {vr(D+4*t+r)}, {vr(O+t)}')
        a(f'v_cvt_pk_bf16_f32 {vr(O+t)}, {vr(O+t)}, {vr(O+t)}')
        a(f'ds_write_b16 {vr(t0)}, {vr(O+t)} offset:{32*t}')
    a(f'v_lshlrev_b32 {vr(t1)}, 7, {vr(vI)}'); a(f'v_lshl_add_u32 {vr(t1)}, {vr(vG)}, 4, {vr(t1)}'); a(f'v_add_u32 {vr(t1)}, {OT}, {vr(t1)}')
    if cfg.dyn:
        a(f'v_mov_b32 {vr(vC0)}, {RED}'); a(f'v_mov_b32 {vr(t2)}, 0'); a(f'ds_write_b32 {vr(vC0)}, {vr(t2)}')
    a('s_waitcnt lgkmcnt(0)'); a('s_barrier')
    for ks in range(2): a(f'ds_read_b128 {vr(PA+4*ks,4)}, {vr(t1)} offset:{64*ks}')
    a(f'v_mul_u32_u24 {vr(t0)}, {64*2304}, {vr(vG)}')
    a(f'v_and_b32 {vr(t1)}, 3, {vr(vLane)}'); a(f'v_bfe_u32 {vr(t2)}, {vr(vLane)}, 2, 2')
    a(f'v_lshl_add_u32 {vr(t1)}, {vr(t1)}, 2, {vr(t2)}'); a(f'v_lshl_add_u32 {vr(t1)}, {vr(t1)}, 2, {vr(t0)}')
    a(f'v_lshl_add_u32 {vr(t0)}, {vr(vI)}, 4, {vr(t0)}')
    a(f's_mul_i32 s6, s{sBeta}, 2304'); a(f's_mul_i32 s7, s{sW}, 576'); a('s_add_u32 s6, s6, s7'); a(f's_add_u32 s6, s6, {YB}')
    a('s_waitcnt lgkmcnt(0)')
    for t in range(9):
        for ks in range(2):
            c = '0' if ks == 0 else vr(D + 4 * t, 4)
            a(f'v_mfma_f32_16x16x32_bf16 {vr(D+4*t,4)}, {vr(PA+4*ks,4)}, {ar(AW+4*(t*2+ks),4)}, {c}')
    for t in range(9):
        a(f'v_add_f32 {vr(D+4*t)}, {vr(D+4*t)}, {vr(D+4*t+1)}'); a(f'v_add_f32 {vr(D+4*t+2)}, {vr(D+4*t+2)}, {vr(D+4*t+3)}')
        a(f'v_add_f32 {vr(O+t)}, {vr(D+4*t)}, {vr(D+4*t+2)}'); a(f'v_min_u32 {vr(O+t)}, -2, {vr(O+t)}')
    a(f'buffer_store_dwordx4 {vr(O,4)}, {vr(t0)}, {srd(S_WS)}, s6 offen sc1')
    a(f'buffer_store_dwordx4 {vr(O+4,4)}, {vr(t0)}, {srd(S_WS)}, s6 offen offset:256 sc1')
    a(f'buffer_store_dword {vr(O+8)}, {vr(t1)}, {srd(S_WS)}, s6 offen offset:512 sc1')
    stamp(7)
    if cfg.bstop == 3: a('s_branch B_end')
    gen_final(vLane, vG, t0, t1, vC0, sHalf, sBeta, base)


class Mon:
    sX, sG, sDl, sO, sS = 16, 17, 18, 19, 22
    def __init__(self, r):
        self.PG = r; self.vP, self.vA, self.vB, self.S = r + 4, r + 5, r + 6, r + 7
    def init(self, vLane, sBeta):
        GL = PROG + 2 * TFO; vP, vA = self.vP, self.vA
        assert 8 * cfg.pxs <= TFO
        a(f's_lshr_b32 s{self.sX}, s{sBeta}, 3'); a(f's_mul_i32 s{self.sG}, s{self.sX}, {cfg.pxs}')
        a(f'v_and_b32 {vr(vP)}, 7, {vr(vLane)}'); a(f'v_mul_u32_u24 {vr(vP)}, {cfg.psp}, {vr(vP)}')
        a(f'v_add_u32 {vr(vP)}, s{self.sG}, {vr(vP)}'); a(f'v_add_u32 {vr(vP)}, {PROG}, {vr(vP)}')
        a(f'v_and_b32 {vr(vA)}, {cfg.mref-1}, {vr(vLane)}')
        if cfg.mref == 4: a(f's_and_b32 s6, s{self.sX}, 4'); a(f'v_add_u32 {vr(vA)}, s6, {vr(vA)}')
        a(f'v_mul_u32_u24 {vr(vA)}, {128 if cfg.msh else cfg.pxs}, {vr(vA)}'); a(f'v_add_u32 {vr(vA)}, {GL}, {vr(vA)}')
        if cfg.msh: a(f's_lshl_b32 s{self.sG}, s{self.sX}, 7'); a('s_mov_b32 s23, -1')
        a(f's_add_u32 s{self.sG}, s{self.sG}, {GL}')
        a(f's_mov_b32 s{self.sDl}, 0')
    def loads(self):
        if cfg.mrate: a('s_memrealtime s[24:25]')
        a(f'buffer_load_dwordx3 {vr(self.PG,3)}, {vr(self.vP)}, {srd(S_WS)}, 0 offen sc1')
        if cfg.msh:
            a('s_waitcnt lgkmcnt(0)'); a(f'v_mov_b32 {vr(self.S)}, s24'); a(f'v_subrev_u32 {vr(self.S)}, {1 << cfg.msh}, {vr(self.S)}')
            a(f'v_bfe_u32 {vr(self.S)}, {vr(self.S)}, {cfg.msh}, 5'); a(f'v_mul_u32_u24 {vr(self.S)}, {cfg.gls}, {vr(self.S)}')
            a(f'v_add_u32 {vr(self.S)}, {vr(self.S)}, {vr(self.vA)}')
            a(f'buffer_load_dword {vr(self.vB)}, {vr(self.S)}, {srd(S_WS)}, 0 offen sc1')
        elif not cfg.cdbg & 8: a(f'buffer_load_dword {vr(self.vB)}, {vr(self.vA)}, {srd(S_WS)}, 0 offen sc1')
    def step(self):
        PG, vP, vB, S, sX, sG, sDl, sO, sS = self.PG, self.vP, self.vB, self.S, self.sX, self.sG, self.sDl, self.sO, self.sS
        Ln = lab('mnext')
        a(f'v_min3_i32 {vr(S)}, {vr(PG)}, {vr(PG+1)}, {vr(PG+2)}'); a(f'v_cmp_gt_i32 vcc, 0, {vr(S)}')
        a(f's_mov_b32 s{sS}, 0'); a(f's_cbranch_vccnz {Ln}')
        a(f'v_add3_u32 {vr(S)}, {vr(PG)}, {vr(PG+1)}, {vr(PG+2)}')
        for sh in (4, 2, 1): a(f'v_add_u32_dpp {vr(S)}, {vr(S)}, {vr(S)} row_ror:{sh} {DPPF}')
        a(f'v_lshlrev_b32 {vr(S)}, 3, {vr(S)}')
        a(f'v_readfirstlane_b32 s{sS}, {vr(S)}')
        if cfg.mrate:
            assert cfg.mrate % 2 == 0
            a('s_waitcnt lgkmcnt(0)'); a(f's_mul_i32 s6, s24, {cfg.mrate}'); a(f's_sub_u32 s{sO}, s{sS}, s6'); a(f'v_mov_b32 {vr(S)}, s{sO}')
        if cfg.msh:
            Lk = lab('same')
            a(f's_bfe_u32 s6, s24, {(5 << 16) | cfg.msh:#x}'); a('s_cmp_eq_u32 s6, s23'); a(f's_cbranch_scc1 {Lk}')
            a('s_mov_b32 s23, s6'); a(f's_mul_i32 s6, s6, {cfg.gls}'); a(f's_add_u32 s6, s6, s{sG}')
            a('s_mov_b64 exec, 1')
            a(f'buffer_store_dword {vr(S)}, off, {srd(S_WS)}, s6 {cfg.gl_flags}')
            a('s_mov_b64 exec, -1')
            a(f'{Lk}:')
        else:
            a('s_mov_b64 exec, 1')
            if not cfg.cdbg & 4: a(f'buffer_store_dword {vr(S)}, off, {srd(S_WS)}, s{sG} {cfg.gl_flags}')
            a('s_mov_b64 exec, -1')
        if cfg.msh or not cfg.mrate: a(f'v_readlane_b32 s{sO}, {vr(vB)}, s{sX}')
        a(f'v_cmp_eq_u32 vcc, -1, {vr(vB)}')
        a(f's_cbranch_vccnz {Ln}')
        a(f'v_subrev_u32 {vr(vB)}, s{sO}, {vr(vB)}')
        for sh in (4, 2, 1): a(f'v_add_u32_dpp {vr(vB)}, {vr(vB)}, {vr(vB)} row_ror:{sh} {DPPF}')
        a(f'v_readfirstlane_b32 s6, {vr(vB)}')
        a('s_ashr_i32 s6, s6, 3')
        a(f's_sub_i32 s6, s6, s{sDl}'); a(f's_ashr_i32 s6, s6, {cfg.mf}'); a(f's_add_i32 s{sDl}, s{sDl}, s6')
        a(f's_mul_i32 s6, s{sS}, {cfg.mal}'); a('s_ashr_i32 s6, s6, 2'); a(f's_add_i32 s6, s6, s{sDl}'); a(f's_add_i32 s6, s6, {cfg.mth}')
        a(f's_add_i32 s{sO}, s6, {cfg.mth2 - cfg.mth}')
        if cfg.tforce: a(f's_lshr_b32 s6, {cfg.tforce}, s{sX}'); a('s_lshl_b32 s6, s6, 31'); a('s_or_b32 s6, s6, 0x100000')
        for j in range(3):
            a(f'v_mul_u32_u24 {vr(S)}, {48 * cfg.mal}, {vr(PG+j)}'); a(f'v_cmp_lt_i32 vcc, s6, {vr(S)}')
            a(f'v_cndmask_b32 {vr(PG+j)}, 0, 1, vcc')
            a(f'v_cmp_lt_i32 vcc, s{sO}, {vr(S)}'); a(f'v_cndmask_b32 {vr(PG+j)}, {vr(PG+j)}, 2, vcc')
        a('s_mov_b64 exec, 0xff'); a(f's_mov_b32 s6, {TFO}')
        a(f'buffer_store_dwordx3 {vr(PG,3)}, {vr(vP)}, {srd(S_WS)}, s6 offen')
        a('s_mov_b64 exec, -1'); a('s_nop 1')
        a(f'{Ln}:')

def gen_CD():
    V = VAlloc(1)
    vLane = V(); vL16 = V(); vWoff = V(); vXoff = V(); t0 = V(); t1 = V(); t2 = V(); vI = V(); vG = V(); vL16x = V(); vC0 = V()
    base = V.n
    sHalf, sBeta, sB2, sCh, sM0, sSo = 8, 9, 10, 11, 12, 13
    FLAG = LDS_TOTAL - 16
    NCH = cfg.nch; LC = NCH.bit_length() - 1; RORS = (4, 2, 1)[3 - LC:]
    fl = cfg.b_flags; SQ_ = globals()['SQ']
    def flag_init():
        if cfg.dyn:
            a(f'v_mov_b32 {vr(vC0)}, {FLAG}'); a(f'v_mov_b32 {vr(t2)}, 0'); a(f'ds_write_b32 {vr(vC0)}, {vr(t2)}')
    def prefix():
        if cfg.ks1: a('s_load_dwordx8 s[32:39], s[0:1], 64'); a('s_load_dwordx4 s[40:43], s[0:1], 96')
        if cfg.noB: a('s_endpgm')
        a(f's_mov_b32 s{sHalf}, s{sR}')
        a(f's_lshl_b32 s{sBeta}, s{sH}, 1'); a(f's_add_u32 s{sBeta}, s{sBeta}, s{sHalf}')
        a(f'v_and_b32 {vr(vLane)}, 63, v0'); a(f'v_lshlrev_b32 {vr(vL16)}, 4, {vr(vLane)}')
        a(f'v_lshrrev_b32 {vr(vG)}, 4, {vr(vLane)}'); a(f'v_and_b32 {vr(vI)}, 15, {vr(vLane)}')
    if cfg.djmp > 1: a('.p2align 7')
    a('B_role:')
    prefix()
    if not cfg.djmp: a(f's_cmp_eq_u32 s{sHalf}, 1'); a('s_cbranch_scc1 D_role')
    if cfg.warm & 2: warm_code('', 'D_role', vLane, t0, t1, 1)
    QRED = 147456; XB = QRED; XS = 1040; OT = QRED + 8192; OS = 272
    assert OT + 16 * OS <= FLAG
    MASK = V(4); SEL = V(8); X0 = V(20, 4); X1 = V(20, 4); PA = V(16, 4); AC0 = V(4, 4); AC1 = V(4, 4)
    UK = V(128, 4); QB = V(16, 4); T = V(4); XX = V(2); vUoff = V(); vT = V(4); E8 = V(8, 4)
    D = X0; U = PA
    a(f'v_mul_u32_u24 {vr(vWoff)}, {36*8192}, {vr(vG)}'); a(f'v_lshl_add_u32 {vr(vWoff)}, {vr(vI)}, 4, {vr(vWoff)}')
    a(f'v_mul_u32_u24 {vr(vXoff)}, 72, {vr(vG)}'); a(f'v_lshrrev_b32 {vr(t1)}, 3, {vr(vI)}')
    a(f'v_mul_u32_u24 {vr(t1)}, 1152, {vr(t1)}'); a(f'v_add_u32 {vr(vXoff)}, {vr(vXoff)}, {vr(t1)}')
    a(f'v_lshlrev_b32 {vr(vUoff)}, 17, {vr(vG)}'); a(f'v_lshl_add_u32 {vr(vUoff)}, {vr(vI)}, 4, {vr(vUoff)}')
    karg_wait()
    a(f's_mul_i32 s6, s{sW}, 288'); a('s_sub_u32 s7, 4608, s6'); mk_srd(S_X, P_BX, 's6', 's7')
    a(f's_mul_i32 s6, s{sW}, {144*8192}'); a(f's_lshl_b32 s7, s{sH}, 8'); a('s_add_u32 s6, s6, s7')
    a(f's_sub_u32 s7, {576*8192}, s6'); mk_srd(S_W, P_BWQ, 's6', 's7')
    vm = VM(a, 62)
    x_loads(vm, X0, vXoff, 0); x_loads(vm, X1, vXoff, 2304)
    for jj in range(36): wunit_load(vm, jj, vWoff, cfg.bwq_flags)
    a(f's_lshl_b32 s6, s{sW}, 20'); a(f's_lshl_b32 s7, s{sH}, 8'); a('s_add_u32 s6, s6, s7'); a(f's_sub_u32 s7, {512*8192}, s6')
    mk_srd(S_U, P_WUK, 's6', 's7'); mk_srd(S_K, P_WUV, 's6', 's7')
    def uk_load(u):
        a(f's_mov_b32 s6, {(64*(u>>4) + (u&15))*8192}')
        vm.issue(f'buffer_load_dwordx4 {vr(UK+4*u,4)}, {vr(vUoff)}, {srd(S_U)}, s6 offen {fl}', ('u', u))
    for u in range(12): uk_load(u)
    mk_srd(S_WS, P_WS, None, WS_USED); mk_srd(S_DBG, P_DBG, None, 256); mk_srd(S_OUT, P_OUT, None, 9216)
    a(f's_mul_i32 s6, s{sH}, 147456'); mk_srd(S_WO, P_BWO, 's6', 147456)
    mk_masks(vLane, MASK, SEL, t0, t1)
    mk_wo_tr_addr(vLane, vT, t0, t1, True)
    a(f's_mul_i32 s{sM0}, s{sW}, 36864')
    nd = [0]
    def wo_dma():
        k = nd[0]; nd[0] += 1
        if k % 4 == 0:
            if k: a(f's_add_u32 s{sM0}, s{sM0}, 4096')
            a(f's_mov_b32 m0, s{sM0}')
        vm.issue(f'buffer_load_dwordx4 {vr(vL16)}, {srd(S_WO)}, s{sM0} offen offset:{1024*(k%4)} {fl} lds', 'wo')
    nu = 12
    for jj in range(36):
        vm.wait(('w', jj))
        wunit_mfma(jj, [X0, X1], [AC0, AC1], SEL, PA)
        if nu < 32: uk_load(nu); nu += 1
        elif nu == 32: vm.issue(f'buffer_load_dword {vr(vC0)}, off, {srd(S_DBG)}, 0 offset:{C0} sc1', 'c0'); nu += 1
        elif nd[0] < cfg.cpre: wo_dma()
    stamp(3)
    a(f'v_lshlrev_b32 {vr(t0)}, 5, {vr(vI)}')
    a(f'v_and_b32 {vr(t1)}, 1, {vr(vG)}'); a(f'v_lshl_add_u32 {vr(t1)}, {vr(t1)}, 4, {vr(t0)}')
    a(f'v_lshrrev_b32 {vr(t2)}, 5, {vr(vLane)}'); a(f'v_lshl_add_u32 {vr(t1)}, {vr(t2)}, 9, {vr(t1)}')
    a(f's_lshl_b32 s6, s{sW}, 11'); a(f's_add_u32 s6, s6, {QRED}'); a(f'v_add_u32 {vr(t1)}, s6, {vr(t1)}')
    a(f'ds_write_b128 {vr(t1)}, {vr(AC0,4)}'); a(f'ds_write_b128 {vr(t1)}, {vr(AC1,4)} offset:1024')
    a(f'v_add_u32 {vr(t0)}, {QRED}, {vr(t0)}')
    a('s_waitcnt lgkmcnt(0)'); a('s_barrier')
    for b in range(4):
        for w in range(4):
            a(f'ds_read_b128 {vr(D+8*w,4)}, {vr(t0)} offset:{2048*w+512*b}')
            a(f'ds_read_b128 {vr(D+8*w+4,4)}, {vr(t0)} offset:{2048*w+512*b+16}')
        a('s_waitcnt lgkmcnt(0)')
        for e in range(8):
            a(f'v_add_f32 {vr(D+e)}, {vr(D+e)}, {vr(D+8+e)}'); a(f'v_add_f32 {vr(D+16+e)}, {vr(D+16+e)}, {vr(D+24+e)}')
        for e in range(8): a(f'v_add_f32 {vr(D+e)}, {vr(D+e)}, {vr(D+16+e)}')
        for k in range(4): a(f'v_cvt_pk_bf16_f32 {vr(QB+4*b+k)}, {vr(D+2*k)}, {vr(D+2*k+1)}')
    a(f'v_bfe_u32 {vr(t0)}, {vr(vLane)}, 2, 2'); a(f'v_mul_u32_u24 {vr(t0)}, {8 * SQ_}, {vr(t0)}')
    a(f'v_lshl_add_u32 {vr(t0)}, {vr(vG)}, 5, {vr(t0)}')
    a(f'v_and_b32 {vr(t1)}, 1, {vr(vLane)}'); a(f'v_lshl_add_u32 {vr(t0)}, {vr(t1)}, 4, {vr(t0)}')
    a(f'v_bfe_u32 {vr(t2)}, {vr(vLane)}, 1, 1'); a(f'v_lshl_add_u32 {vr(t0)}, {vr(t2)}, 7, {vr(t0)}')
    for hf in range(2):
        stamp(4 + hf)
        for u in range(16):
            vm.wait(('u', 16 * hf + u))
            for k in range(4):
                for b in range(4):
                    c = '0' if k == 0 else vr(T + b)
                    a(f'v_dot2_f32_bf16 {vr(T+b)}, {vr(UK+64*hf+4*u+k)}, {vr(QB+4*b+k)}, {c}')
            reduce4(T, XX, U + u)
        for k in range(8): a(f'v_cvt_pk_bf16_f32 {vr(D+k)}, {vr(U+2*k)}, {vr(U+2*k+1)}')
        a(f'v_cmp_eq_u32 vcc, 1, {vr(t1)}')
        for k in range(4): a(f'v_cndmask_b32 {vr(E8+4*hf+k)}, {vr(D+k)}, {vr(D+4+k)}, vcc')
    a(f'v_cmp_eq_u32 vcc, 1, {vr(t2)}')
    for k in range(4): a(f'v_cndmask_b32 {vr(E8+k)}, {vr(E8+k)}, {vr(E8+4+k)}, vcc')
    for k in range(4): a(f'v_min_u32 {vr(E8+k)}, -2, {vr(E8+k)}')
    vm.wait('c0')
    ensure(C0, C0N, vC0)
    a(f's_lshl_b32 s6, s{sH}, 10'); a(f's_lshl_b32 s7, s{sW}, 8'); a('s_add_u32 s6, s6, s7'); a(f's_add_u32 s6, s6, {QABS}')
    if cfg.cell: a(f's_lshr_b32 s7, s{sH}, 2'); a(f's_mul_i32 s7, s7, {SQ_ - 4096}'); a('s_add_u32 s6, s6, s7')
    vm.issue(f'buffer_store_dwordx4 {vr(E8,4)}, {vr(t0)}, {srd(S_WS)}, s6 offen sc1')
    if cfg.flg & 2: signal(C2, t1); vm.done = len(vm.q)
    stamp(1)
    if cfg.cthr: vm.limit = cfg.cthr
    if cfg.dsk2 & 32: a(f's_mov_b32 s{S_K+2}, 0'); a(f's_mov_b32 s{S_WO+2}, 0')
    if cfg.ctl: vm.limit = cfg.cuv
    while nd[0] < 36 and not cfg.ctl: wo_dma()
    a(f'v_lshlrev_b32 {vr(vUoff)}, 18, {vr(vG)}'); a(f'v_lshl_add_u32 {vr(vUoff)}, {vr(vI)}, 4, {vr(vUoff)}')
    for j in range(32):
        a(f's_mov_b32 s6, {j*8192}')
        vm.issue(f'buffer_load_dwordx4 {vr(UK+4*j,4)}, {vr(vUoff)}, {srd(S_K)}, s6 offen {fl}', 'uv')
    sMon, sIt = 14, 15
    if cfg.ctl:
        assert cfg.cpre == 0 and 36 % cfg.cdn == 0
        mon = Mon(PA)
        a(f's_and_b32 s6, s{sH}, 3'); a(f's_lshl_b32 s6, s6, 2'); a(f's_add_u32 s{sMon}, s6, s{sW}')
        Ls = lab('nomon')
        a(f's_cmp_lg_u32 s{sMon}, 13'); a(f's_cbranch_scc1 {Ls}'); mon.init(vLane, sBeta); a(f'{Ls}:')
        a(f's_mov_b32 s{sIt}, {36 // cfg.cdn}')
        a('C_dma:')
        Ls, L2 = lab('nomon'), lab('nomon')
        a(f's_cmp_lg_u32 s{sMon}, 13'); a(f's_cbranch_scc1 {Ls}'); mon.loads(); a(f'{Ls}:')
        a(f's_mov_b32 m0, s{sM0}')
        for k in range(cfg.cdn): a(f'buffer_load_dwordx4 {vr(vL16)}, {srd(S_WO)}, s{sM0} offen offset:{1024*k} {fl} lds')
        a(f's_waitcnt vmcnt({cfg.cdn})')
        a(f's_cbranch_scc1 {L2}'); mon.step(); a(f'{L2}:')
        a(f's_add_u32 s{sM0}, s{sM0}, {1024*cfg.cdn}')
        a(f's_sub_u32 s{sIt}, s{sIt}, 1'); a(f's_cmp_lg_u32 s{sIt}, 0'); a('s_cbranch_scc1 C_dma')
        a('s_waitcnt vmcnt(0)')
    else: vm.wait('wo')
    flag_init()
    a('s_waitcnt lgkmcnt(0)'); a('s_barrier')
    wo_frag_reads(4, vT)
    stamp(2)
    ST = T; Mx = T + 2; Lx = T + 3; AF = X0; CX = QB; sF = 26
    a(f'v_and_b32 {vr(t1)}, {NCH-1}, {vr(vLane)}'); a(f'v_mul_u32_u24 {vr(t1)}, {cfg.pstt or 8}, {vr(t1)}')
    a(f's_lshl_b32 s6, s{sH}, {3 if cfg.pstt else 8}'); a(f's_mul_i32 s7, s{sW}, {(cfg.pstt or 8) * NCH}'); a('s_add_u32 s6, s6, s7'); a(f's_add_u32 s{sIt}, s6, {PSTAT}')
    a(f's_mov_b32 s7, {cfg.spin_max}')
    a('P_poll:')
    if cfg.ctl:
        Ls = lab('nomon')
        a(f's_cmp_lg_u32 s{sMon}, 13'); a(f's_cbranch_scc1 {Ls}'); mon.loads(); a(f'{Ls}:')
    a(f'buffer_load_dwordx2 {vr(ST,2)}, {vr(t1)}, {srd(S_WS)}, s{sIt} offen sc1')
    a('s_waitcnt vmcnt(0)')
    a(f'v_max_u32 {vr(Mx)}, {vr(ST)}, {vr(ST+1)}'); a(f'v_cmp_eq_u32 vcc, -1, {vr(Mx)}')
    a('s_cbranch_vccz P_ok')
    if cfg.ctl:
        Ls, L2 = lab('nomon'), lab('nomon')
        a(f's_cbranch_scc1 {Ls}'); mon.step(); a(f's_branch {L2}'); a(f'{Ls}:')
    a(f's_sleep {cfg.psleep}')
    if cfg.ctl: a(f'{L2}:')
    a('s_sub_u32 s7, s7, 1'); a('s_cmp_lg_u32 s7, 0'); a('s_cbranch_scc1 P_poll')
    a('P_ok:')
    for _ in range(cfg.pdel): a('s_sleep 64')
    stamp(6)
    vm = VM(a)
    PW = {0: 1 << 15 + LC, 5: 1 << 20}.get(cfg.psx, 1 << 19)
    PB3 = {0: [4096 * NCH << i for i in range(3)], 1: [1 << 16, 1 << 17, 1 << 18], 2: [3 << 15, 1 << 17, 1 << 18], 3: [1 << 15, 1 << 16, 1 << 18],
           4: [1 << 15, 1 << 16, 3 << 17], 5: [1 << 17, 1 << 18, 1 << 19]}[cfg.psx]
    if cfg.cell: PW = 8 * cfg.cell; PB3 = [cfg.cell << i for i in range(3)]
    def pk(k): return sum(PB3[i] for i in range(3) if k >> i & 1)
    a(f's_lshr_b32 s6, s{sH}, 3'); a(f's_mul_i32 s6, s6, {PW}')
    for i in range(3):
        a(f's_bitcmp1_b32 s{sH}, {i}'); a(f's_cselect_b32 s7, {PB3[i]}, 0'); a('s_add_u32 s6, s6, s7')
    a(f's_lshl_b32 s7, s{sW}, {10+LC}'); a('s_add_u32 s6, s6, s7'); a(f's_add_u32 s6, s6, {OOB if cfg.dsk2 & 2 else PART}')
    for ch in range(NCH):
        if ch == 4: a('s_add_u32 s6, s6, 4096')
        vm.issue(f'buffer_load_dwordx4 {vr(AF+4*ch,4)}, {vr(vL16)}, {srd(S_WS)}, s6 offen offset:{1024*(ch&3)} {cfg.pl2}', ('a', ch))
    a(f'v_mov_b32 {vr(Mx)}, {vr(ST)}')
    for sh in RORS: a(f'v_max_f32_dpp {vr(Mx)}, {vr(Mx)}, {vr(Mx)} row_ror:{sh} {DPPF}')
    a(f'v_sub_f32 {vr(ST)}, {vr(ST)}, {vr(Mx)}'); a(f'v_exp_f32 {vr(ST)}, {vr(ST)}')
    a(f'v_mul_f32 {vr(Lx)}, {vr(ST)}, {vr(ST+1)}')
    for sh in RORS: a(f'v_add_f32_dpp {vr(Lx)}, {vr(Lx)}, {vr(Lx)} row_ror:{sh} {DPPF}')
    a(f'v_rcp_f32 {vr(Lx)}, {vr(Lx)}'); a(f'v_mul_f32 {vr(ST)}, {vr(ST)}, {vr(Lx)}')
    for ch in range(NCH): a(f'v_readlane_b32 s{sF+ch}, {vr(ST)}, {ch}')
    a(f's_mul_i32 s6, s{sW}, {XS}'); a(f's_add_u32 s6, s6, {XB}'); a(f'v_add_u32 {vr(t0)}, s6, {vr(vL16)}')
    a(f'v_lshrrev_b32 {vr(t1)}, 3, {vr(vI)}'); a(f'v_mul_u32_u24 {vr(t1)}, {XS}, {vr(t1)}'); a(f'v_lshl_add_u32 {vr(t1)}, {vr(vG)}, 6, {vr(t1)}')
    a(f's_lshl_b32 s6, s{sW}, 8'); a(f's_add_u32 s6, s6, {XB}'); a(f'v_add_u32 {vr(t1)}, s6, {vr(t1)}')
    for ch in range(NCH):
        vm.wait(('a', ch))
        for d in range(4):
            a(f'v_lshlrev_b32 {vr(E8+2*d)}, 16, {vr(AF+4*ch+d)}'); a(f'v_and_b32 {vr(E8+2*d+1)}, 0xffff0000, {vr(AF+4*ch+d)}')
        for e in range(8):
            if ch == 0: a(f'v_mul_f32 {vr(CX+e)}, s{sF}, {vr(E8+e)}')
            else: a(f'v_fma_f32 {vr(CX+e)}, {vr(E8+e)}, s{sF+ch}, {vr(CX+e)}')
    for d in range(4): a(f'v_cvt_pk_bf16_f32 {vr(CX+8+d)}, {vr(CX+2*d)}, {vr(CX+2*d+1)}')
    a(f'ds_write_b128 {vr(t0)}, {vr(CX+8,4)}')
    a('s_waitcnt lgkmcnt(0)'); a('s_barrier')
    for k in range(4):
        a(f'ds_read_b128 {vr(X0+4*k,4)}, {vr(t1)} offset:{16*k}'); a(f'ds_read_b128 {vr(X1+4*k,4)}, {vr(t1)} offset:{2*XS+16*k}')
    a(f'v_lshrrev_b32 {vr(t0)}, 5, {vr(vLane)}'); a(f'v_mul_u32_u24 {vr(t0)}, {4*OS}, {vr(t0)}'); a(f'v_lshl_add_u32 {vr(t0)}, {vr(vI)}, 4, {vr(t0)}')
    a(f'v_and_b32 {vr(t2)}, 1, {vr(vG)}'); a(f'v_lshl_add_u32 {vr(t0)}, {vr(t2)}, 3, {vr(t0)}')
    a(f's_mul_i32 s6, s{sW}, {OS}'); a(f's_add_u32 s6, s6, {OT}'); a(f'v_add_u32 {vr(t0)}, s6, {vr(t0)}')
    a(f'v_mul_u32_u24 {vr(t2)}, {OS}, {vr(vI)}'); a(f'v_lshl_add_u32 {vr(t2)}, {vr(vG)}, 4, {vr(t2)}'); a(f'v_add_u32 {vr(t2)}, {OT}, {vr(t2)}')
    a('s_waitcnt lgkmcnt(0)')
    for j in range(32): wunit_mfma(j, [X0, X1], [AC0, AC1], SEL, PA, UK)
    for s_, AC in enumerate((AC0, AC1)):
        a(f'v_cvt_pk_bf16_f32 {vr(E8+2*s_)}, {vr(AC)}, {vr(AC+1)}'); a(f'v_cvt_pk_bf16_f32 {vr(E8+2*s_+1)}, {vr(AC+2)}, {vr(AC+3)}')
        a(f'ds_write_b64 {vr(t0)}, {vr(E8+2*s_,2)} offset:{8*OS*s_}')
    a('s_waitcnt lgkmcnt(0)'); a('s_barrier')
    for ks in range(4): a(f'ds_read_b128 {vr(PA+4*ks,4)}, {vr(t2)} offset:{64*ks}')
    O = QB
    if cfg.y16:
        a(f'v_mul_u32_u24 {vr(t0)}, {32*1152}, {vr(vG)}'); a(f'v_lshl_add_u32 {vr(t0)}, {vr(vI)}, 4, {vr(t0)}')
        a(f's_mul_i32 s6, s{sH}, 1152'); a(f's_add_u32 s6, s6, {OOB if cfg.dsk2 & 4 else YB}'); a(f's_lshl_b32 s7, s{sW}, 5'); a(f'v_add_u32 {vr(t1)}, s7, {vr(t0)}')
        a(f's_lshl_b32 s7, s{sW}, 8'); a(f'v_add_u32 {vr(t0)}, s7, {vr(t0)}')
    else:
        a(f'v_mul_u32_u24 {vr(t0)}, {8 * SB}, {vr(vG)}')
        a(f'v_and_b32 {vr(t1)}, 3, {vr(vLane)}'); a(f'v_bfe_u32 {vr(t2)}, {vr(vLane)}, 2, 2')
        a(f'v_lshl_add_u32 {vr(t1)}, {vr(t1)}, 2, {vr(t2)}'); a(f'v_lshl_add_u32 {vr(t1)}, {vr(t1)}, 2, {vr(t0)}')
        a(f'v_lshl_add_u32 {vr(t0)}, {vr(vI)}, 4, {vr(t0)}')
        a(f's_mul_i32 s6, s{sH}, 2304'); a(f's_mul_i32 s7, s{sW}, 576'); a('s_add_u32 s6, s6, s7'); a(f's_add_u32 s6, s6, {OOB if cfg.dsk2 & 4 else YB}')
        if cfg.cell: a(f's_lshr_b32 s7, s{sH}, 2'); a(f's_mul_i32 s7, s7, {SB - 9216}'); a('s_add_u32 s6, s6, s7')
    a('s_waitcnt lgkmcnt(0)')
    for t in range(9):
        for ks in range(4):
            c = '0' if ks == 0 else vr(D + 4 * t, 4)
            a(f'v_mfma_f32_16x16x32_bf16 {vr(D+4*t,4)}, {vr(PA+4*ks,4)}, {ar(AW+4*(t*4+ks),4)}, {c}')
    for t in range(9):
        a(f'v_add_f32 {vr(D+4*t)}, {vr(D+4*t)}, {vr(D+4*t+1)}'); a(f'v_add_f32 {vr(D+4*t+2)}, {vr(D+4*t+2)}, {vr(D+4*t+3)}')
        a(f'v_add_f32 {vr(O+t)}, {vr(D+4*t)}, {vr(D+4*t+2)}'); a(f'v_min_u32 {vr(O+t)}, -2, {vr(O+t)}')
    if cfg.y16:
        for d in range(4): a(f'v_cvt_pk_bf16_f32 {vr(O+d)}, {vr(O+2*d)}, {vr(O+2*d+1)}'); a(f'v_min_u32 {vr(O+d)}, -2, {vr(O+d)}')
        a(f'buffer_store_dwordx4 {vr(O,4)}, {vr(t0)}, {srd(S_WS)}, s6 offen sc1')
        tail16(O + 8, O + 12, t1, 's6', 0x00030003)
    else:
        a(f'buffer_store_dwordx4 {vr(O,4)}, {vr(t0)}, {srd(S_WS)}, s6 offen sc1')
        a(f'buffer_store_dwordx4 {vr(O+4,4)}, {vr(t0)}, {srd(S_WS)}, s6 offen offset:256 sc1')
        if cfg.t16:
            for e in range(1, 4): a(f'v_mov_b32_dpp {vr(O+8+e)}, {vr(O+8)} row_shl:{4*e} {DPPF}')
            a('s_mov_b32 exec_lo, 0x000f000f'); a('s_mov_b32 exec_hi, 0x000f000f')
            a(f'buffer_store_dwordx4 {vr(O+8,4)}, {vr(t1)}, {srd(S_WS)}, s6 offen offset:512 sc1')
            a('s_mov_b64 exec, -1')
        else: a(f'buffer_store_dword {vr(O+8)}, {vr(t1)}, {srd(S_WS)}, s6 offen offset:512 sc1')
    if cfg.flg & 1: signal(C1, t2)
    stamp(7)
    a('s_nop 1')
    a('s_branch B_final')
    NR = 64 // NCH; sDl, sRho = 80, 81
    CROW = 1088; CB = 64 * CROW
    QROW = 1056; SQ = 2 * CB
    PB = SQ + 16 * QROW; MX = PB + 4096; LS = MX + 512
    assert LS + 512 <= FLAG
    V = VAlloc(base)
    ACC = V(64, 4); S = V(8, 4); CF = V(64, 4); PF = V(16, 4); MXR = V(12, 4)
    mQ = V(2); mP = V(); lQ = V(2); aQ = V(2); aP = V(); vC = V(); PK = V(4, 2); Mx = V(2); tt = V()
    vA = V(2); vTr = V(2); vMw = V(); vMr = V(); vMp = V(); vPw = V(); vPr = V(); vQ = V(); vQw = V(); vCw = V(2)
    if cfg.djmp > 1: a('.p2align 7')
    a('D_role:')
    if cfg.djmp: prefix()
    if cfg.warm & 4: warm_code('', 'B_end', vLane, t0, t1, 2)
    a(f's_lshr_b32 s{sB2}, s{sH}, 3'); a(f's_lshr_b32 s{sDl}, s{sH}, {3-LC}'); a(f's_and_b32 s{sCh}, s{sDl}, {NCH-1}')
    a(f'v_xor_b32 {vr(vL16x)}, 32, {vr(vL16)}')
    for r in range(4): a(f'v_mov_b32 {vr(S+r)}, -1')
    karg_wait()
    mk_srd(S_WS, P_WS, None, WS_USED)
    a(f's_lshl_b32 s6, s{sB2}, 22'); mk_srd(S_K, P_CKV, 's6', 0 if cfg.dsk2 & 64 else 0x400000)
    def dpf():
        if not cfg.dpf: return
        NWV = 2 * NCH
        a(f'v_lshrrev_b32 {vr(t0)}, 3, {vr(vLane)}'); a(f'v_lshlrev_b32 {vr(t0)}, 13, {vr(t0)}')
        a(f'v_and_b32 {vr(t1)}, 7, {vr(vLane)}'); a(f'v_lshl_add_u32 {vr(t0)}, {vr(t1)}, 7, {vr(t0)}')
        a(f's_and_b32 s6, s{sDl}, {NWV//4-1}'); a('s_lshl_b32 s6, s6, 2'); a(f's_add_u32 s14, s6, s{sW}')
        a(f's_lshr_b32 s15, s{sH}, 2'); a('s_lshl_b32 s15, s15, 10')
        n = 0
        for bit, P, rows in ((2, P_BWQ, 576), (1, P_WUK, 512)):
            if not cfg.dpf & bit: continue
            mk_srd(S_U, P, None, rows * 8192)
            a(f's_mul_i32 s6, s14, {8*8192}'); a('s_add_u32 s6, s6, s15')
            for k in range(-(-rows // (8 * NWV))):
                a(f'buffer_load_dword {vr(CF+n)}, {vr(t0)}, {srd(S_U)}, s6 offen'); n += 1
                a(f's_add_u32 s6, s6, {8*NWV*8192}')
    L3, Lc = lab('clr3'), lab('clrd')
    a(f's_cmp_eq_u32 s{sW}, 3'); a(f's_cbranch_scc1 {L3}')
    if cfg.flg & 1: a(f's_cmp_eq_u32 s{sW}, 2'); a(f's_cbranch_scc1 {Lc}')
    a(f's_mul_i32 s6, s{sH}, {SA >> cfg.y16}'); a(f's_mul_i32 s7, s{sW}, {9216 >> cfg.y16}'); a('s_add_u32 s6, s6, s7'); a(f's_add_u32 s6, s6, {YA}')
    a(f's_mul_i32 s7, s{sH}, {SB >> cfg.y16}'); a(f's_add_u32 s7, s7, {YB}'); a(f's_cmp_eq_u32 s{sW}, 2'); a('s_cselect_b32 s6, s7, s6')
    for k in range(0 if cfg.dsk2 & 16 else 5 if cfg.y16 else 9):
        if k in (4, 8): a('s_add_u32 s6, s6, 4096')
        if cfg.y16 and k == 4: a('s_mov_b64 exec, 0xffffffff')
        a(f'buffer_store_dwordx4 {vr(S,4)}, {vr(vL16)}, {srd(S_WS)}, s6 offen offset:{1024*(k&3)} sc1')
    a('s_mov_b64 exec, -1')
    a(f's_branch {Lc}')
    a(f'{L3}:')
    a(f's_mul_i32 s6, s{sH}, {SQ_}'); a(f's_add_u32 s6, s6, {QABS}')
    for k in range(0 if cfg.flg & 2 else 4): a(f'buffer_store_dwordx4 {vr(S,4)}, {vr(vL16)}, {srd(S_WS)}, s6 offen offset:{1024*k} sc1')
    a('s_mov_b64 exec, 0xffff')
    a(f's_mul_i32 s6, s{sH}, {cfg.pstt or 256}'); a(f's_mul_i32 s7, s{sH}, {4 * cfg.astr}'); a(f's_add_u32 s7, s7, {AST}'); a(f's_add_u32 s6, s6, {PSTAT}')
    a(f'v_lshrrev_b32 {vr(t1)}, 2, {vr(vLane)}'); a(f'v_mul_u32_u24 {vr(t1)}, {cfg.astr - 64}, {vr(t1)}'); a(f'v_add_u32 {vr(t1)}, {vr(t1)}, {vr(vL16)}')
    a(f'buffer_store_dwordx4 {vr(S,4)}, {vr(vL16)}, {srd(S_WS)}, s6 offen sc1')
    a(f'buffer_store_dwordx4 {vr(S,4)}, {vr(t1)}, {srd(S_WS)}, s7 offen sc1')
    if cfg.dyn:
        a('s_mov_b64 exec, 3')
        a(f's_mul_i32 s6, s{sH}, {2 * cfg.psp}'); a(f's_add_u32 s6, s6, {PROG}')
        if cfg.pxs != 8 * cfg.psp: a(f's_lshr_b32 s7, s{sH}, 2'); a(f's_mul_i32 s7, s7, {cfg.pxs - 8 * cfg.psp}'); a('s_add_u32 s6, s6, s7')
        a(f'v_mul_u32_u24 {vr(t0)}, {cfg.psp}, {vr(vLane)}')
        a(f'buffer_store_dwordx4 {vr(S,4)}, {vr(t0)}, {srd(S_WS)}, s6 offen sc1')
        if cfg.mon or cfg.ctl:
            for _ in range(1 if cfg.msh else 2):
                a(f's_add_u32 s6, s6, {TFO if cfg.ctl else 0x4000}')
                a(f'buffer_store_dwordx4 {vr(S,4)}, {vr(t0)}, {srd(S_WS)}, s6 offen sc1')
    a('s_mov_b64 exec, -1')
    if cfg.msh:
        a(f's_mul_i32 s6, s{sH}, {cfg.gls}'); a(f's_add_u32 s6, s6, {PROG + 2 * TFO}')
        a(f'buffer_store_dwordx4 {vr(S,4)}, {vr(vL16)}, {srd(S_WS)}, s6 offen sc1')
    a(f'{Lc}:')
    mk_srd(S_DBG, P_DBG, None, 256); mk_srd(S_OUT, P_OUT, None, 9216)
    cw = cfg.cw2
    def coff(rho, k): return (64 * NCH * rho + (4 * NCH << cw) * (k >> cw) + (k & ((1 << cw) - 1))) * 1024
    vm = VM(a, 52)
    def c_dma(rho, k):
        a(f's_add_u32 m0, s{sM0}, {(rho&1)*CB + k*CROW}')
        a(f's_add_u32 s6, s{sSo}, {coff(rho, k)}')
        vm.issue(f'buffer_load_dwordx4 {vr(vL16x if k >= 8 else vL16)}, {srd(S_K)}, s6 offen {fl} lds', ('c', rho))
    def stg(rho): return 128 + 64 * (rho & 1)
    def c_reg(rho, k):
        a(f's_add_u32 s6, s{sSo}, {coff(rho, k)}')
        vm.issue(f'buffer_load_dwordx4 {ar(stg(rho)+4*k,4)}, {vr(vL16x if k >= 8 else vL16)}, {srd(S_K)}, s6 offen {fl}', ('c', rho))
    a(f's_mul_i32 s{sM0}, s{sW}, {16*CROW}')
    a(f's_lshl_b32 s{sSo}, s{sCh}, 2'); a(f's_add_u32 s{sSo}, s{sSo}, s{sW}'); a(f's_lshl_b32 s{sSo}, s{sSo}, {10 + cw}')
    def sig():
        a(f'v_mov_b32 {vr(t2)}, 1'); a('s_mov_b64 exec, 1')
        a(f'buffer_atomic_add {vr(t2)}, off, {srd(S_DBG)}, 0 offset:{C0}')
        a('s_mov_b64 exec, -1')
    if NCH == 4:
        a(f's_bitcmp0_b32 s{sH}, 0'); a('s_cbranch_scc1 D_act')
        a('s_waitcnt vmcnt(0)'); sig()
        dpf()
        a('s_sleep 127'); a('s_sleep 127')
        a(f'buffer_load_dword {vr(vC0)}, off, {srd(S_DBG)}, 0 offset:{C0} sc1')
        a('s_waitcnt vmcnt(0)')
        ensure(C0, C0N, vC0)
        flag_init()
        a('s_waitcnt lgkmcnt(0)'); a('s_barrier')
        a('s_branch B_final')
        a('D_act:')
    for k in range(8): c_dma(0, k)
    a('s_waitcnt vmcnt(8)')
    if cfg.c0x == 2: a('s_barrier'); a(f's_cmp_lg_u32 s{sW}, 0'); a('s_cbranch_scc1 D_nosig')
    if not cfg.c0x & 1: sig()
    if cfg.c0x == 2: a('D_nosig:')
    if NCH == 8: dpf()
    if cfg.dthr: vm.limit = cfg.dthr
    for k in range(8, 16): c_dma(0, k)
    for k in range(16): c_dma(1, k)
    for rho in (2, 3):
        for k in range(16 if rho == 2 or not cfg.dloop else 8): c_reg(rho, k)
    vm.limit = 52
    if cfg.dskip:
        a(f's_and_b32 s6, s2, 7'); a(f's_mov_b32 s7, {cfg.dskip}'); a('s_bitcmp1_b32 s7, s6'); a(f's_cselect_b32 s{S_K+2}, 0, s{S_K+2}')
    vm.issue(f'buffer_load_dword {vr(vC0)}, off, {srd(S_DBG)}, 0 offset:{C0} sc1', 'c0')
    stamp(1)
    sQ = 14
    a(f's_lshl_b32 s{sQ}, s{sB2}, 3'); a(f's_add_u32 s{sQ}, s{sQ}, s{sW}'); a(f's_mul_i32 s{sQ}, s{sQ}, {SQ_}'); a(f's_add_u32 s{sQ}, s{sQ}, {QABS}')
    a(f's_add_u32 s{sQ+1}, s{sQ}, {4 * SQ_}')
    def q_loads():
        for nt in range(2):
            for k in range(4):
                a(f'buffer_load_dwordx4 {vr(CF+16*nt+4*k,4)}, {vr(vL16)}, {srd(S_WS)}, s{sQ+nt} offen offset:{1024*k} sc1')
    a(f's_lshl_b32 s6, s{sW}, 4'); a(f'v_add_u32 {vr(t0)}, s6, {vr(vI)}'); a(f'v_mul_u32_u24 {vr(t0)}, {CROW}, {vr(t0)}')
    a(f'v_lshrrev_b32 {vr(t1)}, 3, {vr(vI)}'); a(f'v_lshlrev_b32 {vr(t1)}, 1, {vr(t1)}'); a(f'v_xor_b32 {vr(t1)}, {vr(t1)}, {vr(vG)}')
    a(f'v_lshl_add_u32 {vr(vA)}, {vr(t1)}, 4, {vr(t0)}'); a(f'v_add_u32 {vr(vA+1)}, {CB}, {vr(vA)}')
    a(f'v_lshrrev_b32 {vr(t0)}, 5, {vr(vLane)}'); a(f'v_lshlrev_b32 {vr(t0)}, 3, {vr(t0)}')
    a(f'v_bfe_u32 {vr(t1)}, {vr(vLane)}, 2, 2'); a(f'v_add_u32 {vr(t0)}, {vr(t0)}, {vr(t1)}'); a(f'v_mul_u32_u24 {vr(t0)}, {CROW}, {vr(t0)}')
    a(f'v_lshrrev_b32 {vr(t1)}, 1, {vr(vG)}'); a(f'v_xor_b32 {vr(t1)}, {vr(t1)}, {vr(vG)}')
    a(f'v_and_b32 {vr(t1)}, 1, {vr(t1)}'); a(f'v_lshl_add_u32 {vr(t0)}, {vr(t1)}, 5, {vr(t0)}')
    a(f'v_and_b32 {vr(t1)}, 3, {vr(vLane)}'); a(f'v_lshl_add_u32 {vr(t0)}, {vr(t1)}, 3, {vr(t0)}')
    a(f's_lshl_b32 s6, s{sW}, 8'); a(f'v_add_u32 {vr(vTr)}, s6, {vr(t0)}'); a(f'v_add_u32 {vr(vTr+1)}, {CB}, {vr(vTr)}')
    a(f'v_lshlrev_b32 {vr(vMr)}, 4, {vr(vI)}'); a(f'v_add_u32 {vr(vMr)}, {MX}, {vr(vMr)}')
    a(f's_lshl_b32 s6, s{sW}, 2'); a(f'v_add_u32 {vr(vMw)}, s6, {vr(vMr)}')
    a(f'v_and_b32 {vr(t0)}, 31, {vr(vLane)}'); a(f'v_lshlrev_b32 {vr(vMp)}, 4, {vr(t0)}'); a(f'v_add_u32 {vr(vMp)}, {MX}, {vr(vMp)}')
    a(f'v_lshlrev_b32 {vr(vPr)}, 5, {vr(t0)}'); a(f'v_lshrrev_b32 {vr(t1)}, 5, {vr(vLane)}')
    a(f'v_lshl_add_u32 {vr(vPr)}, {vr(t1)}, 4, {vr(vPr)}'); a(f'v_add_u32 {vr(vPr)}, {PB}, {vr(vPr)}')
    a(f'v_lshlrev_b32 {vr(vPw)}, 5, {vr(vI)}'); a(f'v_lshl_add_u32 {vr(vPw)}, {vr(vG)}, 3, {vr(vPw)}')
    a(f's_lshl_b32 s6, s{sW}, 10'); a(f's_add_u32 s6, s6, {PB}'); a(f'v_add_u32 {vr(vPw)}, s6, {vr(vPw)}')
    a(f'v_mul_u32_u24 {vr(vQ)}, {QROW}, {vr(vI)}'); a(f'v_lshl_add_u32 {vr(vQ)}, {vr(vG)}, 4, {vr(vQ)}'); a(f'v_add_u32 {vr(vQ)}, {SQ}, {vr(vQ)}')
    a(f's_mul_i32 s6, s{sW}, {4*QROW}'); a(f's_add_u32 s6, s6, {SQ}'); a(f'v_add_u32 {vr(vQw)}, s6, {vr(vL16)}')
    a(f'v_add_u32 {vr(vCw)}, s{sM0}, {vr(vL16)}'); a(f'v_add_u32 {vr(vCw+1)}, {CB}, {vr(vCw)}')
    a(f'v_mov_b32 {vr(vC)}, {f2u(SCALE):#x}')
    for r in (mQ, mQ + 1, mP): a(f'v_mov_b32 {vr(r)}, 0xff800000')
    a(f'v_mov_b32 {vr(lQ)}, 0'); a(f'v_mov_b32 {vr(lQ+1)}, 0')
    vm.wait('c0')
    ensure(C0, C0N, vC0)
    stamp(2)
    if cfg.flg & 2: poll(C2, 32, tt)
    a(f's_mov_b32 s7, {cfg.spin_max}')
    if cfg.qslow and not cfg.flg & 2:
        a(f'v_and_b32 {vr(t0)}, 3, {vr(vLane)}'); a(f'v_bfe_u32 {vr(t1)}, {vr(vLane)}, 2, 1'); a(f'v_mul_u32_u24 {vr(t1)}, {4 * SQ_}, {vr(t1)}')
        a(f'v_lshl_add_u32 {vr(t0)}, {vr(t0)}, 10, {vr(t1)}')
        a('Q_slow:')
        a(f'buffer_load_dword {vr(tt)}, {vr(t0)}, {srd(S_WS)}, s{sQ} offen offset:768 sc1')
        a('s_waitcnt vmcnt(0)')
        a(f'v_cmp_eq_u32 vcc, -1, {vr(tt)}')
        a('s_cbranch_vccz Q_chk')
        a(f's_sleep {cfg.qslow}')
        a('s_sub_u32 s7, s7, 1'); a('s_cmp_lg_u32 s7, 1'); a('s_cbranch_scc1 Q_slow')
    a('Q_chk:')
    q_loads()
    a('s_waitcnt vmcnt(0)')
    umax_tree(tt, range(CF, CF + 32))
    a(f'v_cmp_eq_u32 vcc, -1, {vr(tt)}')
    a('s_cbranch_vccz Q_ok')
    a(f's_sleep {cfg.qsleep}')
    a('s_sub_u32 s7, s7, 1'); a('s_cmp_lg_u32 s7, 0'); a('s_cbranch_scc1 Q_chk')
    a('Q_ok:')
    stamp(3)
    for nt in range(2):
        if nt: a('s_barrier')
        for k in range(4): a(f'ds_write_b128 {vr(vQw)}, {vr(CF+16*nt+4*k,4)} offset:{QROW*k}')
        a('s_waitcnt lgkmcnt(0)'); a('s_barrier')
        for ks in range(16): a(f'ds_read_b128 {ar(64*nt+4*ks,4)}, {vr(vQ)} offset:{64*ks}')
        a('s_waitcnt lgkmcnt(0)')
    pend = []
    def more(n=1):
        for _ in range(n):
            if pend: c_reg(*pend.pop(0))
    a(f's_mov_b32 s{sRho}, {NR//2}')
    for rho in range(3 if cfg.dloop else NR):
        par = rho & 1
        if cfg.dloop and rho == 1:
            a('D_loop:'); pend = [(3, k) for k in range(8, 16)]
        for ks in range(16):
            a(f'ds_read_b128 {vr(CF+4*ks,4)}, {vr(vA+par)} offset:{64*ks}')
        for ks in range(16):
            a(f's_waitcnt lgkmcnt({15-ks})')
            for nt in range(2):
                c = '0' if ks == 0 else vr(S + 4 * nt, 4)
                a(f'v_mfma_f32_16x16x32_bf16 {vr(S+4*nt,4)}, {vr(CF+4*ks,4)}, {ar(64*nt+4*ks,4)}, {c}')
            if ks & 1: more()
        assert not pend
        for nt in range(2):
            a(f'v_max_f32 {vr(Mx+nt)}, {vr(S+4*nt)}, {vr(S+4*nt+1)}')
            a(f'v_max3_f32 {vr(Mx+nt)}, {vr(Mx+nt)}, {vr(S+4*nt+2)}, {vr(S+4*nt+3)}')
            allred_rows(Mx + nt, tt, 'v_max_f32')
            a(f'ds_write_b32 {vr(vMw)}, {vr(Mx+nt)} offset:{256*nt}')
        a('s_waitcnt lgkmcnt(0)'); a('s_barrier')
        a(f'ds_read_b128 {vr(MXR,4)}, {vr(vMr)}'); a(f'ds_read_b128 {vr(MXR+4,4)}, {vr(vMr)} offset:256'); a(f'ds_read_b128 {vr(MXR+8,4)}, {vr(vMp)}')
        if 1 <= rho <= NR - 2:
            if cfg.dloop: a('s_waitcnt vmcnt(16)'); vm.reset()
            else: vm.wait(('c', rho + 1))
            for k in range(16): a(f'ds_write_b128 {vr(vCw+1-par)}, {ar(stg(rho+1)+4*k,4)} offset:{k*CROW}')
            a('s_waitcnt lgkmcnt(15)')
            if rho + 3 < NR: pend = [(rho + 3, k) for k in range(16)]
        else:
            a('s_waitcnt lgkmcnt(0)')
        for i, (m, al) in enumerate(((mQ, aQ), (mQ + 1, aQ + 1), (mP, aP))):
            R = MXR + 4 * i
            a(f'v_max_f32 {vr(R)}, {vr(R)}, {vr(R+1)}'); a(f'v_max3_f32 {vr(R)}, {vr(R)}, {vr(R+2)}, {vr(R+3)}')
            a(f'v_mul_f32 {vr(R)}, {vr(R)}, {vr(vC)}'); a(f'v_max_f32 {vr(R)}, {vr(R)}, {vr(m)}')
            a(f'v_sub_f32 {vr(al)}, {vr(m)}, {vr(R)}'); a(f'v_exp_f32 {vr(al)}, {vr(al)}'); a(f'v_mov_b32 {vr(m)}, {vr(R)}')
        for nt in range(2):
            for r in range(4):
                a(f'v_fma_f32 {vr(S+4*nt+r)}, {vr(S+4*nt+r)}, {vr(vC)}, -{vr(mQ+nt)}')
            for r in range(4): a(f'v_exp_f32 {vr(S+4*nt+r)}, {vr(S+4*nt+r)}')
            a(f'v_mul_f32 {vr(lQ+nt)}, {vr(lQ+nt)}, {vr(aQ+nt)}')
            a(f'v_cvt_pk_bf16_f32 {vr(PK+2*nt)}, {vr(S+4*nt)}, {vr(S+4*nt+1)}'); a(f'v_cvt_pk_bf16_f32 {vr(PK+2*nt+1)}, {vr(S+4*nt+2)}, {vr(S+4*nt+3)}')
            a(f'ds_write_b64 {vr(vPw)}, {vr(PK+2*nt,2)} offset:{512*nt}')
            for r in range(4): a(f'v_add_f32 {vr(lQ+nt)}, {vr(lQ+nt)}, {vr(S+4*nt+r)}')
        if rho > 0:
            for r in range(64): a(f'v_mul_f32 {vr(ACC+r)}, {vr(ACC+r)}, {vr(aP)}')
        a('s_waitcnt lgkmcnt(0)'); a('s_barrier')
        for ks in range(4): a(f'ds_read_b128 {vr(PF+4*ks,4)}, {vr(vPr)} offset:{1024*ks}')
        for ks in range(4):
            for ct in range(4):
                for sec in range(2):
                    a(f'ds_read_b64_tr_b16 {vr(CF+16*ks+4*ct+2*sec,2)}, {vr(vTr+par)} offset:{(16*ks+4*sec)*CROW + 64*ct}')
        for ks in range(4):
            a(f's_waitcnt lgkmcnt({min(15, 8*(3-ks))})')
            for ct in range(4):
                c = '0' if (rho == 0 and ks == 0) else vr(ACC + 16 * ct, 16)
                a(f'v_mfma_f32_32x32x16_bf16 {vr(ACC+16*ct,16)}, {vr(CF+16*ks+4*ct,4)}, {vr(PF+4*ks,4)}, {c}')
                if ct & 1: more()
        if cfg.dloop and rho == 1:
            a(f's_sub_u32 s{sRho}, s{sRho}, 1'); a(f's_cmp_eq_u32 s{sRho}, 0'); a('s_cbranch_scc1 D_done')
        if cfg.dloop and rho == 2:
            a(f's_add_u32 s{sSo}, s{sSo}, {coff(2, 0)}'); a('s_branch D_loop'); a('D_done:'); a('s_nop 7'); a('s_nop 7')
    stamp(4)
    for nt in range(2):
        allred_rows(lQ + nt, tt, 'v_add_f32')
        a(f'ds_write_b32 {vr(vMw)}, {vr(lQ+nt)} offset:{512+256*nt}')
    TROW = 1040
    a(f'v_and_b32 {vr(t0)}, 31, {vr(vLane)}'); a(f'v_mul_u32_u24 {vr(t0)}, {TROW}, {vr(t0)}')
    a(f'v_lshrrev_b32 {vr(t1)}, 5, {vr(vLane)}'); a(f'v_lshl_add_u32 {vr(t0)}, {vr(t1)}, 3, {vr(t0)}')
    a(f's_lshl_b32 s6, s{sW}, 8'); a(f'v_add_u32 {vr(t0)}, s6, {vr(t0)}')
    for ct in range(4):
        for rq in range(4):
            R = ACC + 16 * ct + 4 * rq; P = CF + 2 * (4 * ct + rq)
            a(f'v_cvt_pk_bf16_f32 {vr(P)}, {vr(R)}, {vr(R+1)}'); a(f'v_cvt_pk_bf16_f32 {vr(P+1)}, {vr(R+2)}, {vr(R+3)}')
            a(f'ds_write_b64 {vr(t0)}, {vr(P,2)} offset:{64*ct+16*rq}')
    flag_init()
    a('s_waitcnt lgkmcnt(0)'); a('s_barrier')
    a(f's_mul_i32 s6, s{sW}, {8*TROW}'); a(f'v_add_u32 {vr(t0)}, s6, {vr(vL16)}')
    for k in range(8): a(f'ds_read_b128 {vr(CF+32+4*k,4)}, {vr(t0)} offset:{k*TROW}')
    a(f'ds_read_b128 {vr(MXR,4)}, {vr(vMp)} offset:512')
    a(f's_mul_i32 s7, s{sW}, {PW}'); a(f's_lshl_b32 s6, s{sDl}, 10'); a('s_add_u32 s7, s7, s6'); a(f's_add_u32 s7, s7, {OOB if cfg.dsk2 & 1 else PART}')
    for k in range(8):
        a(f's_waitcnt lgkmcnt({8-k})')
        a(f's_add_u32 s6, s7, {pk(k)}')
        a(f'buffer_store_dwordx4 {vr(CF+32+4*k,4)}, {vr(vL16)}, {srd(S_WS)}, s6 offen {cfg.pst_flags}')
    a('s_waitcnt lgkmcnt(0)')
    a(f'v_add_f32 {vr(MXR)}, {vr(MXR)}, {vr(MXR+1)}'); a(f'v_add_f32 {vr(MXR+2)}, {vr(MXR+2)}, {vr(MXR+3)}')
    a(f'v_add_f32 {vr(PK+1)}, {vr(MXR)}, {vr(MXR+2)}'); a(f'v_mov_b32 {vr(PK)}, {vr(mP)}')
    a(f'v_lshlrev_b32 {vr(t0)}, {3 if cfg.pstt else 8}, {vr(vLane)}')
    a(f's_mul_i32 s6, s{sDl}, {cfg.pstt or 8}'); a(f's_add_u32 s6, s6, {PSTAT}')
    a(f'v_min_u32 {vr(PK)}, -2, {vr(PK)}'); a(f'v_min_u32 {vr(PK+1)}, -2, {vr(PK+1)}')
    a('s_waitcnt vmcnt(0)'); a('s_barrier')
    Ls = lab('nops')
    a(f's_cmp_lg_u32 s{sW}, 0'); a(f's_cbranch_scc1 {Ls}')
    a('s_mov_b64 exec, 0xffffffff')
    a(f'buffer_store_dwordx2 {vr(PK,2)}, {vr(t0)}, {srd(S_WS)}, s6 offen sc1')
    a('s_mov_b64 exec, -1')
    a(f'{Ls}:')
    stamp(5)
    gen_final(vLane, vG, t0, t1, vC0, sHalf, sBeta, base)

def gen_final(vLane, vG, t0, t1, vC0, sHalf, sBeta, base):
    a('B_final:')
    if cfg.dsk2 & 8: a('s_branch B_end')
    V = VAlloc(base)
    Y = V(32, 4); AS = Y; vYo = V(); vOo = V(); E = V()
    sTau, sTb, sSg, sY, sDone, sO = 14, 15, 80, 81, 82, 83
    if cfg.dyn:
        a(f's_cmp_eq_u32 s{sW}, 3'); a('s_cbranch_scc1 H_start')
        a(f's_mov_b32 s{sTau}, s{sBeta}'); a(f's_lshr_b32 s7, s{sW}, 1')
        Ls = lab('w1')
        a(f's_cmp_lg_u32 s{sW}, 1'); a(f's_cbranch_scc1 {Ls}')
        a(f's_and_b32 s7, s{sBeta}, 7')
        if cfg.mon: a('s_cmp_eq_u32 s7, 7'); a('s_cbranch_scc1 H_start')
        if cfg.ctl: a('s_cmp_eq_u32 s7, 7'); a('s_cbranch_scc1 M2_start')
        a('s_cmp_ge_u32 s7, 2'); a('s_cbranch_scc1 B_end')
        a(f's_lshr_b32 s{sTau}, s{sBeta}, 3'); a(f's_add_u32 s{sTau}, s{sTau}, 64')
        a(f'{Ls}:')
    else:
        a(f's_and_b32 s6, s{sW}, 1'); a('s_lshl_b32 s6, s6, 6'); a(f's_add_u32 s{sTau}, s{sBeta}, s6')
        a(f's_cmp_ge_u32 s{sTau}, 72'); a('s_cbranch_scc1 B_end')
        a(f's_lshr_b32 s7, s{sW}, 1')
    a(f's_mul_i32 s{sTb}, s{sTau}, 57'); a(f's_lshr_b32 s{sTb}, s{sTb}, 10')
    a(f's_mul_i32 s6, s{sTb}, 18'); a(f's_sub_u32 s{sSg}, s{sTau}, s6')
    if cfg.y16:
        assert cfg.cd and not cfg.cell
        U = V(16, 4)
        a(f's_mul_i32 s{sY}, s{sTb}, {64*1152}'); a(f's_lshr_b32 s{sY}, s{sY}, s7')
        a(f's_lshl_b32 s6, s{sSg}, 6'); a(f's_add_u32 s{sY}, s{sY}, s6')
        a(f's_mul_i32 s6, s7, {YB - YA}'); a(f's_add_u32 s{sY}, s{sY}, s6'); a(f's_add_u32 s{sY}, s{sY}, {YA}')
        a(f'v_lshrrev_b32 {vr(t0)}, 2, {vr(vLane)}'); a(f'v_and_b32 {vr(t1)}, 3, {vr(vLane)}')
        a(f'v_mul_u32_u24 {vr(vYo)}, 1152, {vr(t0)}'); a(f'v_lshl_add_u32 {vr(vYo)}, {vr(t1)}, 4, {vr(vYo)}')
        sh = 2 if cfg.rmf else 3
        a(f'v_bfe_u32 {vr(t0)}, {vr(vLane)}, {sh}, 2'); a(f'v_lshl_add_u32 {vr(t0)}, {vr(t0)}, 2, {vr(t1)}')
        a(f'v_lshrrev_b32 {vr(E)}, {sh+2}, {vr(vLane)}'); a(f'v_lshl_add_u32 {vr(vOo)}, {vr(E)}, 6, {vr(t0)}')
        a(f'v_lshrrev_b32 {vr(t0)}, 1, {vr(t1)}'); a(f'v_mul_u32_u24 {vr(t0)}, 142, {vr(t0)}'); a(f'v_add_u32 {vr(t0)}, {vr(t0)}, {vr(t1)}')
        a(f'v_lshrrev_b32 {vr(E)}, {sh}, {vr(vLane)}'); a(f'v_lshl_add_u32 {vr(t0)}, {vr(E)}, 1, {vr(t0)}')
        a(f's_lshr_b32 s6, s{sSg}, 2'); a(f's_mul_i32 s6, s6, 80'); a(f's_lshl_b32 s{sO}, s{sSg}, 4'); a(f's_add_u32 s{sO}, s{sO}, s6')
        a(f's_mul_i32 s6, s{sSg}, 288'); a(f's_sub_u32 s6, s6, {16*288 - 128}')
        a(f's_cmp_ge_u32 s{sSg}, 16'); a(f's_cselect_b32 s{sO}, s6, s{sO}'); a('s_cselect_b64 vcc, -1, 0')
        a(f'v_cndmask_b32 {vr(vOo)}, {vr(vOo)}, {vr(t0)}, vcc'); a(f'v_lshlrev_b32 {vr(vOo)}, 1, {vr(vOo)}')
        a(f's_lshl_b32 s{sO}, s{sO}, 1'); a(f's_mul_i32 s6, s{sTb}, 2304'); a(f's_add_u32 s{sO}, s{sO}, s6')
        a('s_mul_i32 s6, s7, 1152'); a(f's_add_u32 s{sO}, s{sO}, s6')
        if cfg.rmf:
            SL = Y + 8
            a(f'v_and_b32 {vr(t1)}, 1, {vr(vLane)}'); a(f'v_lshlrev_b32 {vr(t1)}, 4, {vr(t1)}')
            a(f'v_mov_b32 {vr(E)}, 0x3f80'); a(f'v_lshlrev_b32 {vr(E)}, {vr(t1)}, {vr(E)}'); a(f'v_bfe_u32 {vr(t1)}, {vr(vLane)}, 1, 3')
            for r in range(4): a(f'v_cmp_eq_u32 vcc, {r}, {vr(t1)}'); a(f'v_cndmask_b32 {vr(SL+r)}, 0, {vr(E)}, vcc')
        stamp(9)
        if cfg.rnb:
            NL = V(16 * cfg.rnb, 4)
            a('s_sub_u32 s6, s7, 1')
            for k in range(8): a(f's_mov_b32 s{16+k}, {-1 if k < 4 else "s6"}')
            for k in range(16): a(f'v_mov_b32 {vr(U+k)}, {-1 if k < 8 else "s6"}')
            for k in range(16 * cfg.rnb): a(f'v_mov_b32 {vr(NL+k)}, -1')
            for t in range(4): a(f's_add_u32 s{24+t}, s{sY}, {t*16*1152}')
        else:
            a(f's_mul_i32 s{sDone}, s7, 12')
            for k in range(8, 16): a(f'v_mov_b32 {vr(U+k)}, 0')
        if cfg.flg & 1:
            a('s_cmp_eq_u32 s7, 0'); a('s_cbranch_scc1 R_a')
            a(f'v_mov_b32 {vr(E)}, 0'); ensure(C1, 32, E)
            a('R_a:')
        a(f's_mov_b32 s7, {cfg.spin_max}')
        if cfg.slow:
            a(f'v_lshrrev_b32 {vr(t0)}, 3, {vr(vLane)}'); a(f'v_mul_u32_u24 {vr(t0)}, 4608, {vr(t0)}')
            if cfg.sk: a('s_and_b32 s6, s20, 1'); a(f'v_lshlrev_b32 {vr(t0)}, s6, {vr(t0)}')
            a('R_slow:')
            a(f'buffer_load_dword {vr(E)}, {vr(t0)}, {srd(S_WS)}, s{sY} offen {cfg.r_flags}')
            a('s_waitcnt vmcnt(0)')
            a(f'v_cmp_ne_u32 vcc, -1, {vr(E)}')
            if cfg.sk: a('s_bcnt1_i32_b64 s6, vcc'); a(f's_cmp_ge_u32 s6, {8*cfg.sk}'); a('s_cbranch_scc1 R_pass')
            else: a('s_cbranch_vccnz R_pass')
            a(f's_sleep {cfg.slow}')
            a('s_sub_u32 s7, s7, 1'); a('s_cmp_lg_u32 s7, 1'); a('s_cbranch_scc1 R_slow')
        if cfg.rnb:
            MK = 16; mk = lambda t: f's[{MK+2*t}:{MK+2*t+1}]'
            def ld(j, t): a(f'buffer_load_dwordx4 {vr(NL+16*j+4*t,4)}, {vr(vYo)}, {srd(S_WS)}, s{24+t} offen {cfg.r_flags}')
            def merge(j):
                for t in range(4):
                    Ls = lab('ck'); y = U + 4 * t
                    a(f's_cmp_eq_u64 {mk(t)}, 0'); a(f's_cbranch_scc1 {Ls}')
                    for r in range(4): a(f'v_min_u32 {vr(y+r)}, {vr(y+r)}, {vr(NL+16*j+4*t+r)}')
                    a(f'v_max3_u32 {vr(E)}, {vr(y)}, {vr(y+1)}, {vr(y+2)}'); a(f'v_max_u32 {vr(E)}, {vr(E)}, {vr(y+3)}')
                    a(f'v_cmp_eq_u32 {mk(t)}, -1, {vr(E)}')
                    a(f'{Ls}:')
                a(f's_or_b64 s[28:29], {mk(0)}, {mk(1)}'); a(f's_or_b64 s[30:31], {mk(2)}, {mk(3)}')
                a('s_or_b64 s[28:29], s[28:29], s[30:31]'); a('s_cbranch_scc0 R_done')
            def issue(j):
                for t in range(4): a(f's_or_b64 exec, {mk(t)}, 1'); ld(j, t)
                a('s_mov_b64 exec, -1')
            a('R_pass:')
            for t in range(4):
                Ls = lab('ld')
                a(f's_mov_b64 exec, {mk(t)}'); a(f's_cbranch_execz {Ls}'); ld(0, t); a(f'{Ls}:')
            a('s_mov_b64 exec, -1'); a('s_waitcnt vmcnt(0)')
            merge(0)
            a(f's_bcnt1_i32_b64 s6, {mk(0)}')
            for t in range(1, 4): a(f's_bcnt1_i32_b64 s28, {mk(t)}'); a('s_add_u32 s6, s6, s28')
            a(f's_cmp_le_u32 s6, {4*cfg.rth}'); a('s_cbranch_scc1 R_fast')
            if cfg.rsleep: a(f's_sleep {cfg.rsleep}')
            a('s_sub_u32 s7, s7, 1'); a('s_cmp_gt_u32 s7, 1'); a('s_cbranch_scc1 R_pass')
            a('R_fast:')
            for j in range(cfg.rnb):
                if j: a(f's_sleep {cfg.rd}')
                issue(j)
            a('R_loop:')
            for j in range(cfg.rnb):
                a(f's_waitcnt vmcnt({4*(cfg.rnb-1)})'); merge(j); issue(j)
            a('s_sub_u32 s7, s7, 1'); a('s_cmp_gt_i32 s7, 0'); a('s_cbranch_scc1 R_loop')
        else:
            a('R_pass:')
            for t in range(4):
                Ls = lab('ld')
                a(f's_bitcmp1_b32 s{sDone}, {t}'); a(f's_cbranch_scc1 {Ls}')
                a(f's_add_u32 s6, s{sY}, {t*16*1152}')
                a(f'buffer_load_dwordx4 {vr(U+4*t,4)}, {vr(vYo)}, {srd(S_WS)}, s6 offen {cfg.r_flags}')
                a(f'{Ls}:')
            a('s_waitcnt vmcnt(0)')
            for t in range(4):
                Ls = lab('ck'); y = U + 4 * t
                a(f's_bitcmp1_b32 s{sDone}, {t}'); a(f's_cbranch_scc1 {Ls}')
                a(f'v_max3_u32 {vr(E)}, {vr(y)}, {vr(y+1)}, {vr(y+2)}'); a(f'v_max_u32 {vr(E)}, {vr(E)}, {vr(y+3)}')
                a(f'v_cmp_eq_u32 vcc, -1, {vr(E)}')
                a(f's_cbranch_vccnz {Ls}')
                a(f's_bitset1_b32 s{sDone}, {t}')
                a(f'{Ls}:')
            a(f's_cmp_eq_u32 s{sDone}, 15'); a('s_cbranch_scc1 R_done')
            if cfg.rsleep: a(f's_sleep {cfg.rsleep}')
            a('s_sub_u32 s7, s7, 1'); a('s_cmp_lg_u32 s7, 0'); a('s_cbranch_scc1 R_pass')
        a('R_done:')
        stamp(10)
        if cfg.rmf:
            for t in range(4): a(f'v_mfma_f32_16x16x32_bf16 {vr(Y,4)}, {vr(SL,4)}, {vr(U+4*t,4)}, {vr(Y,4) if t else 0}')
            for r in range(4): a(f'v_add_f32_dpp {vr(Y+4+(r&1))}, {vr(Y+r)}, {vr(Y+r)} row_ror:8 row_mask:0xf bank_mask:{0xc if r > 1 else 0x3:#x}')
            a(f'v_add_f32_dpp {vr(E)}, {vr(Y+4)}, {vr(Y+4)} row_shl:4 row_mask:0xf bank_mask:0x5')
            a(f'v_add_f32_dpp {vr(E)}, {vr(Y+5)}, {vr(Y+5)} row_shr:4 row_mask:0xf bank_mask:0xa')
            a('s_mov_b64 exec, 0xffffffff')
            a(f'v_cvt_pk_bf16_f32 {vr(E)}, {vr(E)}, {vr(E)}')
        else:
            for k in range(16):
                a(f'v_lshlrev_b32 {vr(Y+2*k)}, 16, {vr(U+k)}'); a(f'v_and_b32 {vr(Y+2*k+1)}, 0xffff0000, {vr(U+k)}')
            for st in (16, 8):
                for k in range(0, st, 2): a(f'v_pk_add_f32 {vr(Y+k,2)}, {vr(Y+k,2)}, {vr(Y+k+st,2)}')
            for t in range(4): a(f'v_permlane32_swap_b32 {vr(Y+t)}, {vr(Y+t+4)}')
            for t in (0, 2): a(f'v_pk_add_f32 {vr(Y+t,2)}, {vr(Y+t,2)}, {vr(Y+t+4,2)}')
            for t in range(2): a(f'v_permlane16_swap_b32 {vr(Y+t)}, {vr(Y+t+2)}')
            a(f'v_pk_add_f32 {vr(Y,2)}, {vr(Y,2)}, {vr(Y+2,2)}')
            for t in range(2): a(f'v_add_f32_dpp {vr(Y+t)}, {vr(Y+t)}, {vr(Y+t)} row_ror:4 {DPPF}')
            a(f'v_add_f32_dpp {vr(E)}, {vr(Y)}, {vr(Y)} row_ror:8 row_mask:0xf bank_mask:0x3')
            a(f'v_add_f32_dpp {vr(E)}, {vr(Y+1)}, {vr(Y+1)} row_ror:8 row_mask:0xf bank_mask:0xc')
            a(f'v_cvt_pk_bf16_f32 {vr(E)}, {vr(E)}, {vr(E)}')
            a('s_mov_b32 exec_lo, 0x0f0f0f0f'); a('s_mov_b32 exec_hi, 0x0f0f0f0f')
        a(f'buffer_store_short {vr(E)}, {vr(vOo)}, {srd(S_OUT)}, s{sO} offen {cfg.out_flags}')
        a('s_mov_b64 exec, -1')
    else:
        a(f's_mul_i32 s{sY}, s{sTb}, {8 * SA}')
        if cfg.cd and not cfg.cell: a(f's_lshr_b32 s{sY}, s{sY}, s7')
        a(f's_lshl_b32 s6, s{sSg}, 7'); a(f's_add_u32 s{sY}, s{sY}, s6')
        a(f's_mul_i32 s6, s7, {YB - YA}'); a(f's_add_u32 s{sY}, s{sY}, s6'); a(f's_add_u32 s{sY}, s{sY}, {YA}')
        a(f's_mul_i32 s{sO}, s{sTb}, 2304'); a(f's_lshl_b32 s6, s{sSg}, 6'); a(f's_add_u32 s{sO}, s{sO}, s6')
        a('s_mul_i32 s6, s7, 1152'); a(f's_add_u32 s{sO}, s{sO}, s6')
        a(f'v_lshrrev_b32 {vr(t0)}, 3, {vr(vLane)}'); a(f'v_and_b32 {vr(t1)}, 7, {vr(vLane)}')
        a(f'v_mul_u32_u24 {vr(vYo)}, 2304, {vr(t0)}'); a(f'v_lshl_add_u32 {vr(vYo)}, {vr(t1)}, 4, {vr(vYo)}')
        if cfg.cell:
            a(f's_mul_i32 s6, s7, {SB - 9216}'); a(f'v_lshrrev_b32 {vr(t0)}, 5, {vr(vLane)}'); a(f'v_mul_u32_u24 {vr(t0)}, s6, {vr(t0)}')
            a(f'v_add_u32 {vr(vYo)}, {vr(vYo)}, {vr(t0)}'); a(f's_lshl_b32 s{sTau}, {cfg.cell}, s7')
        a(f'v_bfe_u32 {vr(t0)}, {vr(vLane)}, 2, 1'); a(f'v_lshl_add_u32 {vr(t0)}, {vr(t0)}, 2, {vr(vG)}')
        a(f'v_and_b32 {vr(t1)}, 3, {vr(vLane)}'); a(f'v_lshl_add_u32 {vr(t0)}, {vr(t0)}, 2, {vr(t1)}'); a(f'v_lshlrev_b32 {vr(vOo)}, 1, {vr(t0)}')
        stamp(9)
        if cfg.cd:
            a(f's_mul_i32 s{sDone}, s7, 0xf0')
            for k in range(16, 32): a(f'v_mov_b32 {vr(Y+k)}, 0')
        else: a(f's_mov_b32 s{sDone}, 0')
        a(f's_mov_b32 s7, {cfg.spin_max}')
        if cfg.slow:
            a(f'v_lshrrev_b32 {vr(t0)}, 3, {vr(vLane)}'); a(f'v_mul_u32_u24 {vr(t0)}, {cfg.cell or 9216}, {vr(t0)}')
            a('R_slow:')
            a(f'buffer_load_dword {vr(E)}, {vr(t0)}, {srd(S_WS)}, s{sY} offen {cfg.r_flags}')
            a('s_waitcnt vmcnt(0)')
            a(f'v_cmp_ne_u32 vcc, -1, {vr(E)}')
            a('s_cbranch_vccnz R_pass')
            a(f's_sleep {cfg.slow}')
            a('s_sub_u32 s7, s7, 1'); a('s_cmp_lg_u32 s7, 1'); a('s_cbranch_scc1 R_slow')
        a('R_pass:')
        for t in range(8):
            Ls = lab('ld')
            a(f's_bitcmp1_b32 s{sDone}, {t}'); a(f's_cbranch_scc1 {Ls}')
            if cfg.cell: a(f's_mul_i32 s6, s{sTau}, {t}'); a(f's_add_u32 s6, s6, s{sY}')
            else: a(f's_add_u32 s6, s{sY}, {t*8*2304}')
            a(f'buffer_load_dwordx4 {vr(Y+4*t,4)}, {vr(vYo)}, {srd(S_WS)}, s6 offen {cfg.r_flags}')
            a(f'{Ls}:')
        a('s_waitcnt vmcnt(0)')
        for t in range(8):
            Ls = lab('ck'); y = Y + 4 * t
            a(f's_bitcmp1_b32 s{sDone}, {t}'); a(f's_cbranch_scc1 {Ls}')
            a(f'v_max3_u32 {vr(E)}, {vr(y)}, {vr(y+1)}, {vr(y+2)}'); a(f'v_max_u32 {vr(E)}, {vr(E)}, {vr(y+3)}')
            a(f'v_cmp_eq_u32 vcc, -1, {vr(E)}')
            a(f's_cbranch_vccnz {Ls}')
            a(f's_bitset1_b32 s{sDone}, {t}')
            a(f'{Ls}:')
        a(f's_cmp_eq_u32 s{sDone}, 255'); a('s_cbranch_scc1 R_done')
        if cfg.rsleep: a(f's_sleep {cfg.rsleep}')
        a('s_sub_u32 s7, s7, 1'); a('s_cmp_lg_u32 s7, 0'); a('s_cbranch_scc1 R_pass')
        a('R_done:')
        stamp(10)
        for st in (16, 8, 4):
            for k in range(0, st, 2): a(f'v_pk_add_f32 {vr(Y+k,2)}, {vr(Y+k,2)}, {vr(Y+k+st,2)}')
        a(f'v_permlane32_swap_b32 {vr(AS)}, {vr(AS+2)}'); a(f'v_permlane32_swap_b32 {vr(AS+1)}, {vr(AS+3)}')
        a(f'v_add_f32 {vr(AS)}, {vr(AS)}, {vr(AS+2)}'); a(f'v_add_f32 {vr(AS+1)}, {vr(AS+1)}, {vr(AS+3)}')
        a(f'v_permlane16_swap_b32 {vr(AS)}, {vr(AS+1)}')
        a(f'v_add_f32 {vr(AS)}, {vr(AS)}, {vr(AS+1)}')
        a(f'v_add_f32_dpp {vr(AS)}, {vr(AS)}, {vr(AS)} row_ror:8 {DPPF}')
        a(f'v_cvt_pk_bf16_f32 {vr(AS)}, {vr(AS)}, {vr(AS)}')
        a('s_mov_b32 exec_lo, 0x00ff00ff'); a('s_mov_b32 exec_hi, 0x00ff00ff')
        a(f'buffer_store_short {vr(AS)}, {vr(vOo)}, {srd(S_OUT)}, s{sO} offen {cfg.out_flags}')
        a('s_mov_b64 exec, -1')
    if cfg.dyn:
        a(f's_cmp_lg_u32 s{sW}, 0'); a('s_cbranch_scc1 B_fin')
        a(f'ds_write_b32 {vr(vC0)}, {vr(vC0)}'); a('s_waitcnt lgkmcnt(0)')
        a('B_fin:')
    stamp(11)
    a('B_end:')
    stamp_flush(t0, 'B')
    a('s_endpgm')
    if cfg.dyn: gen_helper(vLane, sHalf, sBeta, base, vC0)

def gen_helper(vLane, sHalf, sBeta, base, vFl):
    V = VAlloc(base)
    PG = V(4, 4); vA = V(); vB = V(); vO = V(); vP = V(); S = V(); t = V(); dm = V(2)
    pf, p, d, sS, sJ, sD, sN = 16, 20, 24, 28, 29, 30, 31
    BIG = 0x2000000
    a('H_start:')
    if cfg.xh:
        a(f's_bitcmp1_b32 s{sH}, 2'); a('s_cbranch_scc1 B_end')
        a(f's_add_u32 s{sH}, s{sH}, {cfg.xd}'); a(f's_and_b32 s{sH}, s{sH}, 31')
    a(f's_lshl_b32 s6, s{sHalf}, 6'); a(f's_add_u32 s6, s6, s{sH}'); a('s_lshl_b32 s6, s6, 20')
    mk_srd(S_V, P_V, 's6', BIG + 0x100000)
    a(f'v_lshlrev_b32 {vr(vA)}, 7, {vr(vLane)}'); a(f'v_and_b32 {vr(vB)}, 4095, {vr(vA)}'); a(f'v_add_u32 {vr(vA)}, 4096, {vr(vA)}')
    a(f'v_lshrrev_b32 {vr(t)}, 5, {vr(vLane)}'); a(f'v_mul_u32_u24 {vr(t)}, 20480, {vr(t)}'); a(f'v_add_u32 {vr(vB)}, {vr(vB)}, {vr(t)}')
    if cfg.hloc:
        a(f's_and_b32 s6, s{sBeta}, 56'); a(f'v_and_b32 {vr(vP)}, 7, {vr(vLane)}'); a(f'v_add_u32 {vr(vP)}, s6, {vr(vP)}')
        a(f'v_mul_u32_u24 {vr(vP)}, {cfg.psp}, {vr(vP)}')
    else: a(f'v_mul_u32_u24 {vr(vP)}, {cfg.psp}, {vr(vLane)}')
    a(f'v_add_u32 {vr(vP)}, {PROG}, {vr(vP)}')
    if cfg.pxs != 8 * cfg.psp: a(f's_lshr_b32 s7, s{sH}, 2'); a(f's_mul_i32 s7, s7, {cfg.pxs - 8 * cfg.psp}'); a(f'v_add_u32 {vr(vP)}, s7, {vr(vP)}')
    for j in range(3): a(f's_mov_b32 s{pf+j}, 43')
    a(f's_mov_b32 s{sN}, {cfg.spin_max}')
    if cfg.dyn == 2: a('s_branch H_end')
    if cfg.mon: a(f's_cmp_eq_u32 s{sW}, 1'); a('s_cbranch_scc1 M_start')
    NP = 4 if cfg.mon and not cfg.thr else 3
    def psum():
        for j in range(3):
            if cfg.ctl:
                a(f'v_subrev_u32 {vr(PG+j)}, {44 - cfg.hoff}, {vr(PG+j)}')
                if not cfg.hlo: a(f'v_cmp_lt_i32 vcc, {cfg.hoff}, {vr(PG+j)}'); a(f'v_cndmask_b32 {vr(PG+j)}, -1, {vr(PG+j)}, vcc')
            a(f'v_med3_i32 {vr(PG+j)}, {vr(PG+j)}, {-cfg.hlo if cfg.hlo else -1}, {28 + cfg.hoff}')
        a(f'v_add3_u32 {vr(S)}, {vr(PG)}, {vr(PG+1)}, {vr(PG+2)}')
        for sh in (4, 2, 1): a(f'v_add_u32_dpp {vr(S)}, {vr(S)}, {vr(S)} row_ror:{sh} {DPPF}')
        a(f'v_lshlrev_b32 {vr(S)}, 3, {vr(S)}')
        a(f'v_readfirstlane_b32 s{sS}, {vr(S)}')
    a(f'buffer_load_dwordx{NP} {vr(PG,NP)}, {vr(vP)}, {srd(S_WS)}, 0 offen {cfg.pl_flags}')
    a('s_waitcnt vmcnt(0)')
    a('H_loop:')
    psum()
    for j in range(3): a(f'v_readlane_b32 s{p+j}, {vr(PG+j)}, s{sBeta}')
    if NP == 4: a(f'v_readlane_b32 s6, {vr(PG+3)}, 7'); a(f's_add_i32 s{sS}, s{sS}, s6')
    if cfg.hforce:
        a(f's_and_b32 s6, s2, 7'); a(f's_mov_b32 s7, {cfg.hforce}'); a('s_bitcmp1_b32 s7, s6'); a(f's_cselect_b32 s6, {cfg.hfa}, 0'); a(f's_add_i32 s{sS}, s{sS}, s6')
    a(f'buffer_load_dwordx{NP} {vr(PG,NP)}, {vr(vP)}, {srd(S_WS)}, 0 offen {cfg.pl_flags}')
    NEG = -(1 << 20)
    for j in range(3):
        a(f's_mul_i32 s6, s{p+j}, 192'); a(f's_sub_i32 s{d+j}, s{sS}, s6')
        a(f's_mul_i32 s6, s{pf+j}, {cfg.hK}'); a(f's_add_i32 s{d+j}, s{d+j}, s6')
        a(f's_add_i32 s6, s{pf+j}, {cfg.hoff - 16 - cfg.hmar}'); a(f's_cmp_ge_i32 s6, s{p+j}')
        a(f's_cselect_b32 s{d+j}, s{d+j}, {NEG}')
    if cfg.xh:
        for j in range(3):
            a(f's_lshl_b32 s{d+j}, s{pf+j}, 12'); a(f's_cmp_gt_i32 s{pf+j}, {43 - cfg.xh}'); a(f's_cselect_b32 s{d+j}, s{d+j}, {NEG}')
    a(f's_cmp_ge_i32 s{d}, s{d+1}'); a(f's_cselect_b32 s{sJ}, 0, 1'); a(f's_max_i32 s{sD}, s{d}, s{d+1}')
    a(f's_cmp_ge_i32 s{sD}, s{d+2}'); a(f's_cselect_b32 s{sJ}, s{sJ}, 2'); a(f's_max_i32 s{sD}, s{sD}, s{d+2}')
    a(f's_cmp_eq_i32 s{sD}, {NEG}'); a('s_cbranch_scc1 H_end')
    a(f's_sub_u32 s{sN}, s{sN}, 1'); a(f's_cmp_eq_u32 s{sN}, 0'); a('s_cbranch_scc1 H_end')
    a(f's_cmp_lt_i32 s{sD}, {43 * cfg.hK + cfg.hth}'); a('s_cbranch_scc1 H_idle')
    for j in range(3):
        a(f's_cmp_eq_u32 s{sJ}, {j}'); a(f's_cselect_b32 s6, s{pf+j}, s6'); a(f's_subb_u32 s{pf+j}, s{pf+j}, 0')
    a('s_mul_i32 s6, s6, 24576'); a('s_sub_u32 s6, s6, 32768')
    a(f's_cmp_eq_u32 s{sJ}, 2'); a(f's_cselect_b32 s7, {BIG}, 0'); a('s_add_u32 s6, s6, s7')
    a(f's_cmp_eq_u32 s{sJ}, 1'); a('s_cselect_b64 vcc, -1, 0'); a('s_cselect_b32 s7, 25, 13'); a('s_lshl_b32 s7, 1, s7'); a('s_add_u32 s7, s7, s6')
    a(f'v_cndmask_b32 {vr(vO)}, {vr(vA)}, {vr(vB)}, vcc')
    a(f'buffer_load_dword {vr(dm)}, {vr(vO)}, {srd(S_V)}, s6 offen {cfg.h_flags}')
    a(f'buffer_load_dword {vr(dm+1)}, {vr(vO)}, {srd(S_V)}, s7 offen {cfg.h_flags}')
    a('s_waitcnt vmcnt(2)')
    a('s_branch H_loop')
    a('H_idle:')
    a(f'ds_read_b32 {vr(t)}, {vr(vFl)}')
    a('s_waitcnt vmcnt(0) lgkmcnt(0)'); a(f's_sleep {cfg.hsleep}')
    a(f'v_cmp_eq_u32 vcc, 0, {vr(t)}')
    a('s_cbranch_vccnz H_loop')
    a('H_end:')
    if cfg.stamps:
        a(f's_add_u32 s98, s{pf}, s{pf+1}'); a(f's_add_u32 s98, s98, s{pf+2}'); a('s_sub_u32 s98, 129, s98')
        a(f's_lshl_b32 s99, s{pf+1}, 8'); a(f's_or_b32 s99, s99, s{pf}'); a(f's_lshl_b32 s6, s{pf+2}, 16'); a('s_or_b32 s99, s99, s6')
    stamp(8)
    a('s_branch B_end')
    if cfg.ctl:
        mon = Mon(V(8, 4))
        a('M2_start:')
        mon.init(vLane, sBeta)
        a(f's_mov_b32 s{sN}, {cfg.spin_max}')
        a('M2_loop:')
        mon.loads()
        a(f'ds_read_b32 {vr(t)}, {vr(vFl)}')
        a('s_waitcnt vmcnt(0) lgkmcnt(0)')
        mon.step()
        if cfg.msleep: a(f's_sleep {cfg.msleep}')
        a(f's_cmp_ge_i32 s{mon.sS}, {192 * (28 + cfg.tm1 - 4)}'); a('s_cbranch_scc1 B_end')
        a(f's_sub_u32 s{sN}, s{sN}, 1'); a(f's_cmp_eq_u32 s{sN}, 0'); a('s_cbranch_scc1 B_end')
        a(f'v_cmp_eq_u32 vcc, 0, {vr(t)}')
        a('s_cbranch_vccnz M2_loop')
        a('s_branch B_end')
    if cfg.mon:
        GL = PROG + 0x8000; sX, sG, sDl, sO, sL = 16, 17, 18, 19, 20
        a('M_start:')
        a(f'v_and_b32 {vr(vA)}, {cfg.mref-1}, {vr(vLane)}'); a(f'v_lshlrev_b32 {vr(vA)}, 7, {vr(vA)}'); a(f'v_add_u32 {vr(vA)}, {GL}, {vr(vA)}')
        if cfg.mref == 4: a(f's_and_b32 s6, s{sBeta}, 32'); a('s_lshl_b32 s6, s6, 4'); a(f'v_add_u32 {vr(vA)}, s6, {vr(vA)}')
        a(f's_lshr_b32 s{sX}, s{sBeta}, 3'); a(f's_lshl_b32 s{sG}, s{sX}, 7'); a(f's_add_u32 s{sG}, s{sG}, {GL}')
        a(f's_mul_i32 s{sL}, s{sBeta}, {cfg.psp}'); a(f's_add_u32 s{sL}, s{sL}, {PROG + 12}')
        if cfg.thr: a(f's_sub_u32 s{sL}, s{sG}, 0x4000')
        a(f's_mov_b32 s{sDl}, 0')
        a('M_loop:')
        a(f'buffer_load_dwordx3 {vr(PG,3)}, {vr(vP)}, {srd(S_WS)}, 0 offen {cfg.pl_flags}')
        a(f'buffer_load_dword {vr(vB)}, {vr(vA)}, {srd(S_WS)}, 0 offen sc1')
        a(f'ds_read_b32 {vr(t)}, {vr(vFl)}')
        a('s_waitcnt vmcnt(1)')
        psum()
        a('s_mov_b64 exec, 1')
        a(f'buffer_store_dword {vr(S)}, off, {srd(S_WS)}, s{sG} sc1')
        a('s_mov_b64 exec, -1')
        a('s_waitcnt vmcnt(1) lgkmcnt(0)')
        a(f'v_readlane_b32 s{sO}, {vr(vB)}, s{sX}')
        a(f'v_cmp_eq_u32 vcc, -1, {vr(vB)}')
        a(f's_cmp_eq_u32 s{sO}, -1'); a('s_cbranch_scc1 M_next')
        a(f'v_subrev_u32 {vr(vB)}, s{sO}, {vr(vB)}')
        a(f'v_cndmask_b32 {vr(vB)}, {vr(vB)}, 0, vcc')
        for sh in (4, 2, 1): a(f'{"v_min_i32_dpp" if cfg.mmin else "v_add_u32_dpp"} {vr(vB)}, {vr(vB)}, {vr(vB)} row_ror:{sh} {DPPF}')
        a(f'v_readfirstlane_b32 s6, {vr(vB)}')
        if not cfg.mmin: a(f's_mul_i32 s6, s6, {cfg.mg}'); a('s_ashr_i32 s6, s6, 5')
        a(f's_sub_i32 s6, s6, s{sDl}'); a(f's_ashr_i32 s6, s6, {cfg.mf}'); a(f's_add_i32 s{sDl}, s{sDl}, s6')
        if cfg.thr:
            a(f's_cmp_lt_i32 s{sDl}, {-cfg.mth}')
            if cfg.tforce: a(f's_mov_b32 s6, {cfg.tforce}'); a(f's_bitcmp1_b32 s6, s{sX}')
            a('s_cselect_b32 s6, 1, 0'); a(f'v_mov_b32 {vr(vO)}, s6')
        else: a(f'v_mov_b32 {vr(vO)}, s{sDl}')
        a('s_mov_b64 exec, 1')
        a(f'buffer_store_dword {vr(vO)}, off, {srd(S_WS)}, s{sL}')
        a('s_mov_b64 exec, -1')
        a('M_next:')
        if cfg.msleep: a(f's_sleep {cfg.msleep}')
        a(f's_cmp_ge_i32 s{sS}, {192 * (28 + cfg.hoff)}'); a('s_cbranch_scc1 M_end')
        a(f's_sub_u32 s{sN}, s{sN}, 1'); a(f's_cmp_eq_u32 s{sN}, 0'); a('s_cbranch_scc1 M_end')
        a(f'v_cmp_eq_u32 vcc, 0, {vr(t)}')
        a('s_cbranch_vccnz M_loop')
        a('M_end:')
        if cfg.stamps: a(f's_sub_u32 s98, {cfg.spin_max}, s{sN}')
        a('s_branch B_end')

def gen():
    hdr = open('/code/' + NAME + '.s.ref').read().split('; Override')[0]
    a(f'{NAME}_kernel:')
    if cfg.stamps: a('s_memrealtime s[78:79]')
    a('s_cmpk_ge_u32 s2, 256' if cfg.ks1 else 's_cmp_ge_u32 s2, 256'); a('s_cbranch_scc1 L_exit')
    a('s_load_dwordx16 s[16:31], s[0:1], 0')
    if not cfg.ks1: a('s_load_dwordx8 s[32:39], s[0:1], 64'); a('s_load_dwordx4 s[40:43], s[0:1], 96')
    a('v_lshrrev_b32 v1, 6, v0'); a(f'v_readfirstlane_b32 s{sW}, v1')
    if cfg.hmap == 0:
        a('s_and_b32 s6, s2, 7'); a('s_bfe_u32 s7, s2, 0x20003'); a(f's_lshl_b32 s{sH}, s6, 2'); a(f's_add_u32 s{sH}, s{sH}, s7')
    else:
        a(f's_and_b32 s{sH}, s2, 31')
    a(f's_lshr_b32 s{sR}, s2, 5')
    if cfg.stamps:
        for k in range(0, 16, 2): a(f's_mov_b64 s[{84+k}:{85+k}], 0')
    if cfg.djmp: a('s_cbranch_scc0 B_role'); a(f's_cmp_eq_u32 s{sR}, 1'); a('s_cbranch_scc1 D_role')
    else: a(f's_cmp_lt_u32 s{sR}, 2'); a('s_cbranch_scc1 B_role')
    gen_A()
    a('L_exit:'); a('s_endpgm')
    gen_CD() if cfg.cd else gen_B()
    body = a.finish()
    out = hdr + f'; @launch grid=(256,1,1) block=(256,1,1) lds={LDS_TOTAL}\n'
    out += '; generated by gen/gen.py (hand-written generator)\n'
    out += f'.amdgcn_target "amdgcn-amd-amdhsa--gfx950"\n.text\n.globl {NAME}_kernel\n.p2align 8\n.type {NAME}_kernel,@function\n'
    out += body
    out += f'''.section .rodata,"a"
.p2align 6
.amdhsa_kernel {NAME}_kernel
  .amdhsa_next_free_vgpr 512
  .amdhsa_next_free_sgpr 102
  .amdhsa_accum_offset 256
  .amdhsa_group_segment_fixed_size 0
  .amdhsa_kernarg_size 112
  .amdhsa_user_sgpr_count 2
  .amdhsa_user_sgpr_kernarg_segment_ptr 1
  .amdhsa_system_sgpr_workgroup_id_x 1
.end_amdhsa_kernel
'''
    return out

if __name__ == '__main__':
    outp = sys.argv[1]
    for kv in sys.argv[2:]:
        k, v = kv.split('=', 1); v = v.replace('+', ' ')
        cur = getattr(cfg, k)
        setattr(cfg, k, (v == '1') if isinstance(cur, bool) else (int(v, 0) if isinstance(cur, int) else v))
    PART = cfg.part << 12; YA = cfg.ya << 12; YB = cfg.yb << 12; QABS = cfg.qa << 12
    if cfg.cell: SA = SB = SQ = cfg.cell; YA = PART + 32768; YB = YA + 18432; QABS = YB + 9216
    if cfg.astr > 64: AST = 0x600000
    if cfg.pstt > 256: PSTAT = 0xa00000
    open(outp, 'w').write(gen())
```
